```python
import torch

def _softmax(x, axis=-1):
    return torch.softmax(x, dim=axis)

def _gelu(x):
    return torch.nn.functional.gelu(x, approximate='tanh')

def _silu(x):
    return torch.nn.functional.silu(x)

def _sigmoid(x):
    return torch.sigmoid(x)

def _layernorm(x, axis=-1, eps=1e-05):
    m = x.mean(dim=axis, keepdim=True)
    v = x.var(dim=axis, keepdim=True, unbiased=False)
    return (x - m) / torch.sqrt(v + eps)

def _scatter_add(tgt, idx, src, axis=0):
    return tgt.clone().index_add_(axis, idx, src)

def _segment_sum(src, seg, n):
    out = torch.zeros((n,) + src.shape[1:], dtype=src.dtype)
    return out.index_add_(0, seg, src)

def _pad(x, pw):
    flat = tuple((v for pair in reversed(pw) for v in pair))
    return torch.nn.functional.pad(x, flat)
kernel_name = 'interleave_layers__sliding_local_dilated__memory_aug_recurrent_mem_tr__prompt'

def setup_inputs():

    _w = lambda a: (lambda t: t.to(torch.bfloat16) if t.is_floating_point() else t)(torch.as_tensor(a))

    def _A_setup():
        B, S, D = (1, 2048, 576)
        return {'x': _w((lambda *s: torch.randn(*s, dtype=torch.bfloat16) * 0.05)(B, S, D)), 'wqkv': _w((lambda *s: torch.randn(*s, dtype=torch.bfloat16) * 0.05)(D, 3 * D)), 'wo': _w((lambda *s: torch.randn(*s, dtype=torch.bfloat16) * 0.05)(D, D))}
    _A_in = _A_setup()

    def _B_setup():
        B, S, Dm = (1, 2048, 576)
        H, Dh = (32, 128)
        M, seg = (8, 32)
        seg = min(seg, S)
        S = S // seg * seg
        return {'x': _w((lambda *s: torch.randn(*s, dtype=torch.bfloat16) * 0.05)(B, S, Dm)), 'mem0': _w((lambda *s: torch.randn(*s, dtype=torch.bfloat16) * 0.8)(B, M, Dm)), 'Wq': _w((lambda *s: torch.randn(*s, dtype=torch.bfloat16) * 1.6)(Dm, H, Dh) * Dm ** (-0.5)), 'Wk': _w((lambda *s: torch.randn(*s, dtype=torch.bfloat16) * 1.6)(Dm, H, Dh) * Dm ** (-0.5)), 'Wv': _w((lambda *s: torch.randn(*s, dtype=torch.bfloat16) * 0.8)(Dm, H, Dh) * Dm ** (-0.5)), 'Wo': _w((lambda *s: torch.randn(*s, dtype=torch.bfloat16) * 0.8)(H, Dh, Dm) * (H * Dh) ** (-0.5)), 'seg_len': seg}
    _B_in = _B_setup()
    return {'A_x': _A_in['x'], 'A_wqkv': _A_in['wqkv'], 'A_wo': _A_in['wo'], 'B_x': _B_in['x'], 'B_mem0': _B_in['mem0'], 'B_Wq': _B_in['Wq'], 'B_Wk': _B_in['Wk'], 'B_Wv': _B_in['Wv'], 'B_Wo': _B_in['Wo'], 'B_seg_len': _B_in['seg_len']}

def reference(A_x, A_wqkv, A_wo, B_x, B_mem0, B_Wq, B_Wk, B_Wv, B_Wo, B_seg_len):

    def _A_ref(x, wqkv, wo):
        B, S, D = x.shape
        H = 32
        Dh = D // H
        W, dil = (8, 2)
        qkv = (lambda x, *d: x.permute(*d))((x @ wqkv).reshape(B, S, 3, H, Dh), 2, 0, 3, 1, 4)
        q, k, v = (qkv[0], qkv[1], qkv[2])
        scale = Dh ** (-0.5)
        pos = torch.arange(S)
        off = torch.arange(W) * dil
        idx = pos[:, None] - off[None, :]
        mask = idx >= 0
        idx_c = torch.where(mask, idx, 0).reshape(-1)
        kg = k[:, :, idx_c, :].reshape(B, H, S, W, Dh)
        vg = v[:, :, idx_c, :].reshape(B, H, S, W, Dh)
        logits = torch.einsum('bhsd,bhswd->bhsw', q, kg) * scale
        logits = torch.where(mask[None, None, :, :], logits, -1000000000.0)
        attn = _softmax(logits, axis=-1)
        o = torch.einsum('bhsw,bhswd->bhsd', attn, vg)
        return (lambda x, *d: x.permute(*d))(o, 0, 2, 1, 3).reshape(B, S, D) @ wo

    def _B_ref(x, mem0, Wq, Wk, Wv, Wo, seg_len):
        B, S, Dm = x.shape
        H, Dh = (Wq.shape[1], Wq.shape[2])
        M = mem0.shape[1]
        scale = Dh ** (-0.5)
        n_seg = S // seg_len
        L = M + seg_len
        idx = torch.arange(L)
        mask = (idx[:, None] < M) | (idx[:, None] >= idx[None, :])
        mem = mem0
        outs = []
        for s in range(n_seg):
            xs = x[:, s * seg_len:(s + 1) * seg_len, :].clone()
            h = torch.concatenate([mem, xs], axis=1)
            q = torch.einsum('btd,dhe->bhte', h, Wq)
            k = torch.einsum('btd,dhe->bhte', h, Wk)
            v = torch.einsum('btd,dhe->bhte', h, Wv)
            scores = torch.einsum('bhqe,bhke->bhqk', q, k) * scale
            scores = torch.where(mask[None, None], scores, -1000000000.0)
            p = _softmax(scores, axis=-1)
            o = torch.einsum('bhqk,bhke->bhqe', p, v)
            o = torch.einsum('bhte,hed->btd', o, Wo)
            mem = o[:, :M, :].clone()
            outs.append(o[:, M:, :])
        return torch.concatenate(outs, axis=1)
    x = A_x
    x = x + _A_ref(_layernorm(x, axis=-1), A_wqkv, A_wo)
    x = x + _B_ref(_layernorm(x, axis=-1), B_mem0, B_Wq, B_Wk, B_Wv, B_Wo, B_seg_len)
    x = x + _A_ref(_layernorm(x, axis=-1), A_wqkv, A_wo)
    x = x + _B_ref(_layernorm(x, axis=-1), B_mem0, B_Wq, B_Wk, B_Wv, B_Wo, B_seg_len)
    return x
```

```python
import re, os
RELAX = int(os.environ.get('RELAX', '1'))

V0, A0 = 1000, 2000
SPECIAL = {"vcc": (106, 2), "vcc_lo": (106, 1), "vcc_hi": (107, 1), "exec": (126, 2), "exec_lo": (126, 1),
           "exec_hi": (127, 1), "m0": (124, 1)}
_reg_re = re.compile(r"^([vas])(?:(\d+)|\[(\d+):(\d+)\])$")


def regs_of(tok):
    tok = tok.strip()
    if tok.startswith("-"):
        tok = tok[1:]
    if tok.startswith("abs(") and tok.endswith(")"):
        tok = tok[4:-1]
    if tok.startswith("|") and tok.endswith("|"):
        tok = tok[1:-1]
    if tok in SPECIAL:
        b, n = SPECIAL[tok]
        return list(range(b, b + n))
    m = _reg_re.match(tok)
    if not m:
        return []
    base = {"v": V0, "a": A0, "s": 0}[m.group(1)]
    if m.group(2) is not None:
        lo = hi = int(m.group(2))
    else:
        lo, hi = int(m.group(3)), int(m.group(4))
    return list(range(base + lo, base + hi + 1))


TRANS = ("v_exp_", "v_log_", "v_rcp_", "v_rsq_", "v_sqrt_", "v_sin_", "v_cos_")


def passes_of(mn):
    if "32x32x16" in mn or "32x32x8" in mn or "32x32x32" in mn:
        return 8
    if "16x16x4_f32" in mn:
        return 8
    return 4


class Inst:
    __slots__ = ("text", "mn", "kind", "rd", "wr", "srcC", "passes", "slots", "storedata", "dpp", "smask")

    def __init__(self, text):
        self.text = text
        body = text.split(";")[0].strip()
        parts = body.split(None, 1)
        mn = parts[0]
        self.mn = mn
        ops = []
        mods = ""
        if len(parts) > 1:
            raw = [o.strip() for o in parts[1].split(",")]
            for i, o in enumerate(raw):
                sp = o.split()
                ops.append(sp[0] if sp else "")
                if len(sp) > 1:
                    mods += " " + " ".join(sp[1:])
        self.rd, self.wr, self.srcC = [], [], []
        self.passes = 0
        self.slots = 1
        self.storedata = []
        self.dpp = ("_dpp" in mn) or ("row_" in mods) or ("quad_perm" in mods)
        R = [regs_of(o) for o in ops]
        if mn.startswith("v_smfmac"):
            self.kind = "mfma"
            self.passes = passes_of(mn)
            self.wr = R[0]
            self.srcC = R[0]
            self.rd = R[1] + R[2] + R[3]
        elif mn.startswith("v_mfma"):
            self.kind = "mfma"
            self.passes = passes_of(mn)
            self.wr = R[0]
            self.srcC = R[3]
            self.rd = R[1] + R[2]
        elif mn.startswith("v_"):
            self.kind = "valu"
            if mn.startswith("v_nop"):
                pass
            elif mn.startswith("v_permlane") and "swap" in mn:
                self.wr = R[0] + R[1]
                self.rd = R[0] + R[1]
            elif "_co_" in mn:
                self.wr = R[0] + R[1]
                self.rd = sum(R[2:], [])
            else:
                self.wr = R[0]
                self.rd = sum(R[1:], [])
                if mn.startswith(("v_fmac", "v_mac", "v_dot2c", "v_pk_fmac", "v_writelane")):
                    self.rd = self.rd + R[0]
                if self.dpp:
                    self.rd = self.rd + R[0]
                if mn.startswith("v_cndmask") and len(ops) == 3:
                    self.rd = self.rd + [106, 107]
        elif mn.startswith("ds_"):
            self.kind = "ds"
            if mn.startswith(("ds_read", "ds_bpermute", "ds_permute", "ds_swizzle")):
                self.wr = R[0]
                self.rd = sum(R[1:], [])
                if "d16" in mn:
                    self.rd = self.rd + R[0]
            else:
                self.rd = sum(R, [])
        elif mn.startswith(("global_", "buffer_")):
            self.kind = "vmem"
            lds = ("_lds_" in mn) or (" lds" in mods)
            if mn.startswith(("buffer_wbl2", "buffer_inv")):
                pass
            elif lds:
                self.rd = sum(R, []) + [124]
            elif "load" in mn:
                self.wr = R[0]
                self.rd = sum(R[1:], [])
                if "d16" in mn:
                    self.rd = self.rd + R[0]
            elif "atomic" in mn and " sc0" in mods:
                self.wr = R[0]
                self.rd = sum(R[1:], []) if mn.startswith("global_") else sum(R, [])
            else:
                self.rd = sum(R, [])
                if "x4" in mn or "x3" in mn:
                    self.storedata = R[1] if mn.startswith("global_") else R[0]
        elif mn.startswith(("s_load", "s_memtime", "s_memrealtime", "s_buffer_load", "s_atomic")):
            self.kind = "smem"
            self.wr = R[0]
            self.rd = sum(R[1:], [])
        elif mn.startswith("s_"):
            self.kind = "salu"
            if mn == "s_nop":
                self.slots = int(ops[0], 0) + 1
            elif mn.startswith(("s_cmp", "s_cbranch", "s_branch", "s_waitcnt", "s_barrier", "s_endpgm", "s_sleep",
                                "s_setprio", "s_bitcmp", "s_setpc")):
                self.rd = sum(R, [])
            else:
                self.wr = R[0]
                self.rd = sum(R[1:], [])
                if "saveexec" in mn:
                    self.wr = self.wr + [126, 127]
        else:
            raise ValueError("unknown instruction: " + text)


def need(prev, cur):
    n = 0
    pw = set(prev.wr)
    if prev.kind == "valu":
        vw = {r for r in pw if r >= V0}
        sw = {r for r in pw if r < V0}
        if vw:
            if cur.kind == "mfma" and vw & set(cur.rd + cur.srcC):
                n = max(n, 2)
            if cur.kind == "valu":
                if vw & set(cur.rd):
                    if cur.mn.startswith("v_permlane") or cur.dpp:
                        n = max(n, 2)
                    if cur.mn.startswith(("v_readlane", "v_readfirstlane")):
                        n = max(n, 1)
                    if prev.mn.startswith(TRANS) and not cur.mn.startswith(TRANS):
                        n = max(n, 1)
                    if prev.mn.startswith(TRANS):
                        n = max(n, 1)
        if sw:
            if cur.kind == "valu" and sw & set(cur.rd):
                n = max(n, 4 if cur.mn.startswith(("v_readlane", "v_writelane")) else 2)
            if cur.kind == "vmem" and sw & set(cur.rd):
                n = max(n, 5)
            if cur.kind in ("salu", "smem") and sw & set(cur.rd):
                n = max(n, 1)
            if cur.mn.startswith("s_cbranch_vcc") and sw & {106, 107}:
                n = max(n, 1)
    elif prev.kind == "mfma":
        p = prev.passes
        big = {2: 5, 4: 8, 8: 12, 16: 20}[p]
        if cur.kind == "mfma":
            if pw & set(cur.rd):
                n = max(n, big)
            if pw & set(cur.srcC):
                if not (cur.srcC == prev.wr and cur.mn == prev.mn):
                    n = max(n, {2: 4, 4: 6, 8: 10, 16: 18}[p])
            elif pw & set(cur.wr):
                n = max(n, {2: 4, 4: 6, 8: 10, 16: 18}[p])
        elif cur.kind in ("valu", "ds", "vmem"):
            if pw & set(cur.rd + cur.wr):
                n = max(n, big)
        if cur.kind == "valu" and set(prev.srcC) & set(cur.wr):
            n = max(n, {2: 1, 4: 3, 8: 7, 16: 15}[p])
    elif prev.kind == "vmem":
        if prev.storedata and set(prev.storedata) & set(cur.wr):
            n = max(n, 2 if cur.kind == "valu" else 1)
    elif prev.kind == "salu":
        if 124 in pw and cur.kind == "vmem" and 124 in cur.rd:
            n = max(n, 1)
    return n


class Asm:
    WIN = 24

    def __init__(self):
        self.out = []
        self.win = []
        self.vmq = []
        self.lgq = []
        self.branches = []
        self.auto = True
        self.uid = 0
        self.skip = ()

    def text(self, t):
        self.out.append(("t", t))

    def comment(self, t):
        self.out.append(("t", "    ; " + t))

    def newlabel(self, base="L"):
        self.uid += 1
        return f"{base}_{self.uid}"

    def label(self, name):
        self.out.append(("l", name))

    def _push(self, ins):
        self.out.append(("i", ins))
        self.win.append(ins)
        if len(self.win) > self.WIN:
            self.win.pop(0)

    @staticmethod
    def _needed(win, ins):
        dist = 0
        worst = 0
        for i in range(len(win) - 1, -1, -1):
            p = win[i]
            n = need(p, ins)
            if n > dist:
                d = dist
                if RELAX and p.kind == "mfma":
                    t, lm, lp = 0, 0, p.passes
                    for y in win[i + 1:]:
                        t += 1
                        if y.kind == "mfma":
                            t = max(t, lm + lp)
                            lm, lp = t, y.passes
                        t += y.slots - 1
                    t += 1
                    if ins.kind == "mfma":
                        t = max(t, lm + lp)
                    d = max(d, t - 1)
                if n - d > worst:
                    worst = n - d
            dist += p.slots
            if dist > 20:
                break
        return worst

    def _auto_wait(self, ins):
        touched = set(ins.rd) | set(ins.wr) | set(ins.srcC)
        vm = lg = None
        for i, (d, _) in enumerate(self.vmq):
            if d & touched:
                vm = len(self.vmq) - 1 - i
        for i, (d, _) in enumerate(self.lgq):
            if d & touched:
                lg = len(self.lgq) - 1 - i
        if vm is not None or lg is not None:
            self.wait(vm=vm, lg=lg)

    def wait(self, vm=None, lg=None):
        s = []
        if vm is not None and vm < len(self.vmq):
            k = min(vm, 63)
            s.append(f"vmcnt({k})")
            self.vmq = self.vmq[len(self.vmq) - k:] if k else []
        if lg is not None and lg < len(self.lgq):
            k = min(lg, 15)
            s.append(f"lgkmcnt({k})")
            self.lgq = self.lgq[len(self.lgq) - k:] if k else []
        if s:
            self._push(Inst("s_waitcnt " + " ".join(s)))

    def force_wait(self, vm=None, lg=None):
        s = []
        if vm is not None:
            s.append(f"vmcnt({vm})")
            self.vmq = self.vmq[len(self.vmq) - vm:] if vm and vm < len(self.vmq) else ([] if not vm else self.vmq)
        if lg is not None:
            s.append(f"lgkmcnt({lg})")
            self.lgq = self.lgq[len(self.lgq) - lg:] if lg and lg < len(self.lgq) else ([] if not lg else self.lgq)
        self._push(Inst("s_waitcnt " + " ".join(s)))

    def wait_tag(self, tag):
        vm = None
        for i, (_, t) in enumerate(self.vmq):
            if t == tag:
                vm = len(self.vmq) - 1 - i
        if vm is not None:
            self.wait(vm=vm)

    def I(self, text, tag=None):
        if self.skip and text.startswith(self.skip):
            return None
        ins = Inst(text)
        if ins.kind == "smem":
            pass
        if self.auto:
            self._auto_wait(ins)
        n = self._needed(self.win, ins)
        while n > 0:
            k = min(n, 16)
            self._push(Inst(f"s_nop {k - 1}"))
            n -= k
        self._push(ins)
        if ins.kind == "vmem" and not ins.mn.startswith(("buffer_wbl2", "buffer_inv")):
            self.vmq.append((frozenset(ins.wr), tag))
        elif ins.kind == "ds":
            self.lgq.append((frozenset(ins.wr), tag))
        if ins.mn.startswith(("s_cbranch", "s_branch")):
            tgt = text.split(";")[0].split()[1]
            self.branches.append((tgt, list(self.win)))
        return ins

    def __call__(self, text, tag=None):
        for line in text.strip().split("\n"):
            line = line.strip()
            if not line or line.startswith(";"):
                continue
            if line.endswith(":"):
                self.label(line[:-1])
            else:
                self.I(line, tag)

    def nop(self, n):
        while n > 0:
            k = min(n, 16)
            self._push(Inst(f"s_nop {k - 1}"))
            n -= k

    def barrier(self, lg=0):
        if lg is not None:
            self.wait(lg=lg)
        self.I("s_barrier")

    def snap(self):
        return (list(self.vmq), list(self.lgq))

    def restore(self, s):
        self.vmq, self.lgq = list(s[0]), list(s[1])

    def check_same(self, s, what=""):
        def norm(q):
            return [(tuple(sorted(d)), t) for d, t in q]
        for name, a, b in (("vm", s[0], self.vmq), ("lg", s[1], self.lgq)):
            a, b = norm(a), norm(b)
            if len(b) > len(a) or a[len(a) - len(b):] != b:
                raise RuntimeError(f"queue mismatch {what} {name}:\n entry={a}\n back={b}")

    def reset_window(self):
        self.win = []
        self.vmq = []
        self.lgq = []

    def check_branches(self):
        pos = {}
        for i, (k, p) in enumerate(self.out):
            if k == "l":
                pos[p] = i
        errs = []
        for tgt, win in self.branches:
            if tgt not in pos:
                raise RuntimeError("unknown label " + tgt)
            w = list(win)
            dist = 0
            i = pos[tgt]
            while i < len(self.out) and dist < 20:
                k, p = self.out[i]
                i += 1
                if k != "i":
                    continue
                if self._needed(w, p) > 0:
                    errs.append(f"hazard across branch to {tgt}: {p.text}")
                w.append(p)
                dist += p.slots
                if p.mn in ("s_branch", "s_endpgm", "s_setpc_b64"):
                    break
        if errs:
            raise RuntimeError("\n".join(errs))

    def render(self):
        self.check_branches()
        lines = []
        for k, p in self.out:
            if k == "i":
                lines.append("    " + p.text)
            elif k == "l":
                lines.append(p + ":")
            else:
                lines.append(p)
        return "\n".join(lines) + "\n"


def interleave(main, fill, every=1, per=1, start=0):
    out = []
    fi = 0
    for i, m in enumerate(main):
        out.append(m)
        if i >= start and (i - start) % every == every - 1:
            for _ in range(per):
                if fi < len(fill):
                    out.append(fill[fi])
                    fi += 1
    out.extend(fill[fi:])
    return out


def vr(b, n=1):
    return f"v{b}" if n == 1 else f"v[{b}:{b + n - 1}]"


def ar(b, n=1):
    return f"a{b}" if n == 1 else f"a[{b}:{b + n - 1}]"


def sr(b, n=1):
    return f"s{b}" if n == 1 else f"s[{b}:{b + n - 1}]"
```

```python
from asmlib import *

KNAME = "interleave_layers__sliding_local_dilated__memory_aug_recurrent_mem_tr__prompt"
NSEG = 64
KA_X, KA_WQKV, KA_WO, KA_BX, KA_MEM0, KA_WQ, KA_WK, KA_WV, KA_BWO, KA_SEG, KA_OUT, KA_DBG, KA_WS = [8 * i for i in range(13)]

WS_BYTES = 268435456
WS_FLAGS = 0
FL_STRIDE = 0x5800
FL_XA, FL_OA, FL_XB, FL_OF, FL_QKV = 0, 1536, 3584, 4224, 5376
WS_ZERO = 0x2C0000
FLAGS_BYTES = 0x2D0000
WS_DUMMY = 0x300000
WS_RING = 0x400000
RING_TEAM = 0x100000
PART_SLOT = 0x80000
import os
PART_H = int(os.environ.get("PARTH", "12288"))
MEMB_OFF = 0xF0000
MEMB_SLOT = 0x4000
WS_X = 0x600000
X_BYTES = 0x240000
X_SEG = 36864
WS_ST = WS_X + 4 * X_BYTES
ST_SEG = 12 * 32 * 16
ST_BYTES = NSEG * ST_SEG
WS_OA = WS_ST + 4 * ST_BYTES
WS_AW = WS_OA + 2 * X_BYTES
WS_KM = 0x1A00000
KM_UNIT = 4096
WS_QKV = WS_KM + 2 * NSEG * 32 * KM_UNIT
QKV_M = NSEG * 32 * 8192
WS_OF = WS_QKV + 6 * QKV_M
WS_END = WS_OF + 2 * QKV_M
assert WS_AW + 32 * 90 * 1024 <= WS_KM
assert WS_END <= WS_BYTES, WS_END

RV2 = os.environ.get("RV", "2") == "2"
SPIN_MAX = int(os.environ.get("SPIN_MAX", "100000"))

S_KARG = 0
S_WG = 2
SRD_WS = 8
S_DBG = 12
S_WAVE = 14
S_ROLE = 15
S_SPIN = 16
S_TMP = 17
SRD_A = 20
SRD_B = 24
SRD_C = 28
S_FREE = 32


def srd(a, base, ka_off, nbytes):
    a(f"s_load_dwordx2 s[{base}:{base + 1}], s[0:1], {ka_off}")
    a(f"s_mov_b32 s{base + 2}, {nbytes}")
    a(f"s_mov_b32 s{base + 3}, 0x00020000")
    a.force_wait(lg=0)
    a(f"s_and_b32 s{base + 1}, s{base + 1}, 0xffff")


def spin_check(a, abort_label):
    a(f"s_add_u32 s{S_SPIN}, s{S_SPIN}, 1")
    a(f"s_cmp_gt_u32 s{S_SPIN}, {SPIN_MAX}")
    a(f"s_cbranch_scc1 {abort_label}")


TRACE = int(os.environ.get("TRACE", "0"))
WS_TRACE = WS_END


def trace_init(a):
    if TRACE:
        a(f"s_lshl_b32 s5, s3, 5")
        a(f"s_add_u32 s5, s5, s4")
        a(f"s_lshl_b32 s5, s5, 2")
        a(f"s_add_u32 s5, s5, s{S_WAVE}")
        a(f"s_lshl_b32 s5, s5, 10")
        a(f"s_add_u32 s5, s5, {WS_TRACE}")


def trace(a, v0, v1, light=False):
    if TRACE in (1, 3) or (TRACE in (2, 4) and light):
        a("s_memrealtime s[6:7]")
        a.force_wait(lg=0)
        a(f"v_mov_b32 v{v0}, s6")
        a(f"v_mov_b32 v{v1}, 0")
        a("s_mov_b64 exec, 1")
        a(f"buffer_store_dword v{v0}, v{v1}, s[{SRD_WS}:{SRD_WS + 3}], s5 offen")
        a("s_mov_b64 exec, -1")
        a("s_add_u32 s5, s5, 4")


PROF = int(os.environ.get("PROF", "0"))


def p3_begin(a):
    if PROF == 3:
        a("s_memtime s[88:89]")
        a.force_wait(lg=0)


def p3_end(a, k):
    if PROF == 3:
        a("s_memtime s[86:87]")
        a.force_wait(lg=0)
        a("s_sub_u32 s86, s86, s88")
        a(f"s_add_u32 s{90 + k}, s{90 + k}, s86")


def prof_begin(a):
    if PROF in (1, 2):
        a("s_memtime s[88:89]")
        a.force_wait(lg=0)


def prof_end(a, k):
    if PROF in (1, 2):
        a("s_memtime s[86:87]")
        a.force_wait(lg=0)
        a("s_sub_u32 s86, s86, s88")
        a(f"s_add_u32 s{90 + k}, s{90 + k}, s86")


def prof_init(a):
    if PROF:
        for k in range(8):
            a(f"s_mov_b32 s{90 + k}, 0")


def prof_dump(a, v0, v1):
    if PROF:
        a(f"s_lshl_b32 s5, s3, 5")
        a(f"s_add_u32 s5, s5, s4")
        a(f"s_lshl_b32 s5, s5, 2")
        a(f"s_add_u32 s5, s5, s{S_WAVE}")
        a(f"s_lshl_b32 s5, s5, 5")
        a(f"s_add_u32 s5, s5, {WS_TRACE}")
        for k in range(8):
            a(f"v_writelane_b32 v{v0}, s{90 + k}, {k}")
        a(f"v_mbcnt_lo_u32_b32 v{v1}, -1, 0")
        a(f"v_lshlrev_b32 v{v1}, 2, v{v1}")
        a("s_mov_b64 exec, 0xff")
        a(f"buffer_store_dword v{v0}, v{v1}, s[{SRD_WS}:{SRD_WS + 3}], s5 offen")
        a("s_mov_b64 exec, -1")


def wait_units(a, lab):
    a.label(lab)
    a("s_cmp_eq_u32 s6, 0")
    a(f"s_cbranch_scc1 {lab}_d")
    a("s_sleep 127")
    a("s_sub_u32 s6, s6, 1")
    a(f"s_branch {lab}")
    a.label(lab + "_d")


DB_TICKET = 0
DB_HOMELESS = 32
DB_ABORT = 60
DB_POOL = 160
DB_POOLA = 40
DB_LOADED = 48
ORDER = int(os.environ.get('ORDER', '0'))
DB_TEAM = 192
N_POOL = 192
SRD_DBG = 4


def dbg_add(a, off, v0, v1):
    a(f"v_mov_b32 v{v0}, {off}" if isinstance(off, int) else f"v_mov_b32 v{v0}, {off}")
    a(f"v_mov_b32 v{v1}, 1")
    a("s_mov_b64 exec, 1")
    a(f"global_atomic_add v{v0}, v{v1}, s[{S_DBG}:{S_DBG + 1}]")
    a("s_mov_b64 exec, -1")


def dbg_wait(a, off, target, v0, v1, abort, name, slp=8):
    a(f"s_cmp_lg_u32 s{S_WAVE}, 0")
    a(f"s_cbranch_scc1 {name}_d")
    a(f"v_mov_b32 v{v0}, {off}")
    a(f"s_mov_b32 s{S_SPIN}, 0")
    a.label(name)
    a(f"global_load_dword v{v1}, v{v0}, s[{S_DBG}:{S_DBG + 1}] sc1")
    spin_check(a, abort)
    a(f"v_cmp_gt_u32 vcc, {target}, v{v1}")
    a(f"s_cbranch_vccz {name}_d")
    a(f"s_sleep {slp}")
    a(f"s_branch {name}")
    a.label(name + "_d")
    a("s_barrier")


def trace_at(a, sidx, v0, vz):
    if TRACE == 4:
        a("s_memrealtime s[6:7]")
        a.force_wait(lg=0)
        a(f"s_lshl_b32 s7, s{sidx}, 2")
        a(f"s_add_u32 s7, s7, s5")
        a(f"v_mov_b32 v{v0}, s6")
        a("s_mov_b64 exec, 1")
        a(f"buffer_store_dword v{v0}, v{vz}, s[{SRD_WS}:{SRD_WS + 3}], s7 offen offset:12")
        a("s_mov_b64 exec, -1")


DBGT = int(os.environ.get("DBGT", "0"))


def stamp_max(a, word, v0, v1, cond=None):
    if DBGT:
        a("s_memrealtime s[6:7]")
        a.force_wait(lg=0)
        a("s_sub_u32 s6, s6, s5")
        if cond:
            a(f"s_cmp_eq_u32 s{cond[0]}, {cond[1]}")
            a("s_cselect_b32 s6, s6, 0")
        a(f"v_mov_b32 v{v0}, {word}" if isinstance(word, str) else f"v_mov_b32 v{v0}, {4 * word}")
        a(f"v_mov_b32 v{v1}, s6")
        a("s_mov_b64 exec, 1")
        a(f"global_atomic_umax v{v0}, v{v1}, s[{S_DBG}:{S_DBG + 1}]")
        a("s_mov_b64 exec, -1")
```

```python
from common import *
import struct

WS = f"s[{SRD_WS}:{SRD_WS + 3}]"
L0_AP = 16
L0_T = 16
SLP = int(os.environ.get("SLP", "4"))
EARLYF = int(os.environ.get("EARLYF", "0"))


def f32bits(x):
    return struct.unpack("<I", struct.pack("<f", x))[0]


sN0, sN1 = S_FREE, S_FREE + 1
sCL, sCS = S_FREE + 2, S_FREE + 3
sNL, sNS = S_FREE + 4, S_FREE + 5
sLEFT = S_FREE + 6
sPF = S_FREE + 7
sBUF = S_FREE + 8
sNX = S_FREE + 9
sNFL = S_FREE + 10
sPEND = S_FREE + 11
sSELX, sSELY = S_FREE + 12, S_FREE + 13
sO1, sO2, sO3 = S_FREE + 14, S_FREE + 15, S_FREE + 16
sK1, sK2, sK3, sK4 = S_FREE + 17, S_FREE + 18, S_FREE + 19, S_FREE + 20
sE = S_FREE + 22
sNO = S_FREE + 24
sCO = S_FREE + 25
sWQ = S_FREE + 26
sOB = S_FREE + 27
sF0, sF1, sDEC = S_FREE + 28, S_FREE + 29, S_FREE + 30
sLAYS = S_FREE + 31
sSB, sW1K = S_FREE + 34, S_FREE + 35
sX0, sX1 = S_FREE + 32, S_FREE + 33

vL16, vFLA, vFLV, vONE, vZERO, vT0, vT1, vC, vG = range(9)
XBUF = X_SEG


def seq(a, *items):
    for it in items:
        if isinstance(it, (list, tuple)):
            seq(a, *it)
        elif callable(it):
            it()
        elif it:
            a(it)


def MF(acc, A, B, C=None):
    return f"v_mfma_f32_16x16x32_bf16 {vr(acc, 4)}, {A}, {B}, {vr(acc, 4) if C is None else C}"


def lane_setup(a, nflags):
    a(f"""
    v_and_b32 v{vT0}, 63, v0
    v_lshlrev_b32 v{vL16}, 4, v{vT0}
    v_and_b32 v{vC}, 15, v{vT0}
    v_lshrrev_b32 v{vG}, 4, v{vT0}
    v_min_u32 v{vFLA}, {nflags - 1}, v{vT0}
    v_lshrrev_b32 v{vT1}, 2, v{vFLA}
    v_and_b32 v{vFLA}, 3, v{vFLA}
    v_lshlrev_b32 v{vFLA}, 2, v{vFLA}
    v_lshl_add_u32 v{vFLA}, v{vT1}, 7, v{vFLA}
    v_mov_b32 v{vONE}, 1
    v_mov_b32 v{vZERO}, 0
    s_mov_b32 s{sSELX}, 0x05040100
    s_mov_b32 s{sSELY}, 0x07060302
    """)


def pick_next(a, step, l0):
    a(f"""
    s_add_u32 s{S_TMP}, s{sN1}, {l0}
    s_min_u32 s{S_TMP}, s{S_TMP}, {NSEG}
    s_cmp_lt_u32 s{sN0}, s{S_TMP}
    s_cselect_b32 s{sNL}, 0, 1
    s_cselect_b32 s{sNS}, s{sN0}, s{sN1}
    s_cselect_b32 s{S_TMP}, {step}, 0
    s_cselect_b32 s{S_TMP + 1}, 0, {step}
    s_add_u32 s{sN0}, s{sN0}, s{S_TMP}
    s_add_u32 s{sN1}, s{sN1}, s{S_TMP + 1}
    s_lshl_b32 s{sNO}, s{sNL}, 6
    s_add_u32 s{sNO}, s{sNO}, s{sNS}
    """)


def flag_out(a, sreg):
    a("s_mov_b64 exec, 1")
    a(f"buffer_store_dword v{vONE}, v{vZERO}, {WS}, s{sreg} offen sc1")
    a("s_mov_b64 exec, -1")


def flag_block(a, name, abort):
    L = a.newlabel(name)
    a(f"s_mov_b32 s{S_SPIN}, 0")
    a.label(L)
    a(f"buffer_load_dword v{vFLV}, v{vFLA}, {WS}, s{sNFL} offen sc1")
    spin_check(a, abort)
    a(f"v_cmp_eq_u32 vcc, 0, v{vFLV}")
    Ld = a.newlabel(name + "d")
    a(f"s_cbranch_vccz {Ld}")
    a(f"s_sleep {SLP}")
    a(f"s_branch {L}")
    a.label(Ld)


PFS = f"s[{SRD_C}:{SRD_C + 3}]"


STB3 = 0x1C000
sCSB = S_FREE + 39
P3 = int(os.environ.get('P3', '0'))
MBOX = 2 * XBUF + 1024
vFL1 = 15


def cand_addr(a, flag_off):
    a(f"""
    s_mul_i32 s{sF0}, s{sN0}, {FL_STRIDE}
    s_add_u32 s{sF0}, s{sF0}, {WS_FLAGS + flag_off}
    s_cmp_lt_u32 s{sN0}, {NSEG}
    s_cselect_b32 s{sF0}, s{sF0}, {WS_ZERO}
    s_mul_i32 s{sF1}, s{sN1}, {FL_STRIDE}
    s_add_u32 s{sF1}, s{sF1}, {WS_FLAGS + flag_off + NSEG * FL_STRIDE}
    s_cmp_lt_u32 s{sN1}, {NSEG}
    s_cselect_b32 s{sF1}, s{sF1}, {WS_ZERO}
    """)


def sample2(a):
    a(f"buffer_load_dword v{vFLV}, v{vFLA}, {WS}, s{sF0} offen sc1")
    a(f"buffer_load_dword v{vFL1}, v{vFLA}, {WS}, s{sF1} offen sc1")


def decide(a, prio=1):
    a(f"v_cmp_eq_u32 vcc, 0, v{vFLV}")
    a(f"v_cmp_eq_u32 s[{sE}:{sE + 1}], 0, v{vFL1}")
    m = ["vcc", f"s[{sE}:{sE + 1}]"]
    a(f"s_cmp_eq_u64 {m[1 - prio]}, 0")
    a(f"s_cselect_b32 s{sDEC}, {2 - prio}, 0")
    a(f"s_cmp_eq_u64 {m[prio]}, 0")
    a(f"s_cselect_b32 s{sDEC}, {1 + prio}, s{sDEC}")


def take(dec, step, step1=None):
    return [f"s_cmp_eq_u32 s{dec}, 2",
            f"s_cselect_b32 s{sNL}, 1, 0",
            f"s_cselect_b32 s{sNS}, s{sN1}, s{sN0}",
            f"s_cselect_b32 s{S_TMP}, {step if step1 is None else step1}, 0",
            f"s_add_u32 s{sN1}, s{sN1}, s{S_TMP}",
            f"s_cmp_eq_u32 s{dec}, 1",
            f"s_cselect_b32 s{S_TMP}, {step}, 0",
            f"s_add_u32 s{sN0}, s{sN0}, s{S_TMP}",
            f"s_lshl_b32 s{sNO}, s{sNL}, 6",
            f"s_add_u32 s{sNO}, s{sNO}, s{sNS}"]


def poll2(a, name, abort, flag_off, prio=1):
    cand_addr(a, flag_off)
    L = a.newlabel(name)
    a(f"s_mov_b32 s{S_SPIN}, 0")
    a.label(L)
    sample2(a)
    spin_check(a, abort)
    decide(a, prio)
    a(f"s_cmp_lg_u32 s{sDEC}, 0")
    a(f"s_cbranch_scc1 {L}d")
    a(f"s_sleep {SLP}")
    a(f"s_branch {L}")
    a.label(L + "d")


def staged_loop(a, name, abort, done, xbase, xlayer, flag_off, extra_loads, compute, out_flag, nst, vMB, laysel=None, waited=False, epi=None, early=None):
    crit = [f"s_cmp_eq_u32 s{sDEC}, 2", f"s_cselect_b32 s{sNX}, s{sX1}, s{sX0}",
            f"s_cmp_lg_u32 s{sDEC}, 0", f"s_cselect_b32 s{SRD_C + 2}, {WS_BYTES}, 0"]
    adv_x = [f"s_cmp_eq_u32 s{sDEC}, 2", f"s_cselect_b32 s{S_TMP}, {X_SEG}, 0", f"s_add_u32 s{sX1}, s{sX1}, s{S_TMP}",
             f"s_cmp_eq_u32 s{sDEC}, 1", f"s_cselect_b32 s{S_TMP}, {X_SEG}, 0", f"s_add_u32 s{sX0}, s{sX0}, s{S_TMP}"]

    def dma_ops(srd_):
        ops = []
        for i in range(9):
            pre = []
            if i % 4 == 0:
                pre = [f"s_add_u32 m0, s{sOB}, {i * 1024}", f"s_add_u32 s{sO2}, s{sNX}, {i * 1024}"]
            ops.append(pre + [f"buffer_load_dwordx4 v{vL16}, {srd_}, s{sO2} offen offset:{(i % 4) * 1024} lds"])
        return ops

    def post():
        a(f"v_mov_b32 v{vT0}, s{sDEC}")
        a(f"ds_write_b32 v{vMB}, v{vT0}")
        a.wait(lg=0)

    def publish():
        a(f"s_cmp_lg_u32 s{sPEND}, 0")
        a("s_cselect_b64 exec, 1, 0")
        a(f"buffer_store_dword v{vONE}, v{vZERO}, {WS}, s{sPEND} offen sc1")
        a("s_mov_b64 exec, -1")
        a(f"s_mov_b32 s{sPEND}, 0")

    def cur_from_next():
        a(f"s_mov_b32 s{sCL}, s{sNL}")
        a(f"s_mov_b32 s{sCS}, s{sNS}")
        a(f"s_mov_b32 s{sCO}, s{sNO}")

    def roll():
        Ls = a.newlabel(name + "_ns")
        a(f"s_cmp_lg_u32 s{S_WAVE}, 0")
        a(f"s_cbranch_scc1 {Ls}")
        sn = a.snap()
        cand_addr(a, flag_off)
        sample2(a)
        a.restore(sn)
        a.label(Ls)

    a(f"""
    s_mov_b32 s{sN0}, 0
    s_mov_b32 s{sN1}, 0
    s_mov_b32 s{sLEFT}, {2 * NSEG}
    s_mul_i32 s{sWQ}, s{S_WAVE}, 9216
    s_mov_b32 s{sBUF}, {XBUF}
    s_mov_b32 s{sOB}, s{sWQ}
    s_mov_b32 s{sPEND}, 0
    s_mov_b32 s{SRD_C}, s{SRD_WS}
    s_mov_b32 s{SRD_C + 1}, s{SRD_WS + 1}
    s_mov_b32 s{SRD_C + 2}, 0
    s_mov_b32 s{SRD_C + 3}, 0x00020000
    v_mov_b32 v{vMB}, {MBOX}
    s_add_u32 s{sX0}, s{sWQ}, {xbase}
    s_add_u32 s{sX1}, s{sWQ}, {xbase + xlayer}
    """)
    if laysel is not None:
        a(f"s_cmp_eq_u32 s{laysel}, 0")
        a(f"s_cselect_b32 s{sN0}, 0, {NSEG}")
        a(f"s_cselect_b32 s{sN1}, {NSEG}, 0")
        a(f"s_mov_b32 s{sLEFT}, {NSEG}")
    a(f"ds_write2_b32 v{vMB}, v{vZERO}, v{vZERO} offset0:0 offset1:1")
    a.wait(lg=0)
    if not waited:
        dbg_wait(a, DB_POOL, N_POOL, vT0, vT1, abort, name + "_ini")
    trace(a, vT0, vT1)
    prof_init(a)
    if PROF == 3:
        a("s_memtime s[84:85]")
        a.force_wait(lg=0)
    a(f"s_branch {name}_idle0")
    head = name + "_item"
    a.label(head)
    a.restore(([], []))
    prof_begin(a)
    a.force_wait(vm=nst)
    if EARLYF and (laysel is not None or EARLYF > 1):
        a(f"s_cmp_lt_u32 s{sPEND}, {NSEG * FL_STRIDE}")
        a(f"s_cbranch_scc1 {name}_defer")
        a.force_wait(vm=0)
        publish()
    a.label(name + "_defer")
    prof_end(a, 0)
    a(f"s_cmp_lg_u32 s{S_WAVE}, 0")
    a(f"s_cbranch_scc1 {name}_nw0")
    decide(a)
    post()
    a.label(name + "_nw0")
    prof_begin(a)
    a("s_barrier")
    prof_end(a, 1)
    a(f"ds_read_b32 v{vT1}, v{vMB}")
    a(f"""
    v_xor_b32 v{vMB}, 4, v{vMB}
    s_xor_b32 s{sBUF}, s{sBUF}, {XBUF}
    s_xor_b32 s{sOB}, s{sOB}, {XBUF}
    s_xor_b32 s{sSB}, s{sSB}, 0x2000
    s_xor_b32 s{sCSB}, s{sCSB}, 0x2000
    s_sub_u32 s{sLEFT}, s{sLEFT}, 1
    """)
    if epi:
        early()
        a(f"s_cmp_eq_u32 s{sPEND}, 0")
        a(f"s_cbranch_scc1 {name}_noepi")
        lg = list(a.lgq)
        epi()
        assert a.lgq == lg or not a.lgq
        a.lgq = lg
        a.label(name + "_noepi")
    a.vmq = [(frozenset(), "st")] * nst
    ex = extra_loads(PFS)
    tk = take(sDEC, 1)
    pre = ([f"v_readfirstlane_b32 s{sDEC}, v{vT1}"] + crit, [tk[:5], tk[5:], ex[0][:-1], adv_x[:3], adv_x[3:]] if os.environ.get('BSPLIT', '1') == '1' else [tk, ex[0][:-1], adv_x, [], []])
    ex[0] = ex[0][-1:]

    def mid():
        prof_begin(a) if PROF == 1 else None
        a.wait_tag("st")
        prof_end(a, 2) if PROF == 1 else None
        publish()

    compute(pre, dma_ops(PFS), ex, mid, roll)
    out_flag()
    trace_at(a, sCO, vT0, vZERO)
    if name.startswith("Lp"):
        stamp_max(a, 9, vT0, vT1, (sCO, 1)) if DBGT == 2 else None
    cur_from_next()
    if TRACE == 1:
        a.force_wait(vm=0)
        trace(a, vT0, vT1)
        a.force_wait(vm=0)
    a(f"s_min_u32 s{sDEC}, s{sDEC}, s{sLEFT}")
    a(f"s_cmp_lg_u32 s{sDEC}, 0")
    a(f"s_cbranch_scc1 {head}")
    roll()
    a.force_wait(vm=0)
    publish()
    a(f"s_cmp_eq_u32 s{sLEFT}, 0")
    a(f"s_cbranch_scc1 {name}_end")
    a(f"s_cmp_lg_u32 s{S_WAVE}, 0")
    a(f"s_cbranch_scc1 {name}_nw1")
    decide(a)
    a(f"s_cmp_lg_u32 s{sDEC}, 0")
    a(f"s_cbranch_scc1 {name}_got")
    a.label(name + "_idle0")
    a.restore(([], []))
    a(f"s_cmp_lg_u32 s{S_WAVE}, 0")
    a(f"s_cbranch_scc1 {name}_nw1")
    p3_begin(a)
    poll2(a, name + "_pl", abort, flag_off)
    p3_end(a, 3)
    a.label(name + "_got")
    post()
    a.label(name + "_nw1")
    a("s_barrier")
    a(f"ds_read_b32 v{vT1}, v{vMB}")
    a(f"v_xor_b32 v{vMB}, 4, v{vMB}")
    a(f"v_readfirstlane_b32 s{sDEC}, v{vT1}")
    a(f"s_cmp_eq_u32 s{sDEC}, 0")
    a(f"s_cbranch_scc1 {abort}")
    seq(a, crit, take(sDEC, 1), adv_x, dma_ops(WS), extra_loads(WS))
    cur_from_next()
    roll()
    a.force_wait(vm=0)
    if PROF:
        a("s_add_u32 s96, s96, 1000")
    a(f"s_branch {head}")
    a.label(name + "_end")
    if PROF == 3:
        a("s_memtime s[86:87]")
        a.force_wait(lg=0)
        a("s_sub_u32 s97, s86, s84")
    prof_dump(a, vT0, vT1)
    a(f"s_branch {done}")


WB = 112


def MF32(acc, A, B, C=None):
    return f"v_mfma_f32_32x32x16_bf16 {vr(acc, 16)}, {A}, {B}, {vr(acc, 16) if C is None else C}"


def load_cols(a, srdb, vad, vsel, items, nt=os.environ.get("NT_P", "")):
    D = 28
    n = len(items)
    for i in range(n + D):
        if i < n:
            r = 16 + 2 * (i % 48)
            a(f"s_add_u32 s{S_TMP}, s{sK1}, {items[i][0]}")
            a(f"buffer_load_dword v{r}, v{vad}, s[{srdb}:{srdb + 3}], s{S_TMP} offen {nt}")
            a(f"buffer_load_dword v{r + 1}, v{vad + 1}, s[{srdb}:{srdb + 3}], s{S_TMP} offen {nt}")
        j = i - D
        if j >= 0:
            r = 16 + 2 * (j % 48)
            a(f"v_perm_b32 v{items[j][1]}, v{r + 1}, v{r}, v{vsel}")


def feat_of_row(a, dst, row, t1):
    a(f"""
    v_and_b32 v{dst}, 19, v{row}
    v_bfe_u32 v{t1}, v{row}, 2, 1
    v_lshl_add_u32 v{dst}, v{t1}, 3, v{dst}
    v_bfe_u32 v{t1}, v{row}, 3, 1
    v_lshl_add_u32 v{dst}, v{t1}, 2, v{dst}
    """)


def sel_of_parity(a, vsel, par, t1):
    a(f"""
    v_mov_b32 v{vsel}, s{sSELX}
    v_mov_b32 v{t1}, s{sSELY}
    v_cmp_eq_u32 vcc, 1, v{par}
    v_cndmask_b32 v{vsel}, v{vsel}, v{t1}, vcc
    """)


def gemm32(a, acc, swap, vXA, ring, pre, dma, extra, mid, roll, init=None, fill=None, issued=False):
    nr = len(ring)

    def rd(t):
        return f"ds_read_b128 {vr(ring[t % nr], 4)}, v{vXA} offset:{t * 1024}"
    if PROF == 2:
        a("s_memtime s[84:85]")
    if not issued:
        for t in range(nr - 1):
            a(rd(t))
    fill = list(fill or [])
    crit, blocks = pre
    blocks = list(blocks)
    vm = list(dma) + list(extra)
    for t in range(36):
        x, w = vr(ring[t % nr], 4), vr(WB + 4 * t, 4)
        a(MF32(acc, x if swap else w, w if swap else x, "0" if (t == 0 and not init) else None))
        if t + nr - 1 < 36:
            a(rd(t + nr - 1))
        k = 3 if t < 16 else 4
        if t == 1:
            seq(a, crit); k = 0
        elif t >= 2 and t % 2 == 1 and blocks:
            k = min(3, 5 - len(blocks[0]))
            seq(a, blocks.pop(0))
        elif t >= 2 and vm and (len(vm) > len(extra) or len(blocks) <= 2):
            assert len(vm) > len(extra) or len(blocks) <= 2
            seq(a, vm.pop(0)); k -= 2
        while fill and k > 0:
            seq(a, fill.pop(0)); k -= 1
        if t == 10:
            mid()
        if t == 16:
            roll()
    assert not vm and not fill and not blocks
    if PROF == 2:
        a("s_memtime s[86:87]")
        a.force_wait(lg=0)
        a("s_sub_u32 s86, s86, s84")
        a("s_add_u32 s97, s97, s86")


VMDENSE = int(os.environ.get("VMDENSE", "1"))
STB = 0x14000


def stats_dma(base, srd_):
    pre = [f"s_mul_i32 s{sO3}, s{sNL}, {2 * ST_BYTES}", f"s_mul_i32 s{S_TMP + 1}, s{sNS}, {ST_SEG}",
           f"s_add_u32 s{sO3}, s{sO3}, s{S_TMP + 1}", f"s_add_u32 s{sO3}, s{sO3}, {base + 4096}"]
    return [pre + [[f"s_add_u32 m0, s{sSB}, 4096", f"s_nop 0",
                    f"buffer_load_dwordx4 v{vL16}, {srd_}, s{sO3} offen lds"]],
            [f"s_add_u32 m0, s{sSB}, s{sW1K}", f"s_sub_u32 s{sO3}, s{sO3}, 4096", f"s_add_u32 s{sO3}, s{sO3}, s{sW1K}",
             f"buffer_load_dwordx4 v{vL16}, {srd_}, s{sO3} offen lds"]]


def stats_loads(base, STR, vaddr, srd_):
    pre = [f"s_mul_i32 s{sO3}, s{sNL}, {2 * ST_BYTES}", f"s_mul_i32 s{S_TMP + 1}, s{sNS}, {ST_SEG}",
           f"s_add_u32 s{sO3}, s{sO3}, s{S_TMP + 1}", f"s_add_u32 s{sO3}, s{sO3}, {base}"]
    ops = [[f"buffer_load_dwordx4 {vr(STR + 4 * i, 4)}, v{vaddr}, {srd_}, s{sO3} offen offset:{512 * i}"] for i in range(6)]
    ops[0] = pre + ops[0]
    return ops


def stats_math(STR, RS, MR):
    ops = []
    for i in range(1, 5):
        ops += [f"v_add_f32 v{STR + j}, v{STR + j}, v{STR + 4 * i + j}" for j in range(4)]
    S1, S2 = STR, STR + 1
    ops += [f"v_add_f32 v{S1}, v{S1}, v{STR + 2}", f"v_add_f32 v{S2}, v{S2}, v{STR + 3}",
            f"v_mov_b32 v{STR + 2}, v{S1}", f"v_mov_b32 v{STR + 3}, v{S2}",
            f"v_permlane32_swap_b32 v{S1}, v{STR + 2}", f"v_permlane32_swap_b32 v{S2}, v{STR + 3}",
            f"v_add_f32 v{S1}, v{S1}, v{STR + 2}", f"v_add_f32 v{S2}, v{S2}, v{STR + 3}",
            f"v_mul_f32 v{S1}, {hex(f32bits(1.0 / 576))}, v{S1}",
            f"v_mul_f32 v{S2}, {hex(f32bits(1.0 / 576))}, v{S2}",
            f"v_fma_f32 v{S2}, -v{S1}, v{S1}, v{S2}",
            f"v_max_f32 v{S2}, 0, v{S2}",
            f"v_add_f32 v{S2}, {hex(f32bits(1e-5))}, v{S2}",
            f"v_rsq_f32 v{RS}, v{S2}",
            f"v_mul_f32 v{MR}, v{S1}, v{RS}"]
    return ops


def role_p(a, abort, done):
    lane_setup(a, 18)
    vXA, vSTA, vCS, vA0, vLDS, vO = 9, 10, 11, 12, 12, 14
    vMB = 108
    ACC, RING, STR, LN = 16, 32, 56, 76
    TT = 96
    CS = 80
    a(f"""
    s_lshr_b32 s{sK2}, s{S_ROLE}, 5
    s_and_b32 s{sK3}, s{S_ROLE}, 31
    s_lshl_b32 s{S_TMP}, s{sK2}, 3
    s_add_u32 s{S_TMP}, s{S_TMP}, {KA_WQ}
    s_load_dwordx2 s[{SRD_A}:{SRD_A + 1}], s[0:1], s{S_TMP}
    s_mov_b32 s{SRD_A + 2}, {576 * 8192}
    s_mov_b32 s{SRD_A + 3}, 0x00020000
    s_lshl_b32 s{sK1}, s{sK3}, 8
    s_lshl_b32 s{S_TMP}, s{S_WAVE}, 6
    s_add_u32 s{sK1}, s{sK1}, s{S_TMP}
    v_bfe_u32 v{vSTA}, v{vL16}, 4, 5
    """)
    feat_of_row(a, vO, vSTA, vT0)
    if RV2:
        a(f"v_and_b32 v{vT0}, 1, v{vO}")
        a(f"v_lshrrev_b32 v{vO}, 1, v{vO}")
        a(f"v_lshl_add_u32 v{vO}, v{vT0}, 4, v{vO}")
    a(f"""
    v_bfe_u32 v{vT0}, v{vL16}, 8, 1
    {f"v_lshl_add_u32 v{vT1}, v{vT0}, 4, v{vC}" if RV2 else f"v_lshl_add_u32 v{vT1}, v{vC}, 1, v{vT0}"}
    s_cmp_eq_u32 s{sK2}, 2
    s_cselect_b64 vcc, -1, 0
    v_cndmask_b32 v{vO}, v{vO}, v{vT1}, vcc
    v_and_b32 v{vT0}, 1, v{vO}
    """)
    sel_of_parity(a, vCS, vT0, vT1)
    a(f"""
    v_and_b32 v{vO}, 30, v{vO}
    v_lshrrev_b32 v{vT0}, 9, v{vL16}
    v_lshlrev_b32 v{vA0}, 16, v{vT0}
    v_lshl_add_u32 v{vA0}, v{vO}, 1, v{vA0}
    v_add_u32 v{vA0 + 1}, 8192, v{vA0}
    v_lshlrev_b32 v{vSTA}, 4, v{vSTA}
    v_mul_u32_u24 v{vT1}, 2560, v{vT0}
    v_add_u32 v{vSTA}, v{vSTA}, v{vT1}
    v_add_u32 v{vSTA}, {STB3}, v{vSTA}
    s_lshl_b32 s{sW1K}, s{S_WAVE}, 10
    v_bfe_u32 v{vT1}, v{vL16}, 8, 1
    v_lshlrev_b32 v{vO}, 10, v{vT1}
    v_lshl_add_u32 v{vO}, v{vC}, 4, v{vO}
    v_lshl_add_u32 v{vO}, v{vT0}, 8, v{vO}
    """)
    a.force_wait(lg=0)
    a(f"s_and_b32 s{SRD_A + 1}, s{SRD_A + 1}, 0xffff")
    load_cols(a, SRD_A, vA0, vCS, [((16 * t + 2 * d) * 8192, WB + 4 * t + d) for t in range(36) for d in range(4)])
    a(f"""
    s_mul_i32 s{sK4}, s{sK2}, {QKV_M}
    s_lshl_b32 s{S_TMP}, s{sK3}, 13
    s_add_u32 s{sK4}, s{sK4}, s{S_TMP}
    s_lshl_b32 s{S_TMP}, s{S_WAVE}, 11
    s_add_u32 s{sK4}, s{sK4}, s{S_TMP}
    s_add_u32 s{sK4}, s{sK4}, {WS_QKV}
    s_lshl_b32 s{sK1}, s{sK3}, 9
    s_lshl_b32 s{S_TMP}, s{sK2}, 7
    s_add_u32 s{sK1}, s{sK1}, s{S_TMP}
    s_lshl_b32 s{S_TMP}, s{S_WAVE}, 2
    s_add_u32 s{sK1}, s{sK1}, s{S_TMP}
    s_add_u32 s{sK1}, s{sK1}, {WS_FLAGS + FL_QKV}
    v_mov_b32 v{RING}, 0x3f803f80
    v_mov_b32 v{RING + 1}, 0x3f803f80
    v_mov_b32 v{RING + 2}, 0x3f803f80
    v_mov_b32 v{RING + 3}, 0x3f803f80
    s_lshl_b32 s{S_TMP}, s{S_WAVE}, 8
    s_add_u32 s{S_TMP}, s{S_TMP}, {3 * XBUF}
    v_bfe_u32 v{vT0}, v{vL16}, 4, 5
    v_lshl_add_u32 v{vLDS}, v{vT0}, 2, s{S_TMP}
    v_lshrrev_b32 v{vT0}, 9, v{vL16}
    v_lshl_add_u32 v{vLDS + 1}, v{vT0}, 4, s{S_TMP}
    s_cmp_eq_u32 s{sK2}, 2
    s_cbranch_scc1 Lp_v
    """)
    for swap in (0, 1):
        nm = "LpV" if swap else "LpQ"
        if swap:
            a.label("Lp_v")
            a.restore(([], []))
        for t in range(36):
            w, o = vr(WB + 4 * t, 4), vr(RING, 4)
            a(MF32(ACC if swap else CS, o if swap else w, w if swap else o, "0" if t == 0 else None))
        if swap:
            a(f"v_mov_b32 v{vCS}, v{ACC}")

        def early():
            a(f"v_add_u32 v{vXA}, s{sBUF}, v{vL16}")
            a(f"v_add_u32 v{vT0}, s{sCSB}, v{vSTA}")
            for t in range(3):
                a(f"ds_read_b128 {vr(RING + 4 * t, 4)}, v{vXA} offset:{t * 1024}")
            for i in range(5):
                a(f"ds_read_b128 {vr(STR + 4 * i, 4)}, v{vT0} offset:{512 * i}")

        def compute(pre, dma, extra, mid, roll, swap=swap):
            early()
            sm = [None] * 3 + stats_math(STR, LN, LN + 1)
            if swap:
                sm += [f"ds_write2_b32 v{vLDS}, v{LN}, v{LN + 1} offset0:0 offset1:32"]
                sm += [f"ds_read_b128 {vr(LN + 4 * i, 4)}, v{vLDS + 1} offset:{(i >> 2) * 128 + (i & 3) * 32}" for i in range(8)]
                sm += [None] * 9 + [f"v_mul_f32 v{LN + 16 + i}, v{vCS}, v{LN + 16 + i}" for i in range(16)]
            else:
                sm += [f"v_mul_f32 v{TT + i}, v{LN + 1}, v{CS + i}" for i in range(16)]
            sm += [f"s_mul_i32 s{sO1}, s{sCL}, {3 * QKV_M}", f"s_lshl_b32 s{sK3}, s{sCS}, 18",
                   f"s_add_u32 s{sO1}, s{sO1}, s{sK3}", f"s_add_u32 s{sO1}, s{sO1}, s{sK4}"]
            gemm32(a, ACC, swap, vXA, [RING + 4 * i for i in range(4)], pre, dma, extra, mid, roll, fill=sm, issued=True)
            epi()

        def epi(swap=swap):
            for k in range(2):
                regs = [0, 1, 2, 3, 8, 9, 10, 11] if swap else list(range(8))
                regs = [r + (4 if swap else 8) * k for r in regs]
                for i in regs[::2]:
                    if swap:
                        a(f"v_pk_fma_f32 {vr(ACC + i, 2)}, {vr(ACC + i, 2)}, {vr(LN + i, 2)}, {vr(LN + 16 + i, 2)} neg_lo:[0,0,1] neg_hi:[0,0,1]")
                    else:
                        a(f"v_pk_fma_f32 {vr(ACC + i, 2)}, {vr(ACC + i, 2)}, {vr(LN, 2)}, {vr(TT + i, 2)} op_sel_hi:[1,0,1] neg_lo:[0,0,1] neg_hi:[0,0,1]")
                o = RING + 16 + 4 * k
                for i in range(4):
                    a(f"v_cvt_pk_bf16_f32 v{o + i}, v{ACC + regs[2 * i]}, v{ACC + regs[2 * i + 1]}")
                a(f"buffer_store_dwordx4 {vr(o, 4)}, v{vO}, {WS}, s{sO1} offen offset:{512 * k} sc1", tag="st")

        def out_flag():
            a(f"s_mul_i32 s{sPEND}, s{sCO}, {FL_STRIDE}")
            a(f"s_add_u32 s{sPEND}, s{sPEND}, s{sK1}")

        a(f"s_mov_b32 s{sSB}, {STB3}")
        a(f"s_mov_b32 s{sCSB}, 0x2000")
        staged_loop(a, nm, abort, done, WS_X + X_BYTES, 2 * X_BYTES, FL_XB,
                    lambda sr_: stats_dma(WS_ST + ST_BYTES, sr_), compute, out_flag, 2, vMB if swap else 78)


def role_awo(a, abort, done):
    lane_setup(a, 64)
    vXA, vSTO, vSEL, vA0, vRES = 9, 10, 11, 12, 14
    ACC, RING, RES, SS = 16, 32, 64, 72
    srd(a, SRD_A, KA_WO, 576 * 1152)
    a(f"""
    s_cmp_ge_u32 s{S_ROLE}, 5
    s_cselect_b32 s{sLAYS}, 1, 0
    s_cselect_b32 s{S_TMP}, 5, 0
    s_sub_u32 s{S_ROLE}, s{S_ROLE}, s{S_TMP}
    s_lshl_b32 s{sK2}, s{S_ROLE}, 2
    s_add_u32 s{sK2}, s{sK2}, s{S_WAVE}
    s_min_u32 s{sK2}, s{sK2}, 17
    s_lshl_b32 s{sK1}, s{sK2}, 6
    v_bfe_u32 v{vSTO}, v{vL16}, 4, 5
    """)
    feat_of_row(a, vRES, vSTO, vT0)
    a(f"v_and_b32 v{vT0}, 1, v{vRES}")
    sel_of_parity(a, vSEL, vT0, vT1)
    a(f"""
    v_and_b32 v{vRES}, 30, v{vRES}
    v_lshlrev_b32 v{vRES}, 1, v{vRES}
    v_lshrrev_b32 v{vXA}, 9, v{vL16}
    v_mul_u32_u24 v{vT0}, {8 * 1152}, v{vXA}
    v_add_u32 v{vA0}, v{vT0}, v{vRES}
    v_add_u32 v{vA0 + 1}, 1152, v{vA0}
    """)
    load_cols(a, SRD_A, vA0, vSEL, [((18 * t + 2 * d) * 1152, WB + 4 * t + d) for t in range(32) for d in range(4)])
    a(f"""
    v_mul_u32_u24 v{vT0}, {72 * 1152}, v{vXA}
    v_add_u32 v{vA0}, v{vT0}, v{vRES}
    v_add_u32 v{vA0 + 1}, 1152, v{vA0}
    """)
    load_cols(a, SRD_A, vA0, vSEL, [((144 * t + 18 * d + 16) * 1152, WB + 128 + 4 * t + d) for t in range(4) for d in range(4)])
    a(f"""
    v_lshlrev_b32 v{vSTO}, 4, v{vSTO}
    v_lshl_add_u32 v{vRES}, v{vXA}, 9, v{vSTO}
    s_lshl_b32 s{S_TMP}, s{sK2}, 11
    v_add_u32 v{vRES}, s{S_TMP}, v{vRES}
    s_lshr_b32 s{S_TMP}, s{sK2}, 1
    s_lshl_b32 s{S_TMP}, s{S_TMP}, 9
    s_and_b32 s{S_TMP + 1}, s{sK2}, 1
    s_lshl_b32 s{S_TMP + 1}, s{S_TMP + 1}, 3
    s_add_u32 s{S_TMP}, s{S_TMP}, s{S_TMP + 1}
    v_add_u32 v{vSTO}, s{S_TMP}, v{vSTO}
    s_lshr_b32 s{sK1}, s{sK2}, 2
    s_lshl_b32 s{sK1}, s{sK1}, 7
    s_and_b32 s{S_TMP}, s{sK2}, 3
    s_lshl_b32 s{S_TMP}, s{S_TMP}, 2
    s_add_u32 s{sK1}, s{sK1}, s{S_TMP}
    s_add_u32 s{sK1}, s{sK1}, {WS_FLAGS + FL_XB}
    """)

    def res_loads(srd_):
        pre = [f"s_mul_i32 s{sO3}, s{sNL}, {2 * X_BYTES}", f"s_mul_i32 s{S_TMP + 1}, s{sNS}, {X_SEG}",
               f"s_add_u32 s{sO3}, s{sO3}, s{S_TMP + 1}", f"s_add_u32 s{sO3}, s{sO3}, {WS_X}"]
        ops = [[f"buffer_load_dwordx4 {vr(RES + 4 * k, 4)}, v{vRES}, {srd_}, s{sO3} offen offset:{1024 * k}"] for k in range(2)]
        ops[0] = pre + ops[0]
        return ops

    def compute(pre, dma, extra, mid, roll):
        a(f"v_add_u32 v{vXA}, s{sBUF}, v{vL16}")
        for i in range(8):
            a(f"v_lshlrev_b32 v{ACC + 2 * i}, 16, v{RES + i}")
            a(f"v_and_b32 v{ACC + 2 * i + 1}, 0xffff0000, v{RES + i}")
        fl = [f"s_mul_i32 s{sO1}, s{sCL}, {2 * X_BYTES}", f"s_mul_i32 s{sK3}, s{sCS}, {X_SEG}",
              f"s_add_u32 s{sO1}, s{sO1}, s{sK3}", f"s_add_u32 s{sO1}, s{sO1}, {WS_X + X_BYTES}",
              f"s_mul_i32 s{sK4}, s{sCL}, {2 * ST_BYTES}", f"s_mul_i32 s{sK3}, s{sCS}, {ST_SEG}",
              f"s_add_u32 s{sK4}, s{sK4}, s{sK3}", f"s_add_u32 s{sK4}, s{sK4}, {WS_ST + ST_BYTES}"]
        gemm32(a, ACC, 0, vXA, [RING + 4 * i for i in range(8)], pre, dma, extra, mid, roll, init=True, fill=fl)
        for k in range(2):
            for i in range(4):
                a(f"v_cvt_pk_bf16_f32 v{RING + 4 * k + i}, v{ACC + 8 * k + 2 * i}, v{ACC + 8 * k + 2 * i + 1}")
            a(f"buffer_store_dwordx4 {vr(RING + 4 * k, 4)}, v{vRES}, {WS}, s{sO1} offen offset:{1024 * k} sc1")
        a(f"v_add_f32 v{SS}, v{ACC}, v{ACC + 1}")
        a(f"v_mul_f32 v{SS + 1}, v{ACC}, v{ACC}")
        a(f"v_fmac_f32 v{SS + 1}, v{ACC + 1}, v{ACC + 1}")
        for i in range(2, 16):
            a(f"v_add_f32 v{SS}, v{SS}, v{ACC + i}")
            a(f"v_fmac_f32 v{SS + 1}, v{ACC + i}, v{ACC + i}")
        seq(a, f"v_mov_b32 v{SS + 2}, v{SS}", f"v_mov_b32 v{SS + 3}, v{SS + 1}",
            f"v_permlane32_swap_b32 v{SS}, v{SS + 2}", f"v_permlane32_swap_b32 v{SS + 1}, v{SS + 3}",
            f"v_add_f32 v{SS}, v{SS}, v{SS + 2}", f"v_add_f32 v{SS + 1}, v{SS + 1}, v{SS + 3}",
            f"buffer_store_dwordx2 {vr(SS, 2)}, v{vSTO}, {WS}, s{sK4} offen sc1")

    def out_flag():
        a(f"s_mul_i32 s{sPEND}, s{sCO}, {FL_STRIDE}")
        a(f"s_add_u32 s{sPEND}, s{sPEND}, s{sK1}")

    staged_loop(a, "Lawo", abort, done, WS_OA, X_BYTES, FL_OA, res_loads, compute, out_flag, 3, 12, sLAYS)


def role_aq(a, abort, done, nt=""):
    lane_setup(a, 48)
    vXA, vSTA, vLDS, vOUT = 9, 10, 11, 13
    ACC, CS, RING, STR = 16, 36, 56, 68
    LN, BI = 92, 72
    ST8 = 112
    QB, KC, VA, VB, SP, PP = 128, 132, 136, 140, 144, 68
    WV = 152

    def wreg(tile, t, i=None):
        n = (tile * 18 + t) * 4
        k, b = ("v", WV + n) if n < 104 else ("a", n - 104)
        return f"{k}[{b}:{b + 3}]" if i is None else f"{k}{b + i}"

    a(f"""
    s_lshr_b32 s{sLAYS}, s{S_ROLE}, 4
    s_and_b32 s{S_ROLE}, s{S_ROLE}, 15
    s_lshl_b32 s{sK2}, s{S_ROLE}, 1
    s_lshr_b32 s{S_TMP}, s{S_WAVE}, 1
    s_add_u32 s{sK2}, s{sK2}, s{S_TMP}
    s_and_b32 s{sK3}, s{S_WAVE}, 1
    s_mul_i32 s{sK1}, s{sK2}, {90 * 1024}
    s_add_u32 s{sK1}, s{sK1}, {WS_AW}
    """)
    dbg_wait(a, DB_POOLA, N_POOL, vT0, vT1, abort, "Laq_inia", 4)
    for i in range(90):
        if i % 4 == 0:
            a(f"s_add_u32 s{S_TMP}, s{sK1}, {i * 1024}")
        a(f"buffer_load_dwordx4 {wreg(i // 18, i % 18)}, v{vL16}, {WS}, s{S_TMP} offen offset:{(i % 4) * 1024}")
        if i >= 48:
            a.wait(vm=48)
    for i in range(4):
        a(f"v_mov_b32 v{RING + i}, 0x3f803f80")
    for t in range(18):
        for tile in range(5):
            w, o = wreg(tile, t), vr(RING, 4)
            a(MF(CS + 4 * tile, o if tile >= 3 else w, w if tile >= 3 else o, "0" if t == 0 else None))
    NEG = hex(f32bits(-1e30))
    a(f"""
    v_lshlrev_b32 v{vSTA}, 5, v{vC}
    s_lshl_b32 s{S_TMP}, s{sK3}, 4
    v_add_u32 v{vSTA}, s{S_TMP}, v{vSTA}
    v_mul_u32_u24 v{vT1}, 1536, v{vG}
    v_add_u32 v{vSTA}, v{vSTA}, v{vT1}
    s_lshl_b32 s{S_TMP}, s{S_WAVE}, 7
    s_add_u32 s{S_TMP}, s{S_TMP}, {2 * XBUF}
    v_lshl_add_u32 v{vLDS}, v{vC}, 3, s{S_TMP}
    v_lshl_add_u32 v{vLDS + 1}, v{vG}, 5, s{S_TMP}
    v_lshlrev_b32 v{vOUT}, 5, v{vC}
    s_lshl_b32 s{S_TMP}, s{sK3}, 4
    v_add_u32 v{vOUT}, s{S_TMP}, v{vOUT}
    s_lshr_b32 s{S_TMP}, s{sK2}, 2
    s_add_u32 s{S_TMP}, s{S_TMP}, 64
    s_lshl_b32 s{S_TMP}, s{S_TMP}, 9
    s_and_b32 s{S_TMP + 1}, s{sK2}, 3
    s_lshl_b32 s{S_TMP + 1}, s{S_TMP + 1}, 2
    s_add_u32 s{S_TMP}, s{S_TMP}, s{S_TMP + 1}
    v_add_u32 v{vOUT + 1}, s{S_TMP}, v{vOUT}
    v_lshrrev_b32 v{vT0}, 1, v{vG}
    v_lshl_add_u32 v{vOUT}, v{vT0}, 9, v{vOUT}
    v_and_b32 v{vT0}, 1, v{vG}
    v_lshl_add_u32 v{vOUT}, v{vT0}, 3, v{vOUT}
    s_lshl_b32 s{S_TMP}, s{sK2}, 10
    v_add_u32 v{vOUT}, s{S_TMP}, v{vOUT}
    s_lshl_b32 s{sK1}, s{S_ROLE}, 7
    s_lshl_b32 s{S_TMP}, s{S_WAVE}, 2
    s_add_u32 s{sK1}, s{sK1}, s{S_TMP}
    s_add_u32 s{sK1}, s{sK1}, {WS_FLAGS + FL_OA}
    s_mov_b32 s{sK4}, {hex(f32bits(18 ** -0.5 * 1.4426950408889634))}
    v_mov_b32 v{vT1}, {NEG}
    """)
    for i in range(4):
        a(f"v_lshl_add_u32 v{vT0}, v{vG}, 2, {i}")
        a(f"v_sub_u32 v{vT0}, v{vT0}, v{vC}")
        a(f"v_cmp_le_i32 vcc, 9, v{vT0}")
        a(f"v_cndmask_b32 v{BI + i}, v{vT1}, v{vZERO}, vcc")
        a(f"v_add_u32 v{vT0}, 7, v{vT0}")
        a(f"v_cmp_ge_u32 vcc, 7, v{vT0}")
        a(f"v_cndmask_b32 v{BI + 4 + i}, v{vT1}, v{vZERO}, vcc")
    for r in (ST8, VA, VB):
        for i in range(4):
            a(f"v_mov_b32 v{r + i}, 0")
    for i in range(4):
        a(f"v_mov_b32 v{ST8 + 4 + i}, 0x3f803f80")
    a(f"v_mov_b32 v{QB + 3}, 0")
    a(f"v_mov_b32 v{KC + 3}, 0")

    def st_loads(srd_):
        pre = [f"s_mul_i32 s{sO3}, s{sNL}, {2 * ST_BYTES}", f"s_mul_i32 s{S_TMP + 1}, s{sNS}, {ST_SEG}",
               f"s_add_u32 s{sO3}, s{sO3}, s{S_TMP + 1}", f"s_add_u32 s{sO3}, s{sO3}, {WS_ST}"]
        ops = [[f"buffer_load_dwordx4 {vr(STR + 12 + 4 * i, 4)}, v{vSTA}, {srd_}, s{sO3} offen offset:{512 * i}"] for i in range(3)]
        ops[0] = pre + ops[0]
        return ops

    def compute(pre, dma, extra, mid, roll):
        vm = list(dma) + list(extra)
        S0 = STR + 12
        a(f"v_lshlrev_b32 v{vXA}, 9, v{vG}")
        a(f"v_lshl_add_u32 v{vXA}, v{vC}, 5, v{vXA}")
        a(f"s_lshl_b32 s{S_TMP}, s{sK3}, 4")
        a(f"s_add_u32 s{S_TMP}, s{S_TMP}, s{sBUF}")
        a(f"v_add_u32 v{vXA}, s{S_TMP}, v{vXA}")
        S1, S2 = S0, S0 + 1
        sm = [f"v_add_f32 v{S0 + j}, v{S0 + j}, v{S0 + 4 * i + j}" for i in (1, 2) for j in range(4)]
        sm += [f"v_add_f32 v{S1}, v{S1}, v{S0 + 2}", f"v_add_f32 v{S2}, v{S2}, v{S0 + 3}"]
        for sw in (32, 16):
            sm += [f"v_mov_b32 v{S0 + 2}, v{S1}", f"v_mov_b32 v{S0 + 3}, v{S2}",
                   f"v_permlane{sw}_swap_b32 v{S1}, v{S0 + 2}", f"v_permlane{sw}_swap_b32 v{S2}, v{S0 + 3}",
                   f"v_add_f32 v{S1}, v{S1}, v{S0 + 2}", f"v_add_f32 v{S2}, v{S2}, v{S0 + 3}"]
        sm += [f"v_mul_f32 v{S1}, {hex(f32bits(1.0 / 576))}, v{S1}", f"v_mul_f32 v{S2}, {hex(f32bits(1.0 / 576))}, v{S2}",
               f"v_fma_f32 v{S2}, -v{S1}, v{S1}, v{S2}", f"v_max_f32 v{S2}, 0, v{S2}",
               f"v_add_f32 v{S2}, {hex(f32bits(1e-5))}, v{S2}", f"v_rsq_f32 v{LN}, v{S2}",
               f"v_mul_f32 v{LN + 1}, v{S1}, v{LN}",
               f"ds_write_b64 v{vLDS}, {vr(LN, 2)}",
               f"ds_read_b128 {vr(LN + 4, 4)}, v{vLDS + 1}", f"ds_read_b128 {vr(LN + 8, 4)}, v{vLDS + 1} offset:16"]
        def rd(n):
            return f"ds_read_b128 {vr(RING + 4 * (n % 3), 4)}, v{vXA} offset:{(n % 18) * 2048}"
        q0, k0, ex, v0, vx = [ACC + 4 * i for i in range(5)]
        KP = ST8
        MX, T1 = vT0, vT1
        LQ, OX, OY, ON = ACC, ACC + 4, ACC + 8, ST8 + 4

        def fold(tile):
            ops = []
            for i in range(4):
                r = ACC + 4 * tile + i
                rs, mr = (LN + 4 + 2 * i, LN + 5 + 2 * i) if tile >= 3 else (LN, LN + 1)
                ops += [f"v_mul_f32 v{LN + 2}, v{mr}, v{CS + 4 * tile + i}", f"v_fma_f32 v{r}, v{r}, v{rs}, -v{LN + 2}"]
            return ops
        post = fold(0) + fold(2) + fold(1) + [
            f"v_cvt_pk_bf16_f32 v{QB}, v{q0}, v{q0 + 1}", f"v_cvt_pk_bf16_f32 v{QB + 1}, v{q0 + 2}, v{q0 + 3}",
            f"v_cvt_pk_bf16_f32 v{QB + 2}, v{ex}, v{ex + 1}",
            f"v_cvt_pk_bf16_f32 v{KC}, v{k0}, v{k0 + 1}", f"v_cvt_pk_bf16_f32 v{KC + 1}, v{k0 + 2}, v{k0 + 3}",
            f"v_cvt_pk_bf16_f32 v{KC + 2}, v{ex + 2}, v{ex + 3}",
            [f"s_cmp_eq_u32 s{sCS}, 0", f"s_cselect_b32 s{sO1}, {NEG}, 0"],
            None, MF(SP, vr(KP, 4), vr(QB, 4), "0"), None, MF(SP + 4, vr(KC, 4), vr(QB, 4), "0"), None, None]
        post += [f"v_mov_b32 v{KP + i}, v{KC + i}" for i in range(3)] + [None] * 3
        post += [f"v_fma_f32 v{SP + i}, v{SP + i}, s{sK4}, v{BI + i}" for i in range(8)]
        post += [f"v_add_f32 v{SP + i}, s{sO1}, v{SP + i}" for i in range(4)]
        post += [f"v_max3_f32 v{MX}, v{SP}, v{SP + 1}, v{SP + 2}", f"v_max3_f32 v{MX}, v{MX}, v{SP + 3}, v{SP + 4}",
                 f"v_max3_f32 v{MX}, v{MX}, v{SP + 5}, v{SP + 6}", f"v_max_f32 v{MX}, v{MX}, v{SP + 7}",
                 f"v_mov_b32 v{T1}, v{MX}", None, f"v_permlane32_swap_b32 v{MX}, v{T1}", f"v_max_f32 v{MX}, v{MX}, v{T1}",
                 f"v_mov_b32 v{T1}, v{MX}", None, f"v_permlane16_swap_b32 v{MX}, v{T1}", f"v_max_f32 v{MX}, v{MX}, v{T1}"]
        post += [f"v_sub_f32 v{SP + i}, v{SP + i}, v{MX}" for i in range(8)]
        post += [f"v_exp_f32 v{SP + i}, v{SP + i}" for i in range(8)]
        post += [f"v_cvt_pk_bf16_f32 v{PP + i}, v{SP + 2 * i}, v{SP + 2 * i + 1}" for i in range(4)]
        post += [None, MF(LQ, vr(ON, 4), vr(PP, 4), "0"),
                 [f"s_mul_i32 s{sO1}, s{sCO}, {X_SEG}", f"s_add_u32 s{sO1}, s{sO1}, {WS_OA}"]]
        seq(a, rd(0), rd(1))
        for n in range(36):
            t = n % 18
            if n + 2 < 36:
                a(rd(n + 2))
            x = vr(RING + 4 * (n % 3), 4)
            for tile in ((0, 1, 2) if n < 18 else (3, 4)):
                w = wreg(tile, t)
                a(MF(ACC + 4 * tile, x if tile >= 3 else w, w if tile >= 3 else x, "0" if t == 0 else None))
                if n < 18 and sm:
                    a(sm.pop(0))
                if n >= 19:
                    for _ in range(3 if n >= 30 else 2):
                        if post:
                            seq(a, post.pop(0))
            if n == 0:
                seq(a, pre[0], vm.pop(0), pre[1])
            elif vm and n < 18 and (len(vm) > len(extra) or not sm):
                seq(a, vm.pop(0))
            if n == 8:
                mid()
            if n == 17:
                assert not vm and not sm
                roll()
        seq(a, post, f"v_rcp_f32 v{T1}, v{LQ}", fold(3),
            f"v_cvt_pk_bf16_f32 v{VA + 2}, v{v0}, v{v0 + 1}", f"v_cvt_pk_bf16_f32 v{VA + 3}, v{v0 + 2}, v{v0 + 3}",
            fold(4)[:2], MF(OX, vr(VA, 4), vr(PP, 4), "0"), fold(4)[2:],
            f"v_cvt_pk_bf16_f32 v{VB + 2}, v{vx}, v{vx + 1}", f"v_cvt_pk_bf16_f32 v{VB + 3}, v{vx + 2}, v{vx + 3}",
            f"v_mov_b32 v{VA}, v{VA + 2}", f"v_mov_b32 v{VA + 1}, v{VA + 3}",
            MF(OY, vr(VB, 4), vr(PP, 4), "0"),
            [f"v_mul_f32 v{OX + i}, v{T1}, v{OX + i}" for i in range(4)],
            f"v_cvt_pk_bf16_f32 v{OX}, v{OX}, v{OX + 1}", f"v_cvt_pk_bf16_f32 v{OX + 1}, v{OX + 2}, v{OX + 3}",
            f"buffer_store_dwordx2 {vr(OX, 2)}, v{vOUT}, {WS}, s{sO1} offen sc1",
            f"v_mov_b32 v{VB}, v{VB + 2}", f"v_mov_b32 v{VB + 1}, v{VB + 3}",
            f"v_mul_f32 v{OY}, v{T1}, v{OY}", f"v_mul_f32 v{OY + 1}, v{T1}, v{OY + 1}",
            f"v_cvt_pk_bf16_f32 v{OY}, v{OY}, v{OY + 1}",
            "s_mov_b64 exec, 0xffff",
            f"buffer_store_dword v{OY}, v{vOUT + 1}, {WS}, s{sO1} offen sc1",
            "s_mov_b64 exec, -1")

    def out_flag():
        a(f"s_mul_i32 s{sPEND}, s{sCO}, {FL_STRIDE}")
        a(f"s_add_u32 s{sPEND}, s{sPEND}, s{sK1}")

    staged_loop(a, "Laq", abort, done, WS_X, 2 * X_BYTES, FL_XA, st_loads, compute, out_flag, 2, 110, sLAYS)
```

```python
from common import *

L_MEMA = 0
L_KX = 9216
ROWS = 288
L_QB = 17408
L_KB = L_QB + 8 * ROWS
L_OB = L_KB + 8 * ROWS
L_LW = 24576
LW_WAVE = 17 * 2048
assert L_OB + 8 * ROWS <= L_LW and L_LW + 4 * LW_WAVE <= 163840

vL16, vIDX, vQW, vQR, vOR, vL12, vRLD, vRST, vL4, vLW = range(10)
vT0, vT1 = 10, 11
ACCQ, ACCK, ACCV = 12, 20, 28
VXA, VXB = 36, 40
Q = [44 + 4 * i for i in range(7)]
WR0, WR1 = Q[3], Q[5]
WBASE = 72

sH = S_ROLE
sLAY = S_FREE
sSTEP = S_FREE + 1
sMEMR = S_FREE + 2
sMEMR8 = S_FREE + 3
sMEMW = S_FREE + 4
sMEMZ = S_FREE + 5
sPW = S_FREE + 6
sPH = S_FREE + 7
sKW = S_FREE + 8
sKF = S_FREE + 9
sVF = S_FREE + 10
sKM = S_FREE + 11
sFL = S_FREE + 12
sOCT = S_FREE + 13
sKMD = sOCT
sFLP = S_FREE + 24
sCEXP = S_FREE + 14
sSELX = S_FREE + 16
sSELY = S_FREE + 17
sMASK = S_FREE + 18
sU = S_FREE + 20
sMAXD = S_FREE + 22
sFAST = S_FREE + 23
sT = S_FREE + 25
sPR = sT
sWO = S_FREE + 38
SRD_D = 80
sONES = S_FREE + 36
sM = S_FREE + 38
sBM = S_FREE + 46
sHI = S_FREE + 30
S_STAMP = 80

MATS = "qkv"
import os
KSC = os.environ.get("KSC", "sc1")
P2POS = int(os.environ.get("P2POS", "0"))
PUBHK = int(os.environ.get("PUBHK", "0"))
LATEK = int(os.environ.get("LATEK", "0"))
HKOFF = int(os.environ.get("HKOFF", "0"))
PKR = int(os.environ.get("PKR", "0"))
ORDER_N = int(os.environ.get("ORDER_N", "8"))
FLW = int(os.environ.get("FLW", "0"))
LDBAR = int(os.environ.get("LDBAR", "0"))
FINE = int(os.environ.get("FINE", "0"))
D1 = [int(x) for x in os.environ.get("D1", "6,7,7").split(",")]
D2 = int(os.environ.get("D2", "0"))
D2HK = int(os.environ.get("D2HK", "1"))
SPEC = int(os.environ.get("SPEC", "0"))


def f32bits(x):
    import struct
    return struct.unpack("<I", struct.pack("<f", x))[0]


LDS_PAIRS = [("q", 0), ("k", 1), ("v", 2), ("q", 4), ("q", 5), ("o", 0, 1), ("o", 2, 1), ("o", 3, 1)]


def tiles_for(odd):
    ps = [p ^ (2 * odd) for p in range(8)] + [8]
    t = [(m, p) for p in ps for m in MATS] + [("o", pr, 0) for pr in range(4)] + [("z", 0), ("z", 1), ("o", 1, 1)]
    t += [("o", pr, 1) for pr in (0, 2, 3)]
    assert len(t) == 37
    return t


NRING = 3
RING0 = 10 * 2048


def fkey(k, b):
    return (k[0], b, k[1]) if len(k) == 2 else (k[0], k[1], b, k[2])


def build_frag_map():
    fm = {}
    regs = [("v", WBASE + 8 * i) for i in range(23)] + [("a", 8 * i) for i in range(32)]
    ri = 0
    for i, k in enumerate(tiles_for(0)):
        if k == ("z", 0):
            fm[k] = regs[ri]; ri += 1
        elif k == ("z", 1):
            fm[k] = ("l", 16)
        else:
            for b in range(2):
                if k in LDS_PAIRS:
                    fm[fkey(k, b)] = ("l", (10 + 2 * (i % NRING) if k[0] == "o" else 2 * LDS_PAIRS.index(k)) + b)
                else:
                    fm[fkey(k, b)] = regs[ri]; ri += 1
    assert ri == 55
    return fm


FM = build_frag_map()


def opnd(loc, n=8, off=0):
    k, b = loc
    return (vr if k == "v" else ar)(b + off, n)


def r1(loc, i):
    k, b = loc
    return f"{k}{b + i}"


def SM(acc, A, B):
    return f"v_smfmac_f32_16x16x64_bf16 {vr(acc, 4)}, {vr(A, 4)}, {B}, v{vIDX}"


def lw_read(dst, slot):
    return [f"ds_read_b128 {vr(dst, 4)}, v{vLW} offset:{slot * 2048}",
            f"ds_read_b128 {vr(dst + 4, 4)}, v{vLW} offset:{slot * 2048 + 1024}"]


def tstep(w, p):
    return 8 if p == 8 else (2 * w) ^ p


def r_setup(a, nt=os.environ.get("NT_R", "")):
    LANE, C, G, RHO, ETA = 10, 60, 61, 62, 11
    WS = f"s[{SRD_WS}:{SRD_WS + 3}]"
    cexp = hex(f32bits(128 ** -0.5 * 1.4426950408889634))
    a(f"""
    v_and_b32 v{LANE}, 63, v0
    v_and_b32 v{C}, 15, v{LANE}
    v_lshrrev_b32 v{G}, 4, v{LANE}
    v_lshlrev_b32 v{vL16}, 4, v{LANE}
    v_lshlrev_b32 v{vL4}, 2, v{LANE}
    s_mul_i32 s{S_TMP}, s{S_WAVE}, {LW_WAVE}
    s_add_u32 s{S_TMP}, s{S_TMP}, {L_LW}
    v_add_u32 v{vLW}, s{S_TMP}, v{vL16}
    s_mov_b32 s{sSELX}, 0x05040100
    s_mov_b32 s{sSELY}, 0x07060302
    s_mov_b32 s{sMAXD}, 0xfffffffe
    s_mov_b32 s{sCEXP}, {cexp}
    s_mov_b32 s{sCEXP + 1}, {cexp}
    s_mov_b32 s{sMASK}, 0x003f003f
    s_mov_b32 s{sMASK + 1}, 0x003f003f
    s_mov_b32 s{sONES}, 0x3f803f80
    s_mov_b32 s{sONES + 1}, 0x3f803f80
    s_mov_b32 s{sPH}, 1
    v_lshrrev_b32 v63, 2, v{C}
    v_and_b32 v64, 1, v{C}
    v_lshl_add_u32 v{RHO}, v63, 1, v64
    v_bfe_u32 v{ETA}, v{C}, 1, 1
    v_mov_b32 v{vIDX}, 0x4444
    v_mov_b32 v63, 0xeeee
    v_cmp_eq_u32 vcc, 0, v{ETA}
    v_cndmask_b32 v{vIDX}, v63, v{vIDX}, vcc
    """)
    a(f"""
    v_mul_u32_u24 v63, {2 * ROWS}, v{G}
    v_lshl_add_u32 v{vQW}, v{C}, 2, v63
    s_lshl_b32 s{S_TMP}, s{S_WAVE}, 6
    v_add_u32 v{vQW}, s{S_TMP}, v{vQW}
    v_mul_u32_u24 v63, {ROWS}, v{RHO}
    v_lshl_add_u32 v{vQR}, v{G}, 4, v63
    v_lshl_add_u32 v{vOR}, v{G}, 5, v63
    v_lshl_add_u32 v{vOR}, v{ETA}, 4, v{vOR}
    """)
    WP, U, GO, CH = sT, S_WAVE, sT + 2, sT + 3
    TAU, M0A, M0B = 66, 67, 68
    a(f"""
    s_lshr_b32 s{WP}, s{sH}, 3
    s_bfe_u32 s{GO}, s{sH}, 0x20001
    s_and_b32 s{CH}, s{sH}, 1
    v_bfe_u32 v64, v{C}, 2, 1
    v_lshl_add_u32 v63, v64, 2, v{G}
    v_mul_u32_u24 v63, {PART_H}, v63
    v_lshrrev_b32 v65, 3, v{C}
    v_lshlrev_b32 v65, 2, v65
    v_and_b32 v64, 3, v{C}
    v_add_u32 v65, v65, v64
    v_lshl_add_u32 v{vRLD}, v65, 4, v63
    s_mul_i32 s{S_TMP}, s{WP}, 3
    s_add_u32 s{S_TMP}, s{S_TMP}, s{U}
    s_lshl_b32 s{S_TMP}, s{S_TMP}, 10
    s_and_b32 s{S_TMP + 1}, s{sH}, 7
    s_lshl_b32 s{S_TMP + 1}, s{S_TMP + 1}, 7
    s_add_u32 s{S_TMP}, s{S_TMP}, s{S_TMP + 1}
    v_add_u32 v{vRLD}, s{S_TMP}, v{vRLD}
    v_and_b32 v64, 1, v{C}
    v_lshrrev_b32 v65, 1, v{C}
    s_mul_i32 s{S_TMP}, s{U}, 3
    v_add_u32 v{TAU}, s{S_TMP}, v65
    s_lshl_b32 s{S_TMP}, s{WP}, 3
    v_add_u32 v63, s{S_TMP}, v{TAU}
    s_add_u32 s{S_TMP}, s{WP}, 32
    v_mov_b32 v65, s{S_TMP}
    v_cmp_eq_u32 vcc, 8, v{TAU}
    v_cndmask_b32 v63, v63, v65, vcc
    v_lshlrev_b32 v63, 4, v63
    v_add_u32 v63, v63, v64
    s_lshl_b32 s{S_TMP}, s{GO}, 2
    s_lshl_b32 s{S_TMP + 1}, s{CH}, 1
    s_add_u32 s{S_TMP}, s{S_TMP}, s{S_TMP + 1}
    v_add_u32 v63, s{S_TMP}, v63
    v_lshlrev_b32 v63, 4, v63
    v_lshl_add_u32 v{vRST}, v{G}, 2, v63
    """)
    a(f"""
    v_lshlrev_b32 v63, 1, v{G}
    s_lshl_b32 s{S_TMP}, s{CH}, 3
    v_add_u32 v63, s{S_TMP}, v63
    v_lshrrev_b32 v65, 1, v{TAU}
    v_lshlrev_b32 v65, 5, v65
    v_and_b32 v{M0A}, 1, v{TAU}
    v_add_u32 v65, v65, v{M0A}
    v_lshl_add_u32 v{M0A}, v63, 1, v65
    v_add_u32 v{M0B}, 2, v{M0A}
    v_add_u32 v63, 0x80, v63
    v_cndmask_b32 v{M0A}, v{M0A}, v63, vcc
    v_add_u32 v63, 1, v63
    v_cndmask_b32 v{M0B}, v{M0B}, v63, vcc
    v_mul_u32_u24 v63, 576, v64
    v_add_lshl_u32 v{M0A}, v{M0A}, v63, 1
    v_add_lshl_u32 v{M0B}, v{M0B}, v63, 1
    s_mul_i32 s{WP}, s{WP}, 288
    s_mul_i32 s{GO}, s{GO}, 2304
    s_add_u32 s{WP}, s{WP}, s{GO}
    s_cmp_lt_u32 s{S_WAVE}, 3
    s_cbranch_scc1 Lr_not_w3
    v_and_b32 v{vRST}, 12, v{vL4}
    v_and_b32 v63, 4, v{LANE}
    v_lshl_add_u32 v{vRST}, v63, 5, v{vRST}
    Lr_not_w3:
    """)
    a(f"""
    s_mul_i32 s{sU}, s{sLAY}, {RING_TEAM}
    s_add_u32 s{sU}, s{sU}, {WS_RING}
    s_lshl_b32 s{S_TMP + 1}, s{S_WAVE}, 11
    s_lshl_b32 s{S_TMP + 2}, s{S_WAVE}, 8
    s_add_u32 s{S_TMP + 2}, s{S_TMP + 2}, 8192
    s_mul_i32 s{S_TMP}, s{sH}, {PART_H}
    s_add_u32 s{S_TMP}, s{S_TMP}, s{sU}
    s_mul_i32 s{sPW}, s{S_WAVE}, 3072
    s_add_u32 s{sPW}, s{sPW}, s{S_TMP}
    s_add_u32 s{sMEMZ}, s{sU}, {MEMB_OFF}
    s_xor_b32 s{sMEMW}, s{sMEMZ}, {MEMB_SLOT}
    s_add_u32 s{sMEMR}, s{sMEMZ}, s{S_TMP + 1}
    s_add_u32 s{sMEMR8}, s{sMEMZ}, s{S_TMP + 2}
    s_mul_i32 s{S_TMP}, s{sLAY}, {3 * QKV_M}
    s_lshl_b32 s{S_TMP + 2}, s{sH}, 13
    s_add_u32 s{S_TMP}, s{S_TMP}, s{S_TMP + 2}
    s_add_u32 s{sKW}, s{S_TMP}, {WS_QKV + QKV_M}
    s_add_u32 s{S_TMP}, s{S_TMP}, s{S_TMP + 1}
    s_add_u32 s{sKF}, s{S_TMP}, {WS_QKV + QKV_M}
    s_add_u32 s{sVF}, s{S_TMP}, {WS_QKV + 2 * QKV_M}
    s_mul_i32 s{S_TMP}, s{sLAY}, {NSEG * 32 * KM_UNIT}
    s_lshl_b32 s{S_TMP + 2}, s{sH}, 12
    s_add_u32 s{S_TMP}, s{S_TMP}, s{S_TMP + 2}
    s_add_u32 s{sKM}, s{S_TMP}, {WS_KM}
    s_mul_i32 s{S_TMP}, s{sLAY}, {NSEG * FL_STRIDE}
    s_lshl_b32 s{S_TMP + 2}, s{sH}, 9
    s_add_u32 s{S_TMP}, s{S_TMP}, s{S_TMP + 2}
    s_add_u32 s{sFL}, s{S_TMP}, {WS_FLAGS + FL_QKV}
    s_mov_b32 s{sSTEP}, 0
    """)
    srd(a, SRD_A, KA_MEM0, 9216)
    A_ = f"s[{SRD_A}:{SRD_A + 3}]"
    a(f"""
    s_cmp_gt_u32 s{S_WAVE}, 2
    s_cbranch_scc1 Lr_mem0_done
    s_mov_b64 exec, s[{sMASK}:{sMASK + 1}]
    buffer_load_ushort v64, v{M0A}, {A_}, s{WP} offen
    buffer_load_ushort v65, v{M0B}, {A_}, s{WP} offen
    v_lshl_or_b32 v64, v65, 16, v64
    v_min_u32 v64, s{sMAXD}, v64
    buffer_store_dword v64, v{vRST}, {WS}, s{sMEMZ} offen sc1
    v_mov_b32 v64, -1
    buffer_store_dword v64, v{vRST}, {WS}, s{sMEMW} offen sc1
    s_mov_b64 exec, -1
    Lr_mem0_done:
    v_mov_b32 v64, 0
    v_mov_b32 v65, 0
    v_mov_b32 v66, 0
    v_mov_b32 v67, 0
    s_xor_b32 s{S_TMP}, s{sPW}, {PART_SLOT}
    """)
    for sreg in (sPW, S_TMP):
        for i in range(3):
            a(f"buffer_store_dwordx4 v[64:67], v{vL16}, {WS}, s{sreg} offen offset:{1024 * i} sc1")
    a.force_wait(vm=0)
    a("s_barrier")
    a(f"s_cmp_lg_u32 s{S_WAVE}, 0")
    a("s_cbranch_scc1 Lr_noadd")
    a(f"s_lshl_b32 s{S_TMP}, s{sLAY}, 2")
    a(f"s_add_u32 s{S_TMP}, s{S_TMP}, {DB_TEAM}")
    dbg_add(a, f"s{S_TMP}", 63, 64)
    a.label("Lr_noadd")
    srd(a, SRD_A, KA_WQ, 576 * 8192)
    srd(a, SRD_B, KA_WK, 576 * 8192)
    srd(a, SRD_C, KA_WV, 576 * 8192)
    GA8, GA1, RA, RB, RZ, ZSEL, TM, ST = 12, 13, 14, 15, 16, 17, 18, 24
    R8, SCR = 21, 22
    sLW = sWO + 4
    a(f"""
    s_load_dwordx2 s[{sWO + 2}:{sWO + 3}], s[0:1], {KA_BWO}
    s_mul_i32 s{sWO}, s{sH}, 147456
    s_mul_i32 s{S_TMP}, s{S_WAVE}, 288
    s_add_u32 s{sWO}, s{sWO}, s{S_TMP}
    s_add_u32 s{sWO + 1}, s{sWO}, {64 * 1152}
    s_mul_i32 s{sLW}, s{S_WAVE}, {LW_WAVE}
    s_add_u32 s{sLW}, s{sLW}, {L_LW}
    v_lshrrev_b32 v63, 2, v{LANE}
    v_and_b32 v64, 3, v{LANE}
    v_lshlrev_b32 v64, 4, v64
    v_lshl_add_u32 v{GA8}, v63, 13, v64
    v_mul_u32_u24 v63, 1152, v63
    v_add_u32 v{GA1}, v63, v64
    v_lshrrev_b32 v63, 1, v{G}
    v_and_b32 v64, 1, v{G}
    v_lshl_add_u32 v65, v64, 3, v63
    v_lshlrev_b32 v65, 6, v65
    v_lshl_add_u32 v{RA}, v{C}, 2, v65
    v_add_u32 v{RA}, s{sLW}, v{RA}
    v_lshlrev_b32 v63, 2, v63
    v_add_u32 v65, v63, v64
    v_lshlrev_b32 v65, 8, v65
    v_lshl_add_u32 v{RB}, v{C}, 2, v65
    v_add_u32 v{RB}, s{sLW}, v{RB}
    v_and_b32 v63, 14, v{C}
    v_lshl_add_u32 v{RZ}, v63, 1, v65
    v_add_u32 v{RZ}, s{sLW}, v{RZ}
    v_and_b32 v63, 1, v{C}
    v_mov_b32 v64, s{sSELX}
    v_mov_b32 v65, s{sSELY}
    v_cmp_eq_u32 vcc, 1, v63
    v_cndmask_b32 v{ZSEL}, v64, v65, vcc
    v_lshlrev_b32 v63, 13, v{G}
    v_lshl_add_u32 v{GA8}, v{C}, 4, v63
    v_lshrrev_b32 v63, 1, v{G}
    v_and_b32 v64, 1, v{G}
    v_lshl_add_u32 v65, v64, 3, v63
    v_lshlrev_b32 v65, 8, v65
    v_lshl_add_u32 v{RA}, v{C}, 2, v65
    s_lshl_b32 s{S_TMP}, s{S_WAVE}, 6
    s_add_u32 s{S_TMP}, s{S_TMP}, {L_LW}
    v_add_u32 v{RA}, s{S_TMP}, v{RA}
    v_mul_u32_u24 v63, {LW_WAVE}, v63
    v_lshl_add_u32 v63, v64, 10, v63
    v_lshl_add_u32 v{R8}, v{C}, 2, v63
    v_add_u32 v{R8}, s{S_TMP}, v{R8}
    s_lshl_b32 s{S_TMP}, s{S_WAVE}, 12
    v_add_u32 v{SCR}, s{S_TMP}, v{vL16}
    s_lshl_b32 s{S_TMP}, s{sH}, 8
    s_mul_i32 s{sT}, s{S_WAVE}, {16 * 8192}
    s_add_u32 s{sT}, s{sT}, s{S_TMP}
    s_mul_i32 s{sT + 1}, s{S_WAVE}, {144 * 8192}
    s_add_u32 s{sT + 1}, s{sT + 1}, s{S_TMP}
    s_add_u32 s{sT + 1}, s{sT + 1}, {128 * 8192}
    """)
    a.force_wait(lg=0)
    a(f"s_mov_b32 s{SRD_D}, s{sWO + 2}")
    a(f"s_and_b32 s{SRD_D + 1}, s{sWO + 3}, 0xffff")

    TA_, TW_, GA, TA2 = 18, 19, 20, 23
    sRET, sSUB, sQS, sDO, sDM = 84, 86, 96, 97, 98
    SRD_X = 76
    subs = ["Lr_sub_p8", "Lr_sub_nat", "Lr_sub_z", "Lr_sub_dma", "Lr_sub_t8"]
    for j, nm in enumerate(subs):
        a(f"s_getpc_b64 s[{sSUB + 2 * j}:{sSUB + 2 * j + 1}]")
        a.label(nm + "_pc")
        a(f"s_add_u32 s{sSUB + 2 * j}, s{sSUB + 2 * j}, {nm}-{nm}_pc")
        a(f"s_addc_u32 s{sSUB + 2 * j + 1}, s{sSUB + 2 * j + 1}, 0")
    a(f"s_mov_b32 s{SRD_X + 2}, {576 * 8192}")
    a(f"s_mov_b32 s{SRD_X + 3}, 0x00020000")
    a("s_branch Lr_subs_end")
    for j in (0, 1, 2, 4):
        a.label(subs[j])
        a.restore(([], []))
        for d in range(8):
            half, dd = d >> 2, d & 3
            for c2 in range(2):
                if j == 0:
                    ad, off = (TA_, TA2)[half], (dd & 1) * LW_WAVE + (4 * (dd >> 1) + 2 * c2) * 256
                elif j == 4:
                    ad, off = (TA_, TA2)[half], (8 * (dd & 1) + 2 * (dd >> 1) + c2) * 256
                else:
                    ad, off = TA_, (32 * half + 8 * (dd & 1) + 2 * (dd >> 1) + c2) * 64
                a(f"ds_read_b32 v{ST + 2 * d + c2}, v{ad} offset:{off}")
        for d in range(8):
            if j == 2:
                a(f"v_perm_b32 v{ST + 16 + d}, v{ST + 2 * d + 1}, v{ST + 2 * d}, v{ZSEL}")
            else:
                a(f"v_perm_b32 v{ST + 16 + d}, v{ST + 2 * d + 1}, v{ST + 2 * d}, s{sSELX}")
                a(f"v_perm_b32 v{ST + 24 + d}, v{ST + 2 * d + 1}, v{ST + 2 * d}, s{sSELY}")
        for q in range(2 if j == 2 else 4):
            a(f"ds_write_b128 v{TW_}, {vr(ST + 16 + 4 * q, 4)} offset:{q * 1024}")
        a.wait(lg=0)
        a(f"s_setpc_b64 s[{sRET}:{sRET + 1}]")
    a.label(subs[3])
    for q in range(4):
        a(f"s_mov_b32 m0, s{sDM}")
        a(f"s_add_u32 s{sDM}, s{sDM}, 1024")
        a(f"buffer_load_dwordx4 v{GA}, s[{SRD_X}:{SRD_X + 3}], s{sDO} offen {nt} lds")
        a(f"s_add_u32 s{sDO}, s{sDO}, s{sQS}")
    a(f"s_setpc_b64 s[{sRET}:{sRET + 1}]")
    a.label("Lr_subs_end")
    a.restore(([], []))

    def call(j):
        a(f"s_swappc_b64 s[{sRET}:{sRET + 1}], s[{sSUB + 2 * j}:{sSUB + 2 * j + 1}]")

    last = [None, None]
    TILES = []
    issued = [0]
    WV = [0]

    wo_regs = [FM[k] for k in FM if k[0] in "oz" and FM[k][0] != "l"]
    park = {}
    for k in LDS_PAIRS:
        if k[0] in MATS:
            for b in range(2):
                park[fkey(k, b)] = wo_regs[len(park)]

    def ring(i):
        return (i % 8) * 4096 if i < 27 else RING0 + (i % NRING) * 4096

    def dma(i):
        k = TILES[i]
        if k[0] in MATS:
            t = tstep(WV[0], k[1])
            sb, ga, qs = (SRD_A, SRD_B, SRD_C)[MATS.index(k[0])], GA8, 4 * 8192
            if t < 8:
                a(f"s_add_u32 s{sDO}, s{sT}, {(144 * (t >> 1) + 64 * (t & 1)) * 8192}")
            else:
                a(f"s_mov_b32 s{sDO}, s{sT + 1}")
        else:
            sb, ga, qs = SRD_D, GA1, 16 * 1152
            a(f"s_add_u32 s{sDO}, s{sWO + k[-1]}, {256 if k[0] == 'z' else k[1] * 64}")
        a(f"s_mov_b64 s[{SRD_X}:{SRD_X + 1}], s[{sb}:{sb + 1}]")
        if last[0] != ga:
            a(f"v_mov_b32 v{GA}, v{ga}")
        if last[1] != qs:
            a(f"s_mov_b32 s{sQS}, {qs}")
        last[0], last[1] = ga, qs
        a(f"s_add_u32 s{sDM}, s{sLW}, {ring(i)}")
        call(3)
        issued[0] = i + 1

    def gather(i):
        k = TILES[i]
        shared = k[0] in MATS
        j = 2 if k[0] == "z" else ((0 if k[1] < 8 else 4) if shared else 1)
        keys = [k] if k[0] == "z" else [fkey(k, 0), fkey(k, 1)]
        locs = [park.get(q, FM[q]) for q in keys]
        a(f"v_add_u32 v{TA_}, {ring(i)}, v{(RA, RB, RZ, 0, R8)[j]}")
        if shared:
            a(f"v_add_u32 v{TA2}, {2 * LW_WAVE}, v{TA_}")
            a(f"v_mov_b32 v{TW_}, v{SCR}")
        else:
            a(f"v_add_u32 v{TW_}, {locs[0][1] * 2048 if locs[0][0] == 'l' else ring(i)}, v{vLW}")
        a.force_wait(vm=4 * (issued[0] - 1 - i))

        def more(done):
            for n in range(issued[0], len(TILES)):
                busy = [ring(q) for q in range(done + 1, issued[0])]
                if ring(n) in busy or n > i + 8:
                    break
                dma(n)
        if i <= 27:
            a("s_barrier")
            more(i - 1)
        if i == 27:
            for q, loc in park.items():
                a(f"ds_write_b128 v{vLW}, {opnd(loc, 4)} offset:{FM[q][1] * 2048}")
                a(f"ds_write_b128 v{vLW}, {opnd(loc, 4, 4)} offset:{FM[q][1] * 2048 + 1024}")
            a.wait(lg=0)
        call(j)
        for b, loc in enumerate(locs):
            if loc[0] != "l":
                a(f"ds_read_b128 {opnd(loc, 4)}, v{TW_} offset:{b * 2048}")
                a(f"ds_read_b128 {opnd(loc, 4, 4)}, v{TW_} offset:{b * 2048 + 1024}")
        a.wait(lg=0)
        if not shared:
            more(i)

    if ORDER & 1:
        a(f"s_cmp_eq_u32 s{sLAY}, 0")
        a("s_cbranch_scc1 Lr_noord")
        dbg_wait(a, DB_LOADED, ORDER_N, 63, 64, "Lr_abort", "Lr_ord", 64)
        a.label("Lr_noord")
    for wv in range(4):
        if wv < 3:
            a(f"s_cmp_lg_u32 s{S_WAVE}, {wv}")
            a(f"s_cbranch_scc1 Lr_ld{wv + 1}")
        WV[0] = wv
        TILES[:] = tiles_for(wv)
        last[0] = last[1] = None
        issued[0] = 0
        for i in range(7):
            dma(i)
        for i in range(len(TILES)):
            gather(i)
        a.force_wait(vm=0, lg=0)
        if wv < 3:
            a("s_branch Lr_ld_done")
            a.label(f"Lr_ld{wv + 1}")
    a.label("Lr_ld_done")
    if ORDER:
        a(f"s_add_u32 s{S_TMP}, s{sLAY}, s{S_WAVE}")
        a(f"s_cmp_lg_u32 s{S_TMP}, 0")
        a("s_cbranch_scc1 Lr_nold")
        dbg_add(a, DB_LOADED, 63, 64)
        a.label("Lr_nold")
    for i in range(4):
        a(f"s_add_u32 s{sPR + i}, s{sU}, {i * 8 * PART_H}")
    a(f"s_mov_b32 s{sHI}, 0")
    a(f"s_mov_b32 s{sHI + 1}, -1")


def flag_wait_kv(a, pfx, soff_extra, abort):
    L = a.newlabel(pfx + "fw")
    a(f"s_mov_b32 s{S_SPIN}, 0")
    a(f"s_add_u32 s{S_TMP}, s{sFL}, {soff_extra + 128}")
    a(f"v_and_b32 v{vT1}, 16, v{vL4}")
    a(f"v_lshlrev_b32 v{vT1}, 3, v{vT1}")
    a(f"v_and_or_b32 v{vT1}, v{vL4}, 12, v{vT1}")
    a.label(L)
    a(f"buffer_load_dword v{vT0}, v{vT1}, s[{SRD_WS}:{SRD_WS + 3}], s{S_TMP} offen sc1")
    spin_check(a, abort)
    a(f"v_cmp_eq_u32 vcc, 0, v{vT0}")
    a(f"s_cbranch_vccnz {L}")


def r_loop(a, w, fast, abort, done, stamps=False):
    sc = "" if fast else " sc1"
    pfx = f"Lr{w}{'f' if fast else 's'}_"
    WS = f"s[{SRD_WS}:{SRD_WS + 3}]"
    NST = 10
    tails = []
    HK = (w == 3)
    PBQ = VXA

    def A_read(dst, p):
        return f"ds_read_b128 {vr(dst, 4)}, v{vL16} offset:{L_MEMA + tstep(w, p) * 1024}"

    def W(m, b, p):
        loc = FM[(m, b, p)]
        if loc[0] == "l":
            return vr((WR0, WR1)[b], 8)
        return opnd(loc)

    def LWR(m, b, p):
        return lw_read((WR0, WR1)[b], FM[(m, b, p)][1])

    ACC = {"q": ACCQ, "k": ACCK, "v": ACCV}

    def S(m, b, p, A):
        return SM(ACC[m] + 4 * b, A, W(m, b, p))

    def stamp(i):
        if stamps == 3:
            if i == 0 and HK:
                a(f"s_memrealtime s[{S_STAMP + 4}:{S_STAMP + 5}]")
            if i == NST and HK:
                a(f"s_cmp_eq_u32 s{sSTEP}, 9")
                a(f"s_cselect_b32 s{S_STAMP}, s{S_STAMP + 4}, s{S_STAMP}")
                a(f"s_cmp_eq_u32 s{sSTEP}, 57")
                a(f"s_cselect_b32 s{S_STAMP + 1}, s{S_STAMP + 4}, s{S_STAMP + 1}")
        elif stamps == 2 or (stamps and i == NST):
            a(f"s_memrealtime s[{S_STAMP + 2 * i}:{S_STAMP + 1 + 2 * i}]")
        elif stamps:
            a(f"s_memtime s[{S_STAMP + 2 * i}:{S_STAMP + 1 + 2 * i}]")

    def dump_stamps():
        if stamps and stamps != 3:
            a.force_wait(lg=0)
            for i in range(NST + 1):
                a(f"v_writelane_b32 v{vT1}, s{S_STAMP + 2 * i}, {i}")
            a(f"v_writelane_b32 v{vT1}, s3, 11")
            a(f"v_writelane_b32 v{vT1}, s4, 12")
            a(f"s_lshl_b32 s{S_TMP}, s{sLAY}, 5")
            a(f"s_add_u32 s{S_TMP}, s{S_TMP}, s{sH}")
            a(f"s_lshl_b32 s{S_TMP}, s{S_TMP}, 6")
            a(f"s_add_u32 s{S_TMP}, s{S_TMP}, s{sSTEP}")
            a(f"s_lshl_b32 s{S_TMP}, s{S_TMP}, 8")
            a(f"s_add_u32 s{S_TMP}, s{S_TMP}, {WS_END + w * 64}")
            a(f"s_mov_b64 exec, 0x1fff")
            a(f"buffer_store_dword v{vT1}, v{vL4}, {WS}, s{S_TMP} offen")
            a(f"s_mov_b64 exec, -1")

    def zero(base, n):
        return [f"v_mov_b64 {vr(base + 2 * i, 2)}, 0" for i in range(n // 2)]

    def seq(*items):
        for it in items:
            if isinstance(it, (list, tuple)):
                seq(*it)
            elif callable(it):
                it()
            elif it:
                a(it)

    def pre_step():
        a.wait_tag("pollx")
        seq(LWR("q", 0, 0), LWR("q", 1, 0), zero(ACCQ, 24))

    def flag_store():
        a(f"v_mov_b32 v{vT0}, 1")
        a(f"v_mov_b32 v{vT1}, 0")
        a(f"s_mov_b64 exec, 1")
        a(f"buffer_store_dword v{vT0}, v{vT1}, {WS}, s{sFLP} offen offset:384 sc1")
        a(f"s_mov_b64 exec, -1")

    def M(i):
        return f"s[{sM + 2 * i}:{sM + 2 * i + 1}]"

    def poll(name, loads, checks, init, between=None, work=None, issued=0, extra=0):
        n = len(loads)
        L = pfx + name
        if not issued:
            seq(loads)
        seq(work)
        a(f"s_mov_b32 s{S_SPIN}, 0")
        for i in range(n):
            a(f"s_mov_b64 {M(i)}, {init[i]}")
        a.label(L)
        a.auto = False
        for i in range(n):
            a(f"s_mov_b64 exec, {M(i)}")
            a(loads[i])
        a("s_mov_b64 exec, -1")
        spin_check(a, abort)
        for i in range(n):
            a.force_wait(vm=2 * n - 1 - i + extra)
            seq(checks[i])
            if between:
                seq(between[i])
            if i >= 2:
                a(f"s_or_b64 vcc, {M(0) if i == 2 else 'vcc'}, {M(i - 1)}")
        a(f"s_or_b64 vcc, vcc, {M(n - 1)}")
        a(f"s_cbranch_scc1 {L}")
        a.auto = True
        a.vmq = [(frozenset(), "pollx")] * n

    def chk4(q, i):
        return [f"v_max3_u32 v{vT1}, v{q}, v{q + 1}, v{q + 2}", f"v_max_u32 v{vT1}, v{vT1}, v{q + 3}",
                f"v_cmp_eq_u32 {M(i)}, -1, v{vT1}"]

    def qB(dst, j):
        return f"ds_read_b128 {vr(dst, 4)}, v{vQR} offset:{L_QB + j * 64}"

    def kmA(dst, j):
        return f"ds_read_b128 {vr(dst, 4)}, v{vQR} offset:{L_KB + j * 64}"

    def KX(dst, j, tt):
        return f"ds_read_b128 {vr(dst, 4)}, v{vL16} offset:{L_KX + (j * 2 + tt) * 1024}"

    def MF(acc, A, B, first):
        return f"v_mfma_f32_16x16x32_bf16 {vr(acc, 4)}, {vr(A, 4)}, {vr(B, 4)}, {'0' if first else vr(acc, 4)}"

    def MF16(acc, A, B):
        return f"v_mfma_f32_16x16x16_bf16 {vr(acc, 4)}, {vr(A, 2)}, {vr(B, 2)}, {vr(acc, 4)}"

    def xe(acc):
        X, Y = acc, acc + 4
        return [f"v_add_f32 v{X}, v{X}, v{X + 2}", f"v_add_f32 v{Y}, v{Y}, v{Y + 2}",
                f"v_add_f32 v{X + 1}, v{X + 1}, v{X + 3}", f"v_add_f32 v{Y + 1}, v{Y + 1}, v{Y + 3}",
                f"v_cvt_pk_bf16_f32 v{X + 2}, v{X}, v{Y}",
                f"v_cvt_pk_bf16_f32 v{X + 3}, v{X + 1}, v{Y + 1}"]

    def kdma(i):
        if os.environ.get("NOKV"):
            return None
        return lambda: a(f"buffer_load_dwordx4 v{vL16}, {WS}, s{sKF} offen offset:{1024 * i}{' sc1' if LATEK else ''} lds", tag="kdma")

    def pub_rd():
        if w < 2:
            t = Q[2]
            return [f"v_lshrrev_b32 v{t}, 8, v{vL16}", f"v_mul_u32_u24 v{t}, {ROWS}, v{t}",
                    f"v_and_b32 v{vT1}, 0xf0, v{vL16}", f"v_add_u32 v{t}, v{t}, v{vT1}",
                    f"ds_read_b128 {vr(PBQ, 4)}, v{t} offset:{L_KB + 4 * ROWS * w}"]
        return [f"ds_read_b128 {vr(PBQ, 4)}, v{vL16} offset:{L_QB + 1024 * (w - 2)}"]

    def pub_st():
        a(f"buffer_store_dwordx4 {vr(PBQ, 4)}, v{vL16}, {WS}, s{sKM} offen offset:{1024 * w} sc1", tag="km")

    def flag_check_next():
        a(f"v_cmp_eq_u32 vcc, 0, v{vRLD}")
        a(f"s_cbranch_vccnz {pfx}flbad")
        wn = list(a.win)

        def flbad():
            a.label(pfx + "flbad")
            a.win = wn
            a.restore(([], []))
            a(f"s_cmp_eq_u32 s{sSTEP}, {NSEG - 1}")
            a(f"s_cbranch_scc1 {pfx}flok")
            flag_wait_kv(a, pfx, FL_STRIDE, abort)
            a(f"s_branch {pfx}flok")
        tails.append(flbad)
        a.label(pfx + "flok")

    flag_wait_kv(a, pfx, 0, abort)
    a(f"s_sub_u32 s{sKMD}, s{sKM}, {32 * KM_UNIT}")
    a(f"s_lshl_b32 s{sKM}, s{sLAY}, 5")
    a(f"s_add_u32 s{sKM}, s{sKM}, s{sH}")
    a(f"s_lshl_b32 s{sKM}, s{sKM}, 12")
    a(f"s_add_u32 s{sKM}, s{sKM}, {WS_DUMMY}")
    if HK or w == FLW:
        a(f"s_mov_b32 s{sFLP}, s{sKM}")
    if HK:
        a(f"v_mov_b32 v{vRLD}, 0")
    a(f"s_mov_b32 m0, {L_KX + w * 2048}")
    seq(kdma(0), kdma(1))
    a(f"s_add_u32 s{sKF}, s{sKF}, {32 * 8192}")
    a.wait(vm=0)
    AO0, AO1, A8 = Q[0], Q[1], vT0
    loads2 = [f"buffer_load_dwordx4 {vr(AO0, 4)}, v{vL16}, {WS}, s{sMEMR} offen sc1",
              f"buffer_load_dwordx4 {vr(AO1, 4)}, v{vL16}, {WS}, s{sMEMR} offen offset:1024 sc1",
              f"buffer_load_dword v{A8}, v{vL4}, {WS}, s{sMEMR8} offen sc1"]
    seq(loads2)
    pre_step()
    a.wait(lg=0)
    head = pfx + "step"
    a.label(head)
    if os.environ.get("NOCOMP"):
        a.skip = tuple(os.environ["NOCOMP"].split(","))
    poll("p2", loads2, [chk4(AO0, 0), chk4(AO1, 1), [f"v_cmp_eq_u32 {M(2)}, -1, v{A8}"]],
         ["0", f"s[{sHI}:{sHI + 1}]", "-1"] if SPEC & 2 else ["0"] * 3, issued=1)
    stamp(0)
    if stamps and stamps != 3:
        a(f"s_mov_b32 s4, s{S_SPIN}")
    seq(S("q", 0, 0, AO0),
        f"ds_write_b128 v{vL16}, {vr(AO0, 4)} offset:{L_MEMA + 2 * w * 1024}",
        f"ds_write_b128 v{vL16}, {vr(AO1, 4)} offset:{L_MEMA + (2 * w + 1) * 1024}",
        S("q", 1, 0, AO0),
        f"ds_write_b32 v{vL4}, v{A8} offset:{L_MEMA + 8192 + w * 256}",
        S("k", 0, 0, AO0), LWR("k", 0, 1),
        S("k", 1, 0, AO0), LWR("k", 1, 1),
        S("v", 0, 0, AO0), S("v", 1, 0, AO0))
    a.wait(vm=0)
    if PUBHK and HK:
        a(f"v_mov_b32 v{vT1}, 1")
        a("s_mov_b64 exec, 1")
        a(f"buffer_store_dword v{vT1}, v{vL4}, {WS}, s{sFLP} offen offset:384 sc1")
        a("s_mov_b64 exec, -1")
    a.barrier(lg=4)
    if FINE:
        stamp(3)
    l2 = LWR("v", 0, 2) + LWR("v", 1, 2)
    l4 = LWR("q", 0, 4) + LWR("q", 1, 4)
    l5 = LWR("q", 0, 5) + LWR("q", 1, 5)
    vm_at = {0 + (w & 1): None if PUBHK else pub_st,
             4 + (w & 1): f"buffer_load_dwordx4 {vr(VXA, 4)}, v{vL16}, {WS}, s{sVF} offen",
             8 + (w & 1): f"buffer_load_dwordx4 {vr(VXB, 4)}, v{vL16}, {WS}, s{sVF} offen offset:1024"}
    if HK and not HKOFF:
        vm_at[14] = [f"s_add_u32 s{S_TMP}, s{sFL}, {FL_STRIDE + 128}",
                     f"buffer_load_dword v{vRLD}, v{vRST}, {WS}, s{S_TMP} offen sc1"]
    body = [(S("q", 0, 1, AO1), [A_read(Q[2], 2)]), (S("q", 1, 1, AO1), [A_read(Q[0], 3)]),
            (S("k", 0, 1, AO1), l2[0:2]), (S("k", 1, 1, AO1), l2[2:4]),
            (S("v", 0, 1, AO1), []), (S("v", 1, 1, AO1), [A_read(Q[1], 4)]),
            (S("q", 0, 2, Q[2]), []), (S("q", 1, 2, Q[2]), []), (S("k", 0, 2, Q[2]), []), (S("k", 1, 2, Q[2]), []),
            (S("v", 0, 2, Q[2]), l4[0:2]), (S("v", 1, 2, Q[2]), [A_read(Q[2], 5), l4[2]]),
            (S("q", 0, 3, Q[0]), [l4[3]]), (S("q", 1, 3, Q[0]), []), (S("k", 0, 3, Q[0]), []), (S("k", 1, 3, Q[0]), []),
            (S("v", 0, 3, Q[0]), []), (S("v", 1, 3, Q[0]), [A_read(Q[0], 6)]),
            (S("q", 0, 4, Q[1]), l5[0:2]), (S("q", 1, 4, Q[1]), l5[2:4]), (S("k", 0, 4, Q[1]), []), (S("k", 1, 4, Q[1]), []),
            (S("v", 0, 4, Q[1]), []), (S("v", 1, 4, Q[1]), [A_read(Q[1], 7)]),
            (S("q", 0, 5, Q[2]), []), (S("q", 1, 5, Q[2]), [])]
    for i, (sm, fl) in enumerate(body):
        seq(sm, fl, vm_at.get(i))
    stamp(1)
    if FINE:
        stamp(4)
    qe, ke = xe(ACCQ), xe(ACCK)
    seq(S("k", 0, 5, Q[2]), KX(Q[3], 0, 0), S("k", 1, 5, Q[2]), KX(Q[4], 0, 1),
        S("v", 0, 5, Q[2]), KX(Q[5], 1, 0), S("v", 1, 5, Q[2]), A_read(Q[2], 8), KX(Q[6], 1, 1),
        S("q", 0, 6, Q[0]), S("q", 1, 6, Q[0]), S("q", 0, 7, Q[1]), S("q", 1, 7, Q[1]),
        S("k", 0, 6, Q[0]), S("k", 1, 6, Q[0]),
        S("q", 0, 8, Q[2]), S("q", 1, 8, Q[2]),
        S("k", 0, 7, Q[1]), S("k", 1, 7, Q[1]),
        S("k", 0, 8, Q[2]), qe[0], S("k", 1, 8, Q[2]), qe[1],
        S("v", 0, 6, Q[0]), qe[2], S("v", 1, 6, Q[0]), qe[3],
        S("v", 0, 7, Q[1]), qe[4], ke[0], S("v", 1, 7, Q[1]), qe[5], ke[1],
        f"ds_write_b32 v{vQW}, v{ACCQ + 2} offset:{L_QB}",
        f"ds_write_b32 v{vQW}, v{ACCQ + 3} offset:{L_QB + ROWS}",
        S("v", 0, 8, Q[2]), ke[2], ke[3], S("v", 1, 8, Q[2]), ke[4], ke[5],
        f"ds_write_b32 v{vQW}, v{ACCK + 2} offset:{L_KB}",
        f"ds_write_b32 v{vQW}, v{ACCK + 3} offset:{L_KB + ROWS}")
    if FINE:
        stamp(5)
    a.wait_tag("km")
    a.barrier(lg=0)
    stamp(2)
    SX, SMm = ACCQ, ACCK + 4
    X4 = ACCK
    ve = [f"v_add_f32 v{ACCV}, v{ACCV}, v{ACCV + 2}", f"v_add_f32 v{ACCV + 1}, v{ACCV + 1}, v{ACCV + 3}",
          f"v_add_f32 v{ACCV + 4}, v{ACCV + 4}, v{ACCV + 6}", f"v_add_f32 v{ACCV + 5}, v{ACCV + 5}, v{ACCV + 7}",
          f"v_cvt_pk_bf16_f32 v{ACCV + 2}, v{ACCV}, v{ACCV + 1}",
          f"v_cvt_pk_bf16_f32 v{ACCV + 3}, v{ACCV + 4}, v{ACCV + 5}",
          ]
    X5 = ACCV + 4
    ONES = X4
    PB = Q[1]
    seq(qB(Q[0], 0), qB(Q[1], 1), kmA(Q[2], 0), kmA(X4, 1), ve[0:6],
        MF(SX, Q[3], Q[0], True), qB(Q[3], 2),
        MF(SX + 4, Q[4], Q[0], True), KX(Q[4], 2, 0), KX(X5, 2, 1),
        MF(SX, Q[5], Q[1], False), qB(Q[5], 3),
        MF(SX + 4, Q[6], Q[1], False), KX(Q[6], 3, 0),
        MF(SMm, Q[2], Q[0], True), KX(Q[0], 3, 1), kmA(Q[2], 2),
        MF(SMm, X4, Q[1], False), kmA(Q[1], 3), flag_store if (w == FLW and not PUBHK and not HKOFF) else None,
        MF(SX, Q[4], Q[3], False), f"v_mov_b64 {vr(ONES, 2)}, s[{sONES}:{sONES + 1}]",
        MF(SX + 4, X5, Q[3], False), f"v_mov_b64 {vr(ONES + 2, 2)}, s[{sONES}:{sONES + 1}]",
        MF(SMm, Q[2], Q[3], False),
        MF(SX, Q[6], Q[5], False), MF(SX + 4, Q[0], Q[5], False), MF(SMm, Q[1], Q[5], False))
    if not FINE:
        stamp(3)
    MX, T1 = vT0, vT1
    MP = ACCV
    LQ = Q[6]
    P4 = Q[0]
    OX, OY = Q[2], Q[3]
    WB = [Q[4], VXA]
    lds_seq = [("o", 0, 0, 1), ("o", 0, 1, 1), ("o", 2, 0, 1), ("o", 2, 1, 1), ("o", 3, 0, 1), ("o", 3, 1, 1), ("z", 1)]
    bufof = {k: WB[i % 2] for i, k in enumerate(lds_seq)}

    def wo_rd(i):
        return lw_read(bufof[lds_seq[i]], FM[lds_seq[i]][1])

    fm = [f"v_fma_f32 v{r}, v{r}, s{sCEXP}, -v{MP}" for r in list(range(SX, SX + 8)) + [SMm, SMm + 1]]
    pf = [f"v_pk_fma_f32 {vr(b, 2)}, {vr(b, 2)}, s[{sCEXP}:{sCEXP + 1}], {vr(MP, 2)} op_sel_hi:[1,1,0] neg_lo:[0,0,1] neg_hi:[0,0,1]"
          for b in (SX, SX + 2, SX + 4, SX + 6, SMm)]
    if not PKR:
        pf = [fm[2 * i:2 * i + 2] for i in range(5)]
    ex = [f"v_exp_f32 v{r}, v{r}" for r in list(range(SX, SX + 8)) + [SMm, SMm + 1]]
    seq(wo_rd(0),
        f"v_max3_f32 v{MX}, v{SX}, v{SX + 1}, v{SX + 2}",
        f"v_max3_f32 v{MX}, v{MX}, v{SX + 3}, v{SX + 4}",
        f"v_max3_f32 v{MX}, v{MX}, v{SX + 5}, v{SX + 6}",
        f"v_max3_f32 v{MX}, v{MX}, v{SX + 7}, v{SMm}",
        f"v_max_f32 v{MX}, v{MX}, v{SMm + 1}",
        f"v_mov_b32 v{T1}, v{MX}", f"v_mov_b32 v{PB + 1}, 0", f"v_mov_b32 v{PB + 2}, 0",
        f"v_permlane32_swap_b32 v{MX}, v{T1}",
        f"v_max_f32 v{MX}, v{MX}, v{T1}",
        f"v_mov_b32 v{T1}, v{MX}", zero(X5, 4),
        f"v_permlane16_swap_b32 v{MX}, v{T1}",
        f"v_max_f32 v{MX}, v{MX}, v{T1}",
        f"v_mul_f32 v{MP}, s{sCEXP}, v{MX}",
        pf[0], pf[1], ex[0], ex[1], pf[2], ex[2], ex[3],
        f"v_cvt_pk_bf16_f32 v{P4}, v{SX}, v{SX + 1}", pf[3], ex[4],
        f"v_cvt_pk_bf16_f32 v{P4 + 1}, v{SX + 2}, v{SX + 3}", ex[5], pf[4], ex[6], ex[7],
        f"v_cvt_pk_bf16_f32 v{P4 + 2}, v{SX + 4}, v{SX + 5}", ex[8],
        f"v_cvt_pk_bf16_f32 v{P4 + 3}, v{SX + 6}, v{SX + 7}", ex[9],
        f"v_mov_b64 {vr(ACCQ, 2)}, 0",
        MF(LQ, ONES, P4, True),
        f"v_cvt_pk_bf16_f32 v{PB}, v{SMm}, v{SMm + 1}",
        f"v_cvt_pk_bf16_f32 v{PB + 3}, v{SMm}, v{SMm + 1}",
        MF(OX, VXA, P4, True), f"v_mov_b64 {vr(ACCQ + 2, 2)}, 0",
        MF16(LQ, ONES, PB),
        MF(OY, VXB, P4, True), zero(SMm, 4),
        MF16(OX, ACCV + 2, PB), wo_rd(1), zero(ONES, 4),
        MF16(OY, ACCV + 2, PB + 2), zero(P4, 4),
        f"v_rcp_f32 v{MX}, v{LQ}")
    if not FINE:
        stamp(4)
    OP = ACCQ + 4
    for i in range(0 if PKR else 4):
        a(f"v_mul_f32 v{OX + i}, v{MX}, v{OX + i}")
        a(f"v_mul_f32 v{OY + i}, v{MX}, v{OY + i}")
        a(f"v_cvt_pk_bf16_f32 v{OP + i}, v{OX + i}, v{OY + i}")
    for i in ((0, 2) if PKR else ()):
        a(f"v_pk_mul_f32 {vr(OX + i, 2)}, {vr(OX + i, 2)}, {vr(MX, 2)} op_sel_hi:[1,0]")
        a(f"v_pk_mul_f32 {vr(OY + i, 2)}, {vr(OY + i, 2)}, {vr(MX, 2)} op_sel_hi:[1,0]")
        a(f"v_cvt_pk_bf16_f32 v{OP + i}, v{OX + i}, v{OY + i}")
        a(f"v_cvt_pk_bf16_f32 v{OP + i + 1}, v{OX + i + 1}, v{OY + i + 1}")
    a(f"ds_write_b128 v{vQR}, {vr(OP, 4)} offset:{L_OB + w * 64}")
    if not FINE:
        stamp(5)
    TA = [ACCK, ACCK + 4, ACCV + 4, ACCQ, Q[0], Q[1], Q[6], ACCQ + 4, ACCV]
    seq(zero(Q[6], 4), zero(Q[1], 4))
    assert not any(t == "km" for _, t in a.vmq)
    if HK and HKOFF:
        pass
    elif HK and LATEK:
        a(f"v_cmp_eq_u32 s[{sBM}:{sBM + 1}], 0, v{vRLD}")
    elif HK:
        flag_check_next()
    a.barrier(lg=0)
    OA0, OA1 = Q[2], Q[3]
    a(f"ds_read_b128 {vr(OA0, 4)}, v{vOR} offset:{L_OB}")
    a(f"ds_read_b128 {vr(OA1, 4)}, v{vOR} offset:{L_OB + 128}")
    seq(f"v_lshlrev_b32 v{vT1}, 1, v{vL4}",
        f"ds_write_b64 v{vT1}, {vr(ACCV + 2, 2)} offset:{L_QB + w * 512}",
        f"s_cmp_eq_u32 s{sSTEP}, {NSEG - 1}", f"s_cbranch_scc1 {pfx}last",
        zero(ACCQ + 4, 4), kdma(0), kdma(1), zero(ACCV, 4))
    stamp(6)
    ST = [TA[0], TA[3], TA[6]]
    keys = [[("o", tau >> 1, tau & 1, 0), ("o", tau >> 1, tau & 1, 1)] for tau in range(8)] + [[("z", 0), ("z", 1)]]

    def epi(tau):
        acc = TA[tau]
        dst = ST[tau // 3] + tau % 3
        ops = [f"v_add_f32 v{acc}, v{acc}, v{acc + 2}", f"v_add_f32 v{acc + 1}, v{acc + 1}, v{acc + 3}",
               f"v_cvt_pk_bf16_f32 v{dst}, v{acc}, v{acc + 1}"]
        if tau % 3 == 0:
            ops.append(f"v_mov_b32 v{dst + 3}, s{sPH}")
        if tau % 3 == 2:
            ops.append(f"buffer_store_dwordx4 {vr(ST[tau // 3], 4)}, v{vL16}, {WS}, s{sPW} offen offset:{1024 * (tau // 3)}{sc}")
        return ops

    LD = [TA[1], TA[2], TA[4], TA[5]]
    loads1 = [f"buffer_load_dwordx4 {vr(LD[i], 4)}, v{vRLD}, {WS}, s{sPR + i} offen sc1" for i in range(4)]
    nxt = 2
    fill = []
    for idx in range(18):
        tau, ks = idx >> 1, idx & 1
        k = keys[tau][ks]
        B = vr(bufof[k], 8) if FM[k][0] == "l" else opnd(FM[k])
        a(SM(TA[tau], (OA0, OA1)[ks], B))
        if FM[k][0] == "l" and nxt < len(lds_seq):
            seq(wo_rd(nxt))
            nxt += 1
        n = 0
        while fill and fill[0][0] <= idx and (n < 2 or not fill[0][1].startswith("v_")):
            n += fill[0][1].startswith("v_")
            a(fill.pop(0)[1])
        if ks == 1:
            fill += [(idx + 2, t) for t in epi(tau)]
    for _, t in fill:
        a(t)
    stamp(7)
    last = pfx + "last"
    tog = [f"s_xor_b32 s{r}, s{r}, {MEMB_SLOT}" for r in [sMEMR, sMEMR8]]
    if not HK:
        SEL, D = Q[4], Q[5]
        loads = loads1
        checks = [[f"v_cmp_ne_u32 {M(i)}, s{sPH}, v{LD[i] + 3}"] for i in range(4)]
        betw = [[MF(D, LD[i], SEL, i == 0)] for i in range(4)]
        stamp(9)

        def sel_build():
            a(f"v_bfe_u32 v{vT0}, v{vL16}, 4, 4")
            a(f"v_mov_b32 v{vT1}, 0x3f80")
            a(f"v_mov_b32 v{D}, 0x3f800000")
            for d in range(3):
                a(f"v_cmp_eq_u32 vcc, {2 * d}, v{vT0}")
                a(f"v_cmp_eq_u32 s[{sU}:{sU + 1}], {2 * d + 1}, v{vT0}")
                a(f"v_cndmask_b32 v{SEL + d}, 0, v{vT1}, vcc")
                a(f"v_cndmask_b32 v{SEL + d}, v{SEL + d}, v{D}, s[{sU}:{sU + 1}]")
            a(f"v_mov_b32 v{SEL + 3}, 0")
        sel_build()
        if D1[w]:
            a(f"s_sleep {D1[w]}")
        poll("p1", loads, checks, ["-1" if (w == 2 and SPEC & 1) else "0"] * 4, betw)
        stamp(8)
        if stamps and stamps != 3:
            a(f"s_mov_b32 s3, s{S_SPIN}")
        seq(f"v_permlane16_swap_b32 v{D}, v{D + 2}", f"v_permlane16_swap_b32 v{D + 1}, v{D + 3}",
            f"s_mov_b64 exec, s[{sMASK}:{sMASK + 1}]",
            f"v_add_f32 v{D}, v{D}, v{D + 2}", f"v_add_f32 v{D + 1}, v{D + 1}, v{D + 3}",
            f"v_cvt_pk_bf16_f32 v{D}, v{D}, v{D + 1}", f"v_min_u32 v{D}, s{sMAXD}, v{D}",
            f"buffer_store_dword v{D}, v{vRST}, {WS}, s{sMEMW} offen{sc}")
        seq(tog, f"s_mov_b64 exec, -1")
        a.wait_tag("pollx")
        a.I("s_barrier")
        a(f"s_mov_b64 exec, s[{sMASK}:{sMASK + 1}]")
        a(f"v_mov_b32 v{D + 1}, -1")
        a(f"buffer_store_dword v{D + 1}, v{vRST}, {WS}, s{sMEMZ} offen{sc}")
        a(f"s_mov_b64 exec, -1")
    if HK and HKOFF:
        flag_store()
        a(f"v_cmp_eq_u32 s[{sBM}:{sBM + 1}], 0, v{vRLD}")
    if HK and LATEK:
        a(f"s_cmp_lg_u64 s[{sBM}:{sBM + 1}], 0")
        a(f"s_cbranch_scc1 {pfx}flbad")

        def flbad():
            a.label(pfx + "flbad")
            a.restore(([], []))
            flag_wait_kv(a, pfx, FL_STRIDE, abort)
            a(f"s_branch {pfx}flok")
            a.label(pfx + "rek")
            a(f"s_sub_u32 s{S_TMP}, s{sKF}, {3 * 2048 + 32 * 8192}")
            for i in range(8):
                if i % 4 == 0:
                    a(f"s_mov_b32 m0, {L_KX + i * 1024}")
                    if i:
                        a(f"s_add_u32 s{S_TMP}, s{S_TMP}, 4096")
                    else:
                        a("s_nop 0")
                a(f"buffer_load_dwordx4 v{vL16}, {WS}, s{S_TMP} offen offset:{1024 * (i % 4)} sc1 lds")
            a(f"s_mov_b32 m0, {L_KX + w * 2048}")
            a(f"s_branch {pfx}rekd")
        tails.append(flbad)
        a.label(pfx + "flok")
        if HKOFF:
            a(f"s_add_u32 s{S_TMP}, s{sFL}, {2 * FL_STRIDE + 128}")
            a(f"buffer_load_dword v{vRLD}, v{vRST}, {WS}, s{S_TMP} offen sc1")
    adv = [f"s_add_u32 s{sPH}, s{sPH}, 1", f"s_add_u32 s{sSTEP}, s{sSTEP}, 1"]
    adv += [f"s_xor_b32 s{r}, s{r}, {PART_SLOT}" for r in [sPW] + ([] if HK else [sPR + i for i in range(4)])]
    adv += [f"s_xor_b32 s{r}, s{r}, {MEMB_SLOT}" for r in ([] if HK else [sMEMW, sMEMZ])]
    adv += [f"s_add_u32 s{sVF}, s{sVF}, {32 * 8192}", f"s_add_u32 s{sKF}, s{sKF}, {32 * 8192}",
            f"s_add_u32 s{sKMD}, s{sKMD}, {32 * KM_UNIT}", f"s_mov_b32 s{sKM}, s{sKMD}"]
    if HK or w == FLW:
        adv += [f"s_mov_b32 s{sFLP}, s{sFL}", f"s_add_u32 s{sFL}, s{sFL}, {FL_STRIDE}"]
    seq(adv)
    if HK and PUBHK:
        pass
    if HK:
        seq(tog)
        for t in zero(ACCQ, 24):
            a(t)
        a.barrier(lg=0)
        if LATEK:
            a(f"s_cmp_lg_u64 s[{sBM}:{sBM + 1}], 0")
            a(f"s_cbranch_scc1 {pfx}rek")
            a.label(pfx + "rekd")
        if PUBHK:
            PQ = [Q[0], Q[1], Q[2], VXA]
            seq(f"v_lshrrev_b32 v{vT0}, 8, v{vL16}", f"v_mul_u32_u24 v{vT0}, {ROWS}, v{vT0}",
                f"v_and_b32 v{vT1}, 0xf0, v{vL16}", f"v_add_u32 v{vT0}, v{vT0}, v{vT1}",
                f"ds_read_b128 {vr(PQ[0], 4)}, v{vT0} offset:{L_KB}", f"ds_read_b128 {vr(PQ[1], 4)}, v{vT0} offset:{L_KB + 4 * ROWS}",
                f"ds_read_b128 {vr(PQ[2], 4)}, v{vL16} offset:{L_QB}", f"ds_read_b128 {vr(PQ[3], 4)}, v{vL16} offset:{L_QB + 1024}",
                LWR("q", 0, 0), LWR("q", 1, 0))
            for i in range(4):
                a(f"buffer_store_dwordx4 {vr(PQ[i], 4)}, v{vL16}, {WS}, s{sKM} offen offset:{1024 * i} sc1")
        else:
            seq(LWR("q", 0, 0), LWR("q", 1, 0), pub_rd())
        a.wait(lg=0)
        trace(a, Q[2], Q[2] + 1, True)
        if DBGT:
            a(f"s_lshl_b32 s{S_TMP}, s{sLAY}, 2")
            a(f"s_add_u32 s{S_TMP + 1}, s{S_TMP}, 20")
            stamp_max(a, f"s{S_TMP + 1}", Q[2], Q[2] + 1, (sSTEP, 1))
            a(f"s_add_u32 s{S_TMP + 1}, s{S_TMP}, 44")
            stamp_max(a, f"s{S_TMP + 1}", Q[2], Q[2] + 1, (sSTEP, 63))
            a(f"s_add_u32 s{S_TMP + 1}, s{S_TMP}, 52")
            stamp_max(a, f"s{S_TMP + 1}", Q[2], Q[2] + 1, (sSTEP, 33))
        if D2HK:
            a(f"s_sleep {D2HK}")
        seq(loads2)
    else:
        work = LWR("q", 0, 0) + LWR("q", 1, 0) + ([] if PUBHK else pub_rd()) + zero(ACCQ, 24)
        k = len(work) - P2POS
        seq(work[:k], loads2, work[k:])
        a.wait(lg=0)
    stamp(NST)
    dump_stamps()
    a.restore(([], []))
    a(f"s_branch {head}")
    a.skip = ()
    for t in tails:
        t()
    a.restore(([], []))
    a.label(last)
    if HK and HKOFF:
        flag_store()
    a.force_wait(lg=0)
    a.I("s_barrier")
    a(f"s_add_u32 s{sKM}, s{sKMD}, {32 * KM_UNIT}")
    seq(pub_rd(), pub_st)
    a.force_wait(vm=0)
    a.I("s_barrier")
    if not HK:
        a(f"s_branch {done}")
    if HK:
        a(f"s_mov_b32 s{sFLP}, s{sFL}")
        flag_store()
        if stamps == 3:
            a(f"s_sub_u32 s{S_STAMP}, s{S_STAMP + 1}, s{S_STAMP}")
            a(f"v_mov_b32 v{vT0}, s{S_STAMP}")
            a(f"s_lshl_b32 s{S_TMP}, s{sH}, 2")
            a(f"v_mov_b32 v{vT1}, s{S_TMP}")
            a(f"global_store_dword v{vT1}, v{vT0}, s[{S_DBG}:{S_DBG + 1}] offset:128")
        a(f"s_branch {done}")
```

```python
from common import *
import os, struct

ROWS = 288
L_F = 0
L_OB = 16 * ROWS
L_MEMA = L_OB + 8 * ROWS
L_KX = L_MEMA + 8192
L_LW = L_KX + 8192
LW_WAVE = 17 * 2048
L_SEL = L_LW + 4 * LW_WAVE
assert L_LW % 256 == 0 and L_SEL + 1024 <= 163840

PH = 9216

vL16, vIDX, vQW, vQR, vOR, vOW, vRLD, vRST, vLW, vT0, vT1, vT2 = range(12)
ACCQ, ACCK, ACCV = 12, 20, 28
Q = [36 + 4 * i for i in range(9)]
FA, FB, FC, R0, R1 = Q[0], Q[1], Q[2], Q[3], Q[4]
WR0, WR1 = Q[5], Q[7]
WBASE = 72

sH = S_ROLE
sLAY = 32
sSTEP = 33
sMA = 34
sMC = 35
sMEMW = 36
sMEMZ = 37
sPW = 38
sPWC = 39
sPH = 40
sKF = 41
sVF = 42
sKM = 43
sCEXP = 44
sMASK = 46
sU = 48
sMAXD = 50
sFAST = 51
sONES = 52
sM = 54
sPR = 62
sFL = 66
sFLP = 67
sTCH = 68
sL0 = 70
S_STAMP = 80

MATS = "qkv"
env = os.environ.get
DBC = [int(x) for x in env("DBC", "0,0,0,0").split(",")]
DP1 = [int(x) for x in env("DP1", "0,60,50").split(",")]
DP2 = int(env("DP2", "10"))
DQ1 = [int(x) for x in env("DQ1", "20,30,30,10").split(",")]
DQ2 = [int(x) for x in env("DQ2", "10,20,20,25").split(",")]
DQ3 = [int(x) for x in env("DQ3", "25,25,25,25").split(",")]
DQB = int(env("DQB", "0"))
HKSL = int(env("HKSL", "5"))
VORD = int(env("VORD", "1"))
KD0 = int(env("KD0", "0"))
FLW = int(env("FLW", "1"))
CKW = int(env("CKW", "2"))
TKW = int(env("TKW", "0"))
TCW = int(env("TCW", "3"))
PB0 = int(env("PB0", "0"))
PC0 = int(env("PC0", "4"))
STG = int(env("STG", "1"))
FAD = int(env("FAD", "0"))
VEARLY = int(env("VEARLY", "2"))
TPOS = int(env("TPOS", "1"))
PAPOS = int(env("PAPOS", "-1"))
R2E = int(env("R2E", "1"))
TOUCH = int(env("TOUCH", "1"))


def f32bits(x):
    return struct.unpack("<I", struct.pack("<f", x))[0]


LDS_TILES = [("v", 0), ("v", 2), ("q", 4), ("q", 6)]
LDS_SLOT = {}
for i, (m, t) in enumerate(LDS_TILES):
    LDS_SLOT[(m, 0, t)] = 2 * i
    LDS_SLOT[(m, 1, t)] = 2 * i + 1
for i, (p, ks) in enumerate([(2, 0), (2, 1), (3, 0), (3, 1)]):
    LDS_SLOT[("o", 2 * p, ks)] = 8 + 2 * i
    LDS_SLOT[("o", 2 * p + 1, ks)] = 9 + 2 * i
LDS_SLOT[("o", 8, 1)] = 16


def build_fm():
    fm = {}
    regs = [("v", WBASE + 8 * i) for i in range(23)] + [("a", 8 * i) for i in range(32)]
    keys = [(m, b, t) for m in "qkv" for t in range(9) for b in range(2) if (m, t) not in LDS_TILES]
    keys += [("o", tau, ks) for tau in range(4) for ks in range(2)] + [("o", 8, 0)]
    assert len(keys) == 55
    for k, r in zip(keys, regs):
        fm[k] = r
    for k, s in LDS_SLOT.items():
        fm[k] = ("l", s)
    return fm


FM = build_fm()


def opnd(loc, n=8, off=0):
    k, b = loc
    return (vr if k == "v" else ar)(b + off, n)


def SM(acc, A, B):
    return f"v_smfmac_f32_16x16x64_bf16 {vr(acc, 4)}, {vr(A, 4)}, {B}, v{vIDX}"


def lw_read(dst, slot):
    return [f"ds_read_b128 {vr(dst, 4)}, v{vLW} offset:{slot * 2048}",
            f"ds_read_b128 {vr(dst + 4, 4)}, v{vLW} offset:{slot * 2048 + 1024}"]


def nops(a, n):
    while n > 0:
        k = min(n, 16)
        a(f"s_nop {k - 1}")
        n -= k


def r_setup(a):
    WS = f"s[{SRD_WS}:{SRD_WS + 3}]"
    LANE, C, G, T3, T4, T5, TAU = 60, 61, 62, 63, 64, 65, 66
    cexp = hex(f32bits(128 ** -0.5 * 1.4426950408889634))
    W = S_WAVE
    a(f"""
    v_and_b32 v{LANE}, 63, v0
    v_and_b32 v{C}, 15, v{LANE}
    v_lshrrev_b32 v{G}, 4, v{LANE}
    v_lshlrev_b32 v{vL16}, 4, v{LANE}
    s_mul_i32 s{S_TMP}, s{W}, {LW_WAVE}
    s_add_u32 s{S_TMP}, s{S_TMP}, {L_LW}
    v_add_u32 v{vLW}, s{S_TMP}, v{vL16}
    s_mov_b32 s{sMAXD}, 0xfffffffe
    s_mov_b32 s{sCEXP}, {cexp}
    s_mov_b32 s{sCEXP + 1}, {cexp}
    s_mov_b32 s{sONES}, 0x3f803f80
    s_mov_b32 s{sONES + 1}, 0x3f803f80
    s_mov_b32 s{sPH}, 1
    s_mov_b32 s{sMASK}, 0x00ff00ff
    s_cmp_eq_u32 s{W}, 2
    s_cselect_b32 s{sMASK}, 0x00030003, s{sMASK}
    s_mov_b32 s{sMASK + 1}, s{sMASK}
    v_bfe_u32 v{T3}, v{C}, 1, 1
    v_mov_b32 v{vIDX}, 0x4444
    v_mov_b32 v{T4}, 0xeeee
    v_cmp_eq_u32 vcc, 0, v{T3}
    v_cndmask_b32 v{vIDX}, v{T4}, v{vIDX}, vcc
    """)
    a(f"""
    v_mul_u32_u24 v{T4}, {4 * ROWS}, v{G}
    v_lshl_add_u32 v{vQW}, v{C}, 2, v{T4}
    s_lshl_b32 s{S_TMP}, s{W}, 6
    s_add_u32 s{S_TMP + 1}, s{S_TMP}, {L_F}
    v_add_u32 v{vQW}, s{S_TMP + 1}, v{vQW}
    v_mul_u32_u24 v{T4}, {ROWS}, v{C}
    v_lshl_add_u32 v{vQR}, v{G}, 4, v{T4}
    v_add_u32 v{vQR}, {L_F}, v{vQR}
    v_lshrrev_b32 v{T4}, 2, v{C}
    v_and_b32 v{T5}, 1, v{C}
    v_lshl_add_u32 v{T4}, v{T4}, 1, v{T5}
    v_mul_u32_u24 v{T5}, {ROWS}, v{T4}
    v_lshl_add_u32 v{vOR}, v{G}, 5, v{T5}
    v_lshl_add_u32 v{vOR}, v{T3}, 4, v{vOR}
    v_add_u32 v{vOR}, {L_OB}, v{vOR}
    v_xor_b32 v{T3}, 1, v{T3}
    v_mul_u32_u24 v{T3}, {8 * ROWS}, v{T3}
    v_add_u32 v{vOW}, v{T5}, v{T3}
    v_lshl_add_u32 v{vOW}, v{G}, 4, v{vOW}
    s_add_u32 s{S_TMP + 1}, s{S_TMP}, {L_OB}
    v_add_u32 v{vOW}, s{S_TMP + 1}, v{vOW}
    """)
    WP, GO, CH, UI = sL0, sL0 + 1, sL0 + 2, sL0 + 3
    a(f"""
    s_lshr_b32 s{WP}, s{sH}, 3
    s_bfe_u32 s{GO}, s{sH}, 0x20001
    s_and_b32 s{CH}, s{sH}, 1
    v_bfe_u32 v{T4}, v{C}, 2, 1
    v_lshl_add_u32 v{T3}, v{T4}, 2, v{G}
    v_mul_u32_u24 v{T3}, {PH}, v{T3}
    v_lshrrev_b32 v{T5}, 3, v{C}
    v_lshlrev_b32 v{T5}, 2, v{T5}
    v_and_b32 v{T4}, 3, v{C}
    v_add_u32 v{T5}, v{T5}, v{T4}
    s_lshl_b32 s{UI}, s{GO}, 4
    s_lshl_b32 s{S_TMP}, s{CH}, 3
    s_add_u32 s{UI}, s{UI}, s{S_TMP}
    v_add_u32 v{T5}, s{UI}, v{T5}
    s_lshl_b32 s{S_TMP}, s{WP}, 6
    v_add_u32 v{T5}, s{S_TMP}, v{T5}
    s_cmp_eq_u32 s{W}, 2
    s_cselect_b32 s{S_TMP}, 2, 4
    v_lshlrev_b32 v{T5}, s{S_TMP}, v{T5}
    v_add_u32 v{vRLD}, v{T3}, v{T5}
    s_lshl_b32 s{S_TMP}, s{W}, 12
    v_add_u32 v{vRLD}, s{S_TMP}, v{vRLD}
    v_lshrrev_b32 v{TAU}, 1, v{C}
    s_lshl_b32 s{S_TMP}, s{W}, 2
    v_add_u32 v{TAU}, s{S_TMP}, v{TAU}
    v_and_b32 v{T4}, 1, v{C}
    s_lshl_b32 s{S_TMP}, s{WP}, 4
    s_lshl_b32 s{S_TMP + 1}, s{GO}, 2
    s_add_u32 s{S_TMP}, s{S_TMP}, s{S_TMP + 1}
    s_lshl_b32 s{S_TMP + 1}, s{CH}, 1
    s_add_u32 s{S_TMP}, s{S_TMP}, s{S_TMP + 1}
    v_add_u32 v{T5}, s{S_TMP}, v{T4}
    v_lshl_add_u32 v{T5}, v{TAU}, 6, v{T5}
    v_lshlrev_b32 v{T5}, 4, v{T5}
    v_lshl_add_u32 v{vRST}, v{G}, 2, v{T5}
    """)
    M0 = 67
    a(f"""
    s_lshl_b32 s{S_TMP}, s{GO}, 1
    v_add_u32 v{T4}, s{S_TMP}, v{T4}
    v_mul_u32_u24 v{T4}, 576, v{T4}
    v_lshl_add_u32 v{T4}, v{TAU}, 4, v{T4}
    v_lshl_add_u32 v{T4}, v{G}, 1, v{T4}
    s_mul_i32 s{S_TMP}, s{WP}, 144
    s_lshl_b32 s{S_TMP + 1}, s{CH}, 3
    s_add_u32 s{S_TMP}, s{S_TMP}, s{S_TMP + 1}
    v_add_u32 v{T4}, s{S_TMP}, v{T4}
    v_lshlrev_b32 v{M0}, 1, v{T4}
    """)
    a(f"""
    s_mul_i32 s{sU}, s{sLAY}, {RING_TEAM}
    s_add_u32 s{sU}, s{sU}, {WS_RING}
    s_mul_i32 s{S_TMP}, s{sH}, {PH}
    s_add_u32 s{S_TMP}, s{S_TMP}, s{sU}
    s_lshl_b32 s{S_TMP + 1}, s{W}, 10
    s_add_u32 s{sPW}, s{S_TMP}, s{S_TMP + 1}
    s_lshl_b32 s{S_TMP + 2}, s{W}, 8
    s_add_u32 s{sPWC}, s{S_TMP}, s{S_TMP + 2}
    s_add_u32 s{sPWC}, s{sPWC}, 8192
    s_add_u32 s{sMEMZ}, s{sU}, {MEMB_OFF}
    s_xor_b32 s{sMEMW}, s{sMEMZ}, {MEMB_SLOT}
    s_add_u32 s{sMA}, s{sMEMZ}, s{S_TMP + 1}
    s_add_u32 s{sMC}, s{sMEMZ}, 8192
    s_mul_i32 s{S_TMP}, s{sLAY}, {3 * QKV_M}
    s_lshl_b32 s{S_TMP + 2}, s{sH}, 13
    s_add_u32 s{S_TMP}, s{S_TMP}, s{S_TMP + 2}
    s_add_u32 s{sTCH}, s{S_TMP}, {WS_QKV + 2 * QKV_M}
    s_lshl_b32 s{S_TMP + 1}, s{W}, 11
    s_add_u32 s{S_TMP}, s{S_TMP}, s{S_TMP + 1}
    s_add_u32 s{sKF}, s{S_TMP}, {WS_QKV + QKV_M}
    s_add_u32 s{sVF}, s{S_TMP}, {WS_QKV + 2 * QKV_M}
    s_mul_i32 s{S_TMP}, s{sLAY}, {NSEG * 32 * KM_UNIT}
    s_lshl_b32 s{S_TMP + 2}, s{sH}, 12
    s_add_u32 s{S_TMP}, s{S_TMP}, s{S_TMP + 2}
    s_add_u32 s{sKM}, s{S_TMP}, {WS_KM}
    s_mul_i32 s{S_TMP}, s{sLAY}, {NSEG * FL_STRIDE}
    s_lshl_b32 s{S_TMP + 2}, s{sH}, 9
    s_add_u32 s{S_TMP}, s{S_TMP}, s{S_TMP + 2}
    s_add_u32 s{sFL}, s{S_TMP}, {WS_FLAGS + FL_QKV}
    s_mov_b32 s{sSTEP}, 0
    """)
    for i in range(4):
        a(f"s_add_u32 s{sPR + i}, s{sU}, {i * 8 * PH}")
    srd(a, SRD_A, KA_MEM0, 9216)
    A_ = f"s[{SRD_A}:{SRD_A + 3}]"
    a(f"""
    s_cmp_gt_u32 s{W}, 2
    s_cbranch_scc1 Lr_mem0_done
    s_mov_b64 exec, s[{sMASK}:{sMASK + 1}]
    buffer_load_dword v{T4}, v{M0}, {A_}, 0 offen
    v_min_u32 v{T4}, s{sMAXD}, v{T4}
    buffer_store_dword v{T4}, v{vRST}, {WS}, s{sMEMZ} offen sc1
    v_mov_b32 v{T4}, -1
    buffer_store_dword v{T4}, v{vRST}, {WS}, s{sMEMW} offen sc1
    s_mov_b64 exec, -1
    Lr_mem0_done:
    v_mov_b32 v64, 0
    v_mov_b32 v65, 0
    v_mov_b32 v66, 0
    v_mov_b32 v67, 0
    v_lshrrev_b32 v{T3}, 2, v{vL16}
    buffer_store_dwordx4 v[64:67], v{vL16}, {WS}, s{sPW} offen sc1
    s_add_u32 s{S_TMP}, s{sPW}, 4096
    buffer_store_dwordx4 v[64:67], v{vL16}, {WS}, s{S_TMP} offen sc1
    buffer_store_dword v64, v{T3}, {WS}, s{sPWC} offen sc1
    """)
    a.force_wait(vm=0)
    a("s_barrier")
    a(f"s_cmp_lg_u32 s{W}, 0")
    a("s_cbranch_scc1 Lr_noadd")
    a(f"s_lshl_b32 s{S_TMP}, s{sLAY}, 2")
    a(f"s_add_u32 s{S_TMP}, s{S_TMP}, {DB_TEAM}")
    dbg_add(a, f"s{S_TMP}", 63, 64)
    a.label("Lr_noadd")
    if W is not None:
        a(f"""
        s_cmp_lt_u32 s{S_WAVE}, 3
        s_cbranch_scc1 Lr_not_w3
        v_lshlrev_b32 v{vRLD}, 3, v{vL16}
        v_lshrrev_b32 v{T3}, 2, v{vL16}
        v_and_b32 v{vRST}, 12, v{T3}
        v_and_b32 v{T3}, 16, v{T3}
        v_lshl_add_u32 v{vRST}, v{T3}, 3, v{vRST}
        Lr_not_w3:
        """)
    loader(a)
    a(f"v_bfe_u32 v{vT0}, v{vL16}, 4, 4")
    a(f"v_mov_b32 v{vT1}, 0x3f80")
    a(f"v_mov_b32 v16, 0x3f800000")
    for d in range(4):
        a(f"v_cmp_eq_u32 vcc, {2 * d}, v{vT0}")
        a(f"v_cmp_eq_u32 s[{sU}:{sU + 1}], {2 * d + 1}, v{vT0}")
        a(f"v_cndmask_b32 v{12 + d}, 0, v{vT1}, vcc")
        a(f"v_cndmask_b32 v{12 + d}, v{12 + d}, v16, s[{sU}:{sU + 1}]")
    a(f"v_add_u32 v{vT0}, {L_SEL}, v{vL16}")
    a(f"ds_write_b128 v{vT0}, v[12:15]")
    a.wait(lg=0)


def loader(a):
    W = S_WAVE
    g0 = 12
    GW, GZ = 16, 17
    RA = 18
    RW, RZ = 22, 23
    TMP = 24
    T3, T4, T5, LANE, I16, GB = 63, 64, 65, 60, 61, 62
    sT, sWO, sLW = sL0, sL0 + 1, sL0 + 2
    SRD_D = 76
    srd(a, SRD_A, KA_WQ, 576 * 8192)
    srd(a, SRD_B, KA_WK, 576 * 8192)
    srd(a, SRD_C, KA_WV, 576 * 8192)
    srd(a, SRD_D, KA_BWO, 4096 * 1152)
    a(f"""
    v_lshrrev_b32 v{LANE}, 4, v{vL16}
    v_and_b32 v{I16}, 15, v{LANE}
    v_lshrrev_b32 v{GB}, 4, v{LANE}
    s_mul_i32 s{sLW}, s{W}, {LW_WAVE}
    s_add_u32 s{sLW}, s{sLW}, {L_LW}
    s_mul_i32 s{sT}, s{W}, {144 * 8192}
    s_lshl_b32 s{S_TMP}, s{sH}, 8
    s_add_u32 s{sT}, s{sT}, s{S_TMP}
    s_mul_i32 s{sWO}, s{sH}, 147456
    s_mul_i32 s{S_TMP}, s{W}, 288
    s_add_u32 s{sWO}, s{sWO}, s{S_TMP}
    """)
    a(f"""
    v_and_b32 v{T3}, 1, v{GB}
    v_lshrrev_b32 v{T4}, 1, v{I16}
    v_xor_b32 v{T4}, v{T4}, v{T3}
    v_lshlrev_b32 v{T4}, 5, v{T4}
    v_and_b32 v{T5}, 1, v{I16}
    v_lshl_add_u32 v{T4}, v{T5}, 4, v{T4}
    v_lshl_add_u32 v{g0}, v{GB}, 13, v{T4}
    """)
    for q in range(1, 4):
        a(f"v_xor_b32 v{g0 + q}, {(2 * (q >> 1) + 4 * (q & 1)) << 5}, v{g0}")
    a(f"""
    v_lshrrev_b32 v{T3}, 2, v{LANE}
    v_mul_u32_u24 v{T3}, 1152, v{T3}
    v_and_b32 v{T4}, 3, v{LANE}
    v_lshl_add_u32 v{GW}, v{T4}, 4, v{T3}
    v_lshrrev_b32 v{T3}, 1, v{LANE}
    v_mul_u32_u24 v{T3}, 1152, v{T3}
    v_and_b32 v{T4}, 1, v{LANE}
    v_lshl_add_u32 v{GZ}, v{T4}, 4, v{T3}
    """)
    R_, C4, GL = 40, 41, 42
    a(f"""
    v_lshrrev_b32 v{R_}, 2, v{I16}
    v_and_b32 v{C4}, 3, v{I16}
    v_and_b32 v{T3}, 1, v{GB}
    v_lshl_add_u32 v{GL}, v{T3}, 2, v{R_}
    v_and_b32 v{T4}, 1, v{R_}
    v_lshl_add_u32 v{T4}, v{T3}, 2, v{T4}
    v_lshrrev_b32 v{T5}, 1, v{R_}
    v_lshl_add_u32 v{T4}, v{T5}, 3, v{T4}
    v_lshlrev_b32 v{T4}, 8, v{T4}
    v_lshl_add_u32 v{T4}, v{C4}, 3, v{T4}
    v_lshrrev_b32 v{T5}, 1, v{GB}
    v_mul_u32_u24 v{T5}, {LW_WAVE}, v{T5}
    v_add_u32 v{T4}, v{T4}, v{T5}
    v_add_u32 v{T4}, {L_LW}, v{T4}
    s_lshl_b32 s{S_TMP}, s{W}, 1
    """)
    for b in range(2):
        a(f"s_add_u32 s{S_TMP + 1}, s{S_TMP}, {b}")
        a(f"v_xor_b32 v{T5}, s{S_TMP + 1}, v{GL}")
        a(f"v_lshl_add_u32 v{RA + 2 * b}, v{T5}, 5, v{T4}")
        a(f"v_add_u32 v{RA + 2 * b + 1}, {2 * LW_WAVE}, v{RA + 2 * b}")
    a(f"""
    v_lshrrev_b32 v{T3}, 1, v{GB}
    v_lshlrev_b32 v{T3}, 3, v{T3}
    v_and_b32 v{T4}, 1, v{GB}
    v_lshl_add_u32 v{T3}, v{T4}, 1, v{T3}
    v_and_b32 v{T4}, 1, v{R_}
    v_lshl_add_u32 v{T3}, v{T4}, 4, v{T3}
    v_lshrrev_b32 v{T4}, 1, v{R_}
    v_lshl_add_u32 v{T3}, v{T4}, 2, v{T3}
    v_lshlrev_b32 v{T4}, 3, v{C4}
    v_lshl_add_u32 v{RW}, v{T3}, 6, v{T4}
    v_add_u32 v{RW}, s{sLW}, v{RW}
    v_lshl_add_u32 v{RZ}, v{T3}, 5, v{T4}
    v_add_u32 v{RZ}, s{sLW}, v{RZ}
    """)
    jobs = [("x", m, t) for t in range(9) for m in "qkv" if (m, t) not in LDS_TILES]
    pos = [i % 8 for i in range(23)]
    jobs += [("x", m, t) for m, t in LDS_TILES]
    pos += [0, 1, 2, 3]
    jobs += [("w", p, ks) for p in range(2) for ks in range(2)]
    pos += [4, 5, 6, 7]
    jobs += [("z", 0)]
    pos += [8]
    jobs += [("w", p, ks) for p in (2, 3) for ks in range(2)]
    pos += [4, 5, 6, 7]
    jobs += [("z", 1)]
    pos += [8]
    n = len(jobs)
    ndma = [2 if j[0] == "z" else 4 for j in jobs]
    issued = []

    def dma(i):
        j = jobs[i]
        a(f"s_add_u32 m0, s{sLW}, {pos[i] * 4096}")
        if j[0] == "x":
            sb = (SRD_A, SRD_B, SRD_C)[MATS.index(j[1])]
            for q in range(4):
                a(f"s_add_u32 s{S_TMP}, s{sT}, {(16 * j[2] + 4 * q) * 8192}")
                a(f"buffer_load_dwordx4 v{g0 + q}, s[{sb}:{sb + 3}], s{S_TMP} offen lds")
                if q < 3:
                    a(f"s_add_u32 m0, m0, 1024")
        elif j[0] == "w":
            for q in range(4):
                a(f"s_add_u32 s{S_TMP}, s{sWO}, {(64 * j[2] + 16 * q) * 1152 + j[1] * 64}")
                a(f"buffer_load_dwordx4 v{GW}, s[{SRD_D}:{SRD_D + 3}], s{S_TMP} offen lds")
                if q < 3:
                    a(f"s_add_u32 m0, m0, 1024")
        else:
            for q in range(2):
                a(f"s_add_u32 s{S_TMP}, s{sWO}, {(64 * j[1] + 32 * q) * 1152 + 256}")
                a(f"buffer_load_dwordx4 v{GZ}, s[{SRD_D}:{SRD_D + 3}], s{S_TMP} offen lds")
                if q < 1:
                    a(f"s_add_u32 m0, m0, 1024")
        issued.append(i)

    def outstanding_after(i):
        k = issued.index(i)
        return sum(ndma[x] for x in issued[k + 1:])

    done = -1

    def issue_more(cur):
        for nx in range(n):
            if nx in issued:
                continue
            prev = [x for x in range(nx) if pos[x] == pos[nx]]
            inplace_prev = False
            if prev and max(prev) > done:
                if jobs[nx] == ("z", 0):
                    pass
                break
            if sum(ndma[x] for x in issued if x > done) + ndma[nx] > 56:
                break
            dma(nx)

    a.auto = False
    z0 = jobs.index(("z", 0))
    for i in range(8):
        dma(i)
    dma(z0)
    for i in range(n):
        j = jobs[i]
        shared = j[0] == "x"
        assert i in issued, (i, issued)
        a(f"s_waitcnt vmcnt({min(63, outstanding_after(i))})")
        if shared:
            a("s_barrier")
            done = i - 1
            issue_more(i)
        if j[0] == "x":
            keys = [(j[1], b, j[2]) for b in range(2)]
            adr = lambda b, X: (RA + 2 * b + (X >> 1), pos[i] * 4096 + (X & 1) * 512)
        elif j[0] == "w":
            keys = [("o", 2 * j[1] + b, j[2]) for b in range(2)]
            adr = lambda b, X: (RW, pos[i] * 4096 + (32 * (X >> 1) + (X & 1)) * 64 + b * 32)
        else:
            keys = [("o", 8, j[1])]
            adr = lambda b, X: (RZ, pos[i] * 4096 + (32 * (X >> 1) + (X & 1)) * 32)
        for b, k in enumerate(keys):
            loc = FM[k]
            for X in range(4):
                ad, off = adr(b, X)
                dst = vr(TMP + 8 * b + 2 * X, 2) if loc[0] == "l" else opnd(loc, 2, 2 * X)
                a(f"ds_read_b64_tr_b16 {dst}, v{ad} offset:{off}")
        a("s_waitcnt lgkmcnt(0)")
        if FM[keys[0]][0] == "l":
            if shared:
                a("s_barrier")
            for b, k in enumerate(keys):
                s = FM[k][1]
                a(f"ds_write_b128 v{vLW}, {vr(TMP + 8 * b, 4)} offset:{s * 2048}")
                a(f"ds_write_b128 v{vLW}, {vr(TMP + 8 * b + 4, 4)} offset:{s * 2048 + 1024}")
            a("s_waitcnt lgkmcnt(0)")
        if not shared:
            done = i
            issue_more(i)
        elif i + 1 < n and jobs[i + 1][0] != "x":
            a("s_barrier")
            done = i
            issue_more(i)
    a.auto = True
    a.vmq, a.lgq = [], []


def flag_wait_kv(a, pfx, soff_extra, abort):
    L = a.newlabel(pfx + "fw")
    a(f"s_mov_b32 s{S_SPIN}, 0")
    a(f"s_add_u32 s{S_TMP}, s{sFL}, {soff_extra + 128}")
    a(f"v_lshrrev_b32 v{vT1}, 2, v{vL16}")
    a(f"v_and_b32 v{vT0}, 16, v{vT1}")
    a(f"v_lshlrev_b32 v{vT0}, 3, v{vT0}")
    a(f"v_and_or_b32 v{vT1}, v{vT1}, 12, v{vT0}")
    a.label(L)
    a(f"buffer_load_dword v{vT0}, v{vT1}, s[{SRD_WS}:{SRD_WS + 3}], s{S_TMP} offen sc1")
    spin_check(a, abort)
    a(f"v_cmp_eq_u32 vcc, 0, v{vT0}")
    a(f"s_cbranch_vccnz {L}")


def r_loop(a, w, fast, abort, done, stamps=0):
    sc = "" if fast else " sc1"
    pfx = f"Lr{w}{'f' if fast else 's'}_"
    WS = f"s[{SRD_WS}:{SRD_WS + 3}]"
    HK = (w == 3)
    NST = 10
    tails = []

    def seq(*items):
        for it in items:
            if isinstance(it, (list, tuple)):
                seq(*it)
            elif callable(it):
                it()
            elif it:
                a(it)

    XS = {"A": 0, 7: 1, 8: 2, "bc": 3, "l1": 4, 9: 5, "red": 6, "mst": 7, "q1": 8, "q2": 9, NST: NST}

    PS = {0: 0, "ba0": 1, "ba": 2, 1: 3, "a2": 4, "pb": 5, "a3": 6, "bb": 7, 3: 8, 4: 9, NST: NST}

    def stamp(i):
        if not stamps:
            return
        if stamps == 5:
            if i in PS:
                i = PS[i]
                a(f"s_memtime s[{S_STAMP + 2 * i}:{S_STAMP + 1 + 2 * i}]" if i < NST else "s_memrealtime s[70:71]")
            return
        if stamps in (3, 4):
            if i == 0:
                i = "A"
            if i not in XS:
                return
            i = XS[i]
            ins = "s_memtime" if stamps == 3 else "s_memrealtime"
            a(f"{ins} s[{S_STAMP + 2 * i}:{S_STAMP + 1 + 2 * i}]" if i < NST else "s_memrealtime s[70:71]")
            return
        if isinstance(i, str):
            return
        if stamps == 2 or i == NST:
            a(f"s_memrealtime s[{S_STAMP + 2 * i}:{S_STAMP + 1 + 2 * i}]" if i < NST else "s_memrealtime s[70:71]")
        else:
            a(f"s_memtime s[{S_STAMP + 2 * i}:{S_STAMP + 1 + 2 * i}]")

    def dump_stamps():
        if stamps:
            a(f"s_and_b32 s{S_TMP}, s{sSTEP}, 7")
            a(f"s_cbranch_scc1 {pfx}nodump")
            a.force_wait(lg=0)
            for i in range(NST):
                a(f"v_writelane_b32 v{vT1}, s{S_STAMP + 2 * i}, {i}")
            a(f"v_writelane_b32 v{vT1}, s70, {NST}")
            a(f"v_writelane_b32 v{vT1}, s72, 11")
            a(f"v_writelane_b32 v{vT1}, s73, 12")
            a(f"s_lshl_b32 s{S_TMP}, s{sLAY}, 5")
            a(f"s_add_u32 s{S_TMP}, s{S_TMP}, s{sH}")
            a(f"s_lshl_b32 s{S_TMP}, s{S_TMP}, 6")
            a(f"s_add_u32 s{S_TMP}, s{S_TMP}, s{sSTEP}")
            a(f"s_lshl_b32 s{S_TMP}, s{S_TMP}, 8")
            a(f"s_add_u32 s{S_TMP}, s{S_TMP}, {WS_END + w * 64}")
            a(f"v_lshrrev_b32 v{vT0}, 2, v{vL16}")
            a(f"s_mov_b64 exec, 0x1fff")
            a(f"buffer_store_dword v{vT1}, v{vT0}, {WS}, s{S_TMP} offen")
            a(f"s_mov_b64 exec, -1")
            a("s_waitcnt vmcnt(0)")
            a.label(pfx + "nodump")

    def zero(base, n):
        return [f"v_mov_b64 {vr(base + 2 * i, 2)}, 0" for i in range(n // 2)]

    ACC = {"q": ACCQ, "k": ACCK, "v": ACCV}
    WR = (WR0, WR1)
    ak = [(w + i) & 3 for i in range(4)]
    bk = [4 + x for x in ak]

    def korder(t):
        if t < 4:
            return [("v", 0), ("q", 0), ("q", 1), ("v", 1), ("k", 0), ("k", 1)]
        return [("q", 0), ("k", 0), ("q", 1), ("k", 1)]
    own = [("q", 0), ("q", 1), ("k", 0), ("v", 0), ("k", 1), ("v", 1)]
    oth = bk[1:]
    lt = [t for t in oth if ("q", t) in LDS_TILES]
    rt_ = [t for t in oth if t not in lt]
    qord = lt[:1] + rt_ + [8] + lt[1:] if len(lt) == 2 else lt + rt_ + [8]
    use = [(m, b, ak[0]) for m, b in own] + [(m, b, t) for t in ak[1:] + bk[:1] for m, b in korder(t)]
    use += [("q", b, t) for t in qord for b in range(2)]
    lq = [k for k in use if FM[k][0] == "l"]
    assert len(lq) == 8 and not any(k in lq for k in use[:3])

    def LW(n):
        return lw_read(WR[n % 2], FM[lq[n]][1]) if n < len(lq) else []

    def S(m, b, t, A):
        k = (m, b, t)
        if FM[k][0] == "l":
            n = lq.index(k)
            return [SM(ACC[m] + 4 * b, A, vr(WR[n % 2], 8))] + LW(n + 2)
        return [SM(ACC[m] + 4 * b, A, opnd(FM[k]))]

    def mem_rd(dst, t):
        return f"ds_read_b128 {vr(dst, 4)}, v{vL16} offset:{L_MEMA + t * 1024}"

    def mem_wr(src, t):
        return f"ds_write_b128 v{vL16}, {vr(src, 4)} offset:{L_MEMA + t * 1024}"

    ldA = f"buffer_load_dwordx4 {vr(FA, 4)}, v{vL16}, {WS}, s{sMA} offen sc1"
    ldB = [f"s_add_u32 s{S_TMP}, s{sMA}, 4096", f"buffer_load_dwordx4 {vr(FB, 4)}, v{vL16}, {WS}, s{S_TMP} offen sc1"]
    ldC = f"buffer_load_dwordx4 {vr(FC, 4)}, v{vL16}, {WS}, s{sMC} offen sc1"

    def chk(q):
        return [f"v_max3_u32 v{vT1}, v{q}, v{q + 1}, v{q + 2}", f"v_max_u32 v{vT1}, v{vT1}, v{q + 3}",
                f"v_cmp_eq_u32 vcc, -1, v{vT1}"]

    def late_poll(name, q, ld, young):
        L = pfx + name
        a.force_wait(vm=young)
        seq(chk(q))
        a(f"s_cbranch_vccnz {L}_re")
        wn = list(a.win)
        sn = a.snap()

        def tail():
            a.label(L + "_re")
            a.win = wn
            a.restore(([], []))
            a(f"s_mov_b32 s{S_SPIN}, 0")
            a.label(L + "_lp")
            seq(ld)
            spin_check(a, abort)
            a.force_wait(vm=0)
            seq(chk(q))
            a(f"s_cbranch_vccnz {L}_lp")
            a(f"s_branch {L}_ok")
        tails.append(tail)
        a.label(L + "_ok")
        a.restore(sn)
        a.vmq = a.vmq[len(a.vmq) - young:] if young else []

    def KX(dst, j, tt):
        return f"ds_read_b128 {vr(dst, 4)}, v{vL16} offset:{L_KX + (j * 2 + tt) * 1024}"

    def FR(dst, j):
        return f"ds_read_b128 {vr(dst, 4)}, v{vQR} offset:{j * 64}"

    def MF(acc, A, B, first):
        return f"v_mfma_f32_16x16x32_bf16 {vr(acc, 4)}, {vr(A, 4)}, {vr(B, 4)}, {'0' if first else vr(acc, 4)}"

    def MF16(acc, A, B, first=False):
        return f"v_mfma_f32_16x16x16_bf16 {vr(acc, 4)}, {vr(A, 2)}, {vr(B, 2)}, {'0' if first else vr(acc, 4)}"

    def xe(acc):
        X, Y = acc, acc + 4
        return [f"v_add_f32 v{X}, v{X}, v{X + 2}", f"v_add_f32 v{Y}, v{Y}, v{Y + 2}",
                f"v_add_f32 v{X + 1}, v{X + 1}, v{X + 3}", f"v_add_f32 v{Y + 1}, v{Y + 1}, v{Y + 3}",
                f"v_cvt_pk_bf16_f32 v{X + 2}, v{X}, v{Y}",
                f"v_cvt_pk_bf16_f32 v{X + 3}, v{X + 1}, v{Y + 1}"]

    def kdma(i):
        return lambda: a(f"buffer_load_dwordx4 v{vL16}, {WS}, s{sKF} offen offset:{1024 * i} lds", tag="kdma")

    def flag_store():
        a(f"v_mov_b32 v{vT0}, 1")
        a(f"v_mov_b32 v{vT1}, 0")
        a(f"s_mov_b64 exec, 1")
        a(f"buffer_store_dword v{vT0}, v{vT1}, {WS}, s{sFLP} offen offset:384 sc1")
        a(f"s_mov_b64 exec, -1")

    flag_wait_kv(a, pfx, 0, abort)
    if w == FLW:
        a(f"s_lshl_b32 s{sFLP}, s{sLAY}, 5")
        a(f"s_add_u32 s{sFLP}, s{sFLP}, s{sH}")
        a(f"s_lshl_b32 s{sFLP}, s{sFLP}, 12")
        a(f"s_add_u32 s{sFLP}, s{sFLP}, {WS_DUMMY}")
    a(f"s_mov_b32 m0, {L_KX + w * 2048}")
    seq(kdma(0), kdma(1))
    if KD0:
        base = [0, 0, 3, 6][w]
        a(f"s_mov_b32 m0, {L_KX + base * 1024}")
        a(f"s_add_u32 s{sKF}, s{sKF}, {(base * 1024 - w * 2048) & 0xffffffff}")
    a(f"s_add_u32 s{sKF}, s{sKF}, {32 * 8192}")
    a(f"s_add_u32 s{sTCH}, s{sTCH}, {(32 * 8192 - (QKV_M if w == TKW else 0)) & 0xffffffff}")
    a.wait(vm=0)
    seq(LW(0), LW(1), zero(ACCQ, 24))
    seq(ldA)
    a.force_wait(vm=0, lg=0)
    head = pfx + "step"
    a.label(head)
    a.auto = False
    if stamps:
        a("s_mov_b32 s73, 0")
    a.force_wait(vm=3 if (w in (1, 2) and R2E) else 2)
    seq(chk(FA))
    a(f"s_cbranch_vccz {pfx}aok")
    if w in (1, 2) and R2E:
        if stamps:
            a("s_mov_b32 s73, 1")
        seq(ldA)
        a.force_wait(vm=1)
        seq(chk(FA))
        a(f"s_cbranch_vccz {pfx}aok")
    elif w in (0, 3):
        if stamps:
            a("s_mov_b32 s73, 1")
        a.force_wait(vm=1)
        seq(chk(FA))
        a(f"s_cbranch_vccz {pfx}aok")
    else:
        seq(ldA)
        nops(a, DQ2[w])
    if stamps:
        a("s_mov_b32 s73, 2")
    a(f"s_mov_b32 s{S_SPIN}, 0")
    a.label(pfx + "alp")
    seq(ldA)
    spin_check(a, abort)
    a.force_wait(vm=1)
    seq(chk(FA))
    if stamps:
        a("s_add_u32 s73, s73, 1")
    a(f"s_cbranch_vccnz {pfx}alp")
    a.label(pfx + "aok")
    a.auto = True
    a.vmq = [(frozenset(), "pa"), (frozenset(), "pa")]
    a.lgq = []
    stamp(0)
    def kstep(t, A, extra=()):
        ex = list(extra)
        for m, b in korder(t):
            seq(S(m, b, t, A))
            if ex:
                seq(ex.pop(0))
        seq(ex)
    seq(mem_wr(FA, ak[0]), [S(m, b, ak[0], FA) for m, b in own[:3]])
    stamp("ba0")
    a.barrier(lg=0)
    stamp("ba")
    seq(mem_rd(R0, ak[1]), mem_rd(R1, ak[2]))
    flg = [f"v_lshrrev_b32 v{vT1}, 2, v{vL16}", f"v_and_b32 v{vT0}, 16, v{vT1}", f"v_lshlrev_b32 v{vT0}, 3, v{vT0}",
           f"v_and_or_b32 v{vT1}, v{vT1}, 12, v{vT0}", f"s_add_u32 s{S_TMP}, s{sFL}, {FL_STRIDE + 128}",
           f"buffer_load_dword v{vT2}, v{vT1}, {WS}, s{S_TMP} offen sc1"]
    stream = [(m, b, ak[0], FA) for m, b in own[3:]] + [(m, b, ak[1], R0) for m, b in korder(ak[1])] + \
             [(m, b, ak[2], R1) for m, b in korder(ak[2])]
    at = {}
    at.setdefault(PB0 + STG * w, []).append(("pb", ldB))
    at.setdefault(PC0 + STG * w, []).append(("pc", [ldC]))
    if w == CKW:
        at.setdefault(max(PB0, PC0) + STG * w + 1, []).append(("flg", flg))
    issued = []
    for n, (m, b, t, A) in enumerate(stream):
        seq(S(m, b, t, A))
        for tg, ins in at.get(n, []):
            a.auto = False
            seq(ins)
            a.auto = True
            a.vmq[-1] = (frozenset([V0 + vT2]) if tg == "flg" else frozenset(), tg)
            issued.append(tg)
        if n == 2 + FAD:
            a.force_wait(vm=len(issued))
            a.vmq = a.vmq[len(a.vmq) - len(issued):] if issued else []
            seq(mem_rd(FA, ak[3]))
            stamp(1)
    assert "pb" in issued and "pc" in issued
    nyB = len(issued) - 1 - issued.index("pb")
    stamp("a2")
    kstep(ak[3], FA)
    stamp("a3")
    late_poll("pb", FB, ldB, nyB)
    stamp("pb")
    a(mem_wr(FB, bk[0]), tag="fbw")
    nyC = len(issued) - 1 - issued.index("pc")
    if w == FLW:
        flag_store()
        nyC += 1
    kstep(bk[0], FB)
    yl = [t for _, t in a.lgq]
    a.barrier(lg=len(yl) - 1 - yl.index("fbw") if "fbw" in yl else None)
    stamp("bb")
    o3 = [t for t in qord if t != 8]
    FR_ = {bk[0]: FB, o3[0]: R0, o3[1]: R1, o3[2]: FA, 8: FC}
    seq([mem_rd(FR_[t], t) for t in o3])
    seq(S("v", 0, bk[0], FB), S("v", 1, bk[0], FB))
    stamp(2)
    VXA, VXB = WR1, WR1 + 4
    ldV = [f"buffer_load_dwordx4 {vr(VXA, 4)}, v{vL16}, {WS}, s{sVF} offen",
           f"buffer_load_dwordx4 {vr(VXB, 4)}, v{vL16}, {WS}, s{sVF} offen offset:1024"]
    for t in qord:
        if t == 8:
            late_poll("pc", FC, ldC, nyC)
        seq(S("q", 0, t, FR_[t]), S("q", 1, t, FR_[t]))
    qe, ke = xe(ACCQ), xe(ACCK)
    kord = o3 + [8]
    fl = [None, None] + qe[:4] + [[qe[4], KX(WR0, 0, 0)], [qe[5], KX(WR0 + 4, 0, 1)]]
    nv = 0
    for i in range(VEARLY):
        fl[(w + 4 * i) % 8 if VEARLY > 1 else w] = [fl[(w + 4 * i) % 8 if VEARLY > 1 else w], ldV[i]]
        nv += 1
    for i, (t, b) in enumerate([(t, b) for t in kord for b in range(2)]):
        seq(S("k", b, t, FR_[t]), fl[i])
    stamp(3)
    dv = [t for t in o3] + [8]
    seq(f"ds_write_b32 v{vQW}, v{ACCQ + 2} offset:{2 * ROWS}", f"ds_write_b32 v{vQW}, v{ACCQ + 3} offset:{3 * ROWS}",
        S("v", 0, dv[0], FR_[dv[0]]), S("v", 1, dv[0], FR_[dv[0]]),
        ke,
        f"ds_write_b32 v{vQW}, v{ACCK + 2} offset:0", f"ds_write_b32 v{vQW}, v{ACCK + 3} offset:{ROWS}",
        S("v", 0, dv[1], FR_[dv[1]]), S("v", 1, dv[1], FR_[dv[1]]))
    seq(ldV[nv:])
    if w == CKW:
        a(f"v_cmp_eq_u32 vcc, 0, v{vT2}")
        a(f"s_cbranch_vccnz {pfx}flbad")
        wn2 = list(a.win)
        sn2 = a.snap()

        def flbad():
            a.label(pfx + "flbad")
            a.win = wn2
            a.restore(([], []))
            a(f"s_cmp_eq_u32 s{sSTEP}, {NSEG - 1}")
            a(f"s_cbranch_scc1 {pfx}flok")
            flag_wait_kv(a, pfx, FL_STRIDE, abort)
            a(f"s_branch {pfx}flok")
        tails.append(flbad)
        a.label(pfx + "flok")
        a.restore(sn2)
    a.barrier(lg=0)
    stamp(4)
    SX0, SX1, SMm = ACCQ, ACCQ + 4, ACCK + 4
    F0, F1, F2, F3 = FB, R0, ACCK, R1
    KA, KB = FA, FC
    ve = [f"v_add_f32 v{ACCV}, v{ACCV}, v{ACCV + 2}", f"v_add_f32 v{ACCV + 4}, v{ACCV + 4}, v{ACCV + 6}",
          f"v_add_f32 v{ACCV + 1}, v{ACCV + 1}, v{ACCV + 3}", f"v_add_f32 v{ACCV + 5}, v{ACCV + 5}, v{ACCV + 7}",
          f"v_cvt_pk_bf16_f32 v{ACCV + 2}, v{ACCV}, v{ACCV + 1}",
          f"v_cvt_pk_bf16_f32 v{ACCV + 3}, v{ACCV + 4}, v{ACCV + 5}"]
    def touch():
        if TOUCH and w in (TKW, TCW):
            a.auto = False
            a(f"v_lshlrev_b32 v{vT0}, 3, v{vL16}")
            a(f"buffer_load_dword v{vT2}, v{vT0}, {WS}, s{sTCH} offen")
            a.auto = True
    post = [[S("v", 0, dv[2], FA)], [S("v", 1, dv[2], FA), KX(KA, 1, 0)], [S("v", 0, 8, FC)], [S("v", 1, 8, FC), KX(KB, 1, 1)]]
    post[TPOS].append(touch)
    seq(FR(F0, 0), FR(F1, 1), FR(F2, 2), FR(F3, 3), post)
    PK = ACCV + 6
    seq(MF(SX0, WR0, F0, True), MF(SX1, WR0 + 4, F0, True), MF(SMm, F0, F0, True),
        KX(WR0, 2, 0), KX(WR0 + 4, 2, 1),
        MF(SX0, KA, F1, False), f"v_lshrrev_b32 v{vT1}, 1, v{vL16}", f"v_lshrrev_b32 v{vT0}, 9, v{vL16}",
        MF(SX1, KB, F1, False), f"v_lshl_add_u32 v{vT0}, v{vT0}, 5, v{vT1}", ve[0],
        MF(SMm, F1, F1, False), ve[1], ve[2],
        KX(KA, 3, 0), KX(KB, 3, 1),
        MF(SX0, WR0, F2, False), ve[3], ve[4],
        MF(SX1, WR0 + 4, F2, False), ve[5],
        f"ds_read_b64 {vr(PK, 2)}, v{vT0} offset:{L_F + 4 * w * ROWS}",
        MF(SMm, F2, F2, False),
        f"s_add_u32 s{S_TMP}, s{sKM}, {2048 + w * 512}",
        f"buffer_store_dwordx2 {vr(ACCV + 2, 2)}, v{vT1}, {WS}, s{S_TMP} offen sc1",
        MF(SX0, KA, F3, False), MF(SX1, KB, F3, False), MF(SMm, F3, F3, False),
        f"s_add_u32 s{S_TMP}, s{sKM}, {w * 512}",
        f"buffer_store_dwordx2 {vr(PK, 2)}, v{vT1}, {WS}, s{S_TMP} offen sc1")
    stamp(5)
    MX, T1 = vT0, vT1
    MP = ACCV
    P4, PB, OX, OY, LQ, ONES = Q[0], Q[1], Q[2], Q[3], Q[4], ACCK
    lds_seq = [("o", 4, 0), ("o", 4, 1), ("o", 5, 0), ("o", 5, 1), ("o", 6, 0), ("o", 6, 1), ("o", 7, 0), ("o", 7, 1), ("o", 8, 1)]
    early = (w == 0 and PAPOS >= 0)
    ring = [WR0, WR1] if early else [WR0, WR1, ACCQ, ACCK]
    bufof = {k: ring[i % len(ring)] for i, k in enumerate(lds_seq)}

    def wo_rd(i):
        return lw_read(bufof[lds_seq[i]], FM[lds_seq[i]][1])

    vals = list(range(SX0, SX0 + 8)) + [SMm, SMm + 1]
    fm = [f"v_fma_f32 v{r}, v{r}, s{sCEXP}, -v{MP}" for r in vals]
    ex = [f"v_exp_f32 v{r}, v{r}" for r in vals]
    X5 = ACCV + 4
    seq(wo_rd(0),
        f"v_mov_b64 {vr(ONES, 2)}, s[{sONES}:{sONES + 1}]", f"v_mov_b64 {vr(ONES + 2, 2)}, s[{sONES}:{sONES + 1}]",
        f"v_mov_b32 v{PB + 1}, 0", f"v_mov_b32 v{PB + 2}, 0",
        f"v_max3_f32 v{MX}, v{SX0}, v{SX0 + 1}, v{SX0 + 2}",
        f"v_max3_f32 v{MX}, v{MX}, v{SX0 + 3}, v{SX0 + 4}",
        f"v_max3_f32 v{MX}, v{MX}, v{SX0 + 5}, v{SX0 + 6}",
        f"v_max3_f32 v{MX}, v{MX}, v{SX0 + 7}, v{SMm}",
        f"v_max_f32 v{MX}, v{MX}, v{SMm + 1}",
        f"v_mov_b32 v{T1}, v{MX}",
        zero(X5, 4),
        f"v_permlane32_swap_b32 v{MX}, v{T1}",
        f"v_max_f32 v{MX}, v{MX}, v{T1}",
        f"v_mov_b32 v{T1}, v{MX}",
        "s_nop 1",
        f"v_permlane16_swap_b32 v{MX}, v{T1}",
        f"v_max_f32 v{MX}, v{MX}, v{T1}",
        f"v_mul_f32 v{MP}, s{sCEXP}, v{MX}",
        fm[0], fm[1], fm[2], fm[3], ex[0], ex[1], fm[4], fm[5], ex[2], ex[3],
        f"v_cvt_pk_bf16_f32 v{P4}, v{SX0}, v{SX0 + 1}", fm[6], fm[7], ex[4], ex[5],
        f"v_cvt_pk_bf16_f32 v{P4 + 1}, v{SX0 + 2}, v{SX0 + 3}", fm[8], fm[9], ex[6], ex[7],
        f"v_cvt_pk_bf16_f32 v{P4 + 2}, v{SX0 + 4}, v{SX0 + 5}", ex[8], ex[9],
        f"v_cvt_pk_bf16_f32 v{P4 + 3}, v{SX0 + 6}, v{SX0 + 7}",
        f"v_cvt_pk_bf16_f32 v{PB}, v{SMm}, v{SMm + 1}",
        f"v_cvt_pk_bf16_f32 v{PB + 3}, v{SMm}, v{SMm + 1}",
        MF(LQ, ONES, P4, True), zero(SX0, 2), zero(SX0 + 2, 2),
        MF(OX, VXA, P4, True), zero(SMm, 2), zero(SMm + 2, 2),
        MF(OY, VXB, P4, True), wo_rd(1),
        MF16(LQ, ONES, PB),
        MF16(OX, ACCV + 2, PB), zero(ONES, 4),
        MF16(OY, ACCV + 2, PB + 2), zero(P4, 4), zero(Q[1], 4),
        f"v_rcp_f32 v{MX}, v{LQ}", zero(Q[4], 4))
    stamp(6)
    OP = ACCQ + 4
    for i in range(4):
        a(f"v_mul_f32 v{OX + i}, v{MX}, v{OX + i}")
        a(f"v_mul_f32 v{OY + i}, v{MX}, v{OY + i}")
        a(f"v_cvt_pk_bf16_f32 v{OP + i}, v{OX + i}, v{OY + i}")
    a(f"ds_write_b128 v{vOW}, {vr(OP, 4)}")
    seq(zero(ACCV, 4))
    TA = [ACCQ, ACCK + 4, ACCK, ACCQ + 4, Q[0], Q[1], Q[4], ACCV + 4, ACCV]
    a.barrier(lg=0)
    OA0, OA1 = Q[2], Q[3]
    a(f"ds_read_b128 {vr(OA0, 4)}, v{vOR} offset:0")
    a(f"ds_read_b128 {vr(OA1, 4)}, v{vOR} offset:128")
    last = pfx + "last"
    seq(f"s_cmp_eq_u32 s{sSTEP}, {NSEG - 1}", f"s_cbranch_scc1 {last}",
        zero(ACCQ + 4, 4))
    nkd = ([0, 3, 3, 2] if KD0 else [2, 2, 2, 2])[w]
    seq([kdma(i) for i in range(nkd)])

    stamp(7)
    ST = {0: TA[0], 1: TA[4], 2: TA[8]}

    def epi(tau):
        acc = TA[tau]
        dst = ST[tau // 4] + tau % 4
        return [f"v_add_f32 v{acc}, v{acc}, v{acc + 2}", f"v_add_f32 v{acc + 1}, v{acc + 1}, v{acc + 3}",
                f"v_cvt_pk_bf16_f32 v{dst}, v{acc}, v{acc + 1}"]

    def wS(tau, ks):
        k = ("o", tau, ks)
        B = vr(bufof[k], 8) if FM[k][0] == "l" else opnd(FM[k])
        return SM(TA[tau], (OA0, OA1)[ks], B)

    def tag(r):
        return f"v_and_or_b32 v{r}, v{r}, -2, s{sPH}"
    e = [epi(t) for t in range(4)]
    seq(wS(0, 0), wS(0, 1), wS(1, 0), wS(1, 1), e[0][0], wS(2, 0), e[0][1], wS(2, 1), e[0][2], wS(3, 0), e[1][0], wS(3, 1), e[1][1],
        wS(4, 0), e[1][2], wS(4, 1), e[2], e[3], tag(ST[0] + 3),
        f"buffer_store_dwordx4 {vr(ST[0], 4)}, v{vL16}, {WS}, s{sPW} offen{sc}")
    stamp(8)
    nxt = 2 + len(ring)
    seq([wo_rd(i) for i in range(2, nxt)])
    order = [(tau, ks) for tau in range(5, 9) for ks in range(2)]
    LA = [ACCQ, ACCQ + 4, ACCK, ACCK + 4]
    ldLA = [f"buffer_load_dwordx4 {vr(LA[i], 4)}, v{vRLD}, {WS}, s{sPR + i} offen sc1" for i in range(4)]
    for idx, (tau, ks) in enumerate(order):
        if early and idx == PAPOS:
            a.auto = False
            nops(a, DP1[0])
            seq(ldLA)
            stamp("l1")
            a.auto = True
        a(wS(tau, ks))
        k = ("o", tau, ks)
        if FM[k][0] == "l" and nxt < len(lds_seq):
            seq(wo_rd(nxt))
            nxt += 1
    stamp("bc")
    epiB = [epi(tau) for tau in range(4, 8)] + [tag(ST[1] + 3), f"s_add_u32 s{S_TMP}, s{sPW}, 4096",
                                                f"buffer_store_dwordx4 {vr(ST[1], 4)}, v{vL16}, {WS}, s{S_TMP} offen{sc}"]
    epiC = [epi(8), tag(ST[2]), f"v_lshrrev_b32 v{vT0}, 2, v{vL16}",
            f"buffer_store_dword v{ST[2]}, v{vT0}, {WS}, s{sPWC} offen{sc}"]
    adv = [f"s_xor_b32 s{r}, s{r}, {MEMB_SLOT}" for r in (sMA, sMC)]
    advE = [f"s_add_u32 s{sSTEP}, s{sSTEP}, 1", f"s_add_u32 s{sVF}, s{sVF}, {32 * 8192}",
            f"s_add_u32 s{sKF}, s{sKF}, {32 * 8192}", f"s_add_u32 s{sKM}, s{sKM}, {32 * KM_UNIT}"]
    if w == FLW:
        advE += [f"s_mov_b32 s{sFLP}, s{sFL}"]
    advE += [f"s_add_u32 s{sTCH}, s{sTCH}, {32 * 8192}"]
    advE += [f"s_add_u32 s{sFL}, s{sFL}, {FL_STRIDE}"]
    advL = [f"s_xor_b32 s{sPH}, s{sPH}, 1"] + [f"s_xor_b32 s{r}, s{r}, {MEMB_SLOT}" for r in ([] if HK else [sMEMW, sMEMZ])]
    if not HK:
        u = w
        LB = [Q[1], Q[2], Q[3], Q[4]]
        SEL, D = Q[7], Q[8]
        wide = u < 2

        def loads(L):
            if wide:
                return [f"buffer_load_dwordx4 {vr(L[i], 4)}, v{vRLD}, {WS}, s{sPR + i} offen sc1" for i in range(4)]
            return [f"buffer_load_dword v{L[i]}, v{vRLD}, {WS}, s{sPR + i} offen sc1" for i in range(4)]

        def M(i):
            return f"s[{sM + 2 * i}:{sM + 2 * i + 1}]"

        def check(L, extra):
            for i in range(4):
                a.force_wait(vm=3 - i + extra)
                a(MF(D, L[i], SEL, i == 0) if wide else MF16(D, L[i], SEL, i == 0))
                a(f"v_and_b32 v{vT1}, 1, v{L[i] + (3 if wide else 0)}")
                a(f"v_cmp_ne_u32 {M(i)}, s{sPH}, v{vT1}")
                if i == 2:
                    a(f"s_or_b64 {M(0)}, {M(0)}, {M(1)}") if False else None
            a(f"s_or_b64 vcc, {M(0)}, {M(1)}")
            a(f"s_or_b64 vcc, vcc, {M(2)}")
            a(f"s_or_b64 vcc, vcc, {M(3)}")

        def sel_build(L):
            a(f"v_add_u32 v{vT1}, {L_SEL}, v{vL16}")
            if wide:
                a(f"ds_read_b128 {vr(SEL, 4)}, v{vT1}")
            else:
                a(f"ds_read_b32 v{SEL}, v{vT1}")
                a(f"v_mov_b32 v{SEL + 1}, 0")
                for i in range(4):
                    a(f"v_mov_b32 v{L[i] + 1}, 0")
        if u == 0 and early:
            seq(epiB, epiC)
            a.auto = False
            y = 2
        if u == 0:
            if not early:
                seq(epiB, epiC) if DP1[0] else None
                a.auto = False
                nops(a, DP1[0])
                seq(loads(LA))
                stamp("l1")
                y = 0
                if not DP1[0]:
                    a.auto = True
                    seq(epiB, epiC)
                    a.auto = False
                    y = 2
            sel_build(None)
            nops(a, DP2)
            seq(loads(LB))
            seq(advE, LW(0))
            a("s_waitcnt lgkmcnt(2)")
            stamp(9)
            if stamps:
                a("s_mov_b32 s72, 0")
            check(LA, 4 + y)
            a(f"s_cbranch_scc0 {pfx}red")
            a(f"s_mov_b32 s{S_SPIN}, 0")
            a.label(pfx + "p1")
            if stamps:
                a("s_add_u32 s72, s72, 1")
            seq(loads(LA))
            check(LB, 4)
            a(f"s_cbranch_scc0 {pfx}red")
            if stamps:
                a("s_add_u32 s72, s72, 1")
            seq(loads(LB))
            spin_check(a, abort)
            check(LA, 4)
            a(f"s_cbranch_scc1 {pfx}p1")
        else:
            seq(epiB, epiC)
            a.auto = False
            sel_build(LB)
            seq(advE, LW(0), zero(ACCQ, 24))
            nops(a, DP1[u])
            seq(loads(LB))
            stamp("l1")
            a("s_waitcnt lgkmcnt(0)")
            stamp(9)
            if stamps:
                a("s_mov_b32 s72, 0")
            check(LB, 0)
            a(f"s_cbranch_scc0 {pfx}red")
            a(f"s_mov_b32 s{S_SPIN}, 0")
            a.label(pfx + "p1")
            if stamps:
                a("s_add_u32 s72, s72, 1")
            for i in range(4):
                a(f"s_mov_b64 exec, {M(i)}")
                a(loads(LB)[i])
            a("s_mov_b64 exec, -1")
            spin_check(a, abort)
            check(LB, 0)
            a(f"s_cbranch_scc1 {pfx}p1")
        a.label(pfx + "red")
        stamp("red")
        if u > 0:
            seq(adv, ldA)
        a.auto = True
        a.vmq, a.lgq = [], []
        seq(f"v_permlane16_swap_b32 v{D}, v{D + 2}", f"v_permlane16_swap_b32 v{D + 1}, v{D + 3}",
            f"s_mov_b64 exec, s[{sMASK}:{sMASK + 1}]",
            f"v_add_f32 v{D}, v{D}, v{D + 2}", f"v_add_f32 v{D + 1}, v{D + 1}, v{D + 3}",
            f"v_cvt_pk_bf16_f32 v{D}, v{D}, v{D + 1}", f"v_min_u32 v{D}, s{sMAXD}, v{D}",
            f"buffer_store_dword v{D}, v{vRST}, {WS}, s{sMEMW} offen{sc}",
            f"v_mov_b32 v{D + 1}, -1",
            f"buffer_store_dword v{D + 1}, v{vRST}, {WS}, s{sMEMZ} offen{sc}",
            f"s_mov_b64 exec, -1")
        stamp("mst")
        a.auto = False
        if u == 0:
            seq(adv, advL)
            nops(a, DQ1[0])
            seq(ldA)
            stamp("q1")
            a("s_waitcnt vmcnt(3)")
            seq(LW(1), zero(ACCQ, 24))
            nops(a, DQ2[w])
            seq(ldA)
            stamp("q2")
            nops(a, DQ3[w])
            seq(ldA)
        else:
            if R2E:
                seq(ldA)
            seq(advL, LW(1))
    else:
        seq(epiB, epiC)
        a.auto = False
        seq(adv, advE, advL)
        trace(a, vT0, vT1, True)
        seq(LW(0), LW(1), zero(ACCQ, 24))
        if HKSL:
            a(f"s_sleep {HKSL}")
        nops(a, DQ1[w])
        seq(ldA)
        stamp("q1")
        nops(a, DQ2[w])
        seq(ldA)
        stamp("q2")
        nops(a, DQ3[w])
        seq(ldA)
    a("s_waitcnt lgkmcnt(0)")
    stamp(NST)
    dump_stamps()
    a.auto = True
    a.restore(([], []))
    a(f"s_branch {head}")
    for t in tails:
        t()
    a.restore(([], []))
    a.label(last)
    a.force_wait(vm=0, lg=0)
    a.I("s_barrier")
    if w != FLW:
        a(f"s_branch {done}")
    else:
        a(f"s_mov_b32 s{sFLP}, s{sFL}")
        flag_store()
        a(f"s_branch {done}")
```

```python
from pool import *


def MF16(acc, A, B):
    return f"v_mfma_f32_16x16x16_bf16 {vr(acc, 4)}, {vr(A, 2)}, {vr(B, 2)}, {vr(acc, 4)}"


def role_ta(a, abort, done):
    lane_setup(a, 12)
    vKM, vL8, vFR = 9, 10, 11
    BI, ON, PB, PX, LQ = 236, 16, 20, 24, 28
    SX, SMm = 32, 44
    KMf, VMf, O, OUT = 52, 68, 76, 108
    SET = [("v", 140), ("a", 0)]
    NEG = hex(f32bits(-1e30))
    sQO, sNQ, sRDY, sPN = sO1, sK3, sPF, sK1

    def publish():
        a(f"s_cmp_lg_u32 s{sPN}, 0")
        a("s_cselect_b64 exec, 1, 0")
        a(f"buffer_store_dword v{vONE}, v{vZERO}, {WS}, s{sPEND} offen sc1")
        a("s_mov_b64 exec, -1")
        a(f"s_add_u32 s{sPEND}, s{sPEND}, s{sPN}")
        a(f"s_mov_b32 s{sPN}, 0")

    def fr(st, m, i):
        k, b = SET[st]
        return f"{k}[{b + 32 * m + 4 * i}:{b + 32 * m + 4 * i + 3}]"

    a(f"""
    s_lshl_b32 s{S_TMP}, s{S_ROLE}, 2
    s_add_u32 s{S_TMP}, s{S_TMP}, s{S_WAVE}
    s_lshr_b32 s{sNL}, s{S_TMP}, 5
    s_and_b32 s{sK2}, s{S_TMP}, 31
    s_mov_b32 s{sNS}, 0
    s_mov_b32 s{sK4}, {hex(f32bits(128 ** -0.5 * 1.4426950408889634))}
    v_lshrrev_b32 v{vT0}, 2, v{vC}
    v_and_b32 v{vT1}, 1, v{vC}
    v_lshl_add_u32 v{vT0}, v{vT0}, 1, v{vT1}
    v_lshlrev_b32 v{vKM}, 8, v{vT0}
    v_lshl_add_u32 v{vKM}, v{vG}, 4, v{vKM}
    v_lshrrev_b32 v{vL8}, 1, v{vL16}
    v_mov_b32 v{vFR}, 384
    v_mov_b32 v{vT1}, {NEG}
    v_mov_b32 v{PB + 1}, 0
    v_mov_b32 v{PB + 2}, 0
    s_mul_i32 s{sNFL}, s{sNL}, {NSEG * FL_STRIDE}
    s_lshl_b32 s{S_TMP}, s{sK2}, 9
    s_add_u32 s{sNFL}, s{sNFL}, s{S_TMP}
    s_add_u32 s{sNFL}, s{sNFL}, {WS_FLAGS + FL_QKV}
    s_mul_i32 s{sNQ}, s{sNL}, {3 * QKV_M}
    s_lshl_b32 s{S_TMP}, s{sK2}, 13
    s_add_u32 s{sNQ}, s{sNQ}, s{S_TMP}
    s_add_u32 s{sNQ}, s{sNQ}, {WS_QKV}
    s_lshl_b32 s{sO2}, s{sNL}, 11
    s_add_u32 s{sO2}, s{sO2}, s{sK2}
    s_lshl_b32 s{sO3}, s{sO2}, 13
    s_add_u32 s{sO3}, s{sO3}, {WS_OF}
    s_lshl_b32 s{sO2}, s{sO2}, 12
    s_add_u32 s{sO2}, s{sO2}, {WS_KM}
    s_mul_i32 s{sPEND}, s{sNL}, {NSEG * FL_STRIDE}
    s_lshr_b32 s{S_TMP}, s{sK2}, 2
    s_lshl_b32 s{S_TMP}, s{S_TMP}, 7
    s_add_u32 s{sPEND}, s{sPEND}, s{S_TMP}
    s_lshl_b32 s{S_TMP}, s{S_WAVE}, 2
    s_add_u32 s{sPEND}, s{sPEND}, s{S_TMP}
    s_add_u32 s{sPEND}, s{sPEND}, {WS_FLAGS + FL_OF}
    s_mov_b32 s{SRD_C}, s{SRD_WS}
    s_mov_b32 s{SRD_C + 1}, s{SRD_WS + 1}
    s_mov_b32 s{SRD_C + 2}, 0
    s_mov_b32 s{SRD_C + 3}, 0x00020000
    s_mov_b32 s{sRDY}, 0
    s_mov_b32 s{sPN}, 0
    """)
    for i in range(4):
        a(f"v_mov_b32 v{ON + i}, 0x3f803f80")
        a(f"v_lshl_add_u32 v{vT0}, v{vG}, 2, {i}")
        a(f"v_cmp_le_u32 vcc, v{vT0}, v{vC}")
        a(f"v_cndmask_b32 v{BI + i}, v{vT1}, v{vZERO}, vcc")

    def qkv_ops(st, srd_):
        ops = []
        for m in range(3):
            for i in range(8):
                pre = [f"s_add_u32 s{sQO}, s{sNQ}, {m * QKV_M + i * 1024}"] if i % 4 == 0 else []
                ops.append(pre + [f"buffer_load_dwordx4 {fr(st, m, i)}, v{vL16}, {srd_}, s{sQO} offen offset:{(i % 4) * 1024}"])
        return ops

    MX, T1 = vT0, vT1
    dbg_wait(a, DB_POOL, N_POOL, vT0, vT1, abort, "Lta_ini", 64)
    trace(a, vT0, vT1)
    prof_init(a)
    if PROF == 3:
        a("s_memtime s[84:85]")
        a.force_wait(lg=0)
    for st in range(2):
        nm = f"Lta{st}"
        a.label(nm)
        a.restore(([], []))
        a(f"s_cmp_eq_u32 s{sRDY}, 1")
        a(f"s_cbranch_scc1 {nm}_have")
        a.force_wait(vm=0)
        publish()
        p3_begin(a)
        flag_block(a, nm + "_f", abort)
        p3_end(a, 3)
        seq(a, qkv_ops(st, WS))
        a.label(nm + "_have")
        a.restore(([], []))
        a(f"s_add_u32 s{S_TMP}, s{sNFL}, {FL_STRIDE}")
        a(f"buffer_load_dword v{vFL1}, v{vFLA}, {WS}, s{S_TMP} offen sc1")
        a(f"buffer_load_dword v{vFLV}, v{vFR}, {WS}, s{sNFL} offen sc1")
        a.force_wait(vm=2)
        publish()
        for j in range(4):
            for (tt, kt, d) in ((0, 0, 0), (1, 0, 4), (1, 1, 8)):
                a(MF(SX + d, fr(st, 1, 2 * j + kt), fr(st, 0, 2 * j + tt), "0" if j == 0 else None))
        a(f"v_cmp_eq_u32 vcc, 0, v{vFLV}")
        a(f"s_cbranch_vccz {nm}_r")
        a(f"s_mov_b32 s{S_SPIN}, 0")
        p3_begin(a)
        sn = a.snap()
        a.label(nm + "_rp")
        a(f"buffer_load_dword v{vFLV}, v{vFR}, {WS}, s{sNFL} offen sc1")
        spin_check(a, abort)
        a(f"v_cmp_eq_u32 vcc, 0, v{vFLV}")
        a("s_sleep 1") if os.environ.get("TASLP", "0") == "1" else None
        a(f"s_cbranch_vccnz {nm}_rp")
        p3_end(a, 4)
        a.restore(sn)
        a.label(nm + "_r")
        for j in range(4):
            a(f"buffer_load_dwordx4 {vr(KMf + 4 * j, 4)}, v{vKM}, {WS}, s{sO2} offen offset:{j * 64}")
        for j in range(4):
            a(f"buffer_load_dwordx2 {vr(VMf + 2 * j, 2)}, v{vL8}, {WS}, s{sO2} offen offset:{2048 + j * 512}")
        a(f"""
        v_cmp_eq_u32 vcc, 0, v{vFL1}
        s_add_u32 s{sNQ}, s{sNQ}, {32 * 8192}
        s_add_u32 s{sNFL}, s{sNFL}, {FL_STRIDE}
        s_add_u32 s{sO2}, s{sO2}, {32 * KM_UNIT}
        s_add_u32 s{sNS}, s{sNS}, 1
        s_cmp_eq_u64 vcc, 0
        s_cselect_b32 s{sRDY}, 1, 0
        s_cmp_lt_u32 s{sNS}, {NSEG}
        s_cselect_b32 s{sRDY}, s{sRDY}, 0
        s_cmp_eq_u32 s{sRDY}, 1
        s_cselect_b32 s{SRD_C + 2}, {WS_BYTES}, 0
        """)
        nxt = qkv_ops(1 - st, PFS)
        for d, diag in ((0, 1), (4, 0), (8, 1)):
            for i in range(4):
                r = SX + d + i
                a(f"v_fma_f32 v{r}, v{r}, s{sK4}, v{BI + i}" if diag else f"v_mul_f32 v{r}, s{sK4}, v{r}")
            seq(a, nxt.pop(0))
        for j in range(4):
            for tt in range(2):
                a(MF(SMm + 4 * tt, vr(KMf + 4 * j, 4), fr(st, 0, 2 * j + tt), "0" if j == 0 else None))
        for tt in range(2):
            xs = list(range(SX, SX + 4)) if tt == 0 else list(range(SX + 4, SX + 12))
            ms = [SMm + 4 * tt, SMm + 4 * tt + 1]
            vals = xs + ms
            a(f"v_max3_f32 v{MX}, v{xs[0]}, v{xs[1]}, v{xs[2]}")
            a(f"v_max_f32 v{MX}, v{MX}, v{xs[3]}")
            for i in range(4, len(xs), 2):
                a(f"v_max3_f32 v{MX}, v{MX}, v{xs[i]}, v{xs[i + 1]}")
            for r in ms:
                a(f"v_mul_f32 v{r}, s{sK4}, v{r}")
            a(f"v_max3_f32 v{MX}, v{MX}, v{ms[0]}, v{ms[1]}")
            seq(a, f"v_mov_b32 v{T1}, v{MX}", nxt.pop(0), f"v_permlane32_swap_b32 v{MX}, v{T1}", f"v_max_f32 v{MX}, v{MX}, v{T1}",
                f"v_mov_b32 v{T1}, v{MX}", nxt.pop(0), f"v_permlane16_swap_b32 v{MX}, v{T1}", f"v_max_f32 v{MX}, v{MX}, v{T1}",
                [f"v_sub_f32 v{r}, v{r}, v{MX}" for r in vals], [f"v_exp_f32 v{r}, v{r}" for r in vals])
            for i in range(4):
                if 2 * i < len(xs):
                    a(f"v_cvt_pk_bf16_f32 v{PX + i}, v{xs[2 * i]}, v{xs[2 * i + 1]}")
                else:
                    a(f"v_mov_b32 v{PX + i}, 0")
            a(f"v_cvt_pk_bf16_f32 v{PB}, v{ms[0]}, v{ms[1]}")
            a(f"v_cvt_pk_bf16_f32 v{PB + 3}, v{ms[0]}, v{ms[1]}")
            a(MF(LQ, vr(ON, 4), vr(PX, 4), "0"))
            for t in range(8):
                a(MF(O + 4 * t, fr(st, 2, t), vr(PX, 4), "0"))
                if t & 1 and nxt:
                    seq(a, nxt.pop(0))
                if t == 5:
                    a(MF16(LQ, ON, PB))
            for t in range(8):
                a(MF16(O + 4 * t, VMf + 2 * (t >> 1), PB + 2 * (t & 1)))
                if t == 1:
                    a(f"v_rcp_f32 v{T1}, v{LQ}")
                if t >= 3 and t & 1:
                    norm(a, O, OUT, T1, (t - 3) >> 1, tt, sO3, nxt)
            norm(a, O, OUT, T1, 3, tt, sO3, nxt)
        seq(a, nxt)
        a(f"s_add_u32 s{sO3}, s{sO3}, {32 * 8192}")
        a(f"s_mov_b32 s{sPN}, {FL_STRIDE}")
        trace_at(a, sNS, vT0, vZERO)
        trace(a, vT0, vT1)
        a(f"s_cmp_ge_u32 s{sNS}, {NSEG}")
        a(f"s_cbranch_scc1 Lta_end")
        if st == 1:
            a("s_branch Lta0")
    a.label("Lta_end")
    if PROF == 3:
        a("s_memtime s[86:87]")
        a.force_wait(lg=0)
        a("s_sub_u32 s97, s86, s84")
    prof_dump(a, vT0, vT1)
    a.force_wait(vm=0)
    flag_out(a, sPEND)
    a(f"s_branch {done}")


def norm(a, O, OUT, T1, j, tt, sO3, nxt):
    for i in range(4):
        x, y = O + 8 * j + i, O + 8 * j + 4 + i
        a(f"v_mul_f32 v{x}, v{T1}, v{x}")
        a(f"v_mul_f32 v{y}, v{T1}, v{y}")
        a(f"v_cvt_pk_bf16_f32 v{OUT + 16 * tt + 4 * j + i}, v{x}, v{y}")
    if j % 2 == 0:
        a(f"s_add_u32 s{S_TMP}, s{sO3}, {j * 2048}")
    a(f"buffer_store_dwordx4 {vr(OUT + 16 * tt + 4 * j, 4)}, v{vL16}, {WS}, s{S_TMP} offen offset:{(j % 2) * 2048 + tt * 1024} sc1")
    if nxt:
        seq(a, nxt.pop(0))


TW_S0 = int(os.environ.get("TW_S0", "30"))


def role_tw(a, abort, done, nt=os.environ.get("NT_W", "")):
    lane_setup(a, 32)
    vA0, vSEL, vRES, vROW, vSTO, vRED, vMBT, vRD2, OUTP = 9, 11, 12, 13, 14, 48, 49, 50, 52
    nst_ = 0
    ACC, RES, SS, RING, ZB = 16, 40, 44, 64, 128
    sSL = sK2
    if ORDER & 2:
        dbg_wait(a, DB_LOADED, 1, vT0, vT1, abort, "Ltw_ord", 64)
    srd(a, SRD_A, KA_BWO, 4096 * 1152)
    srd(a, SRD_B, KA_OUT, 2048 * 1152)
    A_ = f"s[{SRD_A}:{SRD_A + 3}]"
    OUTS = f"s[{SRD_B}:{SRD_B + 3}]"
    a(f"""
    s_mul_i32 s{S_TMP}, s{S_ROLE}, 43
    s_lshr_b32 s{sN0}, s{S_TMP}, 9
    s_mul_i32 s{S_TMP}, s{sN0}, 12
    s_sub_u32 s{sSL}, s{S_ROLE}, s{S_TMP}
    s_add_u32 s{sN1}, s{sN0}, {TW_S0}
    s_cmp_eq_u32 s{sN0}, 2
    s_cselect_b32 s{sN1}, 0, s{sN1}
    s_cselect_b32 s{sN0}, {NSEG}, s{sN0}
    s_mul_i32 s{sK1}, s{sSL}, 96
    s_mul_i32 s{S_TMP}, s{S_WAVE}, {1024 * 1152}
    s_add_u32 s{sK1}, s{sK1}, s{S_TMP}
    v_mul_u32_u24 v{vT0}, {(4 if RV2 else 8) * 1152}, v{vG}
    v_lshl_add_u32 v{vA0}, v{vC}, 2, v{vT0}
    v_add_u32 v{vA0 + 1}, {(16 if RV2 else 1) * 1152}, v{vA0}
    v_and_b32 v{vT1}, 14, v{vC}
    v_lshl_add_u32 v{vRES}, v{vT1}, 1, v{vT0}
    v_add_u32 v{vRES}, 64, v{vRES}
    v_add_u32 v{vROW}, {(16 if RV2 else 1) * 1152}, v{vRES}
    v_and_b32 v{vT0}, 1, v{vC}
    v_mov_b32 v{vSEL}, s{sSELX}
    v_mov_b32 v{vT1}, s{sSELY}
    v_cmp_eq_u32 vcc, 1, v{vT0}
    v_cndmask_b32 v{vSEL}, v{vSEL}, v{vT1}, vcc
    """)
    STG = 16
    n = 128
    D = 14
    for i in range(n + D):
        if i < n:
            kk, d = i >> 2, i & 3
            r = STG + 4 * (i % 28)
            a(f"s_add_u32 s{S_TMP}, s{sK1}, {(32 * kk + (d if RV2 else 2 * d)) * 1152}")
            for q, ad in enumerate((vA0, vA0 + 1, vRES, vROW)):
                a(f"buffer_load_dword v{r + q}, v{ad}, {A_}, s{S_TMP} offen {nt}")
        j = i - D
        if j >= 0:
            kk, d = j >> 2, j & 3
            r = STG + 4 * (j % 28)
            a(f"v_perm_b32 v{vT0}, v{r + 1}, v{r}, s{sSELX}")
            a(f"v_perm_b32 v{vT1}, v{r + 1}, v{r}, s{sSELY}")
            a(f"v_perm_b32 v{ZB + 4 * kk + d}, v{r + 3}, v{r + 2}, v{vSEL}")
            a(f"v_accvgpr_write_b32 a{8 * kk + d}, v{vT0}")
            a(f"v_accvgpr_write_b32 a{8 * kk + 4 + d}, v{vT1}")
    a(f"""
    s_and_b32 s{sK3}, s{S_WAVE}, 1
    s_lshl_b32 s{S_TMP}, s{sK3}, 4
    v_add_u32 v{vT0}, s{S_TMP}, v{vC}
    v_lshlrev_b32 v{vSTO}, 4, v{vT0}
    v_mul_u32_u24 v{vROW}, 1152, v{vT0}
    s_mul_i32 s{S_TMP}, s{sSL}, 96
    v_add_u32 v{vROW}, s{S_TMP}, v{vROW}
    s_mul_i32 s{S_TMP}, s{sSL}, 3072
    v_add_u32 v{vRES}, s{S_TMP}, v{vSTO}
    s_lshl_b32 s{S_TMP}, s{sSL}, 9
    v_add_u32 v{vSTO}, s{S_TMP}, v{vSTO}
    s_lshl_b32 s{sK1}, s{sSL}, 7
    s_lshl_b32 s{S_TMP}, s{S_WAVE}, 2
    s_add_u32 s{sK1}, s{sK1}, s{S_TMP}
    s_add_u32 s{sK1}, s{sK1}, {WS_FLAGS + FL_XA + NSEG * FL_STRIDE}
    s_mul_i32 s{S_TMP}, s{S_WAVE}, 6144
    v_add_u32 v{vRED}, s{S_TMP}, v{vL16}
    v_mov_b32 v{vMBT}, 0x10000
    s_cmp_gt_u32 s{S_WAVE}, 1
    s_cbranch_scc1 Ltw_z
    """)
    for z in (0, 1):
        nm = "LtwZ" if z else "LtwX"
        if z:
            a.label("Ltw_z")
            a.restore(([], []))
            a(f"""
            v_lshrrev_b32 v{vT0}, 1, v{vG}
            v_lshl_add_u32 v{vRES}, v{vT0}, 9, v{vRES}
            v_and_b32 v{vT0}, 1, v{vG}
            v_lshl_add_u32 v{vRES}, v{vT0}, 3, v{vRES}
            v_add_u32 v{vRES}, 2048, v{vRES}
            v_lshl_add_u32 v{vROW}, v{vG}, 3, v{vROW}
            v_add_u32 v{vROW}, 64, v{vROW}
            v_add_u32 v{vSTO}, 8, v{vSTO}
            """)
        else:
            a(f"v_lshl_add_u32 v{vRES}, v{vG}, 9, v{vRES}")
            a(f"v_lshl_add_u32 v{vROW}, v{vG}, 4, v{vROW}")
        st = "dwordx2" if z else "dwordx4"
        nq = 1 if z else 2
        nv = 4 * nq
        R = ACC
        RDL = [ACC + 8, ACC + 12, ACC + 16, ACC + 20, 56, 60, RING + 60, OUTP]
        RD = lambda k: RDL[k]

        def step1():
            return [f"s_cmp_lt_u32 s{sN1}, {TW_S0 - 1}", f"s_cselect_b32 s{sLEFT}, 1, 3"]

        def addr_next():
            return [f"s_lshl_b32 s{sO1}, s{sNO}, 18", f"s_add_u32 s{sO1}, s{sO1}, s{sWQ}",
                    f"s_mul_i32 s{sNX}, s{sNL}, {2 * X_BYTES}", f"s_mul_i32 s{S_TMP}, s{sNS}, {X_SEG}",
                    f"s_add_u32 s{sNX}, s{sNX}, s{S_TMP}", f"s_add_u32 s{sNX}, s{sNX}, {WS_X + X_BYTES}"]

        def ld(i, srd_):
            if i % 4 == 0:
                a(f"s_add_u32 s{sO3}, s{sO1}, {i * 1024}")
            a(f"buffer_load_dwordx4 {vr(RING + 4 * (i % 16), 4)}, v{vL16}, {srd_}, s{sO3} offen offset:{(i % 4) * 1024}")

        def first_loads(srd_):
            for i in range(15):
                ld(i, srd_)
            a(f"buffer_load_{st} {vr(RES, nv // 2)}, v{vRES}, {srd_}, s{sNX} offen")

        def w0(fn, lab):
            if not z:
                a(f"s_cmp_lg_u32 s{S_WAVE}, 0")
                a(f"s_cbranch_scc1 {lab}")
                sn = a.snap()
                fn()
                a.restore(sn)
                a.label(lab)

        def post():
            a(f"v_mov_b32 v{vT0}, s{sDEC}")
            a(f"ds_write_b32 v{vMBT}, v{vT0}")

        a(f"""
        s_lshl_b32 s{sWQ}, s{S_WAVE}, 16
        s_add_u32 s{sWQ}, s{sWQ}, {WS_OF}
        s_mov_b32 s{sPEND}, 0
        s_mov_b32 s{SRD_C}, s{SRD_WS}
        s_mov_b32 s{SRD_C + 1}, s{SRD_WS + 1}
        s_mov_b32 s{SRD_C + 2}, 0
        s_mov_b32 s{SRD_C + 3}, 0x00020000
        s_mul_i32 s{S_TMP}, s{sK3}, 3072
        v_add_u32 v{vRD2}, s{S_TMP}, v{vL16}
        """)
        a(f"ds_write2_b32 v{vMBT}, v{vZERO}, v{vZERO} offset0:0 offset1:1")
        a.wait(lg=0)
        dbg_wait(a, DB_POOL, N_POOL, vT0, vT1, abort, nm + "_ini")
        prof_init(a)
        if PROF == 3:
            a("s_memtime s[84:85]")
            a.force_wait(lg=0)
        a.label(nm + "_idle")
        a.restore(([], []))
        w0(lambda: (p3_begin(a), poll2(a, nm + "_p", abort, FL_OF, 0), p3_end(a, 3), post(), a.wait(lg=0)), nm + "_nw0")
        a("s_barrier")
        a(f"ds_read_b32 v{vT1}, v{vMBT}")
        a(f"v_xor_b32 v{vMBT}, 4, v{vMBT}")
        a(f"v_readfirstlane_b32 s{sDEC}, v{vT1}")
        a(f"s_cmp_eq_u32 s{sDEC}, 0")
        a(f"s_cbranch_scc1 {abort}")
        seq(a, step1(), take(sDEC, 2, f"s{sLEFT}"), addr_next(), f"s_cmp_ge_u32 s{sNS}, {NSEG}", f"s_cbranch_scc1 {abort}")
        first_loads(WS)
        for _ in range(nst_):
            a.vmq.append((frozenset(), "st"))
        a.label(nm + "_item")
        trace(a, vT0, vT1, True) if TRACE == 1 else None
        a(f"s_mov_b32 s{sCL}, s{sNL}")
        a(f"s_mov_b32 s{sCS}, s{sNS}")
        a(f"s_mov_b32 s{sO2}, s{sNX}")
        a.vmq = a.vmq[:16]
        for i in range(64):
            kk, tt = i >> 1, i & 1
            ld((i + 15) % 64, WS if i + 15 < 64 else PFS)
            b = vr(RING + 4 * (i % 16), 4)
            c = "0" if kk == 0 else None
            a(MF(ACC + 12 * tt, ar(8 * kk, 4), b, c))
            a(MF(ACC + 12 * tt + 4, ar(8 * kk + 4, 4), b, c))
            a(MF(ACC + 12 * tt + 8, vr(ZB + 4 * kk, 4), b, c))
            if i == 17:
                a(f"s_cmp_lg_u32 s{sPEND}, 0")
                a("s_cselect_b64 exec, 1, 0")
                a(f"buffer_store_dword v{vONE}, v{vZERO}, {WS}, s{sPEND} offen sc1")
                a("s_mov_b64 exec, -1")
                a(f"s_mov_b32 s{sPEND}, 0")
            if i == 26:
                w0(lambda: (cand_addr(a, FL_OF), sample2(a)), nm + "_nw1")
            if i == 44:
                w0(lambda: (decide(a, 0), post(), a.force_wait(lg=0)), nm + "_nw2")
                a("s_barrier")
                a(f"ds_read_b32 v{vT1}, v{vMBT}")
                a(f"v_xor_b32 v{vMBT}, 4, v{vMBT}")
            if i == 47:
                a(f"v_readfirstlane_b32 s{sDEC}, v{vT1}")
                seq(a, step1(), take(sDEC, 2, f"s{sLEFT}"))
            if i == 48:
                seq(a, f"s_cmp_lt_u32 s{sNS}, {NSEG}", f"s_cselect_b32 s{sDEC}, s{sDEC}, 0")
                seq(a, addr_next(), f"s_cmp_lg_u32 s{sDEC}, 0", f"s_cselect_b32 s{SRD_C + 2}, {WS_BYTES}, 0")
        a.nop(6)
        for q in range(6):
            a(f"ds_write_b128 v{vRED}, {vr(ACC + 4 * q, 4)} offset:{q * 1024}")
        a.force_wait(lg=0)
        a("s_barrier")
        for wv in range(4):
            for q in range(nq):
                a(f"ds_read_b128 {vr(RD(wv * nq + q), 4)}, v{vRD2} offset:{wv * 6144 + (2 if z else q) * 1024}")
        a(f"v_xor_b32 v{vRED}, 0x8000, v{vRED}")
        a(f"v_xor_b32 v{vRD2}, 0x8000, v{vRD2}")
        if z:
            for i in range(2):
                a(f"v_lshlrev_b32 v{R + 2 * i}, 16, v{RES + i}")
                a(f"v_and_b32 v{R + 2 * i + 1}, 0xffff0000, v{RES + i}")
        else:
            for i in range(4):
                a(f"v_lshlrev_b32 v{R + i}, 16, v{RES + i}")
                a(f"v_and_b32 v{R + 4 + i}, 0xffff0000, v{RES + i}")
        a(f"buffer_load_{st} {vr(RES, nv // 2)}, v{vRES}, {PFS}, s{sNX} offen")
        for wv in range(4):
            for i in range(nv):
                a(f"v_add_f32 v{R + i}, v{R + i}, v{RD(wv * nq + i // 4) + i % 4}")
        if z:
            a(f"v_cvt_pk_bf16_f32 v{OUTP}, v{R}, v{R + 1}")
            a(f"v_cvt_pk_bf16_f32 v{OUTP + 1}, v{R + 2}, v{R + 3}")
        else:
            for i in range(4):
                a(f"v_cvt_pk_bf16_f32 v{OUTP + i}, v{R + i}, v{R + 4 + i}")
        a(f"s_cmp_eq_u32 s{sCL}, 0")
        a(f"s_cbranch_scc1 {nm}_l0")
        win = list(a.win)
        sn = a.snap()
        a(f"s_mul_i32 s{S_TMP}, s{sCS}, {32 * 1152}")
        a(f"buffer_store_{st} {vr(OUTP, nv // 2)}, v{vROW}, {OUTS}, s{S_TMP} offen sc1")
        a(f"s_cmp_lg_u32 s{sDEC}, 0")
        a(f"s_cbranch_scc1 {nm}_item")
        a.label(nm + "_chk")
        a(f"s_min_u32 s{S_TMP}, s{sN0}, s{sN1}")
        a(f"s_cmp_lt_u32 s{S_TMP}, {NSEG}")
        a(f"s_cbranch_scc1 {nm}_idle")
        trace(a, vT0, vT1, True) if TRACE != 4 else None
        if PROF == 3:
            a("s_memtime s[86:87]")
            a.force_wait(lg=0)
            a("s_sub_u32 s97, s86, s84")
        prof_dump(a, vT0, vT1)
        stamp_max(a, 7, vT0, vT1)
        a(f"s_branch {done}")
        a.label(nm + "_l0")
        a.win = win
        a.restore(sn)
        a(f"s_add_u32 s{sO2}, s{sO2}, {X_BYTES}")
        a(f"buffer_store_{st} {vr(OUTP, nv // 2)}, v{vRES}, {WS}, s{sO2} offen sc1")
        a(f"v_add_f32 v{SS}, v{R}, v{R + 1}")
        a(f"v_mul_f32 v{SS + 1}, v{R}, v{R}")
        a(f"v_fmac_f32 v{SS + 1}, v{R + 1}, v{R + 1}")
        for i in range(2, nv):
            a(f"v_add_f32 v{SS}, v{SS}, v{R + i}")
            a(f"v_fmac_f32 v{SS + 1}, v{R + i}, v{R + i}")
        for sw in (32, 16):
            seq(a, f"v_mov_b32 v{SS + 2}, v{SS}", f"v_mov_b32 v{SS + 3}, v{SS + 1}",
                f"v_permlane{sw}_swap_b32 v{SS}, v{SS + 2}", f"v_permlane{sw}_swap_b32 v{SS + 1}, v{SS + 3}",
                f"v_add_f32 v{SS}, v{SS}, v{SS + 2}", f"v_add_f32 v{SS + 1}, v{SS + 1}, v{SS + 3}")
        a(f"""
        s_mul_i32 s{S_TMP}, s{sCS}, {ST_SEG}
        s_add_u32 s{S_TMP}, s{S_TMP}, {WS_ST + 2 * ST_BYTES}
        s_mov_b64 exec, 0xffff
        buffer_store_dwordx2 {vr(SS, 2)}, v{vSTO}, {WS}, s{S_TMP} offen sc1
        s_mov_b64 exec, -1
        s_mul_i32 s{sPEND}, s{sCS}, {FL_STRIDE}
        s_add_u32 s{sPEND}, s{sPEND}, s{sK1}
        """)
        trace_at(a, sCS, vT0, vZERO)
        a(f"s_cmp_lg_u32 s{sDEC}, 0")
        a(f"s_cbranch_scc1 {nm}_item")
        a.force_wait(vm=0)
        flag_out(a, sPEND)
        a(f"s_mov_b32 s{sPEND}, 0")
        a(f"s_branch {nm}_chk")
```

```python
import sys, os
from common import *
if os.environ.get('RV', '2') == '2':
    import role_r2 as R
else:
    import role_r as R
import pool, role_t

MAIN = KNAME + "_kernel"
FREERUN = int(os.environ.get("FREERUN", "0"))
INIT = "init_kernel"
ROLE_MAP = {2: [("W", 24), ("P", 8)], 3: [("W", 12), ("P", 20)], 4: [("A", 16), ("O", 5), ("P", 11)],
            5: [("A", 16), ("O", 5), ("P", 11)], 6: [("T", 8), ("P", 23)], 7: [("T", 8), ("P", 23)]}


def kd(name, vgpr, acc, sgpr=102):
    return f""".p2align 6
.amdhsa_kernel {name}
  .amdhsa_next_free_vgpr {vgpr}
  .amdhsa_next_free_sgpr {sgpr}
  .amdhsa_accum_offset {acc}
  .amdhsa_group_segment_fixed_size 0
  .amdhsa_kernarg_size 104
  .amdhsa_user_sgpr_count 2
  .amdhsa_user_sgpr_kernarg_segment_ptr 1
  .amdhsa_system_sgpr_workgroup_id_x 1
.end_amdhsa_kernel
"""


def pool_init(a):
    WS = f"s[{SRD_WS}:{SRD_WS + 3}]"
    Q_ = 6
    srd(a, SRD_A, KA_X, 2048 * 1152)
    srd(a, SRD_B, KA_WQKV, 576 * 3456)
    B_ = f"s[{SRD_B}:{SRD_B + 3}]"
    a(f"""
    v_and_b32 v2, 15, v0
    v_bfe_u32 v3, v0, 4, 2
    v_mul_u32_u24 v3, {8 * 3456}, v3
    v_and_b32 v4, 63, v0
    v_lshlrev_b32 v4, 4, v4
    v_lshl_add_u32 v16, v2, 1, v3
    v_add_u32 v17, 1152, v16
    v_add_u32 v19, 2304, v16
    v_mov_b32 v5, 0x7f000000
    v_add_u32 v18, 32, v16
    v_add_u32 v6, {32 + 1152 - 4}, v16
    v_cmp_gt_u32 vcc, 2, v2
    v_cndmask_b32 v18, v6, v18, vcc
    v_add_u32 v20, {32 + 2304}, v16
    v_cndmask_b32 v20, v5, v20, vcc
    v_cmp_gt_u32 vcc, 4, v2
    v_cndmask_b32 v18, v5, v18, vcc
    """)
    a(f"""
    s_mul_i32 s42, s{Q_}, {(1 << 16) // 5 + 1}
    s_lshr_b32 s42, s42, 16
    s_mul_i32 s43, s42, 5
    s_sub_u32 s44, s{Q_}, s43
    s_mul_i32 s42, s42, 36
    s_mul_i32 s43, s{S_WAVE}, {32 * 3456}
    s_add_u32 s42, s42, s43
    s_mul_i32 s46, s{Q_}, {18 * 1024}
    s_lshl_b32 s43, s{S_WAVE}, 10
    s_add_u32 s46, s46, s43
    s_add_u32 s46, s46, {WS_AW}
    s_cmp_ge_u32 s{Q_}, 160
    s_cselect_b32 s42, 0x7f000000, s42
    s_cselect_b32 s46, 0x7f000000, s46
    s_cmp_lt_u32 s{S_WAVE}, 2
    s_cselect_b32 s47, s46, 0x7f000000
    s_add_u32 s47, s47, 16384
    v_mov_b32 v21, v16
    """)
    for tile in range(1, 5):
        a(f"s_cmp_eq_u32 s44, {tile}")
        a(f"s_cselect_b64 vcc, -1, 0")
        a(f"v_cndmask_b32 v21, v21, v{16 + tile}, vcc")
    for j in range(5):
        for e in range(8):
            a(f"buffer_load_ushort v{100 + 8 * j + e}, v21, {B_}, s42 offen")
            a(f"s_add_u32 s42, s42, {3456 if e < 7 else 121 * 3456}")
    a(f"""
    v_and_b32 v1, 31, v0
    v_lshrrev_b32 v2, 5, v0
    v_mul_u32_u24 v3, 1152, v1
    v_mul_u32_u24 v5, 144, v2
    v_add_u32 v3, v3, v5
    s_mul_i32 s41, s{Q_}, {32 * 1152}
    """)
    for i in range(9):
        a(f"buffer_load_dwordx4 {vr(64 + 4 * i, 4)}, v3, s[{SRD_A}:{SRD_A + 3}], s41 offen offset:{16 * i}")
    a(f"""
    v_lshlrev_b32 v7, 4, v0
    v_mov_b32 v12, 0
    v_mov_b32 v13, 0
    v_mov_b32 v14, 0
    v_mov_b32 v15, 0
    """)
    for j in range(5):
        for d in range(4):
            a(f"v_lshl_or_b32 v{56 + d}, v{101 + 8 * j + 2 * d}, 16, v{100 + 8 * j + 2 * d}")
        a(f"buffer_store_dwordx4 v[56:59], v4, {WS}, s{47 if j == 4 else 46} offen sc1")
        a("s_add_u32 s46, s46, 4096")
    a(f"s_cmp_ge_u32 s{Q_}, 64")
    a("s_cbranch_scc1 Li_rest")
    sn = a.snap()
    a(f"""
    v_mul_u32_u24 v4, {9 * 512}, v2
    v_lshl_add_u32 v4, v1, 4, v4
    s_mul_i32 s41, s{Q_}, {X_SEG}
    s_add_u32 s41, s41, {WS_X}
    s_mul_i32 s42, s{Q_}, {ST_SEG}
    s_add_u32 s42, s42, {WS_ST}
    s_add_u32 s43, s42, 2048
    v_mov_b32 v60, 0
    v_mov_b32 v61, 0
    """)
    for i in range(9):
        if i == 8:
            a("v_add_u32 v4, 4096, v4")
        a(f"buffer_store_dwordx4 {vr(64 + 4 * i, 4)}, v4, {WS}, s41 offen offset:{512 * (i % 8)} sc1")
    a(f"buffer_store_dwordx4 v[12:15], v7, {WS}, s43 offen sc1")
    a("v_mov_b32 v62, 0x3f803f80")
    for r in range(64, 100):
        a(f"v_dot2c_f32_bf16 v60, v{r}, v62")
        a(f"v_dot2c_f32_bf16 v61, v{r}, v{r}")
    a.nop(4)
    a(f"""
    v_lshrrev_b32 v5, 1, v2
    v_lshlrev_b32 v5, 9, v5
    v_lshl_add_u32 v5, v1, 4, v5
    v_and_b32 v6, 1, v2
    v_lshl_add_u32 v5, v6, 3, v5
    buffer_store_dwordx2 v[60:61], v5, {WS}, s42 offen sc1
    s_branch Li_done
    Li_rest:
    s_sub_u32 s41, s{Q_}, 64
    s_lshr_b32 s42, s41, 6
    s_and_b32 s41, s41, 63
    s_mul_i32 s42, s42, {2 * ST_BYTES}
    s_mul_i32 s41, s41, {ST_SEG}
    s_add_u32 s41, s41, s42
    s_add_u32 s41, s41, {WS_ST + ST_BYTES + 9 * 512}
    v_cmp_gt_u32 vcc, 96, v0
    s_and_saveexec_b64 s[42:43], vcc
    s_cbranch_execz Li_rest2
    buffer_store_dwordx4 v[12:15], v7, {WS}, s41 offen sc1
    Li_rest2:
    s_mov_b64 exec, s[42:43]
    Li_done:
    """)
    a.force_wait(vm=0)
    a("s_barrier")
    a(f"s_cmp_lg_u32 s{S_WAVE}, 0")
    a("s_cbranch_scc1 Li_mid")
    dbg_add(a, DB_POOLA, 2, 3)
    a.label("Li_mid")
    a(f"""
    v_lshlrev_b32 v7, 4, v0
    v_cmp_gt_u32 vcc, 96, v0
    s_cmp_lt_u32 s{Q_}, 64
    s_cselect_b64 s[42:43], -1, 0
    s_and_b64 vcc, vcc, s[42:43]
    s_cmp_lt_u32 s{Q_}, 128
    s_cselect_b32 s44, {FREERUN}, 0
    v_mov_b32 v12, s44
    v_mov_b32 v13, s44
    v_mov_b32 v14, s44
    v_mov_b32 v15, s44
    v_mov_b32 v9, 1
    v_cndmask_b32 v8, v12, v9, vcc
    v_mov_b32 v9, v8
    v_mov_b32 v10, v8
    v_mov_b32 v11, v8
    s_cmp_ge_u32 s{Q_}, 136
    s_cbranch_scc1 Li_nofl
    s_mul_i32 s41, s{Q_}, {FL_STRIDE}
    s_sub_u32 s42, s{Q_}, 128
    s_lshl_b32 s42, s42, 12
    s_add_u32 s42, s42, {WS_ZERO}
    s_cmp_ge_u32 s{Q_}, 128
    s_cselect_b32 s41, s42, s41
    buffer_store_dwordx4 v[8:11], v7, {WS}, s41 offen sc1
    s_cbranch_scc1 Li_nofl
    """)
    for i in range(1, 6):
        a(f"s_add_u32 s41, s41, 4096")
        if i == 5:
            a("v_cmp_gt_u32 vcc, 128, v0")
            a("s_and_saveexec_b64 s[42:43], vcc")
            a("s_cbranch_execz Li_fl5")
        a(f"buffer_store_dwordx4 v[12:15], v7, {WS}, s41 offen sc1")
    a("Li_fl5:")
    a("s_mov_b64 exec, s[42:43]")
    a("Li_nofl:")
    a.force_wait(vm=0)
    a("s_barrier")
    a(f"s_cmp_lg_u32 s{S_WAVE}, 0")
    a("s_cbranch_scc1 Li_end")
    dbg_add(a, DB_POOL, 2, 3)
    a.label("Li_end")
    a.restore(([], []))


def gen_main(a, stamps=0, dbg_roles=None):
    WS = f"s[{SRD_WS}:{SRD_WS + 3}]"
    a.text(f".globl {MAIN}\n.p2align 8\n.type {MAIN},@function")
    a.label(MAIN)
    a.reset_window()
    sX, sTK = 3, 4
    DBG = f"s[{S_DBG}:{S_DBG + 1}]"
    a("s_cmp_ge_u32 s2, 256")
    a("s_cbranch_scc1 L_exit")
    srd(a, SRD_WS, KA_WS, WS_BYTES)
    a(f"""
    s_load_dwordx2 s[{S_DBG}:{S_DBG + 1}], s[0:1], {KA_DBG}
    v_lshrrev_b32 v1, 6, v0
    s_getreg_b32 s{sX}, hwreg(HW_REG_XCC_ID)
    v_readfirstlane_b32 s{S_WAVE}, v1
    s_and_b32 s{sX}, s{sX}, {6 if os.environ.get('FAKEX') else 7}
    s_and_b32 s{S_TMP}, s{sX}, 1
    s_lshl_b32 s{S_TMP}, s{S_TMP}, 7
    s_lshl_b32 s{S_TMP + 1}, s{sX}, 1
    s_and_b32 s{S_TMP + 1}, s{S_TMP + 1}, 12
    s_add_u32 s{S_TMP}, s{S_TMP}, s{S_TMP + 1}
    v_mov_b32 v2, 0
    v_mov_b32 v3, 1
    v_mov_b32 v4, s{S_TMP}
    s_mov_b32 s{R.sSTEP}, 0
    s_waitcnt lgkmcnt(0)
    s_cmp_lg_u32 s{S_WAVE}, 0
    s_cbranch_scc1 L_tk_wait
    s_mov_b64 exec, 1
    global_atomic_add v3, v4, v3, {DBG} sc0
    v_readfirstlane_b32 s{sTK}, v3
    s_cmp_lt_u32 s{sTK}, 32
    s_cbranch_scc1 L_tk_have
    """)
    a(f"""
    v_mov_b32 v3, 1
    v_mov_b32 v4, {DB_HOMELESS}
    global_atomic_add v3, v4, v3, {DBG} sc0
    v_readfirstlane_b32 s5, v3
    s_mov_b64 exec, 0xff
    v_and_b32 v4, 1, v0
    v_lshlrev_b32 v4, 7, v4
    v_lshlrev_b32 v5, 1, v0
    v_and_or_b32 v4, v5, 12, v4
    s_mov_b32 s{S_SPIN}, 0
    L_hl_poll:
    global_load_dword v5, v4, {DBG} sc1
    """)
    spin_check(a, "L_abort")
    a("s_mov_b32 s6, 0")
    for i in range(8):
        a(f"v_readlane_b32 s{40 + i}, v5, {i}")
        a(f"s_add_u32 s6, s6, s{40 + i}")
    a(f"""
    s_cmp_lt_u32 s6, 256
    s_cbranch_scc1 L_hl_poll
    s_mov_b32 s{sX}, 0
    s_mov_b32 s{sTK}, 0
    """)
    for i in range(7, -1, -1):
        a(f"""
        s_min_u32 s6, s{40 + i}, 32
        s_sub_u32 s7, 32, s6
        s_cmp_lt_u32 s5, s7
        s_cselect_b32 s{sX}, {i}, s{sX}
        s_add_u32 s6, s6, s5
        s_cmp_lt_u32 s5, s7
        s_cselect_b32 s{sTK}, s6, s{sTK}
        s_sub_u32 s5, s5, s7
        """)
    a(f"""
    L_tk_have:
    s_lshl_b32 s5, s{sX}, 8
    s_or_b32 s5, s5, s{sTK}
    v_mov_b32 v3, s5
    s_mov_b64 exec, 1
    ds_write_b32 v2, v3
    s_mov_b64 exec, -1
    L_tk_wait:
    """)
    a.force_wait(vm=0, lg=0)
    a("s_barrier")
    a("ds_read_b32 v3, v2")
    a(f"v_readfirstlane_b32 s5, v3")
    a(f"s_lshr_b32 s{sX}, s5, 8")
    a(f"s_and_b32 s{sTK}, s5, 255")
    a("s_barrier")
    trace_init(a)
    if DBGT:
        a("s_memrealtime s[6:7]")
        a.force_wait(lg=0)
        a("s_mov_b32 s5, s6")
    trace(a, 2, 3, True)
    en = dbg_roles or "RPWTAO"

    def tgt(ch, lab):
        return lab if ch in en else "L_exit"
    LAB = {"P": "L_role_p", "W": "L_role_tw", "T": "L_role_ta", "A": "L_role_aq", "O": "L_role_awo"}
    a(f"s_cmp_lt_u32 s{sX}, 2")
    a(f"s_cbranch_scc1 {tgt('R', 'L_role_r')}")
    a(f"s_sub_u32 s6, s{sX}, 2")
    a(f"s_lshl_b32 s6, s6, 5")
    a(f"s_add_u32 s6, s6, s{sTK}")
    pool_init(a)
    base = {k: 0 for k in LAB}
    for cls, lst in ROLE_MAP.items():
        a(f"s_cmp_lg_u32 s{sX}, {cls}")
        a(f"s_cbranch_scc1 L_cls{cls}_no")
        t0 = 0
        for ch, n in lst:
            a(f"s_add_u32 s{S_ROLE}, s{sTK}, {(base[ch] - t0) & 0xffffffff}")
            a(f"s_cmp_lt_u32 s{sTK}, {t0 + n}")
            a(f"s_cbranch_scc1 {tgt(ch, LAB[ch])}")
            base[ch] += n
            t0 += n
        a("s_endpgm")
        a.label(f"L_cls{cls}_no")
    assert base == {"P": 96, "W": 36, "T": 16, "A": 32, "O": 10}, base
    a(f"""
    L_exit:
    s_endpgm
    L_abort:
    """)
    a.force_wait(lg=0)
    a(f"""
    s_mov_b64 exec, -1
    v_mov_b32 v0, {DB_ABORT}
    s_lshl_b32 s5, s{sX}, 8
    s_or_b32 s5, s5, s{sTK}
    s_or_b32 s5, s5, 0x10000
    v_mov_b32 v1, s5
    global_store_dword v0, v1, s[{S_DBG}:{S_DBG + 1}]
    s_endpgm
    """)
    for ch, lab, fn in (("P", "L_role_p", pool.role_p), ("O", "L_role_awo", pool.role_awo), ("A", "L_role_aq", pool.role_aq),
                        ("T", "L_role_ta", role_t.role_ta), ("W", "L_role_tw", role_t.role_tw)):
        if ch not in en:
            continue
        a.text(".p2align 6")
        a.label(lab)
        a.reset_window()
        fn(a, f"{lab}_abort", f"{lab}_exit")
        a.label(f"{lab}_abort")
        a("s_branch L_abort") if False else far_jump(a, "L_abort")
        a.label(f"{lab}_exit")
        trace(a, 2, 3, True) if FREERUN else None
        a("s_endpgm")
    if "R" in en:
        a.text(".p2align 6")
        a.label("L_role_r")
        a.reset_window()
        a(f"s_mov_b32 s{R.sLAY}, s{sX}")
        a(f"s_mov_b32 s{R.sH}, s{sTK}")
        R.r_setup(a)
        a(f"""
        s_mov_b64 exec, 0xff
        v_lshrrev_b32 v14, 2, v{R.vL16}
        v_lshlrev_b32 v12, 5, v14
        v_and_b32 v12, 128, v12
        v_lshrrev_b32 v13, 1, v14
        v_and_or_b32 v12, v13, 12, v12
        s_mov_b32 s{S_SPIN}, 0
        L_pure:
        global_load_dword v13, v12, {DBG} sc1
        """)
        spin_check(a, "Lr_abort")
        a("s_mov_b32 s6, 0")
        for i in range(8):
            a(f"v_readlane_b32 s7, v13, {i}")
            a(f"s_add_u32 s6, s6, s7")
        a(f"""
        v_readlane_b32 s7, v13, s{R.sLAY}
        s_cmp_ge_u32 s7, 32
        s_cselect_b32 s{R.sFAST}, {0 if os.environ.get('FAKEX') or os.environ.get('SLOW') else 1}, 0
        s_cselect_b32 s6, 256, s6
        s_cmp_lt_u32 s6, 256
        s_cbranch_scc1 L_pure
        s_mov_b64 exec, -1
        s_lshl_b32 s6, s{R.sLAY}, 2
        s_add_u32 s6, s6, {DB_TEAM}
        """)
        dbg_wait(a, "s6", 32, 12, 13, "Lr_abort", "L_team")
        dbg_wait(a, DB_POOL, N_POOL, 12, 13, "Lr_abort", "L_rpool")
        a("s_barrier")
        trace(a, 12, 13, True)
        stamp_max(a, 4, 12, 13, (R.sLAY, 0))
        for fast in (1, 0):
            if fast:
                a(f"s_cmp_eq_u32 s{R.sFAST}, 0")
                a("s_cbranch_scc1 L_slow")
            else:
                a.label("L_slow")
            for w in range(4):
                if w < 3:
                    a(f"s_cmp_lg_u32 s{S_WAVE}, {w}")
                    a(f"s_cbranch_scc1 L_w{w + 1}_{fast}")
                a.restore(([], []))
                R.r_loop(a, w, fast, "Lr_abort", "Lr_exit", stamps)
                if w < 3:
                    a.label(f"L_w{w + 1}_{fast}")
        a.label("Lr_abort")
        far_jump(a, "L_abort")
        a.label("Lr_exit")
        a("s_endpgm")


def far_jump(a, lab):
    a.force_wait(lg=0)
    a(f"""
    s_mov_b64 exec, -1
    v_mov_b32 v0, {DB_ABORT}
    s_lshl_b32 s5, s3, 8
    s_or_b32 s5, s5, s4
    s_or_b32 s5, s5, 0x10000
    v_mov_b32 v1, s5
    global_store_dword v0, v1, s[{S_DBG}:{S_DBG + 1}]
    s_endpgm
    """)


def build(stamps=0, dbg_roles=None):
    a = Asm()
    hdr = open(os.path.join(os.path.dirname(__file__), "..", KNAME + ".s.ref")).read().split("; Override launch")[0]
    a.text(hdr.rstrip())
    a.text("; @launch grid=(256,1,1) block=(256,1,1) lds=163840")
    a.text('.amdgcn_target "amdgcn-amd-amdhsa--gfx950"\n.text')
    gen_main(a, stamps, dbg_roles)
    a.text('.section .rodata,"a"')
    a.text(kd(MAIN, 512, 256))
    return a.render()


if __name__ == "__main__":
    out = sys.argv[1]
    open(out, "w").write(build(int(os.environ.get("STAMPS", "0")), os.environ.get("ROLES")))
```

```python
from asmlib import *

KNAME = "interleave_layers__sliding_local_dilated__memory_aug_recurrent_mem_tr__prompt"
NSEG = 64
KA_X, KA_WQKV, KA_WO, KA_BX, KA_MEM0, KA_WQ, KA_WK, KA_WV, KA_BWO, KA_SEG, KA_OUT, KA_DBG, KA_WS = [8 * i for i in range(13)]

WS_BYTES = 268435456
WS_FLAGS = 0
FL_STRIDE = 0x5800
FL_XA, FL_OA, FL_XB, FL_OF, FL_QKV = 0, 1536, 3584, 4224, 5376
WS_ZERO = 0x2C0000
FLAGS_BYTES = 0x2D0000
WS_DUMMY = 0x300000
WS_RING = 0x400000
RING_TEAM = 0x100000
PART_SLOT = 0x80000
import os
PART_H = int(os.environ.get("PARTH", "12288"))
MEMB_OFF = 0xF0000
MEMB_SLOT = 0x4000
WS_X = 0x600000
X_BYTES = 0x240000
X_SEG = 36864
WS_ST = WS_X + 4 * X_BYTES
ST_SEG = 12 * 32 * 16
ST_BYTES = NSEG * ST_SEG
WS_OA = WS_ST + 4 * ST_BYTES
WS_AW = WS_OA + 2 * X_BYTES
WS_KM = 0x1A00000
KM_UNIT = 4096
WS_QKV = WS_KM + 2 * NSEG * 32 * KM_UNIT
QKV_M = NSEG * 32 * 8192
WS_OF = WS_QKV + 6 * QKV_M
WS_END = WS_OF + 2 * QKV_M
assert WS_AW + 32 * 90 * 1024 <= WS_KM
assert WS_END <= WS_BYTES, WS_END

RV2 = os.environ.get("RV", "2") == "2"
SPIN_MAX = int(os.environ.get("SPIN_MAX", "100000"))

S_KARG = 0
S_WG = 2
SRD_WS = 8
S_DBG = 12
S_WAVE = 14
S_ROLE = 15
S_SPIN = 16
S_TMP = 17
SRD_A = 20
SRD_B = 24
SRD_C = 28
S_FREE = 32


def srd(a, base, ka_off, nbytes):
    a(f"s_load_dwordx2 s[{base}:{base + 1}], s[0:1], {ka_off}")
    a(f"s_mov_b32 s{base + 2}, {nbytes}")
    a(f"s_mov_b32 s{base + 3}, 0x00020000")
    a.force_wait(lg=0)
    a(f"s_and_b32 s{base + 1}, s{base + 1}, 0xffff")


def spin_check(a, abort_label):
    a(f"s_add_u32 s{S_SPIN}, s{S_SPIN}, 1")
    a(f"s_cmp_gt_u32 s{S_SPIN}, {SPIN_MAX}")
    a(f"s_cbranch_scc1 {abort_label}")


TRACE = int(os.environ.get("TRACE", "0"))
WS_TRACE = WS_END


def trace_init(a):
    if TRACE:
        a(f"s_lshl_b32 s5, s3, 5")
        a(f"s_add_u32 s5, s5, s4")
        a(f"s_lshl_b32 s5, s5, 2")
        a(f"s_add_u32 s5, s5, s{S_WAVE}")
        a(f"s_lshl_b32 s5, s5, 10")
        a(f"s_add_u32 s5, s5, {WS_TRACE}")


def trace(a, v0, v1, light=False):
    if TRACE in (1, 3) or (TRACE in (2, 4, 6) and light):
        a("s_memrealtime s[6:7]")
        a.force_wait(lg=0)
        a(f"v_mov_b32 v{v0}, s6")
        a(f"v_mov_b32 v{v1}, 0")
        a("s_mov_b64 exec, 1")
        a(f"buffer_store_dword v{v0}, v{v1}, s[{SRD_WS}:{SRD_WS + 3}], s5 offen")
        a("s_mov_b64 exec, -1")
        a("s_add_u32 s5, s5, 4")


PROF = int(os.environ.get("PROF", "0"))


def p3_begin(a):
    if PROF == 3:
        a("s_memtime s[88:89]")
        a.force_wait(lg=0)


def p3_end(a, k):
    if PROF == 3:
        a("s_memtime s[86:87]")
        a.force_wait(lg=0)
        a("s_sub_u32 s86, s86, s88")
        a(f"s_add_u32 s{90 + k}, s{90 + k}, s86")


def prof_begin(a):
    if PROF in (1, 2):
        a("s_memtime s[88:89]")
        a.force_wait(lg=0)


def prof_end(a, k):
    if PROF in (1, 2):
        a("s_memtime s[86:87]")
        a.force_wait(lg=0)
        a("s_sub_u32 s86, s86, s88")
        a(f"s_add_u32 s{90 + k}, s{90 + k}, s86")


def prof_init(a):
    if PROF:
        for k in range(8):
            a(f"s_mov_b32 s{90 + k}, 0")


def prof_dump(a, v0, v1):
    if PROF:
        a(f"s_lshl_b32 s5, s3, 5")
        a(f"s_add_u32 s5, s5, s4")
        a(f"s_lshl_b32 s5, s5, 2")
        a(f"s_add_u32 s5, s5, s{S_WAVE}")
        a(f"s_lshl_b32 s5, s5, 5")
        a(f"s_add_u32 s5, s5, {WS_TRACE}")
        for k in range(8):
            a(f"v_writelane_b32 v{v0}, s{90 + k}, {k}")
        a(f"v_mbcnt_lo_u32_b32 v{v1}, -1, 0")
        a(f"v_lshlrev_b32 v{v1}, 2, v{v1}")
        a("s_mov_b64 exec, 0xff")
        a(f"buffer_store_dword v{v0}, v{v1}, s[{SRD_WS}:{SRD_WS + 3}], s5 offen")
        a("s_mov_b64 exec, -1")


def wait_units(a, lab):
    a.label(lab)
    a("s_cmp_eq_u32 s6, 0")
    a(f"s_cbranch_scc1 {lab}_d")
    a("s_sleep 127")
    a("s_sub_u32 s6, s6, 1")
    a(f"s_branch {lab}")
    a.label(lab + "_d")


DB_TICKET = 0
DB_HOMELESS = 32
DB_ABORT = 60
DB_POOL = 160
DB_POOLA = 40
DB_LOADED = 48
ORDER = int(os.environ.get('ORDER', '0'))
GATE = int(os.environ.get('GATE', '15'))
GJOB = int(os.environ.get('GJOB', '12'))


def gate(a, bit, cond_sreg, v0, v1, abort, name):
    if GATE & bit:
        if cond_sreg is not None:
            a(f"s_cmp_eq_u32 s{cond_sreg}, 0")
            a(f"s_cbranch_scc1 {name}_ng")
        dbg_wait(a, DB_LOADED, 32, v0, v1, abort, name, 100)
        if cond_sreg is not None:
            a.label(name + "_ng")

DB_TEAM = 192
N_POOL = 136
N_POOLA = 72
N_POOLB = 64
SRD_DBG = 4


def dbg_add(a, off, v0, v1):
    a(f"v_mov_b32 v{v0}, {off}" if isinstance(off, int) else f"v_mov_b32 v{v0}, {off}")
    a(f"v_mov_b32 v{v1}, 1")
    a("s_mov_b64 exec, 1")
    a(f"global_atomic_add v{v0}, v{v1}, s[{S_DBG}:{S_DBG + 1}]")
    a("s_mov_b64 exec, -1")


def dbg_wait(a, off, target, v0, v1, abort, name, slp=8):
    a(f"s_cmp_lg_u32 s{S_WAVE}, 0")
    a(f"s_cbranch_scc1 {name}_d")
    a(f"v_mov_b32 v{v0}, {off}")
    a(f"s_mov_b32 s{S_SPIN}, 0")
    a.label(name)
    a(f"global_load_dword v{v1}, v{v0}, s[{S_DBG}:{S_DBG + 1}] sc1")
    spin_check(a, abort)
    a(f"v_cmp_gt_u32 vcc, {target}, v{v1}")
    a(f"s_cbranch_vccz {name}_d")
    a(f"s_sleep {slp}")
    a(f"s_branch {name}")
    a.label(name + "_d")
    a("s_barrier")


def trace_at(a, sidx, v0, vz):
    if TRACE == 4:
        a("s_memrealtime s[6:7]")
        a.force_wait(lg=0)
        a(f"s_lshl_b32 s7, s{sidx}, 2")
        a(f"s_add_u32 s7, s7, s5")
        a(f"v_mov_b32 v{v0}, s6")
        a("s_mov_b64 exec, 1")
        a(f"buffer_store_dword v{v0}, v{vz}, s[{SRD_WS}:{SRD_WS + 3}], s7 offen offset:12")
        a("s_mov_b64 exec, -1")


DBGT = int(os.environ.get("DBGT", "0"))


def stamp_max(a, word, v0, v1, cond=None):
    if DBGT:
        a("s_memrealtime s[6:7]")
        a.force_wait(lg=0)
        a("s_sub_u32 s6, s6, s5")
        if cond:
            a(f"s_cmp_eq_u32 s{cond[0]}, {cond[1]}")
            a("s_cselect_b32 s6, s6, 0")
        a(f"v_mov_b32 v{v0}, {word}" if isinstance(word, str) else f"v_mov_b32 v{v0}, {4 * word}")
        a(f"v_mov_b32 v{v1}, s6")
        a("s_mov_b64 exec, 1")
        a(f"global_atomic_umax v{v0}, v{v1}, s[{S_DBG}:{S_DBG + 1}]")
        a("s_mov_b64 exec, -1")


def trace6(a, v0, v1):
    if TRACE == 6:
        a("s_memrealtime s[76:77]")
        a.force_wait(lg=0)
        a(f"v_mov_b32 v{v0}, s76")
        a(f"v_mov_b32 v{v1}, 0")
        a("s_mov_b64 exec, 1")
        a(f"buffer_store_dword v{v0}, v{v1}, s[{SRD_WS}:{SRD_WS + 3}], s5 offen")
        a("s_mov_b64 exec, -1")
        a("s_add_u32 s5, s5, 4")


def init_wait(a, cond_sreg, v0, v1, abort, name):
    dbg_wait(a, DB_POOLA, N_POOLA, v0, v1, abort, name + "a")
    if cond_sreg is not None:
        a(f"s_cmp_eq_u32 s{cond_sreg}, 0")
        a(f"s_cbranch_scc1 {name}_sk")
    dbg_wait(a, DB_POOL, N_POOLB, v0, v1, abort, name + "b")
    if cond_sreg is not None:
        a.label(name + "_sk")
```

```python
from common import *
import struct

WS = f"s[{SRD_WS}:{SRD_WS + 3}]"
L0_AP = 16
L0_T = 16
SLP = int(os.environ.get("SLP", "4"))
EARLYF = int(os.environ.get("EARLYF", "0"))


def f32bits(x):
    return struct.unpack("<I", struct.pack("<f", x))[0]


sN0, sN1 = S_FREE, S_FREE + 1
sCL, sCS = S_FREE + 2, S_FREE + 3
sNL, sNS = S_FREE + 4, S_FREE + 5
sLEFT = S_FREE + 6
sPF = S_FREE + 7
sBUF = S_FREE + 8
sNX = S_FREE + 9
sNFL = S_FREE + 10
sPEND = S_FREE + 11
sSELX, sSELY = S_FREE + 12, S_FREE + 13
sO1, sO2, sO3 = S_FREE + 14, S_FREE + 15, S_FREE + 16
sK1, sK2, sK3, sK4 = S_FREE + 17, S_FREE + 18, S_FREE + 19, S_FREE + 20
sE = S_FREE + 22
sNO = S_FREE + 24
sCO = S_FREE + 25
sWQ = S_FREE + 26
sOB = S_FREE + 27
sF0, sF1, sDEC = S_FREE + 28, S_FREE + 29, S_FREE + 30
sLAYS = S_FREE + 31
sSB, sW1K = S_FREE + 34, S_FREE + 35
sX0, sX1 = S_FREE + 32, S_FREE + 33

vL16, vFLA, vFLV, vONE, vZERO, vT0, vT1, vC, vG = range(9)
XBUF = X_SEG


def seq(a, *items):
    for it in items:
        if isinstance(it, (list, tuple)):
            seq(a, *it)
        elif callable(it):
            it()
        elif it:
            a(it)


def MF(acc, A, B, C=None):
    return f"v_mfma_f32_16x16x32_bf16 {vr(acc, 4)}, {A}, {B}, {vr(acc, 4) if C is None else C}"


def lane_setup(a, nflags):
    a(f"""
    v_and_b32 v{vT0}, 63, v0
    v_lshlrev_b32 v{vL16}, 4, v{vT0}
    v_and_b32 v{vC}, 15, v{vT0}
    v_lshrrev_b32 v{vG}, 4, v{vT0}
    v_min_u32 v{vFLA}, {nflags - 1}, v{vT0}
    v_lshrrev_b32 v{vT1}, 2, v{vFLA}
    v_and_b32 v{vFLA}, 3, v{vFLA}
    v_lshlrev_b32 v{vFLA}, 2, v{vFLA}
    v_lshl_add_u32 v{vFLA}, v{vT1}, 7, v{vFLA}
    v_mov_b32 v{vONE}, 1
    v_mov_b32 v{vZERO}, 0
    s_mov_b32 s{sSELX}, 0x05040100
    s_mov_b32 s{sSELY}, 0x07060302
    """)


def pick_next(a, step, l0):
    a(f"""
    s_add_u32 s{S_TMP}, s{sN1}, {l0}
    s_min_u32 s{S_TMP}, s{S_TMP}, {NSEG}
    s_cmp_lt_u32 s{sN0}, s{S_TMP}
    s_cselect_b32 s{sNL}, 0, 1
    s_cselect_b32 s{sNS}, s{sN0}, s{sN1}
    s_cselect_b32 s{S_TMP}, {step}, 0
    s_cselect_b32 s{S_TMP + 1}, 0, {step}
    s_add_u32 s{sN0}, s{sN0}, s{S_TMP}
    s_add_u32 s{sN1}, s{sN1}, s{S_TMP + 1}
    s_lshl_b32 s{sNO}, s{sNL}, 6
    s_add_u32 s{sNO}, s{sNO}, s{sNS}
    """)


def flag_out(a, sreg):
    a("s_mov_b64 exec, 1")
    a(f"buffer_store_dword v{vONE}, v{vZERO}, {WS}, s{sreg} offen sc1")
    a("s_mov_b64 exec, -1")


def flag_block(a, name, abort):
    L = a.newlabel(name)
    a(f"s_mov_b32 s{S_SPIN}, 0")
    a.label(L)
    a(f"buffer_load_dword v{vFLV}, v{vFLA}, {WS}, s{sNFL} offen sc1")
    spin_check(a, abort)
    a(f"v_cmp_eq_u32 vcc, 0, v{vFLV}")
    Ld = a.newlabel(name + "d")
    a(f"s_cbranch_vccz {Ld}")
    a(f"s_sleep {SLP}")
    a(f"s_branch {L}")
    a.label(Ld)


PFS = f"s[{SRD_C}:{SRD_C + 3}]"


STB3 = 0x1C000
sCSB = S_FREE + 39
P3 = int(os.environ.get('P3', '0'))
PMID = int(os.environ.get('PMID', '14'))
PROLL = int(os.environ.get('PROLL', '22'))
MBOX = 2 * XBUF + 1024
vFL1 = 15


def cand_addr(a, flag_off):
    a(f"""
    s_mul_i32 s{sF0}, s{sN0}, {FL_STRIDE}
    s_add_u32 s{sF0}, s{sF0}, {WS_FLAGS + flag_off}
    s_cmp_lt_u32 s{sN0}, {NSEG}
    s_cselect_b32 s{sF0}, s{sF0}, {WS_ZERO}
    s_mul_i32 s{sF1}, s{sN1}, {FL_STRIDE}
    s_add_u32 s{sF1}, s{sF1}, {WS_FLAGS + flag_off + NSEG * FL_STRIDE}
    s_cmp_lt_u32 s{sN1}, {NSEG}
    s_cselect_b32 s{sF1}, s{sF1}, {WS_ZERO}
    """)


def sample2(a):
    a(f"buffer_load_dword v{vFLV}, v{vFLA}, {WS}, s{sF0} offen sc1")
    a(f"buffer_load_dword v{vFL1}, v{vFLA}, {WS}, s{sF1} offen sc1")


def decide(a, prio=1):
    a(f"v_cmp_eq_u32 vcc, 0, v{vFLV}")
    a(f"v_cmp_eq_u32 s[{sE}:{sE + 1}], 0, v{vFL1}")
    m = ["vcc", f"s[{sE}:{sE + 1}]"]
    a(f"s_cmp_eq_u64 {m[1 - prio]}, 0")
    a(f"s_cselect_b32 s{sDEC}, {2 - prio}, 0")
    a(f"s_cmp_eq_u64 {m[prio]}, 0")
    a(f"s_cselect_b32 s{sDEC}, {1 + prio}, s{sDEC}")


def take(dec, step, step1=None):
    return [f"s_cmp_eq_u32 s{dec}, 2",
            f"s_cselect_b32 s{sNL}, 1, 0",
            f"s_cselect_b32 s{sNS}, s{sN1}, s{sN0}",
            f"s_cselect_b32 s{S_TMP}, {step if step1 is None else step1}, 0",
            f"s_add_u32 s{sN1}, s{sN1}, s{S_TMP}",
            f"s_cmp_eq_u32 s{dec}, 1",
            f"s_cselect_b32 s{S_TMP}, {step}, 0",
            f"s_add_u32 s{sN0}, s{sN0}, s{S_TMP}",
            f"s_lshl_b32 s{sNO}, s{sNL}, 6",
            f"s_add_u32 s{sNO}, s{sNO}, s{sNS}"]


def poll2(a, name, abort, flag_off, prio=1):
    cand_addr(a, flag_off)
    L = a.newlabel(name)
    a(f"s_mov_b32 s{S_SPIN}, 0")
    a.label(L)
    sample2(a)
    spin_check(a, abort)
    decide(a, prio)
    a(f"s_cmp_lg_u32 s{sDEC}, 0")
    a(f"s_cbranch_scc1 {L}d")
    a(f"s_sleep {SLP}")
    a(f"s_branch {L}")
    a.label(L + "d")


def staged_loop(a, name, abort, done, xbase, xlayer, flag_off, extra_loads, compute, out_flag, nst, vMB, laysel=None, waited=False, epi=None, early=None, pub=None):
    crit = [f"s_cmp_eq_u32 s{sDEC}, 2", f"s_cselect_b32 s{sNX}, s{sX1}, s{sX0}",
            f"s_cmp_lg_u32 s{sDEC}, 0", f"s_cselect_b32 s{SRD_C + 2}, {WS_BYTES}, 0"]
    adv_x = [f"s_cmp_eq_u32 s{sDEC}, 2", f"s_cselect_b32 s{S_TMP}, {X_SEG}, 0", f"s_add_u32 s{sX1}, s{sX1}, s{S_TMP}",
             f"s_cmp_eq_u32 s{sDEC}, 1", f"s_cselect_b32 s{S_TMP}, {X_SEG}, 0", f"s_add_u32 s{sX0}, s{sX0}, s{S_TMP}"]

    def dma_ops(srd_):
        ops = []
        for i in range(9):
            pre = []
            if i % 4 == 0:
                pre = [f"s_add_u32 m0, s{sOB}, {i * 1024}", f"s_add_u32 s{sO2}, s{sNX}, {i * 1024}"]
            ops.append(pre + [f"buffer_load_dwordx4 v{vL16}, {srd_}, s{sO2} offen offset:{(i % 4) * 1024} lds"])
        return ops

    def post():
        a(f"v_mov_b32 v{vT0}, s{sDEC}")
        a(f"ds_write_b32 v{vMB}, v{vT0}")
        a.wait(lg=0)

    def publish():
        a(f"s_cmp_lg_u32 s{sPEND}, 0")
        a(f"s_cselect_b64 exec, {pub[1] if pub else 1}, 0")
        a(f"buffer_store_dword v{vONE}, v{pub[0] if pub else vZERO}, {WS}, s{sPEND} offen sc1")
        a("s_mov_b64 exec, -1")
        a(f"s_mov_b32 s{sPEND}, 0")

    def cur_from_next():
        a(f"s_mov_b32 s{sCL}, s{sNL}")
        a(f"s_mov_b32 s{sCS}, s{sNS}")
        a(f"s_mov_b32 s{sCO}, s{sNO}")

    def roll():
        Ls = a.newlabel(name + "_ns")
        a(f"s_cmp_lg_u32 s{S_WAVE}, 0")
        a(f"s_cbranch_scc1 {Ls}")
        sn = a.snap()
        cand_addr(a, flag_off)
        sample2(a)
        a.restore(sn)
        a.label(Ls)

    a(f"""
    s_mov_b32 s{sN0}, 0
    s_mov_b32 s{sN1}, 0
    s_mov_b32 s{sLEFT}, {2 * NSEG}
    s_mul_i32 s{sWQ}, s{S_WAVE}, 9216
    s_mov_b32 s{sBUF}, {XBUF}
    s_mov_b32 s{sOB}, s{sWQ}
    s_mov_b32 s{sPEND}, 0
    s_mov_b32 s{SRD_C}, s{SRD_WS}
    s_mov_b32 s{SRD_C + 1}, s{SRD_WS + 1}
    s_mov_b32 s{SRD_C + 2}, 0
    s_mov_b32 s{SRD_C + 3}, 0x00020000
    v_mov_b32 v{vMB}, {MBOX}
    s_add_u32 s{sX0}, s{sWQ}, {xbase}
    s_add_u32 s{sX1}, s{sWQ}, {xbase + xlayer}
    """)
    if laysel is not None:
        a(f"s_cmp_eq_u32 s{laysel}, 0")
        a(f"s_cselect_b32 s{sN0}, 0, {NSEG}")
        a(f"s_cselect_b32 s{sN1}, {NSEG}, 0")
        a(f"s_mov_b32 s{sLEFT}, {NSEG}")
    a(f"ds_write2_b32 v{vMB}, v{vZERO}, v{vZERO} offset0:0 offset1:1")
    a.wait(lg=0)
    if not waited:
        dbg_wait(a, DB_POOL, N_POOL, vT0, vT1, abort, name + "_ini")
    trace(a, vT0, vT1)
    prof_init(a)
    if PROF == 3:
        a("s_memtime s[84:85]")
        a.force_wait(lg=0)
    a(f"s_branch {name}_idle0")
    head = name + "_item"
    a.label(head)
    a.restore(([], []))
    prof_begin(a)
    a.force_wait(vm=nst)
    if EARLYF and (laysel is not None or EARLYF > 1):
        a(f"s_cmp_lt_u32 s{sPEND}, {NSEG * FL_STRIDE}")
        a(f"s_cbranch_scc1 {name}_defer")
        a.force_wait(vm=0)
        publish()
    a.label(name + "_defer")
    prof_end(a, 0)
    a(f"s_cmp_lg_u32 s{S_WAVE}, 0")
    a(f"s_cbranch_scc1 {name}_nw0")
    decide(a)
    post()
    a.label(name + "_nw0")
    prof_begin(a)
    a("s_barrier")
    prof_end(a, 1)
    a(f"ds_read_b32 v{vT1}, v{vMB}")
    a(f"""
    v_xor_b32 v{vMB}, 4, v{vMB}
    s_xor_b32 s{sBUF}, s{sBUF}, {XBUF}
    s_xor_b32 s{sOB}, s{sOB}, {XBUF}
    s_xor_b32 s{sSB}, s{sSB}, 0x2000
    s_xor_b32 s{sCSB}, s{sCSB}, 0x2000
    s_sub_u32 s{sLEFT}, s{sLEFT}, 1
    """)
    if epi:
        early()
        a(f"s_cmp_eq_u32 s{sPEND}, 0")
        a(f"s_cbranch_scc1 {name}_noepi")
        lg = list(a.lgq)
        epi()
        assert a.lgq == lg or not a.lgq
        a.lgq = lg
        a.label(name + "_noepi")
    a.vmq = [(frozenset(), "st")] * nst
    ex = extra_loads(PFS)
    tk = take(sDEC, 1)
    pre = ([f"v_readfirstlane_b32 s{sDEC}, v{vT1}"] + crit, [tk[:5], tk[5:], ex[0][:-1], adv_x[:3], adv_x[3:]] if os.environ.get('BSPLIT', '1') == '1' else [tk, ex[0][:-1], adv_x, [], []])
    ex[0] = ex[0][-1:]

    def mid():
        prof_begin(a) if PROF == 1 else None
        a.wait_tag("st")
        prof_end(a, 2) if PROF == 1 else None
        publish()

    compute(pre, dma_ops(PFS), ex, mid, roll)
    out_flag()
    trace_at(a, sCO, vT0, vZERO)
    if name.startswith("Lp"):
        stamp_max(a, 9, vT0, vT1, (sCO, 1)) if DBGT == 2 else None
    cur_from_next()
    if TRACE == 1:
        a.force_wait(vm=0)
        trace(a, vT0, vT1)
        a.force_wait(vm=0)
    a(f"s_min_u32 s{sDEC}, s{sDEC}, s{sLEFT}")
    a(f"s_cmp_lg_u32 s{sDEC}, 0")
    a(f"s_cbranch_scc1 {head}")
    roll()
    a.force_wait(vm=0)
    publish()
    a(f"s_cmp_eq_u32 s{sLEFT}, 0")
    a(f"s_cbranch_scc1 {name}_end")
    a(f"s_cmp_lg_u32 s{S_WAVE}, 0")
    a(f"s_cbranch_scc1 {name}_nw1")
    decide(a)
    a(f"s_cmp_lg_u32 s{sDEC}, 0")
    a(f"s_cbranch_scc1 {name}_got")
    a.label(name + "_idle0")
    a.restore(([], []))
    a(f"s_cmp_lg_u32 s{S_WAVE}, 0")
    a(f"s_cbranch_scc1 {name}_nw1")
    p3_begin(a)
    poll2(a, name + "_pl", abort, flag_off)
    p3_end(a, 3)
    a.label(name + "_got")
    post()
    a.label(name + "_nw1")
    a("s_barrier")
    a(f"ds_read_b32 v{vT1}, v{vMB}")
    a(f"v_xor_b32 v{vMB}, 4, v{vMB}")
    a(f"v_readfirstlane_b32 s{sDEC}, v{vT1}")
    a(f"s_cmp_eq_u32 s{sDEC}, 0")
    a(f"s_cbranch_scc1 {abort}")
    seq(a, crit, take(sDEC, 1), adv_x, dma_ops(WS), extra_loads(WS))
    cur_from_next()
    roll()
    a.force_wait(vm=0)
    if PROF:
        a("s_add_u32 s96, s96, 1000")
    a(f"s_branch {head}")
    a.label(name + "_end")
    if PROF == 3:
        a("s_memtime s[86:87]")
        a.force_wait(lg=0)
        a("s_sub_u32 s97, s86, s84")
    prof_dump(a, vT0, vT1)
    a(f"s_branch {done}")


HPUB = int(os.environ.get("HPUB", "12"))
H1 = int(os.environ.get("H1", "6"))
H2 = int(os.environ.get("H2", "30"))


def _flat(x):
    if isinstance(x, (list, tuple)):
        return [z for y in x for z in _flat(y)]
    return [x]


SCRATCH = 0x20000
WINS = [int(x) for x in os.environ.get("WIN", "1,18").split(",")]
GAP = int(os.environ.get("GAP", "5"))
FAST2 = int(os.environ.get("FAST2", "0"))
LOOKS = [int(x) for x in os.environ.get("LOOKS", "13,30").split(",")]


def eager_loop(a, name, abort, done, xbase, xlayer, flag_off, extra, compute, out_flag, nst, vMB, laysel, pub=None,
               hpos=None, toggles=(), late_extra=False):
    hp = hpos[0] if hpos else HPUB
    sISS, sACT, sWM, sEXT, sWS = sPF, sLEFT, sNX + 0, sE, sE + 1
    sWM = sSELX
    sEXM = 76
    vMV = vFL1
    pa, pm = pub if pub else (vZERO, 1)
    kind, xfn = extra
    sLOOK, sLF = sN0, sN1
    tails = []

    def publish():
        a(f"s_cmp_lg_u32 s{sPEND}, 0")
        a(f"s_cselect_b64 exec, {pm}, 0")
        a(f"buffer_store_dword v{vONE}, v{pa}, {WS}, s{sPEND} offen sc1")
        a("s_mov_b64 exec, -1")
        a(f"s_mov_b32 s{sPEND}, 0")

    def pieces(srd_, sbase):
        ops = []
        for i in range(9):
            pre = []
            if i % 4 == 0:
                pre = [f"s_add_u32 m0, s{sbase}, {i * 1024}", f"s_add_u32 s{sO2}, s{sNX}, {i * 1024}"]
            ops.append(pre + [f"buffer_load_dwordx4 v{vL16}, {srd_}, s{sO2} offen offset:{(i % 4) * 1024} lds"])
        return ops

    def extras(srd_, masked):
        if kind == "lds":
            return xfn(srd_, sWS if masked else sSB)
        ops = []
        for op in xfn(WS):
            op = list(op)
            if masked:
                op = op[:-1] + [f"s_mov_b64 exec, s[{sEXM}:{sEXM + 1}]", op[-1], "s_mov_b64 exec, -1"]
            ops.append(op)
        return ops

    def next_addr():
        a(f"""
        s_mul_i32 s{sNX}, s{sNS}, {X_SEG}
        s_add_u32 s{sNX}, s{sNX}, s{sX0}
        s_mul_i32 s{sF0}, s{sNS}, {FL_STRIDE}
        s_add_u32 s{sF0}, s{sF0}, s{sF1}
        s_cmp_lt_u32 s{sNS}, {NSEG}
        s_cselect_b32 s{sF0}, s{sF0}, {WS_ZERO}
        """)

    a(f"""
    s_mov_b32 s{sNL}, s{laysel}
    s_mov_b32 s{sCL}, s{laysel}
    s_mul_i32 s{sWQ}, s{S_WAVE}, 9216
    s_mul_i32 s{sX0}, s{laysel}, {xlayer}
    s_add_u32 s{sX0}, s{sX0}, s{sWQ}
    s_add_u32 s{sX0}, s{sX0}, {xbase}
    s_mul_i32 s{sF1}, s{laysel}, {NSEG * FL_STRIDE}
    s_add_u32 s{sF1}, s{sF1}, {WS_FLAGS + flag_off}
    s_mov_b32 s{sNS}, 0
    s_mov_b32 s{sBUF}, {XBUF}
    s_mov_b32 s{sOB}, s{sWQ}
    s_mov_b32 s{sPEND}, 0
    s_mov_b32 s{sDEC}, 1
    s_mov_b32 s{SRD_C}, s{SRD_WS}
    s_mov_b32 s{SRD_C + 1}, s{SRD_WS + 1}
    s_mov_b32 s{SRD_C + 2}, 0
    s_mov_b32 s{SRD_C + 3}, 0x00020000
    v_mov_b32 v{vMB}, {MBOX}
    v_mov_b32 v{vT0}, -1
    """)
    a(f"ds_write_b32 v{vMB}, v{vT0}")
    a.wait(lg=0)
    trace6(a, vT0, vT1)
    init_wait(a, laysel, vT0, vT1, abort, name + "_ini")
    trace6(a, vT0, vT1)
    trace(a, vT0, vT1)
    prof_init(a)
    if PROF:
        a("s_memtime s[82:83]")
        a.force_wait(lg=0)
    next_addr()
    a(f"s_branch {name}_wait")
    a.label(name + "_head")
    a.restore(([], []))
    prof_begin(a)
    a.force_wait(vm=nst)
    prof_end(a, 0)
    a.label(name + "_head2")
    prof_begin(a)
    a("s_barrier")
    prof_end(a, 1)
    a(f"ds_read_b32 v{vMV}, v{vMB}")
    a(f"""
    s_xor_b32 s{sBUF}, s{sBUF}, {XBUF}
    s_xor_b32 s{sOB}, s{sOB}, {XBUF}
    s_mov_b32 s{sCS}, s{sNS}
    s_lshl_b32 s{sCO}, s{sCL}, 6
    s_add_u32 s{sCO}, s{sCO}, s{sCS}
    s_add_u32 s{sNS}, s{sNS}, 1
    s_mov_b32 s{sISS}, 0
    s_mov_b32 s{sEXT}, 0
    """)
    for r, x in toggles:
        a(f"s_xor_b32 s{r}, s{r}, {x}")
    next_addr()
    trace6(a, vT0, vT1)
    if TRACE == 4:
        a(f"s_xor_b32 s75, s{sCO}, 64")
        trace_at(a, 75, vT0, vZERO)

    class Rec:
        def __init__(self):
            self.steps = [[]]

        def __call__(self, text, tag=None):
            for line in text.strip().split("\n"):
                line = line.strip()
                if line:
                    self.steps[-1].append((line, tag))
    rec = Rec()
    compute(rec, lambda t: rec.steps.append([]))
    steps = rec.steps
    assert len(steps) == 37

    sR, sLIM = sACT, sISS

    def look(allowed):
        M = f"s[{sEXM}:{sEXM + 1}]"
        g = [[f"v_cmp_eq_u32 {M}, 1, v{vFLV}", f"v_cmp_eq_u32 vcc, 2, v{vFLV}"],
             [f"s_cmp_eq_u64 {M}, -1", f"s_cselect_b32 s{sR}, 1, 0"],
             [f"s_cmp_lg_u32 s{sR}, 0", "s_cselect_b64 exec, 1, 0", f"v_mov_b32 v{vMV}, s{sLOOK}", f"ds_write_b32 v{vMB}, v{vMV}",
              f"v_mov_b32 v{vFLV}, 2", "s_mov_b64 exec, -1"],
             [f"s_add_u32 s{sLOOK}, s{sLOOK}, s{sR}", f"s_mul_i32 s{sR}, s{sR}, {FL_STRIDE}", f"s_add_u32 s{sLF}, s{sLF}, s{sR}"]]
        if allowed:
            g += [[f"s_cmp_eq_u64 vcc, 0", f"s_cselect_b32 s{sR}, s{sLOOK}, 0x7fff"],
                  [f"s_cmp_le_u32 s{sR}, s{sLIM}", "s_cselect_b64 exec, -1, 0", f"v_mov_b32 v{vFLV}, 2",
                   f"buffer_load_dword v{vFLV}, v{vFLA}, {WS}, s{sLF} offen sc1", "s_mov_b64 exec, -1"]]
        return g

    looks = LOOKS if hpos is None else hpos[1]
    WIN = WINS if hpos is None else hpos[3]
    gap = GAP if hpos is None else hpos[2]
    xlate = 15
    deferred = []

    def emit_group(grp, st):
        a.auto = False
        seq(a, grp)
        a.auto = True
        st["vm"] += sum(1 for x in _flat(grp) if x.startswith("buffer_"))

    def emit_step(t, fifo, st):
        ins = steps[t]
        n = len(ins)
        for i, (line, tag) in enumerate(ins):
            a(line, tag)
            if t < 36 and line.startswith("v_mfma"):
                j = i + 1
                while j < n and not ins[j][0].startswith("v_mfma"):
                    j += 1
                room = gap - (j - i - 1)
                while fifo and (len(fifo[0]) <= room or (room >= gap - 1 and len(fifo[0]) > gap)):
                    grp = fifo.pop(0)
                    emit_group(grp, st)
                    room -= len(grp)

    def plan(t, fetched, wk, fifo, queue, st):
        if queue:
            n = 2 if (len(queue) > 33 - t or FAST2) else 1
            for _ in range(n):
                if queue and not (queue[0][0] and t <= xlate and late_extra):
                    fifo.append(_flat(queue.pop(0)[1]))
        if t in looks:
            fifo.extend(look(True))

    def fixed(t, fetched, wk, fifo, st):
        if t == hp:
            prof_begin(a)
            a.force_wait(vm=st["vm"])
            prof_end(a, 2)
            publish()
            st["vm"] += 1
        if not fetched and wk < len(WIN) and t == WIN[wk] - 2:
            a(f"ds_read_b32 v{vMV}, v{vMB}")

    def flush(fifo, st):
        while fifo:
            emit_group(fifo.pop(0), st)

    def run(t0):
        wk, fifo, st = 0, [], {"vm": 0}
        for t in range(36):
            emit_step(t, fifo, st)
            if wk < len(WIN) and t == WIN[wk]:
                flush(fifo, st)
                Lf = a.newlabel(name + "_f")
                a(f"v_readfirstlane_b32 s{S_TMP}, v{vMV}")
                if wk == 0:
                    a(f"s_add_u32 s{S_TMP + 1}, s{S_TMP}, 1")
                    a(f"s_max_i32 s{sLOOK}, s{S_TMP + 1}, s{sNS}")
                    a(f"s_add_u32 s{sLIM}, s{sNS}, 1")
                    a(f"s_min_u32 s{sLIM}, s{sLIM}, {NSEG - 1}")
                    a(f"s_mul_i32 s{sLF}, s{sLOOK}, {FL_STRIDE}")
                    a(f"s_add_u32 s{sLF}, s{sLF}, s{sF1}")
                    a(f"s_cmp_eq_u32 s{S_WAVE}, 0")
                    a(f"s_cselect_b32 s{S_TMP + 1}, s{sLOOK}, 0x7fff")
                    a(f"v_mov_b32 v{vFLV}, 2")
                    a(f"s_cmp_le_u32 s{S_TMP + 1}, s{sLIM}")
                    a(f"s_cselect_b64 exec, -1, 0")
                    a.auto = False
                    a(f"buffer_load_dword v{vFLV}, v{vFLA}, {WS}, s{sLF} offen sc1")
                    a.auto = True
                    st["vm"] += 1
                    a("s_mov_b64 exec, -1")
                    a.vmq = []
                a(f"s_cmp_ge_i32 s{S_TMP}, s{sNS}")
                a(f"s_cbranch_scc1 {Lf}")
                deferred.append((Lf, t, dict(st), a.snap(), list(a.win)))
                wk += 1
            plan(t, False, wk, fifo, [], st)
            fixed(t, False, wk, fifo, st)
        flush(fifo, st)
        finish(0)

    def run_fetch(t0, st):
        queue = [(False, op) for op in pieces(WS, sOB)] + [(kind == "reg", op) for op in extras(WS, False)]
        fifo = []
        plan(t0, True, 0, fifo, queue, st)
        fixed(t0, True, 0, fifo, st)
        for t in range(t0 + 1, 36):
            emit_step(t, fifo, st)
            plan(t, True, 0, fifo, queue, st)
            fixed(t, True, 0, fifo, st)
        fifo.extend(_flat(op) for _, op in queue)
        flush(fifo, st)
        finish(t0 + 100)

    def finish(fetched):
        if PROF == 2:
            a("s_memtime s[86:87]")
            a.force_wait(lg=0)
            a("s_sub_u32 s86, s86, s84")
            a("s_add_u32 s93, s93, s86")
            a("s_memtime s[84:85]")
            a.force_wait(lg=0)
        for line, tag in steps[36]:
            a(line, tag)
        if PROF == 2:
            a("s_memtime s[86:87]")
            a.force_wait(lg=0)
            a("s_sub_u32 s86, s86, s84")
            a("s_add_u32 s94, s94, s86")
        out_flag()
        trace_at(a, sCO, vT0, vZERO)
        if TRACE == 4:
            a(f"s_add_u32 s7, s{sCS}, 128")
            a(f"s_lshl_b32 s7, s7, 2")
            a(f"s_add_u32 s7, s7, s5")
            a(f"v_mov_b32 v{vT0}, {fetched}")
            a("s_mov_b64 exec, 1")
            a(f"buffer_store_dword v{vT0}, v{vZERO}, s[{SRD_WS}:{SRD_WS + 3}], s7 offen offset:12")
            a("s_mov_b64 exec, -1")
        a(f"s_branch {name}_{'head' if fetched else 'none'}")

    a.vmq = []
    if PROF == 2:
        a("s_memtime s[84:85]")
        a.force_wait(lg=0)
    run(0)
    for Lf, t, st, sn, win in deferred:
        a.label(Lf)
        a.restore(sn)
        a.win = list(win)
        run_fetch(t, st)
    a.label(name + "_none")
    a.restore(([], []))
    a.force_wait(vm=0)
    publish()
    a(f"s_cmp_ge_u32 s{sNS}, {NSEG}")
    a(f"s_cbranch_scc1 {name}_end")
    a.label(name + "_wait")
    a.restore(([], []))
    a(f"s_mov_b32 s{S_SPIN}, 0")
    a(f"s_cmp_lg_u32 s{S_WAVE}, 0")
    a(f"s_cbranch_scc1 {name}_wl")
    p3_begin(a)
    a.label(name + "_wp")
    a(f"buffer_load_dword v{vFLV}, v{vFLA}, {WS}, s{sF0} offen sc1")
    spin_check(a, name + "_giveup")
    a(f"v_cmp_eq_u32 vcc, 0, v{vFLV}")
    a(f"s_cbranch_vccz {name}_wok")
    a(f"s_sleep {SLP}")
    a(f"s_branch {name}_wp")
    a.label(name + "_giveup")
    a(f"v_mov_b32 v{vT0}, -2")
    a(f"ds_write_b32 v{vMB}, v{vT0}")
    a.force_wait(lg=0)
    a(f"s_branch {abort}")
    a.label(name + "_wok")
    p3_end(a, 3)
    a(f"v_mov_b32 v{vT0}, s{sNS}")
    a(f"ds_write_b32 v{vMB}, v{vT0}")
    a(f"s_branch {name}_go")
    a.label(name + "_wl")
    a(f"ds_read_b32 v{vMV}, v{vMB}")
    a(f"s_add_u32 s{S_SPIN}, s{S_SPIN}, 1")
    a(f"s_cmp_gt_u32 s{S_SPIN}, {SPIN_MAX * 16}")
    a(f"s_cbranch_scc1 {abort}")
    a(f"v_readfirstlane_b32 s{S_TMP}, v{vMV}")
    a(f"s_cmp_eq_u32 s{S_TMP}, -2")
    a(f"s_cbranch_scc1 {abort}")
    a(f"s_cmp_ge_i32 s{S_TMP}, s{sNS}")
    a(f"s_cbranch_scc1 {name}_go")
    a("s_sleep 1")
    a(f"s_branch {name}_wl")
    a.label(name + "_go")
    a.restore(([], []))
    if PROF:
        a("s_add_u32 s96, s96, 1000")
    a.auto = False
    seq(a, pieces(WS, sOB), extras(WS, False))
    a.auto = True
    prof_begin(a)
    a.force_wait(vm=0, lg=0)
    prof_end(a, 5)
    a(f"s_branch {name}_head2")
    a.label(name + "_end")
    if PROF:
        a("s_memtime s[86:87]")
        a.force_wait(lg=0)
        a("s_sub_u32 s97, s86, s82")
    prof_dump(a, vT0, vT1)
    a(f"s_branch {done}")
    for tl in tails:
        a.restore(([], []))
        tl()


WB = 112


def MF32(acc, A, B, C=None):
    return f"v_mfma_f32_32x32x16_bf16 {vr(acc, 16)}, {A}, {B}, {vr(acc, 16) if C is None else C}"


def load_cols(a, srdb, vad, vsel, items, nt=os.environ.get("NT_P", "")):
    D = 28
    n = len(items)
    for i in range(n + D):
        if i < n:
            r = 16 + 2 * (i % 48)
            a(f"s_add_u32 s{S_TMP}, s{sK1}, {items[i][0]}")
            a(f"buffer_load_dword v{r}, v{vad}, s[{srdb}:{srdb + 3}], s{S_TMP} offen {nt}")
            a(f"buffer_load_dword v{r + 1}, v{vad + 1}, s[{srdb}:{srdb + 3}], s{S_TMP} offen {nt}")
        j = i - D
        if j >= 0:
            r = 16 + 2 * (j % 48)
            a(f"v_perm_b32 v{items[j][1]}, v{r + 1}, v{r}, v{vsel}")


def feat_of_row(a, dst, row, t1):
    a(f"""
    v_and_b32 v{dst}, 19, v{row}
    v_bfe_u32 v{t1}, v{row}, 2, 1
    v_lshl_add_u32 v{dst}, v{t1}, 3, v{dst}
    v_bfe_u32 v{t1}, v{row}, 3, 1
    v_lshl_add_u32 v{dst}, v{t1}, 2, v{dst}
    """)


def sel_of_parity(a, vsel, par, t1):
    a(f"""
    v_mov_b32 v{vsel}, s{sSELX}
    v_mov_b32 v{t1}, s{sSELY}
    v_cmp_eq_u32 vcc, 1, v{par}
    v_cndmask_b32 v{vsel}, v{vsel}, v{t1}, vcc
    """)


def gemm32(a, acc, swap, vXA, ring, pre, dma, extra, mid, roll, init=None, fill=None, issued=False):
    nr = len(ring)

    def rd(t):
        return f"ds_read_b128 {vr(ring[t % nr], 4)}, v{vXA} offset:{t * 1024}"
    if PROF == 2:
        a("s_memtime s[84:85]")
    if not issued:
        for t in range(nr - 1):
            a(rd(t))
    fill = list(fill or [])
    crit, blocks = pre
    blocks = list(blocks)
    vm = list(dma) + list(extra)
    for t in range(36):
        x, w = vr(ring[t % nr], 4), vr(WB + 4 * t, 4)
        a(MF32(acc, x if swap else w, w if swap else x, "0" if (t == 0 and not init) else None))
        if t + nr - 1 < 36:
            a(rd(t + nr - 1))
        k = 3 if t < 16 else 4
        if t == 1:
            seq(a, crit); k = 0
        elif t >= 2 and t % 2 == 1 and blocks:
            k = min(3, 5 - len(blocks[0]))
            seq(a, blocks.pop(0))
        elif t >= 2 and vm and (len(vm) > len(extra) or len(blocks) <= 2):
            assert len(vm) > len(extra) or len(blocks) <= 2
            seq(a, vm.pop(0)); k -= 2
        while fill and k > 0:
            seq(a, fill.pop(0)); k -= 1
        if t == 10:
            mid()
        if t == 16:
            roll()
    assert not vm and not fill and not blocks
    if PROF == 2:
        a("s_memtime s[86:87]")
        a.force_wait(lg=0)
        a("s_sub_u32 s86, s86, s84")
        a("s_add_u32 s97, s97, s86")


VMDENSE = int(os.environ.get("VMDENSE", "1"))
STB = 0x14000


def stats_dma(base, srd_, sdest=None):
    sd = sSB if sdest is None else sdest
    pre = [f"s_mul_i32 s{sO3}, s{sNL}, {2 * ST_BYTES}", f"s_mul_i32 s{S_TMP + 1}, s{sNS}, {ST_SEG}",
           f"s_add_u32 s{sO3}, s{sO3}, s{S_TMP + 1}", f"s_add_u32 s{sO3}, s{sO3}, {base + 4096}"]
    return [pre + [f"s_add_u32 m0, s{sd}, 4096", f"s_nop 0",
                   f"buffer_load_dwordx4 v{vL16}, {srd_}, s{sO3} offen lds"],
            [f"s_add_u32 m0, s{sd}, s{sW1K}", f"s_sub_u32 s{sO3}, s{sO3}, 4096", f"s_add_u32 s{sO3}, s{sO3}, s{sW1K}",
             f"buffer_load_dwordx4 v{vL16}, {srd_}, s{sO3} offen lds"]]


def stats_loads(base, STR, vaddr, srd_):
    pre = [f"s_mul_i32 s{sO3}, s{sNL}, {2 * ST_BYTES}", f"s_mul_i32 s{S_TMP + 1}, s{sNS}, {ST_SEG}",
           f"s_add_u32 s{sO3}, s{sO3}, s{S_TMP + 1}", f"s_add_u32 s{sO3}, s{sO3}, {base}"]
    ops = [[f"buffer_load_dwordx4 {vr(STR + 4 * i, 4)}, v{vaddr}, {srd_}, s{sO3} offen offset:{512 * i}"] for i in range(6)]
    ops[0] = pre + ops[0]
    return ops


def stats_math(STR, RS, MR):
    ops = []
    for i in range(1, 5):
        ops += [f"v_add_f32 v{STR + j}, v{STR + j}, v{STR + 4 * i + j}" for j in range(4)]
    S1, S2 = STR, STR + 1
    ops += [f"v_add_f32 v{S1}, v{S1}, v{STR + 2}", f"v_add_f32 v{S2}, v{S2}, v{STR + 3}",
            f"v_mov_b32 v{STR + 2}, v{S1}", f"v_mov_b32 v{STR + 3}, v{S2}",
            f"v_permlane32_swap_b32 v{S1}, v{STR + 2}", f"v_permlane32_swap_b32 v{S2}, v{STR + 3}",
            f"v_add_f32 v{S1}, v{S1}, v{STR + 2}", f"v_add_f32 v{S2}, v{S2}, v{STR + 3}",
            f"v_mul_f32 v{S1}, {hex(f32bits(1.0 / 576))}, v{S1}",
            f"v_mul_f32 v{S2}, {hex(f32bits(1.0 / 576))}, v{S2}",
            f"v_fma_f32 v{S2}, -v{S1}, v{S1}, v{S2}",
            f"v_max_f32 v{S2}, 0, v{S2}",
            f"v_add_f32 v{S2}, {hex(f32bits(1e-5))}, v{S2}",
            f"v_rsq_f32 v{RS}, v{S2}",
            f"v_mul_f32 v{MR}, v{S1}, v{RS}"]
    return ops


def role_p(a, abort, done):
    lane_setup(a, 18)
    vXA, vSTA, vCS, vA0, vLDS, vO = 9, 10, 11, 12, 12, 14
    vMB = 108
    ACC, RING, STR, LN = 16, 32, 56, 76
    TT = 96
    CS = 80
    a(f"""
    s_lshr_b32 s{sK2}, s{S_ROLE}, 5
    s_and_b32 s{sK3}, s{S_ROLE}, 31
    s_lshl_b32 s{S_TMP}, s{sK2}, 3
    s_add_u32 s{S_TMP}, s{S_TMP}, {KA_WQ}
    s_load_dwordx2 s[{SRD_A}:{SRD_A + 1}], s[0:1], s{S_TMP}
    s_mov_b32 s{SRD_A + 2}, {576 * 8192}
    s_mov_b32 s{SRD_A + 3}, 0x00020000
    s_lshl_b32 s{sK1}, s{sK3}, 8
    s_lshl_b32 s{S_TMP}, s{S_WAVE}, 6
    s_add_u32 s{sK1}, s{sK1}, s{S_TMP}
    v_bfe_u32 v{vSTA}, v{vL16}, 4, 5
    """)
    feat_of_row(a, vO, vSTA, vT0)
    if RV2:
        a(f"v_and_b32 v{vT0}, 1, v{vO}")
        a(f"v_lshrrev_b32 v{vO}, 1, v{vO}")
        a(f"v_lshl_add_u32 v{vO}, v{vT0}, 4, v{vO}")
    a(f"""
    v_bfe_u32 v{vT0}, v{vL16}, 8, 1
    {f"v_lshl_add_u32 v{vT1}, v{vT0}, 4, v{vC}" if RV2 else f"v_lshl_add_u32 v{vT1}, v{vC}, 1, v{vT0}"}
    s_cmp_eq_u32 s{sK2}, 2
    s_cselect_b64 vcc, -1, 0
    v_cndmask_b32 v{vO}, v{vO}, v{vT1}, vcc
    v_and_b32 v{vT0}, 1, v{vO}
    """)
    sel_of_parity(a, vCS, vT0, vT1)
    a(f"""
    v_and_b32 v{vO}, 30, v{vO}
    v_lshrrev_b32 v{vT0}, 9, v{vL16}
    v_lshlrev_b32 v{vA0}, 16, v{vT0}
    v_lshl_add_u32 v{vA0}, v{vO}, 1, v{vA0}
    v_add_u32 v{vA0 + 1}, 8192, v{vA0}
    v_lshlrev_b32 v{vSTA}, 4, v{vSTA}
    v_mul_u32_u24 v{vT1}, 2560, v{vT0}
    v_add_u32 v{vSTA}, v{vSTA}, v{vT1}
    v_add_u32 v{vSTA}, {STB3}, v{vSTA}
    s_lshl_b32 s{sW1K}, s{S_WAVE}, 10
    v_bfe_u32 v{vT1}, v{vL16}, 8, 1
    v_lshlrev_b32 v{vO}, 10, v{vT1}
    v_lshl_add_u32 v{vO}, v{vC}, 4, v{vO}
    v_lshl_add_u32 v{vO}, v{vT0}, 8, v{vO}
    """)
    a.force_wait(lg=0)
    a(f"s_and_b32 s{SRD_A + 1}, s{SRD_A + 1}, 0xffff")
    load_cols(a, SRD_A, vA0, vCS, [((16 * t + 2 * d) * 8192, WB + 4 * t + d) for t in range(36) for d in range(4)])
    a(f"""
    s_mul_i32 s{sK4}, s{sK2}, {QKV_M}
    s_lshl_b32 s{S_TMP}, s{sK3}, 13
    s_add_u32 s{sK4}, s{sK4}, s{S_TMP}
    s_lshl_b32 s{S_TMP}, s{S_WAVE}, 11
    s_add_u32 s{sK4}, s{sK4}, s{S_TMP}
    s_add_u32 s{sK4}, s{sK4}, {WS_QKV}
    s_lshl_b32 s{sK1}, s{sK3}, 9
    s_lshl_b32 s{S_TMP}, s{sK2}, 7
    s_add_u32 s{sK1}, s{sK1}, s{S_TMP}
    s_lshl_b32 s{S_TMP}, s{S_WAVE}, 2
    s_add_u32 s{sK1}, s{sK1}, s{S_TMP}
    s_add_u32 s{sK1}, s{sK1}, {WS_FLAGS + FL_QKV}
    v_mov_b32 v{RING}, 0x3f803f80
    v_mov_b32 v{RING + 1}, 0x3f803f80
    v_mov_b32 v{RING + 2}, 0x3f803f80
    v_mov_b32 v{RING + 3}, 0x3f803f80
    s_lshl_b32 s{S_TMP}, s{S_WAVE}, 8
    s_add_u32 s{S_TMP}, s{S_TMP}, {3 * XBUF}
    v_bfe_u32 v{vT0}, v{vL16}, 4, 5
    v_lshl_add_u32 v{vLDS}, v{vT0}, 2, s{S_TMP}
    v_lshrrev_b32 v{vT0}, 9, v{vL16}
    v_lshl_add_u32 v{vLDS + 1}, v{vT0}, 4, s{S_TMP}
    s_cmp_eq_u32 s{sK2}, 2
    s_cbranch_scc1 Lp_v
    """)
    for swap in (0, 1):
        nm = "LpV" if swap else "LpQ"
        if swap:
            a.label("Lp_v")
            a.restore(([], []))
        for t in range(36):
            w, o = vr(WB + 4 * t, 4), vr(RING, 4)
            a(MF32(ACC if swap else CS, o if swap else w, w if swap else o, "0" if t == 0 else None))
        if swap:
            a(f"v_mov_b32 v{vCS}, v{ACC}")

        def early():
            a(f"v_add_u32 v{vXA}, s{sBUF}, v{vL16}")
            a(f"v_add_u32 v{vT0}, s{sCSB}, v{vSTA}")
            for t in range(3):
                a(f"ds_read_b128 {vr(RING + 4 * t, 4)}, v{vXA} offset:{t * 1024}")
            for i in range(5):
                a(f"ds_read_b128 {vr(STR + 4 * i, 4)}, v{vT0} offset:{512 * i}")

        def compute(pre, dma, extra, mid, roll, swap=swap):
            early()
            sm = [None] * 3 + stats_math(STR, LN, LN + 1)
            if swap:
                sm += [f"ds_write2_b32 v{vLDS}, v{LN}, v{LN + 1} offset0:0 offset1:32"]
                sm += [f"ds_read_b128 {vr(LN + 4 * i, 4)}, v{vLDS + 1} offset:{(i >> 2) * 128 + (i & 3) * 32}" for i in range(8)]
                sm += [None] * 9 + [f"v_mul_f32 v{LN + 16 + i}, v{vCS}, v{LN + 16 + i}" for i in range(16)]
            else:
                sm += [f"v_mul_f32 v{TT + i}, v{LN + 1}, v{CS + i}" for i in range(16)]
            sm += [f"s_mul_i32 s{sO1}, s{sCL}, {3 * QKV_M}", f"s_lshl_b32 s{sK3}, s{sCS}, 18",
                   f"s_add_u32 s{sO1}, s{sO1}, s{sK3}", f"s_add_u32 s{sO1}, s{sO1}, s{sK4}"]
            gemm32(a, ACC, swap, vXA, [RING + 4 * i for i in range(4)], pre, dma, extra, mid, roll, fill=sm, issued=True)
            epi()

        def epi(swap=swap):
            for k in range(2):
                regs = [0, 1, 2, 3, 8, 9, 10, 11] if swap else list(range(8))
                regs = [r + (4 if swap else 8) * k for r in regs]
                for i in regs[::2]:
                    if swap:
                        a(f"v_pk_fma_f32 {vr(ACC + i, 2)}, {vr(ACC + i, 2)}, {vr(LN + i, 2)}, {vr(LN + 16 + i, 2)} neg_lo:[0,0,1] neg_hi:[0,0,1]")
                    else:
                        a(f"v_pk_fma_f32 {vr(ACC + i, 2)}, {vr(ACC + i, 2)}, {vr(LN, 2)}, {vr(TT + i, 2)} op_sel_hi:[1,0,1] neg_lo:[0,0,1] neg_hi:[0,0,1]")
                o = RING + 16 + 4 * k
                for i in range(4):
                    a(f"v_cvt_pk_bf16_f32 v{o + i}, v{ACC + regs[2 * i]}, v{ACC + regs[2 * i + 1]}")
                a(f"buffer_store_dwordx4 {vr(o, 4)}, v{vO}, {WS}, s{sO1} offen offset:{512 * k} sc1", tag="st")

        def out_flag():
            a(f"s_mul_i32 s{sPEND}, s{sCO}, {FL_STRIDE}")
            a(f"s_add_u32 s{sPEND}, s{sPEND}, s{sK1}")

        a(f"s_mov_b32 s{sSB}, {STB3}")
        a(f"s_mov_b32 s{sCSB}, 0x2000")
        staged_loop(a, nm, abort, done, WS_X + X_BYTES, 2 * X_BYTES, FL_XB,
                    lambda sr_: stats_dma(WS_ST + ST_BYTES, sr_), compute, out_flag, 2, vMB if swap else 78)


def role_p2(a, abort, done):
    lane_setup(a, 18)
    vXA, vSTA, vCS, vLDS, vO, vFO = 9, 10, 11, 12, 14, 185
    vMB = 184
    ACC0, ACC1, RING, STR, CS0, TT0, LNV, LN, W1T, OUT = 16, 32, 48, 64, 84, 100, 116, 148, 152, 188
    CS1, TT1 = LNV, LNV + 16
    GA, RB = 16, 17
    SRD_B2 = SRD_B

    def w0(t):
        return ar(4 * t, 4)

    def w1(t):
        return ar(144 + 4 * t, 4) if t < 28 else vr(W1T + 4 * (t - 28), 4)

    a(f"""
    s_cmp_ge_u32 s{S_ROLE}, 48
    s_cselect_b32 s{sLAYS}, 1, 0
    s_cselect_b32 s{S_TMP}, 48, 0
    s_sub_u32 s{S_ROLE}, s{S_ROLE}, s{S_TMP}
    s_cmp_lt_u32 s{S_ROLE}, 32
    s_cselect_b32 s{sK2}, 1, 0
    s_sub_u32 s{S_TMP}, s{S_ROLE}, 32
    s_lshl_b32 s{S_TMP}, s{S_TMP}, 1
    s_cmp_eq_u32 s{sK2}, 1
    s_cselect_b32 s{sK3}, s{S_ROLE}, s{S_TMP}
    s_cselect_b32 s{S_TMP}, {KA_WK}, {KA_WQ}
    s_cselect_b32 s{S_TMP + 1}, {KA_WV}, {KA_WQ}
    s_load_dwordx2 s[{SRD_A}:{SRD_A + 1}], s[0:1], s{S_TMP}
    s_load_dwordx2 s[{SRD_B}:{SRD_B + 1}], s[0:1], s{S_TMP + 1}
    s_mov_b32 s{SRD_A + 2}, {576 * 8192}
    s_mov_b32 s{SRD_A + 3}, 0x00020000
    s_mov_b32 s{SRD_B + 2}, {576 * 8192}
    s_mov_b32 s{SRD_B + 3}, 0x00020000
    s_lshl_b32 s{sK1}, s{sK3}, 8
    s_mul_i32 s{S_TMP}, s{S_WAVE}, {16 * 8192}
    s_add_u32 s{sK1}, s{sK1}, s{S_TMP}
    s_cmp_eq_u32 s{sK2}, 1
    s_cselect_b32 s{S_TMP}, 0, 256
    s_add_u32 s{sK4}, s{sK1}, s{S_TMP}
    """)
    a.force_wait(lg=0)
    a(f"s_and_b32 s{SRD_A + 1}, s{SRD_A + 1}, 0xffff")
    a(f"s_and_b32 s{SRD_B + 1}, s{SRD_B + 1}, 0xffff")
    gate(a, 2, sLAYS, vT0, vT1, abort, "Lp2_gate")
    a(f"""
    v_lshrrev_b32 v{vT0}, 8, v{vL16}
    v_bfe_u32 v{vT1}, v{vL16}, 6, 2
    v_xor_b32 v{vT1}, v{vT1}, v{vT0}
    v_lshlrev_b32 v{vT1}, 6, v{vT1}
    v_and_b32 v{GA}, 0x30, v{vL16}
    v_add_u32 v{GA}, v{GA}, v{vT1}
    v_lshl_add_u32 v{GA}, v{vT0}, 13, v{GA}
    v_lshrrev_b32 v{vT0}, 2, v{vC}
    v_xor_b32 v{vT1}, s{S_WAVE}, v{vT0}
    v_lshlrev_b32 v{RB}, 6, v{vT1}
    v_lshrrev_b32 v{vT1}, 1, v{vG}
    v_lshl_add_u32 v{vT0}, v{vT1}, 3, v{vT0}
    v_lshl_add_u32 v{RB}, v{vT0}, 8, v{RB}
    v_and_b32 v{vT0}, 1, v{vG}
    v_lshl_add_u32 v{RB}, v{vT0}, 5, v{RB}
    v_and_b32 v{vT0}, 3, v{vC}
    v_lshl_add_u32 v{RB}, v{vT0}, 3, v{RB}
    v_add_u32 v{RB + 1}, 65536, v{RB}
    s_lshl_b32 s{sO1}, s{S_WAVE}, 12
    """)
    a.auto = False
    NCH, NR = 18, 8

    def dma(i):
        m, c = i // 9, i % 9
        src = (SRD_A, SRD_B)[m]
        a(f"s_add_u32 m0, s{sO1}, {(i % NR) * 16384}")
        for q in range(4):
            a(f"s_add_u32 s{S_TMP}, s{(sK1, sK4)[m]}, {(64 * c + 4 * q) * 8192}")
            a(f"buffer_load_dwordx4 v{GA}, s[{src}:{src + 3}], s{S_TMP} offen lds")
            if q < 3:
                a("s_add_u32 m0, m0, 1024")
    for i in range(NR - 1):
        dma(i)
    nissued = NR - 1
    for i in range(NCH):
        a(f"s_waitcnt vmcnt({4 * (nissued - 1 - i)})")
        a("s_barrier")
        if nissued < NCH:
            dma(nissued)
            nissued += 1
        m, c = i // 9, i % 9
        sl = i % NR
        for tp in range(4):
            t = 4 * c + tp
            dst = (w0, w1)[m](t)
            k, b0 = dst[0], int(dst[2:dst.index(":")])
            for sub in range(2):
                a(f"ds_read_b64_tr_b16 {k}[{b0 + 2 * sub}:{b0 + 2 * sub + 1}], v{RB + (sl >> 2)} offset:{(sl & 3) * 16384 + tp * 4096 + sub * 1024}")
        a("s_waitcnt lgkmcnt(0)")
    a("s_barrier")
    a.auto = True
    a.vmq, a.lgq = [], []
    a(f"""
    v_bfe_u32 v{vSTA}, v{vL16}, 4, 5
    v_lshrrev_b32 v{vT0}, 9, v{vL16}
    v_lshlrev_b32 v{vSTA}, 4, v{vSTA}
    v_mul_u32_u24 v{vT1}, 2560, v{vT0}
    v_add_u32 v{vSTA}, v{vSTA}, v{vT1}
    v_add_u32 v{vSTA}, {STB3}, v{vSTA}
    s_lshl_b32 s{sW1K}, s{S_WAVE}, 10
    v_bfe_u32 v{vT1}, v{vL16}, 8, 1
    v_lshlrev_b32 v{vO}, 10, v{vT1}
    v_lshl_add_u32 v{vO}, v{vC}, 4, v{vO}
    v_lshl_add_u32 v{vO}, v{vT0}, 8, v{vO}
    """)
    a(f"""
    s_lshl_b32 s{S_TMP}, s{sK3}, 13
    s_lshl_b32 s{S_TMP + 1}, s{S_WAVE}, 11
    s_add_u32 s{sK4}, s{S_TMP}, s{S_TMP + 1}
    s_add_u32 s{sK4}, s{sK4}, {WS_QKV}
    s_lshl_b32 s{sK1}, s{sK3}, 9
    s_lshl_b32 s{S_TMP}, s{S_WAVE}, 2
    s_add_u32 s{sK1}, s{sK1}, s{S_TMP}
    s_add_u32 s{sK1}, s{sK1}, {WS_FLAGS + FL_QKV}
    s_cmp_eq_u32 s{sK2}, 1
    s_cselect_b32 s{S_TMP}, {QKV_M}, 0
    s_cselect_b32 s{S_TMP + 1}, 128, 0
    s_add_u32 s{sK4}, s{sK4}, s{S_TMP}
    s_add_u32 s{sK1}, s{sK1}, s{S_TMP + 1}
    s_cmp_eq_u32 s{sK2}, 1
    s_cselect_b32 s{S_TMP}, 0, 384
    s_add_u32 s{S_TMP}, s{S_TMP}, 128
    v_lshrrev_b32 v{vFO}, 4, v{vL16}
    v_mul_lo_u32 v{vFO}, v{vFO}, s{S_TMP}
    v_mov_b32 v{RING}, 0x3f803f80
    v_mov_b32 v{RING + 1}, 0x3f803f80
    v_mov_b32 v{RING + 2}, 0x3f803f80
    v_mov_b32 v{RING + 3}, 0x3f803f80
    s_lshl_b32 s{S_TMP}, s{S_WAVE}, 8
    s_add_u32 s{S_TMP}, s{S_TMP}, {3 * XBUF}
    v_bfe_u32 v{vT0}, v{vL16}, 4, 5
    v_lshl_add_u32 v{vLDS}, v{vT0}, 2, s{S_TMP}
    v_lshrrev_b32 v{vT0}, 9, v{vL16}
    v_lshl_add_u32 v{vLDS + 1}, v{vT0}, 4, s{S_TMP}
    s_cmp_eq_u32 s{sK2}, 1
    s_cbranch_scc1 Lp2_kv
    """)
    for kv in (0, 1):
        nm = "LpKV" if kv else "LpQQ"
        if kv:
            a.label("Lp2_kv")
            a.restore(([], []))
        o = vr(RING, 4)
        for t in range(36):
            a(MF32(CS0, w0(t), o, "0" if t == 0 else None))
            if kv:
                a(MF32(ACC1, o, w1(t), "0" if t == 0 else None))
            else:
                a(MF32(CS1, w1(t), o, "0" if t == 0 else None))
        if kv:
            a(f"v_mov_b32 v{vCS}, v{ACC1}")
        d1 = QKV_M if kv else 8192

        def early(a):
            a(f"v_add_u32 v{vXA}, s{sBUF}, v{vL16}")
            a(f"v_add_u32 v{vT0}, s{sCSB}, v{vSTA}")
            for t in range(3):
                a(f"ds_read_b128 {vr(RING + 4 * t, 4)}, v{vXA} offset:{t * 1024}")
            for i in range(5):
                a(f"ds_read_b128 {vr(STR + 4 * i, 4)}, v{vT0} offset:{512 * i}")

        def compute(a, hook, kv=kv, d1=d1):
            early(a)
            sm = [None] * 3 + stats_math(STR, LN, LN + 1)
            sm += [f"v_mul_f32 v{TT0 + i}, v{LN + 1}, v{CS0 + i}" for i in range(16)]
            if kv:
                sm += [f"ds_write2_b32 v{vLDS}, v{LN}, v{LN + 1} offset0:0 offset1:32"]
                sm += [f"ds_read_b128 {vr(LNV + 4 * i, 4)}, v{vLDS + 1} offset:{(i >> 2) * 128 + (i & 3) * 32}" for i in range(8)]
                sm += [None] * 9 + [f"v_mul_f32 v{LNV + 16 + i}, v{vCS}, v{LNV + 16 + i}" for i in range(16)]
            else:
                sm += [f"v_mul_f32 v{TT1 + i}, v{LN + 1}, v{CS1 + i}" for i in range(16)]
            sm += [f"s_mul_i32 s{sO1}, s{sCL}, {3 * QKV_M}", f"s_lshl_b32 s{sK3}, s{sCS}, 18",
                   f"s_add_u32 s{sO1}, s{sO1}, s{sK3}", f"s_add_u32 s{sO1}, s{sO1}, s{sK4}"]
            ring = [RING + 4 * i for i in range(4)]
            nr = 4

            def rd(t):
                return f"ds_read_b128 {vr(ring[t % nr], 4)}, v{vXA} offset:{t * 1024}"
            fill = list(sm)
            for t in range(36):
                x = vr(ring[t % nr], 4)
                a(MF32(ACC0, w0(t), x, "0" if t == 0 else None))
                if t + nr - 1 < 36:
                    a(rd(t + nr - 1))
                k = 3
                while fill and k > 0:
                    seq(a, fill.pop(0)); k -= 1
                a(MF32(ACC1, x if kv else w1(t), w1(t) if kv else x, "0" if t == 0 else None))
                k = 4
                while fill and k > 0:
                    seq(a, fill.pop(0)); k -= 1
                hook(t)
            assert not fill
            a(f"s_add_u32 s{sK3}, s{sO1}, {d1}")
            for tile in range(2):
                ACC = (ACC0, ACC1)[tile]
                swap = kv and tile == 1
                TT = (TT0, TT1)[tile]
                for i in range(0, 16, 2):
                    if swap:
                        a(f"v_pk_fma_f32 {vr(ACC + i, 2)}, {vr(ACC + i, 2)}, {vr(LNV + i, 2)}, {vr(LNV + 16 + i, 2)} neg_lo:[0,0,1] neg_hi:[0,0,1]")
                    else:
                        a(f"v_pk_fma_f32 {vr(ACC + i, 2)}, {vr(ACC + i, 2)}, {vr(LN, 2)}, {vr(TT + i, 2)} op_sel_hi:[1,0,1] neg_lo:[0,0,1] neg_hi:[0,0,1]")
                for k in range(2):
                    ot = OUT + 8 * tile + 4 * k
                    for i in range(4):
                        if swap:
                            r = [0, 2, 8, 10][i] + 4 * k
                            a(f"v_cvt_pk_bf16_f32 v{ot + i}, v{ACC + r}, v{ACC + r + 1}")
                        else:
                            a(f"v_cvt_pk_bf16_f32 v{ot + i}, v{ACC + 4 * k + i}, v{ACC + 8 + 4 * k + i}")
                    a(f"buffer_store_dwordx4 {vr(ot, 4)}, v{vO}, {WS}, s{(sO1, sK3)[tile]} offen offset:{512 * k} sc1", tag="st")

        def out_flag():
            a(f"s_mul_i32 s{sPEND}, s{sCO}, {FL_STRIDE}")
            a(f"s_add_u32 s{sPEND}, s{sPEND}, s{sK1}")

        a(f"s_mov_b32 s{sSB}, {STB3}")
        a(f"s_mov_b32 s{sCSB}, 0x2000")
        eager_loop(a, nm, abort, done, WS_X + X_BYTES, 2 * X_BYTES, FL_XB,
                   ("lds", lambda sr_, sd: stats_dma(WS_ST + ST_BYTES, sr_, sd)), compute, out_flag, 4, vMB, sLAYS, pub=(vFO, 3),
                   toggles=((sSB, 0x2000), (sCSB, 0x2000)))


def role_awo(a, abort, done):
    lane_setup(a, 64)
    vXA, vSTO, vSEL, vA0, vRES = 9, 10, 11, 12, 14
    ACC, RING, RES, SS = 16, 32, 64, 72
    srd(a, SRD_A, KA_WO, 576 * 1152)
    a(f"""
    s_cmp_ge_u32 s{S_ROLE}, 5
    s_cselect_b32 s{sLAYS}, 1, 0
    s_cselect_b32 s{S_TMP}, 5, 0
    s_sub_u32 s{S_ROLE}, s{S_ROLE}, s{S_TMP}
    s_lshl_b32 s{sK2}, s{S_ROLE}, 2
    s_add_u32 s{sK2}, s{sK2}, s{S_WAVE}
    s_min_u32 s{sK2}, s{sK2}, 17
    s_lshl_b32 s{sK1}, s{sK2}, 6
    v_bfe_u32 v{vSTO}, v{vL16}, 4, 5
    """)
    feat_of_row(a, vRES, vSTO, vT0)
    a(f"v_and_b32 v{vT0}, 1, v{vRES}")
    sel_of_parity(a, vSEL, vT0, vT1)
    a(f"""
    v_and_b32 v{vRES}, 30, v{vRES}
    v_lshlrev_b32 v{vRES}, 1, v{vRES}
    v_lshrrev_b32 v{vXA}, 9, v{vL16}
    v_mul_u32_u24 v{vT0}, {8 * 1152}, v{vXA}
    v_add_u32 v{vA0}, v{vT0}, v{vRES}
    v_add_u32 v{vA0 + 1}, 1152, v{vA0}
    """)
    load_cols(a, SRD_A, vA0, vSEL, [((18 * t + 2 * d) * 1152, WB + 4 * t + d) for t in range(32) for d in range(4)])
    a(f"""
    v_mul_u32_u24 v{vT0}, {72 * 1152}, v{vXA}
    v_add_u32 v{vA0}, v{vT0}, v{vRES}
    v_add_u32 v{vA0 + 1}, 1152, v{vA0}
    """)
    load_cols(a, SRD_A, vA0, vSEL, [((144 * t + 18 * d + 16) * 1152, WB + 128 + 4 * t + d) for t in range(4) for d in range(4)])
    a(f"""
    v_lshlrev_b32 v{vSTO}, 4, v{vSTO}
    v_lshl_add_u32 v{vRES}, v{vXA}, 9, v{vSTO}
    s_lshl_b32 s{S_TMP}, s{sK2}, 11
    v_add_u32 v{vRES}, s{S_TMP}, v{vRES}
    s_lshr_b32 s{S_TMP}, s{sK2}, 1
    s_lshl_b32 s{S_TMP}, s{S_TMP}, 9
    s_and_b32 s{S_TMP + 1}, s{sK2}, 1
    s_lshl_b32 s{S_TMP + 1}, s{S_TMP + 1}, 3
    s_add_u32 s{S_TMP}, s{S_TMP}, s{S_TMP + 1}
    v_add_u32 v{vSTO}, s{S_TMP}, v{vSTO}
    s_lshr_b32 s{sK1}, s{sK2}, 2
    s_lshl_b32 s{sK1}, s{sK1}, 7
    s_and_b32 s{S_TMP}, s{sK2}, 3
    s_lshl_b32 s{S_TMP}, s{S_TMP}, 2
    s_add_u32 s{sK1}, s{sK1}, s{S_TMP}
    s_add_u32 s{sK1}, s{sK1}, {WS_FLAGS + FL_XB}
    """)

    def res_loads(srd_):
        pre = [f"s_mul_i32 s{sO3}, s{sNL}, {2 * X_BYTES}", f"s_mul_i32 s{S_TMP + 1}, s{sNS}, {X_SEG}",
               f"s_add_u32 s{sO3}, s{sO3}, s{S_TMP + 1}", f"s_add_u32 s{sO3}, s{sO3}, {WS_X}"]
        ops = [[f"buffer_load_dwordx4 {vr(RES + 4 * k, 4)}, v{vRES}, {srd_}, s{sO3} offen offset:{1024 * k}"] for k in range(2)]
        ops[0] = pre + ops[0]
        return ops

    def compute(pre, dma, extra, mid, roll):
        a(f"v_add_u32 v{vXA}, s{sBUF}, v{vL16}")
        for i in range(8):
            a(f"v_lshlrev_b32 v{ACC + 2 * i}, 16, v{RES + i}")
            a(f"v_and_b32 v{ACC + 2 * i + 1}, 0xffff0000, v{RES + i}")
        fl = [f"s_mul_i32 s{sO1}, s{sCL}, {2 * X_BYTES}", f"s_mul_i32 s{sK3}, s{sCS}, {X_SEG}",
              f"s_add_u32 s{sO1}, s{sO1}, s{sK3}", f"s_add_u32 s{sO1}, s{sO1}, {WS_X + X_BYTES}",
              f"s_mul_i32 s{sK4}, s{sCL}, {2 * ST_BYTES}", f"s_mul_i32 s{sK3}, s{sCS}, {ST_SEG}",
              f"s_add_u32 s{sK4}, s{sK4}, s{sK3}", f"s_add_u32 s{sK4}, s{sK4}, {WS_ST + ST_BYTES}"]
        gemm32(a, ACC, 0, vXA, [RING + 4 * i for i in range(8)], pre, dma, extra, mid, roll, init=True, fill=fl)
        for k in range(2):
            for i in range(4):
                a(f"v_cvt_pk_bf16_f32 v{RING + 4 * k + i}, v{ACC + 8 * k + 2 * i}, v{ACC + 8 * k + 2 * i + 1}")
            a(f"buffer_store_dwordx4 {vr(RING + 4 * k, 4)}, v{vRES}, {WS}, s{sO1} offen offset:{1024 * k} sc1")
        a(f"v_add_f32 v{SS}, v{ACC}, v{ACC + 1}")
        a(f"v_mul_f32 v{SS + 1}, v{ACC}, v{ACC}")
        a(f"v_fmac_f32 v{SS + 1}, v{ACC + 1}, v{ACC + 1}")
        for i in range(2, 16):
            a(f"v_add_f32 v{SS}, v{SS}, v{ACC + i}")
            a(f"v_fmac_f32 v{SS + 1}, v{ACC + i}, v{ACC + i}")
        seq(a, f"v_mov_b32 v{SS + 2}, v{SS}", f"v_mov_b32 v{SS + 3}, v{SS + 1}",
            f"v_permlane32_swap_b32 v{SS}, v{SS + 2}", f"v_permlane32_swap_b32 v{SS + 1}, v{SS + 3}",
            f"v_add_f32 v{SS}, v{SS}, v{SS + 2}", f"v_add_f32 v{SS + 1}, v{SS + 1}, v{SS + 3}",
            f"buffer_store_dwordx2 {vr(SS, 2)}, v{vSTO}, {WS}, s{sK4} offen sc1")

    def out_flag():
        a(f"s_mul_i32 s{sPEND}, s{sCO}, {FL_STRIDE}")
        a(f"s_add_u32 s{sPEND}, s{sPEND}, s{sK1}")

    staged_loop(a, "Lawo", abort, done, WS_OA, X_BYTES, FL_OA, res_loads, compute, out_flag, 3, 12, sLAYS)


def role_awo2(a, abort, done):
    lane_setup(a, 64)
    vXA, vSTO, vRES, vFO = 9, 10, 12, 185
    ACC0, ACC1, RING, RES, SS, W1T, OUT = 16, 32, 48, 80, 96, 152, 108
    GA1, GA2, RB = 16, 17, 18
    sT0, sT1 = sK2, sK3

    def w0(t):
        return ar(4 * t, 4)

    def w1(t):
        return ar(144 + 4 * t, 4) if t < 28 else vr(W1T + 4 * (t - 28), 4)
    srd(a, SRD_A, KA_WO, 576 * 1152)
    a(f"""
    s_cmp_ge_u32 s{S_ROLE}, 3
    s_cselect_b32 s{sLAYS}, 1, 0
    s_cselect_b32 s{S_TMP}, 3, 0
    s_sub_u32 s{S_ROLE}, s{S_ROLE}, s{S_TMP}
    s_mul_i32 s{sT0}, s{S_ROLE}, 6
    s_lshl_b32 s{S_TMP}, s{S_WAVE}, 1
    s_add_u32 s{S_TMP + 1}, s{S_WAVE}, 2
    s_cmp_lt_u32 s{S_WAVE}, 2
    s_cselect_b32 s{S_TMP}, s{S_TMP}, s{S_TMP + 1}
    s_cselect_b32 s{S_TMP + 1}, 1, 0
    s_add_u32 s{sT0}, s{sT0}, s{S_TMP}
    s_add_u32 s{sT1}, s{sT0}, s{S_TMP + 1}
    """)
    gate(a, 4, sLAYS, vT0, vT1, abort, "Lao_gate")
    a(f"""
    v_lshrrev_b32 v{vT0}, 6, v{vL16}
    v_and_b32 v{vT1}, 0x30, v{vL16}
    v_mul_u32_u24 v{GA1}, 1152, v{vT0}
    v_add_u32 v{GA1}, v{GA1}, v{vT1}
    v_lshrrev_b32 v{GA2}, 1, v{vT0}
    v_mul_u32_u24 v{GA2}, 18, v{GA2}
    v_and_b32 v{vT0}, 1, v{vT0}
    v_add_u32 v{GA2}, v{GA2}, v{vT0}
    v_add_u32 v{GA2}, 16, v{GA2}
    v_mul_u32_u24 v{GA2}, 1152, v{GA2}
    v_add_u32 v{GA2}, v{GA2}, v{vT1}
    v_lshrrev_b32 v{vT0}, 2, v{vC}
    v_lshrrev_b32 v{vT1}, 1, v{vG}
    v_lshl_add_u32 v{vT0}, v{vT1}, 3, v{vT0}
    v_lshlrev_b32 v{RB}, 6, v{vT0}
    v_and_b32 v{vT0}, 1, v{vC}
    v_lshl_add_u32 v{RB}, v{vT0}, 4, v{RB}
    v_and_b32 v{vT0}, 1, v{vG}
    v_lshl_add_u32 v{RB}, v{vT0}, 5, v{RB}
    v_bfe_u32 v{vT0}, v{vC}, 1, 1
    v_lshl_add_u32 v{RB}, v{vT0}, 3, v{RB}
    s_lshl_b32 s{sO1}, s{S_WAVE}, 15
    v_add_u32 v{RB}, s{sO1}, v{RB}
    s_lshl_b32 s{sK1}, s{sT0}, 6
    s_lshl_b32 s{sK4}, s{sT1}, 6
    """)
    a.auto = False
    NR, N = 32, 72

    def dma(i):
        m, t = i // 36, i % 36
        a(f"s_add_u32 m0, s{sO1}, {(i % NR) * 1024}")
        a(f"s_add_u32 s{S_TMP}, s{(sK1, sK4)[m]}, {(18 * t if t < 32 else 144 * (t - 32)) * 1152}")
        a(f"buffer_load_dwordx4 v{GA1 if t < 32 else GA2}, s[{SRD_A}:{SRD_A + 3}], s{S_TMP} offen lds")
    for i in range(NR):
        dma(i)
    nis = NR
    for i0 in range(0, N, 4):
        a(f"s_waitcnt vmcnt({nis - i0 - 4})")
        for i in range(i0, i0 + 4):
            m, t = i // 36, i % 36
            dst = (w0, w1)[m](t)
            k, b0 = dst[0], int(dst[2:dst.index(":")])
            for sub in range(2):
                a(f"ds_read_b64_tr_b16 {k}[{b0 + 2 * sub}:{b0 + 2 * sub + 1}], v{RB} offset:{(i % NR) * 1024 + sub * 256}")
        a("s_waitcnt lgkmcnt(0)")
        for i in range(nis, min(N, nis + 4)):
            dma(i)
        nis = min(N, nis + 4)
    a("s_barrier")
    a.auto = True
    a.vmq, a.lgq = [], []
    a(f"""
    v_bfe_u32 v{vT0}, v{vL16}, 4, 5
    v_lshlrev_b32 v{vT0}, 4, v{vT0}
    v_lshrrev_b32 v{vT1}, 9, v{vL16}
    v_lshl_add_u32 v{vT1}, v{vT1}, 9, v{vT0}
    """)
    for j, sT in enumerate((sT0, sT1)):
        a(f"""
        s_lshl_b32 s{S_TMP}, s{sT}, 11
        v_add_u32 v{vRES + j}, s{S_TMP}, v{vT1}
        s_lshr_b32 s{S_TMP}, s{sT}, 1
        s_lshl_b32 s{S_TMP}, s{S_TMP}, 9
        s_and_b32 s{S_TMP + 1}, s{sT}, 1
        s_lshl_b32 s{S_TMP + 1}, s{S_TMP + 1}, 3
        s_add_u32 s{S_TMP}, s{S_TMP}, s{S_TMP + 1}
        v_add_u32 v{vSTO + j}, s{S_TMP}, v{vT0}
        """)
    a(f"""
    s_lshr_b32 s{sK1}, s{sT0}, 2
    s_lshl_b32 s{sK1}, s{sK1}, 7
    s_and_b32 s{S_TMP}, s{sT0}, 3
    s_lshl_b32 s{S_TMP}, s{S_TMP}, 2
    s_add_u32 s{sK1}, s{sK1}, s{S_TMP}
    s_lshr_b32 s{sK4}, s{sT1}, 2
    s_lshl_b32 s{sK4}, s{sK4}, 7
    s_and_b32 s{S_TMP}, s{sT1}, 3
    s_lshl_b32 s{S_TMP}, s{S_TMP}, 2
    s_add_u32 s{sK4}, s{sK4}, s{S_TMP}
    s_sub_u32 s{S_TMP}, s{sK4}, s{sK1}
    v_lshrrev_b32 v{vFO}, 4, v{vL16}
    v_mul_lo_u32 v{vFO}, v{vFO}, s{S_TMP}
    s_add_u32 s{sK1}, s{sK1}, {WS_FLAGS + FL_XB}
    """)

    def res_loads(srd_):
        pre = [f"s_mul_i32 s{sO3}, s{sNL}, {2 * X_BYTES}", f"s_mul_i32 s{S_TMP + 1}, s{sNS}, {X_SEG}",
               f"s_add_u32 s{sO3}, s{sO3}, s{S_TMP + 1}", f"s_add_u32 s{sO3}, s{sO3}, {WS_X}"]
        ops = [[f"buffer_load_dwordx4 {vr(RES + 8 * j + 4 * k, 4)}, v{vRES + j}, {srd_}, s{sO3} offen offset:{1024 * k}"] for j in range(2) for k in range(2)]
        ops[0] = pre + ops[0]
        return ops

    def compute(a, hook):
        a(f"v_add_u32 v{vXA}, s{sBUF}, v{vL16}")
        ring = [RING + 4 * i for i in range(8)]
        nr = 8

        def rd(t):
            return f"ds_read_b128 {vr(ring[t % nr], 4)}, v{vXA} offset:{t * 1024}"
        for t in range(nr - 1):
            a(rd(t))
        for j, ACC in enumerate((ACC0, ACC1)):
            for i in range(8):
                a(f"v_lshlrev_b32 v{ACC + 2 * i}, 16, v{RES + 8 * j + i}")
                a(f"v_and_b32 v{ACC + 2 * i + 1}, 0xffff0000, v{RES + 8 * j + i}")
        fill = [f"s_mul_i32 s{sO1}, s{sCL}, {2 * X_BYTES}", f"s_mul_i32 s{sK3}, s{sCS}, {X_SEG}",
                f"s_add_u32 s{sO1}, s{sO1}, s{sK3}", f"s_add_u32 s{sO1}, s{sO1}, {WS_X + X_BYTES}",
                f"s_mul_i32 s{sK4}, s{sCL}, {2 * ST_BYTES}", f"s_mul_i32 s{sK3}, s{sCS}, {ST_SEG}",
                f"s_add_u32 s{sK4}, s{sK4}, s{sK3}", f"s_add_u32 s{sK4}, s{sK4}, {WS_ST + ST_BYTES}"]
        for t in range(36):
            x = vr(ring[t % nr], 4)
            a(MF32(ACC0, w0(t), x))
            if t + nr - 1 < 36:
                a(rd(t + nr - 1))
            a(MF32(ACC1, w1(t), x))
            k = 3
            while fill and k > 0:
                seq(a, fill.pop(0)); k -= 1
            hook(t)
        for j, ACC in enumerate((ACC0, ACC1)):
            for k in range(2):
                o = OUT + 8 * j + 4 * k
                for i in range(4):
                    a(f"v_cvt_pk_bf16_f32 v{o + i}, v{ACC + 8 * k + 2 * i}, v{ACC + 8 * k + 2 * i + 1}")
                a(f"buffer_store_dwordx4 {vr(o, 4)}, v{vRES + j}, {WS}, s{sO1} offen offset:{1024 * k} sc1")
        ONE2 = SS + 8
        a(f"v_mov_b32 v{ONE2}, 0x3f803f80")
        for j in range(2):
            a(f"v_mov_b32 v{SS + 4 * j}, 0")
            a(f"v_mov_b32 v{SS + 4 * j + 1}, 0")
        for i in range(8):
            for j in range(2):
                a(f"v_dot2c_f32_bf16 v{SS + 4 * j}, v{OUT + 8 * j + i}, v{ONE2}")
                a(f"v_dot2c_f32_bf16 v{SS + 4 * j + 1}, v{OUT + 8 * j + i}, v{OUT + 8 * j + i}")
        a("s_nop 2")
        for j in range(2):
            S_ = SS + 4 * j
            a(f"v_mov_b32 v{S_ + 2}, v{S_}")
            a(f"v_mov_b32 v{S_ + 3}, v{S_ + 1}")
        for j in range(2):
            S_ = SS + 4 * j
            a(f"v_permlane32_swap_b32 v{S_}, v{S_ + 2}")
            a(f"v_permlane32_swap_b32 v{S_ + 1}, v{S_ + 3}")
        for j in range(2):
            S_ = SS + 4 * j
            a(f"v_add_f32 v{S_}, v{S_}, v{S_ + 2}")
            a(f"v_add_f32 v{S_ + 1}, v{S_ + 1}, v{S_ + 3}")
            a(f"buffer_store_dwordx2 {vr(S_, 2)}, v{vSTO + j}, {WS}, s{sK4} offen sc1")

    def out_flag():
        a(f"s_mul_i32 s{sPEND}, s{sCO}, {FL_STRIDE}")
        a(f"s_add_u32 s{sPEND}, s{sPEND}, s{sK1}")

    eager_loop(a, "Lawo", abort, done, WS_OA, X_BYTES, FL_OA, ("reg", res_loads), compute, out_flag, 6, 184, sLAYS, pub=(vFO, 3))


def role_aq(a, abort, done, nt=""):
    lane_setup(a, 48)
    vXA, vSTA, vLDS, vOUT = 9, 10, 11, 13
    ACC, CS, RING, STR = 16, 36, 56, 68
    LN, BI = 92, 72
    ST8 = 112
    QB, KC, VA, VB, SP, PP = 128, 132, 136, 140, 144, 68
    WV = 152

    def wreg(tile, t, i=None):
        n = (tile * 18 + t) * 4
        k, b = ("v", WV + n) if n < 104 else ("a", n - 104)
        return f"{k}[{b}:{b + 3}]" if i is None else f"{k}{b + i}"

    a(f"""
    s_lshr_b32 s{sLAYS}, s{S_ROLE}, 4
    s_and_b32 s{S_ROLE}, s{S_ROLE}, 15
    s_lshr_b32 s{sK2}, s{S_ROLE}, 1
    s_lshl_b32 s{sK2}, s{sK2}, 2
    s_and_b32 s{S_TMP}, s{S_ROLE}, 1
    s_add_u32 s{sK2}, s{sK2}, s{S_TMP}
    s_and_b32 s{S_TMP}, s{S_WAVE}, 2
    s_add_u32 s{sK2}, s{sK2}, s{S_TMP}
    s_and_b32 s{sK3}, s{S_WAVE}, 1
    """)
    gate(a, 4, sLAYS, vT0, vT1, abort, "Laq_gate")
    CW, CE = 3 * 96 * 128, 2 * 96 * 32
    CB = CW + CE
    GM, RM, RE, EA, ED = 16, 17, 18, 19, 20
    srd(a, SRD_A, KA_WQKV, 576 * 3456)
    A_ = f"s[{SRD_A}:{SRD_A + 3}]"
    a(f"""
    v_lshrrev_b32 v{vT0}, 7, v{vL16}
    v_mul_u32_u24 v{GM}, 3456, v{vT0}
    v_and_b32 v{vT0}, 0x70, v{vL16}
    v_add_u32 v{GM}, v{GM}, v{vT0}
    s_lshr_b32 s{S_TMP}, s{S_WAVE}, 1
    s_mul_i32 s{sO1}, s{S_TMP}, 72
    v_lshrrev_b32 v{vT0}, 2, v{vC}
    v_lshl_add_u32 v{vT0}, v{vG}, 3, v{vT0}
    v_and_b32 v{vT1}, 3, v{vC}
    v_lshlrev_b32 v{RM}, 7, v{vT0}
    v_lshl_add_u32 v{RM}, v{vT1}, 3, v{RM}
    v_add_u32 v{RM}, s{sO1}, v{RM}
    v_lshlrev_b32 v{RE}, 5, v{vT0}
    v_min_u32 v{vT1}, 1, v{vT1}
    v_lshl_add_u32 v{RE}, v{vT1}, 4, v{RE}
    s_mul_i32 s{S_TMP}, s{S_TMP}, {96 * 32}
    s_add_u32 s{S_TMP}, s{S_TMP}, {CW}
    v_add_u32 v{RE}, s{S_TMP}, v{RE}
    s_sub_u32 s{S_TMP}, s{sK2}, s{S_WAVE}
    """)
    a(f"""
    s_lshr_b32 s{S_TMP}, s{S_WAVE}, 1
    s_lshl_b32 s{S_TMP}, s{S_TMP}, 1
    s_sub_u32 s{S_TMP}, s{sK2}, s{S_TMP}
    s_mul_i32 s{sK1}, s{S_TMP}, 36
    s_mul_i32 s{S_TMP}, s{S_WAVE}, {24 * 3456}
    s_add_u32 s{sK1}, s{sK1}, s{S_TMP}
    s_mul_i32 s{sO2}, s{S_WAVE}, {24 * 128}
    """)
    TID = 21
    a(f"""
    v_lshrrev_b32 v{TID}, 4, v{vL16}
    s_lshl_b32 s{S_TMP}, s{S_WAVE}, 6
    v_add_u32 v{TID}, s{S_TMP}, v{TID}
    v_cmp_le_u32 vcc, 96, v{TID}
    v_cndmask_b32 v{vT0}, 0, 1, vcc
    v_mul_u32_u24 v{vT1}, 96, v{vT0}
    v_sub_u32 v{vT1}, v{TID}, v{vT1}
    v_lshlrev_b32 v{EA}, 7, v{vT1}
    v_mul_u32_u24 v{ED}, 72, v{vT0}
    v_add_u32 v{EA}, v{EA}, v{ED}
    v_add_u32 v{EA}, 32, v{EA}
    v_lshlrev_b32 v{ED}, 5, v{TID}
    v_add_u32 v{ED}, {CW}, v{ED}
    """)
    for i in range(4):
        a(f"v_mov_b32 v{24 + i}, 0")
    a(f"v_mov_b32 v31, 0")
    a(f"s_cmp_eq_u32 s{S_WAVE}, 3")
    a("s_cselect_b64 s[76:77], 0, -1")
    a("s_mov_b64 exec, s[76:77]")
    for b in range(3):
        a(f"v_add_u32 v22, {b * CB}, v{ED}")
        a(f"ds_write_b128 v22, v[24:27] offset:16")
    a("s_mov_b64 exec, -1")
    a.auto = False

    def dma(c):
        b = c % 3
        for m in range(3):
            for q in range(3):
                a(f"s_add_u32 m0, s{sO2}, {b * CB + m * 96 * 128 + q * 1024}")
                a(f"s_add_u32 s{S_TMP}, s{sK1}, {(96 * c + 8 * q) * 3456 + m * 1152}")
                a(f"buffer_load_dwordx4 v{GM}, {A_}, s{S_TMP} offen lds")
    dma(0)
    dma(1)
    dma(2)
    for c in range(6):
        b = c % 3
        a(f"s_waitcnt vmcnt({[18, 9, 9, 9, 9, 0][c]}) lgkmcnt(0)")
        a("s_barrier")
        if 1 <= c <= 3:
            dma(c + 2)
        a("s_mov_b64 exec, s[76:77]")
        va = 22
        a(f"v_add_u32 v{va}, {b * CB}, v{EA}")
        for m in range(3):
            a(f"ds_read_b32 v{28 + m}, v{va} offset:{m * 96 * 128}")
        a("s_waitcnt lgkmcnt(0)")
        a(f"v_add_u32 v{va}, {b * CB}, v{ED}")
        a(f"ds_write_b128 v{va}, v[28:31]")
        a("s_mov_b64 exec, -1")
        a(f"v_add_u32 v{va}, {b * CB}, v{RM}")
        a(f"v_add_u32 v23, {b * CB}, v{RE}")
        for tp in range(3):
            for tile in (0, 1, 3):
                for sub in range(2):
                    dst = wreg(tile, 3 * c + tp)
                    k, b0 = dst[0], int(dst[2:dst.index(":")])
                    a(f"ds_read_b64_tr_b16 {k}[{b0 + 2 * sub}:{b0 + 2 * sub + 1}], v{va} offset:{ {0: 0, 1: 1, 3: 2}[tile] * 96 * 128 + (32 * tp + 4 * sub) * 128}")
        a("s_waitcnt lgkmcnt(0)")
        a("s_barrier")
        for tp in range(3):
            for tile in (2, 4):
                for sub in range(2):
                    dst = wreg(tile, 3 * c + tp)
                    k, b0 = dst[0], int(dst[2:dst.index(":")])
                    a(f"ds_read_b64_tr_b16 {k}[{b0 + 2 * sub}:{b0 + 2 * sub + 1}], v23 offset:{(32 * tp + 4 * sub) * 32 + (8 if tile == 4 else 0)}")
    a("s_waitcnt lgkmcnt(0)")
    a("s_barrier")
    a.auto = True
    a.vmq, a.lgq = [], []
    a.force_wait(vm=0) if TRACE == 6 else None
    trace6(a, vT0, vT1)
    for i in range(4):
        a(f"v_mov_b32 v{RING + i}, 0x3f803f80")
    for t in range(18):
        for tile in range(5):
            w, o = wreg(tile, t), vr(RING, 4)
            a(MF(CS + 4 * tile, o if tile >= 3 else w, w if tile >= 3 else o, "0" if t == 0 else None))
    NEG = hex(f32bits(-1e30))
    a(f"""
    v_lshlrev_b32 v{vSTA}, 5, v{vC}
    s_lshl_b32 s{S_TMP}, s{sK3}, 4
    v_add_u32 v{vSTA}, s{S_TMP}, v{vSTA}
    v_mul_u32_u24 v{vT1}, 1536, v{vG}
    v_add_u32 v{vSTA}, v{vSTA}, v{vT1}
    s_lshl_b32 s{S_TMP}, s{S_WAVE}, 7
    s_add_u32 s{S_TMP}, s{S_TMP}, {2 * XBUF}
    v_lshl_add_u32 v{vLDS}, v{vC}, 3, s{S_TMP}
    v_lshl_add_u32 v{vLDS + 1}, v{vG}, 5, s{S_TMP}
    v_lshlrev_b32 v{vOUT}, 5, v{vC}
    s_lshl_b32 s{S_TMP}, s{sK3}, 4
    v_add_u32 v{vOUT}, s{S_TMP}, v{vOUT}
    s_lshr_b32 s{S_TMP}, s{sK2}, 2
    s_add_u32 s{S_TMP}, s{S_TMP}, 64
    s_lshl_b32 s{S_TMP}, s{S_TMP}, 9
    s_and_b32 s{S_TMP + 1}, s{sK2}, 3
    s_lshl_b32 s{S_TMP + 1}, s{S_TMP + 1}, 2
    s_add_u32 s{S_TMP}, s{S_TMP}, s{S_TMP + 1}
    v_add_u32 v{vOUT + 1}, s{S_TMP}, v{vOUT}
    v_lshrrev_b32 v{vT0}, 1, v{vG}
    v_lshl_add_u32 v{vOUT}, v{vT0}, 9, v{vOUT}
    v_and_b32 v{vT0}, 1, v{vG}
    v_lshl_add_u32 v{vOUT}, v{vT0}, 3, v{vOUT}
    s_lshl_b32 s{S_TMP}, s{sK2}, 10
    v_add_u32 v{vOUT}, s{S_TMP}, v{vOUT}
    s_lshl_b32 s{sK1}, s{S_ROLE}, 7
    s_lshl_b32 s{S_TMP}, s{S_WAVE}, 2
    s_add_u32 s{sK1}, s{sK1}, s{S_TMP}
    s_add_u32 s{sK1}, s{sK1}, {WS_FLAGS + FL_OA}
    s_mov_b32 s{sK4}, {hex(f32bits(18 ** -0.5 * 1.4426950408889634))}
    v_mov_b32 v{vT1}, {NEG}
    """)
    for i in range(4):
        a(f"v_lshl_add_u32 v{vT0}, v{vG}, 2, {i}")
        a(f"v_sub_u32 v{vT0}, v{vT0}, v{vC}")
        a(f"v_cmp_le_i32 vcc, 9, v{vT0}")
        a(f"v_cndmask_b32 v{BI + i}, v{vT1}, v{vZERO}, vcc")
        a(f"v_add_u32 v{vT0}, 7, v{vT0}")
        a(f"v_cmp_ge_u32 vcc, 7, v{vT0}")
        a(f"v_cndmask_b32 v{BI + 4 + i}, v{vT1}, v{vZERO}, vcc")
    for r in (ST8, VA, VB):
        for i in range(4):
            a(f"v_mov_b32 v{r + i}, 0")
    for i in range(4):
        a(f"v_mov_b32 v{ST8 + 4 + i}, 0x3f803f80")
    a(f"v_mov_b32 v{QB + 3}, 0")
    a(f"v_mov_b32 v{KC + 3}, 0")

    def st_loads(srd_):
        pre = [f"s_mul_i32 s{sO3}, s{sNL}, {2 * ST_BYTES}", f"s_mul_i32 s{S_TMP + 1}, s{sNS}, {ST_SEG}",
               f"s_add_u32 s{sO3}, s{sO3}, s{S_TMP + 1}", f"s_add_u32 s{sO3}, s{sO3}, {WS_ST}"]
        ops = [[f"buffer_load_dwordx4 {vr(STR + 12 + 4 * i, 4)}, v{vSTA}, {srd_}, s{sO3} offen offset:{512 * i}"] for i in range(3)]
        ops[0] = pre + ops[0]
        return ops

    def compute(a, hook):
        S0 = STR + 12
        a(f"v_lshlrev_b32 v{vXA}, 9, v{vG}")
        a(f"v_lshl_add_u32 v{vXA}, v{vC}, 5, v{vXA}")
        a(f"s_lshl_b32 s{S_TMP}, s{sK3}, 4")
        a(f"s_add_u32 s{S_TMP}, s{S_TMP}, s{sBUF}")
        a(f"v_add_u32 v{vXA}, s{S_TMP}, v{vXA}")
        S1, S2 = S0, S0 + 1
        sm = [f"v_add_f32 v{S0 + j}, v{S0 + j}, v{S0 + 4 * i + j}" for i in (1, 2) for j in range(4)]
        sm += [f"v_add_f32 v{S1}, v{S1}, v{S0 + 2}", f"v_add_f32 v{S2}, v{S2}, v{S0 + 3}"]
        for sw in (32, 16):
            sm += [f"v_mov_b32 v{S0 + 2}, v{S1}", f"v_mov_b32 v{S0 + 3}, v{S2}",
                   f"v_permlane{sw}_swap_b32 v{S1}, v{S0 + 2}", f"v_permlane{sw}_swap_b32 v{S2}, v{S0 + 3}",
                   f"v_add_f32 v{S1}, v{S1}, v{S0 + 2}", f"v_add_f32 v{S2}, v{S2}, v{S0 + 3}"]
        sm += [f"v_mul_f32 v{S1}, {hex(f32bits(1.0 / 576))}, v{S1}", f"v_mul_f32 v{S2}, {hex(f32bits(1.0 / 576))}, v{S2}",
               f"v_fma_f32 v{S2}, -v{S1}, v{S1}, v{S2}", f"v_max_f32 v{S2}, 0, v{S2}",
               f"v_add_f32 v{S2}, {hex(f32bits(1e-5))}, v{S2}", f"v_rsq_f32 v{LN}, v{S2}",
               f"v_mul_f32 v{LN + 1}, v{S1}, v{LN}",
               f"ds_write_b64 v{vLDS}, {vr(LN, 2)}",
               f"ds_read_b128 {vr(LN + 4, 4)}, v{vLDS + 1}", f"ds_read_b128 {vr(LN + 8, 4)}, v{vLDS + 1} offset:16"]
        def rd(n):
            return f"ds_read_b128 {vr(RING + 4 * (n % 3), 4)}, v{vXA} offset:{(n % 18) * 2048}"
        q0, k0, ex, v0, vx = [ACC + 4 * i for i in range(5)]
        KP = ST8
        MX, T1 = vT0, vT1
        LQ, OX, OY, ON = ACC, ACC + 4, ACC + 8, ST8 + 4

        def fold(tile):
            ops = []
            for i in range(4):
                r = ACC + 4 * tile + i
                rs, mr = (LN + 4 + 2 * i, LN + 5 + 2 * i) if tile >= 3 else (LN, LN + 1)
                ops += [f"v_mul_f32 v{LN + 2}, v{mr}, v{CS + 4 * tile + i}", f"v_fma_f32 v{r}, v{r}, v{rs}, -v{LN + 2}"]
            return ops
        post = fold(0) + fold(2) + fold(1) + [
            f"v_cvt_pk_bf16_f32 v{QB}, v{q0}, v{q0 + 1}", f"v_cvt_pk_bf16_f32 v{QB + 1}, v{q0 + 2}, v{q0 + 3}",
            f"v_cvt_pk_bf16_f32 v{QB + 2}, v{ex}, v{ex + 1}",
            f"v_cvt_pk_bf16_f32 v{KC}, v{k0}, v{k0 + 1}", f"v_cvt_pk_bf16_f32 v{KC + 1}, v{k0 + 2}, v{k0 + 3}",
            f"v_cvt_pk_bf16_f32 v{KC + 2}, v{ex + 2}, v{ex + 3}",
            [f"s_cmp_eq_u32 s{sCS}, 0", f"s_cselect_b32 s{sO1}, {NEG}, 0"],
            None, MF(SP, vr(KP, 4), vr(QB, 4), "0"), None, MF(SP + 4, vr(KC, 4), vr(QB, 4), "0"), None, None]
        post += [f"v_mov_b32 v{KP + i}, v{KC + i}" for i in range(3)] + [None] * 3
        post += [f"v_fma_f32 v{SP + i}, v{SP + i}, s{sK4}, v{BI + i}" for i in range(8)]
        post += [f"v_add_f32 v{SP + i}, s{sO1}, v{SP + i}" for i in range(4)]
        post += [f"v_max3_f32 v{MX}, v{SP}, v{SP + 1}, v{SP + 2}", f"v_max3_f32 v{MX}, v{MX}, v{SP + 3}, v{SP + 4}",
                 f"v_max3_f32 v{MX}, v{MX}, v{SP + 5}, v{SP + 6}", f"v_max_f32 v{MX}, v{MX}, v{SP + 7}",
                 f"v_mov_b32 v{T1}, v{MX}", None, f"v_permlane32_swap_b32 v{MX}, v{T1}", f"v_max_f32 v{MX}, v{MX}, v{T1}",
                 f"v_mov_b32 v{T1}, v{MX}", None, f"v_permlane16_swap_b32 v{MX}, v{T1}", f"v_max_f32 v{MX}, v{MX}, v{T1}"]
        post += [f"v_sub_f32 v{SP + i}, v{SP + i}, v{MX}" for i in range(8)]
        post += [f"v_exp_f32 v{SP + i}, v{SP + i}" for i in range(8)]
        post += [f"v_cvt_pk_bf16_f32 v{PP + i}, v{SP + 2 * i}, v{SP + 2 * i + 1}" for i in range(4)]
        post += [None, MF(LQ, vr(ON, 4), vr(PP, 4), "0"),
                 [f"s_mul_i32 s{sO1}, s{sCO}, {X_SEG}", f"s_add_u32 s{sO1}, s{sO1}, {WS_OA}"]]
        seq(a, rd(0), rd(1))
        for n in range(36):
            t = n % 18
            if n + 2 < 36:
                a(rd(n + 2))
            x = vr(RING + 4 * (n % 3), 4)
            for tile in ((0, 1, 2) if n < 18 else (3, 4)):
                w = wreg(tile, t)
                a(MF(ACC + 4 * tile, x if tile >= 3 else w, w if tile >= 3 else x, "0" if t == 0 else None))
                if n < 18 and sm:
                    a(sm.pop(0))
                if n >= 19:
                    for _ in range(3 if n >= 30 else 2):
                        if post:
                            seq(a, post.pop(0))
            if n == 17:
                assert not sm
            hook(n)
        seq(a, post, f"v_rcp_f32 v{T1}, v{LQ}", fold(3),
            f"v_cvt_pk_bf16_f32 v{VA + 2}, v{v0}, v{v0 + 1}", f"v_cvt_pk_bf16_f32 v{VA + 3}, v{v0 + 2}, v{v0 + 3}",
            fold(4)[:2], MF(OX, vr(VA, 4), vr(PP, 4), "0"), fold(4)[2:],
            f"v_cvt_pk_bf16_f32 v{VB + 2}, v{vx}, v{vx + 1}", f"v_cvt_pk_bf16_f32 v{VB + 3}, v{vx + 2}, v{vx + 3}",
            f"v_mov_b32 v{VA}, v{VA + 2}", f"v_mov_b32 v{VA + 1}, v{VA + 3}",
            MF(OY, vr(VB, 4), vr(PP, 4), "0"),
            [f"v_mul_f32 v{OX + i}, v{T1}, v{OX + i}" for i in range(4)],
            f"v_cvt_pk_bf16_f32 v{OX}, v{OX}, v{OX + 1}", f"v_cvt_pk_bf16_f32 v{OX + 1}, v{OX + 2}, v{OX + 3}",
            f"buffer_store_dwordx2 {vr(OX, 2)}, v{vOUT}, {WS}, s{sO1} offen sc1",
            f"v_mov_b32 v{VB}, v{VB + 2}", f"v_mov_b32 v{VB + 1}, v{VB + 3}",
            f"v_mul_f32 v{OY}, v{T1}, v{OY}", f"v_mul_f32 v{OY + 1}, v{T1}, v{OY + 1}",
            f"v_cvt_pk_bf16_f32 v{OY}, v{OY}, v{OY + 1}",
            "s_mov_b64 exec, 0xffff",
            f"buffer_store_dword v{OY}, v{vOUT + 1}, {WS}, s{sO1} offen sc1",
            "s_mov_b64 exec, -1")

    def out_flag():
        a(f"s_mul_i32 s{sPEND}, s{sCO}, {FL_STRIDE}")
        a(f"s_add_u32 s{sPEND}, s{sPEND}, s{sK1}")

    eager_loop(a, "Laq", abort, done, WS_X, 2 * X_BYTES, FL_XA, ("reg", st_loads), compute, out_flag, 2, 110, sLAYS,
               hpos=(int(os.environ.get("HAQ", "14")), [int(x) for x in os.environ.get("LAQ", "14,30").split(",")], 3,
                     [int(x) for x in os.environ.get("WAQ", "1,19").split(",")]), late_extra=True)
```

```python
from common import *
import os, struct

ROWS = 288
L_F = 0
L_OB = 16 * ROWS
L_MEMA = L_OB + 8 * ROWS
L_KX = L_MEMA + 8192
L_LW = L_KX + 8192
LW_WAVE = 17 * 2048
L_SEL = L_LW + 4 * LW_WAVE
assert L_LW % 256 == 0 and L_SEL + 1024 <= 163840

PH = 9216

vL16, vIDX, vQW, vQR, vOR, vOW, vRLD, vRST, vLW, vT0, vT1, vT2 = range(12)
ACCQ, ACCK, ACCV = 12, 20, 28
Q = [36 + 4 * i for i in range(9)]
FA, FB, FC, R0, R1 = Q[0], Q[1], Q[2], Q[3], Q[4]
WR0, WR1 = Q[5], Q[7]
WBASE = 72

sH = S_ROLE
sLAY = 32
sSTEP = 33
sMA = 34
sMC = 35
sMEMW = 36
sMEMZ = 37
sPW = 38
sPWC = 39
sPH = 40
sKF = 41
sVF = 42
sKM = 43
sCEXP = 44
sMASK = 46
sU = 48
sMAXD = 50
sFAST = 51
sONES = 52
sM = 54
sPR = 62
sFL = 66
sFLP = 67
sTCH = 68
sFOK = 69
sL0 = 70
S_STAMP = 80

MATS = "qkv"
env = os.environ.get
DBC = [int(x) for x in env("DBC", "0,0,0,0").split(",")]
DP1 = [int(x) for x in env("DP1", "0,60,50").split(",")]
DP2 = int(env("DP2", "10"))
DQ1 = [int(x) for x in env("DQ1", "20,30,30,10").split(",")]
DQ2 = [int(x) for x in env("DQ2", "10,20,20,25").split(",")]
DQ3 = [int(x) for x in env("DQ3", "25,25,25,25").split(",")]
DQB = int(env("DQB", "0"))
HKSL = int(env("HKSL", "5"))
VORD = int(env("VORD", "1"))
KD0 = int(env("KD0", "0"))
FLW = int(env("FLW", "1"))
CKW = int(env("CKW", "2"))
TKW = int(env("TKW", "0"))
TCW = int(env("TCW", "3"))
PB0 = int(env("PB0", "0"))
PC0 = int(env("PC0", "4"))
STG = int(env("STG", "1"))
FAD = int(env("FAD", "0"))
VEARLY = int(env("VEARLY", "2"))
TPOS = int(env("TPOS", "1"))
PAPOS = int(env("PAPOS", "-1"))
R2E = int(env("R2E", "1"))
BEARLY = int(env("BEARLY", "0"))
NBF = int(env("NBF", "0"))
TOUCH = int(env("TOUCH", "1"))


def f32bits(x):
    return struct.unpack("<I", struct.pack("<f", x))[0]


LDS_TILES = [("v", 0), ("v", 2), ("q", 4), ("q", 6)]
LDS_SLOT = {}
for i, (m, t) in enumerate(LDS_TILES):
    LDS_SLOT[(m, 0, t)] = 2 * i
    LDS_SLOT[(m, 1, t)] = 2 * i + 1
for i, (p, ks) in enumerate([(2, 0), (2, 1), (3, 0), (3, 1)]):
    LDS_SLOT[("o", 2 * p, ks)] = 8 + 2 * i
    LDS_SLOT[("o", 2 * p + 1, ks)] = 9 + 2 * i
LDS_SLOT[("o", 8, 1)] = 16


def build_fm():
    fm = {}
    regs = [("v", WBASE + 8 * i) for i in range(23)] + [("a", 8 * i) for i in range(32)]
    keys = [(m, b, t) for m in "qkv" for t in range(9) for b in range(2) if (m, t) not in LDS_TILES]
    keys += [("o", tau, ks) for tau in range(4) for ks in range(2)] + [("o", 8, 0)]
    assert len(keys) == 55
    for k, r in zip(keys, regs):
        fm[k] = r
    for k, s in LDS_SLOT.items():
        fm[k] = ("l", s)
    return fm


FM = build_fm()


def opnd(loc, n=8, off=0):
    k, b = loc
    return (vr if k == "v" else ar)(b + off, n)


def SM(acc, A, B):
    return f"v_smfmac_f32_16x16x64_bf16 {vr(acc, 4)}, {vr(A, 4)}, {B}, v{vIDX}"


def lw_read(dst, slot):
    return [f"ds_read_b128 {vr(dst, 4)}, v{vLW} offset:{slot * 2048}",
            f"ds_read_b128 {vr(dst + 4, 4)}, v{vLW} offset:{slot * 2048 + 1024}"]


def nops(a, n):
    while n > 0:
        k = min(n, 16)
        a(f"s_nop {k - 1}")
        n -= k


def r_setup(a):
    WS = f"s[{SRD_WS}:{SRD_WS + 3}]"
    LANE, C, G, T3, T4, T5, TAU = 60, 61, 62, 63, 64, 65, 66
    cexp = hex(f32bits(128 ** -0.5 * 1.4426950408889634))
    W = S_WAVE
    a(f"""
    v_and_b32 v{LANE}, 63, v0
    v_and_b32 v{C}, 15, v{LANE}
    v_lshrrev_b32 v{G}, 4, v{LANE}
    v_lshlrev_b32 v{vL16}, 4, v{LANE}
    s_mul_i32 s{S_TMP}, s{W}, {LW_WAVE}
    s_add_u32 s{S_TMP}, s{S_TMP}, {L_LW}
    v_add_u32 v{vLW}, s{S_TMP}, v{vL16}
    s_mov_b32 s{sMAXD}, 0xfffffffe
    s_mov_b32 s{sCEXP}, {cexp}
    s_mov_b32 s{sCEXP + 1}, {cexp}
    s_mov_b32 s{sONES}, 0x3f803f80
    s_mov_b32 s{sONES + 1}, 0x3f803f80
    s_mov_b32 s{sPH}, 1
    s_mov_b32 s{sMASK}, 0x00ff00ff
    s_cmp_eq_u32 s{W}, 2
    s_cselect_b32 s{sMASK}, 0x00030003, s{sMASK}
    s_mov_b32 s{sMASK + 1}, s{sMASK}
    v_bfe_u32 v{T3}, v{C}, 1, 1
    v_mov_b32 v{vIDX}, 0x4444
    v_mov_b32 v{T4}, 0xeeee
    v_cmp_eq_u32 vcc, 0, v{T3}
    v_cndmask_b32 v{vIDX}, v{T4}, v{vIDX}, vcc
    """)
    a(f"""
    v_mul_u32_u24 v{T4}, {4 * ROWS}, v{G}
    v_lshl_add_u32 v{vQW}, v{C}, 2, v{T4}
    s_lshl_b32 s{S_TMP}, s{W}, 6
    s_add_u32 s{S_TMP + 1}, s{S_TMP}, {L_F}
    v_add_u32 v{vQW}, s{S_TMP + 1}, v{vQW}
    v_mul_u32_u24 v{T4}, {ROWS}, v{C}
    v_lshl_add_u32 v{vQR}, v{G}, 4, v{T4}
    v_add_u32 v{vQR}, {L_F}, v{vQR}
    v_lshrrev_b32 v{T4}, 2, v{C}
    v_and_b32 v{T5}, 1, v{C}
    v_lshl_add_u32 v{T4}, v{T4}, 1, v{T5}
    v_mul_u32_u24 v{T5}, {ROWS}, v{T4}
    v_lshl_add_u32 v{vOR}, v{G}, 5, v{T5}
    v_lshl_add_u32 v{vOR}, v{T3}, 4, v{vOR}
    v_add_u32 v{vOR}, {L_OB}, v{vOR}
    v_xor_b32 v{T3}, 1, v{T3}
    v_mul_u32_u24 v{T3}, {8 * ROWS}, v{T3}
    v_add_u32 v{vOW}, v{T5}, v{T3}
    v_lshl_add_u32 v{vOW}, v{G}, 4, v{vOW}
    s_add_u32 s{S_TMP + 1}, s{S_TMP}, {L_OB}
    v_add_u32 v{vOW}, s{S_TMP + 1}, v{vOW}
    """)
    WP, GO, CH, UI = sL0, sL0 + 1, sL0 + 2, sL0 + 3
    a(f"""
    s_lshr_b32 s{WP}, s{sH}, 3
    s_bfe_u32 s{GO}, s{sH}, 0x20001
    s_and_b32 s{CH}, s{sH}, 1
    v_bfe_u32 v{T4}, v{C}, 2, 1
    v_lshl_add_u32 v{T3}, v{T4}, 2, v{G}
    v_mul_u32_u24 v{T3}, {PH}, v{T3}
    v_lshrrev_b32 v{T5}, 3, v{C}
    v_lshlrev_b32 v{T5}, 2, v{T5}
    v_and_b32 v{T4}, 3, v{C}
    v_add_u32 v{T5}, v{T5}, v{T4}
    s_lshl_b32 s{UI}, s{GO}, 4
    s_lshl_b32 s{S_TMP}, s{CH}, 3
    s_add_u32 s{UI}, s{UI}, s{S_TMP}
    v_add_u32 v{T5}, s{UI}, v{T5}
    s_lshl_b32 s{S_TMP}, s{WP}, 6
    v_add_u32 v{T5}, s{S_TMP}, v{T5}
    s_cmp_eq_u32 s{W}, 2
    s_cselect_b32 s{S_TMP}, 2, 4
    v_lshlrev_b32 v{T5}, s{S_TMP}, v{T5}
    v_add_u32 v{vRLD}, v{T3}, v{T5}
    s_lshl_b32 s{S_TMP}, s{W}, 12
    v_add_u32 v{vRLD}, s{S_TMP}, v{vRLD}
    v_lshrrev_b32 v{TAU}, 1, v{C}
    s_lshl_b32 s{S_TMP}, s{W}, 2
    v_add_u32 v{TAU}, s{S_TMP}, v{TAU}
    v_and_b32 v{T4}, 1, v{C}
    s_lshl_b32 s{S_TMP}, s{WP}, 4
    s_lshl_b32 s{S_TMP + 1}, s{GO}, 2
    s_add_u32 s{S_TMP}, s{S_TMP}, s{S_TMP + 1}
    s_lshl_b32 s{S_TMP + 1}, s{CH}, 1
    s_add_u32 s{S_TMP}, s{S_TMP}, s{S_TMP + 1}
    v_add_u32 v{T5}, s{S_TMP}, v{T4}
    v_lshl_add_u32 v{T5}, v{TAU}, 6, v{T5}
    v_lshlrev_b32 v{T5}, 4, v{T5}
    v_lshl_add_u32 v{vRST}, v{G}, 2, v{T5}
    """)
    M0 = 67
    a(f"""
    s_lshl_b32 s{S_TMP}, s{GO}, 1
    v_add_u32 v{T4}, s{S_TMP}, v{T4}
    v_mul_u32_u24 v{T4}, 576, v{T4}
    v_lshl_add_u32 v{T4}, v{TAU}, 4, v{T4}
    v_lshl_add_u32 v{T4}, v{G}, 1, v{T4}
    s_mul_i32 s{S_TMP}, s{WP}, 144
    s_lshl_b32 s{S_TMP + 1}, s{CH}, 3
    s_add_u32 s{S_TMP}, s{S_TMP}, s{S_TMP + 1}
    v_add_u32 v{T4}, s{S_TMP}, v{T4}
    v_lshlrev_b32 v{M0}, 1, v{T4}
    """)
    a(f"""
    s_mul_i32 s{sU}, s{sLAY}, {RING_TEAM}
    s_add_u32 s{sU}, s{sU}, {WS_RING}
    s_mul_i32 s{S_TMP}, s{sH}, {PH}
    s_add_u32 s{S_TMP}, s{S_TMP}, s{sU}
    s_lshl_b32 s{S_TMP + 1}, s{W}, 10
    s_add_u32 s{sPW}, s{S_TMP}, s{S_TMP + 1}
    s_lshl_b32 s{S_TMP + 2}, s{W}, 8
    s_add_u32 s{sPWC}, s{S_TMP}, s{S_TMP + 2}
    s_add_u32 s{sPWC}, s{sPWC}, 8192
    s_add_u32 s{sMEMZ}, s{sU}, {MEMB_OFF}
    s_xor_b32 s{sMEMW}, s{sMEMZ}, {MEMB_SLOT}
    s_add_u32 s{sMA}, s{sMEMZ}, s{S_TMP + 1}
    s_add_u32 s{sMC}, s{sMEMZ}, 8192
    s_mul_i32 s{S_TMP}, s{sLAY}, {3 * QKV_M}
    s_lshl_b32 s{S_TMP + 2}, s{sH}, 13
    s_add_u32 s{S_TMP}, s{S_TMP}, s{S_TMP + 2}
    s_add_u32 s{sTCH}, s{S_TMP}, {WS_QKV + 2 * QKV_M}
    s_lshl_b32 s{S_TMP + 1}, s{W}, 11
    s_add_u32 s{S_TMP}, s{S_TMP}, s{S_TMP + 1}
    s_add_u32 s{sKF}, s{S_TMP}, {WS_QKV + QKV_M}
    s_add_u32 s{sVF}, s{S_TMP}, {WS_QKV + 2 * QKV_M}
    s_mul_i32 s{S_TMP}, s{sLAY}, {NSEG * 32 * KM_UNIT}
    s_lshl_b32 s{S_TMP + 2}, s{sH}, 12
    s_add_u32 s{S_TMP}, s{S_TMP}, s{S_TMP + 2}
    s_add_u32 s{sKM}, s{S_TMP}, {WS_KM}
    s_mul_i32 s{S_TMP}, s{sLAY}, {NSEG * FL_STRIDE}
    s_lshl_b32 s{S_TMP + 2}, s{sH}, 9
    s_add_u32 s{S_TMP}, s{S_TMP}, s{S_TMP + 2}
    s_add_u32 s{sFL}, s{S_TMP}, {WS_FLAGS + FL_QKV}
    s_mov_b32 s{sSTEP}, 0
    """)
    for i in range(4):
        a(f"s_add_u32 s{sPR + i}, s{sU}, {i * 8 * PH}")
    srd(a, SRD_A, KA_MEM0, 9216)
    A_ = f"s[{SRD_A}:{SRD_A + 3}]"
    a(f"""
    s_cmp_gt_u32 s{W}, 2
    s_cbranch_scc1 Lr_mem0_done
    s_mov_b64 exec, s[{sMASK}:{sMASK + 1}]
    buffer_load_dword v{T4}, v{M0}, {A_}, 0 offen
    v_min_u32 v{T4}, s{sMAXD}, v{T4}
    buffer_store_dword v{T4}, v{vRST}, {WS}, s{sMEMZ} offen sc1
    v_mov_b32 v{T4}, -1
    buffer_store_dword v{T4}, v{vRST}, {WS}, s{sMEMW} offen sc1
    s_mov_b64 exec, -1
    Lr_mem0_done:
    v_mov_b32 v64, 0
    v_mov_b32 v65, 0
    v_mov_b32 v66, 0
    v_mov_b32 v67, 0
    v_lshrrev_b32 v{T3}, 2, v{vL16}
    buffer_store_dwordx4 v[64:67], v{vL16}, {WS}, s{sPW} offen sc1
    s_add_u32 s{S_TMP}, s{sPW}, 4096
    buffer_store_dwordx4 v[64:67], v{vL16}, {WS}, s{S_TMP} offen sc1
    buffer_store_dword v64, v{T3}, {WS}, s{sPWC} offen sc1
    """)
    a.force_wait(vm=0)
    a("s_barrier")
    a(f"s_cmp_lg_u32 s{W}, 0")
    a("s_cbranch_scc1 Lr_noadd")
    a(f"s_lshl_b32 s{S_TMP}, s{sLAY}, 2")
    a(f"s_add_u32 s{S_TMP}, s{S_TMP}, {DB_TEAM}")
    dbg_add(a, f"s{S_TMP}", 63, 64)
    a.label("Lr_noadd")
    if W is not None:
        a(f"""
        s_cmp_lt_u32 s{S_WAVE}, 3
        s_cbranch_scc1 Lr_not_w3
        v_lshlrev_b32 v{vRLD}, 3, v{vL16}
        v_lshrrev_b32 v{T3}, 2, v{vL16}
        v_and_b32 v{vRST}, 12, v{T3}
        v_and_b32 v{T3}, 16, v{T3}
        v_lshl_add_u32 v{vRST}, v{T3}, 3, v{vRST}
        Lr_not_w3:
        """)
    gate(a, 1, sLAY, 63, 64, "Lr_abort", "Lr_gate")
    loader(a)
    a(f"v_bfe_u32 v{vT0}, v{vL16}, 4, 4")
    a(f"v_mov_b32 v{vT1}, 0x3f80")
    a(f"v_mov_b32 v16, 0x3f800000")
    for d in range(4):
        a(f"v_cmp_eq_u32 vcc, {2 * d}, v{vT0}")
        a(f"v_cmp_eq_u32 s[{sU}:{sU + 1}], {2 * d + 1}, v{vT0}")
        a(f"v_cndmask_b32 v{12 + d}, 0, v{vT1}, vcc")
        a(f"v_cndmask_b32 v{12 + d}, v{12 + d}, v16, s[{sU}:{sU + 1}]")
    a(f"v_add_u32 v{vT0}, {L_SEL}, v{vL16}")
    a(f"ds_write_b128 v{vT0}, v[12:15]")
    a.wait(lg=0)


def loader(a):
    W = S_WAVE
    g0 = 12
    GW, GZ = 16, 17
    RA = 18
    RW, RZ = 22, 23
    TMP = 24
    T3, T4, T5, LANE, I16, GB = 63, 64, 65, 60, 61, 62
    sT, sWO, sLW = sL0, sL0 + 1, sL0 + 2
    SRD_D = 76
    srd(a, SRD_A, KA_WQ, 576 * 8192)
    srd(a, SRD_B, KA_WK, 576 * 8192)
    srd(a, SRD_C, KA_WV, 576 * 8192)
    srd(a, SRD_D, KA_BWO, 4096 * 1152)
    a(f"""
    v_lshrrev_b32 v{LANE}, 4, v{vL16}
    v_and_b32 v{I16}, 15, v{LANE}
    v_lshrrev_b32 v{GB}, 4, v{LANE}
    s_mul_i32 s{sLW}, s{W}, {LW_WAVE}
    s_add_u32 s{sLW}, s{sLW}, {L_LW}
    s_mul_i32 s{sT}, s{W}, {144 * 8192}
    s_lshl_b32 s{S_TMP}, s{sH}, 8
    s_add_u32 s{sT}, s{sT}, s{S_TMP}
    s_mul_i32 s{sWO}, s{sH}, 147456
    s_mul_i32 s{S_TMP}, s{W}, 288
    s_add_u32 s{sWO}, s{sWO}, s{S_TMP}
    """)
    a(f"""
    v_and_b32 v{T3}, 1, v{GB}
    v_lshrrev_b32 v{T4}, 1, v{I16}
    v_xor_b32 v{T4}, v{T4}, v{T3}
    v_lshlrev_b32 v{T4}, 5, v{T4}
    v_and_b32 v{T5}, 1, v{I16}
    v_lshl_add_u32 v{T4}, v{T5}, 4, v{T4}
    v_lshl_add_u32 v{g0}, v{GB}, 13, v{T4}
    """)
    for q in range(1, 4):
        a(f"v_xor_b32 v{g0 + q}, {(2 * (q >> 1) + 4 * (q & 1)) << 5}, v{g0}")
    a(f"""
    v_lshrrev_b32 v{T3}, 2, v{LANE}
    v_mul_u32_u24 v{T3}, 1152, v{T3}
    v_and_b32 v{T4}, 3, v{LANE}
    v_lshl_add_u32 v{GW}, v{T4}, 4, v{T3}
    v_lshrrev_b32 v{T3}, 1, v{LANE}
    v_mul_u32_u24 v{T3}, 1152, v{T3}
    v_and_b32 v{T4}, 1, v{LANE}
    v_lshl_add_u32 v{GZ}, v{T4}, 4, v{T3}
    """)
    R_, C4, GL = 40, 41, 42
    a(f"""
    v_lshrrev_b32 v{R_}, 2, v{I16}
    v_and_b32 v{C4}, 3, v{I16}
    v_and_b32 v{T3}, 1, v{GB}
    v_lshl_add_u32 v{GL}, v{T3}, 2, v{R_}
    v_and_b32 v{T4}, 1, v{R_}
    v_lshl_add_u32 v{T4}, v{T3}, 2, v{T4}
    v_lshrrev_b32 v{T5}, 1, v{R_}
    v_lshl_add_u32 v{T4}, v{T5}, 3, v{T4}
    v_lshlrev_b32 v{T4}, 8, v{T4}
    v_lshl_add_u32 v{T4}, v{C4}, 3, v{T4}
    v_lshrrev_b32 v{T5}, 1, v{GB}
    v_mul_u32_u24 v{T5}, {LW_WAVE}, v{T5}
    v_add_u32 v{T4}, v{T4}, v{T5}
    v_add_u32 v{T4}, {L_LW}, v{T4}
    s_lshl_b32 s{S_TMP}, s{W}, 1
    """)
    for b in range(2):
        a(f"s_add_u32 s{S_TMP + 1}, s{S_TMP}, {b}")
        a(f"v_xor_b32 v{T5}, s{S_TMP + 1}, v{GL}")
        a(f"v_lshl_add_u32 v{RA + 2 * b}, v{T5}, 5, v{T4}")
        a(f"v_add_u32 v{RA + 2 * b + 1}, {2 * LW_WAVE}, v{RA + 2 * b}")
    a(f"""
    v_lshrrev_b32 v{T3}, 1, v{GB}
    v_lshlrev_b32 v{T3}, 3, v{T3}
    v_and_b32 v{T4}, 1, v{GB}
    v_lshl_add_u32 v{T3}, v{T4}, 1, v{T3}
    v_and_b32 v{T4}, 1, v{R_}
    v_lshl_add_u32 v{T3}, v{T4}, 4, v{T3}
    v_lshrrev_b32 v{T4}, 1, v{R_}
    v_lshl_add_u32 v{T3}, v{T4}, 2, v{T3}
    v_lshlrev_b32 v{T4}, 3, v{C4}
    v_lshl_add_u32 v{RW}, v{T3}, 6, v{T4}
    v_add_u32 v{RW}, s{sLW}, v{RW}
    v_lshl_add_u32 v{RZ}, v{T3}, 5, v{T4}
    v_add_u32 v{RZ}, s{sLW}, v{RZ}
    """)
    jobs = [("x", m, t) for t in range(9) for m in "qkv" if (m, t) not in LDS_TILES]
    pos = [i % 8 for i in range(23)]
    jobs += [("x", m, t) for m, t in LDS_TILES]
    pos += [0, 1, 2, 3]
    jobs += [("w", p, ks) for p in range(2) for ks in range(2)]
    pos += [4, 5, 6, 7]
    jobs += [("z", 0)]
    pos += [8]
    jobs += [("w", p, ks) for p in (2, 3) for ks in range(2)]
    pos += [4, 5, 6, 7]
    jobs += [("z", 1)]
    pos += [8]
    n = len(jobs)
    ndma = [2 if j[0] == "z" else 4 for j in jobs]
    issued = []

    def dma(i):
        j = jobs[i]
        a(f"s_add_u32 m0, s{sLW}, {pos[i] * 4096}")
        if j[0] == "x":
            sb = (SRD_A, SRD_B, SRD_C)[MATS.index(j[1])]
            for q in range(4):
                a(f"s_add_u32 s{S_TMP}, s{sT}, {(16 * j[2] + 4 * q) * 8192}")
                a(f"buffer_load_dwordx4 v{g0 + q}, s[{sb}:{sb + 3}], s{S_TMP} offen lds")
                if q < 3:
                    a(f"s_add_u32 m0, m0, 1024")
        elif j[0] == "w":
            for q in range(4):
                a(f"s_add_u32 s{S_TMP}, s{sWO}, {(64 * j[2] + 16 * q) * 1152 + j[1] * 64}")
                a(f"buffer_load_dwordx4 v{GW}, s[{SRD_D}:{SRD_D + 3}], s{S_TMP} offen lds")
                if q < 3:
                    a(f"s_add_u32 m0, m0, 1024")
        else:
            for q in range(2):
                a(f"s_add_u32 s{S_TMP}, s{sWO}, {(64 * j[1] + 32 * q) * 1152 + 256}")
                a(f"buffer_load_dwordx4 v{GZ}, s[{SRD_D}:{SRD_D + 3}], s{S_TMP} offen lds")
                if q < 1:
                    a(f"s_add_u32 m0, m0, 1024")
        issued.append(i)

    def outstanding_after(i):
        k = issued.index(i)
        return sum(ndma[x] for x in issued[k + 1:])

    done = -1

    def issue_more(cur):
        for nx in range(n):
            if nx in issued:
                continue
            prev = [x for x in range(nx) if pos[x] == pos[nx]]
            inplace_prev = False
            if prev and max(prev) > done:
                if jobs[nx] == ("z", 0):
                    pass
                break
            if sum(ndma[x] for x in issued if x > done) + ndma[nx] > 56:
                break
            dma(nx)

    a.auto = False
    z0 = jobs.index(("z", 0))
    for i in range(8):
        dma(i)
    dma(z0)
    for i in range(n):
        j = jobs[i]
        shared = j[0] == "x"
        assert i in issued, (i, issued)
        a(f"s_waitcnt vmcnt({min(63, outstanding_after(i))})")
        if shared:
            a("s_barrier")
            done = i - 1
            issue_more(i)
        if j[0] == "x":
            keys = [(j[1], b, j[2]) for b in range(2)]
            adr = lambda b, X: (RA + 2 * b + (X >> 1), pos[i] * 4096 + (X & 1) * 512)
        elif j[0] == "w":
            keys = [("o", 2 * j[1] + b, j[2]) for b in range(2)]
            adr = lambda b, X: (RW, pos[i] * 4096 + (32 * (X >> 1) + (X & 1)) * 64 + b * 32)
        else:
            keys = [("o", 8, j[1])]
            adr = lambda b, X: (RZ, pos[i] * 4096 + (32 * (X >> 1) + (X & 1)) * 32)
        for b, k in enumerate(keys):
            loc = FM[k]
            for X in range(4):
                ad, off = adr(b, X)
                dst = vr(TMP + 8 * b + 2 * X, 2) if loc[0] == "l" else opnd(loc, 2, 2 * X)
                a(f"ds_read_b64_tr_b16 {dst}, v{ad} offset:{off}")
        a("s_waitcnt lgkmcnt(0)")
        if i == GJOB and GATE:
            a(f"s_add_u32 s{S_TMP}, s{sLAY}, s{W}")
            a(f"s_cmp_lg_u32 s{S_TMP}, 0")
            a("s_cbranch_scc1 Lr_nold")
            dbg_add(a, DB_LOADED, T3, T4)
            a.label("Lr_nold")
        if FM[keys[0]][0] == "l":
            if shared:
                a("s_barrier")
            for b, k in enumerate(keys):
                s = FM[k][1]
                a(f"ds_write_b128 v{vLW}, {vr(TMP + 8 * b, 4)} offset:{s * 2048}")
                a(f"ds_write_b128 v{vLW}, {vr(TMP + 8 * b + 4, 4)} offset:{s * 2048 + 1024}")
            a("s_waitcnt lgkmcnt(0)")
        if not shared:
            done = i
            issue_more(i)
        elif i + 1 < n and jobs[i + 1][0] != "x":
            a("s_barrier")
            done = i
            issue_more(i)
    a.auto = True
    a.vmq, a.lgq = [], []


def flag_wait_kv(a, pfx, soff_extra, abort):
    L = a.newlabel(pfx + "fw")
    a(f"s_mov_b32 s{S_SPIN}, 0")
    a(f"s_add_u32 s{S_TMP}, s{sFL}, {soff_extra + 128}")
    a(f"v_lshrrev_b32 v{vT1}, 2, v{vL16}")
    a(f"v_and_b32 v{vT0}, 16, v{vT1}")
    a(f"v_lshlrev_b32 v{vT0}, 3, v{vT0}")
    a(f"v_and_or_b32 v{vT1}, v{vT1}, 12, v{vT0}")
    a.label(L)
    a(f"buffer_load_dword v{vT0}, v{vT1}, s[{SRD_WS}:{SRD_WS + 3}], s{S_TMP} offen sc1")
    spin_check(a, abort)
    a(f"v_cmp_eq_u32 vcc, 0, v{vT0}")
    a(f"s_cbranch_vccnz {L}")


def r_loop(a, w, fast, abort, done, stamps=0):
    sc = "" if fast else " sc1"
    pfx = f"Lr{w}{'f' if fast else 's'}_"
    WS = f"s[{SRD_WS}:{SRD_WS + 3}]"
    HK = (w == 3)
    NST = 10
    tails = []

    def seq(*items):
        for it in items:
            if isinstance(it, (list, tuple)):
                seq(*it)
            elif callable(it):
                it()
            elif it:
                a(it)

    XS = {"A": 0, 7: 1, 8: 2, "bc": 3, "l1": 4, 9: 5, "red": 6, "mst": 7, "q1": 8, "q2": 9, NST: NST}

    PS = {0: 0, "ba0": 1, "ba": 2, 1: 3, "a2": 4, "pb": 5, "a3": 6, "bb": 7, 3: 8, 4: 9, NST: NST}

    def stamp(i):
        if not stamps:
            return
        if stamps == 5:
            if i in PS:
                i = PS[i]
                a(f"s_memtime s[{S_STAMP + 2 * i}:{S_STAMP + 1 + 2 * i}]" if i < NST else "s_memrealtime s[70:71]")
            return
        if stamps in (3, 4):
            if i == 0:
                i = "A"
            if i not in XS:
                return
            i = XS[i]
            ins = "s_memtime" if stamps == 3 else "s_memrealtime"
            a(f"{ins} s[{S_STAMP + 2 * i}:{S_STAMP + 1 + 2 * i}]" if i < NST else "s_memrealtime s[70:71]")
            return
        if isinstance(i, str):
            return
        if stamps == 2 or i == NST:
            a(f"s_memrealtime s[{S_STAMP + 2 * i}:{S_STAMP + 1 + 2 * i}]" if i < NST else "s_memrealtime s[70:71]")
        else:
            a(f"s_memtime s[{S_STAMP + 2 * i}:{S_STAMP + 1 + 2 * i}]")

    def dump_stamps():
        if stamps:
            a(f"s_and_b32 s{S_TMP}, s{sSTEP}, 7")
            a(f"s_cbranch_scc1 {pfx}nodump")
            a.force_wait(lg=0)
            for i in range(NST):
                a(f"v_writelane_b32 v{vT1}, s{S_STAMP + 2 * i}, {i}")
            a(f"v_writelane_b32 v{vT1}, s70, {NST}")
            a(f"v_writelane_b32 v{vT1}, s72, 11")
            a(f"v_writelane_b32 v{vT1}, s73, 12")
            a(f"s_lshl_b32 s{S_TMP}, s{sLAY}, 5")
            a(f"s_add_u32 s{S_TMP}, s{S_TMP}, s{sH}")
            a(f"s_lshl_b32 s{S_TMP}, s{S_TMP}, 6")
            a(f"s_add_u32 s{S_TMP}, s{S_TMP}, s{sSTEP}")
            a(f"s_lshl_b32 s{S_TMP}, s{S_TMP}, 8")
            a(f"s_add_u32 s{S_TMP}, s{S_TMP}, {WS_END + w * 64}")
            a(f"v_lshrrev_b32 v{vT0}, 2, v{vL16}")
            a(f"s_mov_b64 exec, 0x1fff")
            a(f"buffer_store_dword v{vT1}, v{vT0}, {WS}, s{S_TMP} offen")
            a(f"s_mov_b64 exec, -1")
            a("s_waitcnt vmcnt(0)")
            a.label(pfx + "nodump")

    def zero(base, n):
        return [f"v_mov_b64 {vr(base + 2 * i, 2)}, 0" for i in range(n // 2)]

    ACC = {"q": ACCQ, "k": ACCK, "v": ACCV}
    WR = (WR0, WR1)
    ak = [(w + i) & 3 for i in range(4)]
    bk = [4 + x for x in ak]

    def korder(t):
        if t < 4:
            return [("v", 0), ("q", 0), ("q", 1), ("v", 1), ("k", 0), ("k", 1)]
        return [("q", 0), ("k", 0), ("q", 1), ("k", 1)]
    own = [("q", 0), ("q", 1), ("k", 0), ("v", 0), ("k", 1), ("v", 1)]
    oth = bk[1:]
    lt = [t for t in oth if ("q", t) in LDS_TILES]
    rt_ = [t for t in oth if t not in lt]
    qord = lt[:1] + rt_ + [8] + lt[1:] if len(lt) == 2 else lt + rt_ + [8]
    use = [(m, b, ak[0]) for m, b in own] + [(m, b, t) for t in ak[1:] + bk[:1] for m, b in korder(t)]
    use += [("q", b, t) for t in qord for b in range(2)]
    lq = [k for k in use if FM[k][0] == "l"]
    assert len(lq) == 8 and not any(k in lq for k in use[:3])

    def LW(n):
        return lw_read(WR[n % 2], FM[lq[n]][1]) if n < len(lq) else []

    def S(m, b, t, A):
        k = (m, b, t)
        if FM[k][0] == "l":
            n = lq.index(k)
            return [SM(ACC[m] + 4 * b, A, vr(WR[n % 2], 8))] + LW(n + 2)
        return [SM(ACC[m] + 4 * b, A, opnd(FM[k]))]

    def mem_rd(dst, t):
        return f"ds_read_b128 {vr(dst, 4)}, v{vL16} offset:{L_MEMA + t * 1024}"

    def mem_wr(src, t):
        return f"ds_write_b128 v{vL16}, {vr(src, 4)} offset:{L_MEMA + t * 1024}"

    ldA = f"buffer_load_dwordx4 {vr(FA, 4)}, v{vL16}, {WS}, s{sMA} offen sc1"
    ldB = [f"s_add_u32 s{S_TMP}, s{sMA}, 4096", f"buffer_load_dwordx4 {vr(FB, 4)}, v{vL16}, {WS}, s{S_TMP} offen sc1"]
    ldC = f"buffer_load_dwordx4 {vr(FC, 4)}, v{vL16}, {WS}, s{sMC} offen sc1"

    def chk(q):
        return [f"v_max3_u32 v{vT1}, v{q}, v{q + 1}, v{q + 2}", f"v_max_u32 v{vT1}, v{vT1}, v{q + 3}",
                f"v_cmp_eq_u32 vcc, -1, v{vT1}"]

    def late_poll(name, q, ld, young):
        L = pfx + name
        a.force_wait(vm=young)
        seq(chk(q))
        a(f"s_cbranch_vccnz {L}_re")
        wn = list(a.win)
        sn = a.snap()

        def tail():
            a.label(L + "_re")
            a.win = wn
            a.restore(([], []))
            a(f"s_mov_b32 s{S_SPIN}, 0")
            a.label(L + "_lp")
            seq(ld)
            spin_check(a, abort)
            a.force_wait(vm=0)
            seq(chk(q))
            a(f"s_cbranch_vccnz {L}_lp")
            a(f"s_branch {L}_ok")
        tails.append(tail)
        a.label(L + "_ok")
        a.restore(sn)
        a.vmq = a.vmq[len(a.vmq) - young:] if young else []

    def KX(dst, j, tt):
        return f"ds_read_b128 {vr(dst, 4)}, v{vL16} offset:{L_KX + (j * 2 + tt) * 1024}"

    def FR(dst, j):
        return f"ds_read_b128 {vr(dst, 4)}, v{vQR} offset:{j * 64}"

    def MF(acc, A, B, first):
        return f"v_mfma_f32_16x16x32_bf16 {vr(acc, 4)}, {vr(A, 4)}, {vr(B, 4)}, {'0' if first else vr(acc, 4)}"

    def MF16(acc, A, B, first=False):
        return f"v_mfma_f32_16x16x16_bf16 {vr(acc, 4)}, {vr(A, 2)}, {vr(B, 2)}, {'0' if first else vr(acc, 4)}"

    def xe(acc):
        X, Y = acc, acc + 4
        return [f"v_add_f32 v{X}, v{X}, v{X + 2}", f"v_add_f32 v{Y}, v{Y}, v{Y + 2}",
                f"v_add_f32 v{X + 1}, v{X + 1}, v{X + 3}", f"v_add_f32 v{Y + 1}, v{Y + 1}, v{Y + 3}",
                f"v_cvt_pk_bf16_f32 v{X + 2}, v{X}, v{Y}",
                f"v_cvt_pk_bf16_f32 v{X + 3}, v{X + 1}, v{Y + 1}"]

    def kdma(i):
        return lambda: a(f"buffer_load_dwordx4 v{vL16}, {WS}, s{sKF} offen offset:{1024 * i} lds", tag="kdma")

    def flag_store():
        a(f"v_mov_b32 v{vT0}, 1")
        a(f"v_mov_b32 v{vT1}, 0")
        a(f"s_mov_b64 exec, 1")
        a(f"buffer_store_dword v{vT0}, v{vT1}, {WS}, s{sFLP} offen offset:384 sc1")
        a(f"s_mov_b64 exec, -1")

    def flag_check():
        if w != CKW:
            return
        if True:
            if NBF and TOUCH:
                a(f"s_cmp_eq_u32 s{sFOK}, 1")
                a(f"s_cbranch_scc1 {pfx}flok")
            a(f"v_cmp_eq_u32 vcc, 0, v{vT2}")
            a(f"s_cbranch_vccnz {pfx}flbad")
            wn2 = list(a.win)
            sn2 = a.snap()

            def flbad():
                a.label(pfx + "flbad")
                a.win = wn2
                a.restore(([], []))
                a(f"s_cmp_eq_u32 s{sSTEP}, {NSEG - 1}")
                a(f"s_cbranch_scc1 {pfx}flok")
                flag_wait_kv(a, pfx, FL_STRIDE, abort)
                a(f"s_branch {pfx}flok")
            tails.append(flbad)
            a.label(pfx + "flok")
            a.restore(sn2)

    flag_wait_kv(a, pfx, 0, abort)
    if w == FLW:
        a(f"s_lshl_b32 s{sFLP}, s{sLAY}, 5")
        a(f"s_add_u32 s{sFLP}, s{sFLP}, s{sH}")
        a(f"s_lshl_b32 s{sFLP}, s{sFLP}, 12")
        a(f"s_add_u32 s{sFLP}, s{sFLP}, {WS_DUMMY}")
    a(f"s_mov_b32 m0, {L_KX + w * 2048}")
    seq(kdma(0), kdma(1))
    if KD0:
        base = [0, 0, 3, 6][w]
        a(f"s_mov_b32 m0, {L_KX + base * 1024}")
        a(f"s_add_u32 s{sKF}, s{sKF}, {(base * 1024 - w * 2048) & 0xffffffff}")
    a(f"s_add_u32 s{sKF}, s{sKF}, {32 * 8192}")
    a(f"s_add_u32 s{sTCH}, s{sTCH}, {(32 * 8192 - (QKV_M if w == TKW else 0)) & 0xffffffff}")
    a.wait(vm=0)
    seq(LW(0), LW(1), zero(ACCQ, 24))
    seq(ldA)
    a.force_wait(vm=0, lg=0)
    head = pfx + "step"
    a.label(head)
    a.auto = False
    if stamps:
        a("s_mov_b32 s73, 0")
    a.force_wait(vm=3 if (w in (1, 2) and R2E) else 2)
    seq(chk(FA))
    a(f"s_cbranch_vccz {pfx}aok")
    if w in (1, 2) and R2E:
        if stamps:
            a("s_mov_b32 s73, 1")
        seq(ldA)
        a.force_wait(vm=1)
        seq(chk(FA))
        a(f"s_cbranch_vccz {pfx}aok")
    elif w in (0, 3):
        if stamps:
            a("s_mov_b32 s73, 1")
        a.force_wait(vm=1)
        seq(chk(FA))
        a(f"s_cbranch_vccz {pfx}aok")
    else:
        seq(ldA)
        nops(a, DQ2[w])
    if stamps:
        a("s_mov_b32 s73, 2")
    a(f"s_mov_b32 s{S_SPIN}, 0")
    a.label(pfx + "alp")
    seq(ldA)
    spin_check(a, abort)
    a.force_wait(vm=1)
    seq(chk(FA))
    if stamps:
        a("s_add_u32 s73, s73, 1")
    a(f"s_cbranch_vccnz {pfx}alp")
    a.label(pfx + "aok")
    a.auto = True
    a.vmq = [(frozenset(), "pa"), (frozenset(), "pa")]
    a.lgq = []
    stamp(0)
    def kstep(t, A, extra=()):
        ex = list(extra)
        for m, b in korder(t):
            seq(S(m, b, t, A))
            if ex:
                seq(ex.pop(0))
        seq(ex)
    pre_issued = []
    if BEARLY:
        a.auto = False
        seq(mem_wr(FA, ak[0]), ldB)
        a.auto = True
        a.lgq = [(frozenset(), None)]
        a.vmq[-1] = (frozenset(), "pb")
        pre_issued = ["pb"]
        seq([S(m, b, ak[0], FA) for m, b in own[:3]])
    else:
        seq(mem_wr(FA, ak[0]), [S(m, b, ak[0], FA) for m, b in own[:3]])
    stamp("ba0")
    a.barrier(lg=0)
    stamp("ba")
    seq(mem_rd(R0, ak[1]), mem_rd(R1, ak[2]))
    flg = [f"v_lshrrev_b32 v{vT1}, 2, v{vL16}", f"v_and_b32 v{vT0}, 16, v{vT1}", f"v_lshlrev_b32 v{vT0}, 3, v{vT0}",
           f"v_and_or_b32 v{vT1}, v{vT1}, 12, v{vT0}", f"s_add_u32 s{S_TMP}, s{sFL}, {FL_STRIDE + 128}",
           f"v_mov_b32 v{vT2}, 2", f"buffer_load_dword v{vT2}, v{vT1}, {WS}, s{S_TMP} offen sc1"]
    stream = [(m, b, ak[0], FA) for m, b in own[3:]] + [(m, b, ak[1], R0) for m, b in korder(ak[1])] + \
             [(m, b, ak[2], R1) for m, b in korder(ak[2])]
    at = {}
    if not BEARLY:
        at.setdefault(PB0 + STG * w, []).append(("pb", ldB))
    at.setdefault(PC0 + STG * w, []).append(("pc", [ldC]))
    if w == CKW:
        at.setdefault(max(PB0, PC0) + STG * w + 1, []).append(("flg", flg))
    issued = list(pre_issued)
    for n, (m, b, t, A) in enumerate(stream):
        seq(S(m, b, t, A))
        for tg, ins in at.get(n, []):
            a.auto = False
            seq(ins)
            a.auto = True
            a.vmq[-1] = (frozenset([V0 + vT2]) if (tg == "flg" and not NBF) else frozenset(), tg)
            issued.append(tg)
        if n == 2 + FAD:
            a.force_wait(vm=len(issued))
            a.vmq = a.vmq[len(a.vmq) - len(issued):] if issued else []
            seq(mem_rd(FA, ak[3]))
            stamp(1)
    assert "pb" in issued and "pc" in issued
    nyB = len(issued) - 1 - issued.index("pb")
    stamp("a2")
    nyC = len(issued) - 1 - issued.index("pc")
    if BEARLY:
        late_poll("pb", FB, ldB, nyB)
        stamp("pb")
        a(mem_wr(FB, bk[0]), tag="fbw")
        if w == FLW:
            flag_store()
            nyC += 1
        kstep(ak[3], FA)
        stamp("a3")
    else:
        kstep(ak[3], FA)
        stamp("a3")
        late_poll("pb", FB, ldB, nyB)
        stamp("pb")
        a(mem_wr(FB, bk[0]), tag="fbw")
        if w == FLW:
            flag_store()
            nyC += 1
        kstep(bk[0], FB)
    yl = [t for _, t in a.lgq]
    a.barrier(lg=len(yl) - 1 - yl.index("fbw") if "fbw" in yl else None)
    stamp("bb")
    o3 = [t for t in qord if t != 8]
    FR_ = {bk[0]: FB, o3[0]: R0, o3[1]: R1, o3[2]: FA, 8: FC}
    seq([mem_rd(FR_[t], t) for t in o3])
    if BEARLY:
        kstep(bk[0], FB)
    seq(S("v", 0, bk[0], FB), S("v", 1, bk[0], FB))
    stamp(2)
    VXA, VXB = WR1, WR1 + 4
    ldV = [f"buffer_load_dwordx4 {vr(VXA, 4)}, v{vL16}, {WS}, s{sVF} offen",
           f"buffer_load_dwordx4 {vr(VXB, 4)}, v{vL16}, {WS}, s{sVF} offen offset:1024"]
    for t in qord:
        if t == 8:
            late_poll("pc", FC, ldC, nyC)
        seq(S("q", 0, t, FR_[t]), S("q", 1, t, FR_[t]))
    qe, ke = xe(ACCQ), xe(ACCK)
    kord = o3 + [8]
    fl = [None, None] + qe[:4] + [[qe[4], KX(WR0, 0, 0)], [qe[5], KX(WR0 + 4, 0, 1)]]
    nv = 0
    for i in range(VEARLY):
        fl[(w + 4 * i) % 8 if VEARLY > 1 else w] = [fl[(w + 4 * i) % 8 if VEARLY > 1 else w], ldV[i]]
        nv += 1
    for i, (t, b) in enumerate([(t, b) for t in kord for b in range(2)]):
        seq(S("k", b, t, FR_[t]), fl[i])
    stamp(3)
    dv = [t for t in o3] + [8]
    seq(f"ds_write_b32 v{vQW}, v{ACCQ + 2} offset:{2 * ROWS}", f"ds_write_b32 v{vQW}, v{ACCQ + 3} offset:{3 * ROWS}",
        S("v", 0, dv[0], FR_[dv[0]]), S("v", 1, dv[0], FR_[dv[0]]),
        ke,
        f"ds_write_b32 v{vQW}, v{ACCK + 2} offset:0", f"ds_write_b32 v{vQW}, v{ACCK + 3} offset:{ROWS}",
        S("v", 0, dv[1], FR_[dv[1]]), S("v", 1, dv[1], FR_[dv[1]]))
    seq(ldV[nv:])
    if not NBF:
        flag_check()
    a.barrier(lg=0)
    stamp(4)
    SX0, SX1, SMm = ACCQ, ACCQ + 4, ACCK + 4
    F0, F1, F2, F3 = FB, R0, ACCK, R1
    KA, KB = FA, FC
    ve = [f"v_add_f32 v{ACCV}, v{ACCV}, v{ACCV + 2}", f"v_add_f32 v{ACCV + 4}, v{ACCV + 4}, v{ACCV + 6}",
          f"v_add_f32 v{ACCV + 1}, v{ACCV + 1}, v{ACCV + 3}", f"v_add_f32 v{ACCV + 5}, v{ACCV + 5}, v{ACCV + 7}",
          f"v_cvt_pk_bf16_f32 v{ACCV + 2}, v{ACCV}, v{ACCV + 1}",
          f"v_cvt_pk_bf16_f32 v{ACCV + 3}, v{ACCV + 4}, v{ACCV + 5}"]
    def touch():
        if TOUCH and not NBF and w in (TKW, TCW):
            a.auto = False
            a(f"v_lshlrev_b32 v{vT0}, 3, v{vL16}")
            a(f"buffer_load_dword v{vT2}, v{vT0}, {WS}, s{sTCH} offen")
            a.auto = True
        if TOUCH and NBF and w == CKW:
            a.auto = False
            a(f"v_cmp_eq_u32 vcc, 1, v{vT2}")
            a(f"v_lshlrev_b32 v{vT0}, 3, v{vL16}")
            a(f"s_cmp_eq_u64 vcc, -1")
            a(f"s_cselect_b32 s{sFOK}, 1, 0")
            a(f"s_cselect_b64 exec, -1, 0")
            a(f"buffer_load_dword v{vT2}, v{vT0}, {WS}, s{sTCH} offen")
            a(f"s_sub_u32 s{S_TMP}, s{sTCH}, {QKV_M}")
            a(f"buffer_load_dword v{vT2}, v{vT0}, {WS}, s{S_TMP} offen")
            a(f"s_mov_b64 exec, -1")
            a.auto = True
    post = [[S("v", 0, dv[2], FA)], [S("v", 1, dv[2], FA), KX(KA, 1, 0)], [S("v", 0, 8, FC)], [S("v", 1, 8, FC), KX(KB, 1, 1)]]
    post[TPOS].append(touch)
    seq(FR(F0, 0), FR(F1, 1), FR(F2, 2), FR(F3, 3), post)
    PK = ACCV + 6
    seq(MF(SX0, WR0, F0, True), MF(SX1, WR0 + 4, F0, True), MF(SMm, F0, F0, True),
        KX(WR0, 2, 0), KX(WR0 + 4, 2, 1),
        MF(SX0, KA, F1, False), f"v_lshrrev_b32 v{vT1}, 1, v{vL16}", f"v_lshrrev_b32 v{vT0}, 9, v{vL16}",
        MF(SX1, KB, F1, False), f"v_lshl_add_u32 v{vT0}, v{vT0}, 5, v{vT1}", ve[0],
        MF(SMm, F1, F1, False), ve[1], ve[2],
        KX(KA, 3, 0), KX(KB, 3, 1),
        MF(SX0, WR0, F2, False), ve[3], ve[4],
        MF(SX1, WR0 + 4, F2, False), ve[5],
        f"ds_read_b64 {vr(PK, 2)}, v{vT0} offset:{L_F + 4 * w * ROWS}",
        MF(SMm, F2, F2, False),
        f"s_add_u32 s{S_TMP}, s{sKM}, {2048 + w * 512}",
        f"buffer_store_dwordx2 {vr(ACCV + 2, 2)}, v{vT1}, {WS}, s{S_TMP} offen sc1",
        MF(SX0, KA, F3, False), MF(SX1, KB, F3, False), MF(SMm, F3, F3, False),
        f"s_add_u32 s{S_TMP}, s{sKM}, {w * 512}",
        f"buffer_store_dwordx2 {vr(PK, 2)}, v{vT1}, {WS}, s{S_TMP} offen sc1")
    stamp(5)
    MX, T1 = vT0, vT1
    MP = ACCV
    P4, PB, OX, OY, LQ, ONES = Q[0], Q[1], Q[2], Q[3], Q[4], ACCK
    lds_seq = [("o", 4, 0), ("o", 4, 1), ("o", 5, 0), ("o", 5, 1), ("o", 6, 0), ("o", 6, 1), ("o", 7, 0), ("o", 7, 1), ("o", 8, 1)]
    early = (w == 0 and PAPOS >= 0)
    ring = [WR0, WR1] if early else [WR0, WR1, ACCQ, ACCK]
    bufof = {k: ring[i % len(ring)] for i, k in enumerate(lds_seq)}

    def wo_rd(i):
        return lw_read(bufof[lds_seq[i]], FM[lds_seq[i]][1])

    vals = list(range(SX0, SX0 + 8)) + [SMm, SMm + 1]
    fm = [f"v_fma_f32 v{r}, v{r}, s{sCEXP}, -v{MP}" for r in vals]
    ex = [f"v_exp_f32 v{r}, v{r}" for r in vals]
    X5 = ACCV + 4
    seq(wo_rd(0),
        f"v_mov_b64 {vr(ONES, 2)}, s[{sONES}:{sONES + 1}]", f"v_mov_b64 {vr(ONES + 2, 2)}, s[{sONES}:{sONES + 1}]",
        f"v_mov_b32 v{PB + 1}, 0", f"v_mov_b32 v{PB + 2}, 0",
        f"v_max3_f32 v{MX}, v{SX0}, v{SX0 + 1}, v{SX0 + 2}",
        f"v_max3_f32 v{MX}, v{MX}, v{SX0 + 3}, v{SX0 + 4}",
        f"v_max3_f32 v{MX}, v{MX}, v{SX0 + 5}, v{SX0 + 6}",
        f"v_max3_f32 v{MX}, v{MX}, v{SX0 + 7}, v{SMm}",
        f"v_max_f32 v{MX}, v{MX}, v{SMm + 1}",
        f"v_mov_b32 v{T1}, v{MX}",
        zero(X5, 4),
        f"v_permlane32_swap_b32 v{MX}, v{T1}",
        f"v_max_f32 v{MX}, v{MX}, v{T1}",
        f"v_mov_b32 v{T1}, v{MX}",
        "s_nop 1",
        f"v_permlane16_swap_b32 v{MX}, v{T1}",
        f"v_max_f32 v{MX}, v{MX}, v{T1}",
        f"v_mul_f32 v{MP}, s{sCEXP}, v{MX}",
        fm[0], fm[1], fm[2], fm[3], ex[0], ex[1], fm[4], fm[5], ex[2], ex[3],
        f"v_cvt_pk_bf16_f32 v{P4}, v{SX0}, v{SX0 + 1}", fm[6], fm[7], ex[4], ex[5],
        f"v_cvt_pk_bf16_f32 v{P4 + 1}, v{SX0 + 2}, v{SX0 + 3}", fm[8], fm[9], ex[6], ex[7],
        f"v_cvt_pk_bf16_f32 v{P4 + 2}, v{SX0 + 4}, v{SX0 + 5}", ex[8], ex[9],
        f"v_cvt_pk_bf16_f32 v{P4 + 3}, v{SX0 + 6}, v{SX0 + 7}",
        f"v_cvt_pk_bf16_f32 v{PB}, v{SMm}, v{SMm + 1}",
        f"v_cvt_pk_bf16_f32 v{PB + 3}, v{SMm}, v{SMm + 1}",
        MF(LQ, ONES, P4, True), zero(SX0, 2), zero(SX0 + 2, 2),
        MF(OX, VXA, P4, True), zero(SMm, 2), zero(SMm + 2, 2),
        MF(OY, VXB, P4, True), wo_rd(1),
        MF16(LQ, ONES, PB),
        MF16(OX, ACCV + 2, PB), zero(ONES, 4),
        MF16(OY, ACCV + 2, PB + 2), zero(P4, 4), zero(Q[1], 4),
        f"v_rcp_f32 v{MX}, v{LQ}", zero(Q[4], 4))
    stamp(6)
    OP = ACCQ + 4
    for i in range(4):
        a(f"v_mul_f32 v{OX + i}, v{MX}, v{OX + i}")
        a(f"v_mul_f32 v{OY + i}, v{MX}, v{OY + i}")
        a(f"v_cvt_pk_bf16_f32 v{OP + i}, v{OX + i}, v{OY + i}")
    a(f"ds_write_b128 v{vOW}, {vr(OP, 4)}")
    seq(zero(ACCV, 4))
    if NBF:
        flag_check()
    TA = [ACCQ, ACCK + 4, ACCK, ACCQ + 4, Q[0], Q[1], Q[4], ACCV + 4, ACCV]
    a.barrier(lg=0)
    OA0, OA1 = Q[2], Q[3]
    a(f"ds_read_b128 {vr(OA0, 4)}, v{vOR} offset:0")
    a(f"ds_read_b128 {vr(OA1, 4)}, v{vOR} offset:128")
    last = pfx + "last"
    seq(f"s_cmp_eq_u32 s{sSTEP}, {NSEG - 1}", f"s_cbranch_scc1 {last}",
        zero(ACCQ + 4, 4))
    nkd = ([0, 3, 3, 2] if KD0 else [2, 2, 2, 2])[w]
    seq([kdma(i) for i in range(nkd)])

    stamp(7)
    ST = {0: TA[0], 1: TA[4], 2: TA[8]}

    def epi(tau):
        acc = TA[tau]
        dst = ST[tau // 4] + tau % 4
        return [f"v_add_f32 v{acc}, v{acc}, v{acc + 2}", f"v_add_f32 v{acc + 1}, v{acc + 1}, v{acc + 3}",
                f"v_cvt_pk_bf16_f32 v{dst}, v{acc}, v{acc + 1}"]

    def wS(tau, ks):
        k = ("o", tau, ks)
        B = vr(bufof[k], 8) if FM[k][0] == "l" else opnd(FM[k])
        return SM(TA[tau], (OA0, OA1)[ks], B)

    def tag(r):
        return f"v_and_or_b32 v{r}, v{r}, -2, s{sPH}"
    e = [epi(t) for t in range(4)]
    seq(wS(0, 0), wS(0, 1), wS(1, 0), wS(1, 1), e[0][0], wS(2, 0), e[0][1], wS(2, 1), e[0][2], wS(3, 0), e[1][0], wS(3, 1), e[1][1],
        wS(4, 0), e[1][2], wS(4, 1), e[2], e[3], tag(ST[0] + 3),
        f"buffer_store_dwordx4 {vr(ST[0], 4)}, v{vL16}, {WS}, s{sPW} offen{sc}")
    stamp(8)
    nxt = 2 + len(ring)
    seq([wo_rd(i) for i in range(2, nxt)])
    order = [(tau, ks) for tau in range(5, 9) for ks in range(2)]
    LA = [ACCQ, ACCQ + 4, ACCK, ACCK + 4]
    ldLA = [f"buffer_load_dwordx4 {vr(LA[i], 4)}, v{vRLD}, {WS}, s{sPR + i} offen sc1" for i in range(4)]
    for idx, (tau, ks) in enumerate(order):
        if early and idx == PAPOS:
            a.auto = False
            nops(a, DP1[0])
            seq(ldLA)
            stamp("l1")
            a.auto = True
        a(wS(tau, ks))
        k = ("o", tau, ks)
        if FM[k][0] == "l" and nxt < len(lds_seq):
            seq(wo_rd(nxt))
            nxt += 1
    stamp("bc")
    epiB = [epi(tau) for tau in range(4, 8)] + [tag(ST[1] + 3), f"s_add_u32 s{S_TMP}, s{sPW}, 4096",
                                                f"buffer_store_dwordx4 {vr(ST[1], 4)}, v{vL16}, {WS}, s{S_TMP} offen{sc}"]
    epiC = [epi(8), tag(ST[2]), f"v_lshrrev_b32 v{vT0}, 2, v{vL16}",
            f"buffer_store_dword v{ST[2]}, v{vT0}, {WS}, s{sPWC} offen{sc}"]
    adv = [f"s_xor_b32 s{r}, s{r}, {MEMB_SLOT}" for r in (sMA, sMC)]
    advE = [f"s_add_u32 s{sSTEP}, s{sSTEP}, 1", f"s_add_u32 s{sVF}, s{sVF}, {32 * 8192}",
            f"s_add_u32 s{sKF}, s{sKF}, {32 * 8192}", f"s_add_u32 s{sKM}, s{sKM}, {32 * KM_UNIT}"]
    if w == FLW:
        advE += [f"s_mov_b32 s{sFLP}, s{sFL}"]
    advE += [f"s_add_u32 s{sTCH}, s{sTCH}, {32 * 8192}"]
    advE += [f"s_add_u32 s{sFL}, s{sFL}, {FL_STRIDE}"]
    advL = [f"s_xor_b32 s{sPH}, s{sPH}, 1"] + [f"s_xor_b32 s{r}, s{r}, {MEMB_SLOT}" for r in ([] if HK else [sMEMW, sMEMZ])]
    if not HK:
        u = w
        LB = [Q[1], Q[2], Q[3], Q[4]]
        SEL, D = Q[7], Q[8]
        wide = u < 2

        def loads(L):
            if wide:
                return [f"buffer_load_dwordx4 {vr(L[i], 4)}, v{vRLD}, {WS}, s{sPR + i} offen sc1" for i in range(4)]
            return [f"buffer_load_dword v{L[i]}, v{vRLD}, {WS}, s{sPR + i} offen sc1" for i in range(4)]

        def M(i):
            return f"s[{sM + 2 * i}:{sM + 2 * i + 1}]"

        def check(L, extra):
            for i in range(4):
                a.force_wait(vm=3 - i + extra)
                a(MF(D, L[i], SEL, i == 0) if wide else MF16(D, L[i], SEL, i == 0))
                a(f"v_and_b32 v{vT1}, 1, v{L[i] + (3 if wide else 0)}")
                a(f"v_cmp_ne_u32 {M(i)}, s{sPH}, v{vT1}")
                if i == 2:
                    a(f"s_or_b64 {M(0)}, {M(0)}, {M(1)}") if False else None
            a(f"s_or_b64 vcc, {M(0)}, {M(1)}")
            a(f"s_or_b64 vcc, vcc, {M(2)}")
            a(f"s_or_b64 vcc, vcc, {M(3)}")

        def sel_build(L):
            a(f"v_add_u32 v{vT1}, {L_SEL}, v{vL16}")
            if wide:
                a(f"ds_read_b128 {vr(SEL, 4)}, v{vT1}")
            else:
                a(f"ds_read_b32 v{SEL}, v{vT1}")
                a(f"v_mov_b32 v{SEL + 1}, 0")
                for i in range(4):
                    a(f"v_mov_b32 v{L[i] + 1}, 0")
        if u == 0 and early:
            seq(epiB, epiC)
            a.auto = False
            y = 2
        if u == 0:
            if not early:
                seq(epiB, epiC) if DP1[0] else None
                a.auto = False
                nops(a, DP1[0])
                seq(loads(LA))
                stamp("l1")
                y = 0
                if not DP1[0]:
                    a.auto = True
                    seq(epiB, epiC)
                    a.auto = False
                    y = 2
            sel_build(None)
            nops(a, DP2)
            seq(loads(LB))
            seq(advE, LW(0))
            a("s_waitcnt lgkmcnt(2)")
            stamp(9)
            if stamps:
                a("s_mov_b32 s72, 0")
            check(LA, 4 + y)
            a(f"s_cbranch_scc0 {pfx}red")
            a(f"s_mov_b32 s{S_SPIN}, 0")
            a.label(pfx + "p1")
            if stamps:
                a("s_add_u32 s72, s72, 1")
            seq(loads(LA))
            check(LB, 4)
            a(f"s_cbranch_scc0 {pfx}red")
            if stamps:
                a("s_add_u32 s72, s72, 1")
            seq(loads(LB))
            spin_check(a, abort)
            check(LA, 4)
            a(f"s_cbranch_scc1 {pfx}p1")
        else:
            seq(epiB, epiC)
            a.auto = False
            sel_build(LB)
            seq(advE, LW(0), zero(ACCQ, 24))
            nops(a, DP1[u])
            seq(loads(LB))
            stamp("l1")
            a("s_waitcnt lgkmcnt(0)")
            stamp(9)
            if stamps:
                a("s_mov_b32 s72, 0")
            check(LB, 0)
            a(f"s_cbranch_scc0 {pfx}red")
            a(f"s_mov_b32 s{S_SPIN}, 0")
            a.label(pfx + "p1")
            if stamps:
                a("s_add_u32 s72, s72, 1")
            for i in range(4):
                a(f"s_mov_b64 exec, {M(i)}")
                a(loads(LB)[i])
            a("s_mov_b64 exec, -1")
            spin_check(a, abort)
            check(LB, 0)
            a(f"s_cbranch_scc1 {pfx}p1")
        a.label(pfx + "red")
        stamp("red")
        if u > 0:
            seq(adv, ldA)
        a.auto = True
        a.vmq, a.lgq = [], []
        seq(f"v_permlane16_swap_b32 v{D}, v{D + 2}", f"v_permlane16_swap_b32 v{D + 1}, v{D + 3}",
            f"s_mov_b64 exec, s[{sMASK}:{sMASK + 1}]",
            f"v_add_f32 v{D}, v{D}, v{D + 2}", f"v_add_f32 v{D + 1}, v{D + 1}, v{D + 3}",
            f"v_cvt_pk_bf16_f32 v{D}, v{D}, v{D + 1}", f"v_min_u32 v{D}, s{sMAXD}, v{D}",
            f"buffer_store_dword v{D}, v{vRST}, {WS}, s{sMEMW} offen{sc}",
            f"v_mov_b32 v{D + 1}, -1",
            f"buffer_store_dword v{D + 1}, v{vRST}, {WS}, s{sMEMZ} offen{sc}",
            f"s_mov_b64 exec, -1")
        stamp("mst")
        a.auto = False
        if u == 0:
            seq(adv, advL)
            nops(a, DQ1[0])
            seq(ldA)
            stamp("q1")
            a("s_waitcnt vmcnt(3)")
            seq(LW(1), zero(ACCQ, 24))
            nops(a, DQ2[w])
            seq(ldA)
            stamp("q2")
            nops(a, DQ3[w])
            seq(ldA)
        else:
            if R2E:
                seq(ldA)
            seq(advL, LW(1))
    else:
        seq(epiB, epiC)
        a.auto = False
        seq(adv, advE, advL)
        trace(a, vT0, vT1, True)
        seq(LW(0), LW(1), zero(ACCQ, 24))
        if HKSL:
            a(f"s_sleep {HKSL}")
        nops(a, DQ1[w])
        seq(ldA)
        stamp("q1")
        nops(a, DQ2[w])
        seq(ldA)
        stamp("q2")
        nops(a, DQ3[w])
        seq(ldA)
    a("s_waitcnt lgkmcnt(0)")
    stamp(NST)
    dump_stamps()
    a.auto = True
    a.restore(([], []))
    a(f"s_branch {head}")
    for t in tails:
        t()
    a.restore(([], []))
    a.label(last)
    a.force_wait(vm=0, lg=0)
    a.I("s_barrier")
    if w != FLW:
        a(f"s_branch {done}")
    else:
        a(f"s_mov_b32 s{sFLP}, s{sFL}")
        flag_store()
        a(f"s_branch {done}")
```

```python
from pool import *


def MF16(acc, A, B):
    return f"v_mfma_f32_16x16x16_bf16 {vr(acc, 4)}, {A if isinstance(A, str) else vr(A, 2)}, {vr(B, 2)}, {vr(acc, 4)}"


TASMP = int(os.environ.get("TASMP", "12"))
TAPRE = int(os.environ.get("TAPRE", "6"))


def role_ta(a, abort, done):
    lane_setup(a, 13)
    vKM, vL8, vFR = 9, 10, 11
    BI, ON, PB, PX, LQ = 236, 16, 20, 24, 28
    SX, SMm = 32, 44
    KMf, VMf, O, OUT = 52, 68, 76, 108
    SET = [("v", 140), ("a", 0)]
    NEG = hex(f32bits(-1e30))
    sQO, sNQ, sRDY, sPN = sO1, sK3, sPF, sK1
    sFIN = sBUF
    sKR = sLEFT
    KMS = [96, 120]
    PF2 = f"s[{SRD_A}:{SRD_A + 3}]"

    def publish():
        a(f"s_cmp_lg_u32 s{sPN}, 0")
        a("s_cselect_b64 exec, 1, 0")
        a(f"buffer_store_dword v{vONE}, v{vZERO}, {WS}, s{sPEND} offen sc1")
        a("s_mov_b64 exec, -1")
        a(f"s_add_u32 s{sPEND}, s{sPEND}, s{sPN}")
        a(f"s_mov_b32 s{sPN}, 0")

    def fr(st, m, i):
        k, b = SET[st]
        return f"{k}[{b + 32 * m + 4 * i}:{b + 32 * m + 4 * i + 3}]"

    if os.environ.get("TA3", "1") == "1":
        TA_IDX = f"""s_cmp_ge_u32 s{S_ROLE}, 11
    s_cselect_b32 s{sNL}, 1, 0
    s_cselect_b32 s{S_TMP}, 11, 0
    s_sub_u32 s{S_TMP}, s{S_ROLE}, s{S_TMP}
    s_mul_i32 s{sK2}, s{S_TMP}, 3
    s_add_u32 s{sK2}, s{sK2}, s{S_WAVE}
    s_cmp_eq_u32 s{S_WAVE}, 3
    s_cselect_b32 s{sK2}, 32, s{sK2}
    s_mov_b32 s{sFIN}, s{sK2}"""
    else:
        TA_IDX = f"""s_lshl_b32 s{S_TMP}, s{S_ROLE}, 2
    s_add_u32 s{S_TMP}, s{S_TMP}, s{S_WAVE}
    s_lshr_b32 s{sNL}, s{S_TMP}, 5
    s_and_b32 s{sK2}, s{S_TMP}, 31
    s_mov_b32 s{sFIN}, s{sK2}"""
    a(f"""
    {TA_IDX}
    s_mov_b32 s{sNS}, 0
    s_mov_b32 s{sK4}, {hex(f32bits(128 ** -0.5 * 1.4426950408889634))}
    v_lshrrev_b32 v{vT0}, 2, v{vC}
    v_and_b32 v{vT1}, 1, v{vC}
    v_lshl_add_u32 v{vT0}, v{vT0}, 1, v{vT1}
    v_lshlrev_b32 v{vKM}, 8, v{vT0}
    v_lshl_add_u32 v{vKM}, v{vG}, 4, v{vKM}
    v_lshrrev_b32 v{vL8}, 1, v{vL16}
    v_mov_b32 v{vFR}, 384
    v_mov_b32 v{vT1}, {NEG}
    v_mov_b32 v{PB + 1}, 0
    v_mov_b32 v{PB + 2}, 0
    s_mul_i32 s{sNFL}, s{sNL}, {NSEG * FL_STRIDE}
    s_lshl_b32 s{S_TMP}, s{sK2}, 9
    s_add_u32 s{sNFL}, s{sNFL}, s{S_TMP}
    s_add_u32 s{sNFL}, s{sNFL}, {WS_FLAGS + FL_QKV}
    s_mul_i32 s{sNQ}, s{sNL}, {3 * QKV_M}
    s_lshl_b32 s{S_TMP}, s{sK2}, 13
    s_add_u32 s{sNQ}, s{sNQ}, s{S_TMP}
    s_add_u32 s{sNQ}, s{sNQ}, {WS_QKV}
    s_lshl_b32 s{sO2}, s{sNL}, 11
    s_add_u32 s{sO2}, s{sO2}, s{sK2}
    s_lshl_b32 s{sO3}, s{sO2}, 13
    s_add_u32 s{sO3}, s{sO3}, {WS_OF}
    s_lshl_b32 s{sO2}, s{sO2}, 12
    s_add_u32 s{sO2}, s{sO2}, {WS_KM}
    s_mul_i32 s{sPEND}, s{sNL}, {NSEG * FL_STRIDE}
    s_lshr_b32 s{S_TMP}, s{sK2}, 2
    s_lshl_b32 s{S_TMP}, s{S_TMP}, 7
    s_add_u32 s{sPEND}, s{sPEND}, s{S_TMP}
    s_and_b32 s{S_TMP}, s{sK2}, 3
    s_lshl_b32 s{S_TMP}, s{S_TMP}, 2
    s_add_u32 s{sPEND}, s{sPEND}, s{S_TMP}
    s_add_u32 s{sPEND}, s{sPEND}, {WS_FLAGS + FL_OF}
    s_mov_b32 s{SRD_C}, s{SRD_WS}
    s_mov_b32 s{SRD_C + 1}, s{SRD_WS + 1}
    s_mov_b32 s{SRD_C + 2}, 0
    s_mov_b32 s{SRD_C + 3}, 0x00020000
    s_mov_b32 s{sRDY}, 0
    s_mov_b32 s{sKR}, 0
    s_mov_b32 s{sPN}, 0
    s_mov_b32 s{SRD_A}, s{SRD_WS}
    s_mov_b32 s{SRD_A + 1}, s{SRD_WS + 1}
    s_mov_b32 s{SRD_A + 2}, 0
    s_mov_b32 s{SRD_A + 3}, 0x00020000
    """)
    for i in range(4):
        a(f"v_mov_b32 v{ON + i}, 0x3f803f80")
        a(f"v_lshl_add_u32 v{vT0}, v{vG}, 2, {i}")
        a(f"v_cmp_le_u32 vcc, v{vT0}, v{vC}")
        a(f"v_cndmask_b32 v{BI + i}, v{vT1}, v{vZERO}, vcc")

    def qkv_ops(st, srd_):
        ops = []
        for m in range(3):
            for i in range(8):
                pre = [f"s_add_u32 s{sQO}, s{sNQ}, {m * QKV_M + i * 1024}"] if i % 4 == 0 else []
                ops.append(pre + [f"buffer_load_dwordx4 {fr(st, m, i)}, v{vL16}, {srd_}, s{sQO} offen offset:{(i % 4) * 1024}"])
        return ops

    a(f"v_mov_b32 v{vFL1}, 0")

    def km_ops(st, srd_):
        b = KMS[st]
        ops = [[f"buffer_load_dwordx4 {ar(b + 4 * j, 4)}, v{vKM}, {srd_}, s{sO2} offen offset:{j * 64}"] for j in range(4)]
        ops += [[f"buffer_load_dwordx2 {ar(b + 16 + 2 * j, 2)}, v{vL8}, {srd_}, s{sO2} offen offset:{2048 + j * 512}"] for j in range(4)]
        return ops

    MX, T1 = vT0, vT1
    init_wait(a, sNL, vT0, vT1, abort, "Lta_ini")
    a(f"s_cmp_ge_u32 s{sFIN}, 32")
    a(f"s_cbranch_scc1 {done}")
    trace(a, vT0, vT1)
    prof_init(a)
    if PROF == 3:
        a("s_memtime s[84:85]")
        a.force_wait(lg=0)
    for st in range(2):
        nm = f"Lta{st}"
        a.label(nm)
        a.restore(([], []))
        a(f"s_cmp_eq_u32 s{sRDY}, 1")
        a(f"s_cbranch_scc1 {nm}_have")
        a.force_wait(vm=0)
        publish()
        p3_begin(a)
        Lf = nm + "_f"
        a(f"s_mov_b32 s{S_SPIN}, 0")
        a.label(Lf)
        a(f"buffer_load_dword v{vFLV}, v{vFLA}, {WS}, s{sNFL} offen sc1")
        spin_check(a, abort)
        a(f"v_cmp_eq_u32 vcc, 0, v{vFLV}")
        a(f"s_and_b32 s{S_TMP}, vcc_lo, 0xfff")
        a(f"s_cbranch_scc0 {Lf}d")
        a(f"s_sleep {SLP}")
        a(f"s_branch {Lf}")
        a.label(Lf + "d")
        p3_end(a, 3)
        seq(a, qkv_ops(st, WS))
        a.force_wait(vm=0)
        a.label(nm + "_have")
        a.restore(([], []))
        a(f"buffer_load_dword v{vFLV}, v{vFR}, {WS}, s{sNFL} offen sc1")
        a.force_wait(vm=5)
        a(f"""
        v_cmp_eq_u32 vcc, 0, v{vFL1}
        s_add_u32 s{sNQ}, s{sNQ}, {32 * 8192}
        s_add_u32 s{sNS}, s{sNS}, 1
        s_mov_b32 s{sDEC}, s{sKR}
        s_and_b32 s{S_TMP}, vcc_lo, 0xfff
        s_cselect_b32 s{sRDY}, 0, 1
        s_cmp_eq_u64 vcc, 0
        s_cselect_b32 s{sKR}, 1, 0
        s_cmp_lt_u32 s{sNS}, {NSEG}
        s_cselect_b32 s{sRDY}, s{sRDY}, 0
        s_cselect_b32 s{sKR}, s{sKR}, 0
        s_cmp_eq_u32 s{sRDY}, 1
        s_cselect_b32 s{SRD_C + 2}, {WS_BYTES}, 0
        s_cmp_eq_u32 s{sKR}, 1
        s_cselect_b32 s{SRD_A + 2}, {WS_BYTES}, 0
        """)
        nxt = qkv_ops(1 - st, PFS)
        n = 0
        for j in range(4):
            for (tt, kt, d) in ((0, 0, 0), (1, 0, 4), (1, 1, 8)):
                a(MF(SX + d, fr(st, 1, 2 * j + kt), fr(st, 0, 2 * j + tt), "0" if j == 0 else None))
                if n < TAPRE:
                    seq(a, nxt.pop(0))
                    n += 1
        a.force_wait(vm=1 + TAPRE)
        publish()
        a(f"s_cmp_eq_u32 s{sDEC}, 1")
        a(f"s_cbranch_scc1 {nm}_km")
        a.force_wait(vm=TAPRE)
        a(f"v_cmp_eq_u32 vcc, 0, v{vFLV}")
        a(f"s_cbranch_vccz {nm}_r")
        a(f"s_mov_b32 s{S_SPIN}, 0")
        p3_begin(a)
        sn = a.snap()
        a.label(nm + "_rp")
        a(f"buffer_load_dword v{vFLV}, v{vFR}, {WS}, s{sNFL} offen sc1")
        spin_check(a, abort)
        a.force_wait(vm=0)
        a(f"v_cmp_eq_u32 vcc, 0, v{vFLV}")
        a("s_sleep 1") if os.environ.get("TASLP", "0") == "1" else None
        a(f"s_cbranch_vccnz {nm}_rp")
        p3_end(a, 4)
        a.restore(sn)
        a.label(nm + "_r")
        seq(a, km_ops(st, WS))
        a.label(nm + "_km")
        a(f"s_add_u32 s{sNFL}, s{sNFL}, {FL_STRIDE}")
        a(f"s_add_u32 s{sO2}, s{sO2}, {32 * KM_UNIT}")
        nxt += km_ops(1 - st, PF2)
        nxt.insert(TASMP, [f"s_add_u32 s{S_TMP}, s{sNFL}, {FL_STRIDE}", f"buffer_load_dword v{vFL1}, v{vFLA}, {WS}, s{S_TMP} offen sc1"])
        for d, diag in ((0, 1), (4, 0), (8, 1)):
            for i in range(4):
                r = SX + d + i
                a(f"v_fma_f32 v{r}, v{r}, s{sK4}, v{BI + i}" if diag else f"v_mul_f32 v{r}, s{sK4}, v{r}")
            seq(a, nxt.pop(0), nxt.pop(0))
        for j in range(4):
            for tt in range(2):
                a(MF(SMm + 4 * tt, ar(KMS[st] + 4 * j, 4), fr(st, 0, 2 * j + tt), "0" if j == 0 else None))
            seq(a, nxt.pop(0))
        for tt in range(2):
            xs = list(range(SX, SX + 4)) if tt == 0 else list(range(SX + 4, SX + 12))
            ms = [SMm + 4 * tt, SMm + 4 * tt + 1]
            vals = xs + ms
            a(f"v_max3_f32 v{MX}, v{xs[0]}, v{xs[1]}, v{xs[2]}")
            a(f"v_max_f32 v{MX}, v{MX}, v{xs[3]}")
            for i in range(4, len(xs), 2):
                a(f"v_max3_f32 v{MX}, v{MX}, v{xs[i]}, v{xs[i + 1]}")
            for r in ms:
                a(f"v_mul_f32 v{r}, s{sK4}, v{r}")
            a(f"v_max3_f32 v{MX}, v{MX}, v{ms[0]}, v{ms[1]}")
            seq(a, f"v_mov_b32 v{T1}, v{MX}", nxt.pop(0) if nxt else None, f"v_permlane32_swap_b32 v{MX}, v{T1}", f"v_max_f32 v{MX}, v{MX}, v{T1}",
                f"v_mov_b32 v{T1}, v{MX}", nxt.pop(0) if nxt else None, f"v_permlane16_swap_b32 v{MX}, v{T1}", f"v_max_f32 v{MX}, v{MX}, v{T1}",
                [f"v_sub_f32 v{r}, v{r}, v{MX}" for r in vals], [f"v_exp_f32 v{r}, v{r}" for r in vals])
            for i in range(4):
                if 2 * i < len(xs):
                    a(f"v_cvt_pk_bf16_f32 v{PX + i}, v{xs[2 * i]}, v{xs[2 * i + 1]}")
                else:
                    a(f"v_mov_b32 v{PX + i}, 0")
            a(f"v_cvt_pk_bf16_f32 v{PB}, v{ms[0]}, v{ms[1]}")
            a(f"v_cvt_pk_bf16_f32 v{PB + 3}, v{ms[0]}, v{ms[1]}")
            a(MF(LQ, vr(ON, 4), vr(PX, 4), "0"))
            for t in range(8):
                a(MF(O + 4 * t, fr(st, 2, t), vr(PX, 4), "0"))
                if t & 1 and nxt:
                    seq(a, nxt.pop(0))
                if t == 5:
                    a(MF16(LQ, ON, PB))
            if tt == 1:
                seq(a, nxt)
                del nxt[:]
            for t in range(8):
                a(MF16(O + 4 * t, ar(KMS[st] + 16 + 2 * (t >> 1), 2), PB + 2 * (t & 1)))
                if t == 1:
                    a(f"v_rcp_f32 v{T1}, v{LQ}")
                if t >= 3 and t & 1:
                    norm(a, O, OUT, T1, (t - 3) >> 1, tt, sO3, nxt)
            norm(a, O, OUT, T1, 3, tt, sO3, nxt)
        seq(a, nxt)
        a(f"s_add_u32 s{sO3}, s{sO3}, {32 * 8192}")
        a(f"s_mov_b32 s{sPN}, {FL_STRIDE}")
        trace_at(a, sNS, vT0, vZERO)
        trace(a, vT0, vT1)
        a(f"s_cmp_ge_u32 s{sNS}, {NSEG}")
        a(f"s_cbranch_scc1 Lta_end")
        if st == 1:
            a("s_branch Lta0")
    a.label("Lta_end")
    if PROF == 3:
        a("s_memtime s[86:87]")
        a.force_wait(lg=0)
        a("s_sub_u32 s97, s86, s84")
    prof_dump(a, vT0, vT1)
    a.force_wait(vm=0)
    flag_out(a, sPEND)
    a(f"s_branch {done}")


def norm(a, O, OUT, T1, j, tt, sO3, nxt):
    for i in range(4):
        x, y = O + 8 * j + i, O + 8 * j + 4 + i
        a(f"v_mul_f32 v{x}, v{T1}, v{x}")
        a(f"v_mul_f32 v{y}, v{T1}, v{y}")
        a(f"v_cvt_pk_bf16_f32 v{OUT + 16 * tt + 4 * j + i}, v{x}, v{y}")
    if j % 2 == 0:
        a(f"s_add_u32 s{S_TMP}, s{sO3}, {j * 2048}")
    a(f"buffer_store_dwordx4 {vr(OUT + 16 * tt + 4 * j, 4)}, v{vL16}, {WS}, s{S_TMP} offen offset:{(j % 2) * 2048 + tt * 1024} sc1")
    if nxt:
        seq(a, nxt.pop(0))


TW_S0 = int(os.environ.get("TW_S0", "30"))


def role_tw(a, abort, done, nt=os.environ.get("NT_W", "")):
    lane_setup(a, 32)
    vA0, vSEL, vRES, vROW, vSTO, vRED, vMBT, vRD2, OUTP = 9, 11, 12, 13, 14, 48, 49, 50, 52
    nst_ = 0
    ACC, RES, SS, RING, ZB = 16, 40, 44, 64, 128
    sSL = sK2
    gate(a, 8, None, vT0, vT1, abort, "Ltw_gate")
    srd(a, SRD_A, KA_BWO, 4096 * 1152)
    srd(a, SRD_B, KA_OUT, 2048 * 1152)
    A_ = f"s[{SRD_A}:{SRD_A + 3}]"
    OUTS = f"s[{SRD_B}:{SRD_B + 3}]"
    a(f"""
    s_mul_i32 s{S_TMP}, s{S_ROLE}, 43
    s_lshr_b32 s{sN0}, s{S_TMP}, 9
    s_mul_i32 s{S_TMP}, s{sN0}, 12
    s_sub_u32 s{sSL}, s{S_ROLE}, s{S_TMP}
    s_add_u32 s{sN1}, s{sN0}, {TW_S0}
    s_cmp_eq_u32 s{sN0}, 2
    s_cselect_b32 s{sN1}, 0, s{sN1}
    s_cselect_b32 s{sN0}, {NSEG}, s{sN0}
    s_mul_i32 s{sK1}, s{sSL}, 96
    s_mul_i32 s{S_TMP}, s{S_WAVE}, {1024 * 1152}
    s_add_u32 s{sK1}, s{sK1}, s{S_TMP}
    v_mul_u32_u24 v{vT0}, {(4 if RV2 else 8) * 1152}, v{vG}
    v_lshl_add_u32 v{vA0}, v{vC}, 2, v{vT0}
    v_add_u32 v{vA0 + 1}, {(16 if RV2 else 1) * 1152}, v{vA0}
    v_and_b32 v{vT1}, 14, v{vC}
    v_lshl_add_u32 v{vRES}, v{vT1}, 1, v{vT0}
    v_add_u32 v{vRES}, 64, v{vRES}
    v_add_u32 v{vROW}, {(16 if RV2 else 1) * 1152}, v{vRES}
    v_and_b32 v{vT0}, 1, v{vC}
    v_mov_b32 v{vSEL}, s{sSELX}
    v_mov_b32 v{vT1}, s{sSELY}
    v_cmp_eq_u32 vcc, 1, v{vT0}
    v_cndmask_b32 v{vSEL}, v{vSEL}, v{vT1}, vcc
    """)
    STG = 16
    n = 128
    D = 14
    for i in range(n + D):
        if i < n:
            kk, d = i >> 2, i & 3
            r = STG + 4 * (i % 28)
            a(f"s_add_u32 s{S_TMP}, s{sK1}, {(32 * kk + (d if RV2 else 2 * d)) * 1152}")
            for q, ad in enumerate((vA0, vA0 + 1, vRES, vROW)):
                a(f"buffer_load_dword v{r + q}, v{ad}, {A_}, s{S_TMP} offen {nt}")
        j = i - D
        if j >= 0:
            kk, d = j >> 2, j & 3
            r = STG + 4 * (j % 28)
            a(f"v_perm_b32 v{vT0}, v{r + 1}, v{r}, s{sSELX}")
            a(f"v_perm_b32 v{vT1}, v{r + 1}, v{r}, s{sSELY}")
            a(f"v_perm_b32 v{ZB + 4 * kk + d}, v{r + 3}, v{r + 2}, v{vSEL}")
            a(f"v_accvgpr_write_b32 a{8 * kk + d}, v{vT0}")
            a(f"v_accvgpr_write_b32 a{8 * kk + 4 + d}, v{vT1}")
    a(f"""
    s_and_b32 s{sK3}, s{S_WAVE}, 1
    s_lshl_b32 s{S_TMP}, s{sK3}, 4
    v_add_u32 v{vT0}, s{S_TMP}, v{vC}
    v_lshlrev_b32 v{vSTO}, 4, v{vT0}
    v_mul_u32_u24 v{vROW}, 1152, v{vT0}
    s_mul_i32 s{S_TMP}, s{sSL}, 96
    v_add_u32 v{vROW}, s{S_TMP}, v{vROW}
    s_mul_i32 s{S_TMP}, s{sSL}, 3072
    v_add_u32 v{vRES}, s{S_TMP}, v{vSTO}
    s_lshl_b32 s{S_TMP}, s{sSL}, 9
    v_add_u32 v{vSTO}, s{S_TMP}, v{vSTO}
    s_lshl_b32 s{sK1}, s{sSL}, 7
    s_lshl_b32 s{S_TMP}, s{S_WAVE}, 2
    s_add_u32 s{sK1}, s{sK1}, s{S_TMP}
    s_add_u32 s{sK1}, s{sK1}, {WS_FLAGS + FL_XA + NSEG * FL_STRIDE}
    s_mul_i32 s{S_TMP}, s{S_WAVE}, 6144
    v_add_u32 v{vRED}, s{S_TMP}, v{vL16}
    v_mov_b32 v{vMBT}, 0x10000
    s_cmp_gt_u32 s{S_WAVE}, 1
    s_cbranch_scc1 Ltw_z
    """)
    for z in (0, 1):
        nm = "LtwZ" if z else "LtwX"
        if z:
            a.label("Ltw_z")
            a.restore(([], []))
            a(f"""
            v_lshrrev_b32 v{vT0}, 1, v{vG}
            v_lshl_add_u32 v{vRES}, v{vT0}, 9, v{vRES}
            v_and_b32 v{vT0}, 1, v{vG}
            v_lshl_add_u32 v{vRES}, v{vT0}, 3, v{vRES}
            v_add_u32 v{vRES}, 2048, v{vRES}
            v_lshl_add_u32 v{vROW}, v{vG}, 3, v{vROW}
            v_add_u32 v{vROW}, 64, v{vROW}
            v_add_u32 v{vSTO}, 8, v{vSTO}
            """)
        else:
            a(f"v_lshl_add_u32 v{vRES}, v{vG}, 9, v{vRES}")
            a(f"v_lshl_add_u32 v{vROW}, v{vG}, 4, v{vROW}")
        st = "dwordx2" if z else "dwordx4"
        nq = 1 if z else 2
        nv = 4 * nq
        R = ACC
        RDL = [ACC + 8, ACC + 12, ACC + 16, ACC + 20, 56, 60, RING + 60, OUTP]
        RD = lambda k: RDL[k]

        def step1():
            return [f"s_cmp_lt_u32 s{sN1}, {TW_S0 - 1}", f"s_cselect_b32 s{sLEFT}, 1, 3"]

        def addr_next():
            return [f"s_lshl_b32 s{sO1}, s{sNO}, 18", f"s_add_u32 s{sO1}, s{sO1}, s{sWQ}",
                    f"s_mul_i32 s{sNX}, s{sNL}, {2 * X_BYTES}", f"s_mul_i32 s{S_TMP}, s{sNS}, {X_SEG}",
                    f"s_add_u32 s{sNX}, s{sNX}, s{S_TMP}", f"s_add_u32 s{sNX}, s{sNX}, {WS_X + X_BYTES}"]

        def ld(i, srd_):
            if i % 4 == 0:
                a(f"s_add_u32 s{sO3}, s{sO1}, {i * 1024}")
            a(f"buffer_load_dwordx4 {vr(RING + 4 * (i % 16), 4)}, v{vL16}, {srd_}, s{sO3} offen offset:{(i % 4) * 1024}")

        def first_loads(srd_):
            for i in range(15):
                ld(i, srd_)
            a(f"buffer_load_{st} {vr(RES, nv // 2)}, v{vRES}, {srd_}, s{sNX} offen")

        def w0(fn, lab):
            if not z:
                a(f"s_cmp_lg_u32 s{S_WAVE}, 0")
                a(f"s_cbranch_scc1 {lab}")
                sn = a.snap()
                fn()
                a.restore(sn)
                a.label(lab)

        def post():
            a(f"v_mov_b32 v{vT0}, s{sDEC}")
            a(f"ds_write_b32 v{vMBT}, v{vT0}")

        a(f"""
        s_lshl_b32 s{sWQ}, s{S_WAVE}, 16
        s_add_u32 s{sWQ}, s{sWQ}, {WS_OF}
        s_mov_b32 s{sPEND}, 0
        s_mov_b32 s{SRD_C}, s{SRD_WS}
        s_mov_b32 s{SRD_C + 1}, s{SRD_WS + 1}
        s_mov_b32 s{SRD_C + 2}, 0
        s_mov_b32 s{SRD_C + 3}, 0x00020000
        s_mul_i32 s{S_TMP}, s{sK3}, 3072
        v_add_u32 v{vRD2}, s{S_TMP}, v{vL16}
        """)
        a(f"ds_write2_b32 v{vMBT}, v{vZERO}, v{vZERO} offset0:0 offset1:1")
        a.wait(lg=0)
        init_wait(a, None, vT0, vT1, abort, nm + "_ini")
        prof_init(a)
        if PROF == 3:
            a("s_memtime s[84:85]")
            a.force_wait(lg=0)
        a.label(nm + "_idle")
        a.restore(([], []))
        w0(lambda: (p3_begin(a), poll2(a, nm + "_p", abort, FL_OF, 0), p3_end(a, 3), post(), a.wait(lg=0)), nm + "_nw0")
        a("s_barrier")
        a(f"ds_read_b32 v{vT1}, v{vMBT}")
        a(f"v_xor_b32 v{vMBT}, 4, v{vMBT}")
        a(f"v_readfirstlane_b32 s{sDEC}, v{vT1}")
        a(f"s_cmp_eq_u32 s{sDEC}, 0")
        a(f"s_cbranch_scc1 {abort}")
        seq(a, step1(), take(sDEC, 2, f"s{sLEFT}"), addr_next(), f"s_cmp_ge_u32 s{sNS}, {NSEG}", f"s_cbranch_scc1 {abort}")
        first_loads(WS)
        for _ in range(nst_):
            a.vmq.append((frozenset(), "st"))
        a.label(nm + "_item")
        trace(a, vT0, vT1, True) if TRACE == 1 else None
        a(f"s_mov_b32 s{sCL}, s{sNL}")
        a(f"s_mov_b32 s{sCS}, s{sNS}")
        a(f"s_mov_b32 s{sO2}, s{sNX}")
        a.vmq = a.vmq[:16]
        for i in range(64):
            kk, tt = i >> 1, i & 1
            ld((i + 15) % 64, WS if i + 15 < 64 else PFS)
            b = vr(RING + 4 * (i % 16), 4)
            c = "0" if kk == 0 else None
            a(MF(ACC + 12 * tt, ar(8 * kk, 4), b, c))
            a(MF(ACC + 12 * tt + 4, ar(8 * kk + 4, 4), b, c))
            a(MF(ACC + 12 * tt + 8, vr(ZB + 4 * kk, 4), b, c))
            if i == 17:
                a(f"s_cmp_lg_u32 s{sPEND}, 0")
                a("s_cselect_b64 exec, 1, 0")
                a(f"buffer_store_dword v{vONE}, v{vZERO}, {WS}, s{sPEND} offen sc1")
                a("s_mov_b64 exec, -1")
                a(f"s_mov_b32 s{sPEND}, 0")
            if i == 26:
                w0(lambda: (cand_addr(a, FL_OF), sample2(a)), nm + "_nw1")
            if i == 44:
                w0(lambda: (decide(a, 0), post(), a.force_wait(lg=0)), nm + "_nw2")
                a("s_barrier")
                a(f"ds_read_b32 v{vT1}, v{vMBT}")
                a(f"v_xor_b32 v{vMBT}, 4, v{vMBT}")
            if i == 47:
                a(f"v_readfirstlane_b32 s{sDEC}, v{vT1}")
                seq(a, step1(), take(sDEC, 2, f"s{sLEFT}"))
            if i == 48:
                seq(a, f"s_cmp_lt_u32 s{sNS}, {NSEG}", f"s_cselect_b32 s{sDEC}, s{sDEC}, 0")
                seq(a, addr_next(), f"s_cmp_lg_u32 s{sDEC}, 0", f"s_cselect_b32 s{SRD_C + 2}, {WS_BYTES}, 0")
        a.nop(6)
        for q in range(6):
            a(f"ds_write_b128 v{vRED}, {vr(ACC + 4 * q, 4)} offset:{q * 1024}")
        a.force_wait(lg=0)
        a("s_barrier")
        for wv in range(4):
            for q in range(nq):
                a(f"ds_read_b128 {vr(RD(wv * nq + q), 4)}, v{vRD2} offset:{wv * 6144 + (2 if z else q) * 1024}")
        a(f"v_xor_b32 v{vRED}, 0x8000, v{vRED}")
        a(f"v_xor_b32 v{vRD2}, 0x8000, v{vRD2}")
        if z:
            for i in range(2):
                a(f"v_lshlrev_b32 v{R + 2 * i}, 16, v{RES + i}")
                a(f"v_and_b32 v{R + 2 * i + 1}, 0xffff0000, v{RES + i}")
        else:
            for i in range(4):
                a(f"v_lshlrev_b32 v{R + i}, 16, v{RES + i}")
                a(f"v_and_b32 v{R + 4 + i}, 0xffff0000, v{RES + i}")
        a(f"buffer_load_{st} {vr(RES, nv // 2)}, v{vRES}, {PFS}, s{sNX} offen")
        for wv in range(4):
            for i in range(nv):
                a(f"v_add_f32 v{R + i}, v{R + i}, v{RD(wv * nq + i // 4) + i % 4}")
        if z:
            a(f"v_cvt_pk_bf16_f32 v{OUTP}, v{R}, v{R + 1}")
            a(f"v_cvt_pk_bf16_f32 v{OUTP + 1}, v{R + 2}, v{R + 3}")
        else:
            for i in range(4):
                a(f"v_cvt_pk_bf16_f32 v{OUTP + i}, v{R + i}, v{R + 4 + i}")
        a(f"s_cmp_eq_u32 s{sCL}, 0")
        a(f"s_cbranch_scc1 {nm}_l0")
        win = list(a.win)
        sn = a.snap()
        a(f"s_mul_i32 s{S_TMP}, s{sCS}, {32 * 1152}")
        a(f"buffer_store_{st} {vr(OUTP, nv // 2)}, v{vROW}, {OUTS}, s{S_TMP} offen sc1")
        a(f"s_cmp_lg_u32 s{sDEC}, 0")
        a(f"s_cbranch_scc1 {nm}_item")
        a.label(nm + "_chk")
        a(f"s_min_u32 s{S_TMP}, s{sN0}, s{sN1}")
        a(f"s_cmp_lt_u32 s{S_TMP}, {NSEG}")
        a(f"s_cbranch_scc1 {nm}_idle")
        trace(a, vT0, vT1, True) if TRACE != 4 else None
        if PROF == 3:
            a("s_memtime s[86:87]")
            a.force_wait(lg=0)
            a("s_sub_u32 s97, s86, s84")
        prof_dump(a, vT0, vT1)
        stamp_max(a, 7, vT0, vT1)
        a(f"s_branch {done}")
        a.label(nm + "_l0")
        a.win = win
        a.restore(sn)
        a(f"s_add_u32 s{sO2}, s{sO2}, {X_BYTES}")
        a(f"buffer_store_{st} {vr(OUTP, nv // 2)}, v{vRES}, {WS}, s{sO2} offen sc1")
        a(f"v_add_f32 v{SS}, v{R}, v{R + 1}")
        a(f"v_mul_f32 v{SS + 1}, v{R}, v{R}")
        a(f"v_fmac_f32 v{SS + 1}, v{R + 1}, v{R + 1}")
        for i in range(2, nv):
            a(f"v_add_f32 v{SS}, v{SS}, v{R + i}")
            a(f"v_fmac_f32 v{SS + 1}, v{R + i}, v{R + i}")
        for sw in (32, 16):
            seq(a, f"v_mov_b32 v{SS + 2}, v{SS}", f"v_mov_b32 v{SS + 3}, v{SS + 1}",
                f"v_permlane{sw}_swap_b32 v{SS}, v{SS + 2}", f"v_permlane{sw}_swap_b32 v{SS + 1}, v{SS + 3}",
                f"v_add_f32 v{SS}, v{SS}, v{SS + 2}", f"v_add_f32 v{SS + 1}, v{SS + 1}, v{SS + 3}")
        a(f"""
        s_mul_i32 s{S_TMP}, s{sCS}, {ST_SEG}
        s_add_u32 s{S_TMP}, s{S_TMP}, {WS_ST + 2 * ST_BYTES}
        s_mov_b64 exec, 0xffff
        buffer_store_dwordx2 {vr(SS, 2)}, v{vSTO}, {WS}, s{S_TMP} offen sc1
        s_mov_b64 exec, -1
        s_mul_i32 s{sPEND}, s{sCS}, {FL_STRIDE}
        s_add_u32 s{sPEND}, s{sPEND}, s{sK1}
        """)
        trace_at(a, sCS, vT0, vZERO)
        a(f"s_cmp_lg_u32 s{sDEC}, 0")
        a(f"s_cbranch_scc1 {nm}_item")
        a.force_wait(vm=0)
        flag_out(a, sPEND)
        a(f"s_mov_b32 s{sPEND}, 0")
        a(f"s_branch {nm}_chk")
```

```python
import sys, os
from common import *
if os.environ.get('RV', '2') == '2':
    import role_r2 as R
else:
    import role_r as R
import pool, role_t

MAIN = KNAME + "_kernel"
WARM = int(os.environ.get("WARM", "1"))
FREERUN = int(os.environ.get("FREERUN", "0"))
INIT = "init_kernel"
TA3 = os.environ.get("TA3", "1") == "1"
if TA3:
    ROLE_MAP = {2: [("W", 24), ("P", 8)], 3: [("W", 12), ("P", 20)], 4: [("A", 16), ("O", 3), ("P", 13)],
                5: [("A", 16), ("O", 3), ("P", 13)], 6: [("T", 11), ("P", 21)], 7: [("T", 11), ("P", 21)]}
else:
    ROLE_MAP = {2: [("W", 24), ("P", 8)], 3: [("W", 12), ("P", 20)], 4: [("A", 16), ("O", 5), ("P", 11)],
                5: [("A", 16), ("O", 5), ("P", 11)], 6: [("T", 8), ("P", 23)], 7: [("T", 8), ("P", 23)]}


def kd(name, vgpr, acc, sgpr=102):
    return f""".p2align 6
.amdhsa_kernel {name}
  .amdhsa_next_free_vgpr {vgpr}
  .amdhsa_next_free_sgpr {sgpr}
  .amdhsa_accum_offset {acc}
  .amdhsa_group_segment_fixed_size 0
  .amdhsa_kernarg_size 104
  .amdhsa_user_sgpr_count 2
  .amdhsa_user_sgpr_kernarg_segment_ptr 1
  .amdhsa_system_sgpr_workgroup_id_x 1
.end_amdhsa_kernel
"""


def pool_init(a):
    WS = f"s[{SRD_WS}:{SRD_WS + 3}]"
    Q_ = 6
    if WARM:
        srd(a, SRD_A, KA_WQKV, 576 * 3456)
        srd(a, SRD_B, KA_WO, 576 * 1152)
        a(f"s_sub_u32 s41, 191, s{Q_}")
        a(f"s_lshl_b32 s41, s41, 15")
        a(f"v_lshlrev_b32 v254, 7, v0")
        a(f"buffer_load_dword v255, v254, s[{SRD_A}:{SRD_A + 3}], s41 offen")
        a(f"s_sub_u32 s41, s41, {61 * 32768}")
        a(f"s_cmp_lt_u32 s41, {21 * 32768}")
        a(f"s_cselect_b32 s41, s41, 0x7f000000")
        a(f"buffer_load_dword v255, v254, s[{SRD_B}:{SRD_B + 3}], s41 offen")
        a.vmq = []
    a(f"s_cmp_ge_u32 s{Q_}, {N_POOL}")
    a("s_cbranch_scc1 Li_end")
    a(f"""
    v_lshlrev_b32 v7, 4, v0
    v_mov_b32 v12, 0
    v_mov_b32 v13, 0
    v_mov_b32 v14, 0
    v_mov_b32 v15, 0
    s_cmp_ge_u32 s{Q_}, 64
    s_cbranch_scc1 Li_rest
    """)
    srd(a, SRD_A, KA_X, 2048 * 1152)
    a(f"""
    v_and_b32 v1, 31, v0
    v_lshrrev_b32 v2, 5, v0
    v_mul_u32_u24 v3, 1152, v1
    v_mul_u32_u24 v5, 144, v2
    v_add_u32 v3, v3, v5
    s_mul_i32 s41, s{Q_}, {32 * 1152}
    """)
    for i in range(9):
        a(f"buffer_load_dwordx4 {vr(64 + 4 * i, 4)}, v3, s[{SRD_A}:{SRD_A + 3}], s41 offen offset:{16 * i}")
    a(f"""
    v_mul_u32_u24 v4, {9 * 512}, v2
    v_lshl_add_u32 v4, v1, 4, v4
    s_mul_i32 s41, s{Q_}, {X_SEG}
    s_add_u32 s41, s41, {WS_X}
    s_mul_i32 s42, s{Q_}, {ST_SEG}
    s_add_u32 s42, s42, {WS_ST}
    s_add_u32 s43, s42, 2048
    s_add_u32 s44, s42, {ST_BYTES + 9 * 512}
    v_mov_b32 v60, 0
    v_mov_b32 v61, 0
    """)
    for i in range(9):
        if i == 8:
            a("v_add_u32 v4, 4096, v4")
        a(f"buffer_store_dwordx4 {vr(64 + 4 * i, 4)}, v4, {WS}, s41 offen offset:{512 * (i % 8)} sc1")
    a(f"buffer_store_dwordx4 v[12:15], v7, {WS}, s43 offen sc1")
    a("v_cmp_gt_u32 vcc, 96, v0")
    a("s_and_saveexec_b64 s[46:47], vcc")
    a("s_cbranch_execz Li_z1")
    a(f"buffer_store_dwordx4 v[12:15], v7, {WS}, s44 offen sc1")
    a.label("Li_z1")
    a("s_mov_b64 exec, s[46:47]")
    a("v_mov_b32 v62, 0x3f803f80")
    for r in range(64, 100):
        a(f"v_dot2c_f32_bf16 v60, v{r}, v62")
        a(f"v_dot2c_f32_bf16 v61, v{r}, v{r}")
    a.nop(4)
    a(f"""
    v_lshrrev_b32 v5, 1, v2
    v_lshlrev_b32 v5, 9, v5
    v_lshl_add_u32 v5, v1, 4, v5
    v_and_b32 v6, 1, v2
    v_lshl_add_u32 v5, v6, 3, v5
    buffer_store_dwordx2 v[60:61], v5, {WS}, s42 offen sc1
    s_branch Li_flags
    Li_rest:
    """)
    a.restore(([], []))
    a(f"""
    s_cmp_ge_u32 s{Q_}, 128
    s_cbranch_scc1 Li_flags
    s_sub_u32 s41, s{Q_}, 64
    s_mul_i32 s41, s41, {ST_SEG}
    s_add_u32 s41, s41, {WS_ST + 3 * ST_BYTES + 9 * 512}
    v_cmp_gt_u32 vcc, 96, v0
    s_and_saveexec_b64 s[42:43], vcc
    s_cbranch_execz Li_rest2
    buffer_store_dwordx4 v[12:15], v7, {WS}, s41 offen sc1
    Li_rest2:
    s_mov_b64 exec, s[42:43]
    Li_flags:
    """)
    a.restore(([], []))
    a(f"""
    v_cmp_gt_u32 vcc, 96, v0
    s_cmp_lt_u32 s{Q_}, 64
    s_cselect_b64 s[42:43], -1, 0
    s_and_b64 vcc, vcc, s[42:43]
    s_cmp_lt_u32 s{Q_}, 128
    s_cselect_b32 s44, {FREERUN}, 0
    v_mov_b32 v12, s44
    v_mov_b32 v13, s44
    v_mov_b32 v14, s44
    v_mov_b32 v15, s44
    v_mov_b32 v9, 1
    v_cndmask_b32 v8, v12, v9, vcc
    v_mov_b32 v9, v8
    v_mov_b32 v10, v8
    v_mov_b32 v11, v8
    s_mul_i32 s41, s{Q_}, {FL_STRIDE}
    s_sub_u32 s42, s{Q_}, 128
    s_lshl_b32 s42, s42, 12
    s_add_u32 s42, s42, {WS_ZERO}
    s_cmp_ge_u32 s{Q_}, 128
    s_cselect_b32 s41, s42, s41
    buffer_store_dwordx4 v[8:11], v7, {WS}, s41 offen sc1
    s_cbranch_scc1 Li_nofl
    """)
    for i in range(1, 6):
        a(f"s_add_u32 s41, s41, 4096")
        if i == 5:
            a("v_cmp_gt_u32 vcc, 128, v0")
            a("s_and_saveexec_b64 s[42:43], vcc")
            a("s_cbranch_execz Li_fl5")
        a(f"buffer_store_dwordx4 v[12:15], v7, {WS}, s41 offen sc1")
    a("Li_fl5:")
    a("s_mov_b64 exec, s[42:43]")
    a("Li_nofl:")
    trace6(a, 60, 61)
    a.force_wait(vm=0)
    a("s_barrier")
    trace6(a, 60, 61)
    a(f"s_cmp_lg_u32 s{S_WAVE}, 0")
    a("s_cbranch_scc1 Li_end")
    a(f"s_sub_u32 s41, s{Q_}, 64")
    a(f"s_cmp_lt_u32 s41, 64")
    a("s_cbranch_scc1 Li_l1")
    dbg_add(a, DB_POOLA, 2, 3)
    a("s_branch Li_end")
    a.label("Li_l1")
    dbg_add(a, DB_POOL, 2, 3)
    a.label("Li_end")
    trace6(a, 60, 61)
    a.restore(([], []))


def gen_main(a, stamps=0, dbg_roles=None):
    WS = f"s[{SRD_WS}:{SRD_WS + 3}]"
    a.text(f".globl {MAIN}\n.p2align 8\n.type {MAIN},@function")
    a.label(MAIN)
    a.reset_window()
    sX, sTK = 3, 4
    DBG = f"s[{S_DBG}:{S_DBG + 1}]"
    a("s_cmp_ge_u32 s2, 256")
    a("s_cbranch_scc1 L_exit")
    srd(a, SRD_WS, KA_WS, WS_BYTES)
    a(f"""
    s_load_dwordx2 s[{S_DBG}:{S_DBG + 1}], s[0:1], {KA_DBG}
    v_lshrrev_b32 v1, 6, v0
    s_getreg_b32 s{sX}, hwreg(HW_REG_XCC_ID)
    v_readfirstlane_b32 s{S_WAVE}, v1
    s_and_b32 s{sX}, s{sX}, {6 if os.environ.get('FAKEX') else 7}
    s_and_b32 s{S_TMP}, s{sX}, 1
    s_lshl_b32 s{S_TMP}, s{S_TMP}, 7
    s_lshl_b32 s{S_TMP + 1}, s{sX}, 1
    s_and_b32 s{S_TMP + 1}, s{S_TMP + 1}, 12
    s_add_u32 s{S_TMP}, s{S_TMP}, s{S_TMP + 1}
    v_mov_b32 v2, 0
    v_mov_b32 v3, 1
    v_mov_b32 v4, s{S_TMP}
    s_mov_b32 s{R.sSTEP}, 0
    s_waitcnt lgkmcnt(0)
    s_cmp_lg_u32 s{S_WAVE}, 0
    s_cbranch_scc1 L_tk_wait
    s_mov_b64 exec, 1
    global_atomic_add v3, v4, v3, {DBG} sc0
    v_readfirstlane_b32 s{sTK}, v3
    s_cmp_lt_u32 s{sTK}, 32
    s_cbranch_scc1 L_tk_have
    """)
    a(f"""
    v_mov_b32 v3, 1
    v_mov_b32 v4, {DB_HOMELESS}
    global_atomic_add v3, v4, v3, {DBG} sc0
    v_readfirstlane_b32 s5, v3
    s_mov_b64 exec, 0xff
    v_and_b32 v4, 1, v0
    v_lshlrev_b32 v4, 7, v4
    v_lshlrev_b32 v5, 1, v0
    v_and_or_b32 v4, v5, 12, v4
    s_mov_b32 s{S_SPIN}, 0
    L_hl_poll:
    global_load_dword v5, v4, {DBG} sc1
    """)
    spin_check(a, "L_abort")
    a("s_mov_b32 s6, 0")
    for i in range(8):
        a(f"v_readlane_b32 s{40 + i}, v5, {i}")
        a(f"s_add_u32 s6, s6, s{40 + i}")
    a(f"""
    s_cmp_lt_u32 s6, 256
    s_cbranch_scc1 L_hl_poll
    s_mov_b32 s{sX}, 0
    s_mov_b32 s{sTK}, 0
    """)
    for i in range(7, -1, -1):
        a(f"""
        s_min_u32 s6, s{40 + i}, 32
        s_sub_u32 s7, 32, s6
        s_cmp_lt_u32 s5, s7
        s_cselect_b32 s{sX}, {i}, s{sX}
        s_add_u32 s6, s6, s5
        s_cmp_lt_u32 s5, s7
        s_cselect_b32 s{sTK}, s6, s{sTK}
        s_sub_u32 s5, s5, s7
        """)
    a(f"""
    L_tk_have:
    s_lshl_b32 s5, s{sX}, 8
    s_or_b32 s5, s5, s{sTK}
    v_mov_b32 v3, s5
    s_mov_b64 exec, 1
    ds_write_b32 v2, v3
    s_mov_b64 exec, -1
    L_tk_wait:
    """)
    a.force_wait(vm=0, lg=0)
    a("s_barrier")
    a("ds_read_b32 v3, v2")
    a(f"v_readfirstlane_b32 s5, v3")
    a(f"s_lshr_b32 s{sX}, s5, 8")
    a(f"s_and_b32 s{sTK}, s5, 255")
    a("s_barrier")
    trace_init(a)
    if DBGT:
        a("s_memrealtime s[6:7]")
        a.force_wait(lg=0)
        a("s_mov_b32 s5, s6")
    trace(a, 2, 3, True)
    en = dbg_roles or "RPWTAO"

    def tgt(ch, lab):
        return lab if ch in en else "L_exit"
    LAB = {"P": "L_role_p", "W": "L_role_tw", "T": "L_role_ta", "A": "L_role_aq", "O": "L_role_awo"}
    a(f"s_cmp_lt_u32 s{sX}, 2")
    a(f"s_cbranch_scc1 {tgt('R', 'L_role_r')}")
    a(f"s_sub_u32 s6, s{sX}, 2")
    a(f"s_lshl_b32 s6, s6, 5")
    a(f"s_add_u32 s6, s6, s{sTK}")
    pool_init(a)
    base = {k: 0 for k in LAB}
    for cls, lst in ROLE_MAP.items():
        a(f"s_cmp_lg_u32 s{sX}, {cls}")
        a(f"s_cbranch_scc1 L_cls{cls}_no")
        t0 = 0
        for ch, n in lst:
            a(f"s_add_u32 s{S_ROLE}, s{sTK}, {(base[ch] - t0) & 0xffffffff}")
            a(f"s_cmp_lt_u32 s{sTK}, {t0 + n}")
            a(f"s_cbranch_scc1 {tgt(ch, LAB[ch])}")
            base[ch] += n
            t0 += n
        a("s_endpgm")
        a.label(f"L_cls{cls}_no")
    assert base == ({"P": 96, "W": 36, "T": 22, "A": 32, "O": 6} if TA3 else {"P": 96, "W": 36, "T": 16, "A": 32, "O": 10}), base
    a(f"""
    L_exit:
    s_endpgm
    L_abort:
    """)
    a.force_wait(lg=0)
    a(f"""
    s_mov_b64 exec, -1
    v_mov_b32 v0, {DB_ABORT}
    s_lshl_b32 s5, s{sX}, 8
    s_or_b32 s5, s5, s{sTK}
    s_or_b32 s5, s5, 0x10000
    v_mov_b32 v1, s5
    global_store_dword v0, v1, s[{S_DBG}:{S_DBG + 1}]
    s_endpgm
    """)
    for ch, lab, fn in (("P", "L_role_p", pool.role_p2 if os.environ.get("PV", "2") == "2" else pool.role_p), ("O", "L_role_awo", pool.role_awo2 if TA3 else pool.role_awo), ("A", "L_role_aq", pool.role_aq),
                        ("T", "L_role_ta", role_t.role_ta), ("W", "L_role_tw", role_t.role_tw)):
        if ch not in en:
            continue
        a.text(".p2align 6")
        a.label(lab)
        a.reset_window()
        fn(a, f"{lab}_abort", f"{lab}_exit")
        a.label(f"{lab}_abort")
        a("s_branch L_abort") if False else far_jump(a, "L_abort")
        a.label(f"{lab}_exit")
        trace(a, 2, 3, True) if (FREERUN or TRACE == 2) else None
        a("s_endpgm")
    if "R" in en:
        a.text(".p2align 6")
        a.label("L_role_r")
        a.reset_window()
        a(f"s_mov_b32 s{R.sLAY}, s{sX}")
        a(f"s_mov_b32 s{R.sH}, s{sTK}")
        R.r_setup(a)
        a(f"""
        s_mov_b64 exec, 0xff
        v_lshrrev_b32 v14, 2, v{R.vL16}
        v_lshlrev_b32 v12, 5, v14
        v_and_b32 v12, 128, v12
        v_lshrrev_b32 v13, 1, v14
        v_and_or_b32 v12, v13, 12, v12
        s_mov_b32 s{S_SPIN}, 0
        L_pure:
        global_load_dword v13, v12, {DBG} sc1
        """)
        spin_check(a, "Lr_abort")
        a("s_mov_b32 s6, 0")
        for i in range(8):
            a(f"v_readlane_b32 s7, v13, {i}")
            a(f"s_add_u32 s6, s6, s7")
        a(f"""
        v_readlane_b32 s7, v13, s{R.sLAY}
        s_cmp_ge_u32 s7, 32
        s_cselect_b32 s{R.sFAST}, {0 if os.environ.get('FAKEX') or os.environ.get('SLOW') else 1}, 0
        s_cselect_b32 s6, 256, s6
        s_cmp_lt_u32 s6, 256
        s_cbranch_scc1 L_pure
        s_mov_b64 exec, -1
        s_lshl_b32 s6, s{R.sLAY}, 2
        s_add_u32 s6, s6, {DB_TEAM}
        """)
        dbg_wait(a, "s6", 32, 12, 13, "Lr_abort", "L_team")
        dbg_wait(a, DB_POOLA, N_POOLA, 12, 13, "Lr_abort", "L_rpoola")
        a(f"s_cmp_eq_u32 s{R.sLAY}, 0")
        a("s_cbranch_scc1 L_rpool_skip")
        dbg_wait(a, DB_POOL, N_POOLB, 12, 13, "Lr_abort", "L_rpool")
        a.label("L_rpool_skip")
        a("s_barrier")
        trace(a, 12, 13, True)
        stamp_max(a, 4, 12, 13, (R.sLAY, 0))
        for fast in (1, 0):
            if fast:
                a(f"s_cmp_eq_u32 s{R.sFAST}, 0")
                a("s_cbranch_scc1 L_slow")
            else:
                a.label("L_slow")
            for w in range(4):
                if w < 3:
                    a(f"s_cmp_lg_u32 s{S_WAVE}, {w}")
                    a(f"s_cbranch_scc1 L_w{w + 1}_{fast}")
                a.restore(([], []))
                R.r_loop(a, w, fast, "Lr_abort", "Lr_exit", stamps)
                if w < 3:
                    a.label(f"L_w{w + 1}_{fast}")
        a.label("Lr_abort")
        far_jump(a, "L_abort")
        a.label("Lr_exit")
        a("s_endpgm")


def far_jump(a, lab):
    a.force_wait(lg=0)
    a(f"""
    s_mov_b64 exec, -1
    v_mov_b32 v0, {DB_ABORT}
    s_lshl_b32 s5, s3, 8
    s_or_b32 s5, s5, s4
    s_or_b32 s5, s5, 0x10000
    v_mov_b32 v1, s5
    global_store_dword v0, v1, s[{S_DBG}:{S_DBG + 1}]
    s_endpgm
    """)


def build(stamps=0, dbg_roles=None):
    a = Asm()
    hdr = open(os.path.join(os.path.dirname(__file__), "..", KNAME + ".s.ref")).read().split("; Override launch")[0]
    a.text(hdr.rstrip())
    a.text("; @launch grid=(256,1,1) block=(256,1,1) lds=163840")
    a.text('.amdgcn_target "amdgcn-amd-amdhsa--gfx950"\n.text')
    gen_main(a, stamps, dbg_roles)
    a.text('.section .rodata,"a"')
    a.text(kd(MAIN, 512, 256))
    return a.render()


if __name__ == "__main__":
    out = sys.argv[1]
    open(out, "w").write(build(int(os.environ.get("STAMPS", "0")), os.environ.get("ROLES")))
```

```python
from common import *
import struct

WS = f"s[{SRD_WS}:{SRD_WS + 3}]"
L0_AP = 16
L0_T = 16
SLP = int(os.environ.get("SLP", "4"))
EARLYF = int(os.environ.get("EARLYF", "0"))


def f32bits(x):
    return struct.unpack("<I", struct.pack("<f", x))[0]


sN0, sN1 = S_FREE, S_FREE + 1
sCL, sCS = S_FREE + 2, S_FREE + 3
sNL, sNS = S_FREE + 4, S_FREE + 5
sLEFT = S_FREE + 6
sPF = S_FREE + 7
sBUF = S_FREE + 8
sNX = S_FREE + 9
sNFL = S_FREE + 10
sPEND = S_FREE + 11
sSELX, sSELY = S_FREE + 12, S_FREE + 13
sO1, sO2, sO3 = S_FREE + 14, S_FREE + 15, S_FREE + 16
sK1, sK2, sK3, sK4 = S_FREE + 17, S_FREE + 18, S_FREE + 19, S_FREE + 20
sE = S_FREE + 22
sNO = S_FREE + 24
sCO = S_FREE + 25
sWQ = S_FREE + 26
sOB = S_FREE + 27
sF0, sF1, sDEC = S_FREE + 28, S_FREE + 29, S_FREE + 30
sLAYS = S_FREE + 31
sSB, sW1K = S_FREE + 34, S_FREE + 35
sX0, sX1 = S_FREE + 32, S_FREE + 33

vL16, vFLA, vFLV, vONE, vZERO, vT0, vT1, vC, vG = range(9)
XBUF = X_SEG


def seq(a, *items):
    for it in items:
        if isinstance(it, (list, tuple)):
            seq(a, *it)
        elif callable(it):
            it()
        elif it:
            a(it)


def MF(acc, A, B, C=None):
    return f"v_mfma_f32_16x16x32_bf16 {vr(acc, 4)}, {A}, {B}, {vr(acc, 4) if C is None else C}"


def lane_setup(a, nflags):
    a(f"""
    v_and_b32 v{vT0}, 63, v0
    v_lshlrev_b32 v{vL16}, 4, v{vT0}
    v_and_b32 v{vC}, 15, v{vT0}
    v_lshrrev_b32 v{vG}, 4, v{vT0}
    v_min_u32 v{vFLA}, {nflags - 1}, v{vT0}
    v_lshrrev_b32 v{vT1}, 2, v{vFLA}
    v_and_b32 v{vFLA}, 3, v{vFLA}
    v_lshlrev_b32 v{vFLA}, 2, v{vFLA}
    v_lshl_add_u32 v{vFLA}, v{vT1}, 7, v{vFLA}
    v_mov_b32 v{vONE}, 1
    v_mov_b32 v{vZERO}, 0
    s_mov_b32 s{sSELX}, 0x05040100
    s_mov_b32 s{sSELY}, 0x07060302
    """)


def pick_next(a, step, l0):
    a(f"""
    s_add_u32 s{S_TMP}, s{sN1}, {l0}
    s_min_u32 s{S_TMP}, s{S_TMP}, {NSEG}
    s_cmp_lt_u32 s{sN0}, s{S_TMP}
    s_cselect_b32 s{sNL}, 0, 1
    s_cselect_b32 s{sNS}, s{sN0}, s{sN1}
    s_cselect_b32 s{S_TMP}, {step}, 0
    s_cselect_b32 s{S_TMP + 1}, 0, {step}
    s_add_u32 s{sN0}, s{sN0}, s{S_TMP}
    s_add_u32 s{sN1}, s{sN1}, s{S_TMP + 1}
    s_lshl_b32 s{sNO}, s{sNL}, 6
    s_add_u32 s{sNO}, s{sNO}, s{sNS}
    """)


def flag_out(a, sreg):
    a("s_mov_b64 exec, 1")
    a(f"buffer_store_dword v{vONE}, v{vZERO}, {WS}, s{sreg} offen sc1")
    a("s_mov_b64 exec, -1")


def flag_block(a, name, abort):
    L = a.newlabel(name)
    a(f"s_mov_b32 s{S_SPIN}, 0")
    a.label(L)
    a(f"buffer_load_dword v{vFLV}, v{vFLA}, {WS}, s{sNFL} offen sc1")
    spin_check(a, abort)
    a(f"v_cmp_eq_u32 vcc, 0, v{vFLV}")
    Ld = a.newlabel(name + "d")
    a(f"s_cbranch_vccz {Ld}")
    a(f"s_sleep {SLP}")
    a(f"s_branch {L}")
    a.label(Ld)


PFS = f"s[{SRD_C}:{SRD_C + 3}]"


STB3 = 0x1C000
sCSB = S_FREE + 39
P3 = int(os.environ.get('P3', '0'))
PMID = int(os.environ.get('PMID', '14'))
PROLL = int(os.environ.get('PROLL', '22'))
MBOX = 2 * XBUF + 1024
vFL1 = 15


def cand_addr(a, flag_off, excl=False):
    a(f"""
    s_mul_i32 s{sF0}, s{sN0}, {FL_STRIDE}
    s_add_u32 s{sF0}, s{sF0}, {WS_FLAGS + flag_off}
    s_cmp_lt_u32 s{sN0}, {NSEG}
    s_cselect_b32 s{sF0}, s{sF0}, {WS_ZERO}
    s_mul_i32 s{sF1}, s{sN1}, {FL_STRIDE}
    s_add_u32 s{sF1}, s{sF1}, {WS_FLAGS + flag_off + NSEG * FL_STRIDE}
    s_cmp_lt_u32 s{sN1}, {NSEG}
    s_cselect_b32 s{sF1}, s{sF1}, {WS_ZERO}
    """)
    if excl:
        a(f"s_cmp_lt_u32 s{sN0}, {NSEG}")
        a(f"s_cselect_b32 s{sF1}, {WS_ZERO}, s{sF1}")


def sample2(a):
    a(f"buffer_load_dword v{vFLV}, v{vFLA}, {WS}, s{sF0} offen sc1")
    a(f"buffer_load_dword v{vFL1}, v{vFLA}, {WS}, s{sF1} offen sc1")


def decide(a, prio=1):
    a(f"v_cmp_eq_u32 vcc, 0, v{vFLV}")
    a(f"v_cmp_eq_u32 s[{sE}:{sE + 1}], 0, v{vFL1}")
    m = ["vcc", f"s[{sE}:{sE + 1}]"]
    a(f"s_cmp_eq_u64 {m[1 - prio]}, 0")
    a(f"s_cselect_b32 s{sDEC}, {2 - prio}, 0")
    a(f"s_cmp_eq_u64 {m[prio]}, 0")
    a(f"s_cselect_b32 s{sDEC}, {1 + prio}, s{sDEC}")


def take(dec, step, step1=None):
    return [f"s_cmp_eq_u32 s{dec}, 2",
            f"s_cselect_b32 s{sNL}, 1, 0",
            f"s_cselect_b32 s{sNS}, s{sN1}, s{sN0}",
            f"s_cselect_b32 s{S_TMP}, {step if step1 is None else step1}, 0",
            f"s_add_u32 s{sN1}, s{sN1}, s{S_TMP}",
            f"s_cmp_eq_u32 s{dec}, 1",
            f"s_cselect_b32 s{S_TMP}, {step}, 0",
            f"s_add_u32 s{sN0}, s{sN0}, s{S_TMP}",
            f"s_lshl_b32 s{sNO}, s{sNL}, 6",
            f"s_add_u32 s{sNO}, s{sNO}, s{sNS}"]


def poll2(a, name, abort, flag_off, prio=1, excl=False):
    cand_addr(a, flag_off, excl)
    L = a.newlabel(name)
    a(f"s_mov_b32 s{S_SPIN}, 0")
    a.label(L)
    sample2(a)
    spin_check(a, abort)
    decide(a, prio)
    a(f"s_cmp_lg_u32 s{sDEC}, 0")
    a(f"s_cbranch_scc1 {L}d")
    a(f"s_sleep {SLP}")
    a(f"s_branch {L}")
    a.label(L + "d")


def staged_loop(a, name, abort, done, xbase, xlayer, flag_off, extra_loads, compute, out_flag, nst, vMB, laysel=None, waited=False, epi=None, early=None, pub=None):
    crit = [f"s_cmp_eq_u32 s{sDEC}, 2", f"s_cselect_b32 s{sNX}, s{sX1}, s{sX0}",
            f"s_cmp_lg_u32 s{sDEC}, 0", f"s_cselect_b32 s{SRD_C + 2}, {WS_BYTES}, 0"]
    adv_x = [f"s_cmp_eq_u32 s{sDEC}, 2", f"s_cselect_b32 s{S_TMP}, {X_SEG}, 0", f"s_add_u32 s{sX1}, s{sX1}, s{S_TMP}",
             f"s_cmp_eq_u32 s{sDEC}, 1", f"s_cselect_b32 s{S_TMP}, {X_SEG}, 0", f"s_add_u32 s{sX0}, s{sX0}, s{S_TMP}"]

    def dma_ops(srd_):
        ops = []
        for i in range(9):
            pre = []
            if i % 4 == 0:
                pre = [f"s_add_u32 m0, s{sOB}, {i * 1024}", f"s_add_u32 s{sO2}, s{sNX}, {i * 1024}"]
            ops.append(pre + [f"buffer_load_dwordx4 v{vL16}, {srd_}, s{sO2} offen offset:{(i % 4) * 1024} lds"])
        return ops

    def post():
        a(f"v_mov_b32 v{vT0}, s{sDEC}")
        a(f"ds_write_b32 v{vMB}, v{vT0}")
        a.wait(lg=0)

    def publish():
        a(f"s_cmp_lg_u32 s{sPEND}, 0")
        a(f"s_cselect_b64 exec, {pub[1] if pub else 1}, 0")
        a(f"buffer_store_dword v{vONE}, v{pub[0] if pub else vZERO}, {WS}, s{sPEND} offen sc1")
        a("s_mov_b64 exec, -1")
        a(f"s_mov_b32 s{sPEND}, 0")

    def cur_from_next():
        a(f"s_mov_b32 s{sCL}, s{sNL}")
        a(f"s_mov_b32 s{sCS}, s{sNS}")
        a(f"s_mov_b32 s{sCO}, s{sNO}")

    def roll():
        Ls = a.newlabel(name + "_ns")
        a(f"s_cmp_lg_u32 s{S_WAVE}, 0")
        a(f"s_cbranch_scc1 {Ls}")
        sn = a.snap()
        cand_addr(a, flag_off)
        sample2(a)
        a.restore(sn)
        a.label(Ls)

    a(f"""
    s_mov_b32 s{sN0}, 0
    s_mov_b32 s{sN1}, 0
    s_mov_b32 s{sLEFT}, {2 * NSEG}
    s_mul_i32 s{sWQ}, s{S_WAVE}, 9216
    s_mov_b32 s{sBUF}, {XBUF}
    s_mov_b32 s{sOB}, s{sWQ}
    s_mov_b32 s{sPEND}, 0
    s_mov_b32 s{SRD_C}, s{SRD_WS}
    s_mov_b32 s{SRD_C + 1}, s{SRD_WS + 1}
    s_mov_b32 s{SRD_C + 2}, 0
    s_mov_b32 s{SRD_C + 3}, 0x00020000
    v_mov_b32 v{vMB}, {MBOX}
    s_add_u32 s{sX0}, s{sWQ}, {xbase}
    s_add_u32 s{sX1}, s{sWQ}, {xbase + xlayer}
    """)
    if laysel is not None:
        a(f"s_cmp_eq_u32 s{laysel}, 0")
        a(f"s_cselect_b32 s{sN0}, 0, {NSEG}")
        a(f"s_cselect_b32 s{sN1}, {NSEG}, 0")
        a(f"s_mov_b32 s{sLEFT}, {NSEG}")
    a(f"ds_write2_b32 v{vMB}, v{vZERO}, v{vZERO} offset0:0 offset1:1")
    a.wait(lg=0)
    if not waited:
        dbg_wait(a, DB_POOL, N_POOL, vT0, vT1, abort, name + "_ini")
    trace(a, vT0, vT1)
    prof_init(a)
    if PROF == 3:
        a("s_memtime s[84:85]")
        a.force_wait(lg=0)
    a(f"s_branch {name}_idle0")
    head = name + "_item"
    a.label(head)
    a.restore(([], []))
    prof_begin(a)
    a.force_wait(vm=nst)
    if EARLYF and (laysel is not None or EARLYF > 1):
        a(f"s_cmp_lt_u32 s{sPEND}, {NSEG * FL_STRIDE}")
        a(f"s_cbranch_scc1 {name}_defer")
        a.force_wait(vm=0)
        publish()
    a.label(name + "_defer")
    prof_end(a, 0)
    a(f"s_cmp_lg_u32 s{S_WAVE}, 0")
    a(f"s_cbranch_scc1 {name}_nw0")
    decide(a)
    post()
    a.label(name + "_nw0")
    prof_begin(a)
    a("s_barrier")
    prof_end(a, 1)
    a(f"ds_read_b32 v{vT1}, v{vMB}")
    a(f"""
    v_xor_b32 v{vMB}, 4, v{vMB}
    s_xor_b32 s{sBUF}, s{sBUF}, {XBUF}
    s_xor_b32 s{sOB}, s{sOB}, {XBUF}
    s_xor_b32 s{sSB}, s{sSB}, 0x2000
    s_xor_b32 s{sCSB}, s{sCSB}, 0x2000
    s_sub_u32 s{sLEFT}, s{sLEFT}, 1
    """)
    if epi:
        early()
        a(f"s_cmp_eq_u32 s{sPEND}, 0")
        a(f"s_cbranch_scc1 {name}_noepi")
        lg = list(a.lgq)
        epi()
        assert a.lgq == lg or not a.lgq
        a.lgq = lg
        a.label(name + "_noepi")
    a.vmq = [(frozenset(), "st")] * nst
    ex = extra_loads(PFS)
    tk = take(sDEC, 1)
    pre = ([f"v_readfirstlane_b32 s{sDEC}, v{vT1}"] + crit, [tk[:5], tk[5:], ex[0][:-1], adv_x[:3], adv_x[3:]] if os.environ.get('BSPLIT', '1') == '1' else [tk, ex[0][:-1], adv_x, [], []])
    ex[0] = ex[0][-1:]

    def mid():
        prof_begin(a) if PROF == 1 else None
        a.wait_tag("st")
        prof_end(a, 2) if PROF == 1 else None
        publish()

    compute(pre, dma_ops(PFS), ex, mid, roll)
    out_flag()
    trace_at(a, sCO, vT0, vZERO)
    if name.startswith("Lp"):
        stamp_max(a, 9, vT0, vT1, (sCO, 1)) if DBGT == 2 else None
    cur_from_next()
    if TRACE == 1:
        a.force_wait(vm=0)
        trace(a, vT0, vT1)
        a.force_wait(vm=0)
    a(f"s_min_u32 s{sDEC}, s{sDEC}, s{sLEFT}")
    a(f"s_cmp_lg_u32 s{sDEC}, 0")
    a(f"s_cbranch_scc1 {head}")
    roll()
    a.force_wait(vm=0)
    publish()
    a(f"s_cmp_eq_u32 s{sLEFT}, 0")
    a(f"s_cbranch_scc1 {name}_end")
    a(f"s_cmp_lg_u32 s{S_WAVE}, 0")
    a(f"s_cbranch_scc1 {name}_nw1")
    decide(a)
    a(f"s_cmp_lg_u32 s{sDEC}, 0")
    a(f"s_cbranch_scc1 {name}_got")
    a.label(name + "_idle0")
    a.restore(([], []))
    a(f"s_cmp_lg_u32 s{S_WAVE}, 0")
    a(f"s_cbranch_scc1 {name}_nw1")
    p3_begin(a)
    poll2(a, name + "_pl", abort, flag_off)
    p3_end(a, 3)
    a.label(name + "_got")
    post()
    a.label(name + "_nw1")
    a("s_barrier")
    a(f"ds_read_b32 v{vT1}, v{vMB}")
    a(f"v_xor_b32 v{vMB}, 4, v{vMB}")
    a(f"v_readfirstlane_b32 s{sDEC}, v{vT1}")
    a(f"s_cmp_eq_u32 s{sDEC}, 0")
    a(f"s_cbranch_scc1 {abort}")
    seq(a, crit, take(sDEC, 1), adv_x, dma_ops(WS), extra_loads(WS))
    cur_from_next()
    roll()
    a.force_wait(vm=0)
    if PROF:
        a("s_add_u32 s96, s96, 1000")
    a(f"s_branch {head}")
    a.label(name + "_end")
    if PROF == 3:
        a("s_memtime s[86:87]")
        a.force_wait(lg=0)
        a("s_sub_u32 s97, s86, s84")
    prof_dump(a, vT0, vT1)
    a(f"s_branch {done}")


HPUB = int(os.environ.get("HPUB", "12"))
H1 = int(os.environ.get("H1", "6"))
H2 = int(os.environ.get("H2", "30"))


def _flat(x):
    if isinstance(x, (list, tuple)):
        return [z for y in x for z in _flat(y)]
    return [x]


SCRATCH = 0x20000
WINS = [int(x) for x in os.environ.get("WIN", "1,18").split(",")]
GAP = int(os.environ.get("GAP", "5"))
FAST2 = int(os.environ.get("FAST2", "0"))
LOOKS = [int(x) for x in os.environ.get("LOOKS", "13,30").split(",")]


def eager_loop(a, name, abort, done, xbase, xlayer, flag_off, extra, compute, out_flag, nst, vMB, laysel, pub=None,
               hpos=None, toggles=(), late_extra=False):
    hp = hpos[0] if hpos else HPUB
    sISS, sACT, sWM, sEXT, sWS = sPF, sLEFT, sNX + 0, sE, sE + 1
    sWM = sSELX
    sEXM = 76
    vMV = vFL1
    pa, pm = pub if pub else (vZERO, 1)
    kind, xfn = extra
    sLOOK, sLF = sN0, sN1
    tails = []

    def publish():
        a(f"s_cmp_lg_u32 s{sPEND}, 0")
        a(f"s_cselect_b64 exec, {pm}, 0")
        a(f"buffer_store_dword v{vONE}, v{pa}, {WS}, s{sPEND} offen sc1")
        a("s_mov_b64 exec, -1")
        a(f"s_mov_b32 s{sPEND}, 0")

    def pieces(srd_, sbase):
        ops = []
        for i in range(9):
            pre = []
            if i % 4 == 0:
                pre = [f"s_add_u32 m0, s{sbase}, {i * 1024}", f"s_add_u32 s{sO2}, s{sNX}, {i * 1024}"]
            ops.append(pre + [f"buffer_load_dwordx4 v{vL16}, {srd_}, s{sO2} offen offset:{(i % 4) * 1024} lds"])
        return ops

    def extras(srd_, masked):
        if kind == "lds":
            return xfn(srd_, sWS if masked else sSB)
        ops = []
        for op in xfn(WS):
            op = list(op)
            if masked:
                op = op[:-1] + [f"s_mov_b64 exec, s[{sEXM}:{sEXM + 1}]", op[-1], "s_mov_b64 exec, -1"]
            ops.append(op)
        return ops

    def next_addr():
        a(f"""
        s_mul_i32 s{sNX}, s{sNS}, {X_SEG}
        s_add_u32 s{sNX}, s{sNX}, s{sX0}
        s_mul_i32 s{sF0}, s{sNS}, {FL_STRIDE}
        s_add_u32 s{sF0}, s{sF0}, s{sF1}
        s_cmp_lt_u32 s{sNS}, {NSEG}
        s_cselect_b32 s{sF0}, s{sF0}, {WS_ZERO}
        """)

    a(f"""
    s_mov_b32 s{sNL}, s{laysel}
    s_mov_b32 s{sCL}, s{laysel}
    s_mul_i32 s{sWQ}, s{S_WAVE}, 9216
    s_mul_i32 s{sX0}, s{laysel}, {xlayer}
    s_add_u32 s{sX0}, s{sX0}, s{sWQ}
    s_add_u32 s{sX0}, s{sX0}, {xbase}
    s_mul_i32 s{sF1}, s{laysel}, {NSEG * FL_STRIDE}
    s_add_u32 s{sF1}, s{sF1}, {WS_FLAGS + flag_off}
    s_mov_b32 s{sNS}, 0
    s_mov_b32 s{sBUF}, {XBUF}
    s_mov_b32 s{sOB}, s{sWQ}
    s_mov_b32 s{sPEND}, 0
    s_mov_b32 s{sDEC}, 1
    s_mov_b32 s{SRD_C}, s{SRD_WS}
    s_mov_b32 s{SRD_C + 1}, s{SRD_WS + 1}
    s_mov_b32 s{SRD_C + 2}, 0
    s_mov_b32 s{SRD_C + 3}, 0x00020000
    v_mov_b32 v{vMB}, {MBOX}
    v_mov_b32 v{vT0}, -1
    """)
    a(f"ds_write_b32 v{vMB}, v{vT0}")
    a.wait(lg=0)
    trace6(a, vT0, vT1)
    init_wait(a, laysel, vT0, vT1, abort, name + "_ini")
    trace6(a, vT0, vT1)
    trace(a, vT0, vT1)
    prof_init(a)
    if PROF:
        a("s_memtime s[82:83]")
        a.force_wait(lg=0)
    next_addr()
    a(f"s_branch {name}_wait")
    a.label(name + "_head")
    a.restore(([], []))
    prof_begin(a)
    a.force_wait(vm=nst)
    prof_end(a, 0)
    a.label(name + "_head2")
    prof_begin(a)
    a("s_barrier")
    prof_end(a, 1)
    a(f"ds_read_b32 v{vMV}, v{vMB}")
    a(f"""
    s_xor_b32 s{sBUF}, s{sBUF}, {XBUF}
    s_xor_b32 s{sOB}, s{sOB}, {XBUF}
    s_mov_b32 s{sCS}, s{sNS}
    s_lshl_b32 s{sCO}, s{sCL}, 6
    s_add_u32 s{sCO}, s{sCO}, s{sCS}
    s_add_u32 s{sNS}, s{sNS}, 1
    s_mov_b32 s{sISS}, 0
    s_mov_b32 s{sEXT}, 0
    """)
    for r, x in toggles:
        a(f"s_xor_b32 s{r}, s{r}, {x}")
    next_addr()
    trace6(a, vT0, vT1)
    if TRACE == 4:
        a(f"s_xor_b32 s75, s{sCO}, 64")
        trace_at(a, 75, vT0, vZERO)

    class Rec:
        def __init__(self):
            self.steps = [[]]

        def __call__(self, text, tag=None):
            for line in text.strip().split("\n"):
                line = line.strip()
                if line:
                    self.steps[-1].append((line, tag))
    rec = Rec()
    compute(rec, lambda t: rec.steps.append([]))
    steps = rec.steps
    assert len(steps) == 37

    sR, sLIM = sACT, sISS

    def look(allowed):
        M = f"s[{sEXM}:{sEXM + 1}]"
        g = [[f"v_cmp_eq_u32 {M}, 1, v{vFLV}", f"v_cmp_eq_u32 vcc, 2, v{vFLV}"],
             [f"s_cmp_eq_u64 {M}, -1", f"s_cselect_b32 s{sR}, 1, 0"],
             [f"s_cmp_lg_u32 s{sR}, 0", "s_cselect_b64 exec, 1, 0", f"v_mov_b32 v{vMV}, s{sLOOK}", f"ds_write_b32 v{vMB}, v{vMV}",
              f"v_mov_b32 v{vFLV}, 2", "s_mov_b64 exec, -1"],
             [f"s_add_u32 s{sLOOK}, s{sLOOK}, s{sR}", f"s_mul_i32 s{sR}, s{sR}, {FL_STRIDE}", f"s_add_u32 s{sLF}, s{sLF}, s{sR}"]]
        if allowed:
            g += [[f"s_cmp_eq_u64 vcc, 0", f"s_cselect_b32 s{sR}, s{sLOOK}, 0x7fff"],
                  [f"s_cmp_le_u32 s{sR}, s{sLIM}", "s_cselect_b64 exec, -1, 0", f"v_mov_b32 v{vFLV}, 2",
                   f"buffer_load_dword v{vFLV}, v{vFLA}, {WS}, s{sLF} offen sc1", "s_mov_b64 exec, -1"]]
        return g

    looks = LOOKS if hpos is None else hpos[1]
    WIN = WINS if hpos is None else hpos[3]
    gap = GAP if hpos is None else hpos[2]
    xlate = 15
    deferred = []

    def emit_group(grp, st):
        a.auto = False
        seq(a, grp)
        a.auto = True
        st["vm"] += sum(1 for x in _flat(grp) if x.startswith("buffer_"))

    def emit_step(t, fifo, st):
        ins = steps[t]
        n = len(ins)
        for i, (line, tag) in enumerate(ins):
            a(line, tag)
            if t < 36 and line.startswith("v_mfma"):
                j = i + 1
                while j < n and not ins[j][0].startswith("v_mfma"):
                    j += 1
                room = gap - (j - i - 1)
                while fifo and (len(fifo[0]) <= room or (room >= gap - 1 and len(fifo[0]) > gap)):
                    grp = fifo.pop(0)
                    emit_group(grp, st)
                    room -= len(grp)

    def plan(t, fetched, wk, fifo, queue, st):
        if queue:
            n = 2 if (len(queue) > 33 - t or FAST2) else 1
            for _ in range(n):
                if queue and not (queue[0][0] and t <= xlate and late_extra):
                    fifo.append(_flat(queue.pop(0)[1]))
        if t in looks:
            fifo.extend(look(True))

    def fixed(t, fetched, wk, fifo, st):
        if t == hp:
            prof_begin(a)
            a.force_wait(vm=st["vm"])
            prof_end(a, 2)
            publish()
            st["vm"] += 1
        if not fetched and wk < len(WIN) and t == WIN[wk] - 2:
            a(f"ds_read_b32 v{vMV}, v{vMB}")

    def flush(fifo, st):
        while fifo:
            emit_group(fifo.pop(0), st)

    def run(t0):
        wk, fifo, st = 0, [], {"vm": 0}
        for t in range(36):
            emit_step(t, fifo, st)
            if wk < len(WIN) and t == WIN[wk]:
                flush(fifo, st)
                Lf = a.newlabel(name + "_f")
                a(f"v_readfirstlane_b32 s{S_TMP}, v{vMV}")
                if wk == 0:
                    a(f"s_add_u32 s{S_TMP + 1}, s{S_TMP}, 1")
                    a(f"s_max_i32 s{sLOOK}, s{S_TMP + 1}, s{sNS}")
                    a(f"s_add_u32 s{sLIM}, s{sNS}, 1")
                    a(f"s_min_u32 s{sLIM}, s{sLIM}, {NSEG - 1}")
                    a(f"s_mul_i32 s{sLF}, s{sLOOK}, {FL_STRIDE}")
                    a(f"s_add_u32 s{sLF}, s{sLF}, s{sF1}")
                    a(f"s_cmp_eq_u32 s{S_WAVE}, 0")
                    a(f"s_cselect_b32 s{S_TMP + 1}, s{sLOOK}, 0x7fff")
                    a(f"v_mov_b32 v{vFLV}, 2")
                    a(f"s_cmp_le_u32 s{S_TMP + 1}, s{sLIM}")
                    a(f"s_cselect_b64 exec, -1, 0")
                    a.auto = False
                    a(f"buffer_load_dword v{vFLV}, v{vFLA}, {WS}, s{sLF} offen sc1")
                    a.auto = True
                    st["vm"] += 1
                    a("s_mov_b64 exec, -1")
                    a.vmq = []
                a(f"s_cmp_ge_i32 s{S_TMP}, s{sNS}")
                a(f"s_cbranch_scc1 {Lf}")
                deferred.append((Lf, t, dict(st), a.snap(), list(a.win)))
                wk += 1
            plan(t, False, wk, fifo, [], st)
            fixed(t, False, wk, fifo, st)
        flush(fifo, st)
        finish(0)

    def run_fetch(t0, st):
        queue = [(False, op) for op in pieces(WS, sOB)] + [(kind == "reg", op) for op in extras(WS, False)]
        fifo = []
        plan(t0, True, 0, fifo, queue, st)
        fixed(t0, True, 0, fifo, st)
        for t in range(t0 + 1, 36):
            emit_step(t, fifo, st)
            plan(t, True, 0, fifo, queue, st)
            fixed(t, True, 0, fifo, st)
        fifo.extend(_flat(op) for _, op in queue)
        flush(fifo, st)
        finish(t0 + 100)

    def finish(fetched):
        if PROF == 2:
            a("s_memtime s[86:87]")
            a.force_wait(lg=0)
            a("s_sub_u32 s86, s86, s84")
            a("s_add_u32 s93, s93, s86")
            a("s_memtime s[84:85]")
            a.force_wait(lg=0)
        for line, tag in steps[36]:
            a(line, tag)
        if PROF == 2:
            a("s_memtime s[86:87]")
            a.force_wait(lg=0)
            a("s_sub_u32 s86, s86, s84")
            a("s_add_u32 s94, s94, s86")
        out_flag()
        trace_at(a, sCO, vT0, vZERO)
        if TRACE == 4:
            a(f"s_add_u32 s7, s{sCS}, 128")
            a(f"s_lshl_b32 s7, s7, 2")
            a(f"s_add_u32 s7, s7, s5")
            a(f"v_mov_b32 v{vT0}, {fetched}")
            a("s_mov_b64 exec, 1")
            a(f"buffer_store_dword v{vT0}, v{vZERO}, s[{SRD_WS}:{SRD_WS + 3}], s7 offen offset:12")
            a("s_mov_b64 exec, -1")
        a(f"s_branch {name}_{'head' if fetched else 'none'}")

    a.vmq = []
    if PROF == 2:
        a("s_memtime s[84:85]")
        a.force_wait(lg=0)
    run(0)
    for Lf, t, st, sn, win in deferred:
        a.label(Lf)
        a.restore(sn)
        a.win = list(win)
        run_fetch(t, st)
    a.label(name + "_none")
    a.restore(([], []))
    a.force_wait(vm=0)
    publish()
    a(f"s_cmp_ge_u32 s{sNS}, {NSEG}")
    a(f"s_cbranch_scc1 {name}_end")
    a.label(name + "_wait")
    a.restore(([], []))
    a(f"s_mov_b32 s{S_SPIN}, 0")
    a(f"s_cmp_lg_u32 s{S_WAVE}, 0")
    a(f"s_cbranch_scc1 {name}_wl")
    p3_begin(a)
    a.label(name + "_wp")
    a(f"buffer_load_dword v{vFLV}, v{vFLA}, {WS}, s{sF0} offen sc1")
    spin_check(a, name + "_giveup")
    a(f"v_cmp_eq_u32 vcc, 0, v{vFLV}")
    a(f"s_cbranch_vccz {name}_wok")
    a(f"s_sleep {SLP}")
    a(f"s_branch {name}_wp")
    a.label(name + "_giveup")
    a(f"v_mov_b32 v{vT0}, -2")
    a(f"ds_write_b32 v{vMB}, v{vT0}")
    a.force_wait(lg=0)
    a(f"s_branch {abort}")
    a.label(name + "_wok")
    p3_end(a, 3)
    a(f"v_mov_b32 v{vT0}, s{sNS}")
    a(f"ds_write_b32 v{vMB}, v{vT0}")
    a(f"s_branch {name}_go")
    a.label(name + "_wl")
    a(f"ds_read_b32 v{vMV}, v{vMB}")
    a(f"s_add_u32 s{S_SPIN}, s{S_SPIN}, 1")
    a(f"s_cmp_gt_u32 s{S_SPIN}, {SPIN_MAX * 16}")
    a(f"s_cbranch_scc1 {abort}")
    a(f"v_readfirstlane_b32 s{S_TMP}, v{vMV}")
    a(f"s_cmp_eq_u32 s{S_TMP}, -2")
    a(f"s_cbranch_scc1 {abort}")
    a(f"s_cmp_ge_i32 s{S_TMP}, s{sNS}")
    a(f"s_cbranch_scc1 {name}_go")
    a("s_sleep 1")
    a(f"s_branch {name}_wl")
    a.label(name + "_go")
    a.restore(([], []))
    if PROF:
        a("s_add_u32 s96, s96, 1000")
    a.auto = False
    seq(a, pieces(WS, sOB), extras(WS, False))
    a.auto = True
    prof_begin(a)
    a.force_wait(vm=0, lg=0)
    prof_end(a, 5)
    a(f"s_branch {name}_head2")
    a.label(name + "_end")
    if PROF:
        a("s_memtime s[86:87]")
        a.force_wait(lg=0)
        a("s_sub_u32 s97, s86, s82")
    prof_dump(a, vT0, vT1)
    a(f"s_branch {done}")
    for tl in tails:
        a.restore(([], []))
        tl()


WB = 112


def MF32(acc, A, B, C=None):
    return f"v_mfma_f32_32x32x16_bf16 {vr(acc, 16)}, {A}, {B}, {vr(acc, 16) if C is None else C}"


def load_cols(a, srdb, vad, vsel, items, nt=os.environ.get("NT_P", "")):
    D = 28
    n = len(items)
    for i in range(n + D):
        if i < n:
            r = 16 + 2 * (i % 48)
            a(f"s_add_u32 s{S_TMP}, s{sK1}, {items[i][0]}")
            a(f"buffer_load_dword v{r}, v{vad}, s[{srdb}:{srdb + 3}], s{S_TMP} offen {nt}")
            a(f"buffer_load_dword v{r + 1}, v{vad + 1}, s[{srdb}:{srdb + 3}], s{S_TMP} offen {nt}")
        j = i - D
        if j >= 0:
            r = 16 + 2 * (j % 48)
            a(f"v_perm_b32 v{items[j][1]}, v{r + 1}, v{r}, v{vsel}")


def feat_of_row(a, dst, row, t1):
    a(f"""
    v_and_b32 v{dst}, 19, v{row}
    v_bfe_u32 v{t1}, v{row}, 2, 1
    v_lshl_add_u32 v{dst}, v{t1}, 3, v{dst}
    v_bfe_u32 v{t1}, v{row}, 3, 1
    v_lshl_add_u32 v{dst}, v{t1}, 2, v{dst}
    """)


def sel_of_parity(a, vsel, par, t1):
    a(f"""
    v_mov_b32 v{vsel}, s{sSELX}
    v_mov_b32 v{t1}, s{sSELY}
    v_cmp_eq_u32 vcc, 1, v{par}
    v_cndmask_b32 v{vsel}, v{vsel}, v{t1}, vcc
    """)


def gemm32(a, acc, swap, vXA, ring, pre, dma, extra, mid, roll, init=None, fill=None, issued=False):
    nr = len(ring)

    def rd(t):
        return f"ds_read_b128 {vr(ring[t % nr], 4)}, v{vXA} offset:{t * 1024}"
    if PROF == 2:
        a("s_memtime s[84:85]")
    if not issued:
        for t in range(nr - 1):
            a(rd(t))
    fill = list(fill or [])
    crit, blocks = pre
    blocks = list(blocks)
    vm = list(dma) + list(extra)
    for t in range(36):
        x, w = vr(ring[t % nr], 4), vr(WB + 4 * t, 4)
        a(MF32(acc, x if swap else w, w if swap else x, "0" if (t == 0 and not init) else None))
        if t + nr - 1 < 36:
            a(rd(t + nr - 1))
        k = 3 if t < 16 else 4
        if t == 1:
            seq(a, crit); k = 0
        elif t >= 2 and t % 2 == 1 and blocks:
            k = min(3, 5 - len(blocks[0]))
            seq(a, blocks.pop(0))
        elif t >= 2 and vm and (len(vm) > len(extra) or len(blocks) <= 2):
            assert len(vm) > len(extra) or len(blocks) <= 2
            seq(a, vm.pop(0)); k -= 2
        while fill and k > 0:
            seq(a, fill.pop(0)); k -= 1
        if t == 10:
            mid()
        if t == 16:
            roll()
    assert not vm and not fill and not blocks
    if PROF == 2:
        a("s_memtime s[86:87]")
        a.force_wait(lg=0)
        a("s_sub_u32 s86, s86, s84")
        a("s_add_u32 s97, s97, s86")


VMDENSE = int(os.environ.get("VMDENSE", "1"))
STB = 0x14000


def stats_dma(base, srd_, sdest=None):
    sd = sSB if sdest is None else sdest
    pre = [f"s_mul_i32 s{sO3}, s{sNL}, {2 * ST_BYTES}", f"s_mul_i32 s{S_TMP + 1}, s{sNS}, {ST_SEG}",
           f"s_add_u32 s{sO3}, s{sO3}, s{S_TMP + 1}", f"s_add_u32 s{sO3}, s{sO3}, {base + 4096}"]
    return [pre + [f"s_add_u32 m0, s{sd}, 4096", f"s_nop 0",
                   f"buffer_load_dwordx4 v{vL16}, {srd_}, s{sO3} offen lds"],
            [f"s_add_u32 m0, s{sd}, s{sW1K}", f"s_sub_u32 s{sO3}, s{sO3}, 4096", f"s_add_u32 s{sO3}, s{sO3}, s{sW1K}",
             f"buffer_load_dwordx4 v{vL16}, {srd_}, s{sO3} offen lds"]]


def stats_loads(base, STR, vaddr, srd_):
    pre = [f"s_mul_i32 s{sO3}, s{sNL}, {2 * ST_BYTES}", f"s_mul_i32 s{S_TMP + 1}, s{sNS}, {ST_SEG}",
           f"s_add_u32 s{sO3}, s{sO3}, s{S_TMP + 1}", f"s_add_u32 s{sO3}, s{sO3}, {base}"]
    ops = [[f"buffer_load_dwordx4 {vr(STR + 4 * i, 4)}, v{vaddr}, {srd_}, s{sO3} offen offset:{512 * i}"] for i in range(6)]
    ops[0] = pre + ops[0]
    return ops


def stats_math(STR, RS, MR):
    ops = []
    for i in range(1, 5):
        ops += [f"v_add_f32 v{STR + j}, v{STR + j}, v{STR + 4 * i + j}" for j in range(4)]
    S1, S2 = STR, STR + 1
    ops += [f"v_add_f32 v{S1}, v{S1}, v{STR + 2}", f"v_add_f32 v{S2}, v{S2}, v{STR + 3}",
            f"v_mov_b32 v{STR + 2}, v{S1}", f"v_mov_b32 v{STR + 3}, v{S2}",
            f"v_permlane32_swap_b32 v{S1}, v{STR + 2}", f"v_permlane32_swap_b32 v{S2}, v{STR + 3}",
            f"v_add_f32 v{S1}, v{S1}, v{STR + 2}", f"v_add_f32 v{S2}, v{S2}, v{STR + 3}",
            f"v_mul_f32 v{S1}, {hex(f32bits(1.0 / 576))}, v{S1}",
            f"v_mul_f32 v{S2}, {hex(f32bits(1.0 / 576))}, v{S2}",
            f"v_fma_f32 v{S2}, -v{S1}, v{S1}, v{S2}",
            f"v_max_f32 v{S2}, 0, v{S2}",
            f"v_add_f32 v{S2}, {hex(f32bits(1e-5))}, v{S2}",
            f"v_rsq_f32 v{RS}, v{S2}",
            f"v_mul_f32 v{MR}, v{S1}, v{RS}"]
    return ops


def role_p(a, abort, done):
    lane_setup(a, 18)
    vXA, vSTA, vCS, vA0, vLDS, vO = 9, 10, 11, 12, 12, 14
    vMB = 108
    ACC, RING, STR, LN = 16, 32, 56, 76
    TT = 96
    CS = 80
    a(f"""
    s_lshr_b32 s{sK2}, s{S_ROLE}, 5
    s_and_b32 s{sK3}, s{S_ROLE}, 31
    s_lshl_b32 s{S_TMP}, s{sK2}, 3
    s_add_u32 s{S_TMP}, s{S_TMP}, {KA_WQ}
    s_load_dwordx2 s[{SRD_A}:{SRD_A + 1}], s[0:1], s{S_TMP}
    s_mov_b32 s{SRD_A + 2}, {576 * 8192}
    s_mov_b32 s{SRD_A + 3}, 0x00020000
    s_lshl_b32 s{sK1}, s{sK3}, 8
    s_lshl_b32 s{S_TMP}, s{S_WAVE}, 6
    s_add_u32 s{sK1}, s{sK1}, s{S_TMP}
    v_bfe_u32 v{vSTA}, v{vL16}, 4, 5
    """)
    feat_of_row(a, vO, vSTA, vT0)
    if RV2:
        a(f"v_and_b32 v{vT0}, 1, v{vO}")
        a(f"v_lshrrev_b32 v{vO}, 1, v{vO}")
        a(f"v_lshl_add_u32 v{vO}, v{vT0}, 4, v{vO}")
    a(f"""
    v_bfe_u32 v{vT0}, v{vL16}, 8, 1
    {f"v_lshl_add_u32 v{vT1}, v{vT0}, 4, v{vC}" if RV2 else f"v_lshl_add_u32 v{vT1}, v{vC}, 1, v{vT0}"}
    s_cmp_eq_u32 s{sK2}, 2
    s_cselect_b64 vcc, -1, 0
    v_cndmask_b32 v{vO}, v{vO}, v{vT1}, vcc
    v_and_b32 v{vT0}, 1, v{vO}
    """)
    sel_of_parity(a, vCS, vT0, vT1)
    a(f"""
    v_and_b32 v{vO}, 30, v{vO}
    v_lshrrev_b32 v{vT0}, 9, v{vL16}
    v_lshlrev_b32 v{vA0}, 16, v{vT0}
    v_lshl_add_u32 v{vA0}, v{vO}, 1, v{vA0}
    v_add_u32 v{vA0 + 1}, 8192, v{vA0}
    v_lshlrev_b32 v{vSTA}, 4, v{vSTA}
    v_mul_u32_u24 v{vT1}, 2560, v{vT0}
    v_add_u32 v{vSTA}, v{vSTA}, v{vT1}
    v_add_u32 v{vSTA}, {STB3}, v{vSTA}
    s_lshl_b32 s{sW1K}, s{S_WAVE}, 10
    v_bfe_u32 v{vT1}, v{vL16}, 8, 1
    v_lshlrev_b32 v{vO}, 10, v{vT1}
    v_lshl_add_u32 v{vO}, v{vC}, 4, v{vO}
    v_lshl_add_u32 v{vO}, v{vT0}, 8, v{vO}
    """)
    a.force_wait(lg=0)
    a(f"s_and_b32 s{SRD_A + 1}, s{SRD_A + 1}, 0xffff")
    load_cols(a, SRD_A, vA0, vCS, [((16 * t + 2 * d) * 8192, WB + 4 * t + d) for t in range(36) for d in range(4)])
    a(f"""
    s_mul_i32 s{sK4}, s{sK2}, {QKV_M}
    s_lshl_b32 s{S_TMP}, s{sK3}, 13
    s_add_u32 s{sK4}, s{sK4}, s{S_TMP}
    s_lshl_b32 s{S_TMP}, s{S_WAVE}, 11
    s_add_u32 s{sK4}, s{sK4}, s{S_TMP}
    s_add_u32 s{sK4}, s{sK4}, {WS_QKV}
    s_lshl_b32 s{sK1}, s{sK3}, 9
    s_lshl_b32 s{S_TMP}, s{sK2}, 7
    s_add_u32 s{sK1}, s{sK1}, s{S_TMP}
    s_lshl_b32 s{S_TMP}, s{S_WAVE}, 2
    s_add_u32 s{sK1}, s{sK1}, s{S_TMP}
    s_add_u32 s{sK1}, s{sK1}, {WS_FLAGS + FL_QKV}
    v_mov_b32 v{RING}, 0x3f803f80
    v_mov_b32 v{RING + 1}, 0x3f803f80
    v_mov_b32 v{RING + 2}, 0x3f803f80
    v_mov_b32 v{RING + 3}, 0x3f803f80
    s_lshl_b32 s{S_TMP}, s{S_WAVE}, 8
    s_add_u32 s{S_TMP}, s{S_TMP}, {3 * XBUF}
    v_bfe_u32 v{vT0}, v{vL16}, 4, 5
    v_lshl_add_u32 v{vLDS}, v{vT0}, 2, s{S_TMP}
    v_lshrrev_b32 v{vT0}, 9, v{vL16}
    v_lshl_add_u32 v{vLDS + 1}, v{vT0}, 4, s{S_TMP}
    s_cmp_eq_u32 s{sK2}, 2
    s_cbranch_scc1 Lp_v
    """)
    for swap in (0, 1):
        nm = "LpV" if swap else "LpQ"
        if swap:
            a.label("Lp_v")
            a.restore(([], []))
        for t in range(36):
            w, o = vr(WB + 4 * t, 4), vr(RING, 4)
            a(MF32(ACC if swap else CS, o if swap else w, w if swap else o, "0" if t == 0 else None))
        if swap:
            a(f"v_mov_b32 v{vCS}, v{ACC}")

        def early():
            a(f"v_add_u32 v{vXA}, s{sBUF}, v{vL16}")
            a(f"v_add_u32 v{vT0}, s{sCSB}, v{vSTA}")
            for t in range(3):
                a(f"ds_read_b128 {vr(RING + 4 * t, 4)}, v{vXA} offset:{t * 1024}")
            for i in range(5):
                a(f"ds_read_b128 {vr(STR + 4 * i, 4)}, v{vT0} offset:{512 * i}")

        def compute(pre, dma, extra, mid, roll, swap=swap):
            early()
            sm = [None] * 3 + stats_math(STR, LN, LN + 1)
            if swap:
                sm += [f"ds_write2_b32 v{vLDS}, v{LN}, v{LN + 1} offset0:0 offset1:32"]
                sm += [f"ds_read_b128 {vr(LN + 4 * i, 4)}, v{vLDS + 1} offset:{(i >> 2) * 128 + (i & 3) * 32}" for i in range(8)]
                sm += [None] * 9 + [f"v_mul_f32 v{LN + 16 + i}, v{vCS}, v{LN + 16 + i}" for i in range(16)]
            else:
                sm += [f"v_mul_f32 v{TT + i}, v{LN + 1}, v{CS + i}" for i in range(16)]
            sm += [f"s_mul_i32 s{sO1}, s{sCL}, {3 * QKV_M}", f"s_lshl_b32 s{sK3}, s{sCS}, 18",
                   f"s_add_u32 s{sO1}, s{sO1}, s{sK3}", f"s_add_u32 s{sO1}, s{sO1}, s{sK4}"]
            gemm32(a, ACC, swap, vXA, [RING + 4 * i for i in range(4)], pre, dma, extra, mid, roll, fill=sm, issued=True)
            epi()

        def epi(swap=swap):
            for k in range(2):
                regs = [0, 1, 2, 3, 8, 9, 10, 11] if swap else list(range(8))
                regs = [r + (4 if swap else 8) * k for r in regs]
                for i in regs[::2]:
                    if swap:
                        a(f"v_pk_fma_f32 {vr(ACC + i, 2)}, {vr(ACC + i, 2)}, {vr(LN + i, 2)}, {vr(LN + 16 + i, 2)} neg_lo:[0,0,1] neg_hi:[0,0,1]")
                    else:
                        a(f"v_pk_fma_f32 {vr(ACC + i, 2)}, {vr(ACC + i, 2)}, {vr(LN, 2)}, {vr(TT + i, 2)} op_sel_hi:[1,0,1] neg_lo:[0,0,1] neg_hi:[0,0,1]")
                o = RING + 16 + 4 * k
                for i in range(4):
                    a(f"v_cvt_pk_bf16_f32 v{o + i}, v{ACC + regs[2 * i]}, v{ACC + regs[2 * i + 1]}")
                a(f"buffer_store_dwordx4 {vr(o, 4)}, v{vO}, {WS}, s{sO1} offen offset:{512 * k} sc1", tag="st")

        def out_flag():
            a(f"s_mul_i32 s{sPEND}, s{sCO}, {FL_STRIDE}")
            a(f"s_add_u32 s{sPEND}, s{sPEND}, s{sK1}")

        a(f"s_mov_b32 s{sSB}, {STB3}")
        a(f"s_mov_b32 s{sCSB}, 0x2000")
        staged_loop(a, nm, abort, done, WS_X + X_BYTES, 2 * X_BYTES, FL_XB,
                    lambda sr_: stats_dma(WS_ST + ST_BYTES, sr_), compute, out_flag, 2, vMB if swap else 78)


def role_p2(a, abort, done):
    lane_setup(a, 18)
    vXA, vSTA, vCS, vLDS, vO, vFO = 9, 10, 11, 12, 14, 185
    vMB = 184
    ACC0, ACC1, RING, STR, CS0, TT0, LNV, LN, W1T, OUT = 16, 32, 48, 64, 84, 100, 116, 148, 152, 188
    CS1, TT1 = LNV, LNV + 16
    GA, RB = 16, 17
    SRD_B2 = SRD_B

    def w0(t):
        return ar(4 * t, 4)

    def w1(t):
        return ar(144 + 4 * t, 4) if t < 28 else vr(W1T + 4 * (t - 28), 4)

    a(f"""
    s_cmp_ge_u32 s{S_ROLE}, 48
    s_cselect_b32 s{sLAYS}, 1, 0
    s_cselect_b32 s{S_TMP}, 48, 0
    s_sub_u32 s{S_ROLE}, s{S_ROLE}, s{S_TMP}
    s_cmp_lt_u32 s{S_ROLE}, 32
    s_cselect_b32 s{sK2}, 1, 0
    s_sub_u32 s{S_TMP}, s{S_ROLE}, 32
    s_lshl_b32 s{S_TMP}, s{S_TMP}, 1
    s_cmp_eq_u32 s{sK2}, 1
    s_cselect_b32 s{sK3}, s{S_ROLE}, s{S_TMP}
    s_cselect_b32 s{S_TMP}, {KA_WK}, {KA_WQ}
    s_cselect_b32 s{S_TMP + 1}, {KA_WV}, {KA_WQ}
    s_load_dwordx2 s[{SRD_A}:{SRD_A + 1}], s[0:1], s{S_TMP}
    s_load_dwordx2 s[{SRD_B}:{SRD_B + 1}], s[0:1], s{S_TMP + 1}
    s_mov_b32 s{SRD_A + 2}, {576 * 8192}
    s_mov_b32 s{SRD_A + 3}, 0x00020000
    s_mov_b32 s{SRD_B + 2}, {576 * 8192}
    s_mov_b32 s{SRD_B + 3}, 0x00020000
    s_lshl_b32 s{sK1}, s{sK3}, 8
    s_mul_i32 s{S_TMP}, s{S_WAVE}, {16 * 8192}
    s_add_u32 s{sK1}, s{sK1}, s{S_TMP}
    s_cmp_eq_u32 s{sK2}, 1
    s_cselect_b32 s{S_TMP}, 0, 256
    s_add_u32 s{sK4}, s{sK1}, s{S_TMP}
    """)
    a.force_wait(lg=0)
    a(f"s_and_b32 s{SRD_A + 1}, s{SRD_A + 1}, 0xffff")
    a(f"s_and_b32 s{SRD_B + 1}, s{SRD_B + 1}, 0xffff")
    gate(a, 2, sLAYS, vT0, vT1, abort, "Lp2_gate")
    a(f"""
    v_lshrrev_b32 v{vT0}, 8, v{vL16}
    v_bfe_u32 v{vT1}, v{vL16}, 6, 2
    v_xor_b32 v{vT1}, v{vT1}, v{vT0}
    v_lshlrev_b32 v{vT1}, 6, v{vT1}
    v_and_b32 v{GA}, 0x30, v{vL16}
    v_add_u32 v{GA}, v{GA}, v{vT1}
    v_lshl_add_u32 v{GA}, v{vT0}, 13, v{GA}
    v_lshrrev_b32 v{vT0}, 2, v{vC}
    v_xor_b32 v{vT1}, s{S_WAVE}, v{vT0}
    v_lshlrev_b32 v{RB}, 6, v{vT1}
    v_lshrrev_b32 v{vT1}, 1, v{vG}
    v_lshl_add_u32 v{vT0}, v{vT1}, 3, v{vT0}
    v_lshl_add_u32 v{RB}, v{vT0}, 8, v{RB}
    v_and_b32 v{vT0}, 1, v{vG}
    v_lshl_add_u32 v{RB}, v{vT0}, 5, v{RB}
    v_and_b32 v{vT0}, 3, v{vC}
    v_lshl_add_u32 v{RB}, v{vT0}, 3, v{RB}
    v_add_u32 v{RB + 1}, 65536, v{RB}
    s_lshl_b32 s{sO1}, s{S_WAVE}, 12
    """)
    a.auto = False
    NCH, NR = 18, 8

    def dma(i):
        m, c = i // 9, i % 9
        src = (SRD_A, SRD_B)[m]
        a(f"s_add_u32 m0, s{sO1}, {(i % NR) * 16384}")
        for q in range(4):
            a(f"s_add_u32 s{S_TMP}, s{(sK1, sK4)[m]}, {(64 * c + 4 * q) * 8192}")
            a(f"buffer_load_dwordx4 v{GA}, s[{src}:{src + 3}], s{S_TMP} offen lds")
            if q < 3:
                a("s_add_u32 m0, m0, 1024")
    for i in range(NR - 1):
        dma(i)
    nissued = NR - 1
    for i in range(NCH):
        a(f"s_waitcnt vmcnt({4 * (nissued - 1 - i)})")
        a("s_barrier")
        if nissued < NCH:
            dma(nissued)
            nissued += 1
        m, c = i // 9, i % 9
        sl = i % NR
        for tp in range(4):
            t = 4 * c + tp
            dst = (w0, w1)[m](t)
            k, b0 = dst[0], int(dst[2:dst.index(":")])
            for sub in range(2):
                a(f"ds_read_b64_tr_b16 {k}[{b0 + 2 * sub}:{b0 + 2 * sub + 1}], v{RB + (sl >> 2)} offset:{(sl & 3) * 16384 + tp * 4096 + sub * 1024}")
        a("s_waitcnt lgkmcnt(0)")
    a("s_barrier")
    a.auto = True
    a.vmq, a.lgq = [], []
    a(f"""
    v_bfe_u32 v{vSTA}, v{vL16}, 4, 5
    v_lshrrev_b32 v{vT0}, 9, v{vL16}
    v_lshlrev_b32 v{vSTA}, 4, v{vSTA}
    v_mul_u32_u24 v{vT1}, 2560, v{vT0}
    v_add_u32 v{vSTA}, v{vSTA}, v{vT1}
    v_add_u32 v{vSTA}, {STB3}, v{vSTA}
    s_lshl_b32 s{sW1K}, s{S_WAVE}, 10
    v_bfe_u32 v{vT1}, v{vL16}, 8, 1
    v_lshlrev_b32 v{vO}, 10, v{vT1}
    v_lshl_add_u32 v{vO}, v{vC}, 4, v{vO}
    v_lshl_add_u32 v{vO}, v{vT0}, 8, v{vO}
    """)
    a(f"""
    s_lshl_b32 s{S_TMP}, s{sK3}, 13
    s_lshl_b32 s{S_TMP + 1}, s{S_WAVE}, 11
    s_add_u32 s{sK4}, s{S_TMP}, s{S_TMP + 1}
    s_add_u32 s{sK4}, s{sK4}, {WS_QKV}
    s_lshl_b32 s{sK1}, s{sK3}, 9
    s_lshl_b32 s{S_TMP}, s{S_WAVE}, 2
    s_add_u32 s{sK1}, s{sK1}, s{S_TMP}
    s_add_u32 s{sK1}, s{sK1}, {WS_FLAGS + FL_QKV}
    s_cmp_eq_u32 s{sK2}, 1
    s_cselect_b32 s{S_TMP}, {QKV_M}, 0
    s_cselect_b32 s{S_TMP + 1}, 128, 0
    s_add_u32 s{sK4}, s{sK4}, s{S_TMP}
    s_add_u32 s{sK1}, s{sK1}, s{S_TMP + 1}
    s_cmp_eq_u32 s{sK2}, 1
    s_cselect_b32 s{S_TMP}, 0, 384
    s_add_u32 s{S_TMP}, s{S_TMP}, 128
    v_lshrrev_b32 v{vFO}, 4, v{vL16}
    v_mul_lo_u32 v{vFO}, v{vFO}, s{S_TMP}
    v_mov_b32 v{RING}, 0x3f803f80
    v_mov_b32 v{RING + 1}, 0x3f803f80
    v_mov_b32 v{RING + 2}, 0x3f803f80
    v_mov_b32 v{RING + 3}, 0x3f803f80
    s_lshl_b32 s{S_TMP}, s{S_WAVE}, 8
    s_add_u32 s{S_TMP}, s{S_TMP}, {3 * XBUF}
    v_bfe_u32 v{vT0}, v{vL16}, 4, 5
    v_lshl_add_u32 v{vLDS}, v{vT0}, 2, s{S_TMP}
    v_lshrrev_b32 v{vT0}, 9, v{vL16}
    v_lshl_add_u32 v{vLDS + 1}, v{vT0}, 4, s{S_TMP}
    s_cmp_eq_u32 s{sK2}, 1
    s_cbranch_scc1 Lp2_kv
    """)
    for kv in (0, 1):
        nm = "LpKV" if kv else "LpQQ"
        if kv:
            a.label("Lp2_kv")
            a.restore(([], []))
        o = vr(RING, 4)
        for t in range(36):
            a(MF32(CS0, w0(t), o, "0" if t == 0 else None))
            if kv:
                a(MF32(ACC1, o, w1(t), "0" if t == 0 else None))
            else:
                a(MF32(CS1, w1(t), o, "0" if t == 0 else None))
        if kv:
            a(f"v_mov_b32 v{vCS}, v{ACC1}")
        d1 = QKV_M if kv else 8192

        def early(a):
            a(f"v_add_u32 v{vXA}, s{sBUF}, v{vL16}")
            a(f"v_add_u32 v{vT0}, s{sCSB}, v{vSTA}")
            for t in range(3):
                a(f"ds_read_b128 {vr(RING + 4 * t, 4)}, v{vXA} offset:{t * 1024}")
            for i in range(5):
                a(f"ds_read_b128 {vr(STR + 4 * i, 4)}, v{vT0} offset:{512 * i}")

        def compute(a, hook, kv=kv, d1=d1):
            early(a)
            sm = [None] * 3 + stats_math(STR, LN, LN + 1)
            sm += [f"v_mul_f32 v{TT0 + i}, v{LN + 1}, v{CS0 + i}" for i in range(16)]
            if kv:
                sm += [f"ds_write2_b32 v{vLDS}, v{LN}, v{LN + 1} offset0:0 offset1:32"]
                sm += [f"ds_read_b128 {vr(LNV + 4 * i, 4)}, v{vLDS + 1} offset:{(i >> 2) * 128 + (i & 3) * 32}" for i in range(8)]
                sm += [None] * 9 + [f"v_mul_f32 v{LNV + 16 + i}, v{vCS}, v{LNV + 16 + i}" for i in range(16)]
            else:
                sm += [f"v_mul_f32 v{TT1 + i}, v{LN + 1}, v{CS1 + i}" for i in range(16)]
            sm += [f"s_mul_i32 s{sO1}, s{sCL}, {3 * QKV_M}", f"s_lshl_b32 s{sK3}, s{sCS}, 18",
                   f"s_add_u32 s{sO1}, s{sO1}, s{sK3}", f"s_add_u32 s{sO1}, s{sO1}, s{sK4}"]
            ring = [RING + 4 * i for i in range(4)]
            nr = 4

            def rd(t):
                return f"ds_read_b128 {vr(ring[t % nr], 4)}, v{vXA} offset:{t * 1024}"
            fill = list(sm)
            for t in range(36):
                x = vr(ring[t % nr], 4)
                a(MF32(ACC0, w0(t), x, "0" if t == 0 else None))
                if t + nr - 1 < 36:
                    a(rd(t + nr - 1))
                k = 3
                while fill and k > 0:
                    seq(a, fill.pop(0)); k -= 1
                a(MF32(ACC1, x if kv else w1(t), w1(t) if kv else x, "0" if t == 0 else None))
                k = 4
                while fill and k > 0:
                    seq(a, fill.pop(0)); k -= 1
                hook(t)
            assert not fill
            a(f"s_add_u32 s{sK3}, s{sO1}, {d1}")
            for tile in range(2):
                ACC = (ACC0, ACC1)[tile]
                swap = kv and tile == 1
                TT = (TT0, TT1)[tile]
                for i in range(0, 16, 2):
                    if swap:
                        a(f"v_pk_fma_f32 {vr(ACC + i, 2)}, {vr(ACC + i, 2)}, {vr(LNV + i, 2)}, {vr(LNV + 16 + i, 2)} neg_lo:[0,0,1] neg_hi:[0,0,1]")
                    else:
                        a(f"v_pk_fma_f32 {vr(ACC + i, 2)}, {vr(ACC + i, 2)}, {vr(LN, 2)}, {vr(TT + i, 2)} op_sel_hi:[1,0,1] neg_lo:[0,0,1] neg_hi:[0,0,1]")
                for k in range(2):
                    ot = OUT + 8 * tile + 4 * k
                    for i in range(4):
                        if swap:
                            r = [0, 2, 8, 10][i] + 4 * k
                            a(f"v_cvt_pk_bf16_f32 v{ot + i}, v{ACC + r}, v{ACC + r + 1}")
                        else:
                            a(f"v_cvt_pk_bf16_f32 v{ot + i}, v{ACC + 4 * k + i}, v{ACC + 8 + 4 * k + i}")
                    a(f"buffer_store_dwordx4 {vr(ot, 4)}, v{vO}, {WS}, s{(sO1, sK3)[tile]} offen offset:{512 * k} sc1", tag="st")

        def out_flag():
            a(f"s_mul_i32 s{sPEND}, s{sCO}, {FL_STRIDE}")
            a(f"s_add_u32 s{sPEND}, s{sPEND}, s{sK1}")

        a(f"s_mov_b32 s{sSB}, {STB3}")
        a(f"s_mov_b32 s{sCSB}, 0x2000")
        eager_loop(a, nm, abort, done, WS_X + X_BYTES, 2 * X_BYTES, FL_XB,
                   ("lds", lambda sr_, sd: stats_dma(WS_ST + ST_BYTES, sr_, sd)), compute, out_flag, 4, vMB, sLAYS, pub=(vFO, 3),
                   toggles=((sSB, 0x2000), (sCSB, 0x2000)))


def role_awo(a, abort, done):
    lane_setup(a, 64)
    vXA, vSTO, vSEL, vA0, vRES = 9, 10, 11, 12, 14
    ACC, RING, RES, SS = 16, 32, 64, 72
    srd(a, SRD_A, KA_WO, 576 * 1152)
    a(f"""
    s_cmp_ge_u32 s{S_ROLE}, 5
    s_cselect_b32 s{sLAYS}, 1, 0
    s_cselect_b32 s{S_TMP}, 5, 0
    s_sub_u32 s{S_ROLE}, s{S_ROLE}, s{S_TMP}
    s_lshl_b32 s{sK2}, s{S_ROLE}, 2
    s_add_u32 s{sK2}, s{sK2}, s{S_WAVE}
    s_min_u32 s{sK2}, s{sK2}, 17
    s_lshl_b32 s{sK1}, s{sK2}, 6
    v_bfe_u32 v{vSTO}, v{vL16}, 4, 5
    """)
    feat_of_row(a, vRES, vSTO, vT0)
    a(f"v_and_b32 v{vT0}, 1, v{vRES}")
    sel_of_parity(a, vSEL, vT0, vT1)
    a(f"""
    v_and_b32 v{vRES}, 30, v{vRES}
    v_lshlrev_b32 v{vRES}, 1, v{vRES}
    v_lshrrev_b32 v{vXA}, 9, v{vL16}
    v_mul_u32_u24 v{vT0}, {8 * 1152}, v{vXA}
    v_add_u32 v{vA0}, v{vT0}, v{vRES}
    v_add_u32 v{vA0 + 1}, 1152, v{vA0}
    """)
    load_cols(a, SRD_A, vA0, vSEL, [((18 * t + 2 * d) * 1152, WB + 4 * t + d) for t in range(32) for d in range(4)])
    a(f"""
    v_mul_u32_u24 v{vT0}, {72 * 1152}, v{vXA}
    v_add_u32 v{vA0}, v{vT0}, v{vRES}
    v_add_u32 v{vA0 + 1}, 1152, v{vA0}
    """)
    load_cols(a, SRD_A, vA0, vSEL, [((144 * t + 18 * d + 16) * 1152, WB + 128 + 4 * t + d) for t in range(4) for d in range(4)])
    a(f"""
    v_lshlrev_b32 v{vSTO}, 4, v{vSTO}
    v_lshl_add_u32 v{vRES}, v{vXA}, 9, v{vSTO}
    s_lshl_b32 s{S_TMP}, s{sK2}, 11
    v_add_u32 v{vRES}, s{S_TMP}, v{vRES}
    s_lshr_b32 s{S_TMP}, s{sK2}, 1
    s_lshl_b32 s{S_TMP}, s{S_TMP}, 9
    s_and_b32 s{S_TMP + 1}, s{sK2}, 1
    s_lshl_b32 s{S_TMP + 1}, s{S_TMP + 1}, 3
    s_add_u32 s{S_TMP}, s{S_TMP}, s{S_TMP + 1}
    v_add_u32 v{vSTO}, s{S_TMP}, v{vSTO}
    s_lshr_b32 s{sK1}, s{sK2}, 2
    s_lshl_b32 s{sK1}, s{sK1}, 7
    s_and_b32 s{S_TMP}, s{sK2}, 3
    s_lshl_b32 s{S_TMP}, s{S_TMP}, 2
    s_add_u32 s{sK1}, s{sK1}, s{S_TMP}
    s_add_u32 s{sK1}, s{sK1}, {WS_FLAGS + FL_XB}
    """)

    def res_loads(srd_):
        pre = [f"s_mul_i32 s{sO3}, s{sNL}, {2 * X_BYTES}", f"s_mul_i32 s{S_TMP + 1}, s{sNS}, {X_SEG}",
               f"s_add_u32 s{sO3}, s{sO3}, s{S_TMP + 1}", f"s_add_u32 s{sO3}, s{sO3}, {WS_X}"]
        ops = [[f"buffer_load_dwordx4 {vr(RES + 4 * k, 4)}, v{vRES}, {srd_}, s{sO3} offen offset:{1024 * k}"] for k in range(2)]
        ops[0] = pre + ops[0]
        return ops

    def compute(pre, dma, extra, mid, roll):
        a(f"v_add_u32 v{vXA}, s{sBUF}, v{vL16}")
        for i in range(8):
            a(f"v_lshlrev_b32 v{ACC + 2 * i}, 16, v{RES + i}")
            a(f"v_and_b32 v{ACC + 2 * i + 1}, 0xffff0000, v{RES + i}")
        fl = [f"s_mul_i32 s{sO1}, s{sCL}, {2 * X_BYTES}", f"s_mul_i32 s{sK3}, s{sCS}, {X_SEG}",
              f"s_add_u32 s{sO1}, s{sO1}, s{sK3}", f"s_add_u32 s{sO1}, s{sO1}, {WS_X + X_BYTES}",
              f"s_mul_i32 s{sK4}, s{sCL}, {2 * ST_BYTES}", f"s_mul_i32 s{sK3}, s{sCS}, {ST_SEG}",
              f"s_add_u32 s{sK4}, s{sK4}, s{sK3}", f"s_add_u32 s{sK4}, s{sK4}, {WS_ST + ST_BYTES}"]
        gemm32(a, ACC, 0, vXA, [RING + 4 * i for i in range(8)], pre, dma, extra, mid, roll, init=True, fill=fl)
        for k in range(2):
            for i in range(4):
                a(f"v_cvt_pk_bf16_f32 v{RING + 4 * k + i}, v{ACC + 8 * k + 2 * i}, v{ACC + 8 * k + 2 * i + 1}")
            a(f"buffer_store_dwordx4 {vr(RING + 4 * k, 4)}, v{vRES}, {WS}, s{sO1} offen offset:{1024 * k} sc1")
        a(f"v_add_f32 v{SS}, v{ACC}, v{ACC + 1}")
        a(f"v_mul_f32 v{SS + 1}, v{ACC}, v{ACC}")
        a(f"v_fmac_f32 v{SS + 1}, v{ACC + 1}, v{ACC + 1}")
        for i in range(2, 16):
            a(f"v_add_f32 v{SS}, v{SS}, v{ACC + i}")
            a(f"v_fmac_f32 v{SS + 1}, v{ACC + i}, v{ACC + i}")
        seq(a, f"v_mov_b32 v{SS + 2}, v{SS}", f"v_mov_b32 v{SS + 3}, v{SS + 1}",
            f"v_permlane32_swap_b32 v{SS}, v{SS + 2}", f"v_permlane32_swap_b32 v{SS + 1}, v{SS + 3}",
            f"v_add_f32 v{SS}, v{SS}, v{SS + 2}", f"v_add_f32 v{SS + 1}, v{SS + 1}, v{SS + 3}",
            f"buffer_store_dwordx2 {vr(SS, 2)}, v{vSTO}, {WS}, s{sK4} offen sc1")

    def out_flag():
        a(f"s_mul_i32 s{sPEND}, s{sCO}, {FL_STRIDE}")
        a(f"s_add_u32 s{sPEND}, s{sPEND}, s{sK1}")

    staged_loop(a, "Lawo", abort, done, WS_OA, X_BYTES, FL_OA, res_loads, compute, out_flag, 3, 12, sLAYS)


def role_awo2(a, abort, done):
    lane_setup(a, 64)
    vXA, vSTO, vRES, vFO = 9, 10, 12, 185
    ACC0, ACC1, RING, RES, SS, W1T, OUT = 16, 32, 48, 80, 96, 152, 108
    GA1, GA2, RB = 16, 17, 18
    sT0, sT1 = sK2, sK3

    def w0(t):
        return ar(4 * t, 4)

    def w1(t):
        return ar(144 + 4 * t, 4) if t < 28 else vr(W1T + 4 * (t - 28), 4)
    srd(a, SRD_A, KA_WO, 576 * 1152)
    a(f"""
    s_cmp_ge_u32 s{S_ROLE}, 3
    s_cselect_b32 s{sLAYS}, 1, 0
    s_cselect_b32 s{S_TMP}, 3, 0
    s_sub_u32 s{S_ROLE}, s{S_ROLE}, s{S_TMP}
    s_mul_i32 s{sT0}, s{S_ROLE}, 6
    s_lshl_b32 s{S_TMP}, s{S_WAVE}, 1
    s_add_u32 s{S_TMP + 1}, s{S_WAVE}, 2
    s_cmp_lt_u32 s{S_WAVE}, 2
    s_cselect_b32 s{S_TMP}, s{S_TMP}, s{S_TMP + 1}
    s_cselect_b32 s{S_TMP + 1}, 1, 0
    s_add_u32 s{sT0}, s{sT0}, s{S_TMP}
    s_add_u32 s{sT1}, s{sT0}, s{S_TMP + 1}
    """)
    gate(a, 4, sLAYS, vT0, vT1, abort, "Lao_gate")
    a(f"""
    v_lshrrev_b32 v{vT0}, 6, v{vL16}
    v_and_b32 v{vT1}, 0x30, v{vL16}
    v_mul_u32_u24 v{GA1}, 1152, v{vT0}
    v_add_u32 v{GA1}, v{GA1}, v{vT1}
    v_lshrrev_b32 v{GA2}, 1, v{vT0}
    v_mul_u32_u24 v{GA2}, 18, v{GA2}
    v_and_b32 v{vT0}, 1, v{vT0}
    v_add_u32 v{GA2}, v{GA2}, v{vT0}
    v_add_u32 v{GA2}, 16, v{GA2}
    v_mul_u32_u24 v{GA2}, 1152, v{GA2}
    v_add_u32 v{GA2}, v{GA2}, v{vT1}
    v_lshrrev_b32 v{vT0}, 2, v{vC}
    v_lshrrev_b32 v{vT1}, 1, v{vG}
    v_lshl_add_u32 v{vT0}, v{vT1}, 3, v{vT0}
    v_lshlrev_b32 v{RB}, 6, v{vT0}
    v_and_b32 v{vT0}, 1, v{vC}
    v_lshl_add_u32 v{RB}, v{vT0}, 4, v{RB}
    v_and_b32 v{vT0}, 1, v{vG}
    v_lshl_add_u32 v{RB}, v{vT0}, 5, v{RB}
    v_bfe_u32 v{vT0}, v{vC}, 1, 1
    v_lshl_add_u32 v{RB}, v{vT0}, 3, v{RB}
    s_lshl_b32 s{sO1}, s{S_WAVE}, 15
    v_add_u32 v{RB}, s{sO1}, v{RB}
    s_lshl_b32 s{sK1}, s{sT0}, 6
    s_lshl_b32 s{sK4}, s{sT1}, 6
    """)
    a.auto = False
    NR, N = 32, 72

    def dma(i):
        m, t = i // 36, i % 36
        a(f"s_add_u32 m0, s{sO1}, {(i % NR) * 1024}")
        a(f"s_add_u32 s{S_TMP}, s{(sK1, sK4)[m]}, {(18 * t if t < 32 else 144 * (t - 32)) * 1152}")
        a(f"buffer_load_dwordx4 v{GA1 if t < 32 else GA2}, s[{SRD_A}:{SRD_A + 3}], s{S_TMP} offen lds")
    for i in range(NR):
        dma(i)
    nis = NR
    for i0 in range(0, N, 4):
        a(f"s_waitcnt vmcnt({nis - i0 - 4})")
        for i in range(i0, i0 + 4):
            m, t = i // 36, i % 36
            dst = (w0, w1)[m](t)
            k, b0 = dst[0], int(dst[2:dst.index(":")])
            for sub in range(2):
                a(f"ds_read_b64_tr_b16 {k}[{b0 + 2 * sub}:{b0 + 2 * sub + 1}], v{RB} offset:{(i % NR) * 1024 + sub * 256}")
        a("s_waitcnt lgkmcnt(0)")
        for i in range(nis, min(N, nis + 4)):
            dma(i)
        nis = min(N, nis + 4)
    a("s_barrier")
    a.auto = True
    a.vmq, a.lgq = [], []
    a(f"""
    v_bfe_u32 v{vT0}, v{vL16}, 4, 5
    v_lshlrev_b32 v{vT0}, 4, v{vT0}
    v_lshrrev_b32 v{vT1}, 9, v{vL16}
    v_lshl_add_u32 v{vT1}, v{vT1}, 9, v{vT0}
    """)
    for j, sT in enumerate((sT0, sT1)):
        a(f"""
        s_lshl_b32 s{S_TMP}, s{sT}, 11
        v_add_u32 v{vRES + j}, s{S_TMP}, v{vT1}
        s_lshr_b32 s{S_TMP}, s{sT}, 1
        s_lshl_b32 s{S_TMP}, s{S_TMP}, 9
        s_and_b32 s{S_TMP + 1}, s{sT}, 1
        s_lshl_b32 s{S_TMP + 1}, s{S_TMP + 1}, 3
        s_add_u32 s{S_TMP}, s{S_TMP}, s{S_TMP + 1}
        v_add_u32 v{vSTO + j}, s{S_TMP}, v{vT0}
        """)
    a(f"""
    s_lshr_b32 s{sK1}, s{sT0}, 2
    s_lshl_b32 s{sK1}, s{sK1}, 7
    s_and_b32 s{S_TMP}, s{sT0}, 3
    s_lshl_b32 s{S_TMP}, s{S_TMP}, 2
    s_add_u32 s{sK1}, s{sK1}, s{S_TMP}
    s_lshr_b32 s{sK4}, s{sT1}, 2
    s_lshl_b32 s{sK4}, s{sK4}, 7
    s_and_b32 s{S_TMP}, s{sT1}, 3
    s_lshl_b32 s{S_TMP}, s{S_TMP}, 2
    s_add_u32 s{sK4}, s{sK4}, s{S_TMP}
    s_sub_u32 s{S_TMP}, s{sK4}, s{sK1}
    v_lshrrev_b32 v{vFO}, 4, v{vL16}
    v_mul_lo_u32 v{vFO}, v{vFO}, s{S_TMP}
    s_add_u32 s{sK1}, s{sK1}, {WS_FLAGS + FL_XB}
    """)

    def res_loads(srd_):
        pre = [f"s_mul_i32 s{sO3}, s{sNL}, {2 * X_BYTES}", f"s_mul_i32 s{S_TMP + 1}, s{sNS}, {X_SEG}",
               f"s_add_u32 s{sO3}, s{sO3}, s{S_TMP + 1}", f"s_add_u32 s{sO3}, s{sO3}, {WS_X}"]
        ops = [[f"buffer_load_dwordx4 {vr(RES + 8 * j + 4 * k, 4)}, v{vRES + j}, {srd_}, s{sO3} offen offset:{1024 * k}"] for j in range(2) for k in range(2)]
        ops[0] = pre + ops[0]
        return ops

    def compute(a, hook):
        a(f"v_add_u32 v{vXA}, s{sBUF}, v{vL16}")
        ring = [RING + 4 * i for i in range(8)]
        nr = 8

        def rd(t):
            return f"ds_read_b128 {vr(ring[t % nr], 4)}, v{vXA} offset:{t * 1024}"
        for t in range(nr - 1):
            a(rd(t))
        for j, ACC in enumerate((ACC0, ACC1)):
            for i in range(8):
                a(f"v_lshlrev_b32 v{ACC + 2 * i}, 16, v{RES + 8 * j + i}")
                a(f"v_and_b32 v{ACC + 2 * i + 1}, 0xffff0000, v{RES + 8 * j + i}")
        fill = [f"s_mul_i32 s{sO1}, s{sCL}, {2 * X_BYTES}", f"s_mul_i32 s{sK3}, s{sCS}, {X_SEG}",
                f"s_add_u32 s{sO1}, s{sO1}, s{sK3}", f"s_add_u32 s{sO1}, s{sO1}, {WS_X + X_BYTES}",
                f"s_mul_i32 s{sK4}, s{sCL}, {2 * ST_BYTES}", f"s_mul_i32 s{sK3}, s{sCS}, {ST_SEG}",
                f"s_add_u32 s{sK4}, s{sK4}, s{sK3}", f"s_add_u32 s{sK4}, s{sK4}, {WS_ST + ST_BYTES}"]
        for t in range(36):
            x = vr(ring[t % nr], 4)
            a(MF32(ACC0, w0(t), x))
            if t + nr - 1 < 36:
                a(rd(t + nr - 1))
            a(MF32(ACC1, w1(t), x))
            k = 3
            while fill and k > 0:
                seq(a, fill.pop(0)); k -= 1
            hook(t)
        for j, ACC in enumerate((ACC0, ACC1)):
            for k in range(2):
                o = OUT + 8 * j + 4 * k
                for i in range(4):
                    a(f"v_cvt_pk_bf16_f32 v{o + i}, v{ACC + 8 * k + 2 * i}, v{ACC + 8 * k + 2 * i + 1}")
                a(f"buffer_store_dwordx4 {vr(o, 4)}, v{vRES + j}, {WS}, s{sO1} offen offset:{1024 * k} sc1")
        ONE2 = SS + 8
        a(f"v_mov_b32 v{ONE2}, 0x3f803f80")
        for j in range(2):
            a(f"v_mov_b32 v{SS + 4 * j}, 0")
            a(f"v_mov_b32 v{SS + 4 * j + 1}, 0")
        for i in range(8):
            for j in range(2):
                a(f"v_dot2c_f32_bf16 v{SS + 4 * j}, v{OUT + 8 * j + i}, v{ONE2}")
                a(f"v_dot2c_f32_bf16 v{SS + 4 * j + 1}, v{OUT + 8 * j + i}, v{OUT + 8 * j + i}")
        a("s_nop 2")
        for j in range(2):
            S_ = SS + 4 * j
            a(f"v_mov_b32 v{S_ + 2}, v{S_}")
            a(f"v_mov_b32 v{S_ + 3}, v{S_ + 1}")
        for j in range(2):
            S_ = SS + 4 * j
            a(f"v_permlane32_swap_b32 v{S_}, v{S_ + 2}")
            a(f"v_permlane32_swap_b32 v{S_ + 1}, v{S_ + 3}")
        for j in range(2):
            S_ = SS + 4 * j
            a(f"v_add_f32 v{S_}, v{S_}, v{S_ + 2}")
            a(f"v_add_f32 v{S_ + 1}, v{S_ + 1}, v{S_ + 3}")
            a(f"buffer_store_dwordx2 {vr(S_, 2)}, v{vSTO + j}, {WS}, s{sK4} offen sc1")

    def out_flag():
        a(f"s_mul_i32 s{sPEND}, s{sCO}, {FL_STRIDE}")
        a(f"s_add_u32 s{sPEND}, s{sPEND}, s{sK1}")

    eager_loop(a, "Lawo", abort, done, WS_OA, X_BYTES, FL_OA, ("reg", res_loads), compute, out_flag, 6, 184, sLAYS, pub=(vFO, 3))


def role_aq(a, abort, done, nt=""):
    lane_setup(a, 48)
    vXA, vSTA, vLDS, vOUT = 9, 10, 11, 13
    ACC, CS, RING, STR = 16, 36, 56, 68
    LN, BI = 92, 72
    ST8 = 112
    QB, KC, VA, VB, SP, PP = 128, 132, 136, 140, 144, 68
    WV = 152

    def wreg(tile, t, i=None):
        n = (tile * 18 + t) * 4
        k, b = ("v", WV + n) if n < 104 else ("a", n - 104)
        return f"{k}[{b}:{b + 3}]" if i is None else f"{k}{b + i}"

    a(f"""
    s_lshr_b32 s{sLAYS}, s{S_ROLE}, 4
    s_and_b32 s{S_ROLE}, s{S_ROLE}, 15
    s_lshr_b32 s{sK2}, s{S_ROLE}, 1
    s_lshl_b32 s{sK2}, s{sK2}, 2
    s_and_b32 s{S_TMP}, s{S_ROLE}, 1
    s_add_u32 s{sK2}, s{sK2}, s{S_TMP}
    s_and_b32 s{S_TMP}, s{S_WAVE}, 2
    s_add_u32 s{sK2}, s{sK2}, s{S_TMP}
    s_and_b32 s{sK3}, s{S_WAVE}, 1
    """)
    gate(a, 4, sLAYS, vT0, vT1, abort, "Laq_gate")
    CW, CE = 3 * 96 * 128, 2 * 96 * 32
    CB = CW + CE
    GM, RM, RE, EA, ED = 16, 17, 18, 19, 20
    srd(a, SRD_A, KA_WQKV, 576 * 3456)
    A_ = f"s[{SRD_A}:{SRD_A + 3}]"
    a(f"""
    v_lshrrev_b32 v{vT0}, 7, v{vL16}
    v_mul_u32_u24 v{GM}, 3456, v{vT0}
    v_and_b32 v{vT0}, 0x70, v{vL16}
    v_add_u32 v{GM}, v{GM}, v{vT0}
    s_lshr_b32 s{S_TMP}, s{S_WAVE}, 1
    s_mul_i32 s{sO1}, s{S_TMP}, 72
    v_lshrrev_b32 v{vT0}, 2, v{vC}
    v_lshl_add_u32 v{vT0}, v{vG}, 3, v{vT0}
    v_and_b32 v{vT1}, 3, v{vC}
    v_lshlrev_b32 v{RM}, 7, v{vT0}
    v_lshl_add_u32 v{RM}, v{vT1}, 3, v{RM}
    v_add_u32 v{RM}, s{sO1}, v{RM}
    v_lshlrev_b32 v{RE}, 5, v{vT0}
    v_min_u32 v{vT1}, 1, v{vT1}
    v_lshl_add_u32 v{RE}, v{vT1}, 4, v{RE}
    s_mul_i32 s{S_TMP}, s{S_TMP}, {96 * 32}
    s_add_u32 s{S_TMP}, s{S_TMP}, {CW}
    v_add_u32 v{RE}, s{S_TMP}, v{RE}
    s_sub_u32 s{S_TMP}, s{sK2}, s{S_WAVE}
    """)
    a(f"""
    s_lshr_b32 s{S_TMP}, s{S_WAVE}, 1
    s_lshl_b32 s{S_TMP}, s{S_TMP}, 1
    s_sub_u32 s{S_TMP}, s{sK2}, s{S_TMP}
    s_mul_i32 s{sK1}, s{S_TMP}, 36
    s_mul_i32 s{S_TMP}, s{S_WAVE}, {24 * 3456}
    s_add_u32 s{sK1}, s{sK1}, s{S_TMP}
    s_mul_i32 s{sO2}, s{S_WAVE}, {24 * 128}
    """)
    TID = 21
    a(f"""
    v_lshrrev_b32 v{TID}, 4, v{vL16}
    s_lshl_b32 s{S_TMP}, s{S_WAVE}, 6
    v_add_u32 v{TID}, s{S_TMP}, v{TID}
    v_cmp_le_u32 vcc, 96, v{TID}
    v_cndmask_b32 v{vT0}, 0, 1, vcc
    v_mul_u32_u24 v{vT1}, 96, v{vT0}
    v_sub_u32 v{vT1}, v{TID}, v{vT1}
    v_lshlrev_b32 v{EA}, 7, v{vT1}
    v_mul_u32_u24 v{ED}, 72, v{vT0}
    v_add_u32 v{EA}, v{EA}, v{ED}
    v_add_u32 v{EA}, 32, v{EA}
    v_lshlrev_b32 v{ED}, 5, v{TID}
    v_add_u32 v{ED}, {CW}, v{ED}
    """)
    for i in range(4):
        a(f"v_mov_b32 v{24 + i}, 0")
    a(f"v_mov_b32 v31, 0")
    a(f"s_cmp_eq_u32 s{S_WAVE}, 3")
    a("s_cselect_b64 s[76:77], 0, -1")
    a("s_mov_b64 exec, s[76:77]")
    for b in range(3):
        a(f"v_add_u32 v22, {b * CB}, v{ED}")
        a(f"ds_write_b128 v22, v[24:27] offset:16")
    a("s_mov_b64 exec, -1")
    a.auto = False

    def dma(c):
        b = c % 3
        for m in range(3):
            for q in range(3):
                a(f"s_add_u32 m0, s{sO2}, {b * CB + m * 96 * 128 + q * 1024}")
                a(f"s_add_u32 s{S_TMP}, s{sK1}, {(96 * c + 8 * q) * 3456 + m * 1152}")
                a(f"buffer_load_dwordx4 v{GM}, {A_}, s{S_TMP} offen lds")
    dma(0)
    dma(1)
    dma(2)
    for c in range(6):
        b = c % 3
        a(f"s_waitcnt vmcnt({[18, 9, 9, 9, 9, 0][c]}) lgkmcnt(0)")
        a("s_barrier")
        if 1 <= c <= 3:
            dma(c + 2)
        a("s_mov_b64 exec, s[76:77]")
        va = 22
        a(f"v_add_u32 v{va}, {b * CB}, v{EA}")
        for m in range(3):
            a(f"ds_read_b32 v{28 + m}, v{va} offset:{m * 96 * 128}")
        a("s_waitcnt lgkmcnt(0)")
        a(f"v_add_u32 v{va}, {b * CB}, v{ED}")
        a(f"ds_write_b128 v{va}, v[28:31]")
        a("s_mov_b64 exec, -1")
        a(f"v_add_u32 v{va}, {b * CB}, v{RM}")
        a(f"v_add_u32 v23, {b * CB}, v{RE}")
        for tp in range(3):
            for tile in (0, 1, 3):
                for sub in range(2):
                    dst = wreg(tile, 3 * c + tp)
                    k, b0 = dst[0], int(dst[2:dst.index(":")])
                    a(f"ds_read_b64_tr_b16 {k}[{b0 + 2 * sub}:{b0 + 2 * sub + 1}], v{va} offset:{ {0: 0, 1: 1, 3: 2}[tile] * 96 * 128 + (32 * tp + 4 * sub) * 128}")
        a("s_waitcnt lgkmcnt(0)")
        a("s_barrier")
        for tp in range(3):
            for tile in (2, 4):
                for sub in range(2):
                    dst = wreg(tile, 3 * c + tp)
                    k, b0 = dst[0], int(dst[2:dst.index(":")])
                    a(f"ds_read_b64_tr_b16 {k}[{b0 + 2 * sub}:{b0 + 2 * sub + 1}], v23 offset:{(32 * tp + 4 * sub) * 32 + (8 if tile == 4 else 0)}")
    a("s_waitcnt lgkmcnt(0)")
    a("s_barrier")
    a.auto = True
    a.vmq, a.lgq = [], []
    a.force_wait(vm=0) if TRACE == 6 else None
    trace6(a, vT0, vT1)
    for i in range(4):
        a(f"v_mov_b32 v{RING + i}, 0x3f803f80")
    for t in range(18):
        for tile in range(5):
            w, o = wreg(tile, t), vr(RING, 4)
            a(MF(CS + 4 * tile, o if tile >= 3 else w, w if tile >= 3 else o, "0" if t == 0 else None))
    NEG = hex(f32bits(-1e30))
    a(f"""
    v_lshlrev_b32 v{vSTA}, 5, v{vC}
    s_lshl_b32 s{S_TMP}, s{sK3}, 4
    v_add_u32 v{vSTA}, s{S_TMP}, v{vSTA}
    v_mul_u32_u24 v{vT1}, 1536, v{vG}
    v_add_u32 v{vSTA}, v{vSTA}, v{vT1}
    s_lshl_b32 s{S_TMP}, s{S_WAVE}, 7
    s_add_u32 s{S_TMP}, s{S_TMP}, {2 * XBUF}
    v_lshl_add_u32 v{vLDS}, v{vC}, 3, s{S_TMP}
    v_lshl_add_u32 v{vLDS + 1}, v{vG}, 5, s{S_TMP}
    v_lshlrev_b32 v{vOUT}, 5, v{vC}
    s_lshl_b32 s{S_TMP}, s{sK3}, 4
    v_add_u32 v{vOUT}, s{S_TMP}, v{vOUT}
    s_lshr_b32 s{S_TMP}, s{sK2}, 2
    s_add_u32 s{S_TMP}, s{S_TMP}, 64
    s_lshl_b32 s{S_TMP}, s{S_TMP}, 9
    s_and_b32 s{S_TMP + 1}, s{sK2}, 3
    s_lshl_b32 s{S_TMP + 1}, s{S_TMP + 1}, 2
    s_add_u32 s{S_TMP}, s{S_TMP}, s{S_TMP + 1}
    v_add_u32 v{vOUT + 1}, s{S_TMP}, v{vOUT}
    v_lshrrev_b32 v{vT0}, 1, v{vG}
    v_lshl_add_u32 v{vOUT}, v{vT0}, 9, v{vOUT}
    v_and_b32 v{vT0}, 1, v{vG}
    v_lshl_add_u32 v{vOUT}, v{vT0}, 3, v{vOUT}
    s_lshl_b32 s{S_TMP}, s{sK2}, 10
    v_add_u32 v{vOUT}, s{S_TMP}, v{vOUT}
    s_lshl_b32 s{sK1}, s{S_ROLE}, 7
    s_lshl_b32 s{S_TMP}, s{S_WAVE}, 2
    s_add_u32 s{sK1}, s{sK1}, s{S_TMP}
    s_add_u32 s{sK1}, s{sK1}, {WS_FLAGS + FL_OA}
    s_mov_b32 s{sK4}, {hex(f32bits(18 ** -0.5 * 1.4426950408889634))}
    v_mov_b32 v{vT1}, {NEG}
    """)
    for i in range(4):
        a(f"v_lshl_add_u32 v{vT0}, v{vG}, 2, {i}")
        a(f"v_sub_u32 v{vT0}, v{vT0}, v{vC}")
        a(f"v_cmp_le_i32 vcc, 9, v{vT0}")
        a(f"v_cndmask_b32 v{BI + i}, v{vT1}, v{vZERO}, vcc")
        a(f"v_add_u32 v{vT0}, 7, v{vT0}")
        a(f"v_cmp_ge_u32 vcc, 7, v{vT0}")
        a(f"v_cndmask_b32 v{BI + 4 + i}, v{vT1}, v{vZERO}, vcc")
    for r in (ST8, VA, VB):
        for i in range(4):
            a(f"v_mov_b32 v{r + i}, 0")
    for i in range(4):
        a(f"v_mov_b32 v{ST8 + 4 + i}, 0x3f803f80")
    a(f"v_mov_b32 v{QB + 3}, 0")
    a(f"v_mov_b32 v{KC + 3}, 0")

    def st_loads(srd_):
        pre = [f"s_mul_i32 s{sO3}, s{sNL}, {2 * ST_BYTES}", f"s_mul_i32 s{S_TMP + 1}, s{sNS}, {ST_SEG}",
               f"s_add_u32 s{sO3}, s{sO3}, s{S_TMP + 1}", f"s_add_u32 s{sO3}, s{sO3}, {WS_ST}"]
        ops = [[f"buffer_load_dwordx4 {vr(STR + 12 + 4 * i, 4)}, v{vSTA}, {srd_}, s{sO3} offen offset:{512 * i}"] for i in range(3)]
        ops[0] = pre + ops[0]
        return ops

    def compute(a, hook):
        S0 = STR + 12
        a(f"v_lshlrev_b32 v{vXA}, 9, v{vG}")
        a(f"v_lshl_add_u32 v{vXA}, v{vC}, 5, v{vXA}")
        a(f"s_lshl_b32 s{S_TMP}, s{sK3}, 4")
        a(f"s_add_u32 s{S_TMP}, s{S_TMP}, s{sBUF}")
        a(f"v_add_u32 v{vXA}, s{S_TMP}, v{vXA}")
        S1, S2 = S0, S0 + 1
        sm = [f"v_add_f32 v{S0 + j}, v{S0 + j}, v{S0 + 4 * i + j}" for i in (1, 2) for j in range(4)]
        sm += [f"v_add_f32 v{S1}, v{S1}, v{S0 + 2}", f"v_add_f32 v{S2}, v{S2}, v{S0 + 3}"]
        for sw in (32, 16):
            sm += [f"v_mov_b32 v{S0 + 2}, v{S1}", f"v_mov_b32 v{S0 + 3}, v{S2}",
                   f"v_permlane{sw}_swap_b32 v{S1}, v{S0 + 2}", f"v_permlane{sw}_swap_b32 v{S2}, v{S0 + 3}",
                   f"v_add_f32 v{S1}, v{S1}, v{S0 + 2}", f"v_add_f32 v{S2}, v{S2}, v{S0 + 3}"]
        sm += [f"v_mul_f32 v{S1}, {hex(f32bits(1.0 / 576))}, v{S1}", f"v_mul_f32 v{S2}, {hex(f32bits(1.0 / 576))}, v{S2}",
               f"v_fma_f32 v{S2}, -v{S1}, v{S1}, v{S2}", f"v_max_f32 v{S2}, 0, v{S2}",
               f"v_add_f32 v{S2}, {hex(f32bits(1e-5))}, v{S2}", f"v_rsq_f32 v{LN}, v{S2}",
               f"v_mul_f32 v{LN + 1}, v{S1}, v{LN}",
               f"ds_write_b64 v{vLDS}, {vr(LN, 2)}",
               f"ds_read_b128 {vr(LN + 4, 4)}, v{vLDS + 1}", f"ds_read_b128 {vr(LN + 8, 4)}, v{vLDS + 1} offset:16"]
        def rd(n):
            return f"ds_read_b128 {vr(RING + 4 * (n % 3), 4)}, v{vXA} offset:{(n % 18) * 2048}"
        q0, k0, ex, v0, vx = [ACC + 4 * i for i in range(5)]
        KP = ST8
        MX, T1 = vT0, vT1
        LQ, OX, OY, ON = ACC, ACC + 4, ACC + 8, ST8 + 4

        def fold(tile):
            ops = []
            for i in range(4):
                r = ACC + 4 * tile + i
                rs, mr = (LN + 4 + 2 * i, LN + 5 + 2 * i) if tile >= 3 else (LN, LN + 1)
                ops += [f"v_mul_f32 v{LN + 2}, v{mr}, v{CS + 4 * tile + i}", f"v_fma_f32 v{r}, v{r}, v{rs}, -v{LN + 2}"]
            return ops
        post = fold(0) + fold(2) + fold(1) + [
            f"v_cvt_pk_bf16_f32 v{QB}, v{q0}, v{q0 + 1}", f"v_cvt_pk_bf16_f32 v{QB + 1}, v{q0 + 2}, v{q0 + 3}",
            f"v_cvt_pk_bf16_f32 v{QB + 2}, v{ex}, v{ex + 1}",
            f"v_cvt_pk_bf16_f32 v{KC}, v{k0}, v{k0 + 1}", f"v_cvt_pk_bf16_f32 v{KC + 1}, v{k0 + 2}, v{k0 + 3}",
            f"v_cvt_pk_bf16_f32 v{KC + 2}, v{ex + 2}, v{ex + 3}",
            [f"s_cmp_eq_u32 s{sCS}, 0", f"s_cselect_b32 s{sO1}, {NEG}, 0"],
            None, MF(SP, vr(KP, 4), vr(QB, 4), "0"), None, MF(SP + 4, vr(KC, 4), vr(QB, 4), "0"), None, None]
        post += [f"v_mov_b32 v{KP + i}, v{KC + i}" for i in range(3)] + [None] * 3
        post += [f"v_fma_f32 v{SP + i}, v{SP + i}, s{sK4}, v{BI + i}" for i in range(8)]
        post += [f"v_add_f32 v{SP + i}, s{sO1}, v{SP + i}" for i in range(4)]
        post += [f"v_max3_f32 v{MX}, v{SP}, v{SP + 1}, v{SP + 2}", f"v_max3_f32 v{MX}, v{MX}, v{SP + 3}, v{SP + 4}",
                 f"v_max3_f32 v{MX}, v{MX}, v{SP + 5}, v{SP + 6}", f"v_max_f32 v{MX}, v{MX}, v{SP + 7}",
                 f"v_mov_b32 v{T1}, v{MX}", None, f"v_permlane32_swap_b32 v{MX}, v{T1}", f"v_max_f32 v{MX}, v{MX}, v{T1}",
                 f"v_mov_b32 v{T1}, v{MX}", None, f"v_permlane16_swap_b32 v{MX}, v{T1}", f"v_max_f32 v{MX}, v{MX}, v{T1}"]
        post += [f"v_sub_f32 v{SP + i}, v{SP + i}, v{MX}" for i in range(8)]
        post += [f"v_exp_f32 v{SP + i}, v{SP + i}" for i in range(8)]
        post += [f"v_cvt_pk_bf16_f32 v{PP + i}, v{SP + 2 * i}, v{SP + 2 * i + 1}" for i in range(4)]
        post += [None, MF(LQ, vr(ON, 4), vr(PP, 4), "0"),
                 [f"s_mul_i32 s{sO1}, s{sCO}, {X_SEG}", f"s_add_u32 s{sO1}, s{sO1}, {WS_OA}"]]
        seq(a, rd(0), rd(1))
        for n in range(36):
            t = n % 18
            if n + 2 < 36:
                a(rd(n + 2))
            x = vr(RING + 4 * (n % 3), 4)
            for tile in ((0, 1, 2) if n < 18 else (3, 4)):
                w = wreg(tile, t)
                a(MF(ACC + 4 * tile, x if tile >= 3 else w, w if tile >= 3 else x, "0" if t == 0 else None))
                if n < 18 and sm:
                    a(sm.pop(0))
                if n >= 19:
                    for _ in range(3 if n >= 30 else 2):
                        if post:
                            seq(a, post.pop(0))
            if n == 17:
                assert not sm
            hook(n)
        seq(a, post, f"v_rcp_f32 v{T1}, v{LQ}", fold(3),
            f"v_cvt_pk_bf16_f32 v{VA + 2}, v{v0}, v{v0 + 1}", f"v_cvt_pk_bf16_f32 v{VA + 3}, v{v0 + 2}, v{v0 + 3}",
            fold(4)[:2], MF(OX, vr(VA, 4), vr(PP, 4), "0"), fold(4)[2:],
            f"v_cvt_pk_bf16_f32 v{VB + 2}, v{vx}, v{vx + 1}", f"v_cvt_pk_bf16_f32 v{VB + 3}, v{vx + 2}, v{vx + 3}",
            f"v_mov_b32 v{VA}, v{VA + 2}", f"v_mov_b32 v{VA + 1}, v{VA + 3}",
            MF(OY, vr(VB, 4), vr(PP, 4), "0"),
            [f"v_mul_f32 v{OX + i}, v{T1}, v{OX + i}" for i in range(4)],
            f"v_cvt_pk_bf16_f32 v{OX}, v{OX}, v{OX + 1}", f"v_cvt_pk_bf16_f32 v{OX + 1}, v{OX + 2}, v{OX + 3}",
            f"buffer_store_dwordx2 {vr(OX, 2)}, v{vOUT}, {WS}, s{sO1} offen sc1",
            f"v_mov_b32 v{VB}, v{VB + 2}", f"v_mov_b32 v{VB + 1}, v{VB + 3}",
            f"v_mul_f32 v{OY}, v{T1}, v{OY}", f"v_mul_f32 v{OY + 1}, v{T1}, v{OY + 1}",
            f"v_cvt_pk_bf16_f32 v{OY}, v{OY}, v{OY + 1}",
            "s_mov_b64 exec, 0xffff",
            f"buffer_store_dword v{OY}, v{vOUT + 1}, {WS}, s{sO1} offen sc1",
            "s_mov_b64 exec, -1")

    def out_flag():
        a(f"s_mul_i32 s{sPEND}, s{sCO}, {FL_STRIDE}")
        a(f"s_add_u32 s{sPEND}, s{sPEND}, s{sK1}")

    eager_loop(a, "Laq", abort, done, WS_X, 2 * X_BYTES, FL_XA, ("reg", st_loads), compute, out_flag, 2, 110, sLAYS,
               hpos=(int(os.environ.get("HAQ", "14")), [int(x) for x in os.environ.get("LAQ", "14,30").split(",")], 3,
                     [int(x) for x in os.environ.get("WAQ", "1,19").split(",")]), late_extra=True)
```

```python
from common import *
import os, struct

ROWS = 288
L_F = 0
L_OB = 16 * ROWS
L_MEMA = L_OB + 8 * ROWS
L_KX = L_MEMA + 8192
L_LW = L_KX + 8192
LW_WAVE = 17 * 2048
L_SEL = L_LW + 4 * LW_WAVE
assert L_LW % 256 == 0 and L_SEL + 1024 <= 163840

PH = 9216

vL16, vIDX, vQW, vQR, vOR, vOW, vRLD, vRST, vLW, vT0, vT1, vT2 = range(12)
ACCQ, ACCK, ACCV = 12, 20, 28
Q = [36 + 4 * i for i in range(9)]
FA, FB, FC, R0, R1 = Q[0], Q[1], Q[2], Q[3], Q[4]
WR0, WR1 = Q[5], Q[7]
WBASE = 72

sH = S_ROLE
sLAY = 32
sSTEP = 33
sMA = 34
sMC = 35
sMEMW = 36
sMEMZ = 37
sPW = 38
sPWC = 39
sPH = 40
sKF = 41
sVF = 42
sKM = 43
sCEXP = 44
sMASK = 46
sU = 48
sMAXD = 50
sFAST = 51
sONES = 52
sM = 54
sPR = 62
sFL = 66
sFLP = 67
sTCH = 68
sFOK = 69
sL0 = 70
S_STAMP = 80

MATS = "qkv"
env = os.environ.get
DBC = [int(x) for x in env("DBC", "0,0,0,0").split(",")]
DP1 = [int(x) for x in env("DP1", "0,60,50").split(",")]
DP2 = int(env("DP2", "10"))
DQ1 = [int(x) for x in env("DQ1", "20,30,30,10").split(",")]
DQ2 = [int(x) for x in env("DQ2", "10,20,20,25").split(",")]
DQ3 = [int(x) for x in env("DQ3", "25,25,25,25").split(",")]
DQB = int(env("DQB", "0"))
HKSL = int(env("HKSL", "5"))
VORD = int(env("VORD", "1"))
KD0 = int(env("KD0", "0"))
FLW = int(env("FLW", "1"))
CKW = int(env("CKW", "2"))
TKW = int(env("TKW", "0"))
TCW = int(env("TCW", "3"))
PB0 = int(env("PB0", "0"))
PC0 = int(env("PC0", "4"))
STG = int(env("STG", "1"))
FAD = int(env("FAD", "0"))
VEARLY = int(env("VEARLY", "2"))
TPOS = int(env("TPOS", "1"))
PAPOS = int(env("PAPOS", "-1"))
R2E = int(env("R2E", "1"))
BEARLY = int(env("BEARLY", "0"))
NBF = int(env("NBF", "0"))
PD3 = int(env("PD3", "1"))
TOUCH = int(env("TOUCH", "1"))


def f32bits(x):
    return struct.unpack("<I", struct.pack("<f", x))[0]


LDS_TILES = [("v", 0), ("v", 2), ("q", 4), ("q", 6)]
LDS_SLOT = {}
for i, (m, t) in enumerate(LDS_TILES):
    LDS_SLOT[(m, 0, t)] = 2 * i
    LDS_SLOT[(m, 1, t)] = 2 * i + 1
for i, (p, ks) in enumerate([(2, 0), (2, 1), (3, 0), (3, 1)]):
    LDS_SLOT[("o", 2 * p, ks)] = 8 + 2 * i
    LDS_SLOT[("o", 2 * p + 1, ks)] = 9 + 2 * i
LDS_SLOT[("o", 8, 1)] = 16


def build_fm():
    fm = {}
    regs = [("v", WBASE + 8 * i) for i in range(23)] + [("a", 8 * i) for i in range(32)]
    keys = [(m, b, t) for m in "qkv" for t in range(9) for b in range(2) if (m, t) not in LDS_TILES]
    keys += [("o", tau, ks) for tau in range(4) for ks in range(2)] + [("o", 8, 0)]
    assert len(keys) == 55
    for k, r in zip(keys, regs):
        fm[k] = r
    for k, s in LDS_SLOT.items():
        fm[k] = ("l", s)
    return fm


FM = build_fm()


def opnd(loc, n=8, off=0):
    k, b = loc
    return (vr if k == "v" else ar)(b + off, n)


def SM(acc, A, B):
    return f"v_smfmac_f32_16x16x64_bf16 {vr(acc, 4)}, {vr(A, 4)}, {B}, v{vIDX}"


def lw_read(dst, slot):
    return [f"ds_read_b128 {vr(dst, 4)}, v{vLW} offset:{slot * 2048}",
            f"ds_read_b128 {vr(dst + 4, 4)}, v{vLW} offset:{slot * 2048 + 1024}"]


def nops(a, n):
    while n > 0:
        k = min(n, 16)
        a(f"s_nop {k - 1}")
        n -= k


def r_setup(a):
    WS = f"s[{SRD_WS}:{SRD_WS + 3}]"
    LANE, C, G, T3, T4, T5, TAU = 60, 61, 62, 63, 64, 65, 66
    cexp = hex(f32bits(128 ** -0.5 * 1.4426950408889634))
    W = S_WAVE
    a(f"""
    v_and_b32 v{LANE}, 63, v0
    v_and_b32 v{C}, 15, v{LANE}
    v_lshrrev_b32 v{G}, 4, v{LANE}
    v_lshlrev_b32 v{vL16}, 4, v{LANE}
    s_mul_i32 s{S_TMP}, s{W}, {LW_WAVE}
    s_add_u32 s{S_TMP}, s{S_TMP}, {L_LW}
    v_add_u32 v{vLW}, s{S_TMP}, v{vL16}
    s_mov_b32 s{sMAXD}, 0xfffffffe
    s_mov_b32 s{sCEXP}, {cexp}
    s_mov_b32 s{sCEXP + 1}, {cexp}
    s_mov_b32 s{sONES}, 0x3f803f80
    s_mov_b32 s{sONES + 1}, 0x3f803f80
    s_mov_b32 s{sPH}, 1
    s_mov_b32 s{sMASK}, 0x00ff00ff
    s_cmp_eq_u32 s{W}, 2
    s_cselect_b32 s{sMASK}, 0x00030003, s{sMASK}
    s_mov_b32 s{sMASK + 1}, s{sMASK}
    v_bfe_u32 v{T3}, v{C}, 1, 1
    v_mov_b32 v{vIDX}, 0x4444
    v_mov_b32 v{T4}, 0xeeee
    v_cmp_eq_u32 vcc, 0, v{T3}
    v_cndmask_b32 v{vIDX}, v{T4}, v{vIDX}, vcc
    """)
    a(f"""
    v_mul_u32_u24 v{T4}, {4 * ROWS}, v{G}
    v_lshl_add_u32 v{vQW}, v{C}, 2, v{T4}
    s_lshl_b32 s{S_TMP}, s{W}, 6
    s_add_u32 s{S_TMP + 1}, s{S_TMP}, {L_F}
    v_add_u32 v{vQW}, s{S_TMP + 1}, v{vQW}
    v_mul_u32_u24 v{T4}, {ROWS}, v{C}
    v_lshl_add_u32 v{vQR}, v{G}, 4, v{T4}
    v_add_u32 v{vQR}, {L_F}, v{vQR}
    v_lshrrev_b32 v{T4}, 2, v{C}
    v_and_b32 v{T5}, 1, v{C}
    v_lshl_add_u32 v{T4}, v{T4}, 1, v{T5}
    v_mul_u32_u24 v{T5}, {ROWS}, v{T4}
    v_lshl_add_u32 v{vOR}, v{G}, 5, v{T5}
    v_lshl_add_u32 v{vOR}, v{T3}, 4, v{vOR}
    v_add_u32 v{vOR}, {L_OB}, v{vOR}
    v_xor_b32 v{T3}, 1, v{T3}
    v_mul_u32_u24 v{T3}, {8 * ROWS}, v{T3}
    v_add_u32 v{vOW}, v{T5}, v{T3}
    v_lshl_add_u32 v{vOW}, v{G}, 4, v{vOW}
    s_add_u32 s{S_TMP + 1}, s{S_TMP}, {L_OB}
    v_add_u32 v{vOW}, s{S_TMP + 1}, v{vOW}
    """)
    WP, GO, CH, UI = sL0, sL0 + 1, sL0 + 2, sL0 + 3
    a(f"""
    s_lshr_b32 s{WP}, s{sH}, 3
    s_bfe_u32 s{GO}, s{sH}, 0x20001
    s_and_b32 s{CH}, s{sH}, 1
    v_bfe_u32 v{T4}, v{C}, 2, 1
    v_lshl_add_u32 v{T3}, v{T4}, 2, v{G}
    v_mul_u32_u24 v{T3}, {PH}, v{T3}
    v_lshrrev_b32 v{T5}, 3, v{C}
    v_lshlrev_b32 v{T5}, 2, v{T5}
    v_and_b32 v{T4}, 3, v{C}
    v_add_u32 v{T5}, v{T5}, v{T4}
    s_lshl_b32 s{UI}, s{GO}, 4
    s_lshl_b32 s{S_TMP}, s{CH}, 3
    s_add_u32 s{UI}, s{UI}, s{S_TMP}
    v_add_u32 v{T5}, s{UI}, v{T5}
    s_lshl_b32 s{S_TMP}, s{WP}, 6
    v_add_u32 v{T5}, s{S_TMP}, v{T5}
    s_cmp_eq_u32 s{W}, 2
    s_cselect_b32 s{S_TMP}, 2, 4
    v_lshlrev_b32 v{T5}, s{S_TMP}, v{T5}
    v_add_u32 v{vRLD}, v{T3}, v{T5}
    s_lshl_b32 s{S_TMP}, s{W}, 12
    v_add_u32 v{vRLD}, s{S_TMP}, v{vRLD}
    v_lshrrev_b32 v{TAU}, 1, v{C}
    s_lshl_b32 s{S_TMP}, s{W}, 2
    v_add_u32 v{TAU}, s{S_TMP}, v{TAU}
    v_and_b32 v{T4}, 1, v{C}
    s_lshl_b32 s{S_TMP}, s{WP}, 4
    s_lshl_b32 s{S_TMP + 1}, s{GO}, 2
    s_add_u32 s{S_TMP}, s{S_TMP}, s{S_TMP + 1}
    s_lshl_b32 s{S_TMP + 1}, s{CH}, 1
    s_add_u32 s{S_TMP}, s{S_TMP}, s{S_TMP + 1}
    v_add_u32 v{T5}, s{S_TMP}, v{T4}
    v_lshl_add_u32 v{T5}, v{TAU}, 6, v{T5}
    v_lshlrev_b32 v{T5}, 4, v{T5}
    v_lshl_add_u32 v{vRST}, v{G}, 2, v{T5}
    """)
    M0 = 67
    a(f"""
    s_lshl_b32 s{S_TMP}, s{GO}, 1
    v_add_u32 v{T4}, s{S_TMP}, v{T4}
    v_mul_u32_u24 v{T4}, 576, v{T4}
    v_lshl_add_u32 v{T4}, v{TAU}, 4, v{T4}
    v_lshl_add_u32 v{T4}, v{G}, 1, v{T4}
    s_mul_i32 s{S_TMP}, s{WP}, 144
    s_lshl_b32 s{S_TMP + 1}, s{CH}, 3
    s_add_u32 s{S_TMP}, s{S_TMP}, s{S_TMP + 1}
    v_add_u32 v{T4}, s{S_TMP}, v{T4}
    v_lshlrev_b32 v{M0}, 1, v{T4}
    """)
    a(f"""
    s_mul_i32 s{sU}, s{sLAY}, {RING_TEAM}
    s_add_u32 s{sU}, s{sU}, {WS_RING}
    s_mul_i32 s{S_TMP}, s{sH}, {PH}
    s_add_u32 s{S_TMP}, s{S_TMP}, s{sU}
    s_lshl_b32 s{S_TMP + 1}, s{W}, 10
    s_add_u32 s{sPW}, s{S_TMP}, s{S_TMP + 1}
    s_lshl_b32 s{S_TMP + 2}, s{W}, 8
    s_add_u32 s{sPWC}, s{S_TMP}, s{S_TMP + 2}
    s_add_u32 s{sPWC}, s{sPWC}, 8192
    s_add_u32 s{sMEMZ}, s{sU}, {MEMB_OFF}
    s_xor_b32 s{sMEMW}, s{sMEMZ}, {MEMB_SLOT}
    s_add_u32 s{sMA}, s{sMEMZ}, s{S_TMP + 1}
    s_add_u32 s{sMC}, s{sMEMZ}, 8192
    s_mul_i32 s{S_TMP}, s{sLAY}, {3 * QKV_M}
    s_lshl_b32 s{S_TMP + 2}, s{sH}, 13
    s_add_u32 s{S_TMP}, s{S_TMP}, s{S_TMP + 2}
    s_add_u32 s{sTCH}, s{S_TMP}, {WS_QKV + 2 * QKV_M}
    s_lshl_b32 s{S_TMP + 1}, s{W}, 11
    s_add_u32 s{S_TMP}, s{S_TMP}, s{S_TMP + 1}
    s_add_u32 s{sKF}, s{S_TMP}, {WS_QKV + QKV_M}
    s_add_u32 s{sVF}, s{S_TMP}, {WS_QKV + 2 * QKV_M}
    s_mul_i32 s{S_TMP}, s{sLAY}, {NSEG * 32 * KM_UNIT}
    s_lshl_b32 s{S_TMP + 2}, s{sH}, 12
    s_add_u32 s{S_TMP}, s{S_TMP}, s{S_TMP + 2}
    s_add_u32 s{sKM}, s{S_TMP}, {WS_KM}
    s_mul_i32 s{S_TMP}, s{sLAY}, {NSEG * FL_STRIDE}
    s_lshl_b32 s{S_TMP + 2}, s{sH}, 9
    s_add_u32 s{S_TMP}, s{S_TMP}, s{S_TMP + 2}
    s_add_u32 s{sFL}, s{S_TMP}, {WS_FLAGS + FL_QKV}
    s_mov_b32 s{sSTEP}, 0
    """)
    for i in range(4):
        a(f"s_add_u32 s{sPR + i}, s{sU}, {i * 8 * PH}")
    srd(a, SRD_A, KA_MEM0, 9216)
    A_ = f"s[{SRD_A}:{SRD_A + 3}]"
    a(f"""
    s_cmp_gt_u32 s{W}, 2
    s_cbranch_scc1 Lr_mem0_done
    s_mov_b64 exec, s[{sMASK}:{sMASK + 1}]
    buffer_load_dword v{T4}, v{M0}, {A_}, 0 offen
    v_min_u32 v{T4}, s{sMAXD}, v{T4}
    buffer_store_dword v{T4}, v{vRST}, {WS}, s{sMEMZ} offen sc1
    v_mov_b32 v{T4}, -1
    buffer_store_dword v{T4}, v{vRST}, {WS}, s{sMEMW} offen sc1
    s_mov_b64 exec, -1
    Lr_mem0_done:
    v_mov_b32 v64, 0
    v_mov_b32 v65, 0
    v_mov_b32 v66, 0
    v_mov_b32 v67, 0
    v_lshrrev_b32 v{T3}, 2, v{vL16}
    buffer_store_dwordx4 v[64:67], v{vL16}, {WS}, s{sPW} offen sc1
    s_add_u32 s{S_TMP}, s{sPW}, 4096
    buffer_store_dwordx4 v[64:67], v{vL16}, {WS}, s{S_TMP} offen sc1
    buffer_store_dword v64, v{T3}, {WS}, s{sPWC} offen sc1
    """)
    a.force_wait(vm=0)
    a("s_barrier")
    a(f"s_cmp_lg_u32 s{W}, 0")
    a("s_cbranch_scc1 Lr_noadd")
    a(f"s_lshl_b32 s{S_TMP}, s{sLAY}, 2")
    a(f"s_add_u32 s{S_TMP}, s{S_TMP}, {DB_TEAM}")
    dbg_add(a, f"s{S_TMP}", 63, 64)
    a.label("Lr_noadd")
    if W is not None:
        a(f"""
        s_cmp_lt_u32 s{S_WAVE}, 3
        s_cbranch_scc1 Lr_not_w3
        v_lshlrev_b32 v{vRLD}, 3, v{vL16}
        v_lshrrev_b32 v{T3}, 2, v{vL16}
        v_and_b32 v{vRST}, 12, v{T3}
        v_and_b32 v{T3}, 16, v{T3}
        v_lshl_add_u32 v{vRST}, v{T3}, 3, v{vRST}
        Lr_not_w3:
        """)
    gate(a, 1, sLAY, 63, 64, "Lr_abort", "Lr_gate")
    loader(a)
    a(f"v_bfe_u32 v{vT0}, v{vL16}, 4, 4")
    a(f"v_mov_b32 v{vT1}, 0x3f80")
    a(f"v_mov_b32 v16, 0x3f800000")
    for d in range(4):
        a(f"v_cmp_eq_u32 vcc, {2 * d}, v{vT0}")
        a(f"v_cmp_eq_u32 s[{sU}:{sU + 1}], {2 * d + 1}, v{vT0}")
        a(f"v_cndmask_b32 v{12 + d}, 0, v{vT1}, vcc")
        a(f"v_cndmask_b32 v{12 + d}, v{12 + d}, v16, s[{sU}:{sU + 1}]")
    a(f"v_add_u32 v{vT0}, {L_SEL}, v{vL16}")
    a(f"ds_write_b128 v{vT0}, v[12:15]")
    a.wait(lg=0)


def loader(a):
    W = S_WAVE
    g0 = 12
    GW, GZ = 16, 17
    RA = 18
    RW, RZ = 22, 23
    TMP = 24
    T3, T4, T5, LANE, I16, GB = 63, 64, 65, 60, 61, 62
    sT, sWO, sLW = sL0, sL0 + 1, sL0 + 2
    SRD_D = 76
    srd(a, SRD_A, KA_WQ, 576 * 8192)
    srd(a, SRD_B, KA_WK, 576 * 8192)
    srd(a, SRD_C, KA_WV, 576 * 8192)
    srd(a, SRD_D, KA_BWO, 4096 * 1152)
    a(f"""
    v_lshrrev_b32 v{LANE}, 4, v{vL16}
    v_and_b32 v{I16}, 15, v{LANE}
    v_lshrrev_b32 v{GB}, 4, v{LANE}
    s_mul_i32 s{sLW}, s{W}, {LW_WAVE}
    s_add_u32 s{sLW}, s{sLW}, {L_LW}
    s_mul_i32 s{sT}, s{W}, {144 * 8192}
    s_lshl_b32 s{S_TMP}, s{sH}, 8
    s_add_u32 s{sT}, s{sT}, s{S_TMP}
    s_mul_i32 s{sWO}, s{sH}, 147456
    s_mul_i32 s{S_TMP}, s{W}, 288
    s_add_u32 s{sWO}, s{sWO}, s{S_TMP}
    """)
    a(f"""
    v_and_b32 v{T3}, 1, v{GB}
    v_lshrrev_b32 v{T4}, 1, v{I16}
    v_xor_b32 v{T4}, v{T4}, v{T3}
    v_lshlrev_b32 v{T4}, 5, v{T4}
    v_and_b32 v{T5}, 1, v{I16}
    v_lshl_add_u32 v{T4}, v{T5}, 4, v{T4}
    v_lshl_add_u32 v{g0}, v{GB}, 13, v{T4}
    """)
    for q in range(1, 4):
        a(f"v_xor_b32 v{g0 + q}, {(2 * (q >> 1) + 4 * (q & 1)) << 5}, v{g0}")
    a(f"""
    v_lshrrev_b32 v{T3}, 2, v{LANE}
    v_mul_u32_u24 v{T3}, 1152, v{T3}
    v_and_b32 v{T4}, 3, v{LANE}
    v_lshl_add_u32 v{GW}, v{T4}, 4, v{T3}
    v_lshrrev_b32 v{T3}, 1, v{LANE}
    v_mul_u32_u24 v{T3}, 1152, v{T3}
    v_and_b32 v{T4}, 1, v{LANE}
    v_lshl_add_u32 v{GZ}, v{T4}, 4, v{T3}
    """)
    R_, C4, GL = 40, 41, 42
    a(f"""
    v_lshrrev_b32 v{R_}, 2, v{I16}
    v_and_b32 v{C4}, 3, v{I16}
    v_and_b32 v{T3}, 1, v{GB}
    v_lshl_add_u32 v{GL}, v{T3}, 2, v{R_}
    v_and_b32 v{T4}, 1, v{R_}
    v_lshl_add_u32 v{T4}, v{T3}, 2, v{T4}
    v_lshrrev_b32 v{T5}, 1, v{R_}
    v_lshl_add_u32 v{T4}, v{T5}, 3, v{T4}
    v_lshlrev_b32 v{T4}, 8, v{T4}
    v_lshl_add_u32 v{T4}, v{C4}, 3, v{T4}
    v_lshrrev_b32 v{T5}, 1, v{GB}
    v_mul_u32_u24 v{T5}, {LW_WAVE}, v{T5}
    v_add_u32 v{T4}, v{T4}, v{T5}
    v_add_u32 v{T4}, {L_LW}, v{T4}
    s_lshl_b32 s{S_TMP}, s{W}, 1
    """)
    for b in range(2):
        a(f"s_add_u32 s{S_TMP + 1}, s{S_TMP}, {b}")
        a(f"v_xor_b32 v{T5}, s{S_TMP + 1}, v{GL}")
        a(f"v_lshl_add_u32 v{RA + 2 * b}, v{T5}, 5, v{T4}")
        a(f"v_add_u32 v{RA + 2 * b + 1}, {2 * LW_WAVE}, v{RA + 2 * b}")
    a(f"""
    v_lshrrev_b32 v{T3}, 1, v{GB}
    v_lshlrev_b32 v{T3}, 3, v{T3}
    v_and_b32 v{T4}, 1, v{GB}
    v_lshl_add_u32 v{T3}, v{T4}, 1, v{T3}
    v_and_b32 v{T4}, 1, v{R_}
    v_lshl_add_u32 v{T3}, v{T4}, 4, v{T3}
    v_lshrrev_b32 v{T4}, 1, v{R_}
    v_lshl_add_u32 v{T3}, v{T4}, 2, v{T3}
    v_lshlrev_b32 v{T4}, 3, v{C4}
    v_lshl_add_u32 v{RW}, v{T3}, 6, v{T4}
    v_add_u32 v{RW}, s{sLW}, v{RW}
    v_lshl_add_u32 v{RZ}, v{T3}, 5, v{T4}
    v_add_u32 v{RZ}, s{sLW}, v{RZ}
    """)
    jobs = [("x", m, t) for t in range(9) for m in "qkv" if (m, t) not in LDS_TILES]
    pos = [i % 8 for i in range(23)]
    jobs += [("x", m, t) for m, t in LDS_TILES]
    pos += [0, 1, 2, 3]
    jobs += [("w", p, ks) for p in range(2) for ks in range(2)]
    pos += [4, 5, 6, 7]
    jobs += [("z", 0)]
    pos += [8]
    jobs += [("w", p, ks) for p in (2, 3) for ks in range(2)]
    pos += [4, 5, 6, 7]
    jobs += [("z", 1)]
    pos += [8]
    n = len(jobs)
    ndma = [2 if j[0] == "z" else 4 for j in jobs]
    issued = []

    def dma(i):
        j = jobs[i]
        a(f"s_add_u32 m0, s{sLW}, {pos[i] * 4096}")
        if j[0] == "x":
            sb = (SRD_A, SRD_B, SRD_C)[MATS.index(j[1])]
            for q in range(4):
                a(f"s_add_u32 s{S_TMP}, s{sT}, {(16 * j[2] + 4 * q) * 8192}")
                a(f"buffer_load_dwordx4 v{g0 + q}, s[{sb}:{sb + 3}], s{S_TMP} offen lds")
                if q < 3:
                    a(f"s_add_u32 m0, m0, 1024")
        elif j[0] == "w":
            for q in range(4):
                a(f"s_add_u32 s{S_TMP}, s{sWO}, {(64 * j[2] + 16 * q) * 1152 + j[1] * 64}")
                a(f"buffer_load_dwordx4 v{GW}, s[{SRD_D}:{SRD_D + 3}], s{S_TMP} offen lds")
                if q < 3:
                    a(f"s_add_u32 m0, m0, 1024")
        else:
            for q in range(2):
                a(f"s_add_u32 s{S_TMP}, s{sWO}, {(64 * j[1] + 32 * q) * 1152 + 256}")
                a(f"buffer_load_dwordx4 v{GZ}, s[{SRD_D}:{SRD_D + 3}], s{S_TMP} offen lds")
                if q < 1:
                    a(f"s_add_u32 m0, m0, 1024")
        issued.append(i)

    def outstanding_after(i):
        k = issued.index(i)
        return sum(ndma[x] for x in issued[k + 1:])

    done = -1

    def issue_more(cur):
        for nx in range(n):
            if nx in issued:
                continue
            prev = [x for x in range(nx) if pos[x] == pos[nx]]
            inplace_prev = False
            if prev and max(prev) > done:
                if jobs[nx] == ("z", 0):
                    pass
                break
            if sum(ndma[x] for x in issued if x > done) + ndma[nx] > 56:
                break
            dma(nx)

    a.auto = False
    z0 = jobs.index(("z", 0))
    for i in range(8):
        dma(i)
    dma(z0)
    for i in range(n):
        j = jobs[i]
        shared = j[0] == "x"
        assert i in issued, (i, issued)
        a(f"s_waitcnt vmcnt({min(63, outstanding_after(i))})")
        if shared:
            a("s_barrier")
            done = i - 1
            issue_more(i)
        if j[0] == "x":
            keys = [(j[1], b, j[2]) for b in range(2)]
            adr = lambda b, X: (RA + 2 * b + (X >> 1), pos[i] * 4096 + (X & 1) * 512)
        elif j[0] == "w":
            keys = [("o", 2 * j[1] + b, j[2]) for b in range(2)]
            adr = lambda b, X: (RW, pos[i] * 4096 + (32 * (X >> 1) + (X & 1)) * 64 + b * 32)
        else:
            keys = [("o", 8, j[1])]
            adr = lambda b, X: (RZ, pos[i] * 4096 + (32 * (X >> 1) + (X & 1)) * 32)
        for b, k in enumerate(keys):
            loc = FM[k]
            for X in range(4):
                ad, off = adr(b, X)
                dst = vr(TMP + 8 * b + 2 * X, 2) if loc[0] == "l" else opnd(loc, 2, 2 * X)
                a(f"ds_read_b64_tr_b16 {dst}, v{ad} offset:{off}")
        a("s_waitcnt lgkmcnt(0)")
        if i == GJOB and GATE:
            a(f"s_add_u32 s{S_TMP}, s{sLAY}, s{W}")
            a(f"s_cmp_lg_u32 s{S_TMP}, 0")
            a("s_cbranch_scc1 Lr_nold")
            dbg_add(a, DB_LOADED, T3, T4)
            a.label("Lr_nold")
        if FM[keys[0]][0] == "l":
            if shared:
                a("s_barrier")
            for b, k in enumerate(keys):
                s = FM[k][1]
                a(f"ds_write_b128 v{vLW}, {vr(TMP + 8 * b, 4)} offset:{s * 2048}")
                a(f"ds_write_b128 v{vLW}, {vr(TMP + 8 * b + 4, 4)} offset:{s * 2048 + 1024}")
            a("s_waitcnt lgkmcnt(0)")
        if not shared:
            done = i
            issue_more(i)
        elif i + 1 < n and jobs[i + 1][0] != "x":
            a("s_barrier")
            done = i
            issue_more(i)
    a.auto = True
    a.vmq, a.lgq = [], []


def flag_wait_kv(a, pfx, soff_extra, abort):
    L = a.newlabel(pfx + "fw")
    a(f"s_mov_b32 s{S_SPIN}, 0")
    a(f"s_add_u32 s{S_TMP}, s{sFL}, {soff_extra + 128}")
    a(f"v_lshrrev_b32 v{vT1}, 2, v{vL16}")
    a(f"v_and_b32 v{vT0}, 16, v{vT1}")
    a(f"v_lshlrev_b32 v{vT0}, 3, v{vT0}")
    a(f"v_and_or_b32 v{vT1}, v{vT1}, 12, v{vT0}")
    a.label(L)
    a(f"buffer_load_dword v{vT0}, v{vT1}, s[{SRD_WS}:{SRD_WS + 3}], s{S_TMP} offen sc1")
    spin_check(a, abort)
    a(f"v_cmp_eq_u32 vcc, 0, v{vT0}")
    a(f"s_cbranch_vccnz {L}")


def r_loop(a, w, fast, abort, done, stamps=0):
    sc = "" if fast else " sc1"
    pfx = f"Lr{w}{'f' if fast else 's'}_"
    WS = f"s[{SRD_WS}:{SRD_WS + 3}]"
    HK = (w == 3)
    NST = 10
    tails = []

    def seq(*items):
        for it in items:
            if isinstance(it, (list, tuple)):
                seq(*it)
            elif callable(it):
                it()
            elif it:
                a(it)

    XS = {"A": 0, 7: 1, 8: 2, "bc": 3, "l1": 4, 9: 5, "red": 6, "mst": 7, "q1": 8, "q2": 9, NST: NST}

    PS = {0: 0, "ba0": 1, "ba": 2, 1: 3, "a2": 4, "pb": 5, "a3": 6, "bb": 7, 3: 8, 4: 9, NST: NST}

    def stamp(i):
        if not stamps:
            return
        if stamps == 5:
            if i in PS:
                i = PS[i]
                a(f"s_memtime s[{S_STAMP + 2 * i}:{S_STAMP + 1 + 2 * i}]" if i < NST else "s_memrealtime s[70:71]")
            return
        if stamps in (3, 4):
            if i == 0:
                i = "A"
            if i not in XS:
                return
            i = XS[i]
            ins = "s_memtime" if stamps == 3 else "s_memrealtime"
            a(f"{ins} s[{S_STAMP + 2 * i}:{S_STAMP + 1 + 2 * i}]" if i < NST else "s_memrealtime s[70:71]")
            return
        if isinstance(i, str):
            return
        if stamps == 2 or i == NST:
            a(f"s_memrealtime s[{S_STAMP + 2 * i}:{S_STAMP + 1 + 2 * i}]" if i < NST else "s_memrealtime s[70:71]")
        else:
            a(f"s_memtime s[{S_STAMP + 2 * i}:{S_STAMP + 1 + 2 * i}]")

    def dump_stamps():
        if stamps:
            a(f"s_and_b32 s{S_TMP}, s{sSTEP}, 7")
            a(f"s_cbranch_scc1 {pfx}nodump")
            a.force_wait(lg=0)
            for i in range(NST):
                a(f"v_writelane_b32 v{vT1}, s{S_STAMP + 2 * i}, {i}")
            a(f"v_writelane_b32 v{vT1}, s70, {NST}")
            a(f"v_writelane_b32 v{vT1}, s72, 11")
            a(f"v_writelane_b32 v{vT1}, s73, 12")
            a(f"s_lshl_b32 s{S_TMP}, s{sLAY}, 5")
            a(f"s_add_u32 s{S_TMP}, s{S_TMP}, s{sH}")
            a(f"s_lshl_b32 s{S_TMP}, s{S_TMP}, 6")
            a(f"s_add_u32 s{S_TMP}, s{S_TMP}, s{sSTEP}")
            a(f"s_lshl_b32 s{S_TMP}, s{S_TMP}, 8")
            a(f"s_add_u32 s{S_TMP}, s{S_TMP}, {WS_END + w * 64}")
            a(f"v_lshrrev_b32 v{vT0}, 2, v{vL16}")
            a(f"s_mov_b64 exec, 0x1fff")
            a(f"buffer_store_dword v{vT1}, v{vT0}, {WS}, s{S_TMP} offen")
            a(f"s_mov_b64 exec, -1")
            a("s_waitcnt vmcnt(0)")
            a.label(pfx + "nodump")

    def zero(base, n):
        return [f"v_mov_b64 {vr(base + 2 * i, 2)}, 0" for i in range(n // 2)]

    ACC = {"q": ACCQ, "k": ACCK, "v": ACCV}
    WR = (WR0, WR1)
    ak = [(w + i) & 3 for i in range(4)]
    bk = [4 + x for x in ak]

    def korder(t):
        if t < 4:
            return [("v", 0), ("q", 0), ("q", 1), ("v", 1), ("k", 0), ("k", 1)]
        return [("q", 0), ("k", 0), ("q", 1), ("k", 1)]
    own = [("q", 0), ("q", 1), ("k", 0), ("v", 0), ("k", 1), ("v", 1)]
    oth = bk[1:]
    lt = [t for t in oth if ("q", t) in LDS_TILES]
    rt_ = [t for t in oth if t not in lt]
    qord = lt[:1] + rt_ + [8] + lt[1:] if len(lt) == 2 else lt + rt_ + [8]
    use = [(m, b, ak[0]) for m, b in own] + [(m, b, t) for t in ak[1:] + bk[:1] for m, b in korder(t)]
    use += [("q", b, t) for t in qord for b in range(2)]
    lq = [k for k in use if FM[k][0] == "l"]
    assert len(lq) == 8 and not any(k in lq for k in use[:3])

    def LW(n):
        return lw_read(WR[n % 2], FM[lq[n]][1]) if n < len(lq) else []

    def S(m, b, t, A):
        k = (m, b, t)
        if FM[k][0] == "l":
            n = lq.index(k)
            return [SM(ACC[m] + 4 * b, A, vr(WR[n % 2], 8))] + LW(n + 2)
        return [SM(ACC[m] + 4 * b, A, opnd(FM[k]))]

    def mem_rd(dst, t):
        return f"ds_read_b128 {vr(dst, 4)}, v{vL16} offset:{L_MEMA + t * 1024}"

    def mem_wr(src, t):
        return f"ds_write_b128 v{vL16}, {vr(src, 4)} offset:{L_MEMA + t * 1024}"

    ldA = f"buffer_load_dwordx4 {vr(FA, 4)}, v{vL16}, {WS}, s{sMA} offen sc1"
    ldB = [f"s_add_u32 s{S_TMP}, s{sMA}, 4096", f"buffer_load_dwordx4 {vr(FB, 4)}, v{vL16}, {WS}, s{S_TMP} offen sc1"]
    ldC = f"buffer_load_dwordx4 {vr(FC, 4)}, v{vL16}, {WS}, s{sMC} offen sc1"

    def chk(q):
        return [f"v_max3_u32 v{vT1}, v{q}, v{q + 1}, v{q + 2}", f"v_max_u32 v{vT1}, v{vT1}, v{q + 3}",
                f"v_cmp_eq_u32 vcc, -1, v{vT1}"]

    def late_poll(name, q, ld, young):
        L = pfx + name
        a.force_wait(vm=young)
        seq(chk(q))
        a(f"s_cbranch_vccnz {L}_re")
        wn = list(a.win)
        sn = a.snap()

        def tail():
            a.label(L + "_re")
            a.win = wn
            a.restore(([], []))
            a(f"s_mov_b32 s{S_SPIN}, 0")
            a.label(L + "_lp")
            seq(ld)
            spin_check(a, abort)
            a.force_wait(vm=0)
            seq(chk(q))
            a(f"s_cbranch_vccnz {L}_lp")
            a(f"s_branch {L}_ok")
        tails.append(tail)
        a.label(L + "_ok")
        a.restore(sn)
        a.vmq = a.vmq[len(a.vmq) - young:] if young else []

    def KX(dst, j, tt):
        return f"ds_read_b128 {vr(dst, 4)}, v{vL16} offset:{L_KX + (j * 2 + tt) * 1024}"

    def FR(dst, j):
        return f"ds_read_b128 {vr(dst, 4)}, v{vQR} offset:{j * 64}"

    def MF(acc, A, B, first):
        return f"v_mfma_f32_16x16x32_bf16 {vr(acc, 4)}, {vr(A, 4)}, {vr(B, 4)}, {'0' if first else vr(acc, 4)}"

    def MF16(acc, A, B, first=False):
        return f"v_mfma_f32_16x16x16_bf16 {vr(acc, 4)}, {vr(A, 2)}, {vr(B, 2)}, {'0' if first else vr(acc, 4)}"

    def xe(acc):
        X, Y = acc, acc + 4
        return [f"v_add_f32 v{X}, v{X}, v{X + 2}", f"v_add_f32 v{Y}, v{Y}, v{Y + 2}",
                f"v_add_f32 v{X + 1}, v{X + 1}, v{X + 3}", f"v_add_f32 v{Y + 1}, v{Y + 1}, v{Y + 3}",
                f"v_cvt_pk_bf16_f32 v{X + 2}, v{X}, v{Y}",
                f"v_cvt_pk_bf16_f32 v{X + 3}, v{X + 1}, v{Y + 1}"]

    def kdma(i):
        return lambda: a(f"buffer_load_dwordx4 v{vL16}, {WS}, s{sKF} offen offset:{1024 * i} lds", tag="kdma")

    def flag_store():
        a(f"v_mov_b32 v{vT0}, 1")
        a(f"v_mov_b32 v{vT1}, 0")
        a(f"s_mov_b64 exec, 1")
        a(f"buffer_store_dword v{vT0}, v{vT1}, {WS}, s{sFLP} offen offset:384 sc1")
        a(f"s_mov_b64 exec, -1")

    def flag_check():
        if w != CKW:
            return
        if True:
            if NBF and TOUCH:
                a(f"s_cmp_eq_u32 s{sFOK}, 1")
                a(f"s_cbranch_scc1 {pfx}flok")
            a(f"v_cmp_eq_u32 vcc, 0, v{vT2}")
            a(f"s_cbranch_vccnz {pfx}flbad")
            wn2 = list(a.win)
            sn2 = a.snap()

            def flbad():
                a.label(pfx + "flbad")
                a.win = wn2
                a.restore(([], []))
                a(f"s_cmp_eq_u32 s{sSTEP}, {NSEG - 1}")
                a(f"s_cbranch_scc1 {pfx}flok")
                flag_wait_kv(a, pfx, FL_STRIDE, abort)
                a(f"s_branch {pfx}flok")
            tails.append(flbad)
            a.label(pfx + "flok")
            a.restore(sn2)

    flag_wait_kv(a, pfx, 0, abort)
    if w == FLW:
        a(f"s_lshl_b32 s{sFLP}, s{sLAY}, 5")
        a(f"s_add_u32 s{sFLP}, s{sFLP}, s{sH}")
        a(f"s_lshl_b32 s{sFLP}, s{sFLP}, 12")
        a(f"s_add_u32 s{sFLP}, s{sFLP}, {WS_DUMMY}")
    a(f"s_mov_b32 m0, {L_KX + w * 2048}")
    seq(kdma(0), kdma(1))
    if KD0:
        base = [0, 0, 3, 6][w]
        a(f"s_mov_b32 m0, {L_KX + base * 1024}")
        a(f"s_add_u32 s{sKF}, s{sKF}, {(base * 1024 - w * 2048) & 0xffffffff}")
    a(f"s_add_u32 s{sKF}, s{sKF}, {32 * 8192}")
    a(f"s_add_u32 s{sTCH}, s{sTCH}, {(32 * 8192 - (QKV_M if w == TKW else 0)) & 0xffffffff}")
    a.wait(vm=0)
    seq(LW(0), LW(1), zero(ACCQ, 24))
    seq(ldA)
    a.force_wait(vm=0, lg=0)
    head = pfx + "step"
    a.label(head)
    a.auto = False
    if stamps:
        a("s_mov_b32 s73, 0")
    if PD3:
        if w in (1, 2):
            a.force_wait(vm=3)
            seq(chk(FA))
            a(f"s_cbranch_vccz {pfx}aok")
            seq(ldA)
            nops(a, DQ3[w])
            seq(ldA)
        a(f"s_mov_b32 s{S_SPIN}, 0")
        a.label(pfx + "alp")
        a.force_wait(vm=2)
        seq(chk(FA))
        a(f"s_cbranch_vccz {pfx}aok")
        seq(ldA)
        if stamps:
            a("s_add_u32 s73, s73, 1")
        spin_check(a, abort)
        a(f"s_branch {pfx}alp")
    else:
        a.force_wait(vm=3 if (w in (1, 2) and R2E) else 2)
        seq(chk(FA))
        a(f"s_cbranch_vccz {pfx}aok")
        if w in (1, 2) and R2E:
            if stamps:
                a("s_mov_b32 s73, 1")
            seq(ldA)
            a.force_wait(vm=1)
            seq(chk(FA))
            a(f"s_cbranch_vccz {pfx}aok")
        elif w in (0, 3):
            if stamps:
                a("s_mov_b32 s73, 1")
            a.force_wait(vm=1)
            seq(chk(FA))
            a(f"s_cbranch_vccz {pfx}aok")
        else:
            seq(ldA)
            nops(a, DQ2[w])
        if stamps:
            a("s_mov_b32 s73, 2")
        a(f"s_mov_b32 s{S_SPIN}, 0")
        a.label(pfx + "alp")
        seq(ldA)
        spin_check(a, abort)
        a.force_wait(vm=1)
        seq(chk(FA))
        if stamps:
            a("s_add_u32 s73, s73, 1")
        a(f"s_cbranch_vccnz {pfx}alp")
    a.label(pfx + "aok")
    a.auto = True
    a.vmq = [(frozenset(), "pa")] * 3
    a.lgq = []
    stamp(0)
    def kstep(t, A, extra=()):
        ex = list(extra)
        for m, b in korder(t):
            seq(S(m, b, t, A))
            if ex:
                seq(ex.pop(0))
        seq(ex)
    pre_issued = []
    if BEARLY:
        a.auto = False
        seq(mem_wr(FA, ak[0]), ldB)
        a.auto = True
        a.lgq = [(frozenset(), None)]
        a.vmq[-1] = (frozenset(), "pb")
        pre_issued = ["pb"]
        seq([S(m, b, ak[0], FA) for m, b in own[:3]])
    else:
        seq(mem_wr(FA, ak[0]), [S(m, b, ak[0], FA) for m, b in own[:3]])
    stamp("ba0")
    a.barrier(lg=0)
    stamp("ba")
    seq(mem_rd(R0, ak[1]), mem_rd(R1, ak[2]))
    flg = [f"v_lshrrev_b32 v{vT1}, 2, v{vL16}", f"v_and_b32 v{vT0}, 16, v{vT1}", f"v_lshlrev_b32 v{vT0}, 3, v{vT0}",
           f"v_and_or_b32 v{vT1}, v{vT1}, 12, v{vT0}", f"s_add_u32 s{S_TMP}, s{sFL}, {FL_STRIDE + 128}",
           f"v_mov_b32 v{vT2}, 2", f"buffer_load_dword v{vT2}, v{vT1}, {WS}, s{S_TMP} offen sc1"]
    stream = [(m, b, ak[0], FA) for m, b in own[3:]] + [(m, b, ak[1], R0) for m, b in korder(ak[1])] + \
             [(m, b, ak[2], R1) for m, b in korder(ak[2])]
    at = {}
    if not BEARLY:
        at.setdefault(PB0 + STG * w, []).append(("pb", ldB))
    at.setdefault(PC0 + STG * w, []).append(("pc", [ldC]))
    if w == CKW:
        at.setdefault(max(PB0, PC0) + STG * w + 1, []).append(("flg", flg))
    issued = list(pre_issued)
    for n, (m, b, t, A) in enumerate(stream):
        seq(S(m, b, t, A))
        for tg, ins in at.get(n, []):
            a.auto = False
            seq(ins)
            a.auto = True
            a.vmq[-1] = (frozenset([V0 + vT2]) if (tg == "flg" and not NBF) else frozenset(), tg)
            issued.append(tg)
        if n == 2 + FAD:
            a.force_wait(vm=len(issued))
            a.vmq = a.vmq[len(a.vmq) - len(issued):] if issued else []
            seq(mem_rd(FA, ak[3]))
            stamp(1)
    assert "pb" in issued and "pc" in issued
    nyB = len(issued) - 1 - issued.index("pb")
    stamp("a2")
    nyC = len(issued) - 1 - issued.index("pc")
    if BEARLY:
        late_poll("pb", FB, ldB, nyB)
        stamp("pb")
        a(mem_wr(FB, bk[0]), tag="fbw")
        if w == FLW:
            flag_store()
            nyC += 1
        kstep(ak[3], FA)
        stamp("a3")
    else:
        kstep(ak[3], FA)
        stamp("a3")
        late_poll("pb", FB, ldB, nyB)
        stamp("pb")
        a(mem_wr(FB, bk[0]), tag="fbw")
        if w == FLW:
            flag_store()
            nyC += 1
        kstep(bk[0], FB)
    yl = [t for _, t in a.lgq]
    a.barrier(lg=len(yl) - 1 - yl.index("fbw") if "fbw" in yl else None)
    stamp("bb")
    o3 = [t for t in qord if t != 8]
    FR_ = {bk[0]: FB, o3[0]: R0, o3[1]: R1, o3[2]: FA, 8: FC}
    seq([mem_rd(FR_[t], t) for t in o3])
    if BEARLY:
        kstep(bk[0], FB)
    seq(S("v", 0, bk[0], FB), S("v", 1, bk[0], FB))
    stamp(2)
    VXA, VXB = WR1, WR1 + 4
    ldV = [f"buffer_load_dwordx4 {vr(VXA, 4)}, v{vL16}, {WS}, s{sVF} offen",
           f"buffer_load_dwordx4 {vr(VXB, 4)}, v{vL16}, {WS}, s{sVF} offen offset:1024"]
    for t in qord:
        if t == 8:
            late_poll("pc", FC, ldC, nyC)
        seq(S("q", 0, t, FR_[t]), S("q", 1, t, FR_[t]))
    qe, ke = xe(ACCQ), xe(ACCK)
    kord = o3 + [8]
    fl = [None, None] + qe[:4] + [[qe[4], KX(WR0, 0, 0)], [qe[5], KX(WR0 + 4, 0, 1)]]
    nv = 0
    for i in range(VEARLY):
        fl[(w + 4 * i) % 8 if VEARLY > 1 else w] = [fl[(w + 4 * i) % 8 if VEARLY > 1 else w], ldV[i]]
        nv += 1
    for i, (t, b) in enumerate([(t, b) for t in kord for b in range(2)]):
        seq(S("k", b, t, FR_[t]), fl[i])
    stamp(3)
    dv = [t for t in o3] + [8]
    seq(f"ds_write_b32 v{vQW}, v{ACCQ + 2} offset:{2 * ROWS}", f"ds_write_b32 v{vQW}, v{ACCQ + 3} offset:{3 * ROWS}",
        S("v", 0, dv[0], FR_[dv[0]]), S("v", 1, dv[0], FR_[dv[0]]),
        ke,
        f"ds_write_b32 v{vQW}, v{ACCK + 2} offset:0", f"ds_write_b32 v{vQW}, v{ACCK + 3} offset:{ROWS}",
        S("v", 0, dv[1], FR_[dv[1]]), S("v", 1, dv[1], FR_[dv[1]]))
    seq(ldV[nv:])
    if not NBF:
        flag_check()
    a.barrier(lg=0)
    stamp(4)
    SX0, SX1, SMm = ACCQ, ACCQ + 4, ACCK + 4
    F0, F1, F2, F3 = FB, R0, ACCK, R1
    KA, KB = FA, FC
    ve = [f"v_add_f32 v{ACCV}, v{ACCV}, v{ACCV + 2}", f"v_add_f32 v{ACCV + 4}, v{ACCV + 4}, v{ACCV + 6}",
          f"v_add_f32 v{ACCV + 1}, v{ACCV + 1}, v{ACCV + 3}", f"v_add_f32 v{ACCV + 5}, v{ACCV + 5}, v{ACCV + 7}",
          f"v_cvt_pk_bf16_f32 v{ACCV + 2}, v{ACCV}, v{ACCV + 1}",
          f"v_cvt_pk_bf16_f32 v{ACCV + 3}, v{ACCV + 4}, v{ACCV + 5}"]
    def touch():
        if TOUCH and not NBF and w in (TKW, TCW):
            a.auto = False
            a(f"v_lshlrev_b32 v{vT0}, 3, v{vL16}")
            a(f"buffer_load_dword v{vT2}, v{vT0}, {WS}, s{sTCH} offen")
            a.auto = True
        if TOUCH and NBF and w == CKW:
            a.auto = False
            a(f"v_cmp_eq_u32 vcc, 1, v{vT2}")
            a(f"v_lshlrev_b32 v{vT0}, 3, v{vL16}")
            a(f"s_cmp_eq_u64 vcc, -1")
            a(f"s_cselect_b32 s{sFOK}, 1, 0")
            a(f"s_cselect_b64 exec, -1, 0")
            a(f"buffer_load_dword v{vT2}, v{vT0}, {WS}, s{sTCH} offen")
            a(f"s_sub_u32 s{S_TMP}, s{sTCH}, {QKV_M}")
            a(f"buffer_load_dword v{vT2}, v{vT0}, {WS}, s{S_TMP} offen")
            a(f"s_mov_b64 exec, -1")
            a.auto = True
    post = [[S("v", 0, dv[2], FA)], [S("v", 1, dv[2], FA), KX(KA, 1, 0)], [S("v", 0, 8, FC)], [S("v", 1, 8, FC), KX(KB, 1, 1)]]
    post[TPOS].append(touch)
    seq(FR(F0, 0), FR(F1, 1), FR(F2, 2), FR(F3, 3), post)
    PK = ACCV + 6
    seq(MF(SX0, WR0, F0, True), MF(SX1, WR0 + 4, F0, True), MF(SMm, F0, F0, True),
        KX(WR0, 2, 0), KX(WR0 + 4, 2, 1),
        MF(SX0, KA, F1, False), f"v_lshrrev_b32 v{vT1}, 1, v{vL16}", f"v_lshrrev_b32 v{vT0}, 9, v{vL16}",
        MF(SX1, KB, F1, False), f"v_lshl_add_u32 v{vT0}, v{vT0}, 5, v{vT1}", ve[0],
        MF(SMm, F1, F1, False), ve[1], ve[2],
        KX(KA, 3, 0), KX(KB, 3, 1),
        MF(SX0, WR0, F2, False), ve[3], ve[4],
        MF(SX1, WR0 + 4, F2, False), ve[5],
        f"ds_read_b64 {vr(PK, 2)}, v{vT0} offset:{L_F + 4 * w * ROWS}",
        MF(SMm, F2, F2, False),
        f"s_add_u32 s{S_TMP}, s{sKM}, {2048 + w * 512}",
        f"buffer_store_dwordx2 {vr(ACCV + 2, 2)}, v{vT1}, {WS}, s{S_TMP} offen sc1",
        MF(SX0, KA, F3, False), MF(SX1, KB, F3, False), MF(SMm, F3, F3, False),
        f"s_add_u32 s{S_TMP}, s{sKM}, {w * 512}",
        f"buffer_store_dwordx2 {vr(PK, 2)}, v{vT1}, {WS}, s{S_TMP} offen sc1")
    stamp(5)
    MX, T1 = vT0, vT1
    MP = ACCV
    P4, PB, OX, OY, LQ, ONES = Q[0], Q[1], Q[2], Q[3], Q[4], ACCK
    lds_seq = [("o", 4, 0), ("o", 4, 1), ("o", 5, 0), ("o", 5, 1), ("o", 6, 0), ("o", 6, 1), ("o", 7, 0), ("o", 7, 1), ("o", 8, 1)]
    early = (w == 0 and PAPOS >= 0)
    ring = [WR0, WR1] if early else [WR0, WR1, ACCQ, ACCK]
    bufof = {k: ring[i % len(ring)] for i, k in enumerate(lds_seq)}

    def wo_rd(i):
        return lw_read(bufof[lds_seq[i]], FM[lds_seq[i]][1])

    vals = list(range(SX0, SX0 + 8)) + [SMm, SMm + 1]
    fm = [f"v_fma_f32 v{r}, v{r}, s{sCEXP}, -v{MP}" for r in vals]
    ex = [f"v_exp_f32 v{r}, v{r}" for r in vals]
    X5 = ACCV + 4
    seq(wo_rd(0),
        f"v_mov_b64 {vr(ONES, 2)}, s[{sONES}:{sONES + 1}]", f"v_mov_b64 {vr(ONES + 2, 2)}, s[{sONES}:{sONES + 1}]",
        f"v_mov_b32 v{PB + 1}, 0", f"v_mov_b32 v{PB + 2}, 0",
        f"v_max3_f32 v{MX}, v{SX0}, v{SX0 + 1}, v{SX0 + 2}",
        f"v_max3_f32 v{MX}, v{MX}, v{SX0 + 3}, v{SX0 + 4}",
        f"v_max3_f32 v{MX}, v{MX}, v{SX0 + 5}, v{SX0 + 6}",
        f"v_max3_f32 v{MX}, v{MX}, v{SX0 + 7}, v{SMm}",
        f"v_max_f32 v{MX}, v{MX}, v{SMm + 1}",
        f"v_mov_b32 v{T1}, v{MX}",
        zero(X5, 4),
        f"v_permlane32_swap_b32 v{MX}, v{T1}",
        f"v_max_f32 v{MX}, v{MX}, v{T1}",
        f"v_mov_b32 v{T1}, v{MX}",
        "s_nop 1",
        f"v_permlane16_swap_b32 v{MX}, v{T1}",
        f"v_max_f32 v{MX}, v{MX}, v{T1}",
        f"v_mul_f32 v{MP}, s{sCEXP}, v{MX}",
        fm[0], fm[1], fm[2], fm[3], ex[0], ex[1], fm[4], fm[5], ex[2], ex[3],
        f"v_cvt_pk_bf16_f32 v{P4}, v{SX0}, v{SX0 + 1}", fm[6], fm[7], ex[4], ex[5],
        f"v_cvt_pk_bf16_f32 v{P4 + 1}, v{SX0 + 2}, v{SX0 + 3}", fm[8], fm[9], ex[6], ex[7],
        f"v_cvt_pk_bf16_f32 v{P4 + 2}, v{SX0 + 4}, v{SX0 + 5}", ex[8], ex[9],
        f"v_cvt_pk_bf16_f32 v{P4 + 3}, v{SX0 + 6}, v{SX0 + 7}",
        f"v_cvt_pk_bf16_f32 v{PB}, v{SMm}, v{SMm + 1}",
        f"v_cvt_pk_bf16_f32 v{PB + 3}, v{SMm}, v{SMm + 1}",
        MF(LQ, ONES, P4, True), zero(SX0, 2), zero(SX0 + 2, 2),
        MF(OX, VXA, P4, True), zero(SMm, 2), zero(SMm + 2, 2),
        MF(OY, VXB, P4, True), wo_rd(1),
        MF16(LQ, ONES, PB),
        MF16(OX, ACCV + 2, PB), zero(ONES, 4),
        MF16(OY, ACCV + 2, PB + 2), zero(P4, 4), zero(Q[1], 4),
        f"v_rcp_f32 v{MX}, v{LQ}", zero(Q[4], 4))
    stamp(6)
    OP = ACCQ + 4
    for i in range(4):
        a(f"v_mul_f32 v{OX + i}, v{MX}, v{OX + i}")
        a(f"v_mul_f32 v{OY + i}, v{MX}, v{OY + i}")
        a(f"v_cvt_pk_bf16_f32 v{OP + i}, v{OX + i}, v{OY + i}")
    a(f"ds_write_b128 v{vOW}, {vr(OP, 4)}")
    seq(zero(ACCV, 4))
    if NBF:
        flag_check()
    TA = [ACCQ, ACCK + 4, ACCK, ACCQ + 4, Q[0], Q[1], Q[4], ACCV + 4, ACCV]
    a.barrier(lg=0)
    OA0, OA1 = Q[2], Q[3]
    a(f"ds_read_b128 {vr(OA0, 4)}, v{vOR} offset:0")
    a(f"ds_read_b128 {vr(OA1, 4)}, v{vOR} offset:128")
    last = pfx + "last"
    seq(f"s_cmp_eq_u32 s{sSTEP}, {NSEG - 1}", f"s_cbranch_scc1 {last}",
        zero(ACCQ + 4, 4))
    nkd = ([0, 3, 3, 2] if KD0 else [2, 2, 2, 2])[w]
    seq([kdma(i) for i in range(nkd)])

    stamp(7)
    ST = {0: TA[0], 1: TA[4], 2: TA[8]}

    def epi(tau):
        acc = TA[tau]
        dst = ST[tau // 4] + tau % 4
        return [f"v_add_f32 v{acc}, v{acc}, v{acc + 2}", f"v_add_f32 v{acc + 1}, v{acc + 1}, v{acc + 3}",
                f"v_cvt_pk_bf16_f32 v{dst}, v{acc}, v{acc + 1}"]

    def wS(tau, ks):
        k = ("o", tau, ks)
        B = vr(bufof[k], 8) if FM[k][0] == "l" else opnd(FM[k])
        return SM(TA[tau], (OA0, OA1)[ks], B)

    def tag(r):
        return f"v_and_or_b32 v{r}, v{r}, -2, s{sPH}"
    e = [epi(t) for t in range(4)]
    seq(wS(0, 0), wS(0, 1), wS(1, 0), wS(1, 1), e[0][0], wS(2, 0), e[0][1], wS(2, 1), e[0][2], wS(3, 0), e[1][0], wS(3, 1), e[1][1],
        wS(4, 0), e[1][2], wS(4, 1), e[2], e[3], tag(ST[0] + 3),
        f"buffer_store_dwordx4 {vr(ST[0], 4)}, v{vL16}, {WS}, s{sPW} offen{sc}")
    stamp(8)
    nxt = 2 + len(ring)
    seq([wo_rd(i) for i in range(2, nxt)])
    order = [(tau, ks) for tau in range(5, 9) for ks in range(2)]
    LA = [ACCQ, ACCQ + 4, ACCK, ACCK + 4]
    ldLA = [f"buffer_load_dwordx4 {vr(LA[i], 4)}, v{vRLD}, {WS}, s{sPR + i} offen sc1" for i in range(4)]
    for idx, (tau, ks) in enumerate(order):
        if early and idx == PAPOS:
            a.auto = False
            nops(a, DP1[0])
            seq(ldLA)
            stamp("l1")
            a.auto = True
        a(wS(tau, ks))
        k = ("o", tau, ks)
        if FM[k][0] == "l" and nxt < len(lds_seq):
            seq(wo_rd(nxt))
            nxt += 1
    stamp("bc")
    epiB = [epi(tau) for tau in range(4, 8)] + [tag(ST[1] + 3), f"s_add_u32 s{S_TMP}, s{sPW}, 4096",
                                                f"buffer_store_dwordx4 {vr(ST[1], 4)}, v{vL16}, {WS}, s{S_TMP} offen{sc}"]
    epiC = [epi(8), tag(ST[2]), f"v_lshrrev_b32 v{vT0}, 2, v{vL16}",
            f"buffer_store_dword v{ST[2]}, v{vT0}, {WS}, s{sPWC} offen{sc}"]
    adv = [f"s_xor_b32 s{r}, s{r}, {MEMB_SLOT}" for r in (sMA, sMC)]
    advE = [f"s_add_u32 s{sSTEP}, s{sSTEP}, 1", f"s_add_u32 s{sVF}, s{sVF}, {32 * 8192}",
            f"s_add_u32 s{sKF}, s{sKF}, {32 * 8192}", f"s_add_u32 s{sKM}, s{sKM}, {32 * KM_UNIT}"]
    if w == FLW:
        advE += [f"s_mov_b32 s{sFLP}, s{sFL}"]
    advE += [f"s_add_u32 s{sTCH}, s{sTCH}, {32 * 8192}"]
    advE += [f"s_add_u32 s{sFL}, s{sFL}, {FL_STRIDE}"]
    advL = [f"s_xor_b32 s{sPH}, s{sPH}, 1"] + [f"s_xor_b32 s{r}, s{r}, {MEMB_SLOT}" for r in ([] if HK else [sMEMW, sMEMZ])]
    if not HK:
        u = w
        LB = [Q[1], Q[2], Q[3], Q[4]]
        SEL, D = Q[7], Q[8]
        wide = u < 2

        def loads(L):
            if wide:
                return [f"buffer_load_dwordx4 {vr(L[i], 4)}, v{vRLD}, {WS}, s{sPR + i} offen sc1" for i in range(4)]
            return [f"buffer_load_dword v{L[i]}, v{vRLD}, {WS}, s{sPR + i} offen sc1" for i in range(4)]

        def M(i):
            return f"s[{sM + 2 * i}:{sM + 2 * i + 1}]"

        def check(L, extra):
            for i in range(4):
                a.force_wait(vm=3 - i + extra)
                a(MF(D, L[i], SEL, i == 0) if wide else MF16(D, L[i], SEL, i == 0))
                a(f"v_and_b32 v{vT1}, 1, v{L[i] + (3 if wide else 0)}")
                a(f"v_cmp_ne_u32 {M(i)}, s{sPH}, v{vT1}")
                if i == 2:
                    a(f"s_or_b64 {M(0)}, {M(0)}, {M(1)}") if False else None
            a(f"s_or_b64 vcc, {M(0)}, {M(1)}")
            a(f"s_or_b64 vcc, vcc, {M(2)}")
            a(f"s_or_b64 vcc, vcc, {M(3)}")

        def sel_build(L):
            a(f"v_add_u32 v{vT1}, {L_SEL}, v{vL16}")
            if wide:
                a(f"ds_read_b128 {vr(SEL, 4)}, v{vT1}")
            else:
                a(f"ds_read_b32 v{SEL}, v{vT1}")
                a(f"v_mov_b32 v{SEL + 1}, 0")
                for i in range(4):
                    a(f"v_mov_b32 v{L[i] + 1}, 0")
        if u == 0 and early:
            seq(epiB, epiC)
            a.auto = False
            y = 2
        if u == 0:
            if not early:
                seq(epiB, epiC) if DP1[0] else None
                a.auto = False
                nops(a, DP1[0])
                seq(loads(LA))
                stamp("l1")
                y = 0
                if not DP1[0]:
                    a.auto = True
                    seq(epiB, epiC)
                    a.auto = False
                    y = 2
            sel_build(None)
            nops(a, DP2)
            seq(loads(LB))
            seq(advE, LW(0))
            a("s_waitcnt lgkmcnt(2)")
            stamp(9)
            if stamps:
                a("s_mov_b32 s72, 0")
            check(LA, 4 + y)
            a(f"s_cbranch_scc0 {pfx}red")
            a(f"s_mov_b32 s{S_SPIN}, 0")
            a.label(pfx + "p1")
            if stamps:
                a("s_add_u32 s72, s72, 1")
            seq(loads(LA))
            check(LB, 4)
            a(f"s_cbranch_scc0 {pfx}red")
            if stamps:
                a("s_add_u32 s72, s72, 1")
            seq(loads(LB))
            spin_check(a, abort)
            check(LA, 4)
            a(f"s_cbranch_scc1 {pfx}p1")
        else:
            seq(epiB, epiC)
            a.auto = False
            sel_build(LB)
            seq(advE, LW(0), zero(ACCQ, 24))
            nops(a, DP1[u])
            seq(loads(LB))
            stamp("l1")
            a("s_waitcnt lgkmcnt(0)")
            stamp(9)
            if stamps:
                a("s_mov_b32 s72, 0")
            check(LB, 0)
            a(f"s_cbranch_scc0 {pfx}red")
            a(f"s_mov_b32 s{S_SPIN}, 0")
            a.label(pfx + "p1")
            if stamps:
                a("s_add_u32 s72, s72, 1")
            for i in range(4):
                a(f"s_mov_b64 exec, {M(i)}")
                a(loads(LB)[i])
            a("s_mov_b64 exec, -1")
            spin_check(a, abort)
            check(LB, 0)
            a(f"s_cbranch_scc1 {pfx}p1")
        a.label(pfx + "red")
        stamp("red")
        if u > 0:
            seq(adv, ldA)
        a.auto = True
        a.vmq, a.lgq = [], []
        seq(f"v_permlane16_swap_b32 v{D}, v{D + 2}", f"v_permlane16_swap_b32 v{D + 1}, v{D + 3}",
            f"s_mov_b64 exec, s[{sMASK}:{sMASK + 1}]",
            f"v_add_f32 v{D}, v{D}, v{D + 2}", f"v_add_f32 v{D + 1}, v{D + 1}, v{D + 3}",
            f"v_cvt_pk_bf16_f32 v{D}, v{D}, v{D + 1}", f"v_min_u32 v{D}, s{sMAXD}, v{D}",
            f"buffer_store_dword v{D}, v{vRST}, {WS}, s{sMEMW} offen{sc}",
            f"v_mov_b32 v{D + 1}, -1",
            f"buffer_store_dword v{D + 1}, v{vRST}, {WS}, s{sMEMZ} offen{sc}",
            f"s_mov_b64 exec, -1")
        stamp("mst")
        a.auto = False
        if u == 0:
            seq(adv, advL)
            nops(a, DQ1[0])
            seq(ldA)
            stamp("q1")
            a("s_waitcnt vmcnt(3)")
            seq(LW(1), zero(ACCQ, 24))
            nops(a, DQ2[w])
            seq(ldA)
            stamp("q2")
            nops(a, DQ3[w])
            seq(ldA)
        else:
            if R2E:
                seq(ldA)
            seq(advL, LW(1))
    else:
        seq(epiB, epiC)
        a.auto = False
        seq(adv, advE, advL)
        trace(a, vT0, vT1, True)
        seq(LW(0), LW(1), zero(ACCQ, 24))
        if HKSL:
            a(f"s_sleep {HKSL}")
        nops(a, DQ1[w])
        seq(ldA)
        stamp("q1")
        nops(a, DQ2[w])
        seq(ldA)
        stamp("q2")
        nops(a, DQ3[w])
        seq(ldA)
    a("s_waitcnt lgkmcnt(0)")
    stamp(NST)
    dump_stamps()
    a.auto = True
    a.restore(([], []))
    a(f"s_branch {head}")
    for t in tails:
        t()
    a.restore(([], []))
    a.label(last)
    a.force_wait(vm=0, lg=0)
    a.I("s_barrier")
    if w != FLW:
        a(f"s_branch {done}")
    else:
        a(f"s_mov_b32 s{sFLP}, s{sFL}")
        flag_store()
        a(f"s_branch {done}")
```

```python
from pool import *


def MF16(acc, A, B):
    return f"v_mfma_f32_16x16x16_bf16 {vr(acc, 4)}, {A if isinstance(A, str) else vr(A, 2)}, {vr(B, 2)}, {vr(acc, 4)}"


TASMP = int(os.environ.get("TASMP", "12"))
TAPRE = int(os.environ.get("TAPRE", "6"))


def role_ta(a, abort, done):
    lane_setup(a, 13)
    vKM, vL8, vFR = 9, 10, 11
    BI, ON, PB, PX, LQ = 236, 16, 20, 24, 28
    SX, SMm = 32, 44
    KMf, VMf, O, OUT = 52, 68, 76, 108
    SET = [("v", 140), ("a", 0)]
    NEG = hex(f32bits(-1e30))
    sQO, sNQ, sRDY, sPN = sO1, sK3, sPF, sK1
    sFIN = sBUF
    sKR = sLEFT
    KMS = [96, 120]
    PF2 = f"s[{SRD_A}:{SRD_A + 3}]"

    def publish():
        a(f"s_cmp_lg_u32 s{sPN}, 0")
        a("s_cselect_b64 exec, 1, 0")
        a(f"buffer_store_dword v{vONE}, v{vZERO}, {WS}, s{sPEND} offen sc1")
        a("s_mov_b64 exec, -1")
        a(f"s_add_u32 s{sPEND}, s{sPEND}, s{sPN}")
        a(f"s_mov_b32 s{sPN}, 0")

    def fr(st, m, i):
        k, b = SET[st]
        return f"{k}[{b + 32 * m + 4 * i}:{b + 32 * m + 4 * i + 3}]"

    if os.environ.get("TA3", "1") == "1":
        TA_IDX = f"""s_cmp_ge_u32 s{S_ROLE}, 11
    s_cselect_b32 s{sNL}, 1, 0
    s_cselect_b32 s{S_TMP}, 11, 0
    s_sub_u32 s{S_TMP}, s{S_ROLE}, s{S_TMP}
    s_mul_i32 s{sK2}, s{S_TMP}, 3
    s_add_u32 s{sK2}, s{sK2}, s{S_WAVE}
    s_cmp_eq_u32 s{S_WAVE}, 3
    s_cselect_b32 s{sK2}, 32, s{sK2}
    s_mov_b32 s{sFIN}, s{sK2}"""
    else:
        TA_IDX = f"""s_lshl_b32 s{S_TMP}, s{S_ROLE}, 2
    s_add_u32 s{S_TMP}, s{S_TMP}, s{S_WAVE}
    s_lshr_b32 s{sNL}, s{S_TMP}, 5
    s_and_b32 s{sK2}, s{S_TMP}, 31
    s_mov_b32 s{sFIN}, s{sK2}"""
    a(f"""
    {TA_IDX}
    s_mov_b32 s{sNS}, 0
    s_mov_b32 s{sK4}, {hex(f32bits(128 ** -0.5 * 1.4426950408889634))}
    v_lshrrev_b32 v{vT0}, 2, v{vC}
    v_and_b32 v{vT1}, 1, v{vC}
    v_lshl_add_u32 v{vT0}, v{vT0}, 1, v{vT1}
    v_lshlrev_b32 v{vKM}, 8, v{vT0}
    v_lshl_add_u32 v{vKM}, v{vG}, 4, v{vKM}
    v_lshrrev_b32 v{vL8}, 1, v{vL16}
    v_mov_b32 v{vFR}, 384
    v_mov_b32 v{vT1}, {NEG}
    v_mov_b32 v{PB + 1}, 0
    v_mov_b32 v{PB + 2}, 0
    s_mul_i32 s{sNFL}, s{sNL}, {NSEG * FL_STRIDE}
    s_lshl_b32 s{S_TMP}, s{sK2}, 9
    s_add_u32 s{sNFL}, s{sNFL}, s{S_TMP}
    s_add_u32 s{sNFL}, s{sNFL}, {WS_FLAGS + FL_QKV}
    s_mul_i32 s{sNQ}, s{sNL}, {3 * QKV_M}
    s_lshl_b32 s{S_TMP}, s{sK2}, 13
    s_add_u32 s{sNQ}, s{sNQ}, s{S_TMP}
    s_add_u32 s{sNQ}, s{sNQ}, {WS_QKV}
    s_lshl_b32 s{sO2}, s{sNL}, 11
    s_add_u32 s{sO2}, s{sO2}, s{sK2}
    s_lshl_b32 s{sO3}, s{sO2}, 13
    s_add_u32 s{sO3}, s{sO3}, {WS_OF}
    s_lshl_b32 s{sO2}, s{sO2}, 12
    s_add_u32 s{sO2}, s{sO2}, {WS_KM}
    s_mul_i32 s{sPEND}, s{sNL}, {NSEG * FL_STRIDE}
    s_lshr_b32 s{S_TMP}, s{sK2}, 2
    s_lshl_b32 s{S_TMP}, s{S_TMP}, 7
    s_add_u32 s{sPEND}, s{sPEND}, s{S_TMP}
    s_and_b32 s{S_TMP}, s{sK2}, 3
    s_lshl_b32 s{S_TMP}, s{S_TMP}, 2
    s_add_u32 s{sPEND}, s{sPEND}, s{S_TMP}
    s_add_u32 s{sPEND}, s{sPEND}, {WS_FLAGS + FL_OF}
    s_mov_b32 s{SRD_C}, s{SRD_WS}
    s_mov_b32 s{SRD_C + 1}, s{SRD_WS + 1}
    s_mov_b32 s{SRD_C + 2}, 0
    s_mov_b32 s{SRD_C + 3}, 0x00020000
    s_mov_b32 s{sRDY}, 0
    s_mov_b32 s{sKR}, 0
    s_mov_b32 s{sPN}, 0
    s_mov_b32 s{SRD_A}, s{SRD_WS}
    s_mov_b32 s{SRD_A + 1}, s{SRD_WS + 1}
    s_mov_b32 s{SRD_A + 2}, 0
    s_mov_b32 s{SRD_A + 3}, 0x00020000
    """)
    for i in range(4):
        a(f"v_mov_b32 v{ON + i}, 0x3f803f80")
        a(f"v_lshl_add_u32 v{vT0}, v{vG}, 2, {i}")
        a(f"v_cmp_le_u32 vcc, v{vT0}, v{vC}")
        a(f"v_cndmask_b32 v{BI + i}, v{vT1}, v{vZERO}, vcc")

    def qkv_ops(st, srd_):
        ops = []
        for m in range(3):
            for i in range(8):
                pre = [f"s_add_u32 s{sQO}, s{sNQ}, {m * QKV_M + i * 1024}"] if i % 4 == 0 else []
                ops.append(pre + [f"buffer_load_dwordx4 {fr(st, m, i)}, v{vL16}, {srd_}, s{sQO} offen offset:{(i % 4) * 1024}"])
        return ops

    a(f"v_mov_b32 v{vFL1}, 0")

    def km_ops(st, srd_):
        b = KMS[st]
        ops = [[f"buffer_load_dwordx4 {ar(b + 4 * j, 4)}, v{vKM}, {srd_}, s{sO2} offen offset:{j * 64}"] for j in range(4)]
        ops += [[f"buffer_load_dwordx2 {ar(b + 16 + 2 * j, 2)}, v{vL8}, {srd_}, s{sO2} offen offset:{2048 + j * 512}"] for j in range(4)]
        return ops

    MX, T1 = vT0, vT1
    init_wait(a, sNL, vT0, vT1, abort, "Lta_ini")
    a(f"s_cmp_ge_u32 s{sFIN}, 32")
    a(f"s_cbranch_scc1 {done}")
    trace(a, vT0, vT1)
    prof_init(a)
    if PROF == 3:
        a("s_memtime s[84:85]")
        a.force_wait(lg=0)
    for st in range(2):
        nm = f"Lta{st}"
        a.label(nm)
        a.restore(([], []))
        a(f"s_cmp_eq_u32 s{sRDY}, 1")
        a(f"s_cbranch_scc1 {nm}_have")
        a.force_wait(vm=0)
        publish()
        p3_begin(a)
        Lf = nm + "_f"
        a(f"s_mov_b32 s{S_SPIN}, 0")
        a.label(Lf)
        a(f"buffer_load_dword v{vFLV}, v{vFLA}, {WS}, s{sNFL} offen sc1")
        spin_check(a, abort)
        a(f"v_cmp_eq_u32 vcc, 0, v{vFLV}")
        a(f"s_and_b32 s{S_TMP}, vcc_lo, 0xfff")
        a(f"s_cbranch_scc0 {Lf}d")
        a(f"s_sleep {SLP}")
        a(f"s_branch {Lf}")
        a.label(Lf + "d")
        p3_end(a, 3)
        seq(a, qkv_ops(st, WS))
        a.force_wait(vm=0)
        a.label(nm + "_have")
        a.restore(([], []))
        a(f"buffer_load_dword v{vFLV}, v{vFR}, {WS}, s{sNFL} offen sc1")
        a.force_wait(vm=5)
        a(f"""
        v_cmp_eq_u32 vcc, 0, v{vFL1}
        s_add_u32 s{sNQ}, s{sNQ}, {32 * 8192}
        s_add_u32 s{sNS}, s{sNS}, 1
        s_mov_b32 s{sDEC}, s{sKR}
        s_and_b32 s{S_TMP}, vcc_lo, 0xfff
        s_cselect_b32 s{sRDY}, 0, 1
        s_cmp_eq_u64 vcc, 0
        s_cselect_b32 s{sKR}, 1, 0
        s_cmp_lt_u32 s{sNS}, {NSEG}
        s_cselect_b32 s{sRDY}, s{sRDY}, 0
        s_cselect_b32 s{sKR}, s{sKR}, 0
        s_cmp_eq_u32 s{sRDY}, 1
        s_cselect_b32 s{SRD_C + 2}, {WS_BYTES}, 0
        s_cmp_eq_u32 s{sKR}, 1
        s_cselect_b32 s{SRD_A + 2}, {WS_BYTES}, 0
        """)
        nxt = qkv_ops(1 - st, PFS)
        n = 0
        for j in range(4):
            for (tt, kt, d) in ((0, 0, 0), (1, 0, 4), (1, 1, 8)):
                a(MF(SX + d, fr(st, 1, 2 * j + kt), fr(st, 0, 2 * j + tt), "0" if j == 0 else None))
                if n < TAPRE:
                    seq(a, nxt.pop(0))
                    n += 1
        a.force_wait(vm=1 + TAPRE)
        publish()
        a(f"s_cmp_eq_u32 s{sDEC}, 1")
        a(f"s_cbranch_scc1 {nm}_km")
        a.force_wait(vm=TAPRE)
        a(f"v_cmp_eq_u32 vcc, 0, v{vFLV}")
        a(f"s_cbranch_vccz {nm}_r")
        a(f"s_mov_b32 s{S_SPIN}, 0")
        p3_begin(a)
        sn = a.snap()
        a.label(nm + "_rp")
        a(f"buffer_load_dword v{vFLV}, v{vFR}, {WS}, s{sNFL} offen sc1")
        spin_check(a, abort)
        a.force_wait(vm=0)
        a(f"v_cmp_eq_u32 vcc, 0, v{vFLV}")
        a("s_sleep 1") if os.environ.get("TASLP", "0") == "1" else None
        a(f"s_cbranch_vccnz {nm}_rp")
        p3_end(a, 4)
        a.restore(sn)
        a.label(nm + "_r")
        seq(a, km_ops(st, WS))
        a.label(nm + "_km")
        a(f"s_add_u32 s{sNFL}, s{sNFL}, {FL_STRIDE}")
        a(f"s_add_u32 s{sO2}, s{sO2}, {32 * KM_UNIT}")
        nxt += km_ops(1 - st, PF2)
        nxt.insert(TASMP, [f"s_add_u32 s{S_TMP}, s{sNFL}, {FL_STRIDE}", f"buffer_load_dword v{vFL1}, v{vFLA}, {WS}, s{S_TMP} offen sc1"])
        for d, diag in ((0, 1), (4, 0), (8, 1)):
            for i in range(4):
                r = SX + d + i
                a(f"v_fma_f32 v{r}, v{r}, s{sK4}, v{BI + i}" if diag else f"v_mul_f32 v{r}, s{sK4}, v{r}")
            seq(a, nxt.pop(0), nxt.pop(0))
        for j in range(4):
            for tt in range(2):
                a(MF(SMm + 4 * tt, ar(KMS[st] + 4 * j, 4), fr(st, 0, 2 * j + tt), "0" if j == 0 else None))
            seq(a, nxt.pop(0))
        for tt in range(2):
            xs = list(range(SX, SX + 4)) if tt == 0 else list(range(SX + 4, SX + 12))
            ms = [SMm + 4 * tt, SMm + 4 * tt + 1]
            vals = xs + ms
            a(f"v_max3_f32 v{MX}, v{xs[0]}, v{xs[1]}, v{xs[2]}")
            a(f"v_max_f32 v{MX}, v{MX}, v{xs[3]}")
            for i in range(4, len(xs), 2):
                a(f"v_max3_f32 v{MX}, v{MX}, v{xs[i]}, v{xs[i + 1]}")
            for r in ms:
                a(f"v_mul_f32 v{r}, s{sK4}, v{r}")
            a(f"v_max3_f32 v{MX}, v{MX}, v{ms[0]}, v{ms[1]}")
            seq(a, f"v_mov_b32 v{T1}, v{MX}", nxt.pop(0) if nxt else None, f"v_permlane32_swap_b32 v{MX}, v{T1}", f"v_max_f32 v{MX}, v{MX}, v{T1}",
                f"v_mov_b32 v{T1}, v{MX}", nxt.pop(0) if nxt else None, f"v_permlane16_swap_b32 v{MX}, v{T1}", f"v_max_f32 v{MX}, v{MX}, v{T1}",
                [f"v_sub_f32 v{r}, v{r}, v{MX}" for r in vals], [f"v_exp_f32 v{r}, v{r}" for r in vals])
            for i in range(4):
                if 2 * i < len(xs):
                    a(f"v_cvt_pk_bf16_f32 v{PX + i}, v{xs[2 * i]}, v{xs[2 * i + 1]}")
                else:
                    a(f"v_mov_b32 v{PX + i}, 0")
            a(f"v_cvt_pk_bf16_f32 v{PB}, v{ms[0]}, v{ms[1]}")
            a(f"v_cvt_pk_bf16_f32 v{PB + 3}, v{ms[0]}, v{ms[1]}")
            a(MF(LQ, vr(ON, 4), vr(PX, 4), "0"))
            for t in range(8):
                a(MF(O + 4 * t, fr(st, 2, t), vr(PX, 4), "0"))
                if t & 1 and nxt:
                    seq(a, nxt.pop(0))
                if t == 5:
                    a(MF16(LQ, ON, PB))
            if tt == 1:
                seq(a, nxt)
                del nxt[:]
            for t in range(8):
                a(MF16(O + 4 * t, ar(KMS[st] + 16 + 2 * (t >> 1), 2), PB + 2 * (t & 1)))
                if t == 1:
                    a(f"v_rcp_f32 v{T1}, v{LQ}")
                if t >= 3 and t & 1:
                    norm(a, O, OUT, T1, (t - 3) >> 1, tt, sO3, nxt)
            norm(a, O, OUT, T1, 3, tt, sO3, nxt)
        seq(a, nxt)
        a(f"s_add_u32 s{sO3}, s{sO3}, {32 * 8192}")
        a(f"s_mov_b32 s{sPN}, {FL_STRIDE}")
        trace_at(a, sNS, vT0, vZERO)
        trace(a, vT0, vT1)
        a(f"s_cmp_ge_u32 s{sNS}, {NSEG}")
        a(f"s_cbranch_scc1 Lta_end")
        if st == 1:
            a("s_branch Lta0")
    a.label("Lta_end")
    if PROF == 3:
        a("s_memtime s[86:87]")
        a.force_wait(lg=0)
        a("s_sub_u32 s97, s86, s84")
    prof_dump(a, vT0, vT1)
    a.force_wait(vm=0)
    flag_out(a, sPEND)
    a(f"s_branch {done}")


def norm(a, O, OUT, T1, j, tt, sO3, nxt):
    for i in range(4):
        x, y = O + 8 * j + i, O + 8 * j + 4 + i
        a(f"v_mul_f32 v{x}, v{T1}, v{x}")
        a(f"v_mul_f32 v{y}, v{T1}, v{y}")
        a(f"v_cvt_pk_bf16_f32 v{OUT + 16 * tt + 4 * j + i}, v{x}, v{y}")
    if j % 2 == 0:
        a(f"s_add_u32 s{S_TMP}, s{sO3}, {j * 2048}")
    a(f"buffer_store_dwordx4 {vr(OUT + 16 * tt + 4 * j, 4)}, v{vL16}, {WS}, s{S_TMP} offen offset:{(j % 2) * 2048 + tt * 1024} sc1")
    if nxt:
        seq(a, nxt.pop(0))


TW_S0 = int(os.environ.get("TW_S0", "30"))
TWX = int(os.environ.get("TWX", "0"))
TWT = int(os.environ.get("TWT", "0"))


def role_tw(a, abort, done, nt=os.environ.get("NT_W", "")):
    lane_setup(a, 32)
    vA0, vSEL, vRES, vROW, vSTO, vRED, vMBT, vRD2, OUTP = 9, 11, 12, 13, 14, 48, 49, 50, 52
    nst_ = 0
    ACC, RES, SS, RING, ZB = 16, 40, 44, 64, 128
    sSL = sK2
    gate(a, 8, None, vT0, vT1, abort, "Ltw_gate", (S_ROLE, 0), vL16)
    srd(a, SRD_A, KA_BWO, 4096 * 1152)
    srd(a, SRD_B, KA_OUT, 2048 * 1152)
    A_ = f"s[{SRD_A}:{SRD_A + 3}]"
    OUTS = f"s[{SRD_B}:{SRD_B + 3}]"
    a(f"""
    s_mul_i32 s{S_TMP}, s{S_ROLE}, 43
    s_lshr_b32 s{sN0}, s{S_TMP}, 9
    s_mul_i32 s{S_TMP}, s{sN0}, 12
    s_sub_u32 s{sSL}, s{S_ROLE}, s{S_TMP}
    s_add_u32 s{sN1}, s{sN0}, {TW_S0}
    s_cmp_eq_u32 s{sN0}, 2
    s_cselect_b32 s{sN1}, 0, s{sN1}
    s_cselect_b32 s{sN0}, {NSEG}, s{sN0}
    s_mul_i32 s{sK1}, s{sSL}, 96
    s_mul_i32 s{S_TMP}, s{S_WAVE}, {1024 * 1152}
    s_add_u32 s{sK1}, s{sK1}, s{S_TMP}
    v_mul_u32_u24 v{vT0}, {(4 if RV2 else 8) * 1152}, v{vG}
    v_lshl_add_u32 v{vA0}, v{vC}, 2, v{vT0}
    v_add_u32 v{vA0 + 1}, {(16 if RV2 else 1) * 1152}, v{vA0}
    v_and_b32 v{vT1}, 14, v{vC}
    v_lshl_add_u32 v{vRES}, v{vT1}, 1, v{vT0}
    v_add_u32 v{vRES}, 64, v{vRES}
    v_add_u32 v{vROW}, {(16 if RV2 else 1) * 1152}, v{vRES}
    v_and_b32 v{vT0}, 1, v{vC}
    v_mov_b32 v{vSEL}, s{sSELX}
    v_mov_b32 v{vT1}, s{sSELY}
    v_cmp_eq_u32 vcc, 1, v{vT0}
    v_cndmask_b32 v{vSEL}, v{vSEL}, v{vT1}, vcc
    """)
    STG = 16
    n = 128
    D = 14
    for i in range(n + D):
        if i < n:
            kk, d = i >> 2, i & 3
            r = STG + 4 * (i % 28)
            a(f"s_add_u32 s{S_TMP}, s{sK1}, {(32 * kk + (d if RV2 else 2 * d)) * 1152}")
            for q, ad in enumerate((vA0, vA0 + 1, vRES, vROW)):
                a(f"buffer_load_dword v{r + q}, v{ad}, {A_}, s{S_TMP} offen {nt}")
        j = i - D
        if j >= 0:
            kk, d = j >> 2, j & 3
            r = STG + 4 * (j % 28)
            a(f"v_perm_b32 v{vT0}, v{r + 1}, v{r}, s{sSELX}")
            a(f"v_perm_b32 v{vT1}, v{r + 1}, v{r}, s{sSELY}")
            a(f"v_perm_b32 v{ZB + 4 * kk + d}, v{r + 3}, v{r + 2}, v{vSEL}")
            a(f"v_accvgpr_write_b32 a{8 * kk + d}, v{vT0}")
            a(f"v_accvgpr_write_b32 a{8 * kk + 4 + d}, v{vT1}")
    a(f"""
    s_and_b32 s{sK3}, s{S_WAVE}, 1
    s_lshl_b32 s{S_TMP}, s{sK3}, 4
    v_add_u32 v{vT0}, s{S_TMP}, v{vC}
    v_lshlrev_b32 v{vSTO}, 4, v{vT0}
    v_mul_u32_u24 v{vROW}, 1152, v{vT0}
    s_mul_i32 s{S_TMP}, s{sSL}, 96
    v_add_u32 v{vROW}, s{S_TMP}, v{vROW}
    s_mul_i32 s{S_TMP}, s{sSL}, 3072
    v_add_u32 v{vRES}, s{S_TMP}, v{vSTO}
    s_lshl_b32 s{S_TMP}, s{sSL}, 9
    v_add_u32 v{vSTO}, s{S_TMP}, v{vSTO}
    s_lshl_b32 s{sK1}, s{sSL}, 7
    s_lshl_b32 s{S_TMP}, s{S_WAVE}, 2
    s_add_u32 s{sK1}, s{sK1}, s{S_TMP}
    s_add_u32 s{sK1}, s{sK1}, {WS_FLAGS + FL_XA + NSEG * FL_STRIDE}
    s_mul_i32 s{S_TMP}, s{S_WAVE}, 6144
    v_add_u32 v{vRED}, s{S_TMP}, v{vL16}
    v_mov_b32 v{vMBT}, 0x10000
    s_mul_i32 s{S_TMP}, s{sSL}, 43
    v_lshrrev_b32 v{vA0 + 1}, 4, v{vL16}
    v_add_u32 v{vA0 + 1}, s{S_TMP}, v{vA0 + 1}
    v_min_u32 v{vA0 + 1}, 511, v{vA0 + 1}
    v_lshlrev_b32 v{vA0 + 1}, 7, v{vA0 + 1}
    s_cmp_gt_u32 s{S_WAVE}, 1
    s_cbranch_scc1 Ltw_z
    """)
    for z in (0, 1):
        nm = "LtwZ" if z else "LtwX"
        if z:
            a.label("Ltw_z")
            a.restore(([], []))
            a(f"""
            v_lshrrev_b32 v{vT0}, 1, v{vG}
            v_lshl_add_u32 v{vRES}, v{vT0}, 9, v{vRES}
            v_and_b32 v{vT0}, 1, v{vG}
            v_lshl_add_u32 v{vRES}, v{vT0}, 3, v{vRES}
            v_add_u32 v{vRES}, 2048, v{vRES}
            v_lshl_add_u32 v{vROW}, v{vG}, 3, v{vROW}
            v_add_u32 v{vROW}, 64, v{vROW}
            v_add_u32 v{vSTO}, 8, v{vSTO}
            """)
        else:
            a(f"v_lshl_add_u32 v{vRES}, v{vG}, 9, v{vRES}")
            a(f"v_lshl_add_u32 v{vROW}, v{vG}, 4, v{vROW}")
        st = "dwordx2" if z else "dwordx4"
        nq = 1 if z else 2
        nv = 4 * nq
        R = ACC
        RDL = [ACC + 8, ACC + 12, ACC + 16, ACC + 20, 56, 60, RING + 60, OUTP]
        RD = lambda k: RDL[k]

        def step1():
            return [f"s_cmp_lt_u32 s{sN1}, {TW_S0 - 1}", f"s_cselect_b32 s{sLEFT}, 1, 3"]

        def addr_next():
            return [f"s_lshl_b32 s{sO1}, s{sNO}, 18", f"s_add_u32 s{sO1}, s{sO1}, s{sWQ}",
                    f"s_mul_i32 s{sNX}, s{sNL}, {2 * X_BYTES}", f"s_mul_i32 s{S_TMP}, s{sNS}, {X_SEG}",
                    f"s_add_u32 s{sNX}, s{sNX}, s{S_TMP}", f"s_add_u32 s{sNX}, s{sNX}, {WS_X + X_BYTES}"]

        def ld(i, srd_):
            if i % 4 == 0:
                a(f"s_add_u32 s{sO3}, s{sO1}, {i * 1024}")
            a(f"buffer_load_dwordx4 {vr(RING + 4 * (i % 16), 4)}, v{vL16}, {srd_}, s{sO3} offen offset:{(i % 4) * 1024}")

        def touch(srd_):
            if TWT:
                a(f"buffer_load_dword v{vA0}, v{vA0 + 1}, {srd_}, s{sO1} offen")

        def first_loads(srd_):
            touch(srd_)
            for i in range(15):
                ld(i, srd_)
            a(f"buffer_load_{st} {vr(RES, nv // 2)}, v{vRES}, {srd_}, s{sNX} offen")

        def w0(fn, lab):
            if not z:
                a(f"s_cmp_lg_u32 s{S_WAVE}, 0")
                a(f"s_cbranch_scc1 {lab}")
                sn = a.snap()
                fn()
                a.restore(sn)
                a.label(lab)

        def post():
            a(f"v_mov_b32 v{vT0}, s{sDEC}")
            a(f"ds_write_b32 v{vMBT}, v{vT0}")

        a(f"""
        s_lshl_b32 s{sWQ}, s{S_WAVE}, 16
        s_add_u32 s{sWQ}, s{sWQ}, {WS_OF}
        s_mov_b32 s{sPEND}, 0
        s_mov_b32 s{SRD_C}, s{SRD_WS}
        s_mov_b32 s{SRD_C + 1}, s{SRD_WS + 1}
        s_mov_b32 s{SRD_C + 2}, 0
        s_mov_b32 s{SRD_C + 3}, 0x00020000
        s_mul_i32 s{S_TMP}, s{sK3}, 3072
        v_add_u32 v{vRD2}, s{S_TMP}, v{vL16}
        """)
        a(f"ds_write2_b32 v{vMBT}, v{vZERO}, v{vZERO} offset0:0 offset1:1")
        a.wait(lg=0)
        init_wait(a, None, vT0, vT1, abort, nm + "_ini")
        prof_init(a)
        if PROF == 3:
            a("s_memtime s[84:85]")
            a.force_wait(lg=0)
        a.label(nm + "_idle")
        a.restore(([], []))
        w0(lambda: (p3_begin(a), poll2(a, nm + "_p", abort, FL_OF, 0, TWX), p3_end(a, 3), post(), a.wait(lg=0)), nm + "_nw0")
        a("s_barrier")
        a(f"ds_read_b32 v{vT1}, v{vMBT}")
        a(f"v_xor_b32 v{vMBT}, 4, v{vMBT}")
        a(f"v_readfirstlane_b32 s{sDEC}, v{vT1}")
        a(f"s_cmp_eq_u32 s{sDEC}, 0")
        a(f"s_cbranch_scc1 {abort}")
        seq(a, step1(), take(sDEC, 2, f"s{sLEFT}"), addr_next(), f"s_cmp_ge_u32 s{sNS}, {NSEG}", f"s_cbranch_scc1 {abort}")
        first_loads(WS)
        for _ in range(nst_):
            a.vmq.append((frozenset(), "st"))
        a.label(nm + "_item")
        trace(a, vT0, vT1, True) if TRACE == 1 else None
        a(f"s_mov_b32 s{sCL}, s{sNL}")
        a(f"s_mov_b32 s{sCS}, s{sNS}")
        a(f"s_mov_b32 s{sO2}, s{sNX}")
        a.vmq = a.vmq[:16]
        for i in range(64):
            kk, tt = i >> 1, i & 1
            ld((i + 15) % 64, WS if i + 15 < 64 else PFS)
            b = vr(RING + 4 * (i % 16), 4)
            c = "0" if kk == 0 else None
            a(MF(ACC + 12 * tt, ar(8 * kk, 4), b, c))
            a(MF(ACC + 12 * tt + 4, ar(8 * kk + 4, 4), b, c))
            a(MF(ACC + 12 * tt + 8, vr(ZB + 4 * kk, 4), b, c))
            if i == 17:
                a(f"s_cmp_lg_u32 s{sPEND}, 0")
                a("s_cselect_b64 exec, 1, 0")
                a(f"buffer_store_dword v{vONE}, v{vZERO}, {WS}, s{sPEND} offen sc1")
                a("s_mov_b64 exec, -1")
                a(f"s_mov_b32 s{sPEND}, 0")
            if i == 26:
                w0(lambda: (cand_addr(a, FL_OF, TWX), sample2(a)), nm + "_nw1")
            if i == 44:
                w0(lambda: (decide(a, 0), post(), a.force_wait(lg=0)), nm + "_nw2")
                a("s_barrier")
                a(f"ds_read_b32 v{vT1}, v{vMBT}")
                a(f"v_xor_b32 v{vMBT}, 4, v{vMBT}")
            if i == 47:
                a(f"v_readfirstlane_b32 s{sDEC}, v{vT1}")
                seq(a, step1(), take(sDEC, 2, f"s{sLEFT}"))
            if i == 48:
                seq(a, f"s_cmp_lt_u32 s{sNS}, {NSEG}", f"s_cselect_b32 s{sDEC}, s{sDEC}, 0")
                seq(a, addr_next(), f"s_cmp_lg_u32 s{sDEC}, 0", f"s_cselect_b32 s{SRD_C + 2}, {WS_BYTES}, 0")
                touch(PFS)
        a.nop(6)
        for q in range(6):
            a(f"ds_write_b128 v{vRED}, {vr(ACC + 4 * q, 4)} offset:{q * 1024}")
        a.force_wait(lg=0)
        a("s_barrier")
        for wv in range(4):
            for q in range(nq):
                a(f"ds_read_b128 {vr(RD(wv * nq + q), 4)}, v{vRD2} offset:{wv * 6144 + (2 if z else q) * 1024}")
        a(f"v_xor_b32 v{vRED}, 0x8000, v{vRED}")
        a(f"v_xor_b32 v{vRD2}, 0x8000, v{vRD2}")
        if z:
            for i in range(2):
                a(f"v_lshlrev_b32 v{R + 2 * i}, 16, v{RES + i}")
                a(f"v_and_b32 v{R + 2 * i + 1}, 0xffff0000, v{RES + i}")
        else:
            for i in range(4):
                a(f"v_lshlrev_b32 v{R + i}, 16, v{RES + i}")
                a(f"v_and_b32 v{R + 4 + i}, 0xffff0000, v{RES + i}")
        a(f"buffer_load_{st} {vr(RES, nv // 2)}, v{vRES}, {PFS}, s{sNX} offen")
        for wv in range(4):
            for i in range(nv):
                a(f"v_add_f32 v{R + i}, v{R + i}, v{RD(wv * nq + i // 4) + i % 4}")
        if z:
            a(f"v_cvt_pk_bf16_f32 v{OUTP}, v{R}, v{R + 1}")
            a(f"v_cvt_pk_bf16_f32 v{OUTP + 1}, v{R + 2}, v{R + 3}")
        else:
            for i in range(4):
                a(f"v_cvt_pk_bf16_f32 v{OUTP + i}, v{R + i}, v{R + 4 + i}")
        a(f"s_cmp_eq_u32 s{sCL}, 0")
        a(f"s_cbranch_scc1 {nm}_l0")
        win = list(a.win)
        sn = a.snap()
        a(f"s_mul_i32 s{S_TMP}, s{sCS}, {32 * 1152}")
        a(f"buffer_store_{st} {vr(OUTP, nv // 2)}, v{vROW}, {OUTS}, s{S_TMP} offen sc1")
        a(f"s_cmp_lg_u32 s{sDEC}, 0")
        a(f"s_cbranch_scc1 {nm}_item")
        a.label(nm + "_chk")
        a(f"s_min_u32 s{S_TMP}, s{sN0}, s{sN1}")
        a(f"s_cmp_lt_u32 s{S_TMP}, {NSEG}")
        a(f"s_cbranch_scc1 {nm}_idle")
        trace(a, vT0, vT1, True) if TRACE != 4 else None
        if PROF == 3:
            a("s_memtime s[86:87]")
            a.force_wait(lg=0)
            a("s_sub_u32 s97, s86, s84")
        prof_dump(a, vT0, vT1)
        stamp_max(a, 7, vT0, vT1)
        a(f"s_branch {done}")
        a.label(nm + "_l0")
        a.win = win
        a.restore(sn)
        a(f"s_add_u32 s{sO2}, s{sO2}, {X_BYTES}")
        a(f"buffer_store_{st} {vr(OUTP, nv // 2)}, v{vRES}, {WS}, s{sO2} offen sc1")
        a(f"v_add_f32 v{SS}, v{R}, v{R + 1}")
        a(f"v_mul_f32 v{SS + 1}, v{R}, v{R}")
        a(f"v_fmac_f32 v{SS + 1}, v{R + 1}, v{R + 1}")
        for i in range(2, nv):
            a(f"v_add_f32 v{SS}, v{SS}, v{R + i}")
            a(f"v_fmac_f32 v{SS + 1}, v{R + i}, v{R + i}")
        for sw in (32, 16):
            seq(a, f"v_mov_b32 v{SS + 2}, v{SS}", f"v_mov_b32 v{SS + 3}, v{SS + 1}",
                f"v_permlane{sw}_swap_b32 v{SS}, v{SS + 2}", f"v_permlane{sw}_swap_b32 v{SS + 1}, v{SS + 3}",
                f"v_add_f32 v{SS}, v{SS}, v{SS + 2}", f"v_add_f32 v{SS + 1}, v{SS + 1}, v{SS + 3}")
        a(f"""
        s_mul_i32 s{S_TMP}, s{sCS}, {ST_SEG}
        s_add_u32 s{S_TMP}, s{S_TMP}, {WS_ST + 2 * ST_BYTES}
        s_mov_b64 exec, 0xffff
        buffer_store_dwordx2 {vr(SS, 2)}, v{vSTO}, {WS}, s{S_TMP} offen sc1
        s_mov_b64 exec, -1
        s_mul_i32 s{sPEND}, s{sCS}, {FL_STRIDE}
        s_add_u32 s{sPEND}, s{sPEND}, s{sK1}
        """)
        trace_at(a, sCS, vT0, vZERO)
        a(f"s_cmp_lg_u32 s{sDEC}, 0")
        a(f"s_cbranch_scc1 {nm}_item")
        a.force_wait(vm=0)
        flag_out(a, sPEND)
        a(f"s_mov_b32 s{sPEND}, 0")
        a(f"s_branch {nm}_chk")
```

```python
import sys, os
from common import *
if os.environ.get('RV', '2') == '2':
    import role_r2 as R
else:
    import role_r as R
import pool, role_t

MAIN = KNAME + "_kernel"
WARM = int(os.environ.get("WARM", "1"))
FREERUN = int(os.environ.get("FREERUN", "0"))
INIT = "init_kernel"
TA3 = os.environ.get("TA3", "1") == "1"
if TA3:
    ROLE_MAP = {2: [("W", 24), ("P", 8)], 3: [("W", 12), ("P", 20)], 4: [("A", 16), ("O", 3), ("P", 13)],
                5: [("A", 16), ("O", 3), ("P", 13)], 6: [("T", 11), ("P", 21)], 7: [("T", 11), ("P", 21)]}
else:
    ROLE_MAP = {2: [("W", 24), ("P", 8)], 3: [("W", 12), ("P", 20)], 4: [("A", 16), ("O", 5), ("P", 11)],
                5: [("A", 16), ("O", 5), ("P", 11)], 6: [("T", 8), ("P", 23)], 7: [("T", 8), ("P", 23)]}


def kd(name, vgpr, acc, sgpr=102):
    return f""".p2align 6
.amdhsa_kernel {name}
  .amdhsa_next_free_vgpr {vgpr}
  .amdhsa_next_free_sgpr {sgpr}
  .amdhsa_accum_offset {acc}
  .amdhsa_group_segment_fixed_size 0
  .amdhsa_kernarg_size 104
  .amdhsa_user_sgpr_count 2
  .amdhsa_user_sgpr_kernarg_segment_ptr 1
  .amdhsa_system_sgpr_workgroup_id_x 1
.end_amdhsa_kernel
"""


def pool_init(a):
    WS = f"s[{SRD_WS}:{SRD_WS + 3}]"
    Q_ = 6
    if WARM:
        srd(a, SRD_A, KA_WQKV, 576 * 3456)
        srd(a, SRD_B, KA_WO, 576 * 1152)
        a(f"s_sub_u32 s41, 191, s{Q_}")
        a(f"s_lshl_b32 s41, s41, 15")
        a(f"v_lshlrev_b32 v254, 7, v0")
        a(f"buffer_load_dword v255, v254, s[{SRD_A}:{SRD_A + 3}], s41 offen")
        a(f"s_sub_u32 s41, s41, {61 * 32768}")
        a(f"s_cmp_lt_u32 s41, {21 * 32768}")
        a(f"s_cselect_b32 s41, s41, 0x7f000000")
        a(f"buffer_load_dword v255, v254, s[{SRD_B}:{SRD_B + 3}], s41 offen")
        if WARM & 2:
            for ka in (KA_WQ, KA_WK, KA_WV, KA_BWO):
                srd(a, SRD_A, ka, 576 * 8192)
                a(f"s_mul_i32 s41, s{Q_}, {192 * 128}")
                a("s_mov_b64 exec, s[42:43]") if False else None
                a(f"v_cmp_gt_u32 vcc, 192, v0")
                a(f"v_cndmask_b32 v253, v252, v254, vcc") if False else None
                a(f"buffer_load_dword v255, v254, s[{SRD_A}:{SRD_A + 3}], s41 offen")
        a.vmq = []
    a(f"s_cmp_ge_u32 s{Q_}, {N_POOL}")
    a("s_cbranch_scc1 Li_end")
    a(f"""
    v_lshlrev_b32 v7, 4, v0
    v_mov_b32 v12, 0
    v_mov_b32 v13, 0
    v_mov_b32 v14, 0
    v_mov_b32 v15, 0
    s_cmp_ge_u32 s{Q_}, 64
    s_cbranch_scc1 Li_rest
    """)
    srd(a, SRD_A, KA_X, 2048 * 1152)
    a(f"""
    v_and_b32 v1, 31, v0
    v_lshrrev_b32 v2, 5, v0
    v_mul_u32_u24 v3, 1152, v1
    v_mul_u32_u24 v5, 144, v2
    v_add_u32 v3, v3, v5
    s_mul_i32 s41, s{Q_}, {32 * 1152}
    """)
    for i in range(9):
        a(f"buffer_load_dwordx4 {vr(64 + 4 * i, 4)}, v3, s[{SRD_A}:{SRD_A + 3}], s41 offen offset:{16 * i}")
    a(f"""
    v_mul_u32_u24 v4, {9 * 512}, v2
    v_lshl_add_u32 v4, v1, 4, v4
    s_mul_i32 s41, s{Q_}, {X_SEG}
    s_add_u32 s41, s41, {WS_X}
    s_mul_i32 s42, s{Q_}, {ST_SEG}
    s_add_u32 s42, s42, {WS_ST}
    s_add_u32 s43, s42, 2048
    s_add_u32 s44, s42, {ST_BYTES + 9 * 512}
    v_mov_b32 v60, 0
    v_mov_b32 v61, 0
    """)
    for i in range(9):
        if i == 8:
            a("v_add_u32 v4, 4096, v4")
        a(f"buffer_store_dwordx4 {vr(64 + 4 * i, 4)}, v4, {WS}, s41 offen offset:{512 * (i % 8)} sc1")
    a(f"buffer_store_dwordx4 v[12:15], v7, {WS}, s43 offen sc1")
    a("v_cmp_gt_u32 vcc, 96, v0")
    a("s_and_saveexec_b64 s[46:47], vcc")
    a("s_cbranch_execz Li_z1")
    a(f"buffer_store_dwordx4 v[12:15], v7, {WS}, s44 offen sc1")
    a.label("Li_z1")
    a("s_mov_b64 exec, s[46:47]")
    a("v_mov_b32 v62, 0x3f803f80")
    for r in range(64, 100):
        a(f"v_dot2c_f32_bf16 v60, v{r}, v62")
        a(f"v_dot2c_f32_bf16 v61, v{r}, v{r}")
    a.nop(4)
    a(f"""
    v_lshrrev_b32 v5, 1, v2
    v_lshlrev_b32 v5, 9, v5
    v_lshl_add_u32 v5, v1, 4, v5
    v_and_b32 v6, 1, v2
    v_lshl_add_u32 v5, v6, 3, v5
    buffer_store_dwordx2 v[60:61], v5, {WS}, s42 offen sc1
    s_branch Li_flags
    Li_rest:
    """)
    a.restore(([], []))
    a(f"""
    s_cmp_ge_u32 s{Q_}, 128
    s_cbranch_scc1 Li_flags
    s_sub_u32 s41, s{Q_}, 64
    s_mul_i32 s41, s41, {ST_SEG}
    s_add_u32 s41, s41, {WS_ST + 3 * ST_BYTES + 9 * 512}
    v_cmp_gt_u32 vcc, 96, v0
    s_and_saveexec_b64 s[42:43], vcc
    s_cbranch_execz Li_rest2
    buffer_store_dwordx4 v[12:15], v7, {WS}, s41 offen sc1
    Li_rest2:
    s_mov_b64 exec, s[42:43]
    Li_flags:
    """)
    a.restore(([], []))
    a(f"""
    v_cmp_gt_u32 vcc, 96, v0
    s_cmp_lt_u32 s{Q_}, 64
    s_cselect_b64 s[42:43], -1, 0
    s_and_b64 vcc, vcc, s[42:43]
    s_cmp_lt_u32 s{Q_}, 128
    s_cselect_b32 s44, {FREERUN}, 0
    v_mov_b32 v12, s44
    v_mov_b32 v13, s44
    v_mov_b32 v14, s44
    v_mov_b32 v15, s44
    v_mov_b32 v9, 1
    v_cndmask_b32 v8, v12, v9, vcc
    v_mov_b32 v9, v8
    v_mov_b32 v10, v8
    v_mov_b32 v11, v8
    s_mul_i32 s41, s{Q_}, {FL_STRIDE}
    s_sub_u32 s42, s{Q_}, 128
    s_lshl_b32 s42, s42, 12
    s_add_u32 s42, s42, {WS_ZERO}
    s_cmp_ge_u32 s{Q_}, 128
    s_cselect_b32 s41, s42, s41
    buffer_store_dwordx4 v[8:11], v7, {WS}, s41 offen sc1
    s_cbranch_scc1 Li_nofl
    """)
    for i in range(1, 6):
        a(f"s_add_u32 s41, s41, 4096")
        if i == 5:
            a("v_cmp_gt_u32 vcc, 128, v0")
            a("s_and_saveexec_b64 s[42:43], vcc")
            a("s_cbranch_execz Li_fl5")
        a(f"buffer_store_dwordx4 v[12:15], v7, {WS}, s41 offen sc1")
    a("Li_fl5:")
    a("s_mov_b64 exec, s[42:43]")
    a("Li_nofl:")
    trace6(a, 60, 61)
    a.force_wait(vm=0)
    a("s_barrier")
    trace6(a, 60, 61)
    a(f"s_cmp_lg_u32 s{S_WAVE}, 0")
    a("s_cbranch_scc1 Li_end")
    a(f"s_sub_u32 s41, s{Q_}, 64")
    a(f"s_cmp_lt_u32 s41, 64")
    a("s_cbranch_scc1 Li_l1")
    dbg_add(a, DB_POOLA, 2, 3)
    a("s_branch Li_end")
    a.label("Li_l1")
    dbg_add(a, DB_POOL, 2, 3)
    a.label("Li_end")
    trace6(a, 60, 61)
    a.restore(([], []))


def gen_main(a, stamps=0, dbg_roles=None):
    WS = f"s[{SRD_WS}:{SRD_WS + 3}]"
    a.text(f".globl {MAIN}\n.p2align 8\n.type {MAIN},@function")
    a.label(MAIN)
    a.reset_window()
    sX, sTK = 3, 4
    DBG = f"s[{S_DBG}:{S_DBG + 1}]"
    a("s_cmp_ge_u32 s2, 256")
    a("s_cbranch_scc1 L_exit")
    srd(a, SRD_WS, KA_WS, WS_BYTES)
    a(f"""
    s_load_dwordx2 s[{S_DBG}:{S_DBG + 1}], s[0:1], {KA_DBG}
    v_lshrrev_b32 v1, 6, v0
    s_getreg_b32 s{sX}, hwreg(HW_REG_XCC_ID)
    v_readfirstlane_b32 s{S_WAVE}, v1
    s_and_b32 s{sX}, s{sX}, {6 if os.environ.get('FAKEX') else 7}
    s_and_b32 s{S_TMP}, s{sX}, 1
    s_lshl_b32 s{S_TMP}, s{S_TMP}, 7
    s_lshl_b32 s{S_TMP + 1}, s{sX}, 1
    s_and_b32 s{S_TMP + 1}, s{S_TMP + 1}, 12
    s_add_u32 s{S_TMP}, s{S_TMP}, s{S_TMP + 1}
    v_mov_b32 v2, 0
    v_mov_b32 v3, 1
    v_mov_b32 v4, s{S_TMP}
    s_mov_b32 s{R.sSTEP}, 0
    s_waitcnt lgkmcnt(0)
    s_cmp_lg_u32 s{S_WAVE}, 0
    s_cbranch_scc1 L_tk_wait
    s_mov_b64 exec, 1
    global_atomic_add v3, v4, v3, {DBG} sc0
    v_readfirstlane_b32 s{sTK}, v3
    s_cmp_lt_u32 s{sTK}, 32
    s_cbranch_scc1 L_tk_have
    """)
    a(f"""
    v_mov_b32 v3, 1
    v_mov_b32 v4, {DB_HOMELESS}
    global_atomic_add v3, v4, v3, {DBG} sc0
    v_readfirstlane_b32 s5, v3
    s_mov_b64 exec, 0xff
    v_and_b32 v4, 1, v0
    v_lshlrev_b32 v4, 7, v4
    v_lshlrev_b32 v5, 1, v0
    v_and_or_b32 v4, v5, 12, v4
    s_mov_b32 s{S_SPIN}, 0
    L_hl_poll:
    global_load_dword v5, v4, {DBG} sc1
    """)
    spin_check(a, "L_abort")
    a("s_mov_b32 s6, 0")
    for i in range(8):
        a(f"v_readlane_b32 s{40 + i}, v5, {i}")
        a(f"s_add_u32 s6, s6, s{40 + i}")
    a(f"""
    s_cmp_lt_u32 s6, 256
    s_cbranch_scc1 L_hl_poll
    s_mov_b32 s{sX}, 0
    s_mov_b32 s{sTK}, 0
    """)
    for i in range(7, -1, -1):
        a(f"""
        s_min_u32 s6, s{40 + i}, 32
        s_sub_u32 s7, 32, s6
        s_cmp_lt_u32 s5, s7
        s_cselect_b32 s{sX}, {i}, s{sX}
        s_add_u32 s6, s6, s5
        s_cmp_lt_u32 s5, s7
        s_cselect_b32 s{sTK}, s6, s{sTK}
        s_sub_u32 s5, s5, s7
        """)
    a(f"""
    L_tk_have:
    s_lshl_b32 s5, s{sX}, 8
    s_or_b32 s5, s5, s{sTK}
    v_mov_b32 v3, s5
    s_mov_b64 exec, 1
    ds_write_b32 v2, v3
    s_mov_b64 exec, -1
    L_tk_wait:
    """)
    a.force_wait(vm=0, lg=0)
    a("s_barrier")
    a("ds_read_b32 v3, v2")
    a(f"v_readfirstlane_b32 s5, v3")
    a(f"s_lshr_b32 s{sX}, s5, 8")
    a(f"s_and_b32 s{sTK}, s5, 255")
    a("s_barrier")
    trace_init(a)
    if DBGT:
        a("s_memrealtime s[6:7]")
        a.force_wait(lg=0)
        a("s_mov_b32 s5, s6")
    trace(a, 2, 3, True)
    en = dbg_roles or "RPWTAO"

    def tgt(ch, lab):
        return lab if ch in en else "L_exit"
    LAB = {"P": "L_role_p", "W": "L_role_tw", "T": "L_role_ta", "A": "L_role_aq", "O": "L_role_awo"}
    a(f"s_cmp_lt_u32 s{sX}, 2")
    a(f"s_cbranch_scc1 {tgt('R', 'L_role_r')}")
    a(f"s_sub_u32 s6, s{sX}, 2")
    a(f"s_lshl_b32 s6, s6, 5")
    a(f"s_add_u32 s6, s6, s{sTK}")
    pool_init(a)
    base = {k: 0 for k in LAB}
    for cls, lst in ROLE_MAP.items():
        a(f"s_cmp_lg_u32 s{sX}, {cls}")
        a(f"s_cbranch_scc1 L_cls{cls}_no")
        t0 = 0
        for ch, n in lst:
            a(f"s_add_u32 s{S_ROLE}, s{sTK}, {(base[ch] - t0) & 0xffffffff}")
            a(f"s_cmp_lt_u32 s{sTK}, {t0 + n}")
            a(f"s_cbranch_scc1 {tgt(ch, LAB[ch])}")
            base[ch] += n
            t0 += n
        a("s_endpgm")
        a.label(f"L_cls{cls}_no")
    assert base == ({"P": 96, "W": 36, "T": 22, "A": 32, "O": 6} if TA3 else {"P": 96, "W": 36, "T": 16, "A": 32, "O": 10}), base
    a(f"""
    L_exit:
    s_endpgm
    L_abort:
    """)
    a.force_wait(lg=0)
    a(f"""
    s_mov_b64 exec, -1
    v_mov_b32 v0, {DB_ABORT}
    s_lshl_b32 s5, s{sX}, 8
    s_or_b32 s5, s5, s{sTK}
    s_or_b32 s5, s5, 0x10000
    v_mov_b32 v1, s5
    global_store_dword v0, v1, s[{S_DBG}:{S_DBG + 1}]
    s_endpgm
    """)
    for ch, lab, fn in (("P", "L_role_p", pool.role_p2 if os.environ.get("PV", "2") == "2" else pool.role_p), ("O", "L_role_awo", pool.role_awo2 if TA3 else pool.role_awo), ("A", "L_role_aq", pool.role_aq),
                        ("T", "L_role_ta", role_t.role_ta), ("W", "L_role_tw", role_t.role_tw)):
        if ch not in en:
            continue
        a.text(".p2align 6")
        a.label(lab)
        a.reset_window()
        fn(a, f"{lab}_abort", f"{lab}_exit")
        a.label(f"{lab}_abort")
        a("s_branch L_abort") if False else far_jump(a, "L_abort")
        a.label(f"{lab}_exit")
        trace(a, 2, 3, True) if (FREERUN or TRACE == 2) else None
        a("s_endpgm")
    if "R" in en:
        a.text(".p2align 6")
        a.label("L_role_r")
        a.reset_window()
        a(f"s_mov_b32 s{R.sLAY}, s{sX}")
        a(f"s_mov_b32 s{R.sH}, s{sTK}")
        R.r_setup(a)
        a(f"""
        s_mov_b64 exec, 0xff
        v_lshrrev_b32 v14, 2, v{R.vL16}
        v_lshlrev_b32 v12, 5, v14
        v_and_b32 v12, 128, v12
        v_lshrrev_b32 v13, 1, v14
        v_and_or_b32 v12, v13, 12, v12
        s_mov_b32 s{S_SPIN}, 0
        L_pure:
        global_load_dword v13, v12, {DBG} sc1
        """)
        spin_check(a, "Lr_abort")
        a("s_mov_b32 s6, 0")
        for i in range(8):
            a(f"v_readlane_b32 s7, v13, {i}")
            a(f"s_add_u32 s6, s6, s7")
        a(f"""
        v_readlane_b32 s7, v13, s{R.sLAY}
        s_cmp_ge_u32 s7, 32
        s_cselect_b32 s{R.sFAST}, {0 if os.environ.get('FAKEX') or os.environ.get('SLOW') else 1}, 0
        s_cselect_b32 s6, 256, s6
        s_cmp_lt_u32 s6, 256
        s_cbranch_scc1 L_pure
        s_mov_b64 exec, -1
        s_lshl_b32 s6, s{R.sLAY}, 2
        s_add_u32 s6, s6, {DB_TEAM}
        """)
        dbg_wait(a, "s6", 32, 12, 13, "Lr_abort", "L_team")
        dbg_wait(a, DB_POOLA, N_POOLA, 12, 13, "Lr_abort", "L_rpoola")
        a(f"s_cmp_eq_u32 s{R.sLAY}, 0")
        a("s_cbranch_scc1 L_rpool_skip")
        dbg_wait(a, DB_POOL, N_POOLB, 12, 13, "Lr_abort", "L_rpool")
        a.label("L_rpool_skip")
        a("s_barrier")
        trace(a, 12, 13, True)
        stamp_max(a, 4, 12, 13, (R.sLAY, 0))
        for fast in (1, 0):
            if fast:
                a(f"s_cmp_eq_u32 s{R.sFAST}, 0")
                a("s_cbranch_scc1 L_slow")
            else:
                a.label("L_slow")
            for w in range(4):
                if w < 3:
                    a(f"s_cmp_lg_u32 s{S_WAVE}, {w}")
                    a(f"s_cbranch_scc1 L_w{w + 1}_{fast}")
                a.restore(([], []))
                R.r_loop(a, w, fast, "Lr_abort", "Lr_exit", stamps)
                if w < 3:
                    a.label(f"L_w{w + 1}_{fast}")
        a.label("Lr_abort")
        far_jump(a, "L_abort")
        a.label("Lr_exit")
        a("s_endpgm")


def far_jump(a, lab):
    a.force_wait(lg=0)
    a(f"""
    s_mov_b64 exec, -1
    v_mov_b32 v0, {DB_ABORT}
    s_lshl_b32 s5, s3, 8
    s_or_b32 s5, s5, s4
    s_or_b32 s5, s5, 0x10000
    v_mov_b32 v1, s5
    global_store_dword v0, v1, s[{S_DBG}:{S_DBG + 1}]
    s_endpgm
    """)


def build(stamps=0, dbg_roles=None):
    a = Asm()
    hdr = open(os.path.join(os.path.dirname(__file__), "..", KNAME + ".s.ref")).read().split("; Override launch")[0]
    a.text(hdr.rstrip())
    a.text("; @launch grid=(256,1,1) block=(256,1,1) lds=163840")
    a.text('.amdgcn_target "amdgcn-amd-amdhsa--gfx950"\n.text')
    gen_main(a, stamps, dbg_roles)
    a.text('.section .rodata,"a"')
    a.text(kd(MAIN, 512, 256))
    return a.render()


if __name__ == "__main__":
    out = sys.argv[1]
    open(out, "w").write(build(int(os.environ.get("STAMPS", "0")), os.environ.get("ROLES")))
```

```python
from asmlib import *

KNAME = "interleave_layers__sliding_local_dilated__memory_aug_recurrent_mem_tr__prompt"
NSEG = 64
KA_X, KA_WQKV, KA_WO, KA_BX, KA_MEM0, KA_WQ, KA_WK, KA_WV, KA_BWO, KA_SEG, KA_OUT, KA_DBG, KA_WS = [8 * i for i in range(13)]

WS_BYTES = 268435456
WS_FLAGS = 0
FL_STRIDE = 0x5800
FL_XA, FL_OA, FL_XB, FL_OF, FL_QKV = 0, 1536, 3584, 4224, 5376
WS_ZERO = 0x2C0000
FLAGS_BYTES = 0x2D0000
WS_DUMMY = 0x300000
WS_RING = 0x400000
RING_TEAM = 0x100000
PART_SLOT = 0x80000
import os
PART_H = int(os.environ.get("PARTH", "12288"))
MEMB_OFF = 0xF0000
MEMB_SLOT = 0x4000
WS_X = 0x600000
X_BYTES = 0x240000
X_SEG = 36864
WS_ST = WS_X + 4 * X_BYTES
ST_SEG = 12 * 32 * 16
ST_BYTES = NSEG * ST_SEG
WS_OA = WS_ST + 4 * ST_BYTES
WS_AW = WS_OA + 2 * X_BYTES
WS_KM = 0x1A00000
KM_UNIT = 4096
WS_QKV = WS_KM + 2 * NSEG * 32 * KM_UNIT
QKV_M = NSEG * 32 * 8192
WS_OF = WS_QKV + 6 * QKV_M
WS_END = WS_OF + 2 * QKV_M
assert WS_AW + 32 * 90 * 1024 <= WS_KM
assert WS_END <= WS_BYTES, WS_END

RV2 = os.environ.get("RV", "2") == "2"
SPIN_MAX = int(os.environ.get("SPIN_MAX", "100000"))

S_KARG = 0
S_WG = 2
SRD_WS = 8
S_DBG = 12
S_WAVE = 14
S_ROLE = 15
S_SPIN = 16
S_TMP = 17
SRD_A = 20
SRD_B = 24
SRD_C = 28
S_FREE = 32


def srd(a, base, ka_off, nbytes):
    a(f"s_load_dwordx2 s[{base}:{base + 1}], s[0:1], {ka_off}")
    a(f"s_mov_b32 s{base + 2}, {nbytes}")
    a(f"s_mov_b32 s{base + 3}, 0x00020000")
    a.force_wait(lg=0)
    a(f"s_and_b32 s{base + 1}, s{base + 1}, 0xffff")


def spin_check(a, abort_label):
    a(f"s_add_u32 s{S_SPIN}, s{S_SPIN}, 1")
    a(f"s_cmp_gt_u32 s{S_SPIN}, {SPIN_MAX}")
    a(f"s_cbranch_scc1 {abort_label}")


TRACE = int(os.environ.get("TRACE", "0"))
WS_TRACE = WS_END


def trace_init(a):
    if TRACE:
        a(f"s_lshl_b32 s5, s3, 5")
        a(f"s_add_u32 s5, s5, s4")
        a(f"s_lshl_b32 s5, s5, 2")
        a(f"s_add_u32 s5, s5, s{S_WAVE}")
        a(f"s_lshl_b32 s5, s5, 10")
        a(f"s_add_u32 s5, s5, {WS_TRACE}")


def trace(a, v0, v1, light=False):
    if TRACE in (1, 3) or (TRACE in (2, 4, 6) and light):
        a("s_memrealtime s[6:7]")
        a.force_wait(lg=0)
        a(f"v_mov_b32 v{v0}, s6")
        a(f"v_mov_b32 v{v1}, 0")
        a("s_mov_b64 exec, 1")
        a(f"buffer_store_dword v{v0}, v{v1}, s[{SRD_WS}:{SRD_WS + 3}], s5 offen")
        a("s_mov_b64 exec, -1")
        a("s_add_u32 s5, s5, 4")


PROF = int(os.environ.get("PROF", "0"))


def p3_begin(a):
    if PROF == 3:
        a("s_memtime s[88:89]")
        a.force_wait(lg=0)


def p3_end(a, k):
    if PROF == 3:
        a("s_memtime s[86:87]")
        a.force_wait(lg=0)
        a("s_sub_u32 s86, s86, s88")
        a(f"s_add_u32 s{90 + k}, s{90 + k}, s86")


def prof_begin(a):
    if PROF in (1, 2):
        a("s_memtime s[88:89]")
        a.force_wait(lg=0)


def prof_end(a, k):
    if PROF in (1, 2):
        a("s_memtime s[86:87]")
        a.force_wait(lg=0)
        a("s_sub_u32 s86, s86, s88")
        a(f"s_add_u32 s{90 + k}, s{90 + k}, s86")


def prof_init(a):
    if PROF:
        for k in range(8):
            a(f"s_mov_b32 s{90 + k}, 0")


def prof_dump(a, v0, v1):
    if PROF:
        a(f"s_lshl_b32 s5, s3, 5")
        a(f"s_add_u32 s5, s5, s4")
        a(f"s_lshl_b32 s5, s5, 2")
        a(f"s_add_u32 s5, s5, s{S_WAVE}")
        a(f"s_lshl_b32 s5, s5, 5")
        a(f"s_add_u32 s5, s5, {WS_TRACE}")
        for k in range(8):
            a(f"v_writelane_b32 v{v0}, s{90 + k}, {k}")
        a(f"v_mbcnt_lo_u32_b32 v{v1}, -1, 0")
        a(f"v_lshlrev_b32 v{v1}, 2, v{v1}")
        a("s_mov_b64 exec, 0xff")
        a(f"buffer_store_dword v{v0}, v{v1}, s[{SRD_WS}:{SRD_WS + 3}], s5 offen")
        a("s_mov_b64 exec, -1")


def wait_units(a, lab):
    a.label(lab)
    a("s_cmp_eq_u32 s6, 0")
    a(f"s_cbranch_scc1 {lab}_d")
    a("s_sleep 127")
    a("s_sub_u32 s6, s6, 1")
    a(f"s_branch {lab}")
    a.label(lab + "_d")


DB_TICKET = 0
DB_HOMELESS = 32
DB_ABORT = 60
DB_POOL = 160
DB_POOLA = 40
DB_LOADED = 48
ORDER = int(os.environ.get('ORDER', '0'))
GATE = int(os.environ.get('GATE', '15'))
GJOB = int(os.environ.get('GJOB', '12'))


def gate(a, bit, cond_sreg, v0, v1, abort, name):
    if GATE & bit:
        if cond_sreg is not None:
            a(f"s_cmp_eq_u32 s{cond_sreg}, 0")
            a(f"s_cbranch_scc1 {name}_ng")
        dbg_wait(a, DB_LOADED, 32, v0, v1, abort, name, 100)
        if cond_sreg is not None:
            a.label(name + "_ng")

DB_TEAM = 192
N_POOL = 136
N_POOLA = 72
N_POOLB = 64
SRD_DBG = 4


def dbg_add(a, off, v0, v1):
    a(f"v_mov_b32 v{v0}, {off}" if isinstance(off, int) else f"v_mov_b32 v{v0}, {off}")
    a(f"v_mov_b32 v{v1}, 1")
    a("s_mov_b64 exec, 1")
    a(f"global_atomic_add v{v0}, v{v1}, s[{S_DBG}:{S_DBG + 1}]")
    a("s_mov_b64 exec, -1")


def dbg_wait(a, off, target, v0, v1, abort, name, slp=8):
    a(f"s_cmp_lg_u32 s{S_WAVE}, 0")
    a(f"s_cbranch_scc1 {name}_d")
    a(f"v_mov_b32 v{v0}, {off}")
    a(f"s_mov_b32 s{S_SPIN}, 0")
    a.label(name)
    a(f"global_load_dword v{v1}, v{v0}, s[{S_DBG}:{S_DBG + 1}] sc1")
    spin_check(a, abort)
    a(f"v_cmp_gt_u32 vcc, {target}, v{v1}")
    a(f"s_cbranch_vccz {name}_d")
    a(f"s_sleep {slp}")
    a(f"s_branch {name}")
    a.label(name + "_d")
    a("s_barrier")


def trace_at(a, sidx, v0, vz):
    if TRACE == 4:
        a("s_memrealtime s[6:7]")
        a.force_wait(lg=0)
        a(f"s_lshl_b32 s7, s{sidx}, 2")
        a(f"s_add_u32 s7, s7, s5")
        a(f"v_mov_b32 v{v0}, s6")
        a("s_mov_b64 exec, 1")
        a(f"buffer_store_dword v{v0}, v{vz}, s[{SRD_WS}:{SRD_WS + 3}], s7 offen offset:12")
        a("s_mov_b64 exec, -1")


DBGT = int(os.environ.get("DBGT", "0"))


def stamp_max(a, word, v0, v1, cond=None):
    if DBGT:
        a("s_memrealtime s[6:7]")
        a.force_wait(lg=0)
        a("s_sub_u32 s6, s6, s5")
        if cond:
            a(f"s_cmp_eq_u32 s{cond[0]}, {cond[1]}")
            a("s_cselect_b32 s6, s6, 0")
        a(f"v_mov_b32 v{v0}, {word}" if isinstance(word, str) else f"v_mov_b32 v{v0}, {4 * word}")
        a(f"v_mov_b32 v{v1}, s6")
        a("s_mov_b64 exec, 1")
        a(f"global_atomic_umax v{v0}, v{v1}, s[{S_DBG}:{S_DBG + 1}]")
        a("s_mov_b64 exec, -1")


def trace6(a, v0, v1):
    if TRACE == 6:
        a("s_memrealtime s[76:77]")
        a.force_wait(lg=0)
        a(f"v_mov_b32 v{v0}, s76")
        a(f"v_mov_b32 v{v1}, 0")
        a("s_mov_b64 exec, 1")
        a(f"buffer_store_dword v{v0}, v{v1}, s[{SRD_WS}:{SRD_WS + 3}], s5 offen")
        a("s_mov_b64 exec, -1")
        a("s_add_u32 s5, s5, 4")


def init_wait(a, cond_sreg, v0, v1, abort, name):
    dbg_wait(a, DB_POOLA, N_POOLA, v0, v1, abort, name + "a")
    if cond_sreg is not None:
        a(f"s_cmp_eq_u32 s{cond_sreg}, 0")
        a(f"s_cbranch_scc1 {name}_sk")
    dbg_wait(a, DB_POOL, N_POOLB, v0, v1, abort, name + "b")
    if cond_sreg is not None:
        a.label(name + "_sk")


def class_impure(a, pair, vL16, v0, v1, abort, name):
    a(f"""
    s_mov_b64 exec, 0xff
    v_lshrrev_b32 v{v1}, 2, v{vL16}
    v_lshlrev_b32 v{v0}, 5, v{v1}
    v_and_b32 v{v0}, 128, v{v0}
    v_lshrrev_b32 v{v1}, 1, v{v1}
    v_and_or_b32 v{v0}, v{v1}, 12, v{v0}
    s_mov_b32 s{S_SPIN}, 0
    """)
    a.label(name)
    a(f"global_load_dword v{v1}, v{v0}, s[{S_DBG}:{S_DBG + 1}] sc1")
    spin_check(a, abort)
    a("s_mov_b32 s6, 0")
    for i in range(8):
        a(f"v_readlane_b32 s7, v{v1}, {i}")
        a("s_add_u32 s6, s6, s7")
    a(f"v_readlane_b32 s7, v{v1}, s3")
    a("s_cmp_ge_u32 s7, 32")
    a(f"s_cselect_b32 s{pair}, {-1 if os.environ.get('FAKEX') or os.environ.get('SLOW') else 0}, -1")
    a("s_cselect_b32 s6, 256, s6")
    a("s_cmp_lt_u32 s6, 256")
    a(f"s_cbranch_scc1 {name}")
    a(f"s_mov_b32 s{pair + 1}, s{pair}")
    a("s_mov_b64 exec, -1")
```

```python
from common import *
import struct

WS = f"s[{SRD_WS}:{SRD_WS + 3}]"
L0_AP = 16
L0_T = 16
SLP = int(os.environ.get("SLP", "4"))
EARLYF = int(os.environ.get("EARLYF", "0"))


def f32bits(x):
    return struct.unpack("<I", struct.pack("<f", x))[0]


sN0, sN1 = S_FREE, S_FREE + 1
sCL, sCS = S_FREE + 2, S_FREE + 3
sNL, sNS = S_FREE + 4, S_FREE + 5
sLEFT = S_FREE + 6
sPF = S_FREE + 7
sBUF = S_FREE + 8
sNX = S_FREE + 9
sNFL = S_FREE + 10
sPEND = S_FREE + 11
sSELX, sSELY = S_FREE + 12, S_FREE + 13
sO1, sO2, sO3 = S_FREE + 14, S_FREE + 15, S_FREE + 16
sK1, sK2, sK3, sK4 = S_FREE + 17, S_FREE + 18, S_FREE + 19, S_FREE + 20
sE = S_FREE + 22
sNO = S_FREE + 24
sCO = S_FREE + 25
sWQ = S_FREE + 26
sOB = S_FREE + 27
sF0, sF1, sDEC = S_FREE + 28, S_FREE + 29, S_FREE + 30
sLAYS = S_FREE + 31
sSB, sW1K = S_FREE + 34, S_FREE + 35
sX0, sX1 = S_FREE + 32, S_FREE + 33

vL16, vFLA, vFLV, vONE, vZERO, vT0, vT1, vC, vG = range(9)
XBUF = X_SEG


def seq(a, *items):
    for it in items:
        if isinstance(it, (list, tuple)):
            seq(a, *it)
        elif callable(it):
            it()
        elif it:
            a(it)


def MF(acc, A, B, C=None):
    return f"v_mfma_f32_16x16x32_bf16 {vr(acc, 4)}, {A}, {B}, {vr(acc, 4) if C is None else C}"


def lane_setup(a, nflags):
    a(f"""
    v_and_b32 v{vT0}, 63, v0
    v_lshlrev_b32 v{vL16}, 4, v{vT0}
    v_and_b32 v{vC}, 15, v{vT0}
    v_lshrrev_b32 v{vG}, 4, v{vT0}
    v_min_u32 v{vFLA}, {nflags - 1}, v{vT0}
    v_lshrrev_b32 v{vT1}, 2, v{vFLA}
    v_and_b32 v{vFLA}, 3, v{vFLA}
    v_lshlrev_b32 v{vFLA}, 2, v{vFLA}
    v_lshl_add_u32 v{vFLA}, v{vT1}, 7, v{vFLA}
    v_mov_b32 v{vONE}, 1
    v_mov_b32 v{vZERO}, 0
    s_mov_b32 s{sSELX}, 0x05040100
    s_mov_b32 s{sSELY}, 0x07060302
    """)


def pick_next(a, step, l0):
    a(f"""
    s_add_u32 s{S_TMP}, s{sN1}, {l0}
    s_min_u32 s{S_TMP}, s{S_TMP}, {NSEG}
    s_cmp_lt_u32 s{sN0}, s{S_TMP}
    s_cselect_b32 s{sNL}, 0, 1
    s_cselect_b32 s{sNS}, s{sN0}, s{sN1}
    s_cselect_b32 s{S_TMP}, {step}, 0
    s_cselect_b32 s{S_TMP + 1}, 0, {step}
    s_add_u32 s{sN0}, s{sN0}, s{S_TMP}
    s_add_u32 s{sN1}, s{sN1}, s{S_TMP + 1}
    s_lshl_b32 s{sNO}, s{sNL}, 6
    s_add_u32 s{sNO}, s{sNO}, s{sNS}
    """)


def flag_out(a, sreg):
    a("s_mov_b64 exec, 1")
    a(f"buffer_store_dword v{vONE}, v{vZERO}, {WS}, s{sreg} offen sc1")
    a("s_mov_b64 exec, -1")


def flag_block(a, name, abort):
    L = a.newlabel(name)
    a(f"s_mov_b32 s{S_SPIN}, 0")
    a.label(L)
    a(f"buffer_load_dword v{vFLV}, v{vFLA}, {WS}, s{sNFL} offen sc1")
    spin_check(a, abort)
    a(f"v_cmp_eq_u32 vcc, 0, v{vFLV}")
    Ld = a.newlabel(name + "d")
    a(f"s_cbranch_vccz {Ld}")
    a(f"s_sleep {SLP}")
    a(f"s_branch {L}")
    a.label(Ld)


PFS = f"s[{SRD_C}:{SRD_C + 3}]"


STB3 = 0x1C000
sCSB = S_FREE + 39
P3 = int(os.environ.get('P3', '0'))
PMID = int(os.environ.get('PMID', '14'))
PROLL = int(os.environ.get('PROLL', '22'))
MBOX = 2 * XBUF + 1024
vFL1 = 15


def cand_addr(a, flag_off, excl=False):
    a(f"""
    s_mul_i32 s{sF0}, s{sN0}, {FL_STRIDE}
    s_add_u32 s{sF0}, s{sF0}, {WS_FLAGS + flag_off}
    s_cmp_lt_u32 s{sN0}, {NSEG}
    s_cselect_b32 s{sF0}, s{sF0}, {WS_ZERO}
    s_mul_i32 s{sF1}, s{sN1}, {FL_STRIDE}
    s_add_u32 s{sF1}, s{sF1}, {WS_FLAGS + flag_off + NSEG * FL_STRIDE}
    s_cmp_lt_u32 s{sN1}, {NSEG}
    s_cselect_b32 s{sF1}, s{sF1}, {WS_ZERO}
    """)
    if excl:
        a(f"s_cmp_lt_u32 s{sN0}, {NSEG}")
        a(f"s_cselect_b32 s{sF1}, {WS_ZERO}, s{sF1}")


def sample2(a):
    a(f"buffer_load_dword v{vFLV}, v{vFLA}, {WS}, s{sF0} offen sc1")
    a(f"buffer_load_dword v{vFL1}, v{vFLA}, {WS}, s{sF1} offen sc1")


def decide(a, prio=1):
    a(f"v_cmp_eq_u32 vcc, 0, v{vFLV}")
    a(f"v_cmp_eq_u32 s[{sE}:{sE + 1}], 0, v{vFL1}")
    m = ["vcc", f"s[{sE}:{sE + 1}]"]
    a(f"s_cmp_eq_u64 {m[1 - prio]}, 0")
    a(f"s_cselect_b32 s{sDEC}, {2 - prio}, 0")
    a(f"s_cmp_eq_u64 {m[prio]}, 0")
    a(f"s_cselect_b32 s{sDEC}, {1 + prio}, s{sDEC}")


def take(dec, step, step1=None):
    return [f"s_cmp_eq_u32 s{dec}, 2",
            f"s_cselect_b32 s{sNL}, 1, 0",
            f"s_cselect_b32 s{sNS}, s{sN1}, s{sN0}",
            f"s_cselect_b32 s{S_TMP}, {step if step1 is None else step1}, 0",
            f"s_add_u32 s{sN1}, s{sN1}, s{S_TMP}",
            f"s_cmp_eq_u32 s{dec}, 1",
            f"s_cselect_b32 s{S_TMP}, {step}, 0",
            f"s_add_u32 s{sN0}, s{sN0}, s{S_TMP}",
            f"s_lshl_b32 s{sNO}, s{sNL}, 6",
            f"s_add_u32 s{sNO}, s{sNO}, s{sNS}"]


def poll2(a, name, abort, flag_off, prio=1, excl=False):
    cand_addr(a, flag_off, excl)
    L = a.newlabel(name)
    a(f"s_mov_b32 s{S_SPIN}, 0")
    a.label(L)
    sample2(a)
    spin_check(a, abort)
    decide(a, prio)
    a(f"s_cmp_lg_u32 s{sDEC}, 0")
    a(f"s_cbranch_scc1 {L}d")
    a(f"s_sleep {SLP}")
    a(f"s_branch {L}")
    a.label(L + "d")


def staged_loop(a, name, abort, done, xbase, xlayer, flag_off, extra_loads, compute, out_flag, nst, vMB, laysel=None, waited=False, epi=None, early=None, pub=None):
    crit = [f"s_cmp_eq_u32 s{sDEC}, 2", f"s_cselect_b32 s{sNX}, s{sX1}, s{sX0}",
            f"s_cmp_lg_u32 s{sDEC}, 0", f"s_cselect_b32 s{SRD_C + 2}, {WS_BYTES}, 0"]
    adv_x = [f"s_cmp_eq_u32 s{sDEC}, 2", f"s_cselect_b32 s{S_TMP}, {X_SEG}, 0", f"s_add_u32 s{sX1}, s{sX1}, s{S_TMP}",
             f"s_cmp_eq_u32 s{sDEC}, 1", f"s_cselect_b32 s{S_TMP}, {X_SEG}, 0", f"s_add_u32 s{sX0}, s{sX0}, s{S_TMP}"]

    def dma_ops(srd_):
        ops = []
        for i in range(9):
            pre = []
            if i % 4 == 0:
                pre = [f"s_add_u32 m0, s{sOB}, {i * 1024}", f"s_add_u32 s{sO2}, s{sNX}, {i * 1024}"]
            ops.append(pre + [f"buffer_load_dwordx4 v{vL16}, {srd_}, s{sO2} offen offset:{(i % 4) * 1024} lds"])
        return ops

    def post():
        a(f"v_mov_b32 v{vT0}, s{sDEC}")
        a(f"ds_write_b32 v{vMB}, v{vT0}")
        a.wait(lg=0)

    def publish():
        a(f"s_cmp_lg_u32 s{sPEND}, 0")
        a(f"s_cselect_b64 exec, {pub[1] if pub else 1}, 0")
        a(f"buffer_store_dword v{vONE}, v{pub[0] if pub else vZERO}, {WS}, s{sPEND} offen sc1")
        a("s_mov_b64 exec, -1")
        a(f"s_mov_b32 s{sPEND}, 0")

    def cur_from_next():
        a(f"s_mov_b32 s{sCL}, s{sNL}")
        a(f"s_mov_b32 s{sCS}, s{sNS}")
        a(f"s_mov_b32 s{sCO}, s{sNO}")

    def roll():
        Ls = a.newlabel(name + "_ns")
        a(f"s_cmp_lg_u32 s{S_WAVE}, 0")
        a(f"s_cbranch_scc1 {Ls}")
        sn = a.snap()
        cand_addr(a, flag_off)
        sample2(a)
        a.restore(sn)
        a.label(Ls)

    a(f"""
    s_mov_b32 s{sN0}, 0
    s_mov_b32 s{sN1}, 0
    s_mov_b32 s{sLEFT}, {2 * NSEG}
    s_mul_i32 s{sWQ}, s{S_WAVE}, 9216
    s_mov_b32 s{sBUF}, {XBUF}
    s_mov_b32 s{sOB}, s{sWQ}
    s_mov_b32 s{sPEND}, 0
    s_mov_b32 s{SRD_C}, s{SRD_WS}
    s_mov_b32 s{SRD_C + 1}, s{SRD_WS + 1}
    s_mov_b32 s{SRD_C + 2}, 0
    s_mov_b32 s{SRD_C + 3}, 0x00020000
    v_mov_b32 v{vMB}, {MBOX}
    s_add_u32 s{sX0}, s{sWQ}, {xbase}
    s_add_u32 s{sX1}, s{sWQ}, {xbase + xlayer}
    """)
    if laysel is not None:
        a(f"s_cmp_eq_u32 s{laysel}, 0")
        a(f"s_cselect_b32 s{sN0}, 0, {NSEG}")
        a(f"s_cselect_b32 s{sN1}, {NSEG}, 0")
        a(f"s_mov_b32 s{sLEFT}, {NSEG}")
    a(f"ds_write2_b32 v{vMB}, v{vZERO}, v{vZERO} offset0:0 offset1:1")
    a.wait(lg=0)
    if not waited:
        dbg_wait(a, DB_POOL, N_POOL, vT0, vT1, abort, name + "_ini")
    trace(a, vT0, vT1)
    prof_init(a)
    if PROF == 3:
        a("s_memtime s[84:85]")
        a.force_wait(lg=0)
    a(f"s_branch {name}_idle0")
    head = name + "_item"
    a.label(head)
    a.restore(([], []))
    prof_begin(a)
    a.force_wait(vm=nst)
    if EARLYF and (laysel is not None or EARLYF > 1):
        a(f"s_cmp_lt_u32 s{sPEND}, {NSEG * FL_STRIDE}")
        a(f"s_cbranch_scc1 {name}_defer")
        a.force_wait(vm=0)
        publish()
    a.label(name + "_defer")
    prof_end(a, 0)
    a(f"s_cmp_lg_u32 s{S_WAVE}, 0")
    a(f"s_cbranch_scc1 {name}_nw0")
    decide(a)
    post()
    a.label(name + "_nw0")
    prof_begin(a)
    a("s_barrier")
    prof_end(a, 1)
    a(f"ds_read_b32 v{vT1}, v{vMB}")
    a(f"""
    v_xor_b32 v{vMB}, 4, v{vMB}
    s_xor_b32 s{sBUF}, s{sBUF}, {XBUF}
    s_xor_b32 s{sOB}, s{sOB}, {XBUF}
    s_xor_b32 s{sSB}, s{sSB}, 0x2000
    s_xor_b32 s{sCSB}, s{sCSB}, 0x2000
    s_sub_u32 s{sLEFT}, s{sLEFT}, 1
    """)
    if epi:
        early()
        a(f"s_cmp_eq_u32 s{sPEND}, 0")
        a(f"s_cbranch_scc1 {name}_noepi")
        lg = list(a.lgq)
        epi()
        assert a.lgq == lg or not a.lgq
        a.lgq = lg
        a.label(name + "_noepi")
    a.vmq = [(frozenset(), "st")] * nst
    ex = extra_loads(PFS)
    tk = take(sDEC, 1)
    pre = ([f"v_readfirstlane_b32 s{sDEC}, v{vT1}"] + crit, [tk[:5], tk[5:], ex[0][:-1], adv_x[:3], adv_x[3:]] if os.environ.get('BSPLIT', '1') == '1' else [tk, ex[0][:-1], adv_x, [], []])
    ex[0] = ex[0][-1:]

    def mid():
        prof_begin(a) if PROF == 1 else None
        a.wait_tag("st")
        prof_end(a, 2) if PROF == 1 else None
        publish()

    compute(pre, dma_ops(PFS), ex, mid, roll)
    out_flag()
    trace_at(a, sCO, vT0, vZERO)
    if name.startswith("Lp"):
        stamp_max(a, 9, vT0, vT1, (sCO, 1)) if DBGT == 2 else None
    cur_from_next()
    if TRACE == 1:
        a.force_wait(vm=0)
        trace(a, vT0, vT1)
        a.force_wait(vm=0)
    a(f"s_min_u32 s{sDEC}, s{sDEC}, s{sLEFT}")
    a(f"s_cmp_lg_u32 s{sDEC}, 0")
    a(f"s_cbranch_scc1 {head}")
    roll()
    a.force_wait(vm=0)
    publish()
    a(f"s_cmp_eq_u32 s{sLEFT}, 0")
    a(f"s_cbranch_scc1 {name}_end")
    a(f"s_cmp_lg_u32 s{S_WAVE}, 0")
    a(f"s_cbranch_scc1 {name}_nw1")
    decide(a)
    a(f"s_cmp_lg_u32 s{sDEC}, 0")
    a(f"s_cbranch_scc1 {name}_got")
    a.label(name + "_idle0")
    a.restore(([], []))
    a(f"s_cmp_lg_u32 s{S_WAVE}, 0")
    a(f"s_cbranch_scc1 {name}_nw1")
    p3_begin(a)
    poll2(a, name + "_pl", abort, flag_off)
    p3_end(a, 3)
    a.label(name + "_got")
    post()
    a.label(name + "_nw1")
    a("s_barrier")
    a(f"ds_read_b32 v{vT1}, v{vMB}")
    a(f"v_xor_b32 v{vMB}, 4, v{vMB}")
    a(f"v_readfirstlane_b32 s{sDEC}, v{vT1}")
    a(f"s_cmp_eq_u32 s{sDEC}, 0")
    a(f"s_cbranch_scc1 {abort}")
    seq(a, crit, take(sDEC, 1), adv_x, dma_ops(WS), extra_loads(WS))
    cur_from_next()
    roll()
    a.force_wait(vm=0)
    if PROF:
        a("s_add_u32 s96, s96, 1000")
    a(f"s_branch {head}")
    a.label(name + "_end")
    if PROF == 3:
        a("s_memtime s[86:87]")
        a.force_wait(lg=0)
        a("s_sub_u32 s97, s86, s84")
    prof_dump(a, vT0, vT1)
    a(f"s_branch {done}")


HPUB = int(os.environ.get("HPUB", "12"))
H1 = int(os.environ.get("H1", "6"))
H2 = int(os.environ.get("H2", "30"))


def _flat(x):
    if isinstance(x, (list, tuple)):
        return [z for y in x for z in _flat(y)]
    return [x]


SCRATCH = 0x20000
WINS = [int(x) for x in os.environ.get("WIN", "1,18").split(",")]
GAP = int(os.environ.get("GAP", "5"))
LOCAL = int(os.environ.get("LOCAL", "0"))
sIMP = 78
AO3 = int(os.environ.get("AO3", "1"))
FAST2 = int(os.environ.get("FAST2", "0"))
LOOKS = [int(x) for x in os.environ.get("LOOKS", "13,30").split(",")]


def eager_loop(a, name, abort, done, xbase, xlayer, flag_off, extra, compute, out_flag, nst, vMB, laysel, pub=None,
               hpos=None, toggles=(), late_extra=False, local=None):
    hp = hpos[0] if hpos else HPUB
    sISS, sACT, sWM, sEXT, sWS = sPF, sLEFT, sNX + 0, sE, sE + 1
    sWM = sSELX
    sEXM = 76
    vMV = vFL1
    pa, pm = pub if pub else (vZERO, 1)
    kind, xfn = extra
    sLOOK, sLF = sN0, sN1
    tails = []

    npub = 2 if local else 1

    def publish():
        a(f"s_cmp_lg_u32 s{sPEND}, 0")
        a(f"s_cselect_b64 exec, {pm}, 0")
        if local:
            a(f"buffer_store_dword v{vONE}, v{pa}, {WS}, s{sPEND} offen")
            a(f"s_and_b64 exec, exec, s[{local}:{local + 1}]")
        a(f"buffer_store_dword v{vONE}, v{pa}, {WS}, s{sPEND} offen sc1")
        a("s_mov_b64 exec, -1")
        a(f"s_mov_b32 s{sPEND}, 0")

    def pieces(srd_, sbase):
        ops = []
        for i in range(9):
            pre = []
            if i % 4 == 0:
                pre = [f"s_add_u32 m0, s{sbase}, {i * 1024}", f"s_add_u32 s{sO2}, s{sNX}, {i * 1024}"]
            ops.append(pre + [f"buffer_load_dwordx4 v{vL16}, {srd_}, s{sO2} offen offset:{(i % 4) * 1024} lds"])
        return ops

    def extras(srd_, masked):
        if kind == "lds":
            return xfn(srd_, sWS if masked else sSB)
        ops = []
        for op in xfn(WS):
            op = list(op)
            if masked:
                op = op[:-1] + [f"s_mov_b64 exec, s[{sEXM}:{sEXM + 1}]", op[-1], "s_mov_b64 exec, -1"]
            ops.append(op)
        return ops

    def next_addr():
        a(f"""
        s_mul_i32 s{sNX}, s{sNS}, {X_SEG}
        s_add_u32 s{sNX}, s{sNX}, s{sX0}
        s_mul_i32 s{sF0}, s{sNS}, {FL_STRIDE}
        s_add_u32 s{sF0}, s{sF0}, s{sF1}
        s_cmp_lt_u32 s{sNS}, {NSEG}
        s_cselect_b32 s{sF0}, s{sF0}, {WS_ZERO}
        """)

    a(f"""
    s_mov_b32 s{sNL}, s{laysel}
    s_mov_b32 s{sCL}, s{laysel}
    s_mul_i32 s{sWQ}, s{S_WAVE}, 9216
    s_mul_i32 s{sX0}, s{laysel}, {xlayer}
    s_add_u32 s{sX0}, s{sX0}, s{sWQ}
    s_add_u32 s{sX0}, s{sX0}, {xbase}
    s_mul_i32 s{sF1}, s{laysel}, {NSEG * FL_STRIDE}
    s_add_u32 s{sF1}, s{sF1}, {WS_FLAGS + flag_off}
    s_mov_b32 s{sNS}, 0
    s_mov_b32 s{sBUF}, {XBUF}
    s_mov_b32 s{sOB}, s{sWQ}
    s_mov_b32 s{sPEND}, 0
    s_mov_b32 s{sDEC}, 1
    s_mov_b32 s{SRD_C}, s{SRD_WS}
    s_mov_b32 s{SRD_C + 1}, s{SRD_WS + 1}
    s_mov_b32 s{SRD_C + 2}, 0
    s_mov_b32 s{SRD_C + 3}, 0x00020000
    v_mov_b32 v{vMB}, {MBOX}
    v_mov_b32 v{vT0}, -1
    """)
    a(f"ds_write_b32 v{vMB}, v{vT0}")
    a.wait(lg=0)
    trace6(a, vT0, vT1)
    init_wait(a, laysel, vT0, vT1, abort, name + "_ini")
    trace6(a, vT0, vT1)
    trace(a, vT0, vT1)
    prof_init(a)
    if PROF:
        a("s_memtime s[82:83]")
        a.force_wait(lg=0)
    next_addr()
    a(f"s_branch {name}_wait")
    a.label(name + "_head")
    a.restore(([], []))
    prof_begin(a)
    a.force_wait(vm=nst)
    prof_end(a, 0)
    a.label(name + "_head2")
    prof_begin(a)
    a("s_barrier")
    prof_end(a, 1)
    a(f"ds_read_b32 v{vMV}, v{vMB}")
    a(f"""
    s_xor_b32 s{sBUF}, s{sBUF}, {XBUF}
    s_xor_b32 s{sOB}, s{sOB}, {XBUF}
    s_mov_b32 s{sCS}, s{sNS}
    s_lshl_b32 s{sCO}, s{sCL}, 6
    s_add_u32 s{sCO}, s{sCO}, s{sCS}
    s_add_u32 s{sNS}, s{sNS}, 1
    s_mov_b32 s{sISS}, 0
    s_mov_b32 s{sEXT}, 0
    """)
    for r, x in toggles:
        a(f"s_xor_b32 s{r}, s{r}, {x}")
    next_addr()
    trace6(a, vT0, vT1)
    if DBGT == 1 and name in ("Laq", "LpKV"):
        stamp_max(a, 13 if name == "Laq" else 14, vT0, vT1, (sCO, 0))
    if TRACE == 4:
        a(f"s_xor_b32 s75, s{sCO}, 64")
        trace_at(a, 75, vT0, vZERO)

    class Rec:
        def __init__(self):
            self.steps = [[]]

        def __call__(self, text, tag=None):
            for line in text.strip().split("\n"):
                line = line.strip()
                if line:
                    self.steps[-1].append((line, tag))
    rec = Rec()
    compute(rec, lambda t: rec.steps.append([]))
    steps = rec.steps
    assert len(steps) == 37

    sR, sLIM = sACT, sISS

    def look(allowed):
        M = f"s[{sEXM}:{sEXM + 1}]"
        g = [[f"v_cmp_eq_u32 {M}, 1, v{vFLV}", f"v_cmp_eq_u32 vcc, 2, v{vFLV}"],
             [f"s_cmp_eq_u64 {M}, -1", f"s_cselect_b32 s{sR}, 1, 0"],
             [f"s_cmp_lg_u32 s{sR}, 0", "s_cselect_b64 exec, 1, 0", f"v_mov_b32 v{vMV}, s{sLOOK}", f"ds_write_b32 v{vMB}, v{vMV}",
              f"v_mov_b32 v{vFLV}, 2", "s_mov_b64 exec, -1"],
             [f"s_add_u32 s{sLOOK}, s{sLOOK}, s{sR}", f"s_mul_i32 s{sR}, s{sR}, {FL_STRIDE}", f"s_add_u32 s{sLF}, s{sLF}, s{sR}"]]
        if allowed:
            g += [[f"s_cmp_eq_u64 vcc, 0", f"s_cselect_b32 s{sR}, s{sLOOK}, 0x7fff"],
                  [f"s_cmp_le_u32 s{sR}, s{sLIM}", "s_cselect_b64 exec, -1, 0", f"v_mov_b32 v{vFLV}, 2",
                   f"buffer_load_dword v{vFLV}, v{vFLA}, {WS}, s{sLF} offen sc1", "s_mov_b64 exec, -1"]]
        return g

    looks = LOOKS if hpos is None else hpos[1]
    WIN = WINS if hpos is None else hpos[3]
    gap = GAP if hpos is None else hpos[2]
    xlate = 15
    deferred = []

    def emit_group(grp, st):
        a.auto = False
        seq(a, grp)
        a.auto = True
        st["vm"] += sum(1 for x in _flat(grp) if x.startswith("buffer_"))

    def emit_step(t, fifo, st):
        ins = steps[t]
        n = len(ins)
        for i, (line, tag) in enumerate(ins):
            a(line, tag)
            if t < 36 and line.startswith("v_mfma"):
                j = i + 1
                while j < n and not ins[j][0].startswith("v_mfma"):
                    j += 1
                room = gap - (j - i - 1)
                while fifo and (len(fifo[0]) <= room or (room >= gap - 1 and len(fifo[0]) > gap)):
                    grp = fifo.pop(0)
                    emit_group(grp, st)
                    room -= len(grp)

    def plan(t, fetched, wk, fifo, queue, st):
        if queue:
            n = 2 if (len(queue) > 33 - t or FAST2) else 1
            for _ in range(n):
                if queue and not (queue[0][0] and t <= xlate and late_extra):
                    fifo.append(_flat(queue.pop(0)[1]))
        if t in looks:
            fifo.extend(look(True))

    def fixed(t, fetched, wk, fifo, st):
        if t == hp:
            prof_begin(a)
            a.force_wait(vm=st["vm"])
            prof_end(a, 2)
            publish()
            st["vm"] += npub
        if not fetched and wk < len(WIN) and t == WIN[wk] - 2:
            a(f"ds_read_b32 v{vMV}, v{vMB}")

    def flush(fifo, st):
        while fifo:
            emit_group(fifo.pop(0), st)

    def run(t0):
        wk, fifo, st = 0, [], {"vm": 0}
        for t in range(36):
            emit_step(t, fifo, st)
            if wk < len(WIN) and t == WIN[wk]:
                flush(fifo, st)
                Lf = a.newlabel(name + "_f")
                a(f"v_readfirstlane_b32 s{S_TMP}, v{vMV}")
                if wk == 0:
                    a(f"s_add_u32 s{S_TMP + 1}, s{S_TMP}, 1")
                    a(f"s_max_i32 s{sLOOK}, s{S_TMP + 1}, s{sNS}")
                    a(f"s_add_u32 s{sLIM}, s{sNS}, 1")
                    a(f"s_min_u32 s{sLIM}, s{sLIM}, {NSEG - 1}")
                    a(f"s_mul_i32 s{sLF}, s{sLOOK}, {FL_STRIDE}")
                    a(f"s_add_u32 s{sLF}, s{sLF}, s{sF1}")
                    a(f"s_cmp_eq_u32 s{S_WAVE}, 0")
                    a(f"s_cselect_b32 s{S_TMP + 1}, s{sLOOK}, 0x7fff")
                    a(f"v_mov_b32 v{vFLV}, 2")
                    a(f"s_cmp_le_u32 s{S_TMP + 1}, s{sLIM}")
                    a(f"s_cselect_b64 exec, -1, 0")
                    a.auto = False
                    a(f"buffer_load_dword v{vFLV}, v{vFLA}, {WS}, s{sLF} offen sc1")
                    a.auto = True
                    st["vm"] += 1
                    a("s_mov_b64 exec, -1")
                    a.vmq = []
                a(f"s_cmp_ge_i32 s{S_TMP}, s{sNS}")
                a(f"s_cbranch_scc1 {Lf}")
                deferred.append((Lf, t, dict(st), a.snap(), list(a.win)))
                wk += 1
            plan(t, False, wk, fifo, [], st)
            fixed(t, False, wk, fifo, st)
        flush(fifo, st)
        finish(0)

    def run_fetch(t0, st):
        queue = [(False, op) for op in pieces(WS, sOB)] + [(kind == "reg", op) for op in extras(WS, False)]
        fifo = []
        plan(t0, True, 0, fifo, queue, st)
        fixed(t0, True, 0, fifo, st)
        for t in range(t0 + 1, 36):
            emit_step(t, fifo, st)
            plan(t, True, 0, fifo, queue, st)
            fixed(t, True, 0, fifo, st)
        fifo.extend(_flat(op) for _, op in queue)
        flush(fifo, st)
        finish(t0 + 100)

    def finish(fetched):
        if PROF == 2:
            a("s_memtime s[86:87]")
            a.force_wait(lg=0)
            a("s_sub_u32 s86, s86, s84")
            a("s_add_u32 s93, s93, s86")
            a("s_memtime s[84:85]")
            a.force_wait(lg=0)
        for line, tag in steps[36]:
            a(line, tag)
        if PROF == 2:
            a("s_memtime s[86:87]")
            a.force_wait(lg=0)
            a("s_sub_u32 s86, s86, s84")
            a("s_add_u32 s94, s94, s86")
        out_flag()
        trace_at(a, sCO, vT0, vZERO)
        if TRACE == 4:
            a(f"s_add_u32 s7, s{sCS}, 128")
            a(f"s_lshl_b32 s7, s7, 2")
            a(f"s_add_u32 s7, s7, s5")
            a(f"v_mov_b32 v{vT0}, {fetched}")
            a("s_mov_b64 exec, 1")
            a(f"buffer_store_dword v{vT0}, v{vZERO}, s[{SRD_WS}:{SRD_WS + 3}], s7 offen offset:12")
            a("s_mov_b64 exec, -1")
        a(f"s_branch {name}_{'head' if fetched else 'none'}")

    a.vmq = []
    if PROF == 2:
        a("s_memtime s[84:85]")
        a.force_wait(lg=0)
    run(0)
    for Lf, t, st, sn, win in deferred:
        a.label(Lf)
        a.restore(sn)
        a.win = list(win)
        run_fetch(t, st)
    a.label(name + "_none")
    a.restore(([], []))
    a(f"ds_read_b32 v{vMV}, v{vMB}")
    a.force_wait(lg=0)
    a(f"v_readfirstlane_b32 s{S_TMP}, v{vMV}")
    a(f"s_cmp_lt_i32 s{S_TMP}, s{sNS}")
    a(f"s_cbranch_scc1 {name}_nopost")
    a.auto = False
    ops = pieces(WS, sOB) + extras(WS, False)
    seq(a, ops)
    a.force_wait(vm=sum(1 for x in _flat(ops) if x.startswith("buffer_")))
    a.auto = True
    publish()
    a.force_wait(vm=npub, lg=0)
    a(f"s_branch {name}_head2")
    a.label(name + "_nopost")
    a.restore(([], []))
    a.force_wait(vm=0)
    publish()
    a(f"s_cmp_ge_u32 s{sNS}, {NSEG}")
    a(f"s_cbranch_scc1 {name}_end")
    a.label(name + "_wait")
    a.restore(([], []))
    a(f"s_mov_b32 s{S_SPIN}, 0")
    a(f"s_cmp_lg_u32 s{S_WAVE}, 0")
    a(f"s_cbranch_scc1 {name}_wl")
    p3_begin(a)
    a.label(name + "_wp")
    a(f"buffer_load_dword v{vFLV}, v{vFLA}, {WS}, s{sF0} offen sc1")
    spin_check(a, name + "_giveup")
    a(f"v_cmp_eq_u32 vcc, 0, v{vFLV}")
    a(f"s_cbranch_vccz {name}_wok")
    a(f"s_sleep {SLP}")
    a(f"s_branch {name}_wp")
    a.label(name + "_giveup")
    a(f"v_mov_b32 v{vT0}, -2")
    a(f"ds_write_b32 v{vMB}, v{vT0}")
    a.force_wait(lg=0)
    a(f"s_branch {abort}")
    a.label(name + "_wok")
    p3_end(a, 3)
    a(f"v_mov_b32 v{vT0}, s{sNS}")
    a(f"ds_write_b32 v{vMB}, v{vT0}")
    a(f"s_branch {name}_go")
    a.label(name + "_wl")
    a(f"ds_read_b32 v{vMV}, v{vMB}")
    a(f"s_add_u32 s{S_SPIN}, s{S_SPIN}, 1")
    a(f"s_cmp_gt_u32 s{S_SPIN}, {SPIN_MAX * 16}")
    a(f"s_cbranch_scc1 {abort}")
    a(f"v_readfirstlane_b32 s{S_TMP}, v{vMV}")
    a(f"s_cmp_eq_u32 s{S_TMP}, -2")
    a(f"s_cbranch_scc1 {abort}")
    a(f"s_cmp_ge_i32 s{S_TMP}, s{sNS}")
    a(f"s_cbranch_scc1 {name}_go")
    a("s_sleep 1")
    a(f"s_branch {name}_wl")
    a.label(name + "_go")
    a.restore(([], []))
    if PROF:
        a("s_add_u32 s96, s96, 1000")
    a.auto = False
    seq(a, pieces(WS, sOB), extras(WS, False))
    a.auto = True
    prof_begin(a)
    a.force_wait(vm=0, lg=0)
    prof_end(a, 5)
    a(f"s_branch {name}_head2")
    a.label(name + "_end")
    if PROF:
        a("s_memtime s[86:87]")
        a.force_wait(lg=0)
        a("s_sub_u32 s97, s86, s82")
    prof_dump(a, vT0, vT1)
    a(f"s_branch {done}")
    for tl in tails:
        a.restore(([], []))
        tl()


WB = 112


def MF32(acc, A, B, C=None):
    return f"v_mfma_f32_32x32x16_bf16 {vr(acc, 16)}, {A}, {B}, {vr(acc, 16) if C is None else C}"


def load_cols(a, srdb, vad, vsel, items, nt=os.environ.get("NT_P", "")):
    D = 28
    n = len(items)
    for i in range(n + D):
        if i < n:
            r = 16 + 2 * (i % 48)
            a(f"s_add_u32 s{S_TMP}, s{sK1}, {items[i][0]}")
            a(f"buffer_load_dword v{r}, v{vad}, s[{srdb}:{srdb + 3}], s{S_TMP} offen {nt}")
            a(f"buffer_load_dword v{r + 1}, v{vad + 1}, s[{srdb}:{srdb + 3}], s{S_TMP} offen {nt}")
        j = i - D
        if j >= 0:
            r = 16 + 2 * (j % 48)
            a(f"v_perm_b32 v{items[j][1]}, v{r + 1}, v{r}, v{vsel}")


def feat_of_row(a, dst, row, t1):
    a(f"""
    v_and_b32 v{dst}, 19, v{row}
    v_bfe_u32 v{t1}, v{row}, 2, 1
    v_lshl_add_u32 v{dst}, v{t1}, 3, v{dst}
    v_bfe_u32 v{t1}, v{row}, 3, 1
    v_lshl_add_u32 v{dst}, v{t1}, 2, v{dst}
    """)


def sel_of_parity(a, vsel, par, t1):
    a(f"""
    v_mov_b32 v{vsel}, s{sSELX}
    v_mov_b32 v{t1}, s{sSELY}
    v_cmp_eq_u32 vcc, 1, v{par}
    v_cndmask_b32 v{vsel}, v{vsel}, v{t1}, vcc
    """)


def gemm32(a, acc, swap, vXA, ring, pre, dma, extra, mid, roll, init=None, fill=None, issued=False):
    nr = len(ring)

    def rd(t):
        return f"ds_read_b128 {vr(ring[t % nr], 4)}, v{vXA} offset:{t * 1024}"
    if PROF == 2:
        a("s_memtime s[84:85]")
    if not issued:
        for t in range(nr - 1):
            a(rd(t))
    fill = list(fill or [])
    crit, blocks = pre
    blocks = list(blocks)
    vm = list(dma) + list(extra)
    for t in range(36):
        x, w = vr(ring[t % nr], 4), vr(WB + 4 * t, 4)
        a(MF32(acc, x if swap else w, w if swap else x, "0" if (t == 0 and not init) else None))
        if t + nr - 1 < 36:
            a(rd(t + nr - 1))
        k = 3 if t < 16 else 4
        if t == 1:
            seq(a, crit); k = 0
        elif t >= 2 and t % 2 == 1 and blocks:
            k = min(3, 5 - len(blocks[0]))
            seq(a, blocks.pop(0))
        elif t >= 2 and vm and (len(vm) > len(extra) or len(blocks) <= 2):
            assert len(vm) > len(extra) or len(blocks) <= 2
            seq(a, vm.pop(0)); k -= 2
        while fill and k > 0:
            seq(a, fill.pop(0)); k -= 1
        if t == 10:
            mid()
        if t == 16:
            roll()
    assert not vm and not fill and not blocks
    if PROF == 2:
        a("s_memtime s[86:87]")
        a.force_wait(lg=0)
        a("s_sub_u32 s86, s86, s84")
        a("s_add_u32 s97, s97, s86")


VMDENSE = int(os.environ.get("VMDENSE", "1"))
STB = 0x14000


def stats_dma(base, srd_, sdest=None):
    sd = sSB if sdest is None else sdest
    pre = [f"s_mul_i32 s{sO3}, s{sNL}, {2 * ST_BYTES}", f"s_mul_i32 s{S_TMP + 1}, s{sNS}, {ST_SEG}",
           f"s_add_u32 s{sO3}, s{sO3}, s{S_TMP + 1}", f"s_add_u32 s{sO3}, s{sO3}, {base + 4096}"]
    return [pre + [f"s_add_u32 m0, s{sd}, 4096", f"s_nop 0",
                   f"buffer_load_dwordx4 v{vL16}, {srd_}, s{sO3} offen lds"],
            [f"s_add_u32 m0, s{sd}, s{sW1K}", f"s_sub_u32 s{sO3}, s{sO3}, 4096", f"s_add_u32 s{sO3}, s{sO3}, s{sW1K}",
             f"buffer_load_dwordx4 v{vL16}, {srd_}, s{sO3} offen lds"]]


def stats_loads(base, STR, vaddr, srd_):
    pre = [f"s_mul_i32 s{sO3}, s{sNL}, {2 * ST_BYTES}", f"s_mul_i32 s{S_TMP + 1}, s{sNS}, {ST_SEG}",
           f"s_add_u32 s{sO3}, s{sO3}, s{S_TMP + 1}", f"s_add_u32 s{sO3}, s{sO3}, {base}"]
    ops = [[f"buffer_load_dwordx4 {vr(STR + 4 * i, 4)}, v{vaddr}, {srd_}, s{sO3} offen offset:{512 * i}"] for i in range(6)]
    ops[0] = pre + ops[0]
    return ops


def stats_math(STR, RS, MR):
    ops = []
    for i in range(1, 5):
        ops += [f"v_add_f32 v{STR + j}, v{STR + j}, v{STR + 4 * i + j}" for j in range(4)]
    S1, S2 = STR, STR + 1
    ops += [f"v_add_f32 v{S1}, v{S1}, v{STR + 2}", f"v_add_f32 v{S2}, v{S2}, v{STR + 3}",
            f"v_mov_b32 v{STR + 2}, v{S1}", f"v_mov_b32 v{STR + 3}, v{S2}",
            f"v_permlane32_swap_b32 v{S1}, v{STR + 2}", f"v_permlane32_swap_b32 v{S2}, v{STR + 3}",
            f"v_add_f32 v{S1}, v{S1}, v{STR + 2}", f"v_add_f32 v{S2}, v{S2}, v{STR + 3}",
            f"v_mul_f32 v{S1}, {hex(f32bits(1.0 / 576))}, v{S1}",
            f"v_mul_f32 v{S2}, {hex(f32bits(1.0 / 576))}, v{S2}",
            f"v_fma_f32 v{S2}, -v{S1}, v{S1}, v{S2}",
            f"v_max_f32 v{S2}, 0, v{S2}",
            f"v_add_f32 v{S2}, {hex(f32bits(1e-5))}, v{S2}",
            f"v_rsq_f32 v{RS}, v{S2}",
            f"v_mul_f32 v{MR}, v{S1}, v{RS}"]
    return ops


def role_p(a, abort, done):
    lane_setup(a, 18)
    vXA, vSTA, vCS, vA0, vLDS, vO = 9, 10, 11, 12, 12, 14
    vMB = 108
    ACC, RING, STR, LN = 16, 32, 56, 76
    TT = 96
    CS = 80
    a(f"""
    s_lshr_b32 s{sK2}, s{S_ROLE}, 5
    s_and_b32 s{sK3}, s{S_ROLE}, 31
    s_lshl_b32 s{S_TMP}, s{sK2}, 3
    s_add_u32 s{S_TMP}, s{S_TMP}, {KA_WQ}
    s_load_dwordx2 s[{SRD_A}:{SRD_A + 1}], s[0:1], s{S_TMP}
    s_mov_b32 s{SRD_A + 2}, {576 * 8192}
    s_mov_b32 s{SRD_A + 3}, 0x00020000
    s_lshl_b32 s{sK1}, s{sK3}, 8
    s_lshl_b32 s{S_TMP}, s{S_WAVE}, 6
    s_add_u32 s{sK1}, s{sK1}, s{S_TMP}
    v_bfe_u32 v{vSTA}, v{vL16}, 4, 5
    """)
    feat_of_row(a, vO, vSTA, vT0)
    if RV2:
        a(f"v_and_b32 v{vT0}, 1, v{vO}")
        a(f"v_lshrrev_b32 v{vO}, 1, v{vO}")
        a(f"v_lshl_add_u32 v{vO}, v{vT0}, 4, v{vO}")
    a(f"""
    v_bfe_u32 v{vT0}, v{vL16}, 8, 1
    {f"v_lshl_add_u32 v{vT1}, v{vT0}, 4, v{vC}" if RV2 else f"v_lshl_add_u32 v{vT1}, v{vC}, 1, v{vT0}"}
    s_cmp_eq_u32 s{sK2}, 2
    s_cselect_b64 vcc, -1, 0
    v_cndmask_b32 v{vO}, v{vO}, v{vT1}, vcc
    v_and_b32 v{vT0}, 1, v{vO}
    """)
    sel_of_parity(a, vCS, vT0, vT1)
    a(f"""
    v_and_b32 v{vO}, 30, v{vO}
    v_lshrrev_b32 v{vT0}, 9, v{vL16}
    v_lshlrev_b32 v{vA0}, 16, v{vT0}
    v_lshl_add_u32 v{vA0}, v{vO}, 1, v{vA0}
    v_add_u32 v{vA0 + 1}, 8192, v{vA0}
    v_lshlrev_b32 v{vSTA}, 4, v{vSTA}
    v_mul_u32_u24 v{vT1}, 2560, v{vT0}
    v_add_u32 v{vSTA}, v{vSTA}, v{vT1}
    v_add_u32 v{vSTA}, {STB3}, v{vSTA}
    s_lshl_b32 s{sW1K}, s{S_WAVE}, 10
    v_bfe_u32 v{vT1}, v{vL16}, 8, 1
    v_lshlrev_b32 v{vO}, 10, v{vT1}
    v_lshl_add_u32 v{vO}, v{vC}, 4, v{vO}
    v_lshl_add_u32 v{vO}, v{vT0}, 8, v{vO}
    """)
    a.force_wait(lg=0)
    a(f"s_and_b32 s{SRD_A + 1}, s{SRD_A + 1}, 0xffff")
    load_cols(a, SRD_A, vA0, vCS, [((16 * t + 2 * d) * 8192, WB + 4 * t + d) for t in range(36) for d in range(4)])
    a(f"""
    s_mul_i32 s{sK4}, s{sK2}, {QKV_M}
    s_lshl_b32 s{S_TMP}, s{sK3}, 13
    s_add_u32 s{sK4}, s{sK4}, s{S_TMP}
    s_lshl_b32 s{S_TMP}, s{S_WAVE}, 11
    s_add_u32 s{sK4}, s{sK4}, s{S_TMP}
    s_add_u32 s{sK4}, s{sK4}, {WS_QKV}
    s_lshl_b32 s{sK1}, s{sK3}, 9
    s_lshl_b32 s{S_TMP}, s{sK2}, 7
    s_add_u32 s{sK1}, s{sK1}, s{S_TMP}
    s_lshl_b32 s{S_TMP}, s{S_WAVE}, 2
    s_add_u32 s{sK1}, s{sK1}, s{S_TMP}
    s_add_u32 s{sK1}, s{sK1}, {WS_FLAGS + FL_QKV}
    v_mov_b32 v{RING}, 0x3f803f80
    v_mov_b32 v{RING + 1}, 0x3f803f80
    v_mov_b32 v{RING + 2}, 0x3f803f80
    v_mov_b32 v{RING + 3}, 0x3f803f80
    s_lshl_b32 s{S_TMP}, s{S_WAVE}, 8
    s_add_u32 s{S_TMP}, s{S_TMP}, {3 * XBUF}
    v_bfe_u32 v{vT0}, v{vL16}, 4, 5
    v_lshl_add_u32 v{vLDS}, v{vT0}, 2, s{S_TMP}
    v_lshrrev_b32 v{vT0}, 9, v{vL16}
    v_lshl_add_u32 v{vLDS + 1}, v{vT0}, 4, s{S_TMP}
    s_cmp_eq_u32 s{sK2}, 2
    s_cbranch_scc1 Lp_v
    """)
    for swap in (0, 1):
        nm = "LpV" if swap else "LpQ"
        if swap:
            a.label("Lp_v")
            a.restore(([], []))
        for t in range(36):
            w, o = vr(WB + 4 * t, 4), vr(RING, 4)
            a(MF32(ACC if swap else CS, o if swap else w, w if swap else o, "0" if t == 0 else None))
        if swap:
            a(f"v_mov_b32 v{vCS}, v{ACC}")

        def early():
            a(f"v_add_u32 v{vXA}, s{sBUF}, v{vL16}")
            a(f"v_add_u32 v{vT0}, s{sCSB}, v{vSTA}")
            for t in range(3):
                a(f"ds_read_b128 {vr(RING + 4 * t, 4)}, v{vXA} offset:{t * 1024}")
            for i in range(5):
                a(f"ds_read_b128 {vr(STR + 4 * i, 4)}, v{vT0} offset:{512 * i}")

        def compute(pre, dma, extra, mid, roll, swap=swap):
            early()
            sm = [None] * 3 + stats_math(STR, LN, LN + 1)
            if swap:
                sm += [f"ds_write2_b32 v{vLDS}, v{LN}, v{LN + 1} offset0:0 offset1:32"]
                sm += [f"ds_read_b128 {vr(LN + 4 * i, 4)}, v{vLDS + 1} offset:{(i >> 2) * 128 + (i & 3) * 32}" for i in range(8)]
                sm += [None] * 9 + [f"v_mul_f32 v{LN + 16 + i}, v{vCS}, v{LN + 16 + i}" for i in range(16)]
            else:
                sm += [f"v_mul_f32 v{TT + i}, v{LN + 1}, v{CS + i}" for i in range(16)]
            sm += [f"s_mul_i32 s{sO1}, s{sCL}, {3 * QKV_M}", f"s_lshl_b32 s{sK3}, s{sCS}, 18",
                   f"s_add_u32 s{sO1}, s{sO1}, s{sK3}", f"s_add_u32 s{sO1}, s{sO1}, s{sK4}"]
            gemm32(a, ACC, swap, vXA, [RING + 4 * i for i in range(4)], pre, dma, extra, mid, roll, fill=sm, issued=True)
            epi()

        def epi(swap=swap):
            for k in range(2):
                regs = [0, 1, 2, 3, 8, 9, 10, 11] if swap else list(range(8))
                regs = [r + (4 if swap else 8) * k for r in regs]
                for i in regs[::2]:
                    if swap:
                        a(f"v_pk_fma_f32 {vr(ACC + i, 2)}, {vr(ACC + i, 2)}, {vr(LN + i, 2)}, {vr(LN + 16 + i, 2)} neg_lo:[0,0,1] neg_hi:[0,0,1]")
                    else:
                        a(f"v_pk_fma_f32 {vr(ACC + i, 2)}, {vr(ACC + i, 2)}, {vr(LN, 2)}, {vr(TT + i, 2)} op_sel_hi:[1,0,1] neg_lo:[0,0,1] neg_hi:[0,0,1]")
                o = RING + 16 + 4 * k
                for i in range(4):
                    a(f"v_cvt_pk_bf16_f32 v{o + i}, v{ACC + regs[2 * i]}, v{ACC + regs[2 * i + 1]}")
                a(f"buffer_store_dwordx4 {vr(o, 4)}, v{vO}, {WS}, s{sO1} offen offset:{512 * k} sc1", tag="st")

        def out_flag():
            a(f"s_mul_i32 s{sPEND}, s{sCO}, {FL_STRIDE}")
            a(f"s_add_u32 s{sPEND}, s{sPEND}, s{sK1}")

        a(f"s_mov_b32 s{sSB}, {STB3}")
        a(f"s_mov_b32 s{sCSB}, 0x2000")
        staged_loop(a, nm, abort, done, WS_X + X_BYTES, 2 * X_BYTES, FL_XB,
                    lambda sr_: stats_dma(WS_ST + ST_BYTES, sr_), compute, out_flag, 2, vMB if swap else 78)


def role_p2(a, abort, done):
    lane_setup(a, 12 if AO3 else 18)
    vXA, vSTA, vCS, vLDS, vO, vFO = 9, 10, 11, 12, 14, 185
    vMB = 184
    ACC0, ACC1, RING, STR, CS0, TT0, LNV, LN, W1T, OUT = 16, 32, 48, 64, 84, 100, 116, 148, 152, 188
    CS1, TT1 = LNV, LNV + 16
    GA, RB = 16, 17
    SRD_B2 = SRD_B

    def w0(t):
        return ar(4 * t, 4)

    def w1(t):
        return ar(144 + 4 * t, 4) if t < 28 else vr(W1T + 4 * (t - 28), 4)

    a(f"""
    s_cmp_ge_u32 s{S_ROLE}, 48
    s_cselect_b32 s{sLAYS}, 1, 0
    s_cselect_b32 s{S_TMP}, 48, 0
    s_sub_u32 s{S_ROLE}, s{S_ROLE}, s{S_TMP}
    s_cmp_lt_u32 s{S_ROLE}, 32
    s_cselect_b32 s{sK2}, 1, 0
    s_sub_u32 s{S_TMP}, s{S_ROLE}, 32
    s_lshl_b32 s{S_TMP}, s{S_TMP}, 1
    s_cmp_eq_u32 s{sK2}, 1
    s_cselect_b32 s{sK3}, s{S_ROLE}, s{S_TMP}
    s_cselect_b32 s{S_TMP}, {KA_WK}, {KA_WQ}
    s_cselect_b32 s{S_TMP + 1}, {KA_WV}, {KA_WQ}
    s_load_dwordx2 s[{SRD_A}:{SRD_A + 1}], s[0:1], s{S_TMP}
    s_load_dwordx2 s[{SRD_B}:{SRD_B + 1}], s[0:1], s{S_TMP + 1}
    s_mov_b32 s{SRD_A + 2}, {576 * 8192}
    s_mov_b32 s{SRD_A + 3}, 0x00020000
    s_mov_b32 s{SRD_B + 2}, {576 * 8192}
    s_mov_b32 s{SRD_B + 3}, 0x00020000
    s_lshl_b32 s{sK1}, s{sK3}, 8
    s_mul_i32 s{S_TMP}, s{S_WAVE}, {16 * 8192}
    s_add_u32 s{sK1}, s{sK1}, s{S_TMP}
    s_cmp_eq_u32 s{sK2}, 1
    s_cselect_b32 s{S_TMP}, 0, 256
    s_add_u32 s{sK4}, s{sK1}, s{S_TMP}
    """)
    a.force_wait(lg=0)
    a(f"s_and_b32 s{SRD_A + 1}, s{SRD_A + 1}, 0xffff")
    a(f"s_and_b32 s{SRD_B + 1}, s{SRD_B + 1}, 0xffff")
    gate(a, 2, sLAYS, vT0, vT1, abort, "Lp2_gate")
    a(f"""
    v_lshrrev_b32 v{vT0}, 8, v{vL16}
    v_bfe_u32 v{vT1}, v{vL16}, 6, 2
    v_xor_b32 v{vT1}, v{vT1}, v{vT0}
    v_lshlrev_b32 v{vT1}, 6, v{vT1}
    v_and_b32 v{GA}, 0x30, v{vL16}
    v_add_u32 v{GA}, v{GA}, v{vT1}
    v_lshl_add_u32 v{GA}, v{vT0}, 13, v{GA}
    v_lshrrev_b32 v{vT0}, 2, v{vC}
    v_xor_b32 v{vT1}, s{S_WAVE}, v{vT0}
    v_lshlrev_b32 v{RB}, 6, v{vT1}
    v_lshrrev_b32 v{vT1}, 1, v{vG}
    v_lshl_add_u32 v{vT0}, v{vT1}, 3, v{vT0}
    v_lshl_add_u32 v{RB}, v{vT0}, 8, v{RB}
    v_and_b32 v{vT0}, 1, v{vG}
    v_lshl_add_u32 v{RB}, v{vT0}, 5, v{RB}
    v_and_b32 v{vT0}, 3, v{vC}
    v_lshl_add_u32 v{RB}, v{vT0}, 3, v{RB}
    v_add_u32 v{RB + 1}, 65536, v{RB}
    s_lshl_b32 s{sO1}, s{S_WAVE}, 12
    """)
    a.auto = False
    NCH, NR = 18, 8

    def dma(i):
        m, c = i // 9, i % 9
        src = (SRD_A, SRD_B)[m]
        a(f"s_add_u32 m0, s{sO1}, {(i % NR) * 16384}")
        for q in range(4):
            a(f"s_add_u32 s{S_TMP}, s{(sK1, sK4)[m]}, {(64 * c + 4 * q) * 8192}")
            a(f"buffer_load_dwordx4 v{GA}, s[{src}:{src + 3}], s{S_TMP} offen lds")
            if q < 3:
                a("s_add_u32 m0, m0, 1024")
    for i in range(NR - 1):
        dma(i)
    nissued = NR - 1
    for i in range(NCH):
        a(f"s_waitcnt vmcnt({4 * (nissued - 1 - i)})")
        a("s_barrier")
        if nissued < NCH:
            dma(nissued)
            nissued += 1
        m, c = i // 9, i % 9
        sl = i % NR
        for tp in range(4):
            t = 4 * c + tp
            dst = (w0, w1)[m](t)
            k, b0 = dst[0], int(dst[2:dst.index(":")])
            for sub in range(2):
                a(f"ds_read_b64_tr_b16 {k}[{b0 + 2 * sub}:{b0 + 2 * sub + 1}], v{RB + (sl >> 2)} offset:{(sl & 3) * 16384 + tp * 4096 + sub * 1024}")
        a("s_waitcnt lgkmcnt(0)")
    a("s_barrier")
    a.auto = True
    a.vmq, a.lgq = [], []
    a(f"""
    v_bfe_u32 v{vSTA}, v{vL16}, 4, 5
    v_lshrrev_b32 v{vT0}, 9, v{vL16}
    v_lshlrev_b32 v{vSTA}, 4, v{vSTA}
    v_mul_u32_u24 v{vT1}, 2560, v{vT0}
    v_add_u32 v{vSTA}, v{vSTA}, v{vT1}
    v_add_u32 v{vSTA}, {STB3}, v{vSTA}
    s_lshl_b32 s{sW1K}, s{S_WAVE}, 10
    v_bfe_u32 v{vT1}, v{vL16}, 8, 1
    v_lshlrev_b32 v{vO}, 10, v{vT1}
    v_lshl_add_u32 v{vO}, v{vC}, 4, v{vO}
    v_lshl_add_u32 v{vO}, v{vT0}, 8, v{vO}
    """)
    a(f"""
    s_lshl_b32 s{S_TMP}, s{sK3}, 13
    s_lshl_b32 s{S_TMP + 1}, s{S_WAVE}, 11
    s_add_u32 s{sK4}, s{S_TMP}, s{S_TMP + 1}
    s_add_u32 s{sK4}, s{sK4}, {WS_QKV}
    s_lshl_b32 s{sK1}, s{sK3}, 9
    s_lshl_b32 s{S_TMP}, s{S_WAVE}, 2
    s_add_u32 s{sK1}, s{sK1}, s{S_TMP}
    s_add_u32 s{sK1}, s{sK1}, {WS_FLAGS + FL_QKV}
    s_cmp_eq_u32 s{sK2}, 1
    s_cselect_b32 s{S_TMP}, {QKV_M}, 0
    s_cselect_b32 s{S_TMP + 1}, 128, 0
    s_add_u32 s{sK4}, s{sK4}, s{S_TMP}
    s_add_u32 s{sK1}, s{sK1}, s{S_TMP + 1}
    s_cmp_eq_u32 s{sK2}, 1
    s_cselect_b32 s{S_TMP}, 0, 384
    s_add_u32 s{S_TMP}, s{S_TMP}, 128
    v_lshrrev_b32 v{vFO}, 4, v{vL16}
    v_mul_lo_u32 v{vFO}, v{vFO}, s{S_TMP}
    v_mov_b32 v{RING}, 0x3f803f80
    v_mov_b32 v{RING + 1}, 0x3f803f80
    v_mov_b32 v{RING + 2}, 0x3f803f80
    v_mov_b32 v{RING + 3}, 0x3f803f80
    s_lshl_b32 s{S_TMP}, s{S_WAVE}, 8
    s_add_u32 s{S_TMP}, s{S_TMP}, {3 * XBUF}
    v_bfe_u32 v{vT0}, v{vL16}, 4, 5
    v_lshl_add_u32 v{vLDS}, v{vT0}, 2, s{S_TMP}
    v_lshrrev_b32 v{vT0}, 9, v{vL16}
    v_lshl_add_u32 v{vLDS + 1}, v{vT0}, 4, s{S_TMP}
    s_cmp_eq_u32 s{sK2}, 1
    s_cbranch_scc1 Lp2_kv
    """)
    for kv in (0, 1):
        nm = "LpKV" if kv else "LpQQ"
        if kv:
            a.label("Lp2_kv")
            a.restore(([], []))
        o = vr(RING, 4)
        for t in range(36):
            a(MF32(CS0, w0(t), o, "0" if t == 0 else None))
            if kv:
                a(MF32(ACC1, o, w1(t), "0" if t == 0 else None))
            else:
                a(MF32(CS1, w1(t), o, "0" if t == 0 else None))
        if kv:
            a(f"v_mov_b32 v{vCS}, v{ACC1}")
        d1 = QKV_M if kv else 8192

        def early(a):
            a(f"v_add_u32 v{vXA}, s{sBUF}, v{vL16}")
            a(f"v_add_u32 v{vT0}, s{sCSB}, v{vSTA}")
            for t in range(3):
                a(f"ds_read_b128 {vr(RING + 4 * t, 4)}, v{vXA} offset:{t * 1024}")
            for i in range(5):
                a(f"ds_read_b128 {vr(STR + 4 * i, 4)}, v{vT0} offset:{512 * i}")

        def compute(a, hook, kv=kv, d1=d1):
            early(a)
            sm = [None] * 3 + stats_math(STR, LN, LN + 1)
            sm += [f"v_mul_f32 v{TT0 + i}, v{LN + 1}, v{CS0 + i}" for i in range(16)]
            if kv:
                sm += [f"ds_write2_b32 v{vLDS}, v{LN}, v{LN + 1} offset0:0 offset1:32"]
                sm += [f"ds_read_b128 {vr(LNV + 4 * i, 4)}, v{vLDS + 1} offset:{(i >> 2) * 128 + (i & 3) * 32}" for i in range(8)]
                sm += [None] * 9 + [f"v_mul_f32 v{LNV + 16 + i}, v{vCS}, v{LNV + 16 + i}" for i in range(16)]
            else:
                sm += [f"v_mul_f32 v{TT1 + i}, v{LN + 1}, v{CS1 + i}" for i in range(16)]
            sm += [f"s_mul_i32 s{sO1}, s{sCL}, {3 * QKV_M}", f"s_lshl_b32 s{sK3}, s{sCS}, 18",
                   f"s_add_u32 s{sO1}, s{sO1}, s{sK3}", f"s_add_u32 s{sO1}, s{sO1}, s{sK4}"]
            ring = [RING + 4 * i for i in range(4)]
            nr = 4

            def rd(t):
                return f"ds_read_b128 {vr(ring[t % nr], 4)}, v{vXA} offset:{t * 1024}"
            fill = list(sm)
            for t in range(36):
                x = vr(ring[t % nr], 4)
                a(MF32(ACC0, w0(t), x, "0" if t == 0 else None))
                if t + nr - 1 < 36:
                    a(rd(t + nr - 1))
                k = 3
                while fill and k > 0:
                    seq(a, fill.pop(0)); k -= 1
                a(MF32(ACC1, x if kv else w1(t), w1(t) if kv else x, "0" if t == 0 else None))
                k = 4
                while fill and k > 0:
                    seq(a, fill.pop(0)); k -= 1
                hook(t)
            assert not fill
            a(f"s_add_u32 s{sK3}, s{sO1}, {d1}")
            for tile in range(2):
                ACC = (ACC0, ACC1)[tile]
                swap = kv and tile == 1
                TT = (TT0, TT1)[tile]
                for i in range(0, 16, 2):
                    if swap:
                        a(f"v_pk_fma_f32 {vr(ACC + i, 2)}, {vr(ACC + i, 2)}, {vr(LNV + i, 2)}, {vr(LNV + 16 + i, 2)} neg_lo:[0,0,1] neg_hi:[0,0,1]")
                    else:
                        a(f"v_pk_fma_f32 {vr(ACC + i, 2)}, {vr(ACC + i, 2)}, {vr(LN, 2)}, {vr(TT + i, 2)} op_sel_hi:[1,0,1] neg_lo:[0,0,1] neg_hi:[0,0,1]")
                for k in range(2):
                    ot = OUT + 8 * tile + 4 * k
                    for i in range(4):
                        if swap:
                            r = [0, 2, 8, 10][i] + 4 * k
                            a(f"v_cvt_pk_bf16_f32 v{ot + i}, v{ACC + r}, v{ACC + r + 1}")
                        else:
                            a(f"v_cvt_pk_bf16_f32 v{ot + i}, v{ACC + 4 * k + i}, v{ACC + 8 + 4 * k + i}")
                    a(f"buffer_store_dwordx4 {vr(ot, 4)}, v{vO}, {WS}, s{(sO1, sK3)[tile]} offen offset:{512 * k} sc1", tag="st")

        def out_flag():
            a(f"s_mul_i32 s{sPEND}, s{sCO}, {FL_STRIDE}")
            a(f"s_add_u32 s{sPEND}, s{sPEND}, s{sK1}")

        a(f"s_mov_b32 s{sSB}, {STB3}")
        a(f"s_mov_b32 s{sCSB}, 0x2000")
        eager_loop(a, nm, abort, done, WS_X + X_BYTES, 2 * X_BYTES, FL_XB,
                   ("lds", lambda sr_, sd: stats_dma(WS_ST + ST_BYTES, sr_, sd)), compute, out_flag, 4, vMB, sLAYS, pub=(vFO, 3),
                   toggles=((sSB, 0x2000), (sCSB, 0x2000)))


def role_awo(a, abort, done):
    lane_setup(a, 64)
    vXA, vSTO, vSEL, vA0, vRES = 9, 10, 11, 12, 14
    ACC, RING, RES, SS = 16, 32, 64, 72
    srd(a, SRD_A, KA_WO, 576 * 1152)
    a(f"""
    s_cmp_ge_u32 s{S_ROLE}, 5
    s_cselect_b32 s{sLAYS}, 1, 0
    s_cselect_b32 s{S_TMP}, 5, 0
    s_sub_u32 s{S_ROLE}, s{S_ROLE}, s{S_TMP}
    s_lshl_b32 s{sK2}, s{S_ROLE}, 2
    s_add_u32 s{sK2}, s{sK2}, s{S_WAVE}
    s_min_u32 s{sK2}, s{sK2}, 17
    s_lshl_b32 s{sK1}, s{sK2}, 6
    v_bfe_u32 v{vSTO}, v{vL16}, 4, 5
    """)
    feat_of_row(a, vRES, vSTO, vT0)
    a(f"v_and_b32 v{vT0}, 1, v{vRES}")
    sel_of_parity(a, vSEL, vT0, vT1)
    a(f"""
    v_and_b32 v{vRES}, 30, v{vRES}
    v_lshlrev_b32 v{vRES}, 1, v{vRES}
    v_lshrrev_b32 v{vXA}, 9, v{vL16}
    v_mul_u32_u24 v{vT0}, {8 * 1152}, v{vXA}
    v_add_u32 v{vA0}, v{vT0}, v{vRES}
    v_add_u32 v{vA0 + 1}, 1152, v{vA0}
    """)
    load_cols(a, SRD_A, vA0, vSEL, [((18 * t + 2 * d) * 1152, WB + 4 * t + d) for t in range(32) for d in range(4)])
    a(f"""
    v_mul_u32_u24 v{vT0}, {72 * 1152}, v{vXA}
    v_add_u32 v{vA0}, v{vT0}, v{vRES}
    v_add_u32 v{vA0 + 1}, 1152, v{vA0}
    """)
    load_cols(a, SRD_A, vA0, vSEL, [((144 * t + 18 * d + 16) * 1152, WB + 128 + 4 * t + d) for t in range(4) for d in range(4)])
    a(f"""
    v_lshlrev_b32 v{vSTO}, 4, v{vSTO}
    v_lshl_add_u32 v{vRES}, v{vXA}, 9, v{vSTO}
    s_lshl_b32 s{S_TMP}, s{sK2}, 11
    v_add_u32 v{vRES}, s{S_TMP}, v{vRES}
    s_lshr_b32 s{S_TMP}, s{sK2}, 1
    s_lshl_b32 s{S_TMP}, s{S_TMP}, 9
    s_and_b32 s{S_TMP + 1}, s{sK2}, 1
    s_lshl_b32 s{S_TMP + 1}, s{S_TMP + 1}, 3
    s_add_u32 s{S_TMP}, s{S_TMP}, s{S_TMP + 1}
    v_add_u32 v{vSTO}, s{S_TMP}, v{vSTO}
    s_lshr_b32 s{sK1}, s{sK2}, 2
    s_lshl_b32 s{sK1}, s{sK1}, 7
    s_and_b32 s{S_TMP}, s{sK2}, 3
    s_lshl_b32 s{S_TMP}, s{S_TMP}, 2
    s_add_u32 s{sK1}, s{sK1}, s{S_TMP}
    s_add_u32 s{sK1}, s{sK1}, {WS_FLAGS + FL_XB}
    """)

    def res_loads(srd_):
        pre = [f"s_mul_i32 s{sO3}, s{sNL}, {2 * X_BYTES}", f"s_mul_i32 s{S_TMP + 1}, s{sNS}, {X_SEG}",
               f"s_add_u32 s{sO3}, s{sO3}, s{S_TMP + 1}", f"s_add_u32 s{sO3}, s{sO3}, {WS_X}"]
        ops = [[f"buffer_load_dwordx4 {vr(RES + 4 * k, 4)}, v{vRES}, {srd_}, s{sO3} offen offset:{1024 * k}"] for k in range(2)]
        ops[0] = pre + ops[0]
        return ops

    def compute(pre, dma, extra, mid, roll):
        a(f"v_add_u32 v{vXA}, s{sBUF}, v{vL16}")
        for i in range(8):
            a(f"v_lshlrev_b32 v{ACC + 2 * i}, 16, v{RES + i}")
            a(f"v_and_b32 v{ACC + 2 * i + 1}, 0xffff0000, v{RES + i}")
        fl = [f"s_mul_i32 s{sO1}, s{sCL}, {2 * X_BYTES}", f"s_mul_i32 s{sK3}, s{sCS}, {X_SEG}",
              f"s_add_u32 s{sO1}, s{sO1}, s{sK3}", f"s_add_u32 s{sO1}, s{sO1}, {WS_X + X_BYTES}",
              f"s_mul_i32 s{sK4}, s{sCL}, {2 * ST_BYTES}", f"s_mul_i32 s{sK3}, s{sCS}, {ST_SEG}",
              f"s_add_u32 s{sK4}, s{sK4}, s{sK3}", f"s_add_u32 s{sK4}, s{sK4}, {WS_ST + ST_BYTES}"]
        gemm32(a, ACC, 0, vXA, [RING + 4 * i for i in range(8)], pre, dma, extra, mid, roll, init=True, fill=fl)
        for k in range(2):
            for i in range(4):
                a(f"v_cvt_pk_bf16_f32 v{RING + 4 * k + i}, v{ACC + 8 * k + 2 * i}, v{ACC + 8 * k + 2 * i + 1}")
            a(f"buffer_store_dwordx4 {vr(RING + 4 * k, 4)}, v{vRES}, {WS}, s{sO1} offen offset:{1024 * k} sc1")
        a(f"v_add_f32 v{SS}, v{ACC}, v{ACC + 1}")
        a(f"v_mul_f32 v{SS + 1}, v{ACC}, v{ACC}")
        a(f"v_fmac_f32 v{SS + 1}, v{ACC + 1}, v{ACC + 1}")
        for i in range(2, 16):
            a(f"v_add_f32 v{SS}, v{SS}, v{ACC + i}")
            a(f"v_fmac_f32 v{SS + 1}, v{ACC + i}, v{ACC + i}")
        seq(a, f"v_mov_b32 v{SS + 2}, v{SS}", f"v_mov_b32 v{SS + 3}, v{SS + 1}",
            f"v_permlane32_swap_b32 v{SS}, v{SS + 2}", f"v_permlane32_swap_b32 v{SS + 1}, v{SS + 3}",
            f"v_add_f32 v{SS}, v{SS}, v{SS + 2}", f"v_add_f32 v{SS + 1}, v{SS + 1}, v{SS + 3}",
            f"buffer_store_dwordx2 {vr(SS, 2)}, v{vSTO}, {WS}, s{sK4} offen sc1")

    def out_flag():
        a(f"s_mul_i32 s{sPEND}, s{sCO}, {FL_STRIDE}")
        a(f"s_add_u32 s{sPEND}, s{sPEND}, s{sK1}")

    staged_loop(a, "Lawo", abort, done, WS_OA, X_BYTES, FL_OA, res_loads, compute, out_flag, 3, 12, sLAYS)


def role_awo2(a, abort, done):
    lane_setup(a, 64)
    vXA, vSTO, vRES, vFO = 9, 10, 12, 185
    ACC0, ACC1, RING, RES, SS, W1T, OUT = 16, 32, 48, 80, 96, 152, 108
    GA1, GA2, RB = 16, 17, 18
    sT0, sT1 = sK2, sK3

    def w0(t):
        return ar(4 * t, 4)

    def w1(t):
        return ar(144 + 4 * t, 4) if t < 28 else vr(W1T + 4 * (t - 28), 4)
    srd(a, SRD_A, KA_WO, 576 * 1152)
    a(f"""
    s_cmp_ge_u32 s{S_ROLE}, 3
    s_cselect_b32 s{sLAYS}, 1, 0
    s_cselect_b32 s{S_TMP}, 3, 0
    s_sub_u32 s{S_ROLE}, s{S_ROLE}, s{S_TMP}
    s_mul_i32 s{sT0}, s{S_ROLE}, 6
    s_lshl_b32 s{S_TMP}, s{S_WAVE}, 1
    s_add_u32 s{S_TMP + 1}, s{S_WAVE}, 2
    s_cmp_lt_u32 s{S_WAVE}, 2
    s_cselect_b32 s{S_TMP}, s{S_TMP}, s{S_TMP + 1}
    s_cselect_b32 s{S_TMP + 1}, 1, 0
    s_add_u32 s{sT0}, s{sT0}, s{S_TMP}
    s_add_u32 s{sT1}, s{sT0}, s{S_TMP + 1}
    """)
    gate(a, 4, sLAYS, vT0, vT1, abort, "Lao_gate")
    a(f"""
    v_lshrrev_b32 v{vT0}, 6, v{vL16}
    v_and_b32 v{vT1}, 0x30, v{vL16}
    v_mul_u32_u24 v{GA1}, 1152, v{vT0}
    v_add_u32 v{GA1}, v{GA1}, v{vT1}
    v_lshrrev_b32 v{GA2}, 1, v{vT0}
    v_mul_u32_u24 v{GA2}, 18, v{GA2}
    v_and_b32 v{vT0}, 1, v{vT0}
    v_add_u32 v{GA2}, v{GA2}, v{vT0}
    v_add_u32 v{GA2}, 16, v{GA2}
    v_mul_u32_u24 v{GA2}, 1152, v{GA2}
    v_add_u32 v{GA2}, v{GA2}, v{vT1}
    v_lshrrev_b32 v{vT0}, 2, v{vC}
    v_lshrrev_b32 v{vT1}, 1, v{vG}
    v_lshl_add_u32 v{vT0}, v{vT1}, 3, v{vT0}
    v_lshlrev_b32 v{RB}, 6, v{vT0}
    v_and_b32 v{vT0}, 1, v{vC}
    v_lshl_add_u32 v{RB}, v{vT0}, 4, v{RB}
    v_and_b32 v{vT0}, 1, v{vG}
    v_lshl_add_u32 v{RB}, v{vT0}, 5, v{RB}
    v_bfe_u32 v{vT0}, v{vC}, 1, 1
    v_lshl_add_u32 v{RB}, v{vT0}, 3, v{RB}
    s_lshl_b32 s{sO1}, s{S_WAVE}, 15
    v_add_u32 v{RB}, s{sO1}, v{RB}
    s_lshl_b32 s{sK1}, s{sT0}, 6
    s_lshl_b32 s{sK4}, s{sT1}, 6
    """)
    a.auto = False
    NR, N = 32, 72

    def dma(i):
        m, t = i // 36, i % 36
        a(f"s_add_u32 m0, s{sO1}, {(i % NR) * 1024}")
        a(f"s_add_u32 s{S_TMP}, s{(sK1, sK4)[m]}, {(18 * t if t < 32 else 144 * (t - 32)) * 1152}")
        a(f"buffer_load_dwordx4 v{GA1 if t < 32 else GA2}, s[{SRD_A}:{SRD_A + 3}], s{S_TMP} offen lds")
    for i in range(NR):
        dma(i)
    nis = NR
    for i0 in range(0, N, 4):
        a(f"s_waitcnt vmcnt({nis - i0 - 4})")
        for i in range(i0, i0 + 4):
            m, t = i // 36, i % 36
            dst = (w0, w1)[m](t)
            k, b0 = dst[0], int(dst[2:dst.index(":")])
            for sub in range(2):
                a(f"ds_read_b64_tr_b16 {k}[{b0 + 2 * sub}:{b0 + 2 * sub + 1}], v{RB} offset:{(i % NR) * 1024 + sub * 256}")
        a("s_waitcnt lgkmcnt(0)")
        for i in range(nis, min(N, nis + 4)):
            dma(i)
        nis = min(N, nis + 4)
    a("s_barrier")
    a.auto = True
    a.vmq, a.lgq = [], []
    a(f"""
    v_bfe_u32 v{vT0}, v{vL16}, 4, 5
    v_lshlrev_b32 v{vT0}, 4, v{vT0}
    v_lshrrev_b32 v{vT1}, 9, v{vL16}
    v_lshl_add_u32 v{vT1}, v{vT1}, 9, v{vT0}
    """)
    for j, sT in enumerate((sT0, sT1)):
        a(f"""
        s_lshl_b32 s{S_TMP}, s{sT}, 11
        v_add_u32 v{vRES + j}, s{S_TMP}, v{vT1}
        s_lshr_b32 s{S_TMP}, s{sT}, 1
        s_lshl_b32 s{S_TMP}, s{S_TMP}, 9
        s_and_b32 s{S_TMP + 1}, s{sT}, 1
        s_lshl_b32 s{S_TMP + 1}, s{S_TMP + 1}, 3
        s_add_u32 s{S_TMP}, s{S_TMP}, s{S_TMP + 1}
        v_add_u32 v{vSTO + j}, s{S_TMP}, v{vT0}
        """)
    a(f"""
    s_lshr_b32 s{sK1}, s{sT0}, 2
    s_lshl_b32 s{sK1}, s{sK1}, 7
    s_and_b32 s{S_TMP}, s{sT0}, 3
    s_lshl_b32 s{S_TMP}, s{S_TMP}, 2
    s_add_u32 s{sK1}, s{sK1}, s{S_TMP}
    s_lshr_b32 s{sK4}, s{sT1}, 2
    s_lshl_b32 s{sK4}, s{sK4}, 7
    s_and_b32 s{S_TMP}, s{sT1}, 3
    s_lshl_b32 s{S_TMP}, s{S_TMP}, 2
    s_add_u32 s{sK4}, s{sK4}, s{S_TMP}
    s_sub_u32 s{S_TMP}, s{sK4}, s{sK1}
    v_lshrrev_b32 v{vFO}, 4, v{vL16}
    v_mul_lo_u32 v{vFO}, v{vFO}, s{S_TMP}
    s_add_u32 s{sK1}, s{sK1}, {WS_FLAGS + FL_XB}
    """)

    def res_loads(srd_):
        pre = [f"s_mul_i32 s{sO3}, s{sNL}, {2 * X_BYTES}", f"s_mul_i32 s{S_TMP + 1}, s{sNS}, {X_SEG}",
               f"s_add_u32 s{sO3}, s{sO3}, s{S_TMP + 1}", f"s_add_u32 s{sO3}, s{sO3}, {WS_X}"]
        ops = [[f"buffer_load_dwordx4 {vr(RES + 8 * j + 4 * k, 4)}, v{vRES + j}, {srd_}, s{sO3} offen offset:{1024 * k}"] for j in range(2) for k in range(2)]
        ops[0] = pre + ops[0]
        return ops

    def compute(a, hook):
        a(f"v_add_u32 v{vXA}, s{sBUF}, v{vL16}")
        ring = [RING + 4 * i for i in range(8)]
        nr = 8

        def rd(t):
            return f"ds_read_b128 {vr(ring[t % nr], 4)}, v{vXA} offset:{t * 1024}"
        for t in range(nr - 1):
            a(rd(t))
        for j, ACC in enumerate((ACC0, ACC1)):
            for i in range(8):
                a(f"v_lshlrev_b32 v{ACC + 2 * i}, 16, v{RES + 8 * j + i}")
                a(f"v_and_b32 v{ACC + 2 * i + 1}, 0xffff0000, v{RES + 8 * j + i}")
        fill = [f"s_mul_i32 s{sO1}, s{sCL}, {2 * X_BYTES}", f"s_mul_i32 s{sK3}, s{sCS}, {X_SEG}",
                f"s_add_u32 s{sO1}, s{sO1}, s{sK3}", f"s_add_u32 s{sO1}, s{sO1}, {WS_X + X_BYTES}",
                f"s_mul_i32 s{sK4}, s{sCL}, {2 * ST_BYTES}", f"s_mul_i32 s{sK3}, s{sCS}, {ST_SEG}",
                f"s_add_u32 s{sK4}, s{sK4}, s{sK3}", f"s_add_u32 s{sK4}, s{sK4}, {WS_ST + ST_BYTES}"]
        for t in range(36):
            x = vr(ring[t % nr], 4)
            a(MF32(ACC0, w0(t), x))
            if t + nr - 1 < 36:
                a(rd(t + nr - 1))
            a(MF32(ACC1, w1(t), x))
            k = 3
            while fill and k > 0:
                seq(a, fill.pop(0)); k -= 1
            hook(t)
        for j, ACC in enumerate((ACC0, ACC1)):
            for k in range(2):
                o = OUT + 8 * j + 4 * k
                for i in range(4):
                    a(f"v_cvt_pk_bf16_f32 v{o + i}, v{ACC + 8 * k + 2 * i}, v{ACC + 8 * k + 2 * i + 1}")
                a(f"buffer_store_dwordx4 {vr(o, 4)}, v{vRES + j}, {WS}, s{sO1} offen offset:{1024 * k} sc1")
        ONE2 = SS + 8
        a(f"v_mov_b32 v{ONE2}, 0x3f803f80")
        for j in range(2):
            a(f"v_mov_b32 v{SS + 4 * j}, 0")
            a(f"v_mov_b32 v{SS + 4 * j + 1}, 0")
        for i in range(8):
            for j in range(2):
                a(f"v_dot2c_f32_bf16 v{SS + 4 * j}, v{OUT + 8 * j + i}, v{ONE2}")
                a(f"v_dot2c_f32_bf16 v{SS + 4 * j + 1}, v{OUT + 8 * j + i}, v{OUT + 8 * j + i}")
        a("s_nop 2")
        for j in range(2):
            S_ = SS + 4 * j
            a(f"v_mov_b32 v{S_ + 2}, v{S_}")
            a(f"v_mov_b32 v{S_ + 3}, v{S_ + 1}")
        for j in range(2):
            S_ = SS + 4 * j
            a(f"v_permlane32_swap_b32 v{S_}, v{S_ + 2}")
            a(f"v_permlane32_swap_b32 v{S_ + 1}, v{S_ + 3}")
        for j in range(2):
            S_ = SS + 4 * j
            a(f"v_add_f32 v{S_}, v{S_}, v{S_ + 2}")
            a(f"v_add_f32 v{S_ + 1}, v{S_ + 1}, v{S_ + 3}")
            a(f"buffer_store_dwordx2 {vr(S_, 2)}, v{vSTO + j}, {WS}, s{sK4} offen sc1")

    def out_flag():
        a(f"s_mul_i32 s{sPEND}, s{sCO}, {FL_STRIDE}")
        a(f"s_add_u32 s{sPEND}, s{sPEND}, s{sK1}")

    eager_loop(a, "Lawo", abort, done, WS_OA, X_BYTES, FL_OA, ("reg", res_loads), compute, out_flag, 6, 184, sLAYS, pub=(vFO, 3))


def role_awo3(a, abort, done):
    lane_setup(a, 64)
    vXA, vRES, vSTO, vRZ = 9, 10, 11, 12
    ACC, RING, RES, SS, OUT = 16, 40, 64, 80, 96
    GA1, GA2, RB = 16, 17, 18
    sSLC = sK2

    def wf(tile, t):
        return ar(4 * (3 * t + tile), 4)
    srd(a, SRD_A, KA_WO, 576 * 1152)
    a(f"""
    s_cmp_ge_u32 s{S_ROLE}, 3
    s_cselect_b32 s{sLAYS}, 1, 0
    s_cselect_b32 s{S_TMP}, 3, 0
    s_sub_u32 s{S_ROLE}, s{S_ROLE}, s{S_TMP}
    s_lshl_b32 s{sSLC}, s{S_ROLE}, 2
    s_add_u32 s{sSLC}, s{sSLC}, s{S_WAVE}
    """)
    gate(a, 4, sLAYS, vT0, vT1, abort, "Lao_gate")
    a(f"""
    v_lshrrev_b32 v{vT0}, 7, v{vL16}
    v_and_b32 v{vT1}, 0x70, v{vL16}
    v_mul_u32_u24 v{GA1}, 1152, v{vT0}
    v_add_u32 v{GA1}, v{GA1}, v{vT1}
    v_lshrrev_b32 v{GA2}, 1, v{vT0}
    v_mul_u32_u24 v{GA2}, 18, v{GA2}
    v_and_b32 v{vT0}, 1, v{vT0}
    v_add_u32 v{GA2}, v{GA2}, v{vT0}
    v_add_u32 v{GA2}, 16, v{GA2}
    v_mul_u32_u24 v{GA2}, 1152, v{GA2}
    v_add_u32 v{GA2}, v{GA2}, v{vT1}
    v_lshrrev_b32 v{vT0}, 2, v{vC}
    v_lshl_add_u32 v{vT0}, v{vG}, 3, v{vT0}
    v_lshlrev_b32 v{RB}, 7, v{vT0}
    v_and_b32 v{vT0}, 3, v{vC}
    v_lshl_add_u32 v{RB + 1}, v{vT0}, 3, v{RB}
    v_lshl_add_u32 v{RB}, v{vT0}, 4, v{RB}
    s_lshl_b32 s{sO1}, s{S_WAVE}, 15
    v_add_u32 v{RB}, s{sO1}, v{RB}
    v_add_u32 v{RB + 1}, s{sO1}, v{RB + 1}
    s_mul_i32 s{sK1}, s{sSLC}, 96
    """)
    a.auto = False
    NR, N = 8, 18

    def dma(t):
        for q in range(4):
            a(f"s_add_u32 m0, s{sO1}, {(t % NR) * 4096 + q * 1024}")
            row = 36 * t + 18 * (q >> 1) + 8 * (q & 1) if t < 16 else 18 * (16 * (t - 16) + 4 * q)
            a(f"s_add_u32 s{S_TMP}, s{sK1}, {row * 1152}")
            a(f"buffer_load_dwordx4 v{GA1 if t < 16 else GA2}, s[{SRD_A}:{SRD_A + 3}], s{S_TMP} offen lds")
    for t in range(NR):
        dma(t)
    nis = NR
    for t in range(N):
        a(f"s_waitcnt vmcnt({4 * (nis - t - 1)})")
        for tile in range(3):
            dst = wf(tile, t)
            b0 = int(dst[2:dst.index(":")])
            for sub in range(2):
                ad, off = (RB, (0, 8)[tile]) if tile < 2 else (RB + 1, 64)
                a(f"ds_read_b64_tr_b16 a[{b0 + 2 * sub}:{b0 + 2 * sub + 1}], v{ad} offset:{(t % NR) * 4096 + sub * 512 + off}")
        a("s_waitcnt lgkmcnt(0)")
        if nis < N:
            dma(nis)
            nis += 1
    a("s_barrier")
    a.auto = True
    a.vmq, a.lgq = [], []
    a(f"""
    v_lshlrev_b32 v{vT0}, 4, v{vC}
    v_lshl_add_u32 v{vRES}, v{vG}, 9, v{vT0}
    s_mul_i32 s{S_TMP}, s{sSLC}, {6 * 512}
    v_add_u32 v{vRES}, s{S_TMP}, v{vRES}
    v_lshrrev_b32 v{vT1}, 1, v{vG}
    v_lshl_add_u32 v{vRZ}, v{vT1}, 9, v{vT0}
    v_and_b32 v{vT1}, 1, v{vG}
    v_lshl_add_u32 v{vRZ}, v{vT1}, 3, v{vRZ}
    s_add_u32 s{S_TMP}, s{S_TMP}, 2048
    v_add_u32 v{vRZ}, s{S_TMP}, v{vRZ}
    s_lshr_b32 s{S_TMP}, s{sSLC}, 1
    s_lshl_b32 s{S_TMP}, s{S_TMP}, 9
    s_and_b32 s{S_TMP + 1}, s{sSLC}, 1
    s_lshl_b32 s{S_TMP + 1}, s{S_TMP + 1}, 3
    s_add_u32 s{S_TMP}, s{S_TMP}, s{S_TMP + 1}
    v_add_u32 v{vSTO}, s{S_TMP}, v{vT0}
    s_lshl_b32 s{sK1}, s{S_ROLE}, 7
    s_lshl_b32 s{S_TMP}, s{S_WAVE}, 2
    s_add_u32 s{sK1}, s{sK1}, s{S_TMP}
    s_add_u32 s{sK1}, s{sK1}, {WS_FLAGS + FL_XB}
    """)

    def res_loads(srd_):
        pre = [f"s_mul_i32 s{sO3}, s{sNL}, {2 * X_BYTES}", f"s_mul_i32 s{S_TMP + 1}, s{sNS}, {X_SEG}",
               f"s_add_u32 s{sO3}, s{sO3}, s{S_TMP + 1}", f"s_add_u32 s{sO3}, s{sO3}, {WS_X}"]
        ops = []
        for tt in range(2):
            ops.append([f"buffer_load_dwordx4 {vr(RES + 8 * tt, 4)}, v{vRES}, {srd_}, s{sO3} offen offset:{256 * tt}"])
            ops.append([f"buffer_load_dwordx2 {vr(RES + 8 * tt + 4, 2)}, v{vRZ}, {srd_}, s{sO3} offen offset:{256 * tt}"])
        ops[0] = pre + ops[0]
        return ops

    def compute(a, hook):
        a(f"v_lshlrev_b32 v{vXA}, 9, v{vG}")
        a(f"v_lshl_add_u32 v{vXA}, v{vC}, 4, v{vXA}")
        a(f"v_add_u32 v{vXA}, s{sBUF}, v{vXA}")
        nr = 6

        def rd(n):
            return f"ds_read_b128 {vr(RING + 4 * (n % nr), 4)}, v{vXA} offset:{(n >> 1) * 2048 + (n & 1) * 256}"
        for n in range(nr - 1):
            a(rd(n))
        for tt in range(2):
            for i in range(6):
                a(f"v_lshlrev_b32 v{ACC + 12 * tt + 2 * i}, 16, v{RES + 8 * tt + i}")
                a(f"v_and_b32 v{ACC + 12 * tt + 2 * i + 1}, 0xffff0000, v{RES + 8 * tt + i}")
        fill = [f"s_mul_i32 s{sO1}, s{sCL}, {2 * X_BYTES}", f"s_mul_i32 s{sK3}, s{sCS}, {X_SEG}",
                f"s_add_u32 s{sO1}, s{sO1}, s{sK3}", f"s_add_u32 s{sO1}, s{sO1}, {WS_X + X_BYTES}",
                f"s_mul_i32 s{sK4}, s{sCL}, {2 * ST_BYTES}", f"s_mul_i32 s{sK3}, s{sCS}, {ST_SEG}",
                f"s_add_u32 s{sK4}, s{sK4}, s{sK3}", f"s_add_u32 s{sK4}, s{sK4}, {WS_ST + ST_BYTES}"]
        for n in range(36):
            t, tt = n >> 1, n & 1
            x = vr(RING + 4 * (n % nr), 4)
            for tile in range(3):
                a(MF(ACC + 12 * tt + 4 * tile, wf(tile, t), x))
                if tile == 0 and n + nr - 1 < 36:
                    a(rd(n + nr - 1))
                if tile == 1 and fill:
                    a(fill.pop(0))
            hook(n)
        ONE2 = SS + 8
        a(f"v_mov_b32 v{ONE2}, 0x3f803f80")
        for tt in range(2):
            o = OUT + 8 * tt
            for i in range(6):
                a(f"v_cvt_pk_bf16_f32 v{o + i}, v{ACC + 12 * tt + 2 * i}, v{ACC + 12 * tt + 2 * i + 1}")
            a(f"buffer_store_dwordx4 {vr(o, 4)}, v{vRES}, {WS}, s{sO1} offen offset:{256 * tt} sc1")
            a(f"buffer_store_dwordx2 {vr(o + 4, 2)}, v{vRZ}, {WS}, s{sO1} offen offset:{256 * tt} sc1")
        for tt in range(2):
            a(f"v_mov_b32 v{SS + 4 * tt}, 0")
            a(f"v_mov_b32 v{SS + 4 * tt + 1}, 0")
        for i in range(6):
            for tt in range(2):
                a(f"v_dot2c_f32_bf16 v{SS + 4 * tt}, v{OUT + 8 * tt + i}, v{ONE2}")
                a(f"v_dot2c_f32_bf16 v{SS + 4 * tt + 1}, v{OUT + 8 * tt + i}, v{OUT + 8 * tt + i}")
        a("s_nop 2")
        for sw in (32, 16):
            for tt in range(2):
                S_ = SS + 4 * tt
                a(f"v_mov_b32 v{S_ + 2}, v{S_}")
                a(f"v_mov_b32 v{S_ + 3}, v{S_ + 1}")
            for tt in range(2):
                S_ = SS + 4 * tt
                a(f"v_permlane{sw}_swap_b32 v{S_}, v{S_ + 2}")
                a(f"v_permlane{sw}_swap_b32 v{S_ + 1}, v{S_ + 3}")
            for tt in range(2):
                S_ = SS + 4 * tt
                a(f"v_add_f32 v{S_}, v{S_}, v{S_ + 2}")
                a(f"v_add_f32 v{S_ + 1}, v{S_ + 1}, v{S_ + 3}")
        a("s_mov_b64 exec, 0xffff")
        for tt in range(2):
            a(f"buffer_store_dwordx2 {vr(SS + 4 * tt, 2)}, v{vSTO}, {WS}, s{sK4} offen offset:{256 * tt} sc1")
        a("s_mov_b64 exec, -1")

    def out_flag():
        a(f"s_mul_i32 s{sPEND}, s{sCO}, {FL_STRIDE}")
        a(f"s_add_u32 s{sPEND}, s{sPEND}, s{sK1}")

    eager_loop(a, "Lawo", abort, done, WS_OA, X_BYTES, FL_OA, ("reg", res_loads), compute, out_flag, 6, 184, sLAYS,
               hpos=(int(os.environ.get("HAO", "17")), [int(x) for x in os.environ.get("LAO", "10,28").split(",")], 3,
                     [int(x) for x in os.environ.get("WAO", "1,15").split(",")]))


def role_aq(a, abort, done, nt=""):
    lane_setup(a, 48)
    vXA, vSTA, vLDS, vOUT = 9, 10, 11, 13
    ACC, CS, RING, STR = 16, 36, 56, 68
    LN, BI = 92, 72
    ST8 = 112
    QB, KC, VA, VB, SP, PP = 128, 132, 136, 140, 144, 68
    WV = 152

    def wreg(tile, t, i=None):
        n = (tile * 18 + t) * 4
        k, b = ("v", WV + n) if n < 104 else ("a", n - 104)
        return f"{k}[{b}:{b + 3}]" if i is None else f"{k}{b + i}"

    a(f"""
    s_lshr_b32 s{sLAYS}, s{S_ROLE}, 4
    s_and_b32 s{S_ROLE}, s{S_ROLE}, 15
    s_lshr_b32 s{sK2}, s{S_ROLE}, 1
    s_lshl_b32 s{sK2}, s{sK2}, 2
    s_and_b32 s{S_TMP}, s{S_ROLE}, 1
    s_add_u32 s{sK2}, s{sK2}, s{S_TMP}
    s_and_b32 s{S_TMP}, s{S_WAVE}, 2
    s_add_u32 s{sK2}, s{sK2}, s{S_TMP}
    s_and_b32 s{sK3}, s{S_WAVE}, 1
    """)
    gate(a, 4, sLAYS, vT0, vT1, abort, "Laq_gate")
    CW, CE = 3 * 96 * 128, 2 * 96 * 32
    CB = CW + CE
    GM, RM, RE, EA, ED = 16, 17, 18, 19, 20
    srd(a, SRD_A, KA_WQKV, 576 * 3456)
    A_ = f"s[{SRD_A}:{SRD_A + 3}]"
    a(f"""
    v_lshrrev_b32 v{vT0}, 7, v{vL16}
    v_mul_u32_u24 v{GM}, 3456, v{vT0}
    v_and_b32 v{vT0}, 0x70, v{vL16}
    v_add_u32 v{GM}, v{GM}, v{vT0}
    s_lshr_b32 s{S_TMP}, s{S_WAVE}, 1
    s_mul_i32 s{sO1}, s{S_TMP}, 72
    v_lshrrev_b32 v{vT0}, 2, v{vC}
    v_lshl_add_u32 v{vT0}, v{vG}, 3, v{vT0}
    v_and_b32 v{vT1}, 3, v{vC}
    v_lshlrev_b32 v{RM}, 7, v{vT0}
    v_lshl_add_u32 v{RM}, v{vT1}, 3, v{RM}
    v_add_u32 v{RM}, s{sO1}, v{RM}
    v_lshlrev_b32 v{RE}, 5, v{vT0}
    v_min_u32 v{vT1}, 1, v{vT1}
    v_lshl_add_u32 v{RE}, v{vT1}, 4, v{RE}
    s_mul_i32 s{S_TMP}, s{S_TMP}, {96 * 32}
    s_add_u32 s{S_TMP}, s{S_TMP}, {CW}
    v_add_u32 v{RE}, s{S_TMP}, v{RE}
    s_sub_u32 s{S_TMP}, s{sK2}, s{S_WAVE}
    """)
    a(f"""
    s_lshr_b32 s{S_TMP}, s{S_WAVE}, 1
    s_lshl_b32 s{S_TMP}, s{S_TMP}, 1
    s_sub_u32 s{S_TMP}, s{sK2}, s{S_TMP}
    s_mul_i32 s{sK1}, s{S_TMP}, 36
    s_mul_i32 s{S_TMP}, s{S_WAVE}, {24 * 3456}
    s_add_u32 s{sK1}, s{sK1}, s{S_TMP}
    s_mul_i32 s{sO2}, s{S_WAVE}, {24 * 128}
    """)
    TID = 21
    a(f"""
    v_lshrrev_b32 v{TID}, 4, v{vL16}
    s_lshl_b32 s{S_TMP}, s{S_WAVE}, 6
    v_add_u32 v{TID}, s{S_TMP}, v{TID}
    v_cmp_le_u32 vcc, 96, v{TID}
    v_cndmask_b32 v{vT0}, 0, 1, vcc
    v_mul_u32_u24 v{vT1}, 96, v{vT0}
    v_sub_u32 v{vT1}, v{TID}, v{vT1}
    v_lshlrev_b32 v{EA}, 7, v{vT1}
    v_mul_u32_u24 v{ED}, 72, v{vT0}
    v_add_u32 v{EA}, v{EA}, v{ED}
    v_add_u32 v{EA}, 32, v{EA}
    v_lshlrev_b32 v{ED}, 5, v{TID}
    v_add_u32 v{ED}, {CW}, v{ED}
    """)
    for i in range(4):
        a(f"v_mov_b32 v{24 + i}, 0")
    a(f"v_mov_b32 v31, 0")
    a(f"s_cmp_eq_u32 s{S_WAVE}, 3")
    a("s_cselect_b64 s[76:77], 0, -1")
    a("s_mov_b64 exec, s[76:77]")
    for b in range(3):
        a(f"v_add_u32 v22, {b * CB}, v{ED}")
        a(f"ds_write_b128 v22, v[24:27] offset:16")
    a("s_mov_b64 exec, -1")
    a.auto = False

    def dma(c):
        b = c % 3
        for m in range(3):
            for q in range(3):
                a(f"s_add_u32 m0, s{sO2}, {b * CB + m * 96 * 128 + q * 1024}")
                a(f"s_add_u32 s{S_TMP}, s{sK1}, {(96 * c + 8 * q) * 3456 + m * 1152}")
                a(f"buffer_load_dwordx4 v{GM}, {A_}, s{S_TMP} offen lds")
    dma(0)
    dma(1)
    dma(2)
    for c in range(6):
        b = c % 3
        a(f"s_waitcnt vmcnt({[18, 9, 9, 9, 9, 0][c]}) lgkmcnt(0)")
        a("s_barrier")
        if 1 <= c <= 3:
            dma(c + 2)
        a("s_mov_b64 exec, s[76:77]")
        va = 22
        a(f"v_add_u32 v{va}, {b * CB}, v{EA}")
        for m in range(3):
            a(f"ds_read_b32 v{28 + m}, v{va} offset:{m * 96 * 128}")
        a("s_waitcnt lgkmcnt(0)")
        a(f"v_add_u32 v{va}, {b * CB}, v{ED}")
        a(f"ds_write_b128 v{va}, v[28:31]")
        a("s_mov_b64 exec, -1")
        a(f"v_add_u32 v{va}, {b * CB}, v{RM}")
        a(f"v_add_u32 v23, {b * CB}, v{RE}")
        for tp in range(3):
            for tile in (0, 1, 3):
                for sub in range(2):
                    dst = wreg(tile, 3 * c + tp)
                    k, b0 = dst[0], int(dst[2:dst.index(":")])
                    a(f"ds_read_b64_tr_b16 {k}[{b0 + 2 * sub}:{b0 + 2 * sub + 1}], v{va} offset:{ {0: 0, 1: 1, 3: 2}[tile] * 96 * 128 + (32 * tp + 4 * sub) * 128}")
        a("s_waitcnt lgkmcnt(0)")
        a("s_barrier")
        for tp in range(3):
            for tile in (2, 4):
                for sub in range(2):
                    dst = wreg(tile, 3 * c + tp)
                    k, b0 = dst[0], int(dst[2:dst.index(":")])
                    a(f"ds_read_b64_tr_b16 {k}[{b0 + 2 * sub}:{b0 + 2 * sub + 1}], v23 offset:{(32 * tp + 4 * sub) * 32 + (8 if tile == 4 else 0)}")
    a("s_waitcnt lgkmcnt(0)")
    a("s_barrier")
    a.auto = True
    a.vmq, a.lgq = [], []
    a.force_wait(vm=0) if TRACE == 6 else None
    trace6(a, vT0, vT1)
    for i in range(4):
        a(f"v_mov_b32 v{RING + i}, 0x3f803f80")
    for t in range(18):
        for tile in range(5):
            w, o = wreg(tile, t), vr(RING, 4)
            a(MF(CS + 4 * tile, o if tile >= 3 else w, w if tile >= 3 else o, "0" if t == 0 else None))
    NEG = hex(f32bits(-1e30))
    a(f"""
    v_lshlrev_b32 v{vSTA}, 5, v{vC}
    s_lshl_b32 s{S_TMP}, s{sK3}, 4
    v_add_u32 v{vSTA}, s{S_TMP}, v{vSTA}
    v_mul_u32_u24 v{vT1}, 1536, v{vG}
    v_add_u32 v{vSTA}, v{vSTA}, v{vT1}
    s_lshl_b32 s{S_TMP}, s{S_WAVE}, 7
    s_add_u32 s{S_TMP}, s{S_TMP}, {2 * XBUF}
    v_lshl_add_u32 v{vLDS}, v{vC}, 3, s{S_TMP}
    v_lshl_add_u32 v{vLDS + 1}, v{vG}, 5, s{S_TMP}
    v_lshlrev_b32 v{vOUT}, 5, v{vC}
    s_lshl_b32 s{S_TMP}, s{sK3}, 4
    v_add_u32 v{vOUT}, s{S_TMP}, v{vOUT}
    s_lshr_b32 s{S_TMP}, s{sK2}, 2
    s_add_u32 s{S_TMP}, s{S_TMP}, 64
    s_lshl_b32 s{S_TMP}, s{S_TMP}, 9
    s_and_b32 s{S_TMP + 1}, s{sK2}, 3
    s_lshl_b32 s{S_TMP + 1}, s{S_TMP + 1}, 2
    s_add_u32 s{S_TMP}, s{S_TMP}, s{S_TMP + 1}
    v_add_u32 v{vOUT + 1}, s{S_TMP}, v{vOUT}
    v_lshrrev_b32 v{vT0}, 1, v{vG}
    v_lshl_add_u32 v{vOUT}, v{vT0}, 9, v{vOUT}
    v_and_b32 v{vT0}, 1, v{vG}
    v_lshl_add_u32 v{vOUT}, v{vT0}, 3, v{vOUT}
    s_lshl_b32 s{S_TMP}, s{sK2}, 10
    v_add_u32 v{vOUT}, s{S_TMP}, v{vOUT}
    s_lshl_b32 s{sK1}, s{S_ROLE}, 7
    s_lshl_b32 s{S_TMP}, s{S_WAVE}, 2
    s_add_u32 s{sK1}, s{sK1}, s{S_TMP}
    s_add_u32 s{sK1}, s{sK1}, {WS_FLAGS + FL_OA}
    s_mov_b32 s{sK4}, {hex(f32bits(18 ** -0.5 * 1.4426950408889634))}
    v_mov_b32 v{vT1}, {NEG}
    """)
    for i in range(4):
        a(f"v_lshl_add_u32 v{vT0}, v{vG}, 2, {i}")
        a(f"v_sub_u32 v{vT0}, v{vT0}, v{vC}")
        a(f"v_cmp_le_i32 vcc, 9, v{vT0}")
        a(f"v_cndmask_b32 v{BI + i}, v{vT1}, v{vZERO}, vcc")
        a(f"v_add_u32 v{vT0}, 7, v{vT0}")
        a(f"v_cmp_ge_u32 vcc, 7, v{vT0}")
        a(f"v_cndmask_b32 v{BI + 4 + i}, v{vT1}, v{vZERO}, vcc")
    for r in (ST8, VA, VB):
        for i in range(4):
            a(f"v_mov_b32 v{r + i}, 0")
    for i in range(4):
        a(f"v_mov_b32 v{ST8 + 4 + i}, 0x3f803f80")
    a(f"v_mov_b32 v{QB + 3}, 0")
    a(f"v_mov_b32 v{KC + 3}, 0")

    def st_loads(srd_):
        pre = [f"s_mul_i32 s{sO3}, s{sNL}, {2 * ST_BYTES}", f"s_mul_i32 s{S_TMP + 1}, s{sNS}, {ST_SEG}",
               f"s_add_u32 s{sO3}, s{sO3}, s{S_TMP + 1}", f"s_add_u32 s{sO3}, s{sO3}, {WS_ST}"]
        ops = [[f"buffer_load_dwordx4 {vr(STR + 12 + 4 * i, 4)}, v{vSTA}, {srd_}, s{sO3} offen offset:{512 * i}"] for i in range(3)]
        ops[0] = pre + ops[0]
        return ops

    def st2(text, mask):
        if not LOCAL:
            return [f"s_mov_b64 exec, {mask}", text + " sc1", "s_mov_b64 exec, -1"]
        return [f"s_mov_b64 exec, {mask}", text, f"s_and_b64 exec, exec, s[{sIMP}:{sIMP + 1}]", text + " sc1", "s_mov_b64 exec, -1"]

    def compute(a, hook):
        S0 = STR + 12
        a(f"v_lshlrev_b32 v{vXA}, 9, v{vG}")
        a(f"v_lshl_add_u32 v{vXA}, v{vC}, 5, v{vXA}")
        a(f"s_lshl_b32 s{S_TMP}, s{sK3}, 4")
        a(f"s_add_u32 s{S_TMP}, s{S_TMP}, s{sBUF}")
        a(f"v_add_u32 v{vXA}, s{S_TMP}, v{vXA}")
        S1, S2 = S0, S0 + 1
        sm = [f"v_add_f32 v{S0 + j}, v{S0 + j}, v{S0 + 4 * i + j}" for i in (1, 2) for j in range(4)]
        sm += [f"v_add_f32 v{S1}, v{S1}, v{S0 + 2}", f"v_add_f32 v{S2}, v{S2}, v{S0 + 3}"]
        for sw in (32, 16):
            sm += [f"v_mov_b32 v{S0 + 2}, v{S1}", f"v_mov_b32 v{S0 + 3}, v{S2}",
                   f"v_permlane{sw}_swap_b32 v{S1}, v{S0 + 2}", f"v_permlane{sw}_swap_b32 v{S2}, v{S0 + 3}",
                   f"v_add_f32 v{S1}, v{S1}, v{S0 + 2}", f"v_add_f32 v{S2}, v{S2}, v{S0 + 3}"]
        sm += [f"v_mul_f32 v{S1}, {hex(f32bits(1.0 / 576))}, v{S1}", f"v_mul_f32 v{S2}, {hex(f32bits(1.0 / 576))}, v{S2}",
               f"v_fma_f32 v{S2}, -v{S1}, v{S1}, v{S2}", f"v_max_f32 v{S2}, 0, v{S2}",
               f"v_add_f32 v{S2}, {hex(f32bits(1e-5))}, v{S2}", f"v_rsq_f32 v{LN}, v{S2}",
               f"v_mul_f32 v{LN + 1}, v{S1}, v{LN}",
               f"ds_write_b64 v{vLDS}, {vr(LN, 2)}",
               f"ds_read_b128 {vr(LN + 4, 4)}, v{vLDS + 1}", f"ds_read_b128 {vr(LN + 8, 4)}, v{vLDS + 1} offset:16"]
        def rd(n):
            return f"ds_read_b128 {vr(RING + 4 * (n % 3), 4)}, v{vXA} offset:{(n % 18) * 2048}"
        q0, k0, ex, v0, vx = [ACC + 4 * i for i in range(5)]
        KP = ST8
        MX, T1 = vT0, vT1
        LQ, OX, OY, ON = ACC, ACC + 4, ACC + 8, ST8 + 4

        def fold(tile):
            ops = []
            for i in range(4):
                r = ACC + 4 * tile + i
                rs, mr = (LN + 4 + 2 * i, LN + 5 + 2 * i) if tile >= 3 else (LN, LN + 1)
                ops += [f"v_mul_f32 v{LN + 2}, v{mr}, v{CS + 4 * tile + i}", f"v_fma_f32 v{r}, v{r}, v{rs}, -v{LN + 2}"]
            return ops
        post = fold(0) + fold(2) + fold(1) + [
            f"v_cvt_pk_bf16_f32 v{QB}, v{q0}, v{q0 + 1}", f"v_cvt_pk_bf16_f32 v{QB + 1}, v{q0 + 2}, v{q0 + 3}",
            f"v_cvt_pk_bf16_f32 v{QB + 2}, v{ex}, v{ex + 1}",
            f"v_cvt_pk_bf16_f32 v{KC}, v{k0}, v{k0 + 1}", f"v_cvt_pk_bf16_f32 v{KC + 1}, v{k0 + 2}, v{k0 + 3}",
            f"v_cvt_pk_bf16_f32 v{KC + 2}, v{ex + 2}, v{ex + 3}",
            [f"s_cmp_eq_u32 s{sCS}, 0", f"s_cselect_b32 s{sO1}, {NEG}, 0"],
            None, MF(SP, vr(KP, 4), vr(QB, 4), "0"), None, MF(SP + 4, vr(KC, 4), vr(QB, 4), "0"), None, None]
        post += [f"v_mov_b32 v{KP + i}, v{KC + i}" for i in range(3)] + [None] * 3
        post += [f"v_fma_f32 v{SP + i}, v{SP + i}, s{sK4}, v{BI + i}" for i in range(8)]
        post += [f"v_add_f32 v{SP + i}, s{sO1}, v{SP + i}" for i in range(4)]
        post += [f"v_max3_f32 v{MX}, v{SP}, v{SP + 1}, v{SP + 2}", f"v_max3_f32 v{MX}, v{MX}, v{SP + 3}, v{SP + 4}",
                 f"v_max3_f32 v{MX}, v{MX}, v{SP + 5}, v{SP + 6}", f"v_max_f32 v{MX}, v{MX}, v{SP + 7}",
                 f"v_mov_b32 v{T1}, v{MX}", None, f"v_permlane32_swap_b32 v{MX}, v{T1}", f"v_max_f32 v{MX}, v{MX}, v{T1}",
                 f"v_mov_b32 v{T1}, v{MX}", None, f"v_permlane16_swap_b32 v{MX}, v{T1}", f"v_max_f32 v{MX}, v{MX}, v{T1}"]
        post += [f"v_sub_f32 v{SP + i}, v{SP + i}, v{MX}" for i in range(8)]
        post += [f"v_exp_f32 v{SP + i}, v{SP + i}" for i in range(8)]
        post += [f"v_cvt_pk_bf16_f32 v{PP + i}, v{SP + 2 * i}, v{SP + 2 * i + 1}" for i in range(4)]
        post += [None, MF(LQ, vr(ON, 4), vr(PP, 4), "0"),
                 [f"s_mul_i32 s{sO1}, s{sCO}, {X_SEG}", f"s_add_u32 s{sO1}, s{sO1}, {WS_OA}"]]
        seq(a, rd(0), rd(1))
        for n in range(36):
            t = n % 18
            if n + 2 < 36:
                a(rd(n + 2))
            x = vr(RING + 4 * (n % 3), 4)
            for tile in ((0, 1, 2) if n < 18 else (3, 4)):
                w = wreg(tile, t)
                a(MF(ACC + 4 * tile, x if tile >= 3 else w, w if tile >= 3 else x, "0" if t == 0 else None))
                if n < 18 and sm:
                    a(sm.pop(0))
                if n >= 19:
                    for _ in range(3 if n >= 30 else 2):
                        if post:
                            seq(a, post.pop(0))
            if n == 17:
                assert not sm
            hook(n)
        seq(a, post, f"v_rcp_f32 v{T1}, v{LQ}", fold(3),
            f"v_cvt_pk_bf16_f32 v{VA + 2}, v{v0}, v{v0 + 1}", f"v_cvt_pk_bf16_f32 v{VA + 3}, v{v0 + 2}, v{v0 + 3}",
            fold(4)[:2], MF(OX, vr(VA, 4), vr(PP, 4), "0"), fold(4)[2:],
            f"v_cvt_pk_bf16_f32 v{VB + 2}, v{vx}, v{vx + 1}", f"v_cvt_pk_bf16_f32 v{VB + 3}, v{vx + 2}, v{vx + 3}",
            f"v_mov_b32 v{VA}, v{VA + 2}", f"v_mov_b32 v{VA + 1}, v{VA + 3}",
            MF(OY, vr(VB, 4), vr(PP, 4), "0"),
            [f"v_mul_f32 v{OX + i}, v{T1}, v{OX + i}" for i in range(4)],
            f"v_cvt_pk_bf16_f32 v{OX}, v{OX}, v{OX + 1}", f"v_cvt_pk_bf16_f32 v{OX + 1}, v{OX + 2}, v{OX + 3}",
            st2(f"buffer_store_dwordx2 {vr(OX, 2)}, v{vOUT}, {WS}, s{sO1} offen", "-1"),
            f"v_mov_b32 v{VB}, v{VB + 2}", f"v_mov_b32 v{VB + 1}, v{VB + 3}",
            f"v_mul_f32 v{OY}, v{T1}, v{OY}", f"v_mul_f32 v{OY + 1}, v{T1}, v{OY + 1}",
            f"v_cvt_pk_bf16_f32 v{OY}, v{OY}, v{OY + 1}",
            st2(f"buffer_store_dword v{OY}, v{vOUT + 1}, {WS}, s{sO1} offen", "0xffff"))

    def out_flag():
        a(f"s_mul_i32 s{sPEND}, s{sCO}, {FL_STRIDE}")
        a(f"s_add_u32 s{sPEND}, s{sPEND}, s{sK1}")

    if LOCAL:
        class_impure(a, sIMP, vL16, vT0, vT1, abort, "Laq_pure")
    eager_loop(a, "Laq", abort, done, WS_X, 2 * X_BYTES, FL_XA, ("reg", st_loads), compute, out_flag, 4 if LOCAL else 2, 110, sLAYS,
               hpos=(int(os.environ.get("HAQ", "5" if LOCAL else "14")), [int(x) for x in os.environ.get("LAQ", "14,30").split(",")], 3,
                     [int(x) for x in os.environ.get("WAQ", "1,19").split(",")]), late_extra=True, local=sIMP if LOCAL else None)
```

```python
from common import *
import os, struct

ROWS = 288
L_F = 0
L_OB = 16 * ROWS
L_MEMA = L_OB + 8 * ROWS
L_KX = L_MEMA + 8192
L_LW = L_KX + 8192
LW_WAVE = 17 * 2048
L_SEL = L_LW + 4 * LW_WAVE
L_FAR = L_SEL + 1024
assert L_LW % 256 == 0 and L_FAR + 4 <= 163840

PH = 9216

vL16, vIDX, vQW, vQR, vOR, vOW, vRLD, vRST, vLW, vT0, vT1, vT2 = range(12)
ACCQ, ACCK, ACCV = 12, 20, 28
Q = [36 + 4 * i for i in range(9)]
FA, FB, FC, R0, R1 = Q[0], Q[1], Q[2], Q[3], Q[4]
WR0, WR1 = Q[5], Q[7]
WBASE = 72

sH = S_ROLE
sLAY = 32
sSTEP = 33
sMA = 34
sMC = 35
sMEMW = 36
sMEMZ = 37
sPW = 38
sPWC = 39
sPH = 40
sKF = 41
sVF = 42
sKM = 43
sCEXP = 44
sMASK = 46
sU = 48
sMAXD = 50
sFAST = 51
sONES = 52
sM = 54
sPR = 62
sFL = 66
sFLP = 67
sTCH = 68
sFOK = 69
sL0 = 70
S_STAMP = 80

MATS = "qkv"
env = os.environ.get
DBC = [int(x) for x in env("DBC", "0,0,0,0").split(",")]
DP1 = [int(x) for x in env("DP1", "0,60,50").split(",")]
DP2 = int(env("DP2", "10"))
DQ1 = [int(x) for x in env("DQ1", "20,30,30,10").split(",")]
DQ2 = [int(x) for x in env("DQ2", "10,20,20,25").split(",")]
DQ3 = [int(x) for x in env("DQ3", "25,25,25,25").split(",")]
DQB = int(env("DQB", "0"))
HKSL = int(env("HKSL", "5"))
VORD = int(env("VORD", "1"))
KD0 = int(env("KD0", "0"))
FLW = int(env("FLW", "1"))
CKW = int(env("CKW", "2"))
TKW = int(env("TKW", "0"))
TCW = int(env("TCW", "3"))
PB0 = int(env("PB0", "0"))
PC0 = int(env("PC0", "4"))
STG = int(env("STG", "1"))
FAD = int(env("FAD", "0"))
VEARLY = int(env("VEARLY", "2"))
TPOS = int(env("TPOS", "1"))
PAPOS = int(env("PAPOS", "-1"))
R2E = int(env("R2E", "1"))
BEARLY = int(env("BEARLY", "0"))
NBF = int(env("NBF", "0"))
PD3 = int(env("PD3", "1"))
KPOS = int(env("KPOS", "0"))
FAR = int(env("FAR", "0"))
TOUCH = int(env("TOUCH", "1"))


def f32bits(x):
    return struct.unpack("<I", struct.pack("<f", x))[0]


LDS_TILES = [("v", 0), ("v", 2), ("q", 4), ("q", 6)]
LDS_SLOT = {}
for i, (m, t) in enumerate(LDS_TILES):
    LDS_SLOT[(m, 0, t)] = 2 * i
    LDS_SLOT[(m, 1, t)] = 2 * i + 1
for i, (p, ks) in enumerate([(2, 0), (2, 1), (3, 0), (3, 1)]):
    LDS_SLOT[("o", 2 * p, ks)] = 8 + 2 * i
    LDS_SLOT[("o", 2 * p + 1, ks)] = 9 + 2 * i
LDS_SLOT[("o", 8, 1)] = 16


def build_fm():
    fm = {}
    regs = [("v", WBASE + 8 * i) for i in range(23)] + [("a", 8 * i) for i in range(32)]
    keys = [(m, b, t) for m in "qkv" for t in range(9) for b in range(2) if (m, t) not in LDS_TILES]
    keys += [("o", tau, ks) for tau in range(4) for ks in range(2)] + [("o", 8, 0)]
    assert len(keys) == 55
    for k, r in zip(keys, regs):
        fm[k] = r
    for k, s in LDS_SLOT.items():
        fm[k] = ("l", s)
    return fm


FM = build_fm()


def opnd(loc, n=8, off=0):
    k, b = loc
    return (vr if k == "v" else ar)(b + off, n)


def SM(acc, A, B):
    return f"v_smfmac_f32_16x16x64_bf16 {vr(acc, 4)}, {vr(A, 4)}, {B}, v{vIDX}"


def lw_read(dst, slot):
    return [f"ds_read_b128 {vr(dst, 4)}, v{vLW} offset:{slot * 2048}",
            f"ds_read_b128 {vr(dst + 4, 4)}, v{vLW} offset:{slot * 2048 + 1024}"]


def nops(a, n):
    while n > 0:
        k = min(n, 16)
        a(f"s_nop {k - 1}")
        n -= k


def r_setup(a):
    WS = f"s[{SRD_WS}:{SRD_WS + 3}]"
    LANE, C, G, T3, T4, T5, TAU = 60, 61, 62, 63, 64, 65, 66
    cexp = hex(f32bits(128 ** -0.5 * 1.4426950408889634))
    W = S_WAVE
    a(f"""
    v_and_b32 v{LANE}, 63, v0
    v_and_b32 v{C}, 15, v{LANE}
    v_lshrrev_b32 v{G}, 4, v{LANE}
    v_lshlrev_b32 v{vL16}, 4, v{LANE}
    s_mul_i32 s{S_TMP}, s{W}, {LW_WAVE}
    s_add_u32 s{S_TMP}, s{S_TMP}, {L_LW}
    v_add_u32 v{vLW}, s{S_TMP}, v{vL16}
    s_mov_b32 s{sMAXD}, 0xfffffffe
    s_mov_b32 s{sCEXP}, {cexp}
    s_mov_b32 s{sCEXP + 1}, {cexp}
    s_mov_b32 s{sONES}, 0x3f803f80
    s_mov_b32 s{sONES + 1}, 0x3f803f80
    s_mov_b32 s{sPH}, 1
    s_mov_b32 s{sMASK}, 0x00ff00ff
    s_cmp_eq_u32 s{W}, 2
    s_cselect_b32 s{sMASK}, 0x00030003, s{sMASK}
    s_mov_b32 s{sMASK + 1}, s{sMASK}
    v_bfe_u32 v{T3}, v{C}, 1, 1
    v_mov_b32 v{vIDX}, 0x4444
    v_mov_b32 v{T4}, 0xeeee
    v_cmp_eq_u32 vcc, 0, v{T3}
    v_cndmask_b32 v{vIDX}, v{T4}, v{vIDX}, vcc
    """)
    a(f"""
    v_mul_u32_u24 v{T4}, {4 * ROWS}, v{G}
    v_lshl_add_u32 v{vQW}, v{C}, 2, v{T4}
    s_lshl_b32 s{S_TMP}, s{W}, 6
    s_add_u32 s{S_TMP + 1}, s{S_TMP}, {L_F}
    v_add_u32 v{vQW}, s{S_TMP + 1}, v{vQW}
    v_mul_u32_u24 v{T4}, {ROWS}, v{C}
    v_lshl_add_u32 v{vQR}, v{G}, 4, v{T4}
    v_add_u32 v{vQR}, {L_F}, v{vQR}
    v_lshrrev_b32 v{T4}, 2, v{C}
    v_and_b32 v{T5}, 1, v{C}
    v_lshl_add_u32 v{T4}, v{T4}, 1, v{T5}
    v_mul_u32_u24 v{T5}, {ROWS}, v{T4}
    v_lshl_add_u32 v{vOR}, v{G}, 5, v{T5}
    v_lshl_add_u32 v{vOR}, v{T3}, 4, v{vOR}
    v_add_u32 v{vOR}, {L_OB}, v{vOR}
    v_xor_b32 v{T3}, 1, v{T3}
    v_mul_u32_u24 v{T3}, {8 * ROWS}, v{T3}
    v_add_u32 v{vOW}, v{T5}, v{T3}
    v_lshl_add_u32 v{vOW}, v{G}, 4, v{vOW}
    s_add_u32 s{S_TMP + 1}, s{S_TMP}, {L_OB}
    v_add_u32 v{vOW}, s{S_TMP + 1}, v{vOW}
    """)
    WP, GO, CH, UI = sL0, sL0 + 1, sL0 + 2, sL0 + 3
    a(f"""
    s_lshr_b32 s{WP}, s{sH}, 3
    s_bfe_u32 s{GO}, s{sH}, 0x20001
    s_and_b32 s{CH}, s{sH}, 1
    v_bfe_u32 v{T4}, v{C}, 2, 1
    v_lshl_add_u32 v{T3}, v{T4}, 2, v{G}
    v_mul_u32_u24 v{T3}, {PH}, v{T3}
    v_lshrrev_b32 v{T5}, 3, v{C}
    v_lshlrev_b32 v{T5}, 2, v{T5}
    v_and_b32 v{T4}, 3, v{C}
    v_add_u32 v{T5}, v{T5}, v{T4}
    s_lshl_b32 s{UI}, s{GO}, 4
    s_lshl_b32 s{S_TMP}, s{CH}, 3
    s_add_u32 s{UI}, s{UI}, s{S_TMP}
    v_add_u32 v{T5}, s{UI}, v{T5}
    s_lshl_b32 s{S_TMP}, s{WP}, 6
    v_add_u32 v{T5}, s{S_TMP}, v{T5}
    s_cmp_eq_u32 s{W}, 2
    s_cselect_b32 s{S_TMP}, 2, 4
    v_lshlrev_b32 v{T5}, s{S_TMP}, v{T5}
    v_add_u32 v{vRLD}, v{T3}, v{T5}
    s_lshl_b32 s{S_TMP}, s{W}, 12
    v_add_u32 v{vRLD}, s{S_TMP}, v{vRLD}
    v_lshrrev_b32 v{TAU}, 1, v{C}
    s_lshl_b32 s{S_TMP}, s{W}, 2
    v_add_u32 v{TAU}, s{S_TMP}, v{TAU}
    v_and_b32 v{T4}, 1, v{C}
    s_lshl_b32 s{S_TMP}, s{WP}, 4
    s_lshl_b32 s{S_TMP + 1}, s{GO}, 2
    s_add_u32 s{S_TMP}, s{S_TMP}, s{S_TMP + 1}
    s_lshl_b32 s{S_TMP + 1}, s{CH}, 1
    s_add_u32 s{S_TMP}, s{S_TMP}, s{S_TMP + 1}
    v_add_u32 v{T5}, s{S_TMP}, v{T4}
    v_lshl_add_u32 v{T5}, v{TAU}, 6, v{T5}
    v_lshlrev_b32 v{T5}, 4, v{T5}
    v_lshl_add_u32 v{vRST}, v{G}, 2, v{T5}
    """)
    M0 = 67
    a(f"""
    s_lshl_b32 s{S_TMP}, s{GO}, 1
    v_add_u32 v{T4}, s{S_TMP}, v{T4}
    v_mul_u32_u24 v{T4}, 576, v{T4}
    v_lshl_add_u32 v{T4}, v{TAU}, 4, v{T4}
    v_lshl_add_u32 v{T4}, v{G}, 1, v{T4}
    s_mul_i32 s{S_TMP}, s{WP}, 144
    s_lshl_b32 s{S_TMP + 1}, s{CH}, 3
    s_add_u32 s{S_TMP}, s{S_TMP}, s{S_TMP + 1}
    v_add_u32 v{T4}, s{S_TMP}, v{T4}
    v_lshlrev_b32 v{M0}, 1, v{T4}
    """)
    a(f"""
    s_mul_i32 s{sU}, s{sLAY}, {RING_TEAM}
    s_add_u32 s{sU}, s{sU}, {WS_RING}
    s_mul_i32 s{S_TMP}, s{sH}, {PH}
    s_add_u32 s{S_TMP}, s{S_TMP}, s{sU}
    s_lshl_b32 s{S_TMP + 1}, s{W}, 10
    s_add_u32 s{sPW}, s{S_TMP}, s{S_TMP + 1}
    s_lshl_b32 s{S_TMP + 2}, s{W}, 8
    s_add_u32 s{sPWC}, s{S_TMP}, s{S_TMP + 2}
    s_add_u32 s{sPWC}, s{sPWC}, 8192
    s_add_u32 s{sMEMZ}, s{sU}, {MEMB_OFF}
    s_xor_b32 s{sMEMW}, s{sMEMZ}, {MEMB_SLOT}
    s_add_u32 s{sMA}, s{sMEMZ}, s{S_TMP + 1}
    s_add_u32 s{sMC}, s{sMEMZ}, 8192
    s_mul_i32 s{S_TMP}, s{sLAY}, {3 * QKV_M}
    s_lshl_b32 s{S_TMP + 2}, s{sH}, 13
    s_add_u32 s{S_TMP}, s{S_TMP}, s{S_TMP + 2}
    s_add_u32 s{sTCH}, s{S_TMP}, {WS_QKV + 2 * QKV_M}
    s_lshl_b32 s{S_TMP + 1}, s{W}, 11
    s_add_u32 s{S_TMP}, s{S_TMP}, s{S_TMP + 1}
    s_add_u32 s{sKF}, s{S_TMP}, {WS_QKV + QKV_M}
    s_add_u32 s{sVF}, s{S_TMP}, {WS_QKV + 2 * QKV_M}
    s_mul_i32 s{S_TMP}, s{sLAY}, {NSEG * 32 * KM_UNIT}
    s_lshl_b32 s{S_TMP + 2}, s{sH}, 12
    s_add_u32 s{S_TMP}, s{S_TMP}, s{S_TMP + 2}
    s_add_u32 s{sKM}, s{S_TMP}, {WS_KM}
    s_mul_i32 s{S_TMP}, s{sLAY}, {NSEG * FL_STRIDE}
    s_lshl_b32 s{S_TMP + 2}, s{sH}, 9
    s_add_u32 s{S_TMP}, s{S_TMP}, s{S_TMP + 2}
    s_add_u32 s{sFL}, s{S_TMP}, {WS_FLAGS + FL_QKV}
    s_mov_b32 s{sSTEP}, 0
    """)
    for i in range(4):
        a(f"s_add_u32 s{sPR + i}, s{sU}, {i * 8 * PH}")
    srd(a, SRD_A, KA_MEM0, 9216)
    A_ = f"s[{SRD_A}:{SRD_A + 3}]"
    a(f"""
    s_cmp_gt_u32 s{W}, 2
    s_cbranch_scc1 Lr_mem0_done
    s_mov_b64 exec, s[{sMASK}:{sMASK + 1}]
    buffer_load_dword v{T4}, v{M0}, {A_}, 0 offen
    v_min_u32 v{T4}, s{sMAXD}, v{T4}
    buffer_store_dword v{T4}, v{vRST}, {WS}, s{sMEMZ} offen sc1
    v_mov_b32 v{T4}, -1
    buffer_store_dword v{T4}, v{vRST}, {WS}, s{sMEMW} offen sc1
    s_mov_b64 exec, -1
    Lr_mem0_done:
    v_mov_b32 v64, 0
    v_mov_b32 v65, 0
    v_mov_b32 v66, 0
    v_mov_b32 v67, 0
    v_lshrrev_b32 v{T3}, 2, v{vL16}
    buffer_store_dwordx4 v[64:67], v{vL16}, {WS}, s{sPW} offen sc1
    s_add_u32 s{S_TMP}, s{sPW}, 4096
    buffer_store_dwordx4 v[64:67], v{vL16}, {WS}, s{S_TMP} offen sc1
    buffer_store_dword v64, v{T3}, {WS}, s{sPWC} offen sc1
    """)
    a.force_wait(vm=0)
    a("s_barrier")
    a(f"s_cmp_lg_u32 s{W}, 0")
    a("s_cbranch_scc1 Lr_noadd")
    a(f"s_lshl_b32 s{S_TMP}, s{sLAY}, 2")
    a(f"s_add_u32 s{S_TMP}, s{S_TMP}, {DB_TEAM}")
    dbg_add(a, f"s{S_TMP}", 63, 64)
    a.label("Lr_noadd")
    if W is not None:
        a(f"""
        s_cmp_lt_u32 s{S_WAVE}, 3
        s_cbranch_scc1 Lr_not_w3
        v_lshlrev_b32 v{vRLD}, 3, v{vL16}
        v_lshrrev_b32 v{T3}, 2, v{vL16}
        v_and_b32 v{vRST}, 12, v{T3}
        v_and_b32 v{T3}, 16, v{T3}
        v_lshl_add_u32 v{vRST}, v{T3}, 3, v{vRST}
        Lr_not_w3:
        """)
    gate(a, 1, sLAY, 63, 64, "Lr_abort", "Lr_gate")
    loader(a)
    a(f"v_bfe_u32 v{vT0}, v{vL16}, 4, 4")
    a(f"v_mov_b32 v{vT1}, 0x3f80")
    a(f"v_mov_b32 v16, 0x3f800000")
    for d in range(4):
        a(f"v_cmp_eq_u32 vcc, {2 * d}, v{vT0}")
        a(f"v_cmp_eq_u32 s[{sU}:{sU + 1}], {2 * d + 1}, v{vT0}")
        a(f"v_cndmask_b32 v{12 + d}, 0, v{vT1}, vcc")
        a(f"v_cndmask_b32 v{12 + d}, v{12 + d}, v16, s[{sU}:{sU + 1}]")
    a(f"v_add_u32 v{vT0}, {L_SEL}, v{vL16}")
    a(f"ds_write_b128 v{vT0}, v[12:15]")
    a.wait(lg=0)


def loader(a):
    W = S_WAVE
    g0 = 12
    GW, GZ = 16, 17
    RA = 18
    RW, RZ = 22, 23
    TMP = 24
    T3, T4, T5, LANE, I16, GB = 63, 64, 65, 60, 61, 62
    sT, sWO, sLW = sL0, sL0 + 1, sL0 + 2
    SRD_D = 76
    srd(a, SRD_A, KA_WQ, 576 * 8192)
    srd(a, SRD_B, KA_WK, 576 * 8192)
    srd(a, SRD_C, KA_WV, 576 * 8192)
    srd(a, SRD_D, KA_BWO, 4096 * 1152)
    a(f"""
    v_lshrrev_b32 v{LANE}, 4, v{vL16}
    v_and_b32 v{I16}, 15, v{LANE}
    v_lshrrev_b32 v{GB}, 4, v{LANE}
    s_mul_i32 s{sLW}, s{W}, {LW_WAVE}
    s_add_u32 s{sLW}, s{sLW}, {L_LW}
    s_mul_i32 s{sT}, s{W}, {144 * 8192}
    s_lshl_b32 s{S_TMP}, s{sH}, 8
    s_add_u32 s{sT}, s{sT}, s{S_TMP}
    s_mul_i32 s{sWO}, s{sH}, 147456
    s_mul_i32 s{S_TMP}, s{W}, 288
    s_add_u32 s{sWO}, s{sWO}, s{S_TMP}
    """)
    a(f"""
    v_and_b32 v{T3}, 1, v{GB}
    v_lshrrev_b32 v{T4}, 1, v{I16}
    v_xor_b32 v{T4}, v{T4}, v{T3}
    v_lshlrev_b32 v{T4}, 5, v{T4}
    v_and_b32 v{T5}, 1, v{I16}
    v_lshl_add_u32 v{T4}, v{T5}, 4, v{T4}
    v_lshl_add_u32 v{g0}, v{GB}, 13, v{T4}
    """)
    for q in range(1, 4):
        a(f"v_xor_b32 v{g0 + q}, {(2 * (q >> 1) + 4 * (q & 1)) << 5}, v{g0}")
    a(f"""
    v_lshrrev_b32 v{T3}, 2, v{LANE}
    v_mul_u32_u24 v{T3}, 1152, v{T3}
    v_and_b32 v{T4}, 3, v{LANE}
    v_lshl_add_u32 v{GW}, v{T4}, 4, v{T3}
    v_lshrrev_b32 v{T3}, 1, v{LANE}
    v_mul_u32_u24 v{T3}, 1152, v{T3}
    v_and_b32 v{T4}, 1, v{LANE}
    v_lshl_add_u32 v{GZ}, v{T4}, 4, v{T3}
    """)
    R_, C4, GL = 40, 41, 42
    a(f"""
    v_lshrrev_b32 v{R_}, 2, v{I16}
    v_and_b32 v{C4}, 3, v{I16}
    v_and_b32 v{T3}, 1, v{GB}
    v_lshl_add_u32 v{GL}, v{T3}, 2, v{R_}
    v_and_b32 v{T4}, 1, v{R_}
    v_lshl_add_u32 v{T4}, v{T3}, 2, v{T4}
    v_lshrrev_b32 v{T5}, 1, v{R_}
    v_lshl_add_u32 v{T4}, v{T5}, 3, v{T4}
    v_lshlrev_b32 v{T4}, 8, v{T4}
    v_lshl_add_u32 v{T4}, v{C4}, 3, v{T4}
    v_lshrrev_b32 v{T5}, 1, v{GB}
    v_mul_u32_u24 v{T5}, {LW_WAVE}, v{T5}
    v_add_u32 v{T4}, v{T4}, v{T5}
    v_add_u32 v{T4}, {L_LW}, v{T4}
    s_lshl_b32 s{S_TMP}, s{W}, 1
    """)
    for b in range(2):
        a(f"s_add_u32 s{S_TMP + 1}, s{S_TMP}, {b}")
        a(f"v_xor_b32 v{T5}, s{S_TMP + 1}, v{GL}")
        a(f"v_lshl_add_u32 v{RA + 2 * b}, v{T5}, 5, v{T4}")
        a(f"v_add_u32 v{RA + 2 * b + 1}, {2 * LW_WAVE}, v{RA + 2 * b}")
    a(f"""
    v_lshrrev_b32 v{T3}, 1, v{GB}
    v_lshlrev_b32 v{T3}, 3, v{T3}
    v_and_b32 v{T4}, 1, v{GB}
    v_lshl_add_u32 v{T3}, v{T4}, 1, v{T3}
    v_and_b32 v{T4}, 1, v{R_}
    v_lshl_add_u32 v{T3}, v{T4}, 4, v{T3}
    v_lshrrev_b32 v{T4}, 1, v{R_}
    v_lshl_add_u32 v{T3}, v{T4}, 2, v{T3}
    v_lshlrev_b32 v{T4}, 3, v{C4}
    v_lshl_add_u32 v{RW}, v{T3}, 6, v{T4}
    v_add_u32 v{RW}, s{sLW}, v{RW}
    v_lshl_add_u32 v{RZ}, v{T3}, 5, v{T4}
    v_add_u32 v{RZ}, s{sLW}, v{RZ}
    """)
    jobs = [("x", m, t) for t in range(9) for m in "qkv" if (m, t) not in LDS_TILES]
    pos = [i % 8 for i in range(23)]
    jobs += [("x", m, t) for m, t in LDS_TILES]
    pos += [0, 1, 2, 3]
    jobs += [("w", p, ks) for p in range(2) for ks in range(2)]
    pos += [4, 5, 6, 7]
    jobs += [("z", 0)]
    pos += [8]
    jobs += [("w", p, ks) for p in (2, 3) for ks in range(2)]
    pos += [4, 5, 6, 7]
    jobs += [("z", 1)]
    pos += [8]
    n = len(jobs)
    ndma = [2 if j[0] == "z" else 4 for j in jobs]
    issued = []

    def dma(i):
        j = jobs[i]
        a(f"s_add_u32 m0, s{sLW}, {pos[i] * 4096}")
        if j[0] == "x":
            sb = (SRD_A, SRD_B, SRD_C)[MATS.index(j[1])]
            for q in range(4):
                a(f"s_add_u32 s{S_TMP}, s{sT}, {(16 * j[2] + 4 * q) * 8192}")
                a(f"buffer_load_dwordx4 v{g0 + q}, s[{sb}:{sb + 3}], s{S_TMP} offen lds")
                if q < 3:
                    a(f"s_add_u32 m0, m0, 1024")
        elif j[0] == "w":
            for q in range(4):
                a(f"s_add_u32 s{S_TMP}, s{sWO}, {(64 * j[2] + 16 * q) * 1152 + j[1] * 64}")
                a(f"buffer_load_dwordx4 v{GW}, s[{SRD_D}:{SRD_D + 3}], s{S_TMP} offen lds")
                if q < 3:
                    a(f"s_add_u32 m0, m0, 1024")
        else:
            for q in range(2):
                a(f"s_add_u32 s{S_TMP}, s{sWO}, {(64 * j[1] + 32 * q) * 1152 + 256}")
                a(f"buffer_load_dwordx4 v{GZ}, s[{SRD_D}:{SRD_D + 3}], s{S_TMP} offen lds")
                if q < 1:
                    a(f"s_add_u32 m0, m0, 1024")
        issued.append(i)

    def outstanding_after(i):
        k = issued.index(i)
        return sum(ndma[x] for x in issued[k + 1:])

    done = -1

    def issue_more(cur):
        for nx in range(n):
            if nx in issued:
                continue
            prev = [x for x in range(nx) if pos[x] == pos[nx]]
            inplace_prev = False
            if prev and max(prev) > done:
                if jobs[nx] == ("z", 0):
                    pass
                break
            if sum(ndma[x] for x in issued if x > done) + ndma[nx] > 56:
                break
            dma(nx)

    a.auto = False
    z0 = jobs.index(("z", 0))
    for i in range(8):
        dma(i)
    dma(z0)
    for i in range(n):
        j = jobs[i]
        shared = j[0] == "x"
        assert i in issued, (i, issued)
        a(f"s_waitcnt vmcnt({min(63, outstanding_after(i))})")
        if shared:
            a("s_barrier")
            done = i - 1
            issue_more(i)
        if j[0] == "x":
            keys = [(j[1], b, j[2]) for b in range(2)]
            adr = lambda b, X: (RA + 2 * b + (X >> 1), pos[i] * 4096 + (X & 1) * 512)
        elif j[0] == "w":
            keys = [("o", 2 * j[1] + b, j[2]) for b in range(2)]
            adr = lambda b, X: (RW, pos[i] * 4096 + (32 * (X >> 1) + (X & 1)) * 64 + b * 32)
        else:
            keys = [("o", 8, j[1])]
            adr = lambda b, X: (RZ, pos[i] * 4096 + (32 * (X >> 1) + (X & 1)) * 32)
        for b, k in enumerate(keys):
            loc = FM[k]
            for X in range(4):
                ad, off = adr(b, X)
                dst = vr(TMP + 8 * b + 2 * X, 2) if loc[0] == "l" else opnd(loc, 2, 2 * X)
                a(f"ds_read_b64_tr_b16 {dst}, v{ad} offset:{off}")
        a("s_waitcnt lgkmcnt(0)")
        if i == GJOB and GATE:
            a(f"s_add_u32 s{S_TMP}, s{sLAY}, s{W}")
            a(f"s_cmp_lg_u32 s{S_TMP}, 0")
            a("s_cbranch_scc1 Lr_nold")
            dbg_add(a, DB_LOADED, T3, T4)
            a.label("Lr_nold")
        if FM[keys[0]][0] == "l":
            if shared:
                a("s_barrier")
            for b, k in enumerate(keys):
                s = FM[k][1]
                a(f"ds_write_b128 v{vLW}, {vr(TMP + 8 * b, 4)} offset:{s * 2048}")
                a(f"ds_write_b128 v{vLW}, {vr(TMP + 8 * b + 4, 4)} offset:{s * 2048 + 1024}")
            a("s_waitcnt lgkmcnt(0)")
        if not shared:
            done = i
            issue_more(i)
        elif i + 1 < n and jobs[i + 1][0] != "x":
            a("s_barrier")
            done = i
            issue_more(i)
    a.auto = True
    a.vmq, a.lgq = [], []


def flag_wait_kv(a, pfx, soff_extra, abort):
    L = a.newlabel(pfx + "fw")
    a(f"s_mov_b32 s{S_SPIN}, 0")
    a(f"s_add_u32 s{S_TMP}, s{sFL}, {soff_extra + 128}")
    a(f"v_lshrrev_b32 v{vT1}, 2, v{vL16}")
    a(f"v_and_b32 v{vT0}, 16, v{vT1}")
    a(f"v_lshlrev_b32 v{vT0}, 3, v{vT0}")
    a(f"v_and_or_b32 v{vT1}, v{vT1}, 12, v{vT0}")
    a.label(L)
    a(f"buffer_load_dword v{vT0}, v{vT1}, s[{SRD_WS}:{SRD_WS + 3}], s{S_TMP} offen sc1")
    spin_check(a, abort)
    a(f"v_cmp_eq_u32 vcc, 0, v{vT0}")
    a(f"s_cbranch_vccnz {L}")


def r_loop(a, w, fast, abort, done, stamps=0):
    sc = "" if fast else " sc1"
    pfx = f"Lr{w}{'f' if fast else 's'}_"
    WS = f"s[{SRD_WS}:{SRD_WS + 3}]"
    HK = (w == 3)
    NST = 10
    tails = []

    def seq(*items):
        for it in items:
            if isinstance(it, (list, tuple)):
                seq(*it)
            elif callable(it):
                it()
            elif it:
                a(it)

    XS = {"A": 0, 7: 1, 8: 2, "bc": 3, "l1": 4, 9: 5, "red": 6, "mst": 7, "q1": 8, "q2": 9, NST: NST}

    PS = {0: 0, "ba0": 1, "ba": 2, 1: 3, "a2": 4, "pb": 5, "a3": 6, "bb": 7, 3: 8, 4: 9, NST: NST}

    def stamp(i):
        if not stamps:
            return
        if stamps == 5:
            if i in PS:
                i = PS[i]
                a(f"s_memtime s[{S_STAMP + 2 * i}:{S_STAMP + 1 + 2 * i}]" if i < NST else "s_memrealtime s[70:71]")
            return
        if stamps in (3, 4):
            if i == 0:
                i = "A"
            if i not in XS:
                return
            i = XS[i]
            ins = "s_memtime" if stamps == 3 else "s_memrealtime"
            a(f"{ins} s[{S_STAMP + 2 * i}:{S_STAMP + 1 + 2 * i}]" if i < NST else "s_memrealtime s[70:71]")
            return
        if isinstance(i, str):
            return
        if stamps == 2 or i == NST:
            a(f"s_memrealtime s[{S_STAMP + 2 * i}:{S_STAMP + 1 + 2 * i}]" if i < NST else "s_memrealtime s[70:71]")
        else:
            a(f"s_memtime s[{S_STAMP + 2 * i}:{S_STAMP + 1 + 2 * i}]")

    def dump_stamps():
        if stamps:
            a(f"s_and_b32 s{S_TMP}, s{sSTEP}, 7")
            a(f"s_cbranch_scc1 {pfx}nodump")
            a.force_wait(lg=0)
            for i in range(NST):
                a(f"v_writelane_b32 v{vT1}, s{S_STAMP + 2 * i}, {i}")
            a(f"v_writelane_b32 v{vT1}, s70, {NST}")
            a(f"v_writelane_b32 v{vT1}, s72, 11")
            a(f"v_writelane_b32 v{vT1}, s73, 12")
            a(f"s_lshl_b32 s{S_TMP}, s{sLAY}, 5")
            a(f"s_add_u32 s{S_TMP}, s{S_TMP}, s{sH}")
            a(f"s_lshl_b32 s{S_TMP}, s{S_TMP}, 6")
            a(f"s_add_u32 s{S_TMP}, s{S_TMP}, s{sSTEP}")
            a(f"s_lshl_b32 s{S_TMP}, s{S_TMP}, 8")
            a(f"s_add_u32 s{S_TMP}, s{S_TMP}, {WS_END + w * 64}")
            a(f"v_lshrrev_b32 v{vT0}, 2, v{vL16}")
            a(f"s_mov_b64 exec, 0x1fff")
            a(f"buffer_store_dword v{vT1}, v{vT0}, {WS}, s{S_TMP} offen")
            a(f"s_mov_b64 exec, -1")
            a("s_waitcnt vmcnt(0)")
            a.label(pfx + "nodump")

    def zero(base, n):
        return [f"v_mov_b64 {vr(base + 2 * i, 2)}, 0" for i in range(n // 2)]

    ACC = {"q": ACCQ, "k": ACCK, "v": ACCV}
    WR = (WR0, WR1)
    ak = [(w + i) & 3 for i in range(4)]
    bk = [4 + x for x in ak]

    def korder(t):
        if t < 4:
            return [("v", 0), ("q", 0), ("q", 1), ("v", 1), ("k", 0), ("k", 1)]
        return [("q", 0), ("k", 0), ("q", 1), ("k", 1)]
    own = [("q", 0), ("q", 1), ("k", 0), ("v", 0), ("k", 1), ("v", 1)]
    oth = bk[1:]
    lt = [t for t in oth if ("q", t) in LDS_TILES]
    rt_ = [t for t in oth if t not in lt]
    qord = lt[:1] + rt_ + [8] + lt[1:] if len(lt) == 2 else lt + rt_ + [8]
    use = [(m, b, ak[0]) for m, b in own] + [(m, b, t) for t in ak[1:] + bk[:1] for m, b in korder(t)]
    use += [("q", b, t) for t in qord for b in range(2)]
    lq = [k for k in use if FM[k][0] == "l"]
    assert len(lq) == 8 and not any(k in lq for k in use[:3])

    def LW(n):
        return lw_read(WR[n % 2], FM[lq[n]][1]) if n < len(lq) else []

    def S(m, b, t, A):
        k = (m, b, t)
        if FM[k][0] == "l":
            n = lq.index(k)
            return [SM(ACC[m] + 4 * b, A, vr(WR[n % 2], 8))] + LW(n + 2)
        return [SM(ACC[m] + 4 * b, A, opnd(FM[k]))]

    def mem_rd(dst, t):
        return f"ds_read_b128 {vr(dst, 4)}, v{vL16} offset:{L_MEMA + t * 1024}"

    def mem_wr(src, t):
        return f"ds_write_b128 v{vL16}, {vr(src, 4)} offset:{L_MEMA + t * 1024}"

    ldA = f"buffer_load_dwordx4 {vr(FA, 4)}, v{vL16}, {WS}, s{sMA} offen sc1"
    ldB = [f"s_add_u32 s{S_TMP}, s{sMA}, 4096", f"buffer_load_dwordx4 {vr(FB, 4)}, v{vL16}, {WS}, s{S_TMP} offen sc1"]
    ldC = f"buffer_load_dwordx4 {vr(FC, 4)}, v{vL16}, {WS}, s{sMC} offen sc1"

    def chk(q):
        return [f"v_max3_u32 v{vT1}, v{q}, v{q + 1}, v{q + 2}", f"v_max_u32 v{vT1}, v{vT1}, v{q + 3}",
                f"v_cmp_eq_u32 vcc, -1, v{vT1}"]

    def late_poll(name, q, ld, young):
        L = pfx + name
        a.force_wait(vm=young)
        seq(chk(q))
        a(f"s_cbranch_vccnz {L}_re")
        wn = list(a.win)
        sn = a.snap()

        def tail():
            a.label(L + "_re")
            a.win = wn
            a.restore(([], []))
            a(f"s_mov_b32 s{S_SPIN}, 0")
            a.label(L + "_lp")
            seq(ld)
            spin_check(a, abort)
            a.force_wait(vm=0)
            seq(chk(q))
            a(f"s_cbranch_vccnz {L}_lp")
            a(f"s_branch {L}_ok")
        tails.append(tail)
        a.label(L + "_ok")
        a.restore(sn)
        a.vmq = a.vmq[len(a.vmq) - young:] if young else []

    def KX(dst, j, tt):
        return f"ds_read_b128 {vr(dst, 4)}, v{vL16} offset:{L_KX + (j * 2 + tt) * 1024}"

    def FR(dst, j):
        return f"ds_read_b128 {vr(dst, 4)}, v{vQR} offset:{j * 64}"

    def MF(acc, A, B, first):
        return f"v_mfma_f32_16x16x32_bf16 {vr(acc, 4)}, {vr(A, 4)}, {vr(B, 4)}, {'0' if first else vr(acc, 4)}"

    def MF16(acc, A, B, first=False):
        return f"v_mfma_f32_16x16x16_bf16 {vr(acc, 4)}, {vr(A, 2)}, {vr(B, 2)}, {'0' if first else vr(acc, 4)}"

    def xe(acc):
        X, Y = acc, acc + 4
        return [f"v_add_f32 v{X}, v{X}, v{X + 2}", f"v_add_f32 v{Y}, v{Y}, v{Y + 2}",
                f"v_add_f32 v{X + 1}, v{X + 1}, v{X + 3}", f"v_add_f32 v{Y + 1}, v{Y + 1}, v{Y + 3}",
                f"v_cvt_pk_bf16_f32 v{X + 2}, v{X}, v{Y}",
                f"v_cvt_pk_bf16_f32 v{X + 3}, v{X + 1}, v{Y + 1}"]

    def kdma(i):
        return lambda: a(f"buffer_load_dwordx4 v{vL16}, {WS}, s{sKF} offen offset:{1024 * i} lds", tag="kdma")

    def flag_store():
        a(f"v_mov_b32 v{vT0}, 1")
        a(f"v_mov_b32 v{vT1}, 0")
        a(f"s_mov_b64 exec, 1")
        a(f"buffer_store_dword v{vT0}, v{vT1}, {WS}, s{sFLP} offen offset:384 sc1")
        a(f"s_mov_b64 exec, -1")

    def flag_check():
        if w != CKW:
            return
        if True:
            if NBF and TOUCH:
                a(f"s_cmp_eq_u32 s{sFOK}, 1")
                a(f"s_cbranch_scc1 {pfx}flok")
            a(f"v_cmp_eq_u32 vcc, 0, v{vT2}")
            if FAR:
                a(f"s_and_b32 s{S_TMP}, vcc_lo, 0xff00")
                a(f"s_cselect_b32 s{S_TMP + 1}, 0, {32 * 8192}")
                a(f"s_cmp_lt_u32 s{sSTEP}, {NSEG - 2}")
                a(f"s_cselect_b32 s{S_TMP + 1}, s{S_TMP + 1}, 0")
                a(f"v_mov_b32 v{vT0}, {L_FAR}")
                a(f"v_mov_b32 v{vT1}, s{S_TMP + 1}")
                a(f"ds_write_b32 v{vT0}, v{vT1}")
                a(f"s_and_b32 s{S_TMP}, vcc_lo, 0xff")
                a(f"s_cbranch_scc1 {pfx}flbad")
            else:
                a(f"s_cbranch_vccnz {pfx}flbad")
            wn2 = list(a.win)
            sn2 = a.snap()

            def flbad():
                a.label(pfx + "flbad")
                a.win = wn2
                a.restore(([], []))
                a(f"s_cmp_eq_u32 s{sSTEP}, {NSEG - 1}")
                a(f"s_cbranch_scc1 {pfx}flok")
                flag_wait_kv(a, pfx, FL_STRIDE, abort)
                a(f"s_branch {pfx}flok")
            tails.append(flbad)
            a.label(pfx + "flok")
            a.restore(sn2)

    flag_wait_kv(a, pfx, 0, abort)
    if w == FLW:
        a(f"s_lshl_b32 s{sFLP}, s{sLAY}, 5")
        a(f"s_add_u32 s{sFLP}, s{sFLP}, s{sH}")
        a(f"s_lshl_b32 s{sFLP}, s{sFLP}, 12")
        a(f"s_add_u32 s{sFLP}, s{sFLP}, {WS_DUMMY}")
    a(f"s_mov_b32 m0, {L_KX + w * 2048}")
    seq(kdma(0), kdma(1))
    if KD0:
        base = [0, 0, 3, 6][w]
        a(f"s_mov_b32 m0, {L_KX + base * 1024}")
        a(f"s_add_u32 s{sKF}, s{sKF}, {(base * 1024 - w * 2048) & 0xffffffff}")
    a(f"s_add_u32 s{sKF}, s{sKF}, {32 * 8192}")
    a(f"s_add_u32 s{sTCH}, s{sTCH}, {(32 * 8192 - (QKV_M if w == TKW else 0)) & 0xffffffff}")
    a.wait(vm=0)
    seq(LW(0), LW(1), zero(ACCQ, 24))
    seq(ldA)
    a.force_wait(vm=0, lg=0)
    head = pfx + "step"
    a.label(head)
    a.auto = False
    if stamps:
        a("s_mov_b32 s73, 0")
    if PD3:
        if w in (1, 2):
            a.force_wait(vm=3)
            seq(chk(FA))
            a(f"s_cbranch_vccz {pfx}aok")
            seq(ldA)
            nops(a, DQ3[w])
            seq(ldA)
        a(f"s_mov_b32 s{S_SPIN}, 0")
        a.label(pfx + "alp")
        a.force_wait(vm=2)
        seq(chk(FA))
        a(f"s_cbranch_vccz {pfx}aok")
        seq(ldA)
        if stamps:
            a("s_add_u32 s73, s73, 1")
        spin_check(a, abort)
        a(f"s_branch {pfx}alp")
    else:
        a.force_wait(vm=3 if (w in (1, 2) and R2E) else 2)
        seq(chk(FA))
        a(f"s_cbranch_vccz {pfx}aok")
        if w in (1, 2) and R2E:
            if stamps:
                a("s_mov_b32 s73, 1")
            seq(ldA)
            a.force_wait(vm=1)
            seq(chk(FA))
            a(f"s_cbranch_vccz {pfx}aok")
        elif w in (0, 3):
            if stamps:
                a("s_mov_b32 s73, 1")
            a.force_wait(vm=1)
            seq(chk(FA))
            a(f"s_cbranch_vccz {pfx}aok")
        else:
            seq(ldA)
            nops(a, DQ2[w])
        if stamps:
            a("s_mov_b32 s73, 2")
        a(f"s_mov_b32 s{S_SPIN}, 0")
        a.label(pfx + "alp")
        seq(ldA)
        spin_check(a, abort)
        a.force_wait(vm=1)
        seq(chk(FA))
        if stamps:
            a("s_add_u32 s73, s73, 1")
        a(f"s_cbranch_vccnz {pfx}alp")
    a.label(pfx + "aok")
    a.auto = True
    a.vmq = [(frozenset(), "pa")] * 3
    a.lgq = []
    stamp(0)
    def kstep(t, A, extra=()):
        ex = list(extra)
        for m, b in korder(t):
            seq(S(m, b, t, A))
            if ex:
                seq(ex.pop(0))
        seq(ex)
    pre_issued = []
    if BEARLY:
        a.auto = False
        seq(mem_wr(FA, ak[0]), ldB)
        a.auto = True
        a.lgq = [(frozenset(), None)]
        a.vmq[-1] = (frozenset(), "pb")
        pre_issued = ["pb"]
        seq([S(m, b, ak[0], FA) for m, b in own[:3]])
    else:
        seq(mem_wr(FA, ak[0]), [S(m, b, ak[0], FA) for m, b in own[:3]])
    stamp("ba0")
    a.barrier(lg=0)
    stamp("ba")
    seq(mem_rd(R0, ak[1]), mem_rd(R1, ak[2]))
    flg = [f"v_lshrrev_b32 v{vT1}, 2, v{vL16}", f"v_and_b32 v{vT0}, 16, v{vT1}", f"v_lshlrev_b32 v{vT0}, 3, v{vT0}",
           f"v_and_or_b32 v{vT1}, v{vT1}, 12, v{vT0}"]
    if FAR:
        flg += [f"v_bfe_u32 v{vT0}, v{vL16}, 7, 1", f"v_mul_u32_u24 v{vT0}, {FL_STRIDE}, v{vT0}", f"v_add_u32 v{vT1}, v{vT1}, v{vT0}"]
    flg += [f"s_add_u32 s{S_TMP}, s{sFL}, {FL_STRIDE + 128}",
            f"v_mov_b32 v{vT2}, 2", f"buffer_load_dword v{vT2}, v{vT1}, {WS}, s{S_TMP} offen sc1"]
    stream = [(m, b, ak[0], FA) for m, b in own[3:]] + [(m, b, ak[1], R0) for m, b in korder(ak[1])] + \
             [(m, b, ak[2], R1) for m, b in korder(ak[2])]
    at = {}
    if not BEARLY:
        at.setdefault(PB0 + STG * w, []).append(("pb", ldB))
    at.setdefault(PC0 + STG * w, []).append(("pc", [ldC]))
    if w == CKW:
        at.setdefault(max(PB0, PC0) + STG * w + 1, []).append(("flg", flg))
    issued = list(pre_issued)
    for n, (m, b, t, A) in enumerate(stream):
        seq(S(m, b, t, A))
        for tg, ins in at.get(n, []):
            a.auto = False
            seq(ins)
            a.auto = True
            a.vmq[-1] = (frozenset([V0 + vT2]) if (tg == "flg" and not NBF) else frozenset(), tg)
            issued.append(tg)
        if n == 2 + FAD:
            a.force_wait(vm=len(issued))
            a.vmq = a.vmq[len(a.vmq) - len(issued):] if issued else []
            seq(mem_rd(FA, ak[3]))
            stamp(1)
    assert "pb" in issued and "pc" in issued
    nyB = len(issued) - 1 - issued.index("pb")
    stamp("a2")
    nyC = len(issued) - 1 - issued.index("pc")
    if BEARLY:
        late_poll("pb", FB, ldB, nyB)
        stamp("pb")
        a(mem_wr(FB, bk[0]), tag="fbw")
        if w == FLW:
            flag_store()
            nyC += 1
        kstep(ak[3], FA)
        stamp("a3")
    else:
        kstep(ak[3], FA)
        stamp("a3")
        late_poll("pb", FB, ldB, nyB)
        stamp("pb")
        a(mem_wr(FB, bk[0]), tag="fbw")
        if w == FLW:
            flag_store()
            nyC += 1
        kstep(bk[0], FB)
    yl = [t for _, t in a.lgq]
    a.barrier(lg=len(yl) - 1 - yl.index("fbw") if "fbw" in yl else None)
    stamp("bb")
    o3 = [t for t in qord if t != 8]
    FR_ = {bk[0]: FB, o3[0]: R0, o3[1]: R1, o3[2]: FA, 8: FC}
    seq([mem_rd(FR_[t], t) for t in o3])
    if BEARLY:
        kstep(bk[0], FB)
    seq(S("v", 0, bk[0], FB), S("v", 1, bk[0], FB))
    stamp(2)
    VXA, VXB = WR1, WR1 + 4
    ldV = [f"buffer_load_dwordx4 {vr(VXA, 4)}, v{vL16}, {WS}, s{sVF} offen",
           f"buffer_load_dwordx4 {vr(VXB, 4)}, v{vL16}, {WS}, s{sVF} offen offset:1024"]
    for t in qord:
        if t == 8:
            late_poll("pc", FC, ldC, nyC)
        seq(S("q", 0, t, FR_[t]), S("q", 1, t, FR_[t]))
    qe, ke = xe(ACCQ), xe(ACCK)
    kord = o3 + [8]
    fl = [None, None] + qe[:4] + [[qe[4], KX(WR0, 0, 0)], [qe[5], KX(WR0 + 4, 0, 1)]]
    nv = 0
    for i in range(VEARLY):
        fl[(w + 4 * i) % 8 if VEARLY > 1 else w] = [fl[(w + 4 * i) % 8 if VEARLY > 1 else w], ldV[i]]
        nv += 1
    for i, (t, b) in enumerate([(t, b) for t in kord for b in range(2)]):
        seq(S("k", b, t, FR_[t]), fl[i])
    stamp(3)
    dv = [t for t in o3] + [8]
    seq(f"ds_write_b32 v{vQW}, v{ACCQ + 2} offset:{2 * ROWS}", f"ds_write_b32 v{vQW}, v{ACCQ + 3} offset:{3 * ROWS}",
        S("v", 0, dv[0], FR_[dv[0]]), S("v", 1, dv[0], FR_[dv[0]]),
        ke,
        f"ds_write_b32 v{vQW}, v{ACCK + 2} offset:0", f"ds_write_b32 v{vQW}, v{ACCK + 3} offset:{ROWS}",
        S("v", 0, dv[1], FR_[dv[1]]), S("v", 1, dv[1], FR_[dv[1]]))
    seq(ldV[nv:])
    if not NBF:
        flag_check()
    a.barrier(lg=0)
    stamp(4)
    SX0, SX1, SMm = ACCQ, ACCQ + 4, ACCK + 4
    F0, F1, F2, F3 = FB, R0, ACCK, R1
    KA, KB = FA, FC
    ve = [f"v_add_f32 v{ACCV}, v{ACCV}, v{ACCV + 2}", f"v_add_f32 v{ACCV + 4}, v{ACCV + 4}, v{ACCV + 6}",
          f"v_add_f32 v{ACCV + 1}, v{ACCV + 1}, v{ACCV + 3}", f"v_add_f32 v{ACCV + 5}, v{ACCV + 5}, v{ACCV + 7}",
          f"v_cvt_pk_bf16_f32 v{ACCV + 2}, v{ACCV}, v{ACCV + 1}",
          f"v_cvt_pk_bf16_f32 v{ACCV + 3}, v{ACCV + 4}, v{ACCV + 5}"]
    def touch():
        if TOUCH and not NBF and w in (TKW, TCW):
            if FAR:
                a(f"v_readfirstlane_b32 s{S_TMP}, v{vT1}")
                a(f"s_add_u32 s{S_TMP}, s{S_TMP}, s{sTCH}")
            a.auto = False
            a(f"v_lshlrev_b32 v{vT0}, 3, v{vL16}")
            a(f"buffer_load_dword v{vT2}, v{vT0}, {WS}, s{S_TMP if FAR else sTCH} offen")
            a.auto = True
        if TOUCH and NBF and w == CKW:
            a.auto = False
            a(f"v_cmp_eq_u32 vcc, 1, v{vT2}")
            a(f"v_lshlrev_b32 v{vT0}, 3, v{vL16}")
            a(f"s_cmp_eq_u64 vcc, -1")
            a(f"s_cselect_b32 s{sFOK}, 1, 0")
            a(f"s_cselect_b64 exec, -1, 0")
            a(f"buffer_load_dword v{vT2}, v{vT0}, {WS}, s{sTCH} offen")
            a(f"s_sub_u32 s{S_TMP}, s{sTCH}, {QKV_M}")
            a(f"buffer_load_dword v{vT2}, v{vT0}, {WS}, s{S_TMP} offen")
            a(f"s_mov_b64 exec, -1")
            a.auto = True
    post = [[S("v", 0, dv[2], FA)], [S("v", 1, dv[2], FA), KX(KA, 1, 0)], [S("v", 0, 8, FC)], [S("v", 1, 8, FC), KX(KB, 1, 1)]]
    post[TPOS].append(touch)
    farrd = []
    if FAR and TOUCH and w in (TKW, TCW):
        farrd = [f"v_mov_b32 v{vT0}, {L_FAR}", f"ds_read_b32 v{vT1}, v{vT0}"]
    seq(FR(F0, 0), FR(F1, 1), FR(F2, 2), FR(F3, 3), farrd, post)
    PK = ACCV + 6
    seq(MF(SX0, WR0, F0, True), MF(SX1, WR0 + 4, F0, True), MF(SMm, F0, F0, True),
        KX(WR0, 2, 0), KX(WR0 + 4, 2, 1),
        MF(SX0, KA, F1, False), f"v_lshrrev_b32 v{vT1}, 1, v{vL16}", f"v_lshrrev_b32 v{vT0}, 9, v{vL16}",
        MF(SX1, KB, F1, False), f"v_lshl_add_u32 v{vT0}, v{vT0}, 5, v{vT1}", ve[0],
        MF(SMm, F1, F1, False), ve[1], ve[2],
        KX(KA, 3, 0), KX(KB, 3, 1),
        MF(SX0, WR0, F2, False), ve[3], ve[4],
        MF(SX1, WR0 + 4, F2, False), ve[5],
        f"ds_read_b64 {vr(PK, 2)}, v{vT0} offset:{L_F + 4 * w * ROWS}",
        MF(SMm, F2, F2, False),
        f"s_add_u32 s{S_TMP}, s{sKM}, {2048 + w * 512}",
        f"buffer_store_dwordx2 {vr(ACCV + 2, 2)}, v{vT1}, {WS}, s{S_TMP} offen sc1",
        MF(SX0, KA, F3, False), MF(SX1, KB, F3, False), MF(SMm, F3, F3, False),
        f"s_add_u32 s{S_TMP}, s{sKM}, {w * 512}",
        f"buffer_store_dwordx2 {vr(PK, 2)}, v{vT1}, {WS}, s{S_TMP} offen sc1")
    stamp(5)
    last = pfx + "last"
    seq(f"s_cmp_eq_u32 s{sSTEP}, {NSEG - 1}", f"s_cbranch_scc1 {last}")
    MX, T1 = vT0, vT1
    MP = ACCV
    P4, PB, OX, OY, LQ, ONES = Q[0], Q[1], Q[2], Q[3], Q[4], ACCK
    lds_seq = [("o", 4, 0), ("o", 4, 1), ("o", 5, 0), ("o", 5, 1), ("o", 6, 0), ("o", 6, 1), ("o", 7, 0), ("o", 7, 1), ("o", 8, 1)]
    early = (w == 0 and PAPOS >= 0)
    ring = [WR0, WR1] if early else [WR0, WR1, ACCQ, ACCK]
    bufof = {k: ring[i % len(ring)] for i, k in enumerate(lds_seq)}

    def wo_rd(i):
        return lw_read(bufof[lds_seq[i]], FM[lds_seq[i]][1])

    vals = list(range(SX0, SX0 + 8)) + [SMm, SMm + 1]
    fm = [f"v_fma_f32 v{r}, v{r}, s{sCEXP}, -v{MP}" for r in vals]
    ex = [f"v_exp_f32 v{r}, v{r}" for r in vals]
    X5 = ACCV + 4
    seq(wo_rd(0),
        f"v_mov_b64 {vr(ONES, 2)}, s[{sONES}:{sONES + 1}]", f"v_mov_b64 {vr(ONES + 2, 2)}, s[{sONES}:{sONES + 1}]",
        f"v_mov_b32 v{PB + 1}, 0", f"v_mov_b32 v{PB + 2}, 0",
        f"v_max3_f32 v{MX}, v{SX0}, v{SX0 + 1}, v{SX0 + 2}",
        f"v_max3_f32 v{MX}, v{MX}, v{SX0 + 3}, v{SX0 + 4}",
        f"v_max3_f32 v{MX}, v{MX}, v{SX0 + 5}, v{SX0 + 6}",
        f"v_max3_f32 v{MX}, v{MX}, v{SX0 + 7}, v{SMm}",
        f"v_max_f32 v{MX}, v{MX}, v{SMm + 1}",
        f"v_mov_b32 v{T1}, v{MX}",
        zero(X5, 4),
        f"v_permlane32_swap_b32 v{MX}, v{T1}",
        f"v_max_f32 v{MX}, v{MX}, v{T1}",
        f"v_mov_b32 v{T1}, v{MX}",
        "s_nop 1",
        f"v_permlane16_swap_b32 v{MX}, v{T1}",
        f"v_max_f32 v{MX}, v{MX}, v{T1}",
        f"v_mul_f32 v{MP}, s{sCEXP}, v{MX}",
        fm[0], fm[1], fm[2], fm[3], ex[0], ex[1], fm[4], fm[5], ex[2], ex[3],
        f"v_cvt_pk_bf16_f32 v{P4}, v{SX0}, v{SX0 + 1}", fm[6], fm[7], ex[4], ex[5],
        f"v_cvt_pk_bf16_f32 v{P4 + 1}, v{SX0 + 2}, v{SX0 + 3}", fm[8], fm[9], ex[6], ex[7],
        f"v_cvt_pk_bf16_f32 v{P4 + 2}, v{SX0 + 4}, v{SX0 + 5}", ex[8], ex[9],
        f"v_cvt_pk_bf16_f32 v{P4 + 3}, v{SX0 + 6}, v{SX0 + 7}",
        f"v_cvt_pk_bf16_f32 v{PB}, v{SMm}, v{SMm + 1}",
        f"v_cvt_pk_bf16_f32 v{PB + 3}, v{SMm}, v{SMm + 1}",
        MF(LQ, ONES, P4, True), zero(SX0, 2), zero(SX0 + 2, 2),
        MF(OX, VXA, P4, True), zero(SMm, 2), zero(SMm + 2, 2),
        MF(OY, VXB, P4, True), wo_rd(1),
        MF16(LQ, ONES, PB),
        MF16(OX, ACCV + 2, PB), zero(ONES, 4),
        MF16(OY, ACCV + 2, PB + 2), zero(P4, 4), zero(Q[1], 4),
        f"v_rcp_f32 v{MX}, v{LQ}", zero(Q[4], 4))
    stamp(6)
    OP = ACCQ + 4
    for i in range(4):
        a(f"v_mul_f32 v{OX + i}, v{MX}, v{OX + i}")
        a(f"v_mul_f32 v{OY + i}, v{MX}, v{OY + i}")
        a(f"v_cvt_pk_bf16_f32 v{OP + i}, v{OX + i}, v{OY + i}")
    a(f"ds_write_b128 v{vOW}, {vr(OP, 4)}")
    seq(zero(ACCV, 4))
    if NBF:
        flag_check()
    TA = [ACCQ, ACCK + 4, ACCK, ACCQ + 4, Q[0], Q[1], Q[4], ACCV + 4, ACCV]
    a.barrier(lg=0)
    OA0, OA1 = Q[2], Q[3]
    a(f"ds_read_b128 {vr(OA0, 4)}, v{vOR} offset:0")
    a(f"ds_read_b128 {vr(OA1, 4)}, v{vOR} offset:128")
    seq(zero(ACCQ + 4, 4))
    nkd = ([0, 3, 3, 2] if KD0 else [2, 2, 2, 2])[w]
    kd = [kdma(i) for i in range(nkd)]
    if not KPOS:
        seq(kd)
        kd = []

    stamp(7)
    ST = {0: TA[0], 1: TA[4], 2: TA[8]}

    def epi(tau):
        acc = TA[tau]
        dst = ST[tau // 4] + tau % 4
        return [f"v_add_f32 v{acc}, v{acc}, v{acc + 2}", f"v_add_f32 v{acc + 1}, v{acc + 1}, v{acc + 3}",
                f"v_cvt_pk_bf16_f32 v{dst}, v{acc}, v{acc + 1}"]

    def wS(tau, ks):
        k = ("o", tau, ks)
        B = vr(bufof[k], 8) if FM[k][0] == "l" else opnd(FM[k])
        return SM(TA[tau], (OA0, OA1)[ks], B)

    def tag(r):
        return f"v_and_or_b32 v{r}, v{r}, -2, s{sPH}"
    e = [epi(t) for t in range(4)]
    seq(wS(0, 0), wS(0, 1), wS(1, 0), wS(1, 1), e[0][0], wS(2, 0), e[0][1], wS(2, 1), e[0][2], wS(3, 0), e[1][0], wS(3, 1), e[1][1],
        wS(4, 0), e[1][2], wS(4, 1), e[2], e[3], tag(ST[0] + 3),
        f"buffer_store_dwordx4 {vr(ST[0], 4)}, v{vL16}, {WS}, s{sPW} offen{sc}")
    stamp(8)
    nxt = 2 + len(ring)
    seq([wo_rd(i) for i in range(2, nxt)])
    order = [(tau, ks) for tau in range(5, 9) for ks in range(2)]
    LA = [ACCQ, ACCQ + 4, ACCK, ACCK + 4]
    ldLA = [f"buffer_load_dwordx4 {vr(LA[i], 4)}, v{vRLD}, {WS}, s{sPR + i} offen sc1" for i in range(4)]
    for idx, (tau, ks) in enumerate(order):
        if early and idx == PAPOS:
            a.auto = False
            nops(a, DP1[0])
            seq(ldLA)
            stamp("l1")
            a.auto = True
        a(wS(tau, ks))
        k = ("o", tau, ks)
        if FM[k][0] == "l" and nxt < len(lds_seq):
            seq(wo_rd(nxt))
            nxt += 1
    stamp("bc")
    epiB = [epi(tau) for tau in range(4, 8)] + [tag(ST[1] + 3), f"s_add_u32 s{S_TMP}, s{sPW}, 4096",
                                                f"buffer_store_dwordx4 {vr(ST[1], 4)}, v{vL16}, {WS}, s{S_TMP} offen{sc}"]
    epiC = [epi(8), tag(ST[2]), f"v_lshrrev_b32 v{vT0}, 2, v{vL16}",
            f"buffer_store_dword v{ST[2]}, v{vT0}, {WS}, s{sPWC} offen{sc}"] + kd
    nkl = len(kd)
    adv = [f"s_xor_b32 s{r}, s{r}, {MEMB_SLOT}" for r in (sMA, sMC)]
    advE = [f"s_add_u32 s{sSTEP}, s{sSTEP}, 1", f"s_add_u32 s{sVF}, s{sVF}, {32 * 8192}",
            f"s_add_u32 s{sKF}, s{sKF}, {32 * 8192}", f"s_add_u32 s{sKM}, s{sKM}, {32 * KM_UNIT}"]
    if w == FLW:
        advE += [f"s_mov_b32 s{sFLP}, s{sFL}"]
    advE += [f"s_add_u32 s{sTCH}, s{sTCH}, {32 * 8192}"]
    advE += [f"s_add_u32 s{sFL}, s{sFL}, {FL_STRIDE}"]
    advL = [f"s_xor_b32 s{sPH}, s{sPH}, 1"] + [f"s_xor_b32 s{r}, s{r}, {MEMB_SLOT}" for r in ([] if HK else [sMEMW, sMEMZ])]
    if not HK:
        u = w
        LB = [Q[1], Q[2], Q[3], Q[4]]
        SEL, D = Q[7], Q[8]
        wide = u < 2

        def loads(L):
            if wide:
                return [f"buffer_load_dwordx4 {vr(L[i], 4)}, v{vRLD}, {WS}, s{sPR + i} offen sc1" for i in range(4)]
            return [f"buffer_load_dword v{L[i]}, v{vRLD}, {WS}, s{sPR + i} offen sc1" for i in range(4)]

        def M(i):
            return f"s[{sM + 2 * i}:{sM + 2 * i + 1}]"

        def check(L, extra):
            for i in range(4):
                a.force_wait(vm=3 - i + extra)
                a(MF(D, L[i], SEL, i == 0) if wide else MF16(D, L[i], SEL, i == 0))
                a(f"v_and_b32 v{vT1}, 1, v{L[i] + (3 if wide else 0)}")
                a(f"v_cmp_ne_u32 {M(i)}, s{sPH}, v{vT1}")
                if i == 2:
                    a(f"s_or_b64 {M(0)}, {M(0)}, {M(1)}") if False else None
            a(f"s_or_b64 vcc, {M(0)}, {M(1)}")
            a(f"s_or_b64 vcc, vcc, {M(2)}")
            a(f"s_or_b64 vcc, vcc, {M(3)}")

        def sel_build(L):
            a(f"v_add_u32 v{vT1}, {L_SEL}, v{vL16}")
            if wide:
                a(f"ds_read_b128 {vr(SEL, 4)}, v{vT1}")
            else:
                a(f"ds_read_b32 v{SEL}, v{vT1}")
                a(f"v_mov_b32 v{SEL + 1}, 0")
                for i in range(4):
                    a(f"v_mov_b32 v{L[i] + 1}, 0")
        if u == 0 and early:
            seq(epiB, epiC)
            a.auto = False
            y = 2 + nkl
        if u == 0:
            if not early:
                seq(epiB, epiC) if DP1[0] else None
                a.auto = False
                nops(a, DP1[0])
                seq(loads(LA))
                stamp("l1")
                y = 0
                if not DP1[0]:
                    a.auto = True
                    seq(epiB, epiC)
                    a.auto = False
                    y = 2 + nkl
            sel_build(None)
            nops(a, DP2)
            seq(loads(LB))
            seq(advE, LW(0))
            a("s_waitcnt lgkmcnt(2)")
            stamp(9)
            if stamps:
                a("s_mov_b32 s72, 0")
            check(LA, 4 + y)
            a(f"s_cbranch_scc0 {pfx}red")
            a(f"s_mov_b32 s{S_SPIN}, 0")
            a.label(pfx + "p1")
            if stamps:
                a("s_add_u32 s72, s72, 1")
            seq(loads(LA))
            check(LB, 4)
            a(f"s_cbranch_scc0 {pfx}red")
            if stamps:
                a("s_add_u32 s72, s72, 1")
            seq(loads(LB))
            spin_check(a, abort)
            check(LA, 4)
            a(f"s_cbranch_scc1 {pfx}p1")
        else:
            seq(epiB, epiC)
            a.auto = False
            sel_build(LB)
            seq(advE, LW(0), zero(ACCQ, 24))
            nops(a, DP1[u])
            seq(loads(LB))
            stamp("l1")
            a("s_waitcnt lgkmcnt(0)")
            stamp(9)
            if stamps:
                a("s_mov_b32 s72, 0")
            check(LB, 0)
            a(f"s_cbranch_scc0 {pfx}red")
            a(f"s_mov_b32 s{S_SPIN}, 0")
            a.label(pfx + "p1")
            if stamps:
                a("s_add_u32 s72, s72, 1")
            for i in range(4):
                a(f"s_mov_b64 exec, {M(i)}")
                a(loads(LB)[i])
            a("s_mov_b64 exec, -1")
            spin_check(a, abort)
            check(LB, 0)
            a(f"s_cbranch_scc1 {pfx}p1")
        a.label(pfx + "red")
        stamp("red")
        if u > 0:
            seq(adv, ldA)
        a.auto = True
        a.vmq, a.lgq = [], []
        seq(f"v_permlane16_swap_b32 v{D}, v{D + 2}", f"v_permlane16_swap_b32 v{D + 1}, v{D + 3}",
            f"s_mov_b64 exec, s[{sMASK}:{sMASK + 1}]",
            f"v_add_f32 v{D}, v{D}, v{D + 2}", f"v_add_f32 v{D + 1}, v{D + 1}, v{D + 3}",
            f"v_cvt_pk_bf16_f32 v{D}, v{D}, v{D + 1}", f"v_min_u32 v{D}, s{sMAXD}, v{D}",
            f"buffer_store_dword v{D}, v{vRST}, {WS}, s{sMEMW} offen{sc}",
            f"v_mov_b32 v{D + 1}, -1",
            f"buffer_store_dword v{D + 1}, v{vRST}, {WS}, s{sMEMZ} offen{sc}",
            f"s_mov_b64 exec, -1")
        stamp("mst")
        a.auto = False
        if u == 0:
            seq(adv, advL)
            nops(a, DQ1[0])
            seq(ldA)
            stamp("q1")
            a("s_waitcnt vmcnt(3)")
            seq(LW(1), zero(ACCQ, 24))
            nops(a, DQ2[w])
            seq(ldA)
            stamp("q2")
            nops(a, DQ3[w])
            seq(ldA)
        else:
            if R2E:
                seq(ldA)
            seq(advL, LW(1))
    else:
        seq(epiB, epiC)
        a.auto = False
        seq(adv, advE, advL)
        trace(a, vT0, vT1, True)
        seq(LW(0), LW(1), zero(ACCQ, 24))
        if HKSL:
            a(f"s_sleep {HKSL}")
        nops(a, DQ1[w])
        seq(ldA)
        stamp("q1")
        nops(a, DQ2[w])
        seq(ldA)
        stamp("q2")
        nops(a, DQ3[w])
        seq(ldA)
    a("s_waitcnt lgkmcnt(0)")
    stamp(NST)
    dump_stamps()
    a.auto = True
    a.restore(([], []))
    a(f"s_branch {head}")
    for t in tails:
        t()
    a.restore(([], []))
    a.label(last)
    a.force_wait(vm=0, lg=0)
    a.I("s_barrier")
    if w != FLW:
        a(f"s_branch {done}")
    else:
        a(f"s_mov_b32 s{sFLP}, s{sFL}")
        flag_store()
        a(f"s_branch {done}")
```

```python
import sys, os
from common import *
if os.environ.get('RV', '2') == '2':
    import role_r2 as R
else:
    import role_r as R
import pool, role_t

MAIN = KNAME + "_kernel"
WARM = int(os.environ.get("WARM", "1"))
FREERUN = int(os.environ.get("FREERUN", "0"))
INIT = "init_kernel"
TA3 = os.environ.get("TA3", "1") == "1"
if TA3:
    ROLE_MAP = {2: [("W", 24), ("P", 8)], 3: [("W", 12), ("P", 20)], 4: [("A", 16), ("O", 3), ("P", 13)],
                5: [("A", 16), ("O", 3), ("P", 13)], 6: [("T", 11), ("P", 21)], 7: [("T", 11), ("P", 21)]}
else:
    ROLE_MAP = {2: [("W", 24), ("P", 8)], 3: [("W", 12), ("P", 20)], 4: [("A", 16), ("O", 5), ("P", 11)],
                5: [("A", 16), ("O", 5), ("P", 11)], 6: [("T", 8), ("P", 23)], 7: [("T", 8), ("P", 23)]}


def kd(name, vgpr, acc, sgpr=102):
    return f""".p2align 6
.amdhsa_kernel {name}
  .amdhsa_next_free_vgpr {vgpr}
  .amdhsa_next_free_sgpr {sgpr}
  .amdhsa_accum_offset {acc}
  .amdhsa_group_segment_fixed_size 0
  .amdhsa_kernarg_size 104
  .amdhsa_user_sgpr_count 2
  .amdhsa_user_sgpr_kernarg_segment_ptr 1
  .amdhsa_system_sgpr_workgroup_id_x 1
.end_amdhsa_kernel
"""


def pool_init(a):
    WS = f"s[{SRD_WS}:{SRD_WS + 3}]"
    Q_ = 6
    ZP = 6 if pool.AO3 else 9
    if WARM:
        srd(a, SRD_A, KA_WQKV, 576 * 3456)
        srd(a, SRD_B, KA_WO, 576 * 1152)
        a(f"s_sub_u32 s41, 191, s{Q_}")
        a(f"s_lshl_b32 s41, s41, 15")
        a(f"v_lshlrev_b32 v254, 7, v0")
        a(f"buffer_load_dword v255, v254, s[{SRD_A}:{SRD_A + 3}], s41 offen")
        a(f"s_sub_u32 s41, s41, {61 * 32768}")
        a(f"s_cmp_lt_u32 s41, {21 * 32768}")
        a(f"s_cselect_b32 s41, s41, 0x7f000000")
        a(f"buffer_load_dword v255, v254, s[{SRD_B}:{SRD_B + 3}], s41 offen")
        if WARM & 2:
            for ka in (KA_WQ, KA_WK, KA_WV, KA_BWO):
                srd(a, SRD_A, ka, 576 * 8192)
                a(f"s_mul_i32 s41, s{Q_}, {192 * 128}")
                a("s_mov_b64 exec, s[42:43]") if False else None
                a(f"v_cmp_gt_u32 vcc, 192, v0")
                a(f"v_cndmask_b32 v253, v252, v254, vcc") if False else None
                a(f"buffer_load_dword v255, v254, s[{SRD_A}:{SRD_A + 3}], s41 offen")
        a.vmq = []
    a(f"s_cmp_ge_u32 s{Q_}, {N_POOL}")
    a("s_cbranch_scc1 Li_end")
    a(f"""
    v_lshlrev_b32 v7, 4, v0
    v_mov_b32 v12, 0
    v_mov_b32 v13, 0
    v_mov_b32 v14, 0
    v_mov_b32 v15, 0
    s_cmp_ge_u32 s{Q_}, 64
    s_cbranch_scc1 Li_rest
    """)
    srd(a, SRD_A, KA_X, 2048 * 1152)
    a(f"""
    v_and_b32 v1, 31, v0
    v_lshrrev_b32 v2, 5, v0
    v_mul_u32_u24 v3, 1152, v1
    v_mul_u32_u24 v5, 144, v2
    v_add_u32 v3, v3, v5
    s_mul_i32 s41, s{Q_}, {32 * 1152}
    """)
    for i in range(9):
        a(f"buffer_load_dwordx4 {vr(64 + 4 * i, 4)}, v3, s[{SRD_A}:{SRD_A + 3}], s41 offen offset:{16 * i}")
    a(f"""
    v_mul_u32_u24 v4, {9 * 512}, v2
    v_lshl_add_u32 v4, v1, 4, v4
    s_mul_i32 s41, s{Q_}, {X_SEG}
    s_add_u32 s41, s41, {WS_X}
    s_mul_i32 s42, s{Q_}, {ST_SEG}
    s_add_u32 s42, s42, {WS_ST}
    s_add_u32 s43, s42, 2048
    s_add_u32 s44, s42, {ST_BYTES + ZP * 512}
    v_mov_b32 v60, 0
    v_mov_b32 v61, 0
    """)
    for i in range(9):
        if i == 8:
            a("v_add_u32 v4, 4096, v4")
        a(f"buffer_store_dwordx4 {vr(64 + 4 * i, 4)}, v4, {WS}, s41 offen offset:{512 * (i % 8)} sc1")
    a(f"buffer_store_dwordx4 v[12:15], v7, {WS}, s43 offen sc1")
    a(f"v_cmp_gt_u32 vcc, {(12 - ZP) * 32}, v0")
    a("s_and_saveexec_b64 s[46:47], vcc")
    a("s_cbranch_execz Li_z1")
    a(f"buffer_store_dwordx4 v[12:15], v7, {WS}, s44 offen sc1")
    a.label("Li_z1")
    a("s_mov_b64 exec, s[46:47]")
    a("v_mov_b32 v62, 0x3f803f80")
    for r in range(64, 100):
        a(f"v_dot2c_f32_bf16 v60, v{r}, v62")
        a(f"v_dot2c_f32_bf16 v61, v{r}, v{r}")
    a.nop(4)
    a(f"""
    v_lshrrev_b32 v5, 1, v2
    v_lshlrev_b32 v5, 9, v5
    v_lshl_add_u32 v5, v1, 4, v5
    v_and_b32 v6, 1, v2
    v_lshl_add_u32 v5, v6, 3, v5
    buffer_store_dwordx2 v[60:61], v5, {WS}, s42 offen sc1
    s_branch Li_flags
    Li_rest:
    """)
    a.restore(([], []))
    a(f"""
    s_cmp_ge_u32 s{Q_}, 128
    s_cbranch_scc1 Li_flags
    s_sub_u32 s41, s{Q_}, 64
    s_mul_i32 s41, s41, {ST_SEG}
    s_add_u32 s41, s41, {WS_ST + 3 * ST_BYTES + ZP * 512}
    v_cmp_gt_u32 vcc, {(12 - ZP) * 32}, v0
    s_and_saveexec_b64 s[42:43], vcc
    s_cbranch_execz Li_rest2
    buffer_store_dwordx4 v[12:15], v7, {WS}, s41 offen sc1
    Li_rest2:
    s_mov_b64 exec, s[42:43]
    Li_flags:
    """)
    a.restore(([], []))
    a(f"""
    v_cmp_gt_u32 vcc, 96, v0
    s_cmp_lt_u32 s{Q_}, 64
    s_cselect_b64 s[42:43], -1, 0
    s_and_b64 vcc, vcc, s[42:43]
    s_cmp_lt_u32 s{Q_}, 128
    s_cselect_b32 s44, {FREERUN}, 0
    v_mov_b32 v12, s44
    v_mov_b32 v13, s44
    v_mov_b32 v14, s44
    v_mov_b32 v15, s44
    v_mov_b32 v9, 1
    v_cndmask_b32 v8, v12, v9, vcc
    v_mov_b32 v9, v8
    v_mov_b32 v10, v8
    v_mov_b32 v11, v8
    s_mul_i32 s41, s{Q_}, {FL_STRIDE}
    s_sub_u32 s42, s{Q_}, 128
    s_lshl_b32 s42, s42, 12
    s_add_u32 s42, s42, {WS_ZERO}
    s_cmp_ge_u32 s{Q_}, 128
    s_cselect_b32 s41, s42, s41
    buffer_store_dwordx4 v[8:11], v7, {WS}, s41 offen sc1
    s_cbranch_scc1 Li_nofl
    """)
    for i in range(1, 6):
        a(f"s_add_u32 s41, s41, 4096")
        if i == 5:
            a("v_cmp_gt_u32 vcc, 128, v0")
            a("s_and_saveexec_b64 s[42:43], vcc")
            a("s_cbranch_execz Li_fl5")
        a(f"buffer_store_dwordx4 v[12:15], v7, {WS}, s41 offen sc1")
    a("Li_fl5:")
    a("s_mov_b64 exec, s[42:43]")
    a("Li_nofl:")
    trace6(a, 60, 61)
    a.force_wait(vm=0)
    a("s_barrier")
    trace6(a, 60, 61)
    a(f"s_cmp_lg_u32 s{S_WAVE}, 0")
    a("s_cbranch_scc1 Li_end")
    a(f"s_sub_u32 s41, s{Q_}, 64")
    a(f"s_cmp_lt_u32 s41, 64")
    a("s_cbranch_scc1 Li_l1")
    dbg_add(a, DB_POOLA, 2, 3)
    a("s_branch Li_end")
    a.label("Li_l1")
    dbg_add(a, DB_POOL, 2, 3)
    a.label("Li_end")
    trace6(a, 60, 61)
    a.restore(([], []))


def gen_main(a, stamps=0, dbg_roles=None):
    WS = f"s[{SRD_WS}:{SRD_WS + 3}]"
    a.text(f".globl {MAIN}\n.p2align 8\n.type {MAIN},@function")
    a.label(MAIN)
    a.reset_window()
    sX, sTK = 3, 4
    DBG = f"s[{S_DBG}:{S_DBG + 1}]"
    a("s_cmp_ge_u32 s2, 256")
    a("s_cbranch_scc1 L_exit")
    srd(a, SRD_WS, KA_WS, WS_BYTES)
    a(f"""
    s_load_dwordx2 s[{S_DBG}:{S_DBG + 1}], s[0:1], {KA_DBG}
    v_lshrrev_b32 v1, 6, v0
    s_getreg_b32 s{sX}, hwreg(HW_REG_XCC_ID)
    v_readfirstlane_b32 s{S_WAVE}, v1
    s_and_b32 s{sX}, s{sX}, {6 if os.environ.get('FAKEX') else 7}
    s_and_b32 s{S_TMP}, s{sX}, 1
    s_lshl_b32 s{S_TMP}, s{S_TMP}, 7
    s_lshl_b32 s{S_TMP + 1}, s{sX}, 1
    s_and_b32 s{S_TMP + 1}, s{S_TMP + 1}, 12
    s_add_u32 s{S_TMP}, s{S_TMP}, s{S_TMP + 1}
    v_mov_b32 v2, 0
    v_mov_b32 v3, 1
    v_mov_b32 v4, s{S_TMP}
    s_mov_b32 s{R.sSTEP}, 0
    s_waitcnt lgkmcnt(0)
    s_cmp_lg_u32 s{S_WAVE}, 0
    s_cbranch_scc1 L_tk_wait
    s_mov_b64 exec, 1
    global_atomic_add v3, v4, v3, {DBG} sc0
    v_readfirstlane_b32 s{sTK}, v3
    s_cmp_lt_u32 s{sTK}, 32
    s_cbranch_scc1 L_tk_have
    """)
    a(f"""
    v_mov_b32 v3, 1
    v_mov_b32 v4, {DB_HOMELESS}
    global_atomic_add v3, v4, v3, {DBG} sc0
    v_readfirstlane_b32 s5, v3
    s_mov_b64 exec, 0xff
    v_and_b32 v4, 1, v0
    v_lshlrev_b32 v4, 7, v4
    v_lshlrev_b32 v5, 1, v0
    v_and_or_b32 v4, v5, 12, v4
    s_mov_b32 s{S_SPIN}, 0
    L_hl_poll:
    global_load_dword v5, v4, {DBG} sc1
    """)
    spin_check(a, "L_abort")
    a("s_mov_b32 s6, 0")
    for i in range(8):
        a(f"v_readlane_b32 s{40 + i}, v5, {i}")
        a(f"s_add_u32 s6, s6, s{40 + i}")
    a(f"""
    s_cmp_lt_u32 s6, 256
    s_cbranch_scc1 L_hl_poll
    s_mov_b32 s{sX}, 0
    s_mov_b32 s{sTK}, 0
    """)
    for i in range(7, -1, -1):
        a(f"""
        s_min_u32 s6, s{40 + i}, 32
        s_sub_u32 s7, 32, s6
        s_cmp_lt_u32 s5, s7
        s_cselect_b32 s{sX}, {i}, s{sX}
        s_add_u32 s6, s6, s5
        s_cmp_lt_u32 s5, s7
        s_cselect_b32 s{sTK}, s6, s{sTK}
        s_sub_u32 s5, s5, s7
        """)
    a(f"""
    L_tk_have:
    s_lshl_b32 s5, s{sX}, 8
    s_or_b32 s5, s5, s{sTK}
    v_mov_b32 v3, s5
    s_mov_b64 exec, 1
    ds_write_b32 v2, v3
    s_mov_b64 exec, -1
    L_tk_wait:
    """)
    a.force_wait(vm=0, lg=0)
    a("s_barrier")
    a("ds_read_b32 v3, v2")
    a(f"v_readfirstlane_b32 s5, v3")
    a(f"s_lshr_b32 s{sX}, s5, 8")
    a(f"s_and_b32 s{sTK}, s5, 255")
    a("s_barrier")
    trace_init(a)
    if DBGT:
        a("s_memrealtime s[6:7]")
        a.force_wait(lg=0)
        a("s_mov_b32 s5, s6")
    trace(a, 2, 3, True)
    en = dbg_roles or "RPWTAO"

    def tgt(ch, lab):
        return lab if ch in en else "L_exit"
    LAB = {"P": "L_role_p", "W": "L_role_tw", "T": "L_role_ta", "A": "L_role_aq", "O": "L_role_awo"}
    a(f"s_cmp_lt_u32 s{sX}, 2")
    a(f"s_cbranch_scc1 {tgt('R', 'L_role_r')}")
    a(f"s_sub_u32 s6, s{sX}, 2")
    a(f"s_lshl_b32 s6, s6, 5")
    a(f"s_add_u32 s6, s6, s{sTK}")
    pool_init(a)
    base = {k: 0 for k in LAB}
    for cls, lst in ROLE_MAP.items():
        a(f"s_cmp_lg_u32 s{sX}, {cls}")
        a(f"s_cbranch_scc1 L_cls{cls}_no")
        t0 = 0
        for ch, n in lst:
            a(f"s_add_u32 s{S_ROLE}, s{sTK}, {(base[ch] - t0) & 0xffffffff}")
            a(f"s_cmp_lt_u32 s{sTK}, {t0 + n}")
            a(f"s_cbranch_scc1 {tgt(ch, LAB[ch])}")
            base[ch] += n
            t0 += n
        a("s_endpgm")
        a.label(f"L_cls{cls}_no")
    assert base == ({"P": 96, "W": 36, "T": 22, "A": 32, "O": 6} if TA3 else {"P": 96, "W": 36, "T": 16, "A": 32, "O": 10}), base
    a(f"""
    L_exit:
    s_endpgm
    L_abort:
    """)
    a.force_wait(lg=0)
    a(f"""
    s_mov_b64 exec, -1
    v_mov_b32 v0, {DB_ABORT}
    s_lshl_b32 s5, s{sX}, 8
    s_or_b32 s5, s5, s{sTK}
    s_or_b32 s5, s5, 0x10000
    v_mov_b32 v1, s5
    global_store_dword v0, v1, s[{S_DBG}:{S_DBG + 1}]
    s_endpgm
    """)
    for ch, lab, fn in (("P", "L_role_p", pool.role_p2 if os.environ.get("PV", "2") == "2" else pool.role_p), ("O", "L_role_awo", (pool.role_awo3 if pool.AO3 else pool.role_awo2) if TA3 else pool.role_awo), ("A", "L_role_aq", pool.role_aq),
                        ("T", "L_role_ta", role_t.role_ta), ("W", "L_role_tw", role_t.role_tw)):
        if ch not in en:
            continue
        a.text(".p2align 6")
        a.label(lab)
        a.reset_window()
        fn(a, f"{lab}_abort", f"{lab}_exit")
        a.label(f"{lab}_abort")
        a("s_branch L_abort") if False else far_jump(a, "L_abort")
        a.label(f"{lab}_exit")
        trace(a, 2, 3, True) if (FREERUN or TRACE == 2) else None
        a("s_endpgm")
    if "R" in en:
        a.text(".p2align 6")
        a.label("L_role_r")
        a.reset_window()
        a(f"s_mov_b32 s{R.sLAY}, s{sX}")
        a(f"s_mov_b32 s{R.sH}, s{sTK}")
        R.r_setup(a)
        a(f"""
        s_mov_b64 exec, 0xff
        v_lshrrev_b32 v14, 2, v{R.vL16}
        v_lshlrev_b32 v12, 5, v14
        v_and_b32 v12, 128, v12
        v_lshrrev_b32 v13, 1, v14
        v_and_or_b32 v12, v13, 12, v12
        s_mov_b32 s{S_SPIN}, 0
        L_pure:
        global_load_dword v13, v12, {DBG} sc1
        """)
        spin_check(a, "Lr_abort")
        a("s_mov_b32 s6, 0")
        for i in range(8):
            a(f"v_readlane_b32 s7, v13, {i}")
            a(f"s_add_u32 s6, s6, s7")
        a(f"""
        v_readlane_b32 s7, v13, s{R.sLAY}
        s_cmp_ge_u32 s7, 32
        s_cselect_b32 s{R.sFAST}, {0 if os.environ.get('FAKEX') or os.environ.get('SLOW') else 1}, 0
        s_cselect_b32 s6, 256, s6
        s_cmp_lt_u32 s6, 256
        s_cbranch_scc1 L_pure
        s_mov_b64 exec, -1
        s_lshl_b32 s6, s{R.sLAY}, 2
        s_add_u32 s6, s6, {DB_TEAM}
        """)
        dbg_wait(a, "s6", 32, 12, 13, "Lr_abort", "L_team")
        dbg_wait(a, DB_POOLA, N_POOLA, 12, 13, "Lr_abort", "L_rpoola")
        a(f"s_cmp_eq_u32 s{R.sLAY}, 0")
        a("s_cbranch_scc1 L_rpool_skip")
        dbg_wait(a, DB_POOL, N_POOLB, 12, 13, "Lr_abort", "L_rpool")
        a.label("L_rpool_skip")
        a("s_barrier")
        trace(a, 12, 13, True)
        stamp_max(a, 4, 12, 13, (R.sLAY, 0))
        for fast in (1, 0):
            if fast:
                a(f"s_cmp_eq_u32 s{R.sFAST}, 0")
                a("s_cbranch_scc1 L_slow")
            else:
                a.label("L_slow")
            for w in range(4):
                if w < 3:
                    a(f"s_cmp_lg_u32 s{S_WAVE}, {w}")
                    a(f"s_cbranch_scc1 L_w{w + 1}_{fast}")
                a.restore(([], []))
                R.r_loop(a, w, fast, "Lr_abort", "Lr_exit", stamps)
                if w < 3:
                    a.label(f"L_w{w + 1}_{fast}")
        a.label("Lr_abort")
        far_jump(a, "L_abort")
        a.label("Lr_exit")
        a("s_endpgm")


def far_jump(a, lab):
    a.force_wait(lg=0)
    a(f"""
    s_mov_b64 exec, -1
    v_mov_b32 v0, {DB_ABORT}
    s_lshl_b32 s5, s3, 8
    s_or_b32 s5, s5, s4
    s_or_b32 s5, s5, 0x10000
    v_mov_b32 v1, s5
    global_store_dword v0, v1, s[{S_DBG}:{S_DBG + 1}]
    s_endpgm
    """)


def build(stamps=0, dbg_roles=None):
    a = Asm()
    hdr = open(os.path.join(os.path.dirname(__file__), "..", KNAME + ".s.ref")).read().split("; Override launch")[0]
    a.text(hdr.rstrip())
    a.text("; @launch grid=(256,1,1) block=(256,1,1) lds=163840")
    a.text('.amdgcn_target "amdgcn-amd-amdhsa--gfx950"\n.text')
    gen_main(a, stamps, dbg_roles)
    a.text('.section .rodata,"a"')
    a.text(kd(MAIN, 512, 256))
    return a.render()


if __name__ == "__main__":
    out = sys.argv[1]
    open(out, "w").write(build(int(os.environ.get("STAMPS", "0")), os.environ.get("ROLES")))
```

```python
from common import *
import os, struct

ROWS = 288
L_F = 0
L_OB = 16 * ROWS
L_MEMA = L_OB + 8 * ROWS
L_KX = L_MEMA + 8192
L_LW = L_KX + 8192
LW_WAVE = 17 * 2048
L_SEL = L_LW + 4 * LW_WAVE
L_FAR = L_SEL + 1024
assert L_LW % 256 == 0 and L_FAR + 4 <= 163840

PH = 9216

vL16, vIDX, vQW, vQR, vOR, vOW, vRLD, vRST, vLW, vT0, vT1, vT2 = range(12)
ACCQ, ACCK, ACCV = 12, 20, 28
Q = [36 + 4 * i for i in range(9)]
FA, FB, FC, R0, R1 = Q[0], Q[1], Q[2], Q[3], Q[4]
WR0, WR1 = Q[5], Q[7]
WBASE = 72

sH = S_ROLE
sLAY = 32
sSTEP = 33
sMA = 34
sMC = 35
sMEMW = 36
sMEMZ = 37
sPW = 38
sPWC = 39
sPH = 40
sKF = 41
sVF = 42
sKM = 43
sCEXP = 44
sMASK = 46
sU = 48
sMAXD = 50
sFAST = 51
sONES = 52
sM = 54
sPR = 62
sFL = 66
sFLP = 67
sTCH = 68
sFOK = 69
sL0 = 70
S_STAMP = 80

MATS = "qkv"
env = os.environ.get
DBC = [int(x) for x in env("DBC", "0,0,0,0").split(",")]
DP1 = [int(x) for x in env("DP1", "0,60,50").split(",")]
DP2 = int(env("DP2", "10"))
DQ1 = [int(x) for x in env("DQ1", "20,30,30,10").split(",")]
DQ2 = [int(x) for x in env("DQ2", "10,20,20,25").split(",")]
DQ3 = [int(x) for x in env("DQ3", "25,25,25,25").split(",")]
DQB = int(env("DQB", "0"))
HKSL = int(env("HKSL", "5"))
VORD = int(env("VORD", "1"))
KD0 = int(env("KD0", "0"))
FLW = int(env("FLW", "1"))
CKW = int(env("CKW", "2"))
TKW = int(env("TKW", "0"))
TCW = int(env("TCW", "3"))
PB0 = int(env("PB0", "0"))
PC0 = int(env("PC0", "4"))
STG = int(env("STG", "1"))
FAD = int(env("FAD", "0"))
VEARLY = int(env("VEARLY", "2"))
TPOS = int(env("TPOS", "1"))
PAPOS = int(env("PAPOS", "-1"))
R2E = int(env("R2E", "1"))
BEARLY = int(env("BEARLY", "0"))
NBF = int(env("NBF", "0"))
PD3 = int(env("PD3", "1"))
KPOS = int(env("KPOS", "0"))
FAR = int(env("FAR", "0"))
TOUCH = int(env("TOUCH", "1"))


def f32bits(x):
    return struct.unpack("<I", struct.pack("<f", x))[0]


LDS_TILES = [("v", 0), ("v", 2), ("q", 4), ("q", 6)]
LDS_SLOT = {}
for i, (m, t) in enumerate(LDS_TILES):
    LDS_SLOT[(m, 0, t)] = 2 * i
    LDS_SLOT[(m, 1, t)] = 2 * i + 1
for i, (p, ks) in enumerate([(2, 0), (2, 1), (3, 0), (3, 1)]):
    LDS_SLOT[("o", 2 * p, ks)] = 8 + 2 * i
    LDS_SLOT[("o", 2 * p + 1, ks)] = 9 + 2 * i
LDS_SLOT[("o", 8, 1)] = 16


def build_fm():
    fm = {}
    regs = [("v", WBASE + 8 * i) for i in range(23)] + [("a", 8 * i) for i in range(32)]
    keys = [(m, b, t) for m in "qkv" for t in range(9) for b in range(2) if (m, t) not in LDS_TILES]
    keys += [("o", tau, ks) for tau in range(4) for ks in range(2)] + [("o", 8, 0)]
    assert len(keys) == 55
    for k, r in zip(keys, regs):
        fm[k] = r
    for k, s in LDS_SLOT.items():
        fm[k] = ("l", s)
    return fm


FM = build_fm()


def opnd(loc, n=8, off=0):
    k, b = loc
    return (vr if k == "v" else ar)(b + off, n)


def SM(acc, A, B):
    return f"v_smfmac_f32_16x16x64_bf16 {vr(acc, 4)}, {vr(A, 4)}, {B}, v{vIDX}"


def lw_read(dst, slot):
    return [f"ds_read_b128 {vr(dst, 4)}, v{vLW} offset:{slot * 2048}",
            f"ds_read_b128 {vr(dst + 4, 4)}, v{vLW} offset:{slot * 2048 + 1024}"]


def nops(a, n):
    while n > 0:
        k = min(n, 16)
        a(f"s_nop {k - 1}")
        n -= k


def r_setup(a):
    WS = f"s[{SRD_WS}:{SRD_WS + 3}]"
    LANE, C, G, T3, T4, T5, TAU = 60, 61, 62, 63, 64, 65, 66
    cexp = hex(f32bits(128 ** -0.5 * 1.4426950408889634))
    W = S_WAVE
    a(f"""
    v_and_b32 v{LANE}, 63, v0
    v_and_b32 v{C}, 15, v{LANE}
    v_lshrrev_b32 v{G}, 4, v{LANE}
    v_lshlrev_b32 v{vL16}, 4, v{LANE}
    s_mul_i32 s{S_TMP}, s{W}, {LW_WAVE}
    s_add_u32 s{S_TMP}, s{S_TMP}, {L_LW}
    v_add_u32 v{vLW}, s{S_TMP}, v{vL16}
    s_mov_b32 s{sMAXD}, 0xfffffffe
    s_mov_b32 s{sCEXP}, {cexp}
    s_mov_b32 s{sCEXP + 1}, {cexp}
    s_mov_b32 s{sONES}, 0x3f803f80
    s_mov_b32 s{sONES + 1}, 0x3f803f80
    s_mov_b32 s{sPH}, 1
    s_mov_b32 s{sMASK}, 0x00ff00ff
    s_cmp_eq_u32 s{W}, 2
    s_cselect_b32 s{sMASK}, 0x00030003, s{sMASK}
    s_mov_b32 s{sMASK + 1}, s{sMASK}
    v_bfe_u32 v{T3}, v{C}, 1, 1
    v_mov_b32 v{vIDX}, 0x4444
    v_mov_b32 v{T4}, 0xeeee
    v_cmp_eq_u32 vcc, 0, v{T3}
    v_cndmask_b32 v{vIDX}, v{T4}, v{vIDX}, vcc
    """)
    a(f"""
    v_mul_u32_u24 v{T4}, {4 * ROWS}, v{G}
    v_lshl_add_u32 v{vQW}, v{C}, 2, v{T4}
    s_lshl_b32 s{S_TMP}, s{W}, 6
    s_add_u32 s{S_TMP + 1}, s{S_TMP}, {L_F}
    v_add_u32 v{vQW}, s{S_TMP + 1}, v{vQW}
    v_mul_u32_u24 v{T4}, {ROWS}, v{C}
    v_lshl_add_u32 v{vQR}, v{G}, 4, v{T4}
    v_add_u32 v{vQR}, {L_F}, v{vQR}
    v_lshrrev_b32 v{T4}, 2, v{C}
    v_and_b32 v{T5}, 1, v{C}
    v_lshl_add_u32 v{T4}, v{T4}, 1, v{T5}
    v_mul_u32_u24 v{T5}, {ROWS}, v{T4}
    v_lshl_add_u32 v{vOR}, v{G}, 5, v{T5}
    v_lshl_add_u32 v{vOR}, v{T3}, 4, v{vOR}
    v_add_u32 v{vOR}, {L_OB}, v{vOR}
    v_xor_b32 v{T3}, 1, v{T3}
    v_mul_u32_u24 v{T3}, {8 * ROWS}, v{T3}
    v_add_u32 v{vOW}, v{T5}, v{T3}
    v_lshl_add_u32 v{vOW}, v{G}, 4, v{vOW}
    s_add_u32 s{S_TMP + 1}, s{S_TMP}, {L_OB}
    v_add_u32 v{vOW}, s{S_TMP + 1}, v{vOW}
    """)
    WP, GO, CH, UI = sL0, sL0 + 1, sL0 + 2, sL0 + 3
    a(f"""
    s_lshr_b32 s{WP}, s{sH}, 3
    s_bfe_u32 s{GO}, s{sH}, 0x20001
    s_and_b32 s{CH}, s{sH}, 1
    v_bfe_u32 v{T4}, v{C}, 2, 1
    v_lshl_add_u32 v{T3}, v{T4}, 2, v{G}
    v_mul_u32_u24 v{T3}, {PH}, v{T3}
    v_lshrrev_b32 v{T5}, 3, v{C}
    v_lshlrev_b32 v{T5}, 2, v{T5}
    v_and_b32 v{T4}, 3, v{C}
    v_add_u32 v{T5}, v{T5}, v{T4}
    s_lshl_b32 s{UI}, s{GO}, 4
    s_lshl_b32 s{S_TMP}, s{CH}, 3
    s_add_u32 s{UI}, s{UI}, s{S_TMP}
    v_add_u32 v{T5}, s{UI}, v{T5}
    s_lshl_b32 s{S_TMP}, s{WP}, 6
    v_add_u32 v{T5}, s{S_TMP}, v{T5}
    s_cmp_eq_u32 s{W}, 2
    s_cselect_b32 s{S_TMP}, 2, 4
    v_lshlrev_b32 v{T5}, s{S_TMP}, v{T5}
    v_add_u32 v{vRLD}, v{T3}, v{T5}
    s_lshl_b32 s{S_TMP}, s{W}, 12
    v_add_u32 v{vRLD}, s{S_TMP}, v{vRLD}
    v_lshrrev_b32 v{TAU}, 1, v{C}
    s_lshl_b32 s{S_TMP}, s{W}, 2
    v_add_u32 v{TAU}, s{S_TMP}, v{TAU}
    v_and_b32 v{T4}, 1, v{C}
    s_lshl_b32 s{S_TMP}, s{WP}, 4
    s_lshl_b32 s{S_TMP + 1}, s{GO}, 2
    s_add_u32 s{S_TMP}, s{S_TMP}, s{S_TMP + 1}
    s_lshl_b32 s{S_TMP + 1}, s{CH}, 1
    s_add_u32 s{S_TMP}, s{S_TMP}, s{S_TMP + 1}
    v_add_u32 v{T5}, s{S_TMP}, v{T4}
    v_lshl_add_u32 v{T5}, v{TAU}, 6, v{T5}
    v_lshlrev_b32 v{T5}, 4, v{T5}
    v_lshl_add_u32 v{vRST}, v{G}, 2, v{T5}
    """)
    M0 = 67
    a(f"""
    s_lshl_b32 s{S_TMP}, s{GO}, 1
    v_add_u32 v{T4}, s{S_TMP}, v{T4}
    v_mul_u32_u24 v{T4}, 576, v{T4}
    v_lshl_add_u32 v{T4}, v{TAU}, 4, v{T4}
    v_lshl_add_u32 v{T4}, v{G}, 1, v{T4}
    s_mul_i32 s{S_TMP}, s{WP}, 144
    s_lshl_b32 s{S_TMP + 1}, s{CH}, 3
    s_add_u32 s{S_TMP}, s{S_TMP}, s{S_TMP + 1}
    v_add_u32 v{T4}, s{S_TMP}, v{T4}
    v_lshlrev_b32 v{M0}, 1, v{T4}
    """)
    a(f"""
    s_mul_i32 s{sU}, s{sLAY}, {RING_TEAM}
    s_add_u32 s{sU}, s{sU}, {WS_RING}
    s_mul_i32 s{S_TMP}, s{sH}, {PH}
    s_add_u32 s{S_TMP}, s{S_TMP}, s{sU}
    s_lshl_b32 s{S_TMP + 1}, s{W}, 10
    s_add_u32 s{sPW}, s{S_TMP}, s{S_TMP + 1}
    s_lshl_b32 s{S_TMP + 2}, s{W}, 8
    s_add_u32 s{sPWC}, s{S_TMP}, s{S_TMP + 2}
    s_add_u32 s{sPWC}, s{sPWC}, 8192
    s_add_u32 s{sMEMZ}, s{sU}, {MEMB_OFF}
    s_xor_b32 s{sMEMW}, s{sMEMZ}, {MEMB_SLOT}
    s_add_u32 s{sMA}, s{sMEMZ}, s{S_TMP + 1}
    s_add_u32 s{sMC}, s{sMEMZ}, 8192
    s_mul_i32 s{S_TMP}, s{sLAY}, {3 * QKV_M}
    s_lshl_b32 s{S_TMP + 2}, s{sH}, 13
    s_add_u32 s{S_TMP}, s{S_TMP}, s{S_TMP + 2}
    s_add_u32 s{sTCH}, s{S_TMP}, {WS_QKV + 2 * QKV_M}
    s_lshl_b32 s{S_TMP + 1}, s{W}, 11
    s_add_u32 s{S_TMP}, s{S_TMP}, s{S_TMP + 1}
    s_add_u32 s{sKF}, s{S_TMP}, {WS_QKV + QKV_M}
    s_add_u32 s{sVF}, s{S_TMP}, {WS_QKV + 2 * QKV_M}
    s_mul_i32 s{S_TMP}, s{sLAY}, {NSEG * 32 * KM_UNIT}
    s_lshl_b32 s{S_TMP + 2}, s{sH}, 12
    s_add_u32 s{S_TMP}, s{S_TMP}, s{S_TMP + 2}
    s_add_u32 s{sKM}, s{S_TMP}, {WS_KM}
    s_mul_i32 s{S_TMP}, s{sLAY}, {NSEG * FL_STRIDE}
    s_lshl_b32 s{S_TMP + 2}, s{sH}, 9
    s_add_u32 s{S_TMP}, s{S_TMP}, s{S_TMP + 2}
    s_add_u32 s{sFL}, s{S_TMP}, {WS_FLAGS + FL_QKV}
    s_mov_b32 s{sSTEP}, 0
    """)
    for i in range(4):
        a(f"s_add_u32 s{sPR + i}, s{sU}, {i * 8 * PH}")
    srd(a, SRD_A, KA_MEM0, 9216)
    A_ = f"s[{SRD_A}:{SRD_A + 3}]"
    a(f"""
    s_cmp_gt_u32 s{W}, 2
    s_cbranch_scc1 Lr_mem0_done
    s_mov_b64 exec, s[{sMASK}:{sMASK + 1}]
    buffer_load_dword v{T4}, v{M0}, {A_}, 0 offen
    v_min_u32 v{T4}, s{sMAXD}, v{T4}
    buffer_store_dword v{T4}, v{vRST}, {WS}, s{sMEMZ} offen sc1
    v_mov_b32 v{T4}, -1
    buffer_store_dword v{T4}, v{vRST}, {WS}, s{sMEMW} offen sc1
    s_mov_b64 exec, -1
    Lr_mem0_done:
    v_mov_b32 v64, 0
    v_mov_b32 v65, 0
    v_mov_b32 v66, 0
    v_mov_b32 v67, 0
    v_lshrrev_b32 v{T3}, 2, v{vL16}
    buffer_store_dwordx4 v[64:67], v{vL16}, {WS}, s{sPW} offen sc1
    s_add_u32 s{S_TMP}, s{sPW}, 4096
    buffer_store_dwordx4 v[64:67], v{vL16}, {WS}, s{S_TMP} offen sc1
    buffer_store_dword v64, v{T3}, {WS}, s{sPWC} offen sc1
    """)
    a.force_wait(vm=0)
    a("s_barrier")
    a(f"s_cmp_lg_u32 s{W}, 0")
    a("s_cbranch_scc1 Lr_noadd")
    a(f"s_lshl_b32 s{S_TMP}, s{sLAY}, 2")
    a(f"s_add_u32 s{S_TMP}, s{S_TMP}, {DB_TEAM}")
    dbg_add(a, f"s{S_TMP}", 63, 64)
    a.label("Lr_noadd")
    if W is not None:
        a(f"""
        s_cmp_lt_u32 s{S_WAVE}, 3
        s_cbranch_scc1 Lr_not_w3
        v_lshlrev_b32 v{vRLD}, 3, v{vL16}
        v_lshrrev_b32 v{T3}, 2, v{vL16}
        v_and_b32 v{vRST}, 12, v{T3}
        v_and_b32 v{T3}, 16, v{T3}
        v_lshl_add_u32 v{vRST}, v{T3}, 3, v{vRST}
        Lr_not_w3:
        """)
    gate(a, 1, sLAY, 63, 64, "Lr_abort", "Lr_gate")
    loader(a)
    a(f"v_bfe_u32 v{vT0}, v{vL16}, 4, 4")
    a(f"v_mov_b32 v{vT1}, 0x3f80")
    a(f"v_mov_b32 v16, 0x3f800000")
    for d in range(4):
        a(f"v_cmp_eq_u32 vcc, {2 * d}, v{vT0}")
        a(f"v_cmp_eq_u32 s[{sU}:{sU + 1}], {2 * d + 1}, v{vT0}")
        a(f"v_cndmask_b32 v{12 + d}, 0, v{vT1}, vcc")
        a(f"v_cndmask_b32 v{12 + d}, v{12 + d}, v16, s[{sU}:{sU + 1}]")
    a(f"v_add_u32 v{vT0}, {L_SEL}, v{vL16}")
    a(f"ds_write_b128 v{vT0}, v[12:15]")
    a.wait(lg=0)


def loader(a):
    W = S_WAVE
    g0 = 12
    GW, GZ = 16, 17
    RA = 18
    RW, RZ = 22, 23
    TMP = 24
    T3, T4, T5, LANE, I16, GB = 63, 64, 65, 60, 61, 62
    sT, sWO, sLW = sL0, sL0 + 1, sL0 + 2
    SRD_D = 76
    srd(a, SRD_A, KA_WQ, 576 * 8192)
    srd(a, SRD_B, KA_WK, 576 * 8192)
    srd(a, SRD_C, KA_WV, 576 * 8192)
    srd(a, SRD_D, KA_BWO, 4096 * 1152)
    a(f"""
    v_lshrrev_b32 v{LANE}, 4, v{vL16}
    v_and_b32 v{I16}, 15, v{LANE}
    v_lshrrev_b32 v{GB}, 4, v{LANE}
    s_mul_i32 s{sLW}, s{W}, {LW_WAVE}
    s_add_u32 s{sLW}, s{sLW}, {L_LW}
    s_mul_i32 s{sT}, s{W}, {144 * 8192}
    s_lshl_b32 s{S_TMP}, s{sH}, 8
    s_add_u32 s{sT}, s{sT}, s{S_TMP}
    s_mul_i32 s{sWO}, s{sH}, 147456
    s_mul_i32 s{S_TMP}, s{W}, 288
    s_add_u32 s{sWO}, s{sWO}, s{S_TMP}
    """)
    a(f"""
    v_and_b32 v{T3}, 1, v{GB}
    v_lshrrev_b32 v{T4}, 1, v{I16}
    v_xor_b32 v{T4}, v{T4}, v{T3}
    v_lshlrev_b32 v{T4}, 5, v{T4}
    v_and_b32 v{T5}, 1, v{I16}
    v_lshl_add_u32 v{T4}, v{T5}, 4, v{T4}
    v_lshl_add_u32 v{g0}, v{GB}, 13, v{T4}
    """)
    for q in range(1, 4):
        a(f"v_xor_b32 v{g0 + q}, {(2 * (q >> 1) + 4 * (q & 1)) << 5}, v{g0}")
    a(f"""
    v_lshrrev_b32 v{T3}, 2, v{LANE}
    v_mul_u32_u24 v{T3}, 1152, v{T3}
    v_and_b32 v{T4}, 3, v{LANE}
    v_lshl_add_u32 v{GW}, v{T4}, 4, v{T3}
    v_lshrrev_b32 v{T3}, 1, v{LANE}
    v_mul_u32_u24 v{T3}, 1152, v{T3}
    v_and_b32 v{T4}, 1, v{LANE}
    v_lshl_add_u32 v{GZ}, v{T4}, 4, v{T3}
    """)
    R_, C4, GL = 40, 41, 42
    a(f"""
    v_lshrrev_b32 v{R_}, 2, v{I16}
    v_and_b32 v{C4}, 3, v{I16}
    v_and_b32 v{T3}, 1, v{GB}
    v_lshl_add_u32 v{GL}, v{T3}, 2, v{R_}
    v_and_b32 v{T4}, 1, v{R_}
    v_lshl_add_u32 v{T4}, v{T3}, 2, v{T4}
    v_lshrrev_b32 v{T5}, 1, v{R_}
    v_lshl_add_u32 v{T4}, v{T5}, 3, v{T4}
    v_lshlrev_b32 v{T4}, 8, v{T4}
    v_lshl_add_u32 v{T4}, v{C4}, 3, v{T4}
    v_lshrrev_b32 v{T5}, 1, v{GB}
    v_mul_u32_u24 v{T5}, {LW_WAVE}, v{T5}
    v_add_u32 v{T4}, v{T4}, v{T5}
    v_add_u32 v{T4}, {L_LW}, v{T4}
    s_lshl_b32 s{S_TMP}, s{W}, 1
    """)
    for b in range(2):
        a(f"s_add_u32 s{S_TMP + 1}, s{S_TMP}, {b}")
        a(f"v_xor_b32 v{T5}, s{S_TMP + 1}, v{GL}")
        a(f"v_lshl_add_u32 v{RA + 2 * b}, v{T5}, 5, v{T4}")
        a(f"v_add_u32 v{RA + 2 * b + 1}, {2 * LW_WAVE}, v{RA + 2 * b}")
    a(f"""
    v_lshrrev_b32 v{T3}, 1, v{GB}
    v_lshlrev_b32 v{T3}, 3, v{T3}
    v_and_b32 v{T4}, 1, v{GB}
    v_lshl_add_u32 v{T3}, v{T4}, 1, v{T3}
    v_and_b32 v{T4}, 1, v{R_}
    v_lshl_add_u32 v{T3}, v{T4}, 4, v{T3}
    v_lshrrev_b32 v{T4}, 1, v{R_}
    v_lshl_add_u32 v{T3}, v{T4}, 2, v{T3}
    v_lshlrev_b32 v{T4}, 3, v{C4}
    v_lshl_add_u32 v{RW}, v{T3}, 6, v{T4}
    v_add_u32 v{RW}, s{sLW}, v{RW}
    v_lshl_add_u32 v{RZ}, v{T3}, 5, v{T4}
    v_add_u32 v{RZ}, s{sLW}, v{RZ}
    """)
    jobs = [("x", m, t) for t in range(9) for m in "qkv" if (m, t) not in LDS_TILES]
    pos = [i % 8 for i in range(23)]
    jobs += [("x", m, t) for m, t in LDS_TILES]
    pos += [0, 1, 2, 3]
    jobs += [("w", p, ks) for p in range(2) for ks in range(2)]
    pos += [4, 5, 6, 7]
    jobs += [("z", 0)]
    pos += [8]
    jobs += [("w", p, ks) for p in (2, 3) for ks in range(2)]
    pos += [4, 5, 6, 7]
    jobs += [("z", 1)]
    pos += [8]
    n = len(jobs)
    ndma = [2 if j[0] == "z" else 4 for j in jobs]
    issued = []

    def dma(i):
        j = jobs[i]
        a(f"s_add_u32 m0, s{sLW}, {pos[i] * 4096}")
        if j[0] == "x":
            sb = (SRD_A, SRD_B, SRD_C)[MATS.index(j[1])]
            for q in range(4):
                a(f"s_add_u32 s{S_TMP}, s{sT}, {(16 * j[2] + 4 * q) * 8192}")
                a(f"buffer_load_dwordx4 v{g0 + q}, s[{sb}:{sb + 3}], s{S_TMP} offen lds")
                if q < 3:
                    a(f"s_add_u32 m0, m0, 1024")
        elif j[0] == "w":
            for q in range(4):
                a(f"s_add_u32 s{S_TMP}, s{sWO}, {(64 * j[2] + 16 * q) * 1152 + j[1] * 64}")
                a(f"buffer_load_dwordx4 v{GW}, s[{SRD_D}:{SRD_D + 3}], s{S_TMP} offen lds")
                if q < 3:
                    a(f"s_add_u32 m0, m0, 1024")
        else:
            for q in range(2):
                a(f"s_add_u32 s{S_TMP}, s{sWO}, {(64 * j[1] + 32 * q) * 1152 + 256}")
                a(f"buffer_load_dwordx4 v{GZ}, s[{SRD_D}:{SRD_D + 3}], s{S_TMP} offen lds")
                if q < 1:
                    a(f"s_add_u32 m0, m0, 1024")
        issued.append(i)

    def outstanding_after(i):
        k = issued.index(i)
        return sum(ndma[x] for x in issued[k + 1:])

    done = -1

    def issue_more(cur):
        for nx in range(n):
            if nx in issued:
                continue
            prev = [x for x in range(nx) if pos[x] == pos[nx]]
            inplace_prev = False
            if prev and max(prev) > done:
                if jobs[nx] == ("z", 0):
                    pass
                break
            if sum(ndma[x] for x in issued if x > done) + ndma[nx] > 56:
                break
            dma(nx)

    a.auto = False
    z0 = jobs.index(("z", 0))
    for i in range(8):
        dma(i)
    dma(z0)
    for i in range(n):
        j = jobs[i]
        shared = j[0] == "x"
        assert i in issued, (i, issued)
        a(f"s_waitcnt vmcnt({min(63, outstanding_after(i))})")
        if shared:
            a("s_barrier")
            done = i - 1
            issue_more(i)
        if j[0] == "x":
            keys = [(j[1], b, j[2]) for b in range(2)]
            adr = lambda b, X: (RA + 2 * b + (X >> 1), pos[i] * 4096 + (X & 1) * 512)
        elif j[0] == "w":
            keys = [("o", 2 * j[1] + b, j[2]) for b in range(2)]
            adr = lambda b, X: (RW, pos[i] * 4096 + (32 * (X >> 1) + (X & 1)) * 64 + b * 32)
        else:
            keys = [("o", 8, j[1])]
            adr = lambda b, X: (RZ, pos[i] * 4096 + (32 * (X >> 1) + (X & 1)) * 32)
        for b, k in enumerate(keys):
            loc = FM[k]
            for X in range(4):
                ad, off = adr(b, X)
                dst = vr(TMP + 8 * b + 2 * X, 2) if loc[0] == "l" else opnd(loc, 2, 2 * X)
                a(f"ds_read_b64_tr_b16 {dst}, v{ad} offset:{off}")
        a("s_waitcnt lgkmcnt(0)")
        if i == GJOB and GATE:
            a(f"s_add_u32 s{S_TMP}, s{sLAY}, s{W}")
            a(f"s_cmp_lg_u32 s{S_TMP}, 0")
            a("s_cbranch_scc1 Lr_nold")
            dbg_add(a, DB_LOADED, T3, T4)
            a.label("Lr_nold")
        if FM[keys[0]][0] == "l":
            if shared:
                a("s_barrier")
            for b, k in enumerate(keys):
                s = FM[k][1]
                a(f"ds_write_b128 v{vLW}, {vr(TMP + 8 * b, 4)} offset:{s * 2048}")
                a(f"ds_write_b128 v{vLW}, {vr(TMP + 8 * b + 4, 4)} offset:{s * 2048 + 1024}")
            a("s_waitcnt lgkmcnt(0)")
        if not shared:
            done = i
            issue_more(i)
        elif i + 1 < n and jobs[i + 1][0] != "x":
            a("s_barrier")
            done = i
            issue_more(i)
    a.auto = True
    a.vmq, a.lgq = [], []


def flag_wait_kv(a, pfx, soff_extra, abort):
    L = a.newlabel(pfx + "fw")
    a(f"s_mov_b32 s{S_SPIN}, 0")
    a(f"s_add_u32 s{S_TMP}, s{sFL}, {soff_extra + 128}")
    a(f"v_lshrrev_b32 v{vT1}, 2, v{vL16}")
    a(f"v_and_b32 v{vT0}, 16, v{vT1}")
    a(f"v_lshlrev_b32 v{vT0}, 3, v{vT0}")
    a(f"v_and_or_b32 v{vT1}, v{vT1}, 12, v{vT0}")
    a.label(L)
    a(f"buffer_load_dword v{vT0}, v{vT1}, s[{SRD_WS}:{SRD_WS + 3}], s{S_TMP} offen sc1")
    spin_check(a, abort)
    a(f"v_cmp_eq_u32 vcc, 0, v{vT0}")
    a(f"s_cbranch_vccnz {L}")


def r_loop(a, w, fast, abort, done, stamps=0):
    sc = "" if fast else " sc1"
    pfx = f"Lr{w}{'f' if fast else 's'}_"
    WS = f"s[{SRD_WS}:{SRD_WS + 3}]"
    HK = (w == 3)
    NST = 10
    tails = []

    def seq(*items):
        for it in items:
            if isinstance(it, (list, tuple)):
                seq(*it)
            elif callable(it):
                it()
            elif it:
                a(it)

    XS = {"A": 0, 7: 1, 8: 2, "bc": 3, "l1": 4, 9: 5, "red": 6, "mst": 7, "q1": 8, "q2": 9, NST: NST}

    PS = {0: 0, "ba0": 1, "ba": 2, 1: 3, "a2": 4, "pb": 5, "a3": 6, "bb": 7, 3: 8, 4: 9, NST: NST}

    def stamp(i):
        if not stamps:
            return
        if stamps == 5:
            if i in PS:
                i = PS[i]
                a(f"s_memtime s[{S_STAMP + 2 * i}:{S_STAMP + 1 + 2 * i}]" if i < NST else "s_memrealtime s[70:71]")
            return
        if stamps in (3, 4):
            if i == 0:
                i = "A"
            if i not in XS:
                return
            i = XS[i]
            ins = "s_memtime" if stamps == 3 else "s_memrealtime"
            a(f"{ins} s[{S_STAMP + 2 * i}:{S_STAMP + 1 + 2 * i}]" if i < NST else "s_memrealtime s[70:71]")
            return
        if isinstance(i, str):
            return
        if stamps == 2 or i == NST:
            a(f"s_memrealtime s[{S_STAMP + 2 * i}:{S_STAMP + 1 + 2 * i}]" if i < NST else "s_memrealtime s[70:71]")
        else:
            a(f"s_memtime s[{S_STAMP + 2 * i}:{S_STAMP + 1 + 2 * i}]")

    def dump_stamps():
        if stamps:
            a(f"s_and_b32 s{S_TMP}, s{sSTEP}, 7")
            a(f"s_cbranch_scc1 {pfx}nodump")
            a.force_wait(lg=0)
            for i in range(NST):
                a(f"v_writelane_b32 v{vT1}, s{S_STAMP + 2 * i}, {i}")
            a(f"v_writelane_b32 v{vT1}, s70, {NST}")
            a(f"v_writelane_b32 v{vT1}, s72, 11")
            a(f"v_writelane_b32 v{vT1}, s73, 12")
            a(f"s_lshl_b32 s{S_TMP}, s{sLAY}, 5")
            a(f"s_add_u32 s{S_TMP}, s{S_TMP}, s{sH}")
            a(f"s_lshl_b32 s{S_TMP}, s{S_TMP}, 6")
            a(f"s_add_u32 s{S_TMP}, s{S_TMP}, s{sSTEP}")
            a(f"s_lshl_b32 s{S_TMP}, s{S_TMP}, 8")
            a(f"s_add_u32 s{S_TMP}, s{S_TMP}, {WS_END + w * 64}")
            a(f"v_lshrrev_b32 v{vT0}, 2, v{vL16}")
            a(f"s_mov_b64 exec, 0x1fff")
            a(f"buffer_store_dword v{vT1}, v{vT0}, {WS}, s{S_TMP} offen")
            a(f"s_mov_b64 exec, -1")
            a("s_waitcnt vmcnt(0)")
            a.label(pfx + "nodump")

    def zero(base, n):
        return [f"v_mov_b64 {vr(base + 2 * i, 2)}, 0" for i in range(n // 2)]

    ACC = {"q": ACCQ, "k": ACCK, "v": ACCV}
    WR = (WR0, WR1)
    ak = [(w + i) & 3 for i in range(4)]
    bk = [4 + x for x in ak]

    def korder(t):
        if t < 4:
            return [("v", 0), ("q", 0), ("q", 1), ("v", 1), ("k", 0), ("k", 1)]
        return [("q", 0), ("k", 0), ("q", 1), ("k", 1)]
    own = [("q", 0), ("q", 1), ("k", 0), ("v", 0), ("k", 1), ("v", 1)]
    oth = bk[1:]
    lt = [t for t in oth if ("q", t) in LDS_TILES]
    rt_ = [t for t in oth if t not in lt]
    qord = lt[:1] + rt_ + [8] + lt[1:] if len(lt) == 2 else lt + rt_ + [8]
    use = [(m, b, ak[0]) for m, b in own] + [(m, b, t) for t in ak[1:] + bk[:1] for m, b in korder(t)]
    use += [("q", b, t) for t in qord for b in range(2)]
    lq = [k for k in use if FM[k][0] == "l"]
    assert len(lq) == 8 and not any(k in lq for k in use[:3])

    def LW(n):
        return lw_read(WR[n % 2], FM[lq[n]][1]) if n < len(lq) else []

    def S(m, b, t, A):
        k = (m, b, t)
        if FM[k][0] == "l":
            n = lq.index(k)
            return [SM(ACC[m] + 4 * b, A, vr(WR[n % 2], 8))] + LW(n + 2)
        return [SM(ACC[m] + 4 * b, A, opnd(FM[k]))]

    def mem_rd(dst, t):
        return f"ds_read_b128 {vr(dst, 4)}, v{vL16} offset:{L_MEMA + t * 1024}"

    def mem_wr(src, t):
        return f"ds_write_b128 v{vL16}, {vr(src, 4)} offset:{L_MEMA + t * 1024}"

    ldA = f"buffer_load_dwordx4 {vr(FA, 4)}, v{vL16}, {WS}, s{sMA} offen sc1"
    ldB = [f"s_add_u32 s{S_TMP}, s{sMA}, 4096", f"buffer_load_dwordx4 {vr(FB, 4)}, v{vL16}, {WS}, s{S_TMP} offen sc1"]
    ldC = f"buffer_load_dwordx4 {vr(FC, 4)}, v{vL16}, {WS}, s{sMC} offen sc1"

    def chk(q):
        return [f"v_max3_u32 v{vT1}, v{q}, v{q + 1}, v{q + 2}", f"v_max_u32 v{vT1}, v{vT1}, v{q + 3}",
                f"v_cmp_eq_u32 vcc, -1, v{vT1}"]

    def late_poll(name, q, ld, young):
        L = pfx + name
        a.force_wait(vm=young)
        seq(chk(q))
        a(f"s_cbranch_vccnz {L}_re")
        wn = list(a.win)
        sn = a.snap()

        def tail():
            a.label(L + "_re")
            a.win = wn
            a.restore(([], []))
            a(f"s_mov_b32 s{S_SPIN}, 0")
            a.label(L + "_lp")
            seq(ld)
            spin_check(a, abort)
            a.force_wait(vm=0)
            seq(chk(q))
            a(f"s_cbranch_vccnz {L}_lp")
            a(f"s_branch {L}_ok")
        tails.append(tail)
        a.label(L + "_ok")
        a.restore(sn)
        a.vmq = a.vmq[len(a.vmq) - young:] if young else []

    def KX(dst, j, tt):
        return f"ds_read_b128 {vr(dst, 4)}, v{vL16} offset:{L_KX + (j * 2 + tt) * 1024}"

    def FR(dst, j):
        return f"ds_read_b128 {vr(dst, 4)}, v{vQR} offset:{j * 64}"

    def MF(acc, A, B, first):
        return f"v_mfma_f32_16x16x32_bf16 {vr(acc, 4)}, {vr(A, 4)}, {vr(B, 4)}, {'0' if first else vr(acc, 4)}"

    def MF16(acc, A, B, first=False):
        return f"v_mfma_f32_16x16x16_bf16 {vr(acc, 4)}, {vr(A, 2)}, {vr(B, 2)}, {'0' if first else vr(acc, 4)}"

    def xe(acc):
        X, Y = acc, acc + 4
        return [f"v_add_f32 v{X}, v{X}, v{X + 2}", f"v_add_f32 v{Y}, v{Y}, v{Y + 2}",
                f"v_add_f32 v{X + 1}, v{X + 1}, v{X + 3}", f"v_add_f32 v{Y + 1}, v{Y + 1}, v{Y + 3}",
                f"v_cvt_pk_bf16_f32 v{X + 2}, v{X}, v{Y}",
                f"v_cvt_pk_bf16_f32 v{X + 3}, v{X + 1}, v{Y + 1}"]

    def kdma(i):
        return lambda: a(f"buffer_load_dwordx4 v{vL16}, {WS}, s{sKF} offen offset:{1024 * i} lds", tag="kdma")

    def flag_store():
        a(f"v_mov_b32 v{vT0}, 1")
        a(f"v_mov_b32 v{vT1}, 0")
        a(f"s_mov_b64 exec, 1")
        a(f"buffer_store_dword v{vT0}, v{vT1}, {WS}, s{sFLP} offen offset:384 sc1")
        a(f"s_mov_b64 exec, -1")

    def flag_check():
        if w != CKW:
            return
        if True:
            if NBF and TOUCH:
                a(f"s_cmp_eq_u32 s{sFOK}, 1")
                a(f"s_cbranch_scc1 {pfx}flok")
            a(f"v_cmp_eq_u32 vcc, 0, v{vT2}")
            if FAR:
                a(f"s_and_b32 s{S_TMP}, vcc_lo, 0xff00")
                a(f"s_cselect_b32 s{S_TMP + 1}, 0, {32 * 8192}")
                a(f"s_cmp_lt_u32 s{sSTEP}, {NSEG - 2}")
                a(f"s_cselect_b32 s{S_TMP + 1}, s{S_TMP + 1}, 0")
                a(f"v_mov_b32 v{vT0}, {L_FAR}")
                a(f"v_mov_b32 v{vT1}, s{S_TMP + 1}")
                a(f"ds_write_b32 v{vT0}, v{vT1}")
                a(f"s_and_b32 s{S_TMP}, vcc_lo, 0xff")
                a(f"s_cbranch_scc1 {pfx}flbad")
            else:
                a(f"s_cbranch_vccnz {pfx}flbad")
            wn2 = list(a.win)
            sn2 = a.snap()

            def flbad():
                a.label(pfx + "flbad")
                a.win = wn2
                a.restore(([], []))
                a(f"s_cmp_eq_u32 s{sSTEP}, {NSEG - 1}")
                a(f"s_cbranch_scc1 {pfx}flok")
                flag_wait_kv(a, pfx, FL_STRIDE, abort)
                a(f"s_branch {pfx}flok")
            tails.append(flbad)
            a.label(pfx + "flok")
            a.restore(sn2)

    flag_wait_kv(a, pfx, 0, abort)
    if w == FLW:
        a(f"s_lshl_b32 s{sFLP}, s{sLAY}, 5")
        a(f"s_add_u32 s{sFLP}, s{sFLP}, s{sH}")
        a(f"s_lshl_b32 s{sFLP}, s{sFLP}, 12")
        a(f"s_add_u32 s{sFLP}, s{sFLP}, {WS_DUMMY}")
    a(f"s_mov_b32 m0, {L_KX + w * 2048}")
    seq(kdma(0), kdma(1))
    if KD0:
        base = [0, 0, 3, 6][w]
        a(f"s_mov_b32 m0, {L_KX + base * 1024}")
        a(f"s_add_u32 s{sKF}, s{sKF}, {(base * 1024 - w * 2048) & 0xffffffff}")
    a(f"s_add_u32 s{sKF}, s{sKF}, {32 * 8192}")
    a(f"s_add_u32 s{sTCH}, s{sTCH}, {(32 * 8192 - (QKV_M if w == TKW else 0)) & 0xffffffff}")
    a.wait(vm=0)
    seq(LW(0), LW(1), zero(ACCQ, 24))
    seq(ldA)
    a.force_wait(vm=0, lg=0)
    head = pfx + "step"
    a.label(head)
    a.auto = False
    if stamps:
        a("s_mov_b32 s73, 0")
    if PD3:
        if w in (1, 2):
            a.force_wait(vm=3)
            seq(chk(FA))
            a(f"s_cbranch_vccz {pfx}aok")
            seq(ldA)
            nops(a, DQ3[w])
            seq(ldA)
        a(f"s_mov_b32 s{S_SPIN}, 0")
        a.label(pfx + "alp")
        a.force_wait(vm=2)
        seq(chk(FA))
        a(f"s_cbranch_vccz {pfx}aok")
        seq(ldA)
        if stamps:
            a("s_add_u32 s73, s73, 1")
        spin_check(a, abort)
        a(f"s_branch {pfx}alp")
    else:
        a.force_wait(vm=3 if (w in (1, 2) and R2E) else 2)
        seq(chk(FA))
        a(f"s_cbranch_vccz {pfx}aok")
        if w in (1, 2) and R2E:
            if stamps:
                a("s_mov_b32 s73, 1")
            seq(ldA)
            a.force_wait(vm=1)
            seq(chk(FA))
            a(f"s_cbranch_vccz {pfx}aok")
        elif w in (0, 3):
            if stamps:
                a("s_mov_b32 s73, 1")
            a.force_wait(vm=1)
            seq(chk(FA))
            a(f"s_cbranch_vccz {pfx}aok")
        else:
            seq(ldA)
            nops(a, DQ2[w])
        if stamps:
            a("s_mov_b32 s73, 2")
        a(f"s_mov_b32 s{S_SPIN}, 0")
        a.label(pfx + "alp")
        seq(ldA)
        spin_check(a, abort)
        a.force_wait(vm=1)
        seq(chk(FA))
        if stamps:
            a("s_add_u32 s73, s73, 1")
        a(f"s_cbranch_vccnz {pfx}alp")
    a.label(pfx + "aok")
    a.auto = True
    a.vmq = [(frozenset(), "pa")] * 3
    a.lgq = []
    stamp(0)
    def kstep(t, A, extra=()):
        ex = list(extra)
        for m, b in korder(t):
            seq(S(m, b, t, A))
            if ex:
                seq(ex.pop(0))
        seq(ex)
    pre_issued = []
    if BEARLY:
        a.auto = False
        seq(mem_wr(FA, ak[0]), ldB)
        a.auto = True
        a.lgq = [(frozenset(), None)]
        a.vmq[-1] = (frozenset(), "pb")
        pre_issued = ["pb"]
        seq([S(m, b, ak[0], FA) for m, b in own[:3]])
    else:
        seq(mem_wr(FA, ak[0]), [S(m, b, ak[0], FA) for m, b in own[:3]])
    stamp("ba0")
    a.barrier(lg=0)
    stamp("ba")
    seq(mem_rd(R0, ak[1]), mem_rd(R1, ak[2]))
    flg = [f"v_lshrrev_b32 v{vT1}, 2, v{vL16}", f"v_and_b32 v{vT0}, 16, v{vT1}", f"v_lshlrev_b32 v{vT0}, 3, v{vT0}",
           f"v_and_or_b32 v{vT1}, v{vT1}, 12, v{vT0}"]
    if FAR:
        flg += [f"v_bfe_u32 v{vT0}, v{vL16}, 7, 1", f"v_mul_u32_u24 v{vT0}, {FL_STRIDE}, v{vT0}", f"v_add_u32 v{vT1}, v{vT1}, v{vT0}"]
    flg += [f"s_add_u32 s{S_TMP}, s{sFL}, {FL_STRIDE + 128}",
            f"v_mov_b32 v{vT2}, 2", f"buffer_load_dword v{vT2}, v{vT1}, {WS}, s{S_TMP} offen sc1"]
    stream = [(m, b, ak[0], FA) for m, b in own[3:]] + [(m, b, ak[1], R0) for m, b in korder(ak[1])] + \
             [(m, b, ak[2], R1) for m, b in korder(ak[2])]
    at = {}
    if not BEARLY:
        at.setdefault(PB0 + STG * w, []).append(("pb", ldB))
    at.setdefault(PC0 + STG * w, []).append(("pc", [ldC]))
    if w == CKW:
        at.setdefault(max(PB0, PC0) + STG * w + 1, []).append(("flg", flg))
    issued = list(pre_issued)
    for n, (m, b, t, A) in enumerate(stream):
        seq(S(m, b, t, A))
        for tg, ins in at.get(n, []):
            a.auto = False
            seq(ins)
            a.auto = True
            a.vmq[-1] = (frozenset([V0 + vT2]) if (tg == "flg" and not NBF) else frozenset(), tg)
            issued.append(tg)
        if n == 2 + FAD:
            a.force_wait(vm=len(issued))
            a.vmq = a.vmq[len(a.vmq) - len(issued):] if issued else []
            seq(mem_rd(FA, ak[3]))
            stamp(1)
    assert "pb" in issued and "pc" in issued
    nyB = len(issued) - 1 - issued.index("pb")
    stamp("a2")
    nyC = len(issued) - 1 - issued.index("pc")
    if BEARLY:
        late_poll("pb", FB, ldB, nyB)
        stamp("pb")
        a(mem_wr(FB, bk[0]), tag="fbw")
        if w == FLW:
            flag_store()
            nyC += 1
        kstep(ak[3], FA)
        stamp("a3")
    else:
        kstep(ak[3], FA)
        stamp("a3")
        late_poll("pb", FB, ldB, nyB)
        stamp("pb")
        a(mem_wr(FB, bk[0]), tag="fbw")
        if w == FLW:
            flag_store()
            nyC += 1
        kstep(bk[0], FB)
    yl = [t for _, t in a.lgq]
    a.barrier(lg=len(yl) - 1 - yl.index("fbw") if "fbw" in yl else None)
    stamp("bb")
    o3 = [t for t in qord if t != 8]
    FR_ = {bk[0]: FB, o3[0]: R0, o3[1]: R1, o3[2]: FA, 8: FC}
    seq([mem_rd(FR_[t], t) for t in o3])
    if BEARLY:
        kstep(bk[0], FB)
    seq(S("v", 0, bk[0], FB), S("v", 1, bk[0], FB))
    stamp(2)
    VXA, VXB = WR1, WR1 + 4
    ldV = [f"buffer_load_dwordx4 {vr(VXA, 4)}, v{vL16}, {WS}, s{sVF} offen",
           f"buffer_load_dwordx4 {vr(VXB, 4)}, v{vL16}, {WS}, s{sVF} offen offset:1024"]
    for t in qord:
        if t == 8:
            late_poll("pc", FC, ldC, nyC)
        seq(S("q", 0, t, FR_[t]), S("q", 1, t, FR_[t]))
    qe, ke = xe(ACCQ), xe(ACCK)
    kord = o3 + [8]
    fl = [None, None] + qe[:4] + [[qe[4], KX(WR0, 0, 0)], [qe[5], KX(WR0 + 4, 0, 1)]]
    nv = 0
    for i in range(VEARLY):
        fl[(w + 4 * i) % 8 if VEARLY > 1 else w] = [fl[(w + 4 * i) % 8 if VEARLY > 1 else w], ldV[i]]
        nv += 1
    for i, (t, b) in enumerate([(t, b) for t in kord for b in range(2)]):
        seq(S("k", b, t, FR_[t]), fl[i])
    stamp(3)
    dv = [t for t in o3] + [8]
    seq(f"ds_write_b32 v{vQW}, v{ACCQ + 2} offset:{2 * ROWS}", f"ds_write_b32 v{vQW}, v{ACCQ + 3} offset:{3 * ROWS}",
        S("v", 0, dv[0], FR_[dv[0]]), S("v", 1, dv[0], FR_[dv[0]]),
        ke,
        f"ds_write_b32 v{vQW}, v{ACCK + 2} offset:0", f"ds_write_b32 v{vQW}, v{ACCK + 3} offset:{ROWS}",
        S("v", 0, dv[1], FR_[dv[1]]), S("v", 1, dv[1], FR_[dv[1]]))
    seq(ldV[nv:])
    if not NBF:
        flag_check()
    a.barrier(lg=0)
    stamp(4)
    SX0, SX1, SMm = ACCQ, ACCQ + 4, ACCK + 4
    F0, F1, F2, F3 = FB, R0, ACCK, R1
    KA, KB = FA, FC
    ve = [f"v_add_f32 v{ACCV}, v{ACCV}, v{ACCV + 2}", f"v_add_f32 v{ACCV + 4}, v{ACCV + 4}, v{ACCV + 6}",
          f"v_add_f32 v{ACCV + 1}, v{ACCV + 1}, v{ACCV + 3}", f"v_add_f32 v{ACCV + 5}, v{ACCV + 5}, v{ACCV + 7}",
          f"v_cvt_pk_bf16_f32 v{ACCV + 2}, v{ACCV}, v{ACCV + 1}",
          f"v_cvt_pk_bf16_f32 v{ACCV + 3}, v{ACCV + 4}, v{ACCV + 5}"]
    def touch():
        if TOUCH and not NBF and w in (TKW, TCW):
            if FAR:
                a(f"v_readfirstlane_b32 s{S_TMP}, v{vT1}")
                a(f"s_add_u32 s{S_TMP}, s{S_TMP}, s{sTCH}")
            a.auto = False
            a(f"v_lshlrev_b32 v{vT0}, 3, v{vL16}")
            a(f"buffer_load_dword v{vT2}, v{vT0}, {WS}, s{S_TMP if FAR else sTCH} offen")
            a.auto = True
        if TOUCH and NBF and w == CKW:
            a.auto = False
            a(f"v_cmp_eq_u32 vcc, 1, v{vT2}")
            a(f"v_lshlrev_b32 v{vT0}, 3, v{vL16}")
            a(f"s_cmp_eq_u64 vcc, -1")
            a(f"s_cselect_b32 s{sFOK}, 1, 0")
            a(f"s_cselect_b64 exec, -1, 0")
            a(f"buffer_load_dword v{vT2}, v{vT0}, {WS}, s{sTCH} offen")
            a(f"s_sub_u32 s{S_TMP}, s{sTCH}, {QKV_M}")
            a(f"buffer_load_dword v{vT2}, v{vT0}, {WS}, s{S_TMP} offen")
            a(f"s_mov_b64 exec, -1")
            a.auto = True
    post = [[S("v", 0, dv[2], FA)], [S("v", 1, dv[2], FA), KX(KA, 1, 0)], [S("v", 0, 8, FC)], [S("v", 1, 8, FC), KX(KB, 1, 1)]]
    post[TPOS].append(touch)
    farrd = []
    if FAR and TOUCH and w in (TKW, TCW):
        farrd = [f"v_mov_b32 v{vT0}, {L_FAR}", f"ds_read_b32 v{vT1}, v{vT0}"]
    seq(FR(F0, 0), FR(F1, 1), FR(F2, 2), FR(F3, 3), farrd, post)
    PK = ACCV + 6
    seq(MF(SX0, WR0, F0, True), MF(SX1, WR0 + 4, F0, True), MF(SMm, F0, F0, True),
        KX(WR0, 2, 0), KX(WR0 + 4, 2, 1),
        MF(SX0, KA, F1, False), f"v_lshrrev_b32 v{vT1}, 1, v{vL16}", f"v_lshrrev_b32 v{vT0}, 9, v{vL16}",
        MF(SX1, KB, F1, False), f"v_lshl_add_u32 v{vT0}, v{vT0}, 5, v{vT1}", ve[0],
        MF(SMm, F1, F1, False), ve[1], ve[2],
        KX(KA, 3, 0), KX(KB, 3, 1),
        MF(SX0, WR0, F2, False), ve[3], ve[4],
        MF(SX1, WR0 + 4, F2, False), ve[5],
        f"ds_read_b64 {vr(PK, 2)}, v{vT0} offset:{L_F + 4 * w * ROWS}",
        MF(SMm, F2, F2, False),
        f"s_add_u32 s{S_TMP}, s{sKM}, {2048 + w * 512}",
        f"buffer_store_dwordx2 {vr(ACCV + 2, 2)}, v{vT1}, {WS}, s{S_TMP} offen sc1",
        MF(SX0, KA, F3, False), MF(SX1, KB, F3, False), MF(SMm, F3, F3, False),
        f"s_add_u32 s{S_TMP}, s{sKM}, {w * 512}",
        f"buffer_store_dwordx2 {vr(PK, 2)}, v{vT1}, {WS}, s{S_TMP} offen sc1")
    stamp(5)
    last = pfx + "last"
    seq(f"s_cmp_eq_u32 s{sSTEP}, {NSEG - 1}", f"s_cbranch_scc1 {last}")
    MX, T1 = vT0, vT1
    MP = ACCV
    P4, PB, OX, OY, LQ, ONES = Q[0], Q[1], Q[2], Q[3], Q[4], ACCK
    lds_seq = [("o", 4, 0), ("o", 4, 1), ("o", 5, 0), ("o", 5, 1), ("o", 6, 0), ("o", 6, 1), ("o", 7, 0), ("o", 7, 1), ("o", 8, 1)]
    early = (w == 0 and PAPOS >= 0)
    ring = [WR0, WR1] if early else [WR0, WR1, ACCQ, ACCK]
    bufof = {k: ring[i % len(ring)] for i, k in enumerate(lds_seq)}

    def wo_rd(i):
        return lw_read(bufof[lds_seq[i]], FM[lds_seq[i]][1])

    vals = list(range(SX0, SX0 + 8)) + [SMm, SMm + 1]
    fm = [f"v_fma_f32 v{r}, v{r}, s{sCEXP}, -v{MP}" for r in vals]
    ex = [f"v_exp_f32 v{r}, v{r}" for r in vals]
    X5 = ACCV + 4
    seq(wo_rd(0),
        f"v_mov_b64 {vr(ONES, 2)}, s[{sONES}:{sONES + 1}]", f"v_mov_b64 {vr(ONES + 2, 2)}, s[{sONES}:{sONES + 1}]",
        f"v_mov_b32 v{PB + 1}, 0", f"v_mov_b32 v{PB + 2}, 0",
        f"v_max3_f32 v{MX}, v{SX0}, v{SX0 + 1}, v{SX0 + 2}",
        f"v_max3_f32 v{MX}, v{MX}, v{SX0 + 3}, v{SX0 + 4}",
        f"v_max3_f32 v{MX}, v{MX}, v{SX0 + 5}, v{SX0 + 6}",
        f"v_max3_f32 v{MX}, v{MX}, v{SX0 + 7}, v{SMm}",
        f"v_max_f32 v{MX}, v{MX}, v{SMm + 1}",
        f"v_mov_b32 v{T1}, v{MX}",
        zero(X5, 4),
        f"v_permlane32_swap_b32 v{MX}, v{T1}",
        f"v_max_f32 v{MX}, v{MX}, v{T1}",
        f"v_mov_b32 v{T1}, v{MX}",
        "s_nop 1",
        f"v_permlane16_swap_b32 v{MX}, v{T1}",
        f"v_max_f32 v{MX}, v{MX}, v{T1}",
        f"v_mul_f32 v{MP}, s{sCEXP}, v{MX}",
        fm[0], fm[1], fm[2], fm[3], ex[0], ex[1], fm[4], fm[5], ex[2], ex[3],
        f"v_cvt_pk_bf16_f32 v{P4}, v{SX0}, v{SX0 + 1}", fm[6], fm[7], ex[4], ex[5],
        f"v_cvt_pk_bf16_f32 v{P4 + 1}, v{SX0 + 2}, v{SX0 + 3}", fm[8], fm[9], ex[6], ex[7],
        f"v_cvt_pk_bf16_f32 v{P4 + 2}, v{SX0 + 4}, v{SX0 + 5}", ex[8], ex[9],
        f"v_cvt_pk_bf16_f32 v{P4 + 3}, v{SX0 + 6}, v{SX0 + 7}",
        f"v_cvt_pk_bf16_f32 v{PB}, v{SMm}, v{SMm + 1}",
        f"v_cvt_pk_bf16_f32 v{PB + 3}, v{SMm}, v{SMm + 1}",
        MF(LQ, ONES, P4, True), zero(SX0, 2), zero(SX0 + 2, 2),
        MF(OX, VXA, P4, True), zero(SMm, 2), zero(SMm + 2, 2),
        MF(OY, VXB, P4, True), wo_rd(1),
        MF16(LQ, ONES, PB),
        MF16(OX, ACCV + 2, PB), zero(ONES, 4),
        MF16(OY, ACCV + 2, PB + 2), zero(P4, 4), zero(Q[1], 4),
        f"v_rcp_f32 v{MX}, v{LQ}", zero(Q[4], 4))
    stamp(6)
    OP = ACCQ + 4
    for i in range(4):
        a(f"v_mul_f32 v{OX + i}, v{MX}, v{OX + i}")
        a(f"v_mul_f32 v{OY + i}, v{MX}, v{OY + i}")
        a(f"v_cvt_pk_bf16_f32 v{OP + i}, v{OX + i}, v{OY + i}")
    a(f"ds_write_b128 v{vOW}, {vr(OP, 4)}")
    seq(zero(ACCV, 4))
    if NBF:
        flag_check()
    TA = [ACCQ, ACCK + 4, ACCK, ACCQ + 4, Q[0], Q[1], Q[4], ACCV + 4, ACCV]
    a.barrier(lg=0)
    OA0, OA1 = Q[2], Q[3]
    a(f"ds_read_b128 {vr(OA0, 4)}, v{vOR} offset:0")
    a(f"ds_read_b128 {vr(OA1, 4)}, v{vOR} offset:128")
    seq(zero(ACCQ + 4, 4))
    nkd = ([0, 3, 3, 2] if KD0 else [2, 2, 2, 2])[w]
    kd = [kdma(i) for i in range(nkd)]
    if not KPOS:
        seq(kd)
        kd = []

    stamp(7)
    ST = {0: TA[0], 1: TA[4], 2: TA[8]}

    def epi(tau):
        acc = TA[tau]
        dst = ST[tau // 4] + tau % 4
        return [f"v_add_f32 v{acc}, v{acc}, v{acc + 2}", f"v_add_f32 v{acc + 1}, v{acc + 1}, v{acc + 3}",
                f"v_cvt_pk_bf16_f32 v{dst}, v{acc}, v{acc + 1}"]

    def wS(tau, ks):
        k = ("o", tau, ks)
        B = vr(bufof[k], 8) if FM[k][0] == "l" else opnd(FM[k])
        return SM(TA[tau], (OA0, OA1)[ks], B)

    def tag(r):
        return f"v_and_or_b32 v{r}, v{r}, -2, s{sPH}"
    e = [epi(t) for t in range(4)]
    seq(wS(0, 0), wS(0, 1), wS(1, 0), wS(1, 1), e[0][0], wS(2, 0), e[0][1], wS(2, 1), e[0][2], wS(3, 0), e[1][0], wS(3, 1), e[1][1],
        wS(4, 0), e[1][2], wS(4, 1), e[2], e[3], tag(ST[0] + 3),
        f"buffer_store_dwordx4 {vr(ST[0], 4)}, v{vL16}, {WS}, s{sPW} offen{sc}")
    stamp(8)
    nxt = 2 + len(ring)
    seq([wo_rd(i) for i in range(2, nxt)])
    order = [(tau, ks) for tau in range(5, 9) for ks in range(2)]
    LA = [ACCQ, ACCQ + 4, ACCK, ACCK + 4]
    ldLA = [f"buffer_load_dwordx4 {vr(LA[i], 4)}, v{vRLD}, {WS}, s{sPR + i} offen sc1" for i in range(4)]
    for idx, (tau, ks) in enumerate(order):
        if early and idx == PAPOS:
            a.auto = False
            nops(a, DP1[0])
            seq(ldLA)
            stamp("l1")
            a.auto = True
        a(wS(tau, ks))
        k = ("o", tau, ks)
        if FM[k][0] == "l" and nxt < len(lds_seq):
            seq(wo_rd(nxt))
            nxt += 1
    stamp("bc")
    epiB = [epi(tau) for tau in range(4, 8)] + [tag(ST[1] + 3), f"s_add_u32 s{S_TMP}, s{sPW}, 4096",
                                                f"buffer_store_dwordx4 {vr(ST[1], 4)}, v{vL16}, {WS}, s{S_TMP} offen{sc}"]
    epiC = [epi(8), tag(ST[2]), f"v_lshrrev_b32 v{vT0}, 2, v{vL16}",
            f"buffer_store_dword v{ST[2]}, v{vT0}, {WS}, s{sPWC} offen{sc}"] + kd
    nkl = len(kd)
    adv = [f"s_xor_b32 s{r}, s{r}, {MEMB_SLOT}" for r in (sMA, sMC)]
    advE = [f"s_add_u32 s{sSTEP}, s{sSTEP}, 1", f"s_add_u32 s{sVF}, s{sVF}, {32 * 8192}",
            f"s_add_u32 s{sKF}, s{sKF}, {32 * 8192}", f"s_add_u32 s{sKM}, s{sKM}, {32 * KM_UNIT}"]
    if w == FLW:
        advE += [f"s_mov_b32 s{sFLP}, s{sFL}"]
    advE += [f"s_add_u32 s{sTCH}, s{sTCH}, {32 * 8192}"]
    advE += [f"s_add_u32 s{sFL}, s{sFL}, {FL_STRIDE}"]
    advL = [f"s_xor_b32 s{sPH}, s{sPH}, 1"] + [f"s_xor_b32 s{r}, s{r}, {MEMB_SLOT}" for r in ([] if HK else [sMEMW, sMEMZ])]
    if not HK:
        u = w
        LB = [Q[1], Q[2], Q[3], Q[4]]
        SEL, D = Q[7], Q[8]
        wide = u < 2

        def loads(L):
            if wide:
                return [f"buffer_load_dwordx4 {vr(L[i], 4)}, v{vRLD}, {WS}, s{sPR + i} offen sc1" for i in range(4)]
            return [f"buffer_load_dword v{L[i]}, v{vRLD}, {WS}, s{sPR + i} offen sc1" for i in range(4)]

        def M(i):
            return f"s[{sM + 2 * i}:{sM + 2 * i + 1}]"

        def check(L, extra):
            for i in range(4):
                a.force_wait(vm=3 - i + extra)
                a(MF(D, L[i], SEL, i == 0) if wide else MF16(D, L[i], SEL, i == 0))
                a(f"v_and_b32 v{vT1}, 1, v{L[i] + (3 if wide else 0)}")
                a(f"v_cmp_ne_u32 {M(i)}, s{sPH}, v{vT1}")
                if i == 2:
                    a(f"s_or_b64 {M(0)}, {M(0)}, {M(1)}") if False else None
            a(f"s_or_b64 vcc, {M(0)}, {M(1)}")
            a(f"s_or_b64 vcc, vcc, {M(2)}")
            a(f"s_or_b64 vcc, vcc, {M(3)}")

        def sel_build(L):
            a(f"v_add_u32 v{vT1}, {L_SEL}, v{vL16}")
            if wide:
                a(f"ds_read_b128 {vr(SEL, 4)}, v{vT1}")
            else:
                a(f"ds_read_b32 v{SEL}, v{vT1}")
                a(f"v_mov_b32 v{SEL + 1}, 0")
                for i in range(4):
                    a(f"v_mov_b32 v{L[i] + 1}, 0")
        if u == 0 and early:
            seq(epiB, epiC)
            a.auto = False
            y = 2 + nkl
        if u == 0:
            if not early:
                seq(epiB, epiC) if DP1[0] else None
                a.auto = False
                nops(a, DP1[0])
                seq(loads(LA))
                stamp("l1")
                y = 0
                if not DP1[0]:
                    a.auto = True
                    seq(epiB, epiC)
                    a.auto = False
                    y = 2 + nkl
            sel_build(None)
            nops(a, DP2)
            seq(loads(LB))
            seq(advE, LW(0))
            a("s_waitcnt lgkmcnt(2)")
            stamp(9)
            if stamps:
                a("s_mov_b32 s72, 0")
            check(LA, 4 + y)
            a(f"s_cbranch_scc0 {pfx}red")
            a(f"s_mov_b32 s{S_SPIN}, 0")
            a.label(pfx + "p1")
            if stamps:
                a("s_add_u32 s72, s72, 1")
            seq(loads(LA))
            check(LB, 4)
            a(f"s_cbranch_scc0 {pfx}red")
            if stamps:
                a("s_add_u32 s72, s72, 1")
            seq(loads(LB))
            spin_check(a, abort)
            check(LA, 4)
            a(f"s_cbranch_scc1 {pfx}p1")
        else:
            seq(epiB, epiC)
            a.auto = False
            sel_build(LB)
            seq(advE, LW(0), zero(ACCQ, 24))
            nops(a, DP1[u])
            seq(loads(LB))
            stamp("l1")
            a("s_waitcnt lgkmcnt(0)")
            stamp(9)
            if stamps:
                a("s_mov_b32 s72, 0")
            check(LB, 0)
            a(f"s_cbranch_scc0 {pfx}red")
            a(f"s_mov_b32 s{S_SPIN}, 0")
            a.label(pfx + "p1")
            if stamps:
                a("s_add_u32 s72, s72, 1")
            for i in range(4):
                a(f"s_mov_b64 exec, {M(i)}")
                a(loads(LB)[i])
            a("s_mov_b64 exec, -1")
            spin_check(a, abort)
            check(LB, 0)
            a(f"s_cbranch_scc1 {pfx}p1")
        a.label(pfx + "red")
        stamp("red")
        if u > 0:
            seq(adv, ldA)
        a.auto = True
        a.vmq, a.lgq = [], []
        seq(f"v_permlane16_swap_b32 v{D}, v{D + 2}", f"v_permlane16_swap_b32 v{D + 1}, v{D + 3}",
            f"s_mov_b64 exec, s[{sMASK}:{sMASK + 1}]",
            f"v_add_f32 v{D}, v{D}, v{D + 2}", f"v_add_f32 v{D + 1}, v{D + 1}, v{D + 3}",
            f"v_cvt_pk_bf16_f32 v{D}, v{D}, v{D + 1}", f"v_min_u32 v{D}, s{sMAXD}, v{D}",
            f"buffer_store_dword v{D}, v{vRST}, {WS}, s{sMEMW} offen{sc}",
            f"v_mov_b32 v{D + 1}, -1",
            f"buffer_store_dword v{D + 1}, v{vRST}, {WS}, s{sMEMZ} offen{sc}",
            f"s_mov_b64 exec, -1")
        stamp("mst")
        a.auto = False
        if u == 0:
            seq(adv, advL)
            nops(a, DQ1[0])
            seq(ldA)
            stamp("q1")
            a("s_waitcnt vmcnt(3)")
            seq(LW(1), zero(ACCQ, 24))
            nops(a, DQ2[w])
            seq(ldA)
            stamp("q2")
            nops(a, DQ3[w])
            seq(ldA)
        else:
            if R2E:
                seq(ldA)
            seq(advL, LW(1))
    else:
        seq(epiB, epiC)
        a.auto = False
        seq(adv, advE, advL)
        trace(a, vT0, vT1, True)
        if DBGT:
            a(f"s_mul_i32 s{S_TMP + 1}, s{sLAY}, 16")
            a(f"s_add_u32 s{S_TMP + 1}, s{S_TMP + 1}, 20")
            stamp_max(a, f"s{S_TMP + 1}", vT0, vT1, (sSTEP, 1))
            a(f"s_mul_i32 s{S_TMP + 1}, s{sLAY}, 20")
            a(f"s_add_u32 s{S_TMP + 1}, s{S_TMP + 1}, 24")
            stamp_max(a, f"s{S_TMP + 1}", vT0, vT1, (sSTEP, 63))
        seq(LW(0), LW(1), zero(ACCQ, 24))
        if HKSL:
            a(f"s_sleep {HKSL}")
        nops(a, DQ1[w])
        seq(ldA)
        stamp("q1")
        nops(a, DQ2[w])
        seq(ldA)
        stamp("q2")
        nops(a, DQ3[w])
        seq(ldA)
    a("s_waitcnt lgkmcnt(0)")
    stamp(NST)
    dump_stamps()
    a.auto = True
    a.restore(([], []))
    a(f"s_branch {head}")
    for t in tails:
        t()
    a.restore(([], []))
    a.label(last)
    a.force_wait(vm=0, lg=0)
    a.I("s_barrier")
    if w != FLW:
        a(f"s_branch {done}")
    else:
        a(f"s_mov_b32 s{sFLP}, s{sFL}")
        flag_store()
        a(f"s_branch {done}")
```

```python
from asmlib import *

KNAME = "interleave_layers__sliding_local_dilated__memory_aug_recurrent_mem_tr__prompt"
NSEG = 64
KA_X, KA_WQKV, KA_WO, KA_BX, KA_MEM0, KA_WQ, KA_WK, KA_WV, KA_BWO, KA_SEG, KA_OUT, KA_DBG, KA_WS = [8 * i for i in range(13)]

WS_BYTES = 268435456
WS_FLAGS = 0
FL_STRIDE = 0x5800
FL_XA, FL_OA, FL_XB, FL_OF, FL_QKV = 0, 1536, 3584, 4224, 5376
WS_ZERO = 0x2C0000
FLAGS_BYTES = 0x2D0000
WS_DUMMY = 0x300000
WS_RING = 0x400000
RING_TEAM = 0x100000
PART_SLOT = 0x80000
import os
PART_H = int(os.environ.get("PARTH", "12288"))
MEMB_OFF = 0xF0000
MEMB_SLOT = 0x4000
WS_X = 0x600000
X_BYTES = 0x240000
X_SEG = 36864
WS_ST = WS_X + 4 * X_BYTES
ST_SEG = 12 * 32 * 16
ST_BYTES = NSEG * ST_SEG
WS_OA = WS_ST + 4 * ST_BYTES
WS_AW = WS_OA + 2 * X_BYTES
WS_KM = 0x1A00000
KM_UNIT = 4096
WS_QKV = WS_KM + 2 * NSEG * 32 * KM_UNIT
QKV_M = NSEG * 32 * 8192
WS_OF = WS_QKV + 6 * QKV_M
WS_END = WS_OF + 2 * QKV_M
assert WS_AW + 32 * 90 * 1024 <= WS_KM
assert WS_END <= WS_BYTES, WS_END

RV2 = os.environ.get("RV", "2") == "2"
SPIN_MAX = int(os.environ.get("SPIN_MAX", "100000"))

S_KARG = 0
S_WG = 2
SRD_WS = 8
S_DBG = 12
S_WAVE = 14
S_ROLE = 15
S_SPIN = 16
S_TMP = 17
SRD_A = 20
SRD_B = 24
SRD_C = 28
S_FREE = 32


def srd(a, base, ka_off, nbytes):
    a(f"s_load_dwordx2 s[{base}:{base + 1}], s[0:1], {ka_off}")
    a(f"s_mov_b32 s{base + 2}, {nbytes}")
    a(f"s_mov_b32 s{base + 3}, 0x00020000")
    a.force_wait(lg=0)
    a(f"s_and_b32 s{base + 1}, s{base + 1}, 0xffff")


def spin_check(a, abort_label):
    a(f"s_add_u32 s{S_SPIN}, s{S_SPIN}, 1")
    a(f"s_cmp_gt_u32 s{S_SPIN}, {SPIN_MAX}")
    a(f"s_cbranch_scc1 {abort_label}")


TRACE = int(os.environ.get("TRACE", "0"))
WS_TRACE = WS_END


def trace_init(a):
    if TRACE:
        a(f"s_lshl_b32 s5, s3, 5")
        a(f"s_add_u32 s5, s5, s4")
        a(f"s_lshl_b32 s5, s5, 2")
        a(f"s_add_u32 s5, s5, s{S_WAVE}")
        a(f"s_lshl_b32 s5, s5, 10")
        a(f"s_add_u32 s5, s5, {WS_TRACE}")


def trace(a, v0, v1, light=False):
    if TRACE in (1, 3) or (TRACE in (2, 4, 6) and light):
        a("s_memrealtime s[6:7]")
        a.force_wait(lg=0)
        a(f"v_mov_b32 v{v0}, s6")
        a(f"v_mov_b32 v{v1}, 0")
        a("s_mov_b64 exec, 1")
        a(f"buffer_store_dword v{v0}, v{v1}, s[{SRD_WS}:{SRD_WS + 3}], s5 offen")
        a("s_mov_b64 exec, -1")
        a("s_add_u32 s5, s5, 4")


PROF = int(os.environ.get("PROF", "0"))


def p3_begin(a):
    if PROF == 3:
        a("s_memtime s[88:89]")
        a.force_wait(lg=0)


def p3_end(a, k):
    if PROF == 3:
        a("s_memtime s[86:87]")
        a.force_wait(lg=0)
        a("s_sub_u32 s86, s86, s88")
        a(f"s_add_u32 s{90 + k}, s{90 + k}, s86")


def prof_begin(a):
    if PROF in (1, 2):
        a("s_memtime s[88:89]")
        a.force_wait(lg=0)


def prof_end(a, k):
    if PROF in (1, 2):
        a("s_memtime s[86:87]")
        a.force_wait(lg=0)
        a("s_sub_u32 s86, s86, s88")
        a(f"s_add_u32 s{90 + k}, s{90 + k}, s86")


def prof_init(a):
    if PROF:
        for k in range(8):
            a(f"s_mov_b32 s{90 + k}, 0")


def prof_dump(a, v0, v1):
    if PROF:
        a(f"s_lshl_b32 s5, s3, 5")
        a(f"s_add_u32 s5, s5, s4")
        a(f"s_lshl_b32 s5, s5, 2")
        a(f"s_add_u32 s5, s5, s{S_WAVE}")
        a(f"s_lshl_b32 s5, s5, 5")
        a(f"s_add_u32 s5, s5, {WS_TRACE}")
        for k in range(8):
            a(f"v_writelane_b32 v{v0}, s{90 + k}, {k}")
        a(f"v_mbcnt_lo_u32_b32 v{v1}, -1, 0")
        a(f"v_lshlrev_b32 v{v1}, 2, v{v1}")
        a("s_mov_b64 exec, 0xff")
        a(f"buffer_store_dword v{v0}, v{v1}, s[{SRD_WS}:{SRD_WS + 3}], s5 offen")
        a("s_mov_b64 exec, -1")


def wait_units(a, lab):
    a.label(lab)
    a("s_cmp_eq_u32 s6, 0")
    a(f"s_cbranch_scc1 {lab}_d")
    a("s_sleep 127")
    a("s_sub_u32 s6, s6, 1")
    a(f"s_branch {lab}")
    a.label(lab + "_d")


DB_TICKET = 0
DB_HOMELESS = 32
DB_ABORT = 60
DB_POOL = 160
DB_POOLA = 40
DB_LOADED = 48
ORDER = int(os.environ.get('ORDER', '0'))
GATE = int(os.environ.get('GATE', '15'))
GJOB = int(os.environ.get('GJOB', '12'))


def gate(a, bit, cond_sreg, v0, v1, abort, name):
    if GATE & bit:
        if cond_sreg is not None:
            a(f"s_cmp_eq_u32 s{cond_sreg}, 0")
            a(f"s_cbranch_scc1 {name}_ng")
        dbg_wait(a, DB_LOADED, 32, v0, v1, abort, name, 100)
        if cond_sreg is not None:
            a.label(name + "_ng")

DB_TEAM = 192
PRE = int(os.environ.get('PRE', '3'))
N_POOL = 192 if PRE else 136
N_POOLA = 128 if PRE else 72
N_POOLB = 64
SRD_DBG = 4


def dbg_add(a, off, v0, v1):
    a(f"v_mov_b32 v{v0}, {off}" if isinstance(off, int) else f"v_mov_b32 v{v0}, {off}")
    a(f"v_mov_b32 v{v1}, 1")
    a("s_mov_b64 exec, 1")
    a(f"global_atomic_add v{v0}, v{v1}, s[{S_DBG}:{S_DBG + 1}]")
    a("s_mov_b64 exec, -1")


def dbg_wait(a, off, target, v0, v1, abort, name, slp=8):
    a(f"s_cmp_lg_u32 s{S_WAVE}, 0")
    a(f"s_cbranch_scc1 {name}_d")
    a(f"v_mov_b32 v{v0}, {off}")
    a(f"s_mov_b32 s{S_SPIN}, 0")
    a.label(name)
    a(f"global_load_dword v{v1}, v{v0}, s[{S_DBG}:{S_DBG + 1}] sc1")
    spin_check(a, abort)
    a(f"v_cmp_gt_u32 vcc, {target}, v{v1}")
    a(f"s_cbranch_vccz {name}_d")
    a(f"s_sleep {slp}")
    a(f"s_branch {name}")
    a.label(name + "_d")
    a("s_barrier")


def trace_at(a, sidx, v0, vz):
    if TRACE == 4:
        a("s_memrealtime s[6:7]")
        a.force_wait(lg=0)
        a(f"s_lshl_b32 s7, s{sidx}, 2")
        a(f"s_add_u32 s7, s7, s5")
        a(f"v_mov_b32 v{v0}, s6")
        a("s_mov_b64 exec, 1")
        a(f"buffer_store_dword v{v0}, v{vz}, s[{SRD_WS}:{SRD_WS + 3}], s7 offen offset:12")
        a("s_mov_b64 exec, -1")


DBGT = int(os.environ.get("DBGT", "0"))


def stamp_max(a, word, v0, v1, cond=None):
    if DBGT:
        L = a.newlabel("Lsm")
        if cond:
            a(f"s_cmp_lg_u32 s{cond[0]}, {cond[1]}")
            a(f"s_cbranch_scc1 {L}")
        sn = a.snap()
        a("s_memrealtime s[6:7]")
        a.force_wait(lg=0)
        a("s_sub_u32 s6, s6, s5")
        a(f"v_mov_b32 v{v0}, {word}" if isinstance(word, str) else f"v_mov_b32 v{v0}, {4 * word}")
        a(f"v_mov_b32 v{v1}, s6")
        a("s_mov_b64 exec, 1")
        a(f"global_atomic_umax v{v0}, v{v1}, s[{S_DBG}:{S_DBG + 1}]")
        a("s_mov_b64 exec, -1")
        a.restore(sn)
        a.label(L)


def trace6(a, v0, v1):
    if TRACE == 6:
        a("s_memrealtime s[76:77]")
        a.force_wait(lg=0)
        a(f"v_mov_b32 v{v0}, s76")
        a(f"v_mov_b32 v{v1}, 0")
        a("s_mov_b64 exec, 1")
        a(f"buffer_store_dword v{v0}, v{v1}, s[{SRD_WS}:{SRD_WS + 3}], s5 offen")
        a("s_mov_b64 exec, -1")
        a("s_add_u32 s5, s5, 4")


def init_wait(a, cond_sreg, v0, v1, abort, name):
    dbg_wait(a, DB_POOLA, N_POOLA, v0, v1, abort, name + "a")
    if cond_sreg is not None:
        a(f"s_cmp_eq_u32 s{cond_sreg}, 0")
        a(f"s_cbranch_scc1 {name}_sk")
    dbg_wait(a, DB_POOL, N_POOLB, v0, v1, abort, name + "b")
    if cond_sreg is not None:
        a.label(name + "_sk")


def class_impure(a, pair, vL16, v0, v1, abort, name):
    a(f"""
    s_mov_b64 exec, 0xff
    v_lshrrev_b32 v{v1}, 2, v{vL16}
    v_lshlrev_b32 v{v0}, 5, v{v1}
    v_and_b32 v{v0}, 128, v{v0}
    v_lshrrev_b32 v{v1}, 1, v{v1}
    v_and_or_b32 v{v0}, v{v1}, 12, v{v0}
    s_mov_b32 s{S_SPIN}, 0
    """)
    a.label(name)
    a(f"global_load_dword v{v1}, v{v0}, s[{S_DBG}:{S_DBG + 1}] sc1")
    spin_check(a, abort)
    a("s_mov_b32 s6, 0")
    for i in range(8):
        a(f"v_readlane_b32 s7, v{v1}, {i}")
        a("s_add_u32 s6, s6, s7")
    a(f"v_readlane_b32 s7, v{v1}, s3")
    a("s_cmp_ge_u32 s7, 32")
    a(f"s_cselect_b32 s{pair}, {-1 if os.environ.get('FAKEX') or os.environ.get('SLOW') else 0}, -1")
    a("s_cselect_b32 s6, 256, s6")
    a("s_cmp_lt_u32 s6, 256")
    a(f"s_cbranch_scc1 {name}")
    a(f"s_mov_b32 s{pair + 1}, s{pair}")
    a("s_mov_b64 exec, -1")
```

```python
from common import *
import os, struct

ROWS = 288
L_F = 0
L_OB = 16 * ROWS
L_MEMA = L_OB + 8 * ROWS
L_KX = L_MEMA + 8192
L_LW = L_KX + 8192
LW_WAVE = 17 * 2048
L_SEL = L_LW + 4 * LW_WAVE
L_FAR = L_SEL + 1024
assert L_LW % 256 == 0 and L_FAR + 4 <= 163840

PH = 9216

vL16, vIDX, vQW, vQR, vOR, vOW, vRLD, vRST, vLW, vT0, vT1, vT2 = range(12)
ACCQ, ACCK, ACCV = 12, 20, 28
Q = [36 + 4 * i for i in range(9)]
FA, FB, FC, R0, R1 = Q[0], Q[1], Q[2], Q[3], Q[4]
WR0, WR1 = Q[5], Q[7]
WBASE = 72

sH = S_ROLE
sLAY = 32
sSTEP = 33
sMA = 34
sMC = 35
sMEMW = 36
sMEMZ = 37
sPW = 38
sPWC = 39
sPH = 40
sKF = 41
sVF = 42
sKM = 43
sCEXP = 44
sMASK = 46
sU = 48
sMAXD = 50
sFAST = 51
sONES = 52
sM = 54
sPR = 62
sFL = 66
sFLP = 67
sTCH = 68
sFOK = 69
sL0 = 70
S_STAMP = 80

MATS = "qkv"
env = os.environ.get
DBC = [int(x) for x in env("DBC", "0,0,0,0").split(",")]
DP1 = [int(x) for x in env("DP1", "0,60,50").split(",")]
DP2 = int(env("DP2", "10"))
DQ1 = [int(x) for x in env("DQ1", "20,30,30,10").split(",")]
DQ2 = [int(x) for x in env("DQ2", "10,20,20,25").split(",")]
DQ3 = [int(x) for x in env("DQ3", "25,25,25,25").split(",")]
DQB = int(env("DQB", "0"))
HKSL = int(env("HKSL", "5"))
VORD = int(env("VORD", "1"))
KD0 = int(env("KD0", "0"))
FLW = int(env("FLW", "1"))
CKW = int(env("CKW", "2"))
TKW = int(env("TKW", "0"))
TCW = int(env("TCW", "3"))
PB0 = int(env("PB0", "0"))
PC0 = int(env("PC0", "4"))
STG = int(env("STG", "1"))
FAD = int(env("FAD", "0"))
VEARLY = int(env("VEARLY", "2"))
TPOS = int(env("TPOS", "1"))
PAPOS = int(env("PAPOS", "-1"))
R2E = int(env("R2E", "1"))
BEARLY = int(env("BEARLY", "0"))
NBF = int(env("NBF", "0"))
PD3 = int(env("PD3", "1"))
KPOS = int(env("KPOS", "0"))
FAR = int(env("FAR", "0"))
TOUCH = int(env("TOUCH", "1"))


def f32bits(x):
    return struct.unpack("<I", struct.pack("<f", x))[0]


LDS_TILES = [("v", 0), ("v", 2), ("q", 4), ("q", 6)]
LDS_SLOT = {}
for i, (m, t) in enumerate(LDS_TILES):
    LDS_SLOT[(m, 0, t)] = 2 * i
    LDS_SLOT[(m, 1, t)] = 2 * i + 1
for i, (p, ks) in enumerate([(2, 0), (2, 1), (3, 0), (3, 1)]):
    LDS_SLOT[("o", 2 * p, ks)] = 8 + 2 * i
    LDS_SLOT[("o", 2 * p + 1, ks)] = 9 + 2 * i
LDS_SLOT[("o", 8, 1)] = 16


def build_fm():
    fm = {}
    regs = [("v", WBASE + 8 * i) for i in range(23)] + [("a", 8 * i) for i in range(32)]
    keys = [(m, b, t) for m in "qkv" for t in range(9) for b in range(2) if (m, t) not in LDS_TILES]
    keys += [("o", tau, ks) for tau in range(4) for ks in range(2)] + [("o", 8, 0)]
    assert len(keys) == 55
    for k, r in zip(keys, regs):
        fm[k] = r
    for k, s in LDS_SLOT.items():
        fm[k] = ("l", s)
    return fm


FM = build_fm()


def opnd(loc, n=8, off=0):
    k, b = loc
    return (vr if k == "v" else ar)(b + off, n)


def SM(acc, A, B):
    return f"v_smfmac_f32_16x16x64_bf16 {vr(acc, 4)}, {vr(A, 4)}, {B}, v{vIDX}"


def lw_read(dst, slot):
    return [f"ds_read_b128 {vr(dst, 4)}, v{vLW} offset:{slot * 2048}",
            f"ds_read_b128 {vr(dst + 4, 4)}, v{vLW} offset:{slot * 2048 + 1024}"]


def nops(a, n):
    while n > 0:
        k = min(n, 16)
        a(f"s_nop {k - 1}")
        n -= k


def r_setup(a):
    WS = f"s[{SRD_WS}:{SRD_WS + 3}]"
    LANE, C, G, T3, T4, T5, TAU = 60, 61, 62, 63, 64, 65, 66
    cexp = hex(f32bits(128 ** -0.5 * 1.4426950408889634))
    W = S_WAVE
    a(f"""
    v_and_b32 v{LANE}, 63, v0
    v_and_b32 v{C}, 15, v{LANE}
    v_lshrrev_b32 v{G}, 4, v{LANE}
    v_lshlrev_b32 v{vL16}, 4, v{LANE}
    s_mul_i32 s{S_TMP}, s{W}, {LW_WAVE}
    s_add_u32 s{S_TMP}, s{S_TMP}, {L_LW}
    v_add_u32 v{vLW}, s{S_TMP}, v{vL16}
    s_mov_b32 s{sMAXD}, 0xfffffffe
    s_mov_b32 s{sCEXP}, {cexp}
    s_mov_b32 s{sCEXP + 1}, {cexp}
    s_mov_b32 s{sONES}, 0x3f803f80
    s_mov_b32 s{sONES + 1}, 0x3f803f80
    s_mov_b32 s{sPH}, 1
    s_mov_b32 s{sMASK}, 0x00ff00ff
    s_cmp_eq_u32 s{W}, 2
    s_cselect_b32 s{sMASK}, 0x00030003, s{sMASK}
    s_mov_b32 s{sMASK + 1}, s{sMASK}
    v_bfe_u32 v{T3}, v{C}, 1, 1
    v_mov_b32 v{vIDX}, 0x4444
    v_mov_b32 v{T4}, 0xeeee
    v_cmp_eq_u32 vcc, 0, v{T3}
    v_cndmask_b32 v{vIDX}, v{T4}, v{vIDX}, vcc
    """)
    a(f"""
    v_mul_u32_u24 v{T4}, {4 * ROWS}, v{G}
    v_lshl_add_u32 v{vQW}, v{C}, 2, v{T4}
    s_lshl_b32 s{S_TMP}, s{W}, 6
    s_add_u32 s{S_TMP + 1}, s{S_TMP}, {L_F}
    v_add_u32 v{vQW}, s{S_TMP + 1}, v{vQW}
    v_mul_u32_u24 v{T4}, {ROWS}, v{C}
    v_lshl_add_u32 v{vQR}, v{G}, 4, v{T4}
    v_add_u32 v{vQR}, {L_F}, v{vQR}
    v_lshrrev_b32 v{T4}, 2, v{C}
    v_and_b32 v{T5}, 1, v{C}
    v_lshl_add_u32 v{T4}, v{T4}, 1, v{T5}
    v_mul_u32_u24 v{T5}, {ROWS}, v{T4}
    v_lshl_add_u32 v{vOR}, v{G}, 5, v{T5}
    v_lshl_add_u32 v{vOR}, v{T3}, 4, v{vOR}
    v_add_u32 v{vOR}, {L_OB}, v{vOR}
    v_xor_b32 v{T3}, 1, v{T3}
    v_mul_u32_u24 v{T3}, {8 * ROWS}, v{T3}
    v_add_u32 v{vOW}, v{T5}, v{T3}
    v_lshl_add_u32 v{vOW}, v{G}, 4, v{vOW}
    s_add_u32 s{S_TMP + 1}, s{S_TMP}, {L_OB}
    v_add_u32 v{vOW}, s{S_TMP + 1}, v{vOW}
    """)
    WP, GO, CH, UI = sL0, sL0 + 1, sL0 + 2, sL0 + 3
    a(f"""
    s_lshr_b32 s{WP}, s{sH}, 3
    s_bfe_u32 s{GO}, s{sH}, 0x20001
    s_and_b32 s{CH}, s{sH}, 1
    v_bfe_u32 v{T4}, v{C}, 2, 1
    v_lshl_add_u32 v{T3}, v{T4}, 2, v{G}
    v_mul_u32_u24 v{T3}, {PH}, v{T3}
    v_lshrrev_b32 v{T5}, 3, v{C}
    v_lshlrev_b32 v{T5}, 2, v{T5}
    v_and_b32 v{T4}, 3, v{C}
    v_add_u32 v{T5}, v{T5}, v{T4}
    s_lshl_b32 s{UI}, s{GO}, 4
    s_lshl_b32 s{S_TMP}, s{CH}, 3
    s_add_u32 s{UI}, s{UI}, s{S_TMP}
    v_add_u32 v{T5}, s{UI}, v{T5}
    s_lshl_b32 s{S_TMP}, s{WP}, 6
    v_add_u32 v{T5}, s{S_TMP}, v{T5}
    s_cmp_eq_u32 s{W}, 2
    s_cselect_b32 s{S_TMP}, 2, 4
    v_lshlrev_b32 v{T5}, s{S_TMP}, v{T5}
    v_add_u32 v{vRLD}, v{T3}, v{T5}
    s_lshl_b32 s{S_TMP}, s{W}, 12
    v_add_u32 v{vRLD}, s{S_TMP}, v{vRLD}
    v_lshrrev_b32 v{TAU}, 1, v{C}
    s_lshl_b32 s{S_TMP}, s{W}, 2
    v_add_u32 v{TAU}, s{S_TMP}, v{TAU}
    v_and_b32 v{T4}, 1, v{C}
    s_lshl_b32 s{S_TMP}, s{WP}, 4
    s_lshl_b32 s{S_TMP + 1}, s{GO}, 2
    s_add_u32 s{S_TMP}, s{S_TMP}, s{S_TMP + 1}
    s_lshl_b32 s{S_TMP + 1}, s{CH}, 1
    s_add_u32 s{S_TMP}, s{S_TMP}, s{S_TMP + 1}
    v_add_u32 v{T5}, s{S_TMP}, v{T4}
    v_lshl_add_u32 v{T5}, v{TAU}, 6, v{T5}
    v_lshlrev_b32 v{T5}, 4, v{T5}
    v_lshl_add_u32 v{vRST}, v{G}, 2, v{T5}
    """)
    M0 = 67
    a(f"""
    s_lshl_b32 s{S_TMP}, s{GO}, 1
    v_add_u32 v{T4}, s{S_TMP}, v{T4}
    v_mul_u32_u24 v{T4}, 576, v{T4}
    v_lshl_add_u32 v{T4}, v{TAU}, 4, v{T4}
    v_lshl_add_u32 v{T4}, v{G}, 1, v{T4}
    s_mul_i32 s{S_TMP}, s{WP}, 144
    s_lshl_b32 s{S_TMP + 1}, s{CH}, 3
    s_add_u32 s{S_TMP}, s{S_TMP}, s{S_TMP + 1}
    v_add_u32 v{T4}, s{S_TMP}, v{T4}
    v_lshlrev_b32 v{M0}, 1, v{T4}
    """)
    a(f"""
    s_mul_i32 s{sU}, s{sLAY}, {RING_TEAM}
    s_add_u32 s{sU}, s{sU}, {WS_RING}
    s_mul_i32 s{S_TMP}, s{sH}, {PH}
    s_add_u32 s{S_TMP}, s{S_TMP}, s{sU}
    s_lshl_b32 s{S_TMP + 1}, s{W}, 10
    s_add_u32 s{sPW}, s{S_TMP}, s{S_TMP + 1}
    s_lshl_b32 s{S_TMP + 2}, s{W}, 8
    s_add_u32 s{sPWC}, s{S_TMP}, s{S_TMP + 2}
    s_add_u32 s{sPWC}, s{sPWC}, 8192
    s_add_u32 s{sMEMZ}, s{sU}, {MEMB_OFF}
    s_xor_b32 s{sMEMW}, s{sMEMZ}, {MEMB_SLOT}
    s_add_u32 s{sMA}, s{sMEMZ}, s{S_TMP + 1}
    s_add_u32 s{sMC}, s{sMEMZ}, 8192
    s_mul_i32 s{S_TMP}, s{sLAY}, {3 * QKV_M}
    s_lshl_b32 s{S_TMP + 2}, s{sH}, 13
    s_add_u32 s{S_TMP}, s{S_TMP}, s{S_TMP + 2}
    s_add_u32 s{sTCH}, s{S_TMP}, {WS_QKV + 2 * QKV_M}
    s_lshl_b32 s{S_TMP + 1}, s{W}, 11
    s_add_u32 s{S_TMP}, s{S_TMP}, s{S_TMP + 1}
    s_add_u32 s{sKF}, s{S_TMP}, {WS_QKV + QKV_M}
    s_add_u32 s{sVF}, s{S_TMP}, {WS_QKV + 2 * QKV_M}
    s_mul_i32 s{S_TMP}, s{sLAY}, {NSEG * 32 * KM_UNIT}
    s_lshl_b32 s{S_TMP + 2}, s{sH}, 12
    s_add_u32 s{S_TMP}, s{S_TMP}, s{S_TMP + 2}
    s_add_u32 s{sKM}, s{S_TMP}, {WS_KM}
    s_mul_i32 s{S_TMP}, s{sLAY}, {NSEG * FL_STRIDE}
    s_lshl_b32 s{S_TMP + 2}, s{sH}, 9
    s_add_u32 s{S_TMP}, s{S_TMP}, s{S_TMP + 2}
    s_add_u32 s{sFL}, s{S_TMP}, {WS_FLAGS + FL_QKV}
    s_mov_b32 s{sSTEP}, 0
    """)
    for i in range(4):
        a(f"s_add_u32 s{sPR + i}, s{sU}, {i * 8 * PH}")
    srd(a, SRD_A, KA_MEM0, 9216)
    A_ = f"s[{SRD_A}:{SRD_A + 3}]"
    a(f"""
    s_cmp_gt_u32 s{W}, 2
    s_cbranch_scc1 Lr_mem0_done
    s_mov_b64 exec, s[{sMASK}:{sMASK + 1}]
    buffer_load_dword v{T4}, v{M0}, {A_}, 0 offen
    v_min_u32 v{T4}, s{sMAXD}, v{T4}
    buffer_store_dword v{T4}, v{vRST}, {WS}, s{sMEMZ} offen sc1
    v_mov_b32 v{T4}, -1
    buffer_store_dword v{T4}, v{vRST}, {WS}, s{sMEMW} offen sc1
    s_mov_b64 exec, -1
    Lr_mem0_done:
    v_mov_b32 v64, 0
    v_mov_b32 v65, 0
    v_mov_b32 v66, 0
    v_mov_b32 v67, 0
    v_lshrrev_b32 v{T3}, 2, v{vL16}
    buffer_store_dwordx4 v[64:67], v{vL16}, {WS}, s{sPW} offen sc1
    s_add_u32 s{S_TMP}, s{sPW}, 4096
    buffer_store_dwordx4 v[64:67], v{vL16}, {WS}, s{S_TMP} offen sc1
    buffer_store_dword v64, v{T3}, {WS}, s{sPWC} offen sc1
    """)
    a.force_wait(vm=0)
    a("s_barrier")
    a(f"s_cmp_lg_u32 s{W}, 0")
    a("s_cbranch_scc1 Lr_noadd")
    a(f"s_lshl_b32 s{S_TMP}, s{sLAY}, 2")
    a(f"s_add_u32 s{S_TMP}, s{S_TMP}, {DB_TEAM}")
    dbg_add(a, f"s{S_TMP}", 63, 64)
    a.label("Lr_noadd")
    if W is not None:
        a(f"""
        s_cmp_lt_u32 s{S_WAVE}, 3
        s_cbranch_scc1 Lr_not_w3
        v_lshlrev_b32 v{vRLD}, 3, v{vL16}
        v_lshrrev_b32 v{T3}, 2, v{vL16}
        v_and_b32 v{vRST}, 12, v{T3}
        v_and_b32 v{T3}, 16, v{T3}
        v_lshl_add_u32 v{vRST}, v{T3}, 3, v{vRST}
        Lr_not_w3:
        """)
    gate(a, 1, sLAY, 63, 64, "Lr_abort", "Lr_gate", (sH, 103), vL16)
    if DBGT == 3:
        stamp_max(a, 13, 63, 64, (sLAY, 0))
    loader(a)
    if DBGT == 3:
        stamp_max(a, 9, 63, 64, (sLAY, 0))
    a(f"v_bfe_u32 v{vT0}, v{vL16}, 4, 4")
    a(f"v_mov_b32 v{vT1}, 0x3f80")
    a(f"v_mov_b32 v16, 0x3f800000")
    for d in range(4):
        a(f"v_cmp_eq_u32 vcc, {2 * d}, v{vT0}")
        a(f"v_cmp_eq_u32 s[{sU}:{sU + 1}], {2 * d + 1}, v{vT0}")
        a(f"v_cndmask_b32 v{12 + d}, 0, v{vT1}, vcc")
        a(f"v_cndmask_b32 v{12 + d}, v{12 + d}, v16, s[{sU}:{sU + 1}]")
    a(f"v_add_u32 v{vT0}, {L_SEL}, v{vL16}")
    a(f"ds_write_b128 v{vT0}, v[12:15]")
    a.wait(lg=0)


def loader(a):
    W = S_WAVE
    g0 = 12
    GW, GZ = 16, 17
    RA = 18
    RW, RZ = 22, 23
    TMP = 24
    T3, T4, T5, LANE, I16, GB = 63, 64, 65, 60, 61, 62
    sT, sWO, sLW = sL0, sL0 + 1, sL0 + 2
    SRD_D = 76
    srd(a, SRD_A, KA_WQ, 576 * 8192)
    srd(a, SRD_B, KA_WK, 576 * 8192)
    srd(a, SRD_C, KA_WV, 576 * 8192)
    srd(a, SRD_D, KA_BWO, 4096 * 1152)
    a(f"""
    v_lshrrev_b32 v{LANE}, 4, v{vL16}
    v_and_b32 v{I16}, 15, v{LANE}
    v_lshrrev_b32 v{GB}, 4, v{LANE}
    s_mul_i32 s{sLW}, s{W}, {LW_WAVE}
    s_add_u32 s{sLW}, s{sLW}, {L_LW}
    s_mul_i32 s{sT}, s{W}, {144 * 8192}
    s_lshl_b32 s{S_TMP}, s{sH}, 8
    s_add_u32 s{sT}, s{sT}, s{S_TMP}
    s_mul_i32 s{sWO}, s{sH}, 147456
    s_mul_i32 s{S_TMP}, s{W}, 288
    s_add_u32 s{sWO}, s{sWO}, s{S_TMP}
    """)
    a(f"""
    v_and_b32 v{T3}, 1, v{GB}
    v_lshrrev_b32 v{T4}, 1, v{I16}
    v_xor_b32 v{T4}, v{T4}, v{T3}
    v_lshlrev_b32 v{T4}, 5, v{T4}
    v_and_b32 v{T5}, 1, v{I16}
    v_lshl_add_u32 v{T4}, v{T5}, 4, v{T4}
    v_lshl_add_u32 v{g0}, v{GB}, 13, v{T4}
    """)
    for q in range(1, 4):
        a(f"v_xor_b32 v{g0 + q}, {(2 * (q >> 1) + 4 * (q & 1)) << 5}, v{g0}")
    a(f"""
    v_lshrrev_b32 v{T3}, 2, v{LANE}
    v_mul_u32_u24 v{T3}, 1152, v{T3}
    v_and_b32 v{T4}, 3, v{LANE}
    v_lshl_add_u32 v{GW}, v{T4}, 4, v{T3}
    v_lshrrev_b32 v{T3}, 1, v{LANE}
    v_mul_u32_u24 v{T3}, 1152, v{T3}
    v_and_b32 v{T4}, 1, v{LANE}
    v_lshl_add_u32 v{GZ}, v{T4}, 4, v{T3}
    """)
    R_, C4, GL = 40, 41, 42
    a(f"""
    v_lshrrev_b32 v{R_}, 2, v{I16}
    v_and_b32 v{C4}, 3, v{I16}
    v_and_b32 v{T3}, 1, v{GB}
    v_lshl_add_u32 v{GL}, v{T3}, 2, v{R_}
    v_and_b32 v{T4}, 1, v{R_}
    v_lshl_add_u32 v{T4}, v{T3}, 2, v{T4}
    v_lshrrev_b32 v{T5}, 1, v{R_}
    v_lshl_add_u32 v{T4}, v{T5}, 3, v{T4}
    v_lshlrev_b32 v{T4}, 8, v{T4}
    v_lshl_add_u32 v{T4}, v{C4}, 3, v{T4}
    v_lshrrev_b32 v{T5}, 1, v{GB}
    v_mul_u32_u24 v{T5}, {LW_WAVE}, v{T5}
    v_add_u32 v{T4}, v{T4}, v{T5}
    v_add_u32 v{T4}, {L_LW}, v{T4}
    s_lshl_b32 s{S_TMP}, s{W}, 1
    """)
    for b in range(2):
        a(f"s_add_u32 s{S_TMP + 1}, s{S_TMP}, {b}")
        a(f"v_xor_b32 v{T5}, s{S_TMP + 1}, v{GL}")
        a(f"v_lshl_add_u32 v{RA + 2 * b}, v{T5}, 5, v{T4}")
        a(f"v_add_u32 v{RA + 2 * b + 1}, {2 * LW_WAVE}, v{RA + 2 * b}")
    a(f"""
    v_lshrrev_b32 v{T3}, 1, v{GB}
    v_lshlrev_b32 v{T3}, 3, v{T3}
    v_and_b32 v{T4}, 1, v{GB}
    v_lshl_add_u32 v{T3}, v{T4}, 1, v{T3}
    v_and_b32 v{T4}, 1, v{R_}
    v_lshl_add_u32 v{T3}, v{T4}, 4, v{T3}
    v_lshrrev_b32 v{T4}, 1, v{R_}
    v_lshl_add_u32 v{T3}, v{T4}, 2, v{T3}
    v_lshlrev_b32 v{T4}, 3, v{C4}
    v_lshl_add_u32 v{RW}, v{T3}, 6, v{T4}
    v_add_u32 v{RW}, s{sLW}, v{RW}
    v_lshl_add_u32 v{RZ}, v{T3}, 5, v{T4}
    v_add_u32 v{RZ}, s{sLW}, v{RZ}
    """)
    jobs = [("x", m, t) for t in range(9) for m in "qkv" if (m, t) not in LDS_TILES]
    pos = [i % 8 for i in range(23)]
    jobs += [("x", m, t) for m, t in LDS_TILES]
    pos += [0, 1, 2, 3]
    jobs += [("w", p, ks) for p in range(2) for ks in range(2)]
    pos += [4, 5, 6, 7]
    jobs += [("z", 0)]
    pos += [8]
    jobs += [("w", p, ks) for p in (2, 3) for ks in range(2)]
    pos += [4, 5, 6, 7]
    jobs += [("z", 1)]
    pos += [8]
    n = len(jobs)
    ndma = [2 if j[0] == "z" else 4 for j in jobs]
    issued = []

    def dma(i):
        j = jobs[i]
        a(f"s_add_u32 m0, s{sLW}, {pos[i] * 4096}")
        if j[0] == "x":
            sb = (SRD_A, SRD_B, SRD_C)[MATS.index(j[1])]
            for q in range(4):
                a(f"s_add_u32 s{S_TMP}, s{sT}, {(16 * j[2] + 4 * q) * 8192}")
                a(f"buffer_load_dwordx4 v{g0 + q}, s[{sb}:{sb + 3}], s{S_TMP} offen lds")
                if q < 3:
                    a(f"s_add_u32 m0, m0, 1024")
        elif j[0] == "w":
            for q in range(4):
                a(f"s_add_u32 s{S_TMP}, s{sWO}, {(64 * j[2] + 16 * q) * 1152 + j[1] * 64}")
                a(f"buffer_load_dwordx4 v{GW}, s[{SRD_D}:{SRD_D + 3}], s{S_TMP} offen lds")
                if q < 3:
                    a(f"s_add_u32 m0, m0, 1024")
        else:
            for q in range(2):
                a(f"s_add_u32 s{S_TMP}, s{sWO}, {(64 * j[1] + 32 * q) * 1152 + 256}")
                a(f"buffer_load_dwordx4 v{GZ}, s[{SRD_D}:{SRD_D + 3}], s{S_TMP} offen lds")
                if q < 1:
                    a(f"s_add_u32 m0, m0, 1024")
        issued.append(i)

    def outstanding_after(i):
        k = issued.index(i)
        return sum(ndma[x] for x in issued[k + 1:])

    done = -1

    def issue_more(cur):
        for nx in range(n):
            if nx in issued:
                continue
            prev = [x for x in range(nx) if pos[x] == pos[nx]]
            inplace_prev = False
            if prev and max(prev) > done:
                if jobs[nx] == ("z", 0):
                    pass
                break
            if sum(ndma[x] for x in issued if x > done) + ndma[nx] > 56:
                break
            dma(nx)

    a.auto = False
    z0 = jobs.index(("z", 0))
    for i in range(8):
        dma(i)
    dma(z0)
    for i in range(n):
        j = jobs[i]
        shared = j[0] == "x"
        assert i in issued, (i, issued)
        a(f"s_waitcnt vmcnt({min(63, outstanding_after(i))})")
        if shared:
            a("s_barrier")
            done = i - 1
            issue_more(i)
        if j[0] == "x":
            keys = [(j[1], b, j[2]) for b in range(2)]
            adr = lambda b, X: (RA + 2 * b + (X >> 1), pos[i] * 4096 + (X & 1) * 512)
        elif j[0] == "w":
            keys = [("o", 2 * j[1] + b, j[2]) for b in range(2)]
            adr = lambda b, X: (RW, pos[i] * 4096 + (32 * (X >> 1) + (X & 1)) * 64 + b * 32)
        else:
            keys = [("o", 8, j[1])]
            adr = lambda b, X: (RZ, pos[i] * 4096 + (32 * (X >> 1) + (X & 1)) * 32)
        for b, k in enumerate(keys):
            loc = FM[k]
            for X in range(4):
                ad, off = adr(b, X)
                dst = vr(TMP + 8 * b + 2 * X, 2) if loc[0] == "l" else opnd(loc, 2, 2 * X)
                a(f"ds_read_b64_tr_b16 {dst}, v{ad} offset:{off}")
        a("s_waitcnt lgkmcnt(0)")
        if DBGT == 3 and i == 17:
            stamp_max(a, 14, T3, T4, (sLAY, 0))
        if i == GJOB and GATE:
            a(f"s_add_u32 s{S_TMP}, s{sLAY}, s{W}")
            a(f"s_cmp_lg_u32 s{S_TMP}, 0")
            a("s_cbranch_scc1 Lr_nold")
            dbg_add(a, DB_LOADED, T3, T4)
            a.label("Lr_nold")
        if FM[keys[0]][0] == "l":
            if shared:
                a("s_barrier")
            for b, k in enumerate(keys):
                s = FM[k][1]
                a(f"ds_write_b128 v{vLW}, {vr(TMP + 8 * b, 4)} offset:{s * 2048}")
                a(f"ds_write_b128 v{vLW}, {vr(TMP + 8 * b + 4, 4)} offset:{s * 2048 + 1024}")
            a("s_waitcnt lgkmcnt(0)")
        if not shared:
            done = i
            issue_more(i)
        elif i + 1 < n and jobs[i + 1][0] != "x":
            a("s_barrier")
            done = i
            issue_more(i)
    a.auto = True
    a.vmq, a.lgq = [], []


def flag_wait_kv(a, pfx, soff_extra, abort):
    L = a.newlabel(pfx + "fw")
    a(f"s_mov_b32 s{S_SPIN}, 0")
    a(f"s_add_u32 s{S_TMP}, s{sFL}, {soff_extra + 128}")
    a(f"v_lshrrev_b32 v{vT1}, 2, v{vL16}")
    a(f"v_and_b32 v{vT0}, 16, v{vT1}")
    a(f"v_lshlrev_b32 v{vT0}, 3, v{vT0}")
    a(f"v_and_or_b32 v{vT1}, v{vT1}, 12, v{vT0}")
    a.label(L)
    a(f"buffer_load_dword v{vT0}, v{vT1}, s[{SRD_WS}:{SRD_WS + 3}], s{S_TMP} offen sc1")
    spin_check(a, abort)
    a(f"v_cmp_eq_u32 vcc, 0, v{vT0}")
    a(f"s_cbranch_vccnz {L}")


def r_loop(a, w, fast, abort, done, stamps=0):
    sc = "" if fast else " sc1"
    pfx = f"Lr{w}{'f' if fast else 's'}_"
    WS = f"s[{SRD_WS}:{SRD_WS + 3}]"
    HK = (w == 3)
    NST = 10
    tails = []

    def seq(*items):
        for it in items:
            if isinstance(it, (list, tuple)):
                seq(*it)
            elif callable(it):
                it()
            elif it:
                a(it)

    XS = {"A": 0, 7: 1, 8: 2, "bc": 3, "l1": 4, 9: 5, "red": 6, "mst": 7, "q1": 8, "q2": 9, NST: NST}

    PS = {0: 0, "ba0": 1, "ba": 2, 1: 3, "a2": 4, "pb": 5, "a3": 6, "bb": 7, 3: 8, 4: 9, NST: NST}

    def stamp(i):
        if not stamps:
            return
        if stamps == 5:
            if i in PS:
                i = PS[i]
                a(f"s_memtime s[{S_STAMP + 2 * i}:{S_STAMP + 1 + 2 * i}]" if i < NST else "s_memrealtime s[70:71]")
            return
        if stamps in (3, 4):
            if i == 0:
                i = "A"
            if i not in XS:
                return
            i = XS[i]
            ins = "s_memtime" if stamps == 3 else "s_memrealtime"
            a(f"{ins} s[{S_STAMP + 2 * i}:{S_STAMP + 1 + 2 * i}]" if i < NST else "s_memrealtime s[70:71]")
            return
        if isinstance(i, str):
            return
        if stamps == 2 or i == NST:
            a(f"s_memrealtime s[{S_STAMP + 2 * i}:{S_STAMP + 1 + 2 * i}]" if i < NST else "s_memrealtime s[70:71]")
        else:
            a(f"s_memtime s[{S_STAMP + 2 * i}:{S_STAMP + 1 + 2 * i}]")

    def dump_stamps():
        if stamps:
            a(f"s_and_b32 s{S_TMP}, s{sSTEP}, 7")
            a(f"s_cbranch_scc1 {pfx}nodump")
            a.force_wait(lg=0)
            for i in range(NST):
                a(f"v_writelane_b32 v{vT1}, s{S_STAMP + 2 * i}, {i}")
            a(f"v_writelane_b32 v{vT1}, s70, {NST}")
            a(f"v_writelane_b32 v{vT1}, s72, 11")
            a(f"v_writelane_b32 v{vT1}, s73, 12")
            a(f"s_lshl_b32 s{S_TMP}, s{sLAY}, 5")
            a(f"s_add_u32 s{S_TMP}, s{S_TMP}, s{sH}")
            a(f"s_lshl_b32 s{S_TMP}, s{S_TMP}, 6")
            a(f"s_add_u32 s{S_TMP}, s{S_TMP}, s{sSTEP}")
            a(f"s_lshl_b32 s{S_TMP}, s{S_TMP}, 8")
            a(f"s_add_u32 s{S_TMP}, s{S_TMP}, {WS_END + w * 64}")
            a(f"v_lshrrev_b32 v{vT0}, 2, v{vL16}")
            a(f"s_mov_b64 exec, 0x1fff")
            a(f"buffer_store_dword v{vT1}, v{vT0}, {WS}, s{S_TMP} offen")
            a(f"s_mov_b64 exec, -1")
            a("s_waitcnt vmcnt(0)")
            a.label(pfx + "nodump")

    def zero(base, n):
        return [f"v_mov_b64 {vr(base + 2 * i, 2)}, 0" for i in range(n // 2)]

    ACC = {"q": ACCQ, "k": ACCK, "v": ACCV}
    WR = (WR0, WR1)
    ak = [(w + i) & 3 for i in range(4)]
    bk = [4 + x for x in ak]

    def korder(t):
        if t < 4:
            return [("v", 0), ("q", 0), ("q", 1), ("v", 1), ("k", 0), ("k", 1)]
        return [("q", 0), ("k", 0), ("q", 1), ("k", 1)]
    own = [("q", 0), ("q", 1), ("k", 0), ("v", 0), ("k", 1), ("v", 1)]
    oth = bk[1:]
    lt = [t for t in oth if ("q", t) in LDS_TILES]
    rt_ = [t for t in oth if t not in lt]
    qord = lt[:1] + rt_ + [8] + lt[1:] if len(lt) == 2 else lt + rt_ + [8]
    use = [(m, b, ak[0]) for m, b in own] + [(m, b, t) for t in ak[1:] + bk[:1] for m, b in korder(t)]
    use += [("q", b, t) for t in qord for b in range(2)]
    lq = [k for k in use if FM[k][0] == "l"]
    assert len(lq) == 8 and not any(k in lq for k in use[:3])

    def LW(n):
        return lw_read(WR[n % 2], FM[lq[n]][1]) if n < len(lq) else []

    def S(m, b, t, A):
        k = (m, b, t)
        if FM[k][0] == "l":
            n = lq.index(k)
            return [SM(ACC[m] + 4 * b, A, vr(WR[n % 2], 8))] + LW(n + 2)
        return [SM(ACC[m] + 4 * b, A, opnd(FM[k]))]

    def mem_rd(dst, t):
        return f"ds_read_b128 {vr(dst, 4)}, v{vL16} offset:{L_MEMA + t * 1024}"

    def mem_wr(src, t):
        return f"ds_write_b128 v{vL16}, {vr(src, 4)} offset:{L_MEMA + t * 1024}"

    ldA = f"buffer_load_dwordx4 {vr(FA, 4)}, v{vL16}, {WS}, s{sMA} offen sc1"
    ldB = [f"s_add_u32 s{S_TMP}, s{sMA}, 4096", f"buffer_load_dwordx4 {vr(FB, 4)}, v{vL16}, {WS}, s{S_TMP} offen sc1"]
    ldC = f"buffer_load_dwordx4 {vr(FC, 4)}, v{vL16}, {WS}, s{sMC} offen sc1"

    def chk(q):
        return [f"v_max3_u32 v{vT1}, v{q}, v{q + 1}, v{q + 2}", f"v_max_u32 v{vT1}, v{vT1}, v{q + 3}",
                f"v_cmp_eq_u32 vcc, -1, v{vT1}"]

    def late_poll(name, q, ld, young):
        L = pfx + name
        a.force_wait(vm=young)
        seq(chk(q))
        a(f"s_cbranch_vccnz {L}_re")
        wn = list(a.win)
        sn = a.snap()

        def tail():
            a.label(L + "_re")
            a.win = wn
            a.restore(([], []))
            a(f"s_mov_b32 s{S_SPIN}, 0")
            a.label(L + "_lp")
            seq(ld)
            spin_check(a, abort)
            a.force_wait(vm=0)
            seq(chk(q))
            a(f"s_cbranch_vccnz {L}_lp")
            a(f"s_branch {L}_ok")
        tails.append(tail)
        a.label(L + "_ok")
        a.restore(sn)
        a.vmq = a.vmq[len(a.vmq) - young:] if young else []

    def KX(dst, j, tt):
        return f"ds_read_b128 {vr(dst, 4)}, v{vL16} offset:{L_KX + (j * 2 + tt) * 1024}"

    def FR(dst, j):
        return f"ds_read_b128 {vr(dst, 4)}, v{vQR} offset:{j * 64}"

    def MF(acc, A, B, first):
        return f"v_mfma_f32_16x16x32_bf16 {vr(acc, 4)}, {vr(A, 4)}, {vr(B, 4)}, {'0' if first else vr(acc, 4)}"

    def MF16(acc, A, B, first=False):
        return f"v_mfma_f32_16x16x16_bf16 {vr(acc, 4)}, {vr(A, 2)}, {vr(B, 2)}, {'0' if first else vr(acc, 4)}"

    def xe(acc):
        X, Y = acc, acc + 4
        return [f"v_add_f32 v{X}, v{X}, v{X + 2}", f"v_add_f32 v{Y}, v{Y}, v{Y + 2}",
                f"v_add_f32 v{X + 1}, v{X + 1}, v{X + 3}", f"v_add_f32 v{Y + 1}, v{Y + 1}, v{Y + 3}",
                f"v_cvt_pk_bf16_f32 v{X + 2}, v{X}, v{Y}",
                f"v_cvt_pk_bf16_f32 v{X + 3}, v{X + 1}, v{Y + 1}"]

    def kdma(i):
        return lambda: a(f"buffer_load_dwordx4 v{vL16}, {WS}, s{sKF} offen offset:{1024 * i} lds", tag="kdma")

    def flag_store():
        a(f"v_mov_b32 v{vT0}, 1")
        a(f"v_mov_b32 v{vT1}, 0")
        a(f"s_mov_b64 exec, 1")
        a(f"buffer_store_dword v{vT0}, v{vT1}, {WS}, s{sFLP} offen offset:384 sc1")
        a(f"s_mov_b64 exec, -1")

    def flag_check():
        if w != CKW:
            return
        if True:
            if NBF and TOUCH:
                a(f"s_cmp_eq_u32 s{sFOK}, 1")
                a(f"s_cbranch_scc1 {pfx}flok")
            a(f"v_cmp_eq_u32 vcc, 0, v{vT2}")
            if FAR:
                a(f"s_and_b32 s{S_TMP}, vcc_lo, 0xff00")
                a(f"s_cselect_b32 s{S_TMP + 1}, 0, {32 * 8192}")
                a(f"s_cmp_lt_u32 s{sSTEP}, {NSEG - 2}")
                a(f"s_cselect_b32 s{S_TMP + 1}, s{S_TMP + 1}, 0")
                a(f"v_mov_b32 v{vT0}, {L_FAR}")
                a(f"v_mov_b32 v{vT1}, s{S_TMP + 1}")
                a(f"ds_write_b32 v{vT0}, v{vT1}")
                a(f"s_and_b32 s{S_TMP}, vcc_lo, 0xff")
                a(f"s_cbranch_scc1 {pfx}flbad")
            else:
                a(f"s_cbranch_vccnz {pfx}flbad")
            wn2 = list(a.win)
            sn2 = a.snap()

            def flbad():
                a.label(pfx + "flbad")
                a.win = wn2
                a.restore(([], []))
                a(f"s_cmp_eq_u32 s{sSTEP}, {NSEG - 1}")
                a(f"s_cbranch_scc1 {pfx}flok")
                flag_wait_kv(a, pfx, FL_STRIDE, abort)
                a(f"s_branch {pfx}flok")
            tails.append(flbad)
            a.label(pfx + "flok")
            a.restore(sn2)

    flag_wait_kv(a, pfx, 0, abort)
    if w == FLW:
        a(f"s_lshl_b32 s{sFLP}, s{sLAY}, 5")
        a(f"s_add_u32 s{sFLP}, s{sFLP}, s{sH}")
        a(f"s_lshl_b32 s{sFLP}, s{sFLP}, 12")
        a(f"s_add_u32 s{sFLP}, s{sFLP}, {WS_DUMMY}")
    a(f"s_mov_b32 m0, {L_KX + w * 2048}")
    seq(kdma(0), kdma(1))
    if KD0:
        base = [0, 0, 3, 6][w]
        a(f"s_mov_b32 m0, {L_KX + base * 1024}")
        a(f"s_add_u32 s{sKF}, s{sKF}, {(base * 1024 - w * 2048) & 0xffffffff}")
    a(f"s_add_u32 s{sKF}, s{sKF}, {32 * 8192}")
    a(f"s_add_u32 s{sTCH}, s{sTCH}, {(32 * 8192 - (QKV_M if w == TKW else 0)) & 0xffffffff}")
    a.wait(vm=0)
    seq(LW(0), LW(1), zero(ACCQ, 24))
    seq(ldA)
    a.force_wait(vm=0, lg=0)
    head = pfx + "step"
    a.label(head)
    a.auto = False
    if stamps:
        a("s_mov_b32 s73, 0")
    if PD3:
        if w in (1, 2):
            a.force_wait(vm=3)
            seq(chk(FA))
            a(f"s_cbranch_vccz {pfx}aok")
            seq(ldA)
            nops(a, DQ3[w])
            seq(ldA)
        a(f"s_mov_b32 s{S_SPIN}, 0")
        a.label(pfx + "alp")
        a.force_wait(vm=2)
        seq(chk(FA))
        a(f"s_cbranch_vccz {pfx}aok")
        seq(ldA)
        if stamps:
            a("s_add_u32 s73, s73, 1")
        spin_check(a, abort)
        a(f"s_branch {pfx}alp")
    else:
        a.force_wait(vm=3 if (w in (1, 2) and R2E) else 2)
        seq(chk(FA))
        a(f"s_cbranch_vccz {pfx}aok")
        if w in (1, 2) and R2E:
            if stamps:
                a("s_mov_b32 s73, 1")
            seq(ldA)
            a.force_wait(vm=1)
            seq(chk(FA))
            a(f"s_cbranch_vccz {pfx}aok")
        elif w in (0, 3):
            if stamps:
                a("s_mov_b32 s73, 1")
            a.force_wait(vm=1)
            seq(chk(FA))
            a(f"s_cbranch_vccz {pfx}aok")
        else:
            seq(ldA)
            nops(a, DQ2[w])
        if stamps:
            a("s_mov_b32 s73, 2")
        a(f"s_mov_b32 s{S_SPIN}, 0")
        a.label(pfx + "alp")
        seq(ldA)
        spin_check(a, abort)
        a.force_wait(vm=1)
        seq(chk(FA))
        if stamps:
            a("s_add_u32 s73, s73, 1")
        a(f"s_cbranch_vccnz {pfx}alp")
    a.label(pfx + "aok")
    a.auto = True
    a.vmq = [(frozenset(), "pa")] * 3
    a.lgq = []
    stamp(0)
    def kstep(t, A, extra=()):
        ex = list(extra)
        for m, b in korder(t):
            seq(S(m, b, t, A))
            if ex:
                seq(ex.pop(0))
        seq(ex)
    pre_issued = []
    if BEARLY:
        a.auto = False
        seq(mem_wr(FA, ak[0]), ldB)
        a.auto = True
        a.lgq = [(frozenset(), None)]
        a.vmq[-1] = (frozenset(), "pb")
        pre_issued = ["pb"]
        seq([S(m, b, ak[0], FA) for m, b in own[:3]])
    else:
        seq(mem_wr(FA, ak[0]), [S(m, b, ak[0], FA) for m, b in own[:3]])
    stamp("ba0")
    a.barrier(lg=0)
    stamp("ba")
    seq(mem_rd(R0, ak[1]), mem_rd(R1, ak[2]))
    flg = [f"v_lshrrev_b32 v{vT1}, 2, v{vL16}", f"v_and_b32 v{vT0}, 16, v{vT1}", f"v_lshlrev_b32 v{vT0}, 3, v{vT0}",
           f"v_and_or_b32 v{vT1}, v{vT1}, 12, v{vT0}"]
    if FAR:
        flg += [f"v_bfe_u32 v{vT0}, v{vL16}, 7, 1", f"v_mul_u32_u24 v{vT0}, {FL_STRIDE}, v{vT0}", f"v_add_u32 v{vT1}, v{vT1}, v{vT0}"]
    flg += [f"s_add_u32 s{S_TMP}, s{sFL}, {FL_STRIDE + 128}",
            f"v_mov_b32 v{vT2}, 2", f"buffer_load_dword v{vT2}, v{vT1}, {WS}, s{S_TMP} offen sc1"]
    stream = [(m, b, ak[0], FA) for m, b in own[3:]] + [(m, b, ak[1], R0) for m, b in korder(ak[1])] + \
             [(m, b, ak[2], R1) for m, b in korder(ak[2])]
    at = {}
    if not BEARLY:
        at.setdefault(PB0 + STG * w, []).append(("pb", ldB))
    at.setdefault(PC0 + STG * w, []).append(("pc", [ldC]))
    if w == CKW:
        at.setdefault(max(PB0, PC0) + STG * w + 1, []).append(("flg", flg))
    issued = list(pre_issued)
    for n, (m, b, t, A) in enumerate(stream):
        seq(S(m, b, t, A))
        for tg, ins in at.get(n, []):
            a.auto = False
            seq(ins)
            a.auto = True
            a.vmq[-1] = (frozenset([V0 + vT2]) if (tg == "flg" and not NBF) else frozenset(), tg)
            issued.append(tg)
        if n == 2 + FAD:
            a.force_wait(vm=len(issued))
            a.vmq = a.vmq[len(a.vmq) - len(issued):] if issued else []
            seq(mem_rd(FA, ak[3]))
            stamp(1)
    assert "pb" in issued and "pc" in issued
    nyB = len(issued) - 1 - issued.index("pb")
    stamp("a2")
    nyC = len(issued) - 1 - issued.index("pc")
    if BEARLY:
        late_poll("pb", FB, ldB, nyB)
        stamp("pb")
        a(mem_wr(FB, bk[0]), tag="fbw")
        if w == FLW:
            flag_store()
            nyC += 1
        kstep(ak[3], FA)
        stamp("a3")
    else:
        kstep(ak[3], FA)
        stamp("a3")
        late_poll("pb", FB, ldB, nyB)
        stamp("pb")
        a(mem_wr(FB, bk[0]), tag="fbw")
        if w == FLW:
            flag_store()
            nyC += 1
        kstep(bk[0], FB)
    yl = [t for _, t in a.lgq]
    a.barrier(lg=len(yl) - 1 - yl.index("fbw") if "fbw" in yl else None)
    stamp("bb")
    o3 = [t for t in qord if t != 8]
    FR_ = {bk[0]: FB, o3[0]: R0, o3[1]: R1, o3[2]: FA, 8: FC}
    seq([mem_rd(FR_[t], t) for t in o3])
    if BEARLY:
        kstep(bk[0], FB)
    seq(S("v", 0, bk[0], FB), S("v", 1, bk[0], FB))
    stamp(2)
    VXA, VXB = WR1, WR1 + 4
    ldV = [f"buffer_load_dwordx4 {vr(VXA, 4)}, v{vL16}, {WS}, s{sVF} offen",
           f"buffer_load_dwordx4 {vr(VXB, 4)}, v{vL16}, {WS}, s{sVF} offen offset:1024"]
    for t in qord:
        if t == 8:
            late_poll("pc", FC, ldC, nyC)
        seq(S("q", 0, t, FR_[t]), S("q", 1, t, FR_[t]))
    qe, ke = xe(ACCQ), xe(ACCK)
    kord = o3 + [8]
    fl = [None, None] + qe[:4] + [[qe[4], KX(WR0, 0, 0)], [qe[5], KX(WR0 + 4, 0, 1)]]
    nv = 0
    for i in range(VEARLY):
        fl[(w + 4 * i) % 8 if VEARLY > 1 else w] = [fl[(w + 4 * i) % 8 if VEARLY > 1 else w], ldV[i]]
        nv += 1
    for i, (t, b) in enumerate([(t, b) for t in kord for b in range(2)]):
        seq(S("k", b, t, FR_[t]), fl[i])
    stamp(3)
    dv = [t for t in o3] + [8]
    seq(f"ds_write_b32 v{vQW}, v{ACCQ + 2} offset:{2 * ROWS}", f"ds_write_b32 v{vQW}, v{ACCQ + 3} offset:{3 * ROWS}",
        S("v", 0, dv[0], FR_[dv[0]]), S("v", 1, dv[0], FR_[dv[0]]),
        ke,
        f"ds_write_b32 v{vQW}, v{ACCK + 2} offset:0", f"ds_write_b32 v{vQW}, v{ACCK + 3} offset:{ROWS}",
        S("v", 0, dv[1], FR_[dv[1]]), S("v", 1, dv[1], FR_[dv[1]]))
    seq(ldV[nv:])
    if not NBF:
        flag_check()
    a.barrier(lg=0)
    stamp(4)
    SX0, SX1, SMm = ACCQ, ACCQ + 4, ACCK + 4
    F0, F1, F2, F3 = FB, R0, ACCK, R1
    KA, KB = FA, FC
    ve = [f"v_add_f32 v{ACCV}, v{ACCV}, v{ACCV + 2}", f"v_add_f32 v{ACCV + 4}, v{ACCV + 4}, v{ACCV + 6}",
          f"v_add_f32 v{ACCV + 1}, v{ACCV + 1}, v{ACCV + 3}", f"v_add_f32 v{ACCV + 5}, v{ACCV + 5}, v{ACCV + 7}",
          f"v_cvt_pk_bf16_f32 v{ACCV + 2}, v{ACCV}, v{ACCV + 1}",
          f"v_cvt_pk_bf16_f32 v{ACCV + 3}, v{ACCV + 4}, v{ACCV + 5}"]
    def touch():
        if TOUCH and not NBF and w in (TKW, TCW):
            if FAR:
                a(f"v_readfirstlane_b32 s{S_TMP}, v{vT1}")
                a(f"s_add_u32 s{S_TMP}, s{S_TMP}, s{sTCH}")
            a.auto = False
            a(f"v_lshlrev_b32 v{vT0}, 3, v{vL16}")
            a(f"buffer_load_dword v{vT2}, v{vT0}, {WS}, s{S_TMP if FAR else sTCH} offen")
            a.auto = True
        if TOUCH and NBF and w == CKW:
            a.auto = False
            a(f"v_cmp_eq_u32 vcc, 1, v{vT2}")
            a(f"v_lshlrev_b32 v{vT0}, 3, v{vL16}")
            a(f"s_cmp_eq_u64 vcc, -1")
            a(f"s_cselect_b32 s{sFOK}, 1, 0")
            a(f"s_cselect_b64 exec, -1, 0")
            a(f"buffer_load_dword v{vT2}, v{vT0}, {WS}, s{sTCH} offen")
            a(f"s_sub_u32 s{S_TMP}, s{sTCH}, {QKV_M}")
            a(f"buffer_load_dword v{vT2}, v{vT0}, {WS}, s{S_TMP} offen")
            a(f"s_mov_b64 exec, -1")
            a.auto = True
    post = [[S("v", 0, dv[2], FA)], [S("v", 1, dv[2], FA), KX(KA, 1, 0)], [S("v", 0, 8, FC)], [S("v", 1, 8, FC), KX(KB, 1, 1)]]
    post[TPOS].append(touch)
    farrd = []
    if FAR and TOUCH and w in (TKW, TCW):
        farrd = [f"v_mov_b32 v{vT0}, {L_FAR}", f"ds_read_b32 v{vT1}, v{vT0}"]
    seq(FR(F0, 0), FR(F1, 1), FR(F2, 2), FR(F3, 3), farrd, post)
    PK = ACCV + 6
    seq(MF(SX0, WR0, F0, True), MF(SX1, WR0 + 4, F0, True), MF(SMm, F0, F0, True),
        KX(WR0, 2, 0), KX(WR0 + 4, 2, 1),
        MF(SX0, KA, F1, False), f"v_lshrrev_b32 v{vT1}, 1, v{vL16}", f"v_lshrrev_b32 v{vT0}, 9, v{vL16}",
        MF(SX1, KB, F1, False), f"v_lshl_add_u32 v{vT0}, v{vT0}, 5, v{vT1}", ve[0],
        MF(SMm, F1, F1, False), ve[1], ve[2],
        KX(KA, 3, 0), KX(KB, 3, 1),
        MF(SX0, WR0, F2, False), ve[3], ve[4],
        MF(SX1, WR0 + 4, F2, False), ve[5],
        f"ds_read_b64 {vr(PK, 2)}, v{vT0} offset:{L_F + 4 * w * ROWS}",
        MF(SMm, F2, F2, False),
        f"s_add_u32 s{S_TMP}, s{sKM}, {2048 + w * 512}",
        f"buffer_store_dwordx2 {vr(ACCV + 2, 2)}, v{vT1}, {WS}, s{S_TMP} offen sc1",
        MF(SX0, KA, F3, False), MF(SX1, KB, F3, False), MF(SMm, F3, F3, False),
        f"s_add_u32 s{S_TMP}, s{sKM}, {w * 512}",
        f"buffer_store_dwordx2 {vr(PK, 2)}, v{vT1}, {WS}, s{S_TMP} offen sc1")
    stamp(5)
    last = pfx + "last"
    seq(f"s_cmp_eq_u32 s{sSTEP}, {NSEG - 1}", f"s_cbranch_scc1 {last}")
    MX, T1 = vT0, vT1
    MP = ACCV
    P4, PB, OX, OY, LQ, ONES = Q[0], Q[1], Q[2], Q[3], Q[4], ACCK
    lds_seq = [("o", 4, 0), ("o", 4, 1), ("o", 5, 0), ("o", 5, 1), ("o", 6, 0), ("o", 6, 1), ("o", 7, 0), ("o", 7, 1), ("o", 8, 1)]
    early = (w == 0 and PAPOS >= 0)
    ring = [WR0, WR1] if early else [WR0, WR1, ACCQ, ACCK]
    bufof = {k: ring[i % len(ring)] for i, k in enumerate(lds_seq)}

    def wo_rd(i):
        return lw_read(bufof[lds_seq[i]], FM[lds_seq[i]][1])

    vals = list(range(SX0, SX0 + 8)) + [SMm, SMm + 1]
    fm = [f"v_fma_f32 v{r}, v{r}, s{sCEXP}, -v{MP}" for r in vals]
    ex = [f"v_exp_f32 v{r}, v{r}" for r in vals]
    X5 = ACCV + 4
    seq(wo_rd(0),
        f"v_mov_b64 {vr(ONES, 2)}, s[{sONES}:{sONES + 1}]", f"v_mov_b64 {vr(ONES + 2, 2)}, s[{sONES}:{sONES + 1}]",
        f"v_mov_b32 v{PB + 1}, 0", f"v_mov_b32 v{PB + 2}, 0",
        f"v_max3_f32 v{MX}, v{SX0}, v{SX0 + 1}, v{SX0 + 2}",
        f"v_max3_f32 v{MX}, v{MX}, v{SX0 + 3}, v{SX0 + 4}",
        f"v_max3_f32 v{MX}, v{MX}, v{SX0 + 5}, v{SX0 + 6}",
        f"v_max3_f32 v{MX}, v{MX}, v{SX0 + 7}, v{SMm}",
        f"v_max_f32 v{MX}, v{MX}, v{SMm + 1}",
        f"v_mov_b32 v{T1}, v{MX}",
        zero(X5, 4),
        f"v_permlane32_swap_b32 v{MX}, v{T1}",
        f"v_max_f32 v{MX}, v{MX}, v{T1}",
        f"v_mov_b32 v{T1}, v{MX}",
        "s_nop 1",
        f"v_permlane16_swap_b32 v{MX}, v{T1}",
        f"v_max_f32 v{MX}, v{MX}, v{T1}",
        f"v_mul_f32 v{MP}, s{sCEXP}, v{MX}",
        fm[0], fm[1], fm[2], fm[3], ex[0], ex[1], fm[4], fm[5], ex[2], ex[3],
        f"v_cvt_pk_bf16_f32 v{P4}, v{SX0}, v{SX0 + 1}", fm[6], fm[7], ex[4], ex[5],
        f"v_cvt_pk_bf16_f32 v{P4 + 1}, v{SX0 + 2}, v{SX0 + 3}", fm[8], fm[9], ex[6], ex[7],
        f"v_cvt_pk_bf16_f32 v{P4 + 2}, v{SX0 + 4}, v{SX0 + 5}", ex[8], ex[9],
        f"v_cvt_pk_bf16_f32 v{P4 + 3}, v{SX0 + 6}, v{SX0 + 7}",
        f"v_cvt_pk_bf16_f32 v{PB}, v{SMm}, v{SMm + 1}",
        f"v_cvt_pk_bf16_f32 v{PB + 3}, v{SMm}, v{SMm + 1}",
        MF(LQ, ONES, P4, True), zero(SX0, 2), zero(SX0 + 2, 2),
        MF(OX, VXA, P4, True), zero(SMm, 2), zero(SMm + 2, 2),
        MF(OY, VXB, P4, True), wo_rd(1),
        MF16(LQ, ONES, PB),
        MF16(OX, ACCV + 2, PB), zero(ONES, 4),
        MF16(OY, ACCV + 2, PB + 2), zero(P4, 4), zero(Q[1], 4),
        f"v_rcp_f32 v{MX}, v{LQ}", zero(Q[4], 4))
    stamp(6)
    OP = ACCQ + 4
    for i in range(4):
        a(f"v_mul_f32 v{OX + i}, v{MX}, v{OX + i}")
        a(f"v_mul_f32 v{OY + i}, v{MX}, v{OY + i}")
        a(f"v_cvt_pk_bf16_f32 v{OP + i}, v{OX + i}, v{OY + i}")
    a(f"ds_write_b128 v{vOW}, {vr(OP, 4)}")
    seq(zero(ACCV, 4))
    if NBF:
        flag_check()
    TA = [ACCQ, ACCK + 4, ACCK, ACCQ + 4, Q[0], Q[1], Q[4], ACCV + 4, ACCV]
    a.barrier(lg=0)
    OA0, OA1 = Q[2], Q[3]
    a(f"ds_read_b128 {vr(OA0, 4)}, v{vOR} offset:0")
    a(f"ds_read_b128 {vr(OA1, 4)}, v{vOR} offset:128")
    seq(zero(ACCQ + 4, 4))
    nkd = ([0, 3, 3, 2] if KD0 else [2, 2, 2, 2])[w]
    kd = [kdma(i) for i in range(nkd)]
    if not KPOS:
        seq(kd)
        kd = []

    stamp(7)
    ST = {0: TA[0], 1: TA[4], 2: TA[8]}

    def epi(tau):
        acc = TA[tau]
        dst = ST[tau // 4] + tau % 4
        return [f"v_add_f32 v{acc}, v{acc}, v{acc + 2}", f"v_add_f32 v{acc + 1}, v{acc + 1}, v{acc + 3}",
                f"v_cvt_pk_bf16_f32 v{dst}, v{acc}, v{acc + 1}"]

    def wS(tau, ks):
        k = ("o", tau, ks)
        B = vr(bufof[k], 8) if FM[k][0] == "l" else opnd(FM[k])
        return SM(TA[tau], (OA0, OA1)[ks], B)

    def tag(r):
        return f"v_and_or_b32 v{r}, v{r}, -2, s{sPH}"
    e = [epi(t) for t in range(4)]
    seq(wS(0, 0), wS(0, 1), wS(1, 0), wS(1, 1), e[0][0], wS(2, 0), e[0][1], wS(2, 1), e[0][2], wS(3, 0), e[1][0], wS(3, 1), e[1][1],
        wS(4, 0), e[1][2], wS(4, 1), e[2], e[3], tag(ST[0] + 3),
        f"buffer_store_dwordx4 {vr(ST[0], 4)}, v{vL16}, {WS}, s{sPW} offen{sc}")
    stamp(8)
    nxt = 2 + len(ring)
    seq([wo_rd(i) for i in range(2, nxt)])
    order = [(tau, ks) for tau in range(5, 9) for ks in range(2)]
    LA = [ACCQ, ACCQ + 4, ACCK, ACCK + 4]
    ldLA = [f"buffer_load_dwordx4 {vr(LA[i], 4)}, v{vRLD}, {WS}, s{sPR + i} offen sc1" for i in range(4)]
    for idx, (tau, ks) in enumerate(order):
        if early and idx == PAPOS:
            a.auto = False
            nops(a, DP1[0])
            seq(ldLA)
            stamp("l1")
            a.auto = True
        a(wS(tau, ks))
        k = ("o", tau, ks)
        if FM[k][0] == "l" and nxt < len(lds_seq):
            seq(wo_rd(nxt))
            nxt += 1
    stamp("bc")
    epiB = [epi(tau) for tau in range(4, 8)] + [tag(ST[1] + 3), f"s_add_u32 s{S_TMP}, s{sPW}, 4096",
                                                f"buffer_store_dwordx4 {vr(ST[1], 4)}, v{vL16}, {WS}, s{S_TMP} offen{sc}"]
    epiC = [epi(8), tag(ST[2]), f"v_lshrrev_b32 v{vT0}, 2, v{vL16}",
            f"buffer_store_dword v{ST[2]}, v{vT0}, {WS}, s{sPWC} offen{sc}"] + kd
    nkl = len(kd)
    adv = [f"s_xor_b32 s{r}, s{r}, {MEMB_SLOT}" for r in (sMA, sMC)]
    advE = [f"s_add_u32 s{sSTEP}, s{sSTEP}, 1", f"s_add_u32 s{sVF}, s{sVF}, {32 * 8192}",
            f"s_add_u32 s{sKF}, s{sKF}, {32 * 8192}", f"s_add_u32 s{sKM}, s{sKM}, {32 * KM_UNIT}"]
    if w == FLW:
        advE += [f"s_mov_b32 s{sFLP}, s{sFL}"]
    advE += [f"s_add_u32 s{sTCH}, s{sTCH}, {32 * 8192}"]
    advE += [f"s_add_u32 s{sFL}, s{sFL}, {FL_STRIDE}"]
    advL = [f"s_xor_b32 s{sPH}, s{sPH}, 1"] + [f"s_xor_b32 s{r}, s{r}, {MEMB_SLOT}" for r in ([] if HK else [sMEMW, sMEMZ])]
    if not HK:
        u = w
        LB = [Q[1], Q[2], Q[3], Q[4]]
        SEL, D = Q[7], Q[8]
        wide = u < 2

        def loads(L):
            if wide:
                return [f"buffer_load_dwordx4 {vr(L[i], 4)}, v{vRLD}, {WS}, s{sPR + i} offen sc1" for i in range(4)]
            return [f"buffer_load_dword v{L[i]}, v{vRLD}, {WS}, s{sPR + i} offen sc1" for i in range(4)]

        def M(i):
            return f"s[{sM + 2 * i}:{sM + 2 * i + 1}]"

        def check(L, extra):
            for i in range(4):
                a.force_wait(vm=3 - i + extra)
                a(MF(D, L[i], SEL, i == 0) if wide else MF16(D, L[i], SEL, i == 0))
                a(f"v_and_b32 v{vT1}, 1, v{L[i] + (3 if wide else 0)}")
                a(f"v_cmp_ne_u32 {M(i)}, s{sPH}, v{vT1}")
                if i == 2:
                    a(f"s_or_b64 {M(0)}, {M(0)}, {M(1)}") if False else None
            a(f"s_or_b64 vcc, {M(0)}, {M(1)}")
            a(f"s_or_b64 vcc, vcc, {M(2)}")
            a(f"s_or_b64 vcc, vcc, {M(3)}")

        def sel_build(L):
            a(f"v_add_u32 v{vT1}, {L_SEL}, v{vL16}")
            if wide:
                a(f"ds_read_b128 {vr(SEL, 4)}, v{vT1}")
            else:
                a(f"ds_read_b32 v{SEL}, v{vT1}")
                a(f"v_mov_b32 v{SEL + 1}, 0")
                for i in range(4):
                    a(f"v_mov_b32 v{L[i] + 1}, 0")
        if u == 0 and early:
            seq(epiB, epiC)
            a.auto = False
            y = 2 + nkl
        if u == 0:
            if not early:
                seq(epiB, epiC) if DP1[0] else None
                a.auto = False
                nops(a, DP1[0])
                seq(loads(LA))
                stamp("l1")
                y = 0
                if not DP1[0]:
                    a.auto = True
                    seq(epiB, epiC)
                    a.auto = False
                    y = 2 + nkl
            sel_build(None)
            nops(a, DP2)
            seq(loads(LB))
            seq(advE, LW(0))
            a("s_waitcnt lgkmcnt(2)")
            stamp(9)
            if stamps:
                a("s_mov_b32 s72, 0")
            check(LA, 4 + y)
            a(f"s_cbranch_scc0 {pfx}red")
            a(f"s_mov_b32 s{S_SPIN}, 0")
            a.label(pfx + "p1")
            if stamps:
                a("s_add_u32 s72, s72, 1")
            seq(loads(LA))
            check(LB, 4)
            a(f"s_cbranch_scc0 {pfx}red")
            if stamps:
                a("s_add_u32 s72, s72, 1")
            seq(loads(LB))
            spin_check(a, abort)
            check(LA, 4)
            a(f"s_cbranch_scc1 {pfx}p1")
        else:
            seq(epiB, epiC)
            a.auto = False
            sel_build(LB)
            seq(advE, LW(0), zero(ACCQ, 24))
            nops(a, DP1[u])
            seq(loads(LB))
            stamp("l1")
            a("s_waitcnt lgkmcnt(0)")
            stamp(9)
            if stamps:
                a("s_mov_b32 s72, 0")
            check(LB, 0)
            a(f"s_cbranch_scc0 {pfx}red")
            a(f"s_mov_b32 s{S_SPIN}, 0")
            a.label(pfx + "p1")
            if stamps:
                a("s_add_u32 s72, s72, 1")
            for i in range(4):
                a(f"s_mov_b64 exec, {M(i)}")
                a(loads(LB)[i])
            a("s_mov_b64 exec, -1")
            spin_check(a, abort)
            check(LB, 0)
            a(f"s_cbranch_scc1 {pfx}p1")
        a.label(pfx + "red")
        stamp("red")
        if u > 0:
            seq(adv, ldA)
        a.auto = True
        a.vmq, a.lgq = [], []
        seq(f"v_permlane16_swap_b32 v{D}, v{D + 2}", f"v_permlane16_swap_b32 v{D + 1}, v{D + 3}",
            f"s_mov_b64 exec, s[{sMASK}:{sMASK + 1}]",
            f"v_add_f32 v{D}, v{D}, v{D + 2}", f"v_add_f32 v{D + 1}, v{D + 1}, v{D + 3}",
            f"v_cvt_pk_bf16_f32 v{D}, v{D}, v{D + 1}", f"v_min_u32 v{D}, s{sMAXD}, v{D}",
            f"buffer_store_dword v{D}, v{vRST}, {WS}, s{sMEMW} offen{sc}",
            f"v_mov_b32 v{D + 1}, -1",
            f"buffer_store_dword v{D + 1}, v{vRST}, {WS}, s{sMEMZ} offen{sc}",
            f"s_mov_b64 exec, -1")
        stamp("mst")
        a.auto = False
        if u == 0:
            seq(adv, advL)
            nops(a, DQ1[0])
            seq(ldA)
            stamp("q1")
            a("s_waitcnt vmcnt(3)")
            seq(LW(1), zero(ACCQ, 24))
            nops(a, DQ2[w])
            seq(ldA)
            stamp("q2")
            nops(a, DQ3[w])
            seq(ldA)
        else:
            if R2E:
                seq(ldA)
            seq(advL, LW(1))
    else:
        seq(epiB, epiC)
        a.auto = False
        seq(adv, advE, advL)
        trace(a, vT0, vT1, True)
        if DBGT:
            a(f"s_mul_i32 s{S_TMP + 1}, s{sLAY}, {16 if DBGT != 3 else 24}")
            a(f"s_add_u32 s{S_TMP + 1}, s{S_TMP + 1}, 20")
            stamp_max(a, f"s{S_TMP + 1}", vT0, vT1, (sSTEP, 1))
            a(f"s_mul_i32 s{S_TMP + 1}, s{sLAY}, 20")
            a(f"s_add_u32 s{S_TMP + 1}, s{S_TMP + 1}, 24")
            stamp_max(a, f"s{S_TMP + 1}", vT0, vT1, (sSTEP, 63))
        seq(LW(0), LW(1), zero(ACCQ, 24))
        if HKSL:
            a(f"s_sleep {HKSL}")
        nops(a, DQ1[w])
        seq(ldA)
        stamp("q1")
        nops(a, DQ2[w])
        seq(ldA)
        stamp("q2")
        nops(a, DQ3[w])
        seq(ldA)
    a("s_waitcnt lgkmcnt(0)")
    stamp(NST)
    dump_stamps()
    a.auto = True
    a.restore(([], []))
    a(f"s_branch {head}")
    for t in tails:
        t()
    a.restore(([], []))
    a.label(last)
    a.force_wait(vm=0, lg=0)
    a.I("s_barrier")
    if w != FLW:
        a(f"s_branch {done}")
    else:
        a(f"s_mov_b32 s{sFLP}, s{sFL}")
        flag_store()
        a(f"s_branch {done}")
```

```python
import sys, os
from common import *
if os.environ.get('RV', '2') == '2':
    import role_r2 as R
else:
    import role_r as R
import pool, role_t

MAIN = KNAME + "_kernel"
PRE = int(os.environ.get("PRE", "3"))
WARM = int(os.environ.get("WARM", "1"))
FREERUN = int(os.environ.get("FREERUN", "0"))
INIT = "init_kernel"
TA3 = os.environ.get("TA3", "1") == "1"
if TA3:
    ROLE_MAP = {2: [("W", 24), ("P", 8)], 3: [("W", 12), ("P", 20)], 4: [("A", 16), ("O", 3), ("P", 13)],
                5: [("A", 16), ("O", 3), ("P", 13)], 6: [("T", 11), ("P", 21)], 7: [("T", 11), ("P", 21)]}
else:
    ROLE_MAP = {2: [("W", 24), ("P", 8)], 3: [("W", 12), ("P", 20)], 4: [("A", 16), ("O", 5), ("P", 11)],
                5: [("A", 16), ("O", 5), ("P", 11)], 6: [("T", 8), ("P", 23)], 7: [("T", 8), ("P", 23)]}


def kd(name, vgpr, acc, sgpr=102):
    return f""".p2align 6
.amdhsa_kernel {name}
  .amdhsa_next_free_vgpr {vgpr}
  .amdhsa_next_free_sgpr {sgpr}
  .amdhsa_accum_offset {acc}
  .amdhsa_group_segment_fixed_size 0
  .amdhsa_kernarg_size 104
  .amdhsa_user_sgpr_count 2
  .amdhsa_user_sgpr_kernarg_segment_ptr 1
  .amdhsa_system_sgpr_workgroup_id_x 1
.end_amdhsa_kernel
"""


def pool_init(a):
    WS = f"s[{SRD_WS}:{SRD_WS + 3}]"
    Q_ = 6
    ZPAIR = 6 if pool.AO3 else 9
    ZP = 6 if pool.AO3 else 9
    if WARM:
        srd(a, SRD_A, KA_WQKV, 576 * 3456)
        srd(a, SRD_B, KA_WO, 576 * 1152)
        a(f"s_sub_u32 s41, 191, s{Q_}")
        a(f"s_lshl_b32 s41, s41, 15")
        a(f"v_lshlrev_b32 v254, 7, v0")
        a(f"buffer_load_dword v255, v254, s[{SRD_A}:{SRD_A + 3}], s41 offen")
        a(f"s_sub_u32 s41, s41, {61 * 32768}")
        a(f"s_cmp_lt_u32 s41, {21 * 32768}")
        a(f"s_cselect_b32 s41, s41, 0x7f000000")
        a(f"buffer_load_dword v255, v254, s[{SRD_B}:{SRD_B + 3}], s41 offen")
        if WARM & 2:
            for ka in (KA_WQ, KA_WK, KA_WV, KA_BWO):
                srd(a, SRD_A, ka, 576 * 8192)
                a(f"s_mul_i32 s41, s{Q_}, {192 * 128}")
                a("s_mov_b64 exec, s[42:43]") if False else None
                a(f"v_cmp_gt_u32 vcc, 192, v0")
                a(f"v_cndmask_b32 v253, v252, v254, vcc") if False else None
                a(f"buffer_load_dword v255, v254, s[{SRD_A}:{SRD_A + 3}], s41 offen")
        a.vmq = []
    a(f"s_cmp_ge_u32 s{Q_}, {N_POOL}")
    a("s_cbranch_scc1 Li_end")
    a(f"""
    v_lshlrev_b32 v7, 4, v0
    v_mov_b32 v12, 0
    v_mov_b32 v13, 0
    v_mov_b32 v14, 0
    v_mov_b32 v15, 0
    s_cmp_ge_u32 s{Q_}, 64
    s_cbranch_scc1 Li_rest
    """)
    srd(a, SRD_A, KA_X, 2048 * 1152)
    a(f"""
    v_and_b32 v1, 31, v0
    v_lshrrev_b32 v2, 5, v0
    v_mul_u32_u24 v3, 1152, v1
    v_mul_u32_u24 v5, 144, v2
    v_add_u32 v3, v3, v5
    s_mul_i32 s41, s{Q_}, {32 * 1152}
    """)
    for i in range(9):
        a(f"buffer_load_dwordx4 {vr(64 + 4 * i, 4)}, v3, s[{SRD_A}:{SRD_A + 3}], s41 offen offset:{16 * i}")
    a(f"""
    v_mul_u32_u24 v4, {9 * 512}, v2
    v_lshl_add_u32 v4, v1, 4, v4
    s_mul_i32 s41, s{Q_}, {X_SEG}
    s_add_u32 s41, s41, {WS_X}
    s_mul_i32 s42, s{Q_}, {ST_SEG}
    s_add_u32 s42, s42, {WS_ST}
    s_add_u32 s43, s42, 2048
    s_add_u32 s44, s42, {ST_BYTES + ZP * 512}
    v_mov_b32 v60, 0
    v_mov_b32 v61, 0
    """)
    for i in range(9):
        if i == 8:
            a("v_add_u32 v4, 4096, v4")
        a(f"buffer_store_dwordx4 {vr(64 + 4 * i, 4)}, v4, {WS}, s41 offen offset:{512 * (i % 8)} sc1")
    a(f"buffer_store_dwordx4 v[12:15], v7, {WS}, s43 offen sc1")
    if PRE:
        a(f"s_mul_i32 s45, s{Q_}, {X_SEG}")
        a(f"s_add_u32 s45, s45, {WS_OA}")
        for i in range(9):
            a(f"buffer_store_dwordx4 v[12:15], v7, {WS}, s45 offen sc1")
            a(f"s_add_u32 s45, s45, 4096") if i < 8 else None
        a(f"s_sub_u32 s45, s44, {ZPAIR * 512}")
        a(f"v_cmp_gt_u32 vcc, {ZPAIR * 32}, v0")
        a("s_and_saveexec_b64 s[46:47], vcc")
        a("s_cbranch_execz Li_z0")
        a(f"buffer_store_dwordx4 v[12:15], v7, {WS}, s45 offen sc1")
        a.label("Li_z0")
        a("s_mov_b64 exec, s[46:47]")
    a(f"v_cmp_gt_u32 vcc, {(12 - ZP) * 32}, v0")
    a("s_and_saveexec_b64 s[46:47], vcc")
    a("s_cbranch_execz Li_z1")
    a(f"buffer_store_dwordx4 v[12:15], v7, {WS}, s44 offen sc1")
    a.label("Li_z1")
    a("s_mov_b64 exec, s[46:47]")
    a("v_mov_b32 v62, 0x3f803f80")
    for r in range(64, 100):
        a(f"v_dot2c_f32_bf16 v60, v{r}, v62")
        a(f"v_dot2c_f32_bf16 v61, v{r}, v{r}")
    a.nop(4)
    a(f"""
    v_lshrrev_b32 v5, 1, v2
    v_lshlrev_b32 v5, 9, v5
    v_lshl_add_u32 v5, v1, 4, v5
    v_and_b32 v6, 1, v2
    v_lshl_add_u32 v5, v6, 3, v5
    buffer_store_dwordx2 v[60:61], v5, {WS}, s42 offen sc1
    s_branch Li_flags
    Li_rest:
    """)
    a.restore(([], []))
    a(f"""
    s_cmp_ge_u32 s{Q_}, 128
    s_cbranch_scc1 Li_flags
    s_sub_u32 s41, s{Q_}, 64
    s_mul_i32 s41, s41, {ST_SEG}
    s_add_u32 s41, s41, {WS_ST + 3 * ST_BYTES + ZP * 512}
    v_cmp_gt_u32 vcc, {(12 - ZP) * 32}, v0
    s_and_saveexec_b64 s[42:43], vcc
    s_cbranch_execz Li_rest2
    buffer_store_dwordx4 v[12:15], v7, {WS}, s41 offen sc1
    Li_rest2:
    s_mov_b64 exec, s[42:43]
    """)
    if PRE:
        srd(a, SRD_A, KA_OUT, 2048 * 1152)
        a(f"s_sub_u32 s44, s{Q_}, 64")
        a(f"s_mul_i32 s45, s44, {X_SEG}")
        a(f"s_add_u32 s46, s45, {WS_OA + X_BYTES}")
        for i in range(9):
            a(f"buffer_store_dwordx4 v[12:15], v7, {WS}, s46 offen sc1")
            if PRE & 2:
                a(f"buffer_store_dwordx4 v[12:15], v7, s[{SRD_A}:{SRD_A + 3}], s45 offen sc1")
            if i < 8:
                a(f"s_add_u32 s46, s46, 4096")
                a(f"s_add_u32 s45, s45, 4096")
        a(f"s_mul_i32 s45, s44, {ST_SEG}")
        a(f"s_add_u32 s45, s45, {WS_ST + 2 * ST_BYTES}")
        a(f"buffer_store_dwordx4 v[12:15], v7, {WS}, s45 offen sc1")
        a(f"s_add_u32 s46, s45, 4096")
        a(f"s_add_u32 s45, s45, {ST_BYTES}")
        a(f"buffer_store_dwordx4 v[12:15], v7, {WS}, s45 offen sc1")
        a("v_cmp_gt_u32 vcc, 128, v0")
        a("s_and_saveexec_b64 s[42:43], vcc")
        a("s_cbranch_execz Li_rest3")
        a(f"buffer_store_dwordx4 v[12:15], v7, {WS}, s46 offen sc1")
        a.label("Li_rest3")
        a("s_mov_b64 exec, s[42:43]")
    a(f"""
    Li_flags:
    """)
    a.restore(([], []))
    a(f"""
    v_cmp_gt_u32 vcc, 96, v0
    s_cmp_lt_u32 s{Q_}, 64
    s_cselect_b64 s[42:43], -1, 0
    s_and_b64 vcc, vcc, s[42:43]
    s_cmp_lt_u32 s{Q_}, 128
    s_cselect_b32 s44, {FREERUN}, 0
    v_mov_b32 v12, s44
    v_mov_b32 v13, s44
    v_mov_b32 v14, s44
    v_mov_b32 v15, s44
    v_mov_b32 v9, 1
    v_cndmask_b32 v8, v12, v9, vcc
    v_mov_b32 v9, v8
    v_mov_b32 v10, v8
    v_mov_b32 v11, v8
    s_mul_i32 s41, s{Q_}, {FL_STRIDE}
    s_sub_u32 s42, s{Q_}, 128
    s_lshl_b32 s42, s42, 12
    s_add_u32 s42, s42, {WS_ZERO}
    s_cmp_ge_u32 s{Q_}, 128
    s_cselect_b32 s41, s42, s41
    buffer_store_dwordx4 v[8:11], v7, {WS}, s41 offen sc1
    s_cbranch_scc1 Li_nofl
    """)
    for i in range(1, 6):
        a(f"s_add_u32 s41, s41, 4096")
        if i == 5:
            a("v_cmp_gt_u32 vcc, 128, v0")
            a("s_and_saveexec_b64 s[42:43], vcc")
            a("s_cbranch_execz Li_fl5")
        a(f"buffer_store_dwordx4 v[12:15], v7, {WS}, s41 offen sc1")
    a("Li_fl5:")
    a("s_mov_b64 exec, s[42:43]")
    a("Li_nofl:")
    trace6(a, 60, 61)
    a.force_wait(vm=0)
    a("s_barrier")
    trace6(a, 60, 61)
    a(f"s_cmp_lg_u32 s{S_WAVE}, 0")
    a("s_cbranch_scc1 Li_end")
    a(f"s_sub_u32 s41, s{Q_}, 64")
    a(f"s_cmp_lt_u32 s41, 64")
    a("s_cbranch_scc1 Li_l1")
    dbg_add(a, DB_POOLA, 2, 3)
    a("s_branch Li_end")
    a.label("Li_l1")
    dbg_add(a, DB_POOL, 2, 3)
    a.label("Li_end")
    trace6(a, 60, 61)
    a.restore(([], []))


def gen_main(a, stamps=0, dbg_roles=None):
    WS = f"s[{SRD_WS}:{SRD_WS + 3}]"
    a.text(f".globl {MAIN}\n.p2align 8\n.type {MAIN},@function")
    a.label(MAIN)
    a.reset_window()
    sX, sTK = 3, 4
    DBG = f"s[{S_DBG}:{S_DBG + 1}]"
    a("s_cmp_ge_u32 s2, 256")
    a("s_cbranch_scc1 L_exit")
    srd(a, SRD_WS, KA_WS, WS_BYTES)
    a(f"""
    s_load_dwordx2 s[{S_DBG}:{S_DBG + 1}], s[0:1], {KA_DBG}
    v_lshrrev_b32 v1, 6, v0
    s_getreg_b32 s{sX}, hwreg(HW_REG_XCC_ID)
    v_readfirstlane_b32 s{S_WAVE}, v1
    s_and_b32 s{sX}, s{sX}, {6 if os.environ.get('FAKEX') else 7}
    s_and_b32 s{S_TMP}, s{sX}, 1
    s_lshl_b32 s{S_TMP}, s{S_TMP}, 7
    s_lshl_b32 s{S_TMP + 1}, s{sX}, 1
    s_and_b32 s{S_TMP + 1}, s{S_TMP + 1}, 12
    s_add_u32 s{S_TMP}, s{S_TMP}, s{S_TMP + 1}
    v_mov_b32 v2, 0
    v_mov_b32 v3, 1
    v_mov_b32 v4, s{S_TMP}
    s_mov_b32 s{R.sSTEP}, 0
    s_waitcnt lgkmcnt(0)
    s_cmp_lg_u32 s{S_WAVE}, 0
    s_cbranch_scc1 L_tk_wait
    s_mov_b64 exec, 1
    global_atomic_add v3, v4, v3, {DBG} sc0
    v_readfirstlane_b32 s{sTK}, v3
    s_cmp_lt_u32 s{sTK}, 32
    s_cbranch_scc1 L_tk_have
    """)
    a(f"""
    v_mov_b32 v3, 1
    v_mov_b32 v4, {DB_HOMELESS}
    global_atomic_add v3, v4, v3, {DBG} sc0
    v_readfirstlane_b32 s5, v3
    s_mov_b64 exec, 0xff
    v_and_b32 v4, 1, v0
    v_lshlrev_b32 v4, 7, v4
    v_lshlrev_b32 v5, 1, v0
    v_and_or_b32 v4, v5, 12, v4
    s_mov_b32 s{S_SPIN}, 0
    L_hl_poll:
    global_load_dword v5, v4, {DBG} sc1
    """)
    spin_check(a, "L_abort")
    a("s_mov_b32 s6, 0")
    for i in range(8):
        a(f"v_readlane_b32 s{40 + i}, v5, {i}")
        a(f"s_add_u32 s6, s6, s{40 + i}")
    a(f"""
    s_cmp_lt_u32 s6, 256
    s_cbranch_scc1 L_hl_poll
    s_mov_b32 s{sX}, 0
    s_mov_b32 s{sTK}, 0
    """)
    for i in range(7, -1, -1):
        a(f"""
        s_min_u32 s6, s{40 + i}, 32
        s_sub_u32 s7, 32, s6
        s_cmp_lt_u32 s5, s7
        s_cselect_b32 s{sX}, {i}, s{sX}
        s_add_u32 s6, s6, s5
        s_cmp_lt_u32 s5, s7
        s_cselect_b32 s{sTK}, s6, s{sTK}
        s_sub_u32 s5, s5, s7
        """)
    a(f"""
    L_tk_have:
    s_lshl_b32 s5, s{sX}, 8
    s_or_b32 s5, s5, s{sTK}
    v_mov_b32 v3, s5
    s_mov_b64 exec, 1
    ds_write_b32 v2, v3
    s_mov_b64 exec, -1
    L_tk_wait:
    """)
    a.force_wait(vm=0, lg=0)
    a("s_barrier")
    a("ds_read_b32 v3, v2")
    a(f"v_readfirstlane_b32 s5, v3")
    a(f"s_lshr_b32 s{sX}, s5, 8")
    a(f"s_and_b32 s{sTK}, s5, 255")
    a("s_barrier")
    trace_init(a)
    if DBGT:
        a("s_memrealtime s[6:7]")
        a.force_wait(lg=0)
        a("s_mov_b32 s5, s6")
    trace(a, 2, 3, True)
    en = dbg_roles or "RPWTAO"

    def tgt(ch, lab):
        return lab if ch in en else "L_exit"
    LAB = {"P": "L_role_p", "W": "L_role_tw", "T": "L_role_ta", "A": "L_role_aq", "O": "L_role_awo"}
    a(f"s_cmp_lt_u32 s{sX}, 2")
    a(f"s_cbranch_scc1 {tgt('R', 'L_role_r')}")
    a(f"s_sub_u32 s6, s{sX}, 2")
    a(f"s_lshl_b32 s6, s6, 5")
    a(f"s_add_u32 s6, s6, s{sTK}")
    pool_init(a)
    base = {k: 0 for k in LAB}
    for cls, lst in ROLE_MAP.items():
        a(f"s_cmp_lg_u32 s{sX}, {cls}")
        a(f"s_cbranch_scc1 L_cls{cls}_no")
        t0 = 0
        for ch, n in lst:
            a(f"s_add_u32 s{S_ROLE}, s{sTK}, {(base[ch] - t0) & 0xffffffff}")
            a(f"s_cmp_lt_u32 s{sTK}, {t0 + n}")
            a(f"s_cbranch_scc1 {tgt(ch, LAB[ch])}")
            base[ch] += n
            t0 += n
        a("s_endpgm")
        a.label(f"L_cls{cls}_no")
    assert base == ({"P": 96, "W": 36, "T": 22, "A": 32, "O": 6} if TA3 else {"P": 96, "W": 36, "T": 16, "A": 32, "O": 10}), base
    a(f"""
    L_exit:
    s_endpgm
    L_abort:
    """)
    a.force_wait(lg=0)
    a(f"""
    s_mov_b64 exec, -1
    v_mov_b32 v0, {DB_ABORT}
    s_lshl_b32 s5, s{sX}, 8
    s_or_b32 s5, s5, s{sTK}
    s_or_b32 s5, s5, 0x10000
    v_mov_b32 v1, s5
    global_store_dword v0, v1, s[{S_DBG}:{S_DBG + 1}]
    s_endpgm
    """)
    for ch, lab, fn in (("P", "L_role_p", pool.role_p2 if os.environ.get("PV", "2") == "2" else pool.role_p), ("O", "L_role_awo", (pool.role_awo3 if pool.AO3 else pool.role_awo2) if TA3 else pool.role_awo), ("A", "L_role_aq", pool.role_aq),
                        ("T", "L_role_ta", role_t.role_ta), ("W", "L_role_tw", role_t.role_tw)):
        if ch not in en:
            continue
        a.text(".p2align 6")
        a.label(lab)
        a.reset_window()
        fn(a, f"{lab}_abort", f"{lab}_exit")
        a.label(f"{lab}_abort")
        a("s_branch L_abort") if False else far_jump(a, "L_abort")
        a.label(f"{lab}_exit")
        trace(a, 2, 3, True) if (FREERUN or TRACE == 2) else None
        a("s_endpgm")
    if "R" in en:
        a.text(".p2align 6")
        a.label("L_role_r")
        a.reset_window()
        a(f"s_mov_b32 s{R.sLAY}, s{sX}")
        a(f"s_mov_b32 s{R.sH}, s{sTK}")
        R.r_setup(a)
        a(f"""
        s_mov_b64 exec, 0xff
        v_lshrrev_b32 v14, 2, v{R.vL16}
        v_lshlrev_b32 v12, 5, v14
        v_and_b32 v12, 128, v12
        v_lshrrev_b32 v13, 1, v14
        v_and_or_b32 v12, v13, 12, v12
        s_mov_b32 s{S_SPIN}, 0
        L_pure:
        global_load_dword v13, v12, {DBG} sc1
        """)
        spin_check(a, "Lr_abort")
        a("s_mov_b32 s6, 0")
        for i in range(8):
            a(f"v_readlane_b32 s7, v13, {i}")
            a(f"s_add_u32 s6, s6, s7")
        a(f"""
        v_readlane_b32 s7, v13, s{R.sLAY}
        s_cmp_ge_u32 s7, 32
        s_cselect_b32 s{R.sFAST}, {0 if os.environ.get('FAKEX') or os.environ.get('SLOW') else 1}, 0
        s_cselect_b32 s6, 256, s6
        s_cmp_lt_u32 s6, 256
        s_cbranch_scc1 L_pure
        s_mov_b64 exec, -1
        s_lshl_b32 s6, s{R.sLAY}, 2
        s_add_u32 s6, s6, {DB_TEAM}
        """)
        dbg_wait(a, "s6", 32, 12, 13, "Lr_abort", "L_team")
        dbg_wait(a, DB_POOLA, N_POOLA, 12, 13, "Lr_abort", "L_rpoola")
        a(f"s_cmp_eq_u32 s{R.sLAY}, 0")
        a("s_cbranch_scc1 L_rpool_skip")
        dbg_wait(a, DB_POOL, N_POOLB, 12, 13, "Lr_abort", "L_rpool")
        a.label("L_rpool_skip")
        a("s_barrier")
        trace(a, 12, 13, True)
        stamp_max(a, 4, 12, 13, (R.sLAY, 0))
        for fast in (1, 0):
            if fast:
                a(f"s_cmp_eq_u32 s{R.sFAST}, 0")
                a("s_cbranch_scc1 L_slow")
            else:
                a.label("L_slow")
            for w in range(4):
                if w < 3:
                    a(f"s_cmp_lg_u32 s{S_WAVE}, {w}")
                    a(f"s_cbranch_scc1 L_w{w + 1}_{fast}")
                a.restore(([], []))
                R.r_loop(a, w, fast, "Lr_abort", "Lr_exit", stamps)
                if w < 3:
                    a.label(f"L_w{w + 1}_{fast}")
        a.label("Lr_abort")
        far_jump(a, "L_abort")
        a.label("Lr_exit")
        a("s_endpgm")


def far_jump(a, lab):
    a.force_wait(lg=0)
    a(f"""
    s_mov_b64 exec, -1
    v_mov_b32 v0, {DB_ABORT}
    s_lshl_b32 s5, s3, 8
    s_or_b32 s5, s5, s4
    s_or_b32 s5, s5, 0x10000
    v_mov_b32 v1, s5
    global_store_dword v0, v1, s[{S_DBG}:{S_DBG + 1}]
    s_endpgm
    """)


def build(stamps=0, dbg_roles=None):
    a = Asm()
    hdr = open(os.path.join(os.path.dirname(__file__), "..", KNAME + ".s.ref")).read().split("; Override launch")[0]
    a.text(hdr.rstrip())
    a.text("; @launch grid=(256,1,1) block=(256,1,1) lds=163840")
    a.text('.amdgcn_target "amdgcn-amd-amdhsa--gfx950"\n.text')
    gen_main(a, stamps, dbg_roles)
    a.text('.section .rodata,"a"')
    a.text(kd(MAIN, 512, 256))
    return a.render()


if __name__ == "__main__":
    out = sys.argv[1]
    open(out, "w").write(build(int(os.environ.get("STAMPS", "0")), os.environ.get("ROLES")))
```

```python
import sys, os
from common import *
if os.environ.get('RV', '2') == '2':
    import role_r2 as R
else:
    import role_r as R
import pool, role_t

MAIN = KNAME + "_kernel"
WARM = int(os.environ.get("WARM", "1"))
FREERUN = int(os.environ.get("FREERUN", "0"))
INIT = "init_kernel"
TA3 = os.environ.get("TA3", "1") == "1"
if TA3:
    ROLE_MAP = {2: [("W", 24), ("P", 8)], 3: [("W", 12), ("P", 20)], 4: [("A", 16), ("O", 3), ("P", 13)],
                5: [("A", 16), ("O", 3), ("P", 13)], 6: [("T", 11), ("P", 21)], 7: [("T", 11), ("P", 21)]}
else:
    ROLE_MAP = {2: [("W", 24), ("P", 8)], 3: [("W", 12), ("P", 20)], 4: [("A", 16), ("O", 5), ("P", 11)],
                5: [("A", 16), ("O", 5), ("P", 11)], 6: [("T", 8), ("P", 23)], 7: [("T", 8), ("P", 23)]}


def kd(name, vgpr, acc, sgpr=102):
    return f""".p2align 6
.amdhsa_kernel {name}
  .amdhsa_next_free_vgpr {vgpr}
  .amdhsa_next_free_sgpr {sgpr}
  .amdhsa_accum_offset {acc}
  .amdhsa_group_segment_fixed_size 0
  .amdhsa_kernarg_size 104
  .amdhsa_user_sgpr_count 2
  .amdhsa_user_sgpr_kernarg_segment_ptr 1
  .amdhsa_system_sgpr_workgroup_id_x 1
.end_amdhsa_kernel
"""


def pool_init(a):
    WS = f"s[{SRD_WS}:{SRD_WS + 3}]"
    Q_ = 6
    ZPAIR = 6 if pool.AO3 else 9
    ZP = 6 if pool.AO3 else 9
    if WARM:
        srd(a, SRD_A, KA_WQKV, 576 * 3456)
        srd(a, SRD_B, KA_WO, 576 * 1152)
        a(f"s_sub_u32 s41, 191, s{Q_}")
        a(f"s_lshl_b32 s41, s41, 15")
        a(f"v_lshlrev_b32 v254, 7, v0")
        a(f"buffer_load_dword v255, v254, s[{SRD_A}:{SRD_A + 3}], s41 offen")
        a(f"s_sub_u32 s41, s41, {61 * 32768}")
        a(f"s_cmp_lt_u32 s41, {21 * 32768}")
        a(f"s_cselect_b32 s41, s41, 0x7f000000")
        a(f"buffer_load_dword v255, v254, s[{SRD_B}:{SRD_B + 3}], s41 offen")
        if WARM & 2:
            for ka in (KA_WQ, KA_WK, KA_WV, KA_BWO):
                srd(a, SRD_A, ka, 576 * 8192)
                a(f"s_mul_i32 s41, s{Q_}, {192 * 128}")
                a("s_mov_b64 exec, s[42:43]") if False else None
                a(f"v_cmp_gt_u32 vcc, 192, v0")
                a(f"v_cndmask_b32 v253, v252, v254, vcc") if False else None
                a(f"buffer_load_dword v255, v254, s[{SRD_A}:{SRD_A + 3}], s41 offen")
        a.vmq = []
    a(f"s_cmp_ge_u32 s{Q_}, {N_POOL}")
    a("s_cbranch_scc1 Li_end")
    a(f"""
    v_lshlrev_b32 v7, 4, v0
    v_mov_b32 v12, 0
    v_mov_b32 v13, 0
    v_mov_b32 v14, 0
    v_mov_b32 v15, 0
    s_cmp_ge_u32 s{Q_}, 64
    s_cbranch_scc1 Li_rest
    """)
    srd(a, SRD_A, KA_X, 2048 * 1152)
    a(f"""
    v_and_b32 v1, 31, v0
    v_lshrrev_b32 v2, 5, v0
    v_mul_u32_u24 v3, 1152, v1
    v_mul_u32_u24 v5, 144, v2
    v_add_u32 v3, v3, v5
    s_mul_i32 s41, s{Q_}, {32 * 1152}
    """)
    for i in range(9):
        a(f"buffer_load_dwordx4 {vr(64 + 4 * i, 4)}, v3, s[{SRD_A}:{SRD_A + 3}], s41 offen offset:{16 * i}")
    a(f"""
    v_mul_u32_u24 v4, {9 * 512}, v2
    v_lshl_add_u32 v4, v1, 4, v4
    s_mul_i32 s41, s{Q_}, {X_SEG}
    s_add_u32 s41, s41, {WS_X}
    s_mul_i32 s42, s{Q_}, {ST_SEG}
    s_add_u32 s42, s42, {WS_ST}
    s_add_u32 s43, s42, 2048
    s_add_u32 s44, s42, {ST_BYTES + ZP * 512}
    v_mov_b32 v60, 0
    v_mov_b32 v61, 0
    """)
    for i in range(9):
        if i == 8:
            a("v_add_u32 v4, 4096, v4")
        a(f"buffer_store_dwordx4 {vr(64 + 4 * i, 4)}, v4, {WS}, s41 offen offset:{512 * (i % 8)} sc1")
    a(f"buffer_store_dwordx4 v[12:15], v7, {WS}, s43 offen sc1")
    a(f"v_cmp_gt_u32 vcc, {(12 - ZP) * 32}, v0")
    a("s_and_saveexec_b64 s[46:47], vcc")
    a("s_cbranch_execz Li_z1")
    a(f"buffer_store_dwordx4 v[12:15], v7, {WS}, s44 offen sc1")
    a.label("Li_z1")
    a("s_mov_b64 exec, s[46:47]")
    a("v_mov_b32 v62, 0x3f803f80")
    for r in range(64, 100):
        a(f"v_dot2c_f32_bf16 v60, v{r}, v62")
        a(f"v_dot2c_f32_bf16 v61, v{r}, v{r}")
    a.nop(4)
    a(f"""
    v_lshrrev_b32 v5, 1, v2
    v_lshlrev_b32 v5, 9, v5
    v_lshl_add_u32 v5, v1, 4, v5
    v_and_b32 v6, 1, v2
    v_lshl_add_u32 v5, v6, 3, v5
    buffer_store_dwordx2 v[60:61], v5, {WS}, s42 offen sc1
    s_branch Li_flags
    Li_rest:
    """)
    a.restore(([], []))
    a(f"""
    s_cmp_ge_u32 s{Q_}, 128
    s_cbranch_scc1 Li_pre
    s_sub_u32 s41, s{Q_}, 64
    s_mul_i32 s41, s41, {ST_SEG}
    s_add_u32 s41, s41, {WS_ST + 3 * ST_BYTES + ZP * 512}
    v_cmp_gt_u32 vcc, {(12 - ZP) * 32}, v0
    s_and_saveexec_b64 s[42:43], vcc
    s_cbranch_execz Li_rest2
    buffer_store_dwordx4 v[12:15], v7, {WS}, s41 offen sc1
    Li_rest2:
    s_mov_b64 exec, s[42:43]
    """)
    if PRE:
        srd(a, SRD_A, KA_OUT, 2048 * 1152)
        a(f"s_sub_u32 s44, s{Q_}, 64")
        a(f"s_mul_i32 s45, s44, {X_SEG}")
        a(f"s_add_u32 s46, s45, {WS_OA + X_BYTES}")
        for i in range(9):
            a(f"buffer_store_dwordx4 v[12:15], v7, {WS}, s46 offen sc1")
            if PRE & 2:
                a(f"buffer_store_dwordx4 v[12:15], v7, s[{SRD_A}:{SRD_A + 3}], s45 offen sc1")
            if i < 8:
                a(f"s_add_u32 s46, s46, 4096")
                a(f"s_add_u32 s45, s45, 4096")
        a(f"s_mul_i32 s45, s44, {ST_SEG}")
        a(f"s_add_u32 s45, s45, {WS_ST + 2 * ST_BYTES}")
        a(f"buffer_store_dwordx4 v[12:15], v7, {WS}, s45 offen sc1")
        a(f"s_add_u32 s46, s45, 4096")
        a(f"s_add_u32 s45, s45, {ST_BYTES}")
        a(f"buffer_store_dwordx4 v[12:15], v7, {WS}, s45 offen sc1")
        a("v_cmp_gt_u32 vcc, 128, v0")
        a("s_and_saveexec_b64 s[42:43], vcc")
        a("s_cbranch_execz Li_rest3")
        a(f"buffer_store_dwordx4 v[12:15], v7, {WS}, s46 offen sc1")
        a.label("Li_rest3")
        a("s_mov_b64 exec, s[42:43]")
    a("s_branch Li_flags")
    a.label("Li_pre")
    a.restore(([], []))
    if PRE:
        a(f"s_sub_u32 s44, s{Q_}, 128")
        a(f"s_mul_i32 s45, s44, {X_SEG}")
        a(f"s_add_u32 s45, s45, {WS_OA}")
        for i in range(9):
            a(f"buffer_store_dwordx4 v[12:15], v7, {WS}, s45 offen sc1")
            a(f"s_add_u32 s45, s45, 4096") if i < 8 else None
        a(f"s_mul_i32 s45, s44, {ST_SEG}")
        a(f"s_add_u32 s45, s45, {WS_ST + ST_BYTES}")
        a(f"v_cmp_gt_u32 vcc, {ZPAIR * 32}, v0")
        a("s_and_saveexec_b64 s[46:47], vcc")
        a("s_cbranch_execz Li_z0")
        a(f"buffer_store_dwordx4 v[12:15], v7, {WS}, s45 offen sc1")
        a.label("Li_z0")
        a("s_mov_b64 exec, s[46:47]")
        a(f"s_cmp_ge_u32 s{Q_}, 136")
        a("s_cbranch_scc1 Li_nofl")
    a(f"""
    Li_flags:
    """)
    a.restore(([], []))
    a(f"""
    v_cmp_gt_u32 vcc, 96, v0
    s_cmp_lt_u32 s{Q_}, 64
    s_cselect_b64 s[42:43], -1, 0
    s_and_b64 vcc, vcc, s[42:43]
    s_cmp_lt_u32 s{Q_}, 128
    s_cselect_b32 s44, {FREERUN}, 0
    v_mov_b32 v12, s44
    v_mov_b32 v13, s44
    v_mov_b32 v14, s44
    v_mov_b32 v15, s44
    v_mov_b32 v9, 1
    v_cndmask_b32 v8, v12, v9, vcc
    v_mov_b32 v9, v8
    v_mov_b32 v10, v8
    v_mov_b32 v11, v8
    s_mul_i32 s41, s{Q_}, {FL_STRIDE}
    s_sub_u32 s42, s{Q_}, 128
    s_lshl_b32 s42, s42, 12
    s_add_u32 s42, s42, {WS_ZERO}
    s_cmp_ge_u32 s{Q_}, 128
    s_cselect_b32 s41, s42, s41
    buffer_store_dwordx4 v[8:11], v7, {WS}, s41 offen sc1
    s_cbranch_scc1 Li_nofl
    """)
    for i in range(1, 6):
        a(f"s_add_u32 s41, s41, 4096")
        if i == 5:
            a("v_cmp_gt_u32 vcc, 128, v0")
            a("s_and_saveexec_b64 s[42:43], vcc")
            a("s_cbranch_execz Li_fl5")
        a(f"buffer_store_dwordx4 v[12:15], v7, {WS}, s41 offen sc1")
    a("Li_fl5:")
    a("s_mov_b64 exec, s[42:43]")
    a("Li_nofl:")
    trace6(a, 60, 61)
    a.force_wait(vm=0)
    a("s_barrier")
    trace6(a, 60, 61)
    a(f"s_cmp_lg_u32 s{S_WAVE}, 0")
    a("s_cbranch_scc1 Li_end")
    a(f"s_sub_u32 s41, s{Q_}, 64")
    a(f"s_cmp_lt_u32 s41, 64")
    a("s_cbranch_scc1 Li_l1")
    dbg_add(a, DB_POOLA, 2, 3)
    a("s_branch Li_end")
    a.label("Li_l1")
    dbg_add(a, DB_POOL, 2, 3)
    a.label("Li_end")
    trace6(a, 60, 61)
    a.restore(([], []))


def gen_main(a, stamps=0, dbg_roles=None):
    WS = f"s[{SRD_WS}:{SRD_WS + 3}]"
    a.text(f".globl {MAIN}\n.p2align 8\n.type {MAIN},@function")
    a.label(MAIN)
    a.reset_window()
    sX, sTK = 3, 4
    DBG = f"s[{S_DBG}:{S_DBG + 1}]"
    a("s_cmp_ge_u32 s2, 256")
    a("s_cbranch_scc1 L_exit")
    srd(a, SRD_WS, KA_WS, WS_BYTES)
    a(f"""
    s_load_dwordx2 s[{S_DBG}:{S_DBG + 1}], s[0:1], {KA_DBG}
    v_lshrrev_b32 v1, 6, v0
    s_getreg_b32 s{sX}, hwreg(HW_REG_XCC_ID)
    v_readfirstlane_b32 s{S_WAVE}, v1
    s_and_b32 s{sX}, s{sX}, {6 if os.environ.get('FAKEX') else 7}
    s_and_b32 s{S_TMP}, s{sX}, 1
    s_lshl_b32 s{S_TMP}, s{S_TMP}, 7
    s_lshl_b32 s{S_TMP + 1}, s{sX}, 1
    s_and_b32 s{S_TMP + 1}, s{S_TMP + 1}, 12
    s_add_u32 s{S_TMP}, s{S_TMP}, s{S_TMP + 1}
    v_mov_b32 v2, 0
    v_mov_b32 v3, 1
    v_mov_b32 v4, s{S_TMP}
    s_mov_b32 s{R.sSTEP}, 0
    s_waitcnt lgkmcnt(0)
    s_cmp_lg_u32 s{S_WAVE}, 0
    s_cbranch_scc1 L_tk_wait
    s_mov_b64 exec, 1
    global_atomic_add v3, v4, v3, {DBG} sc0
    v_readfirstlane_b32 s{sTK}, v3
    s_cmp_lt_u32 s{sTK}, 32
    s_cbranch_scc1 L_tk_have
    """)
    a(f"""
    v_mov_b32 v3, 1
    v_mov_b32 v4, {DB_HOMELESS}
    global_atomic_add v3, v4, v3, {DBG} sc0
    v_readfirstlane_b32 s5, v3
    s_mov_b64 exec, 0xff
    v_and_b32 v4, 1, v0
    v_lshlrev_b32 v4, 7, v4
    v_lshlrev_b32 v5, 1, v0
    v_and_or_b32 v4, v5, 12, v4
    s_mov_b32 s{S_SPIN}, 0
    L_hl_poll:
    global_load_dword v5, v4, {DBG} sc1
    """)
    spin_check(a, "L_abort")
    a("s_mov_b32 s6, 0")
    for i in range(8):
        a(f"v_readlane_b32 s{40 + i}, v5, {i}")
        a(f"s_add_u32 s6, s6, s{40 + i}")
    a(f"""
    s_cmp_lt_u32 s6, 256
    s_cbranch_scc1 L_hl_poll
    s_mov_b32 s{sX}, 0
    s_mov_b32 s{sTK}, 0
    """)
    for i in range(7, -1, -1):
        a(f"""
        s_min_u32 s6, s{40 + i}, 32
        s_sub_u32 s7, 32, s6
        s_cmp_lt_u32 s5, s7
        s_cselect_b32 s{sX}, {i}, s{sX}
        s_add_u32 s6, s6, s5
        s_cmp_lt_u32 s5, s7
        s_cselect_b32 s{sTK}, s6, s{sTK}
        s_sub_u32 s5, s5, s7
        """)
    a(f"""
    L_tk_have:
    s_lshl_b32 s5, s{sX}, 8
    s_or_b32 s5, s5, s{sTK}
    v_mov_b32 v3, s5
    s_mov_b64 exec, 1
    ds_write_b32 v2, v3
    s_mov_b64 exec, -1
    L_tk_wait:
    """)
    a.force_wait(vm=0, lg=0)
    a("s_barrier")
    a("ds_read_b32 v3, v2")
    a(f"v_readfirstlane_b32 s5, v3")
    a(f"s_lshr_b32 s{sX}, s5, 8")
    a(f"s_and_b32 s{sTK}, s5, 255")
    a("s_barrier")
    trace_init(a)
    if DBGT:
        a("s_memrealtime s[6:7]")
        a.force_wait(lg=0)
        a("s_mov_b32 s5, s6")
    trace(a, 2, 3, True)
    en = dbg_roles or "RPWTAO"

    def tgt(ch, lab):
        return lab if ch in en else "L_exit"
    LAB = {"P": "L_role_p", "W": "L_role_tw", "T": "L_role_ta", "A": "L_role_aq", "O": "L_role_awo"}
    a(f"s_cmp_lt_u32 s{sX}, 2")
    a(f"s_cbranch_scc1 {tgt('R', 'L_role_r')}")
    a(f"s_sub_u32 s6, s{sX}, 2")
    a(f"s_lshl_b32 s6, s6, 5")
    a(f"s_add_u32 s6, s6, s{sTK}")
    pool_init(a)
    base = {k: 0 for k in LAB}
    for cls, lst in ROLE_MAP.items():
        a(f"s_cmp_lg_u32 s{sX}, {cls}")
        a(f"s_cbranch_scc1 L_cls{cls}_no")
        t0 = 0
        for ch, n in lst:
            a(f"s_add_u32 s{S_ROLE}, s{sTK}, {(base[ch] - t0) & 0xffffffff}")
            a(f"s_cmp_lt_u32 s{sTK}, {t0 + n}")
            a(f"s_cbranch_scc1 {tgt(ch, LAB[ch])}")
            base[ch] += n
            t0 += n
        a("s_endpgm")
        a.label(f"L_cls{cls}_no")
    assert base == ({"P": 96, "W": 36, "T": 22, "A": 32, "O": 6} if TA3 else {"P": 96, "W": 36, "T": 16, "A": 32, "O": 10}), base
    a(f"""
    L_exit:
    s_endpgm
    L_abort:
    """)
    a.force_wait(lg=0)
    a(f"""
    s_mov_b64 exec, -1
    v_mov_b32 v0, {DB_ABORT}
    s_lshl_b32 s5, s{sX}, 8
    s_or_b32 s5, s5, s{sTK}
    s_or_b32 s5, s5, 0x10000
    v_mov_b32 v1, s5
    global_store_dword v0, v1, s[{S_DBG}:{S_DBG + 1}]
    s_endpgm
    """)
    for ch, lab, fn in (("P", "L_role_p", pool.role_p2 if os.environ.get("PV", "2") == "2" else pool.role_p), ("O", "L_role_awo", (pool.role_awo3 if pool.AO3 else pool.role_awo2) if TA3 else pool.role_awo), ("A", "L_role_aq", pool.role_aq),
                        ("T", "L_role_ta", role_t.role_ta), ("W", "L_role_tw", role_t.role_tw)):
        if ch not in en:
            continue
        a.text(".p2align 6")
        a.label(lab)
        a.reset_window()
        fn(a, f"{lab}_abort", f"{lab}_exit")
        a.label(f"{lab}_abort")
        a("s_branch L_abort") if False else far_jump(a, "L_abort")
        a.label(f"{lab}_exit")
        trace(a, 2, 3, True) if (FREERUN or TRACE == 2) else None
        a("s_endpgm")
    if "R" in en:
        a.text(".p2align 6")
        a.label("L_role_r")
        a.reset_window()
        a(f"s_mov_b32 s{R.sLAY}, s{sX}")
        a(f"s_mov_b32 s{R.sH}, s{sTK}")
        R.r_setup(a)
        a(f"""
        s_mov_b64 exec, 0xff
        v_lshrrev_b32 v14, 2, v{R.vL16}
        v_lshlrev_b32 v12, 5, v14
        v_and_b32 v12, 128, v12
        v_lshrrev_b32 v13, 1, v14
        v_and_or_b32 v12, v13, 12, v12
        s_mov_b32 s{S_SPIN}, 0
        L_pure:
        global_load_dword v13, v12, {DBG} sc1
        """)
        spin_check(a, "Lr_abort")
        a("s_mov_b32 s6, 0")
        for i in range(8):
            a(f"v_readlane_b32 s7, v13, {i}")
            a(f"s_add_u32 s6, s6, s7")
        a(f"""
        v_readlane_b32 s7, v13, s{R.sLAY}
        s_cmp_ge_u32 s7, 32
        s_cselect_b32 s{R.sFAST}, {0 if os.environ.get('FAKEX') or os.environ.get('SLOW') else 1}, 0
        s_cselect_b32 s6, 256, s6
        s_cmp_lt_u32 s6, 256
        s_cbranch_scc1 L_pure
        s_mov_b64 exec, -1
        s_lshl_b32 s6, s{R.sLAY}, 2
        s_add_u32 s6, s6, {DB_TEAM}
        """)
        dbg_wait(a, "s6", 32, 12, 13, "Lr_abort", "L_team")
        dbg_wait(a, DB_POOLA, N_POOLA, 12, 13, "Lr_abort", "L_rpoola")
        a(f"s_cmp_eq_u32 s{R.sLAY}, 0")
        a("s_cbranch_scc1 L_rpool_skip")
        dbg_wait(a, DB_POOL, N_POOLB, 12, 13, "Lr_abort", "L_rpool")
        a.label("L_rpool_skip")
        a("s_barrier")
        trace(a, 12, 13, True)
        stamp_max(a, 4, 12, 13, (R.sLAY, 0))
        for fast in (1, 0):
            if fast:
                a(f"s_cmp_eq_u32 s{R.sFAST}, 0")
                a("s_cbranch_scc1 L_slow")
            else:
                a.label("L_slow")
            for w in range(4):
                if w < 3:
                    a(f"s_cmp_lg_u32 s{S_WAVE}, {w}")
                    a(f"s_cbranch_scc1 L_w{w + 1}_{fast}")
                a.restore(([], []))
                R.r_loop(a, w, fast, "Lr_abort", "Lr_exit", stamps)
                if w < 3:
                    a.label(f"L_w{w + 1}_{fast}")
        a.label("Lr_abort")
        far_jump(a, "L_abort")
        a.label("Lr_exit")
        a("s_endpgm")


def far_jump(a, lab):
    a.force_wait(lg=0)
    a(f"""
    s_mov_b64 exec, -1
    v_mov_b32 v0, {DB_ABORT}
    s_lshl_b32 s5, s3, 8
    s_or_b32 s5, s5, s4
    s_or_b32 s5, s5, 0x10000
    v_mov_b32 v1, s5
    global_store_dword v0, v1, s[{S_DBG}:{S_DBG + 1}]
    s_endpgm
    """)


def build(stamps=0, dbg_roles=None):
    a = Asm()
    hdr = open(os.path.join(os.path.dirname(__file__), "..", KNAME + ".s.ref")).read().split("; Override launch")[0]
    a.text(hdr.rstrip())
    a.text("; @launch grid=(256,1,1) block=(256,1,1) lds=163840")
    a.text('.amdgcn_target "amdgcn-amd-amdhsa--gfx950"\n.text')
    gen_main(a, stamps, dbg_roles)
    a.text('.section .rodata,"a"')
    a.text(kd(MAIN, 512, 256))
    return a.render()


if __name__ == "__main__":
    out = sys.argv[1]
    open(out, "w").write(build(int(os.environ.get("STAMPS", "0")), os.environ.get("ROLES")))
```

```python
import sys, os
from common import *
if os.environ.get('RV', '2') == '2':
    import role_r2 as R
else:
    import role_r as R
import pool, role_t

MAIN = KNAME + "_kernel"
SHIFT = int(os.environ.get("SHIFT", "1"))
WARM = int(os.environ.get("WARM", "1"))
FREERUN = int(os.environ.get("FREERUN", "0"))
INIT = "init_kernel"
TA3 = os.environ.get("TA3", "1") == "1"
if TA3:
    ROLE_MAP = {2: [("W", 24), ("P", 8)], 3: [("W", 12), ("P", 20)], 4: [("A", 16), ("O", 3), ("P", 13)],
                5: [("A", 16), ("O", 3), ("P", 13)], 6: [("T", 11), ("P", 21)], 7: [("T", 11), ("P", 21)]}
else:
    ROLE_MAP = {2: [("W", 24), ("P", 8)], 3: [("W", 12), ("P", 20)], 4: [("A", 16), ("O", 5), ("P", 11)],
                5: [("A", 16), ("O", 5), ("P", 11)], 6: [("T", 8), ("P", 23)], 7: [("T", 8), ("P", 23)]}


def kd(name, vgpr, acc, sgpr=102):
    return f""".p2align 6
.amdhsa_kernel {name}
  .amdhsa_next_free_vgpr {vgpr}
  .amdhsa_next_free_sgpr {sgpr}
  .amdhsa_accum_offset {acc}
  .amdhsa_group_segment_fixed_size 0
  .amdhsa_kernarg_size 104
  .amdhsa_user_sgpr_count 2
  .amdhsa_user_sgpr_kernarg_segment_ptr 1
  .amdhsa_system_sgpr_workgroup_id_x 1
.end_amdhsa_kernel
"""


def pool_init(a):
    WS = f"s[{SRD_WS}:{SRD_WS + 3}]"
    Q_ = 6
    ZPAIR = 6 if pool.AO3 else 9
    ZP = 6 if pool.AO3 else 9
    if WARM:
        srd(a, SRD_A, KA_WQKV, 576 * 3456)
        srd(a, SRD_B, KA_WO, 576 * 1152)
        a(f"s_sub_u32 s41, 191, s{Q_}")
        a(f"s_lshl_b32 s41, s41, 15")
        a(f"v_lshlrev_b32 v254, 7, v0")
        a(f"buffer_load_dword v255, v254, s[{SRD_A}:{SRD_A + 3}], s41 offen")
        a(f"s_sub_u32 s41, s41, {61 * 32768}")
        a(f"s_cmp_lt_u32 s41, {21 * 32768}")
        a(f"s_cselect_b32 s41, s41, 0x7f000000")
        a(f"buffer_load_dword v255, v254, s[{SRD_B}:{SRD_B + 3}], s41 offen")
        if WARM & 2:
            for ka in (KA_WQ, KA_WK, KA_WV, KA_BWO):
                srd(a, SRD_A, ka, 576 * 8192)
                a(f"s_mul_i32 s41, s{Q_}, {192 * 128}")
                a("s_mov_b64 exec, s[42:43]") if False else None
                a(f"v_cmp_gt_u32 vcc, 192, v0")
                a(f"v_cndmask_b32 v253, v252, v254, vcc") if False else None
                a(f"buffer_load_dword v255, v254, s[{SRD_A}:{SRD_A + 3}], s41 offen")
        a.vmq = []
    a(f"s_cmp_ge_u32 s{Q_}, {N_POOL}")
    a("s_cbranch_scc1 Li_end")
    if PRE and SHIFT:
        a(f"s_sub_u32 s41, s{Q_}, 64")
        a(f"s_cmp_lt_u32 s41, 64")
        a("s_cbranch_scc1 Li_end")
        a.label("Li_body")
        a.restore(([], []))
    a(f"""
    v_lshlrev_b32 v7, 4, v0
    v_mov_b32 v12, 0
    v_mov_b32 v13, 0
    v_mov_b32 v14, 0
    v_mov_b32 v15, 0
    s_cmp_ge_u32 s{Q_}, 64
    s_cbranch_scc1 Li_rest
    """)
    srd(a, SRD_A, KA_X, 2048 * 1152)
    a(f"""
    v_and_b32 v1, 31, v0
    v_lshrrev_b32 v2, 5, v0
    v_mul_u32_u24 v3, 1152, v1
    v_mul_u32_u24 v5, 144, v2
    v_add_u32 v3, v3, v5
    s_mul_i32 s41, s{Q_}, {32 * 1152}
    """)
    for i in range(9):
        a(f"buffer_load_dwordx4 {vr(64 + 4 * i, 4)}, v3, s[{SRD_A}:{SRD_A + 3}], s41 offen offset:{16 * i}")
    a(f"""
    v_mul_u32_u24 v4, {9 * 512}, v2
    v_lshl_add_u32 v4, v1, 4, v4
    s_mul_i32 s41, s{Q_}, {X_SEG}
    s_add_u32 s41, s41, {WS_X}
    s_mul_i32 s42, s{Q_}, {ST_SEG}
    s_add_u32 s42, s42, {WS_ST}
    s_add_u32 s43, s42, 2048
    s_add_u32 s44, s42, {ST_BYTES + ZP * 512}
    v_mov_b32 v60, 0
    v_mov_b32 v61, 0
    """)
    for i in range(9):
        if i == 8:
            a("v_add_u32 v4, 4096, v4")
        a(f"buffer_store_dwordx4 {vr(64 + 4 * i, 4)}, v4, {WS}, s41 offen offset:{512 * (i % 8)} sc1")
    a(f"buffer_store_dwordx4 v[12:15], v7, {WS}, s43 offen sc1")
    a(f"v_cmp_gt_u32 vcc, {(12 - ZP) * 32}, v0")
    a("s_and_saveexec_b64 s[46:47], vcc")
    a("s_cbranch_execz Li_z1")
    a(f"buffer_store_dwordx4 v[12:15], v7, {WS}, s44 offen sc1")
    a.label("Li_z1")
    a("s_mov_b64 exec, s[46:47]")
    a("v_mov_b32 v62, 0x3f803f80")
    for r in range(64, 100):
        a(f"v_dot2c_f32_bf16 v60, v{r}, v62")
        a(f"v_dot2c_f32_bf16 v61, v{r}, v{r}")
    a.nop(4)
    a(f"""
    v_lshrrev_b32 v5, 1, v2
    v_lshlrev_b32 v5, 9, v5
    v_lshl_add_u32 v5, v1, 4, v5
    v_and_b32 v6, 1, v2
    v_lshl_add_u32 v5, v6, 3, v5
    buffer_store_dwordx2 v[60:61], v5, {WS}, s42 offen sc1
    s_branch Li_flags
    Li_rest:
    """)
    a.restore(([], []))
    a(f"""
    s_cmp_ge_u32 s{Q_}, 128
    s_cbranch_scc1 Li_pre
    s_sub_u32 s41, s{Q_}, 64
    s_mul_i32 s41, s41, {ST_SEG}
    s_add_u32 s41, s41, {WS_ST + 3 * ST_BYTES + ZP * 512}
    v_cmp_gt_u32 vcc, {(12 - ZP) * 32}, v0
    s_and_saveexec_b64 s[42:43], vcc
    s_cbranch_execz Li_rest2
    buffer_store_dwordx4 v[12:15], v7, {WS}, s41 offen sc1
    Li_rest2:
    s_mov_b64 exec, s[42:43]
    """)
    if PRE:
        srd(a, SRD_A, KA_OUT, 2048 * 1152)
        a(f"s_sub_u32 s44, s{Q_}, 64")
        a(f"s_mul_i32 s45, s44, {X_SEG}")
        a(f"s_add_u32 s46, s45, {WS_OA + X_BYTES}")
        for i in range(9):
            a(f"buffer_store_dwordx4 v[12:15], v7, {WS}, s46 offen sc1")
            if PRE & 2:
                a(f"buffer_store_dwordx4 v[12:15], v7, s[{SRD_A}:{SRD_A + 3}], s45 offen sc1")
            if i < 8:
                a(f"s_add_u32 s46, s46, 4096")
                a(f"s_add_u32 s45, s45, 4096")
        a(f"s_mul_i32 s45, s44, {ST_SEG}")
        a(f"s_add_u32 s45, s45, {WS_ST + 2 * ST_BYTES}")
        a(f"buffer_store_dwordx4 v[12:15], v7, {WS}, s45 offen sc1")
        a(f"s_add_u32 s46, s45, 4096")
        a(f"s_add_u32 s45, s45, {ST_BYTES}")
        a(f"buffer_store_dwordx4 v[12:15], v7, {WS}, s45 offen sc1")
        a("v_cmp_gt_u32 vcc, 128, v0")
        a("s_and_saveexec_b64 s[42:43], vcc")
        a("s_cbranch_execz Li_rest3")
        a(f"buffer_store_dwordx4 v[12:15], v7, {WS}, s46 offen sc1")
        a.label("Li_rest3")
        a("s_mov_b64 exec, s[42:43]")
    a("s_branch Li_flags")
    a.label("Li_pre")
    a.restore(([], []))
    if PRE:
        a(f"s_sub_u32 s44, s{Q_}, 128")
        a(f"s_mul_i32 s45, s44, {X_SEG}")
        a(f"s_add_u32 s45, s45, {WS_OA}")
        for i in range(9):
            a(f"buffer_store_dwordx4 v[12:15], v7, {WS}, s45 offen sc1")
            a(f"s_add_u32 s45, s45, 4096") if i < 8 else None
        a(f"s_mul_i32 s45, s44, {ST_SEG}")
        a(f"s_add_u32 s45, s45, {WS_ST + ST_BYTES}")
        a(f"v_cmp_gt_u32 vcc, {ZPAIR * 32}, v0")
        a("s_and_saveexec_b64 s[46:47], vcc")
        a("s_cbranch_execz Li_z0")
        a(f"buffer_store_dwordx4 v[12:15], v7, {WS}, s45 offen sc1")
        a.label("Li_z0")
        a("s_mov_b64 exec, s[46:47]")
        a(f"s_cmp_ge_u32 s{Q_}, 136")
        a("s_cbranch_scc1 Li_nofl")
    a(f"""
    Li_flags:
    """)
    a.restore(([], []))
    a(f"""
    v_cmp_gt_u32 vcc, 96, v0
    s_cmp_lt_u32 s{Q_}, 64
    s_cselect_b64 s[42:43], -1, 0
    s_and_b64 vcc, vcc, s[42:43]
    s_cmp_lt_u32 s{Q_}, 128
    s_cselect_b32 s44, {FREERUN}, 0
    v_mov_b32 v12, s44
    v_mov_b32 v13, s44
    v_mov_b32 v14, s44
    v_mov_b32 v15, s44
    v_mov_b32 v9, 1
    v_cndmask_b32 v8, v12, v9, vcc
    v_mov_b32 v9, v8
    v_mov_b32 v10, v8
    v_mov_b32 v11, v8
    s_mul_i32 s41, s{Q_}, {FL_STRIDE}
    s_sub_u32 s42, s{Q_}, 128
    s_lshl_b32 s42, s42, 12
    s_add_u32 s42, s42, {WS_ZERO}
    s_cmp_ge_u32 s{Q_}, 128
    s_cselect_b32 s41, s42, s41
    buffer_store_dwordx4 v[8:11], v7, {WS}, s41 offen sc1
    s_cbranch_scc1 Li_nofl
    """)
    for i in range(1, 6):
        a(f"s_add_u32 s41, s41, 4096")
        if i == 5:
            a("v_cmp_gt_u32 vcc, 128, v0")
            a("s_and_saveexec_b64 s[42:43], vcc")
            a("s_cbranch_execz Li_fl5")
        a(f"buffer_store_dwordx4 v[12:15], v7, {WS}, s41 offen sc1")
    a("Li_fl5:")
    a("s_mov_b64 exec, s[42:43]")
    a("Li_nofl:")
    trace6(a, 60, 61)
    a.force_wait(vm=0)
    a("s_barrier")
    trace6(a, 60, 61)
    a(f"s_cmp_lg_u32 s{S_WAVE}, 0")
    a("s_cbranch_scc1 Li_cnt")
    a(f"s_sub_u32 s41, s{Q_}, 64")
    a(f"s_cmp_lt_u32 s41, 64")
    a("s_cbranch_scc1 Li_l1")
    dbg_add(a, DB_POOLA, 2, 3)
    a("s_branch Li_cnt")
    a.label("Li_l1")
    dbg_add(a, DB_POOL, 2, 3)
    a.label("Li_cnt")
    if PRE and SHIFT:
        a(f"s_cmp_lt_u32 s{Q_}, 128")
        a("s_cbranch_scc1 Li_end")
        a(f"s_sub_u32 s{Q_}, s{Q_}, 64")
        a("s_branch Li_body")
    a.label("Li_end")
    trace6(a, 60, 61)
    a.restore(([], []))


def gen_main(a, stamps=0, dbg_roles=None):
    WS = f"s[{SRD_WS}:{SRD_WS + 3}]"
    a.text(f".globl {MAIN}\n.p2align 8\n.type {MAIN},@function")
    a.label(MAIN)
    a.reset_window()
    sX, sTK = 3, 4
    DBG = f"s[{S_DBG}:{S_DBG + 1}]"
    a("s_cmp_ge_u32 s2, 256")
    a("s_cbranch_scc1 L_exit")
    srd(a, SRD_WS, KA_WS, WS_BYTES)
    a(f"""
    s_load_dwordx2 s[{S_DBG}:{S_DBG + 1}], s[0:1], {KA_DBG}
    v_lshrrev_b32 v1, 6, v0
    s_getreg_b32 s{sX}, hwreg(HW_REG_XCC_ID)
    v_readfirstlane_b32 s{S_WAVE}, v1
    s_and_b32 s{sX}, s{sX}, {6 if os.environ.get('FAKEX') else 7}
    s_and_b32 s{S_TMP}, s{sX}, 1
    s_lshl_b32 s{S_TMP}, s{S_TMP}, 7
    s_lshl_b32 s{S_TMP + 1}, s{sX}, 1
    s_and_b32 s{S_TMP + 1}, s{S_TMP + 1}, 12
    s_add_u32 s{S_TMP}, s{S_TMP}, s{S_TMP + 1}
    v_mov_b32 v2, 0
    v_mov_b32 v3, 1
    v_mov_b32 v4, s{S_TMP}
    s_mov_b32 s{R.sSTEP}, 0
    s_waitcnt lgkmcnt(0)
    s_cmp_lg_u32 s{S_WAVE}, 0
    s_cbranch_scc1 L_tk_wait
    s_mov_b64 exec, 1
    global_atomic_add v3, v4, v3, {DBG} sc0
    v_readfirstlane_b32 s{sTK}, v3
    s_cmp_lt_u32 s{sTK}, 32
    s_cbranch_scc1 L_tk_have
    """)
    a(f"""
    v_mov_b32 v3, 1
    v_mov_b32 v4, {DB_HOMELESS}
    global_atomic_add v3, v4, v3, {DBG} sc0
    v_readfirstlane_b32 s5, v3
    s_mov_b64 exec, 0xff
    v_and_b32 v4, 1, v0
    v_lshlrev_b32 v4, 7, v4
    v_lshlrev_b32 v5, 1, v0
    v_and_or_b32 v4, v5, 12, v4
    s_mov_b32 s{S_SPIN}, 0
    L_hl_poll:
    global_load_dword v5, v4, {DBG} sc1
    """)
    spin_check(a, "L_abort")
    a("s_mov_b32 s6, 0")
    for i in range(8):
        a(f"v_readlane_b32 s{40 + i}, v5, {i}")
        a(f"s_add_u32 s6, s6, s{40 + i}")
    a(f"""
    s_cmp_lt_u32 s6, 256
    s_cbranch_scc1 L_hl_poll
    s_mov_b32 s{sX}, 0
    s_mov_b32 s{sTK}, 0
    """)
    for i in range(7, -1, -1):
        a(f"""
        s_min_u32 s6, s{40 + i}, 32
        s_sub_u32 s7, 32, s6
        s_cmp_lt_u32 s5, s7
        s_cselect_b32 s{sX}, {i}, s{sX}
        s_add_u32 s6, s6, s5
        s_cmp_lt_u32 s5, s7
        s_cselect_b32 s{sTK}, s6, s{sTK}
        s_sub_u32 s5, s5, s7
        """)
    a(f"""
    L_tk_have:
    s_lshl_b32 s5, s{sX}, 8
    s_or_b32 s5, s5, s{sTK}
    v_mov_b32 v3, s5
    s_mov_b64 exec, 1
    ds_write_b32 v2, v3
    s_mov_b64 exec, -1
    L_tk_wait:
    """)
    a.force_wait(vm=0, lg=0)
    a("s_barrier")
    a("ds_read_b32 v3, v2")
    a(f"v_readfirstlane_b32 s5, v3")
    a(f"s_lshr_b32 s{sX}, s5, 8")
    a(f"s_and_b32 s{sTK}, s5, 255")
    a("s_barrier")
    trace_init(a)
    if DBGT:
        a("s_memrealtime s[6:7]")
        a.force_wait(lg=0)
        a("s_mov_b32 s5, s6")
    trace(a, 2, 3, True)
    en = dbg_roles or "RPWTAO"

    def tgt(ch, lab):
        return lab if ch in en else "L_exit"
    LAB = {"P": "L_role_p", "W": "L_role_tw", "T": "L_role_ta", "A": "L_role_aq", "O": "L_role_awo"}
    a(f"s_cmp_lt_u32 s{sX}, 2")
    a(f"s_cbranch_scc1 {tgt('R', 'L_role_r')}")
    a(f"s_sub_u32 s6, s{sX}, 2")
    a(f"s_lshl_b32 s6, s6, 5")
    a(f"s_add_u32 s6, s6, s{sTK}")
    pool_init(a)
    base = {k: 0 for k in LAB}
    for cls, lst in ROLE_MAP.items():
        a(f"s_cmp_lg_u32 s{sX}, {cls}")
        a(f"s_cbranch_scc1 L_cls{cls}_no")
        t0 = 0
        for ch, n in lst:
            a(f"s_add_u32 s{S_ROLE}, s{sTK}, {(base[ch] - t0) & 0xffffffff}")
            a(f"s_cmp_lt_u32 s{sTK}, {t0 + n}")
            a(f"s_cbranch_scc1 {tgt(ch, LAB[ch])}")
            base[ch] += n
            t0 += n
        a("s_endpgm")
        a.label(f"L_cls{cls}_no")
    assert base == ({"P": 96, "W": 36, "T": 22, "A": 32, "O": 6} if TA3 else {"P": 96, "W": 36, "T": 16, "A": 32, "O": 10}), base
    a(f"""
    L_exit:
    s_endpgm
    L_abort:
    """)
    a.force_wait(lg=0)
    a(f"""
    s_mov_b64 exec, -1
    v_mov_b32 v0, {DB_ABORT}
    s_lshl_b32 s5, s{sX}, 8
    s_or_b32 s5, s5, s{sTK}
    s_or_b32 s5, s5, 0x10000
    v_mov_b32 v1, s5
    global_store_dword v0, v1, s[{S_DBG}:{S_DBG + 1}]
    s_endpgm
    """)
    for ch, lab, fn in (("P", "L_role_p", pool.role_p2 if os.environ.get("PV", "2") == "2" else pool.role_p), ("O", "L_role_awo", (pool.role_awo3 if pool.AO3 else pool.role_awo2) if TA3 else pool.role_awo), ("A", "L_role_aq", pool.role_aq),
                        ("T", "L_role_ta", role_t.role_ta), ("W", "L_role_tw", role_t.role_tw)):
        if ch not in en:
            continue
        a.text(".p2align 6")
        a.label(lab)
        a.reset_window()
        fn(a, f"{lab}_abort", f"{lab}_exit")
        a.label(f"{lab}_abort")
        a("s_branch L_abort") if False else far_jump(a, "L_abort")
        a.label(f"{lab}_exit")
        trace(a, 2, 3, True) if (FREERUN or TRACE == 2) else None
        a("s_endpgm")
    if "R" in en:
        a.text(".p2align 6")
        a.label("L_role_r")
        a.reset_window()
        a(f"s_mov_b32 s{R.sLAY}, s{sX}")
        a(f"s_mov_b32 s{R.sH}, s{sTK}")
        R.r_setup(a)
        a(f"""
        s_mov_b64 exec, 0xff
        v_lshrrev_b32 v14, 2, v{R.vL16}
        v_lshlrev_b32 v12, 5, v14
        v_and_b32 v12, 128, v12
        v_lshrrev_b32 v13, 1, v14
        v_and_or_b32 v12, v13, 12, v12
        s_mov_b32 s{S_SPIN}, 0
        L_pure:
        global_load_dword v13, v12, {DBG} sc1
        """)
        spin_check(a, "Lr_abort")
        a("s_mov_b32 s6, 0")
        for i in range(8):
            a(f"v_readlane_b32 s7, v13, {i}")
            a(f"s_add_u32 s6, s6, s7")
        a(f"""
        v_readlane_b32 s7, v13, s{R.sLAY}
        s_cmp_ge_u32 s7, 32
        s_cselect_b32 s{R.sFAST}, {0 if os.environ.get('FAKEX') or os.environ.get('SLOW') else 1}, 0
        s_cselect_b32 s6, 256, s6
        s_cmp_lt_u32 s6, 256
        s_cbranch_scc1 L_pure
        s_mov_b64 exec, -1
        s_lshl_b32 s6, s{R.sLAY}, 2
        s_add_u32 s6, s6, {DB_TEAM}
        """)
        dbg_wait(a, "s6", 32, 12, 13, "Lr_abort", "L_team")
        dbg_wait(a, DB_POOLA, N_POOLA, 12, 13, "Lr_abort", "L_rpoola")
        a(f"s_cmp_eq_u32 s{R.sLAY}, 0")
        a("s_cbranch_scc1 L_rpool_skip")
        dbg_wait(a, DB_POOL, N_POOLB, 12, 13, "Lr_abort", "L_rpool")
        a.label("L_rpool_skip")
        a("s_barrier")
        trace(a, 12, 13, True)
        stamp_max(a, 4, 12, 13, (R.sLAY, 0))
        for fast in (1, 0):
            if fast:
                a(f"s_cmp_eq_u32 s{R.sFAST}, 0")
                a("s_cbranch_scc1 L_slow")
            else:
                a.label("L_slow")
            for w in range(4):
                if w < 3:
                    a(f"s_cmp_lg_u32 s{S_WAVE}, {w}")
                    a(f"s_cbranch_scc1 L_w{w + 1}_{fast}")
                a.restore(([], []))
                R.r_loop(a, w, fast, "Lr_abort", "Lr_exit", stamps)
                if w < 3:
                    a.label(f"L_w{w + 1}_{fast}")
        a.label("Lr_abort")
        far_jump(a, "L_abort")
        a.label("Lr_exit")
        a("s_endpgm")


def far_jump(a, lab):
    a.force_wait(lg=0)
    a(f"""
    s_mov_b64 exec, -1
    v_mov_b32 v0, {DB_ABORT}
    s_lshl_b32 s5, s3, 8
    s_or_b32 s5, s5, s4
    s_or_b32 s5, s5, 0x10000
    v_mov_b32 v1, s5
    global_store_dword v0, v1, s[{S_DBG}:{S_DBG + 1}]
    s_endpgm
    """)


def build(stamps=0, dbg_roles=None):
    a = Asm()
    hdr = open(os.path.join(os.path.dirname(__file__), "..", KNAME + ".s.ref")).read().split("; Override launch")[0]
    a.text(hdr.rstrip())
    a.text("; @launch grid=(256,1,1) block=(256,1,1) lds=163840")
    a.text('.amdgcn_target "amdgcn-amd-amdhsa--gfx950"\n.text')
    gen_main(a, stamps, dbg_roles)
    a.text('.section .rodata,"a"')
    a.text(kd(MAIN, 512, 256))
    return a.render()


if __name__ == "__main__":
    out = sys.argv[1]
    open(out, "w").write(build(int(os.environ.get("STAMPS", "0")), os.environ.get("ROLES")))
```

```python
from asmlib import *

KNAME = "interleave_layers__sliding_local_dilated__memory_aug_recurrent_mem_tr__prompt"
NSEG = 64
KA_X, KA_WQKV, KA_WO, KA_BX, KA_MEM0, KA_WQ, KA_WK, KA_WV, KA_BWO, KA_SEG, KA_OUT, KA_DBG, KA_WS = [8 * i for i in range(13)]

WS_BYTES = 268435456
WS_FLAGS = 0
FL_STRIDE = 0x5800
FL_XA, FL_OA, FL_XB, FL_OF, FL_QKV = 0, 1536, 3584, 4224, 5376
WS_ZERO = 0x2C0000
FLAGS_BYTES = 0x2D0000
WS_DUMMY = 0x300000
WS_RING = 0x400000
RING_TEAM = 0x100000
PART_SLOT = 0x80000
import os
PART_H = int(os.environ.get("PARTH", "12288"))
MEMB_OFF = 0xF0000
MEMB_SLOT = 0x4000
WS_X = 0x600000
X_BYTES = 0x240000
X_SEG = 36864
WS_ST = WS_X + 4 * X_BYTES
ST_SEG = 12 * 32 * 16
ST_BYTES = NSEG * ST_SEG
WS_OA = WS_ST + 4 * ST_BYTES
WS_AW = WS_OA + 2 * X_BYTES
WS_KM = 0x1A00000
KM_UNIT = 4096
WS_QKV = WS_KM + 2 * NSEG * 32 * KM_UNIT
QKV_M = NSEG * 32 * 8192
WS_OF = WS_QKV + 6 * QKV_M
WS_END = WS_OF + 2 * QKV_M
assert WS_AW + 32 * 90 * 1024 <= WS_KM
assert WS_END <= WS_BYTES, WS_END

RV2 = os.environ.get("RV", "2") == "2"
SPIN_MAX = int(os.environ.get("SPIN_MAX", "100000"))

S_KARG = 0
S_WG = 2
SRD_WS = 8
S_DBG = 12
S_WAVE = 14
S_ROLE = 15
S_SPIN = 16
S_TMP = 17
SRD_A = 20
SRD_B = 24
SRD_C = 28
S_FREE = 32


def srd(a, base, ka_off, nbytes):
    a(f"s_load_dwordx2 s[{base}:{base + 1}], s[0:1], {ka_off}")
    a(f"s_mov_b32 s{base + 2}, {nbytes}")
    a(f"s_mov_b32 s{base + 3}, 0x00020000")
    a.force_wait(lg=0)
    a(f"s_and_b32 s{base + 1}, s{base + 1}, 0xffff")


def spin_check(a, abort_label):
    a(f"s_add_u32 s{S_SPIN}, s{S_SPIN}, 1")
    a(f"s_cmp_gt_u32 s{S_SPIN}, {SPIN_MAX}")
    a(f"s_cbranch_scc1 {abort_label}")


TRACE = int(os.environ.get("TRACE", "0"))
WS_TRACE = WS_END


def trace_init(a):
    if TRACE:
        a(f"s_lshl_b32 s5, s3, 5")
        a(f"s_add_u32 s5, s5, s4")
        a(f"s_lshl_b32 s5, s5, 2")
        a(f"s_add_u32 s5, s5, s{S_WAVE}")
        a(f"s_lshl_b32 s5, s5, 10")
        a(f"s_add_u32 s5, s5, {WS_TRACE}")


def trace(a, v0, v1, light=False):
    if TRACE in (1, 3) or (TRACE in (2, 4, 6) and light):
        a("s_memrealtime s[6:7]")
        a.force_wait(lg=0)
        a(f"v_mov_b32 v{v0}, s6")
        a(f"v_mov_b32 v{v1}, 0")
        a("s_mov_b64 exec, 1")
        a(f"buffer_store_dword v{v0}, v{v1}, s[{SRD_WS}:{SRD_WS + 3}], s5 offen")
        a("s_mov_b64 exec, -1")
        a("s_add_u32 s5, s5, 4")


PROF = int(os.environ.get("PROF", "0"))


def p3_begin(a):
    if PROF == 3:
        a("s_memtime s[88:89]")
        a.force_wait(lg=0)


def p3_end(a, k):
    if PROF == 3:
        a("s_memtime s[86:87]")
        a.force_wait(lg=0)
        a("s_sub_u32 s86, s86, s88")
        a(f"s_add_u32 s{90 + k}, s{90 + k}, s86")


def prof_begin(a):
    if PROF in (1, 2):
        a("s_memtime s[88:89]")
        a.force_wait(lg=0)


def prof_end(a, k):
    if PROF in (1, 2):
        a("s_memtime s[86:87]")
        a.force_wait(lg=0)
        a("s_sub_u32 s86, s86, s88")
        a(f"s_add_u32 s{90 + k}, s{90 + k}, s86")


def prof_init(a):
    if PROF:
        for k in range(8):
            a(f"s_mov_b32 s{90 + k}, 0")


def prof_dump(a, v0, v1):
    if PROF:
        a(f"s_lshl_b32 s5, s3, 5")
        a(f"s_add_u32 s5, s5, s4")
        a(f"s_lshl_b32 s5, s5, 2")
        a(f"s_add_u32 s5, s5, s{S_WAVE}")
        a(f"s_lshl_b32 s5, s5, 5")
        a(f"s_add_u32 s5, s5, {WS_TRACE}")
        for k in range(8):
            a(f"v_writelane_b32 v{v0}, s{90 + k}, {k}")
        a(f"v_mbcnt_lo_u32_b32 v{v1}, -1, 0")
        a(f"v_lshlrev_b32 v{v1}, 2, v{v1}")
        a("s_mov_b64 exec, 0xff")
        a(f"buffer_store_dword v{v0}, v{v1}, s[{SRD_WS}:{SRD_WS + 3}], s5 offen")
        a("s_mov_b64 exec, -1")


def wait_units(a, lab):
    a.label(lab)
    a("s_cmp_eq_u32 s6, 0")
    a(f"s_cbranch_scc1 {lab}_d")
    a("s_sleep 127")
    a("s_sub_u32 s6, s6, 1")
    a(f"s_branch {lab}")
    a.label(lab + "_d")


DB_TICKET = 0
DB_HOMELESS = 32
DB_ABORT = 60
DB_POOL = 160
DB_POOLA = 40
DB_LOADED = 48
ORDER = int(os.environ.get('ORDER', '0'))
GATE = int(os.environ.get('GATE', '15'))
GJOB = int(os.environ.get('GJOB', '12'))


BWARM = int(os.environ.get('BWARM', '0'))


def gate(a, bit, cond_sreg, v0, v1, abort, name, slab=None, vlane16=None):
    if GATE & bit:
        if cond_sreg is not None:
            a(f"s_cmp_eq_u32 s{cond_sreg}, 0")
            a(f"s_cbranch_scc1 {name}_ng")
        if BWARM and slab:
            o0, o1 = S_TMP + 1, S_TMP + 2
            a(f"s_add_u32 s{o0}, s{slab[0]}, {slab[1]}")
            a(f"s_mul_i32 s{o0}, s{o0}, {274 * 128}")
            a(f"s_lshl_b32 s{o1}, s{S_WAVE}, 13")
            a(f"s_add_u32 s{o0}, s{o0}, s{o1}")
            a(f"s_cmp_eq_u32 s{S_WAVE}, 0")
            a(f"s_cselect_b32 s{o1}, {256 * 128}, 0x7f000000") if False else None
            a(f"s_mov_b32 s{o1}, 0x7f000000")
            a(f"s_cselect_b32 s{o1}, {256 * 128}, s{o1}")
            a(f"s_add_u32 s{o1}, s{o1}, s{o0}")
            a(f"v_lshlrev_b32 v{v0}, 3, v{vlane16}")
            for ka in (KA_WQ, KA_WK, KA_WV, KA_BWO):
                srd(a, 72, ka, 576 * 8192)
                a(f"buffer_load_dword v{v1}, v{v0}, s[72:75], s{o0} offen")
                a(f"buffer_load_dword v{v1}, v{v0}, s[72:75], s{o1} offen")
            a.force_wait(vm=0)
        dbg_wait(a, DB_LOADED, 32, v0, v1, abort, name, 100)
        if cond_sreg is not None:
            a.label(name + "_ng")


DB_TEAM = 192
PRE = int(os.environ.get('PRE', '3'))
N_POOL = 192 if PRE else 136
N_POOLA = 128 if PRE else 72
N_POOLB = 64
SRD_DBG = 4


def dbg_add(a, off, v0, v1):
    a(f"v_mov_b32 v{v0}, {off}" if isinstance(off, int) else f"v_mov_b32 v{v0}, {off}")
    a(f"v_mov_b32 v{v1}, 1")
    a("s_mov_b64 exec, 1")
    a(f"global_atomic_add v{v0}, v{v1}, s[{S_DBG}:{S_DBG + 1}]")
    a("s_mov_b64 exec, -1")


def dbg_wait(a, off, target, v0, v1, abort, name, slp=8):
    a(f"s_cmp_lg_u32 s{S_WAVE}, 0")
    a(f"s_cbranch_scc1 {name}_d")
    a(f"v_mov_b32 v{v0}, {off}")
    a(f"s_mov_b32 s{S_SPIN}, 0")
    a.label(name)
    a(f"global_load_dword v{v1}, v{v0}, s[{S_DBG}:{S_DBG + 1}] sc1")
    spin_check(a, abort)
    a(f"v_cmp_gt_u32 vcc, {target}, v{v1}")
    a(f"s_cbranch_vccz {name}_d")
    a(f"s_sleep {slp}")
    a(f"s_branch {name}")
    a.label(name + "_d")
    a("s_barrier")


def trace_at(a, sidx, v0, vz):
    if TRACE == 4:
        a("s_memrealtime s[6:7]")
        a.force_wait(lg=0)
        a(f"s_lshl_b32 s7, s{sidx}, 2")
        a(f"s_add_u32 s7, s7, s5")
        a(f"v_mov_b32 v{v0}, s6")
        a("s_mov_b64 exec, 1")
        a(f"buffer_store_dword v{v0}, v{vz}, s[{SRD_WS}:{SRD_WS + 3}], s7 offen offset:12")
        a("s_mov_b64 exec, -1")


DBGT = int(os.environ.get("DBGT", "0"))


def stamp_max(a, word, v0, v1, cond=None):
    if DBGT:
        L = a.newlabel("Lsm")
        if cond:
            a(f"s_cmp_lg_u32 s{cond[0]}, {cond[1]}")
            a(f"s_cbranch_scc1 {L}")
        sn = a.snap()
        a("s_memrealtime s[6:7]")
        a.force_wait(lg=0)
        a("s_sub_u32 s6, s6, s5")
        a(f"v_mov_b32 v{v0}, {word}" if isinstance(word, str) else f"v_mov_b32 v{v0}, {4 * word}")
        a(f"v_mov_b32 v{v1}, s6")
        a("s_mov_b64 exec, 1")
        a(f"global_atomic_umax v{v0}, v{v1}, s[{S_DBG}:{S_DBG + 1}]")
        a("s_mov_b64 exec, -1")
        a.restore(sn)
        a.label(L)


def trace6(a, v0, v1):
    if TRACE == 6:
        a("s_memrealtime s[76:77]")
        a.force_wait(lg=0)
        a(f"v_mov_b32 v{v0}, s76")
        a(f"v_mov_b32 v{v1}, 0")
        a("s_mov_b64 exec, 1")
        a(f"buffer_store_dword v{v0}, v{v1}, s[{SRD_WS}:{SRD_WS + 3}], s5 offen")
        a("s_mov_b64 exec, -1")
        a("s_add_u32 s5, s5, 4")


def init_wait(a, cond_sreg, v0, v1, abort, name):
    dbg_wait(a, DB_POOLA, N_POOLA, v0, v1, abort, name + "a")
    if cond_sreg is not None:
        a(f"s_cmp_eq_u32 s{cond_sreg}, 0")
        a(f"s_cbranch_scc1 {name}_sk")
    dbg_wait(a, DB_POOL, N_POOLB, v0, v1, abort, name + "b")
    if cond_sreg is not None:
        a.label(name + "_sk")


def class_impure(a, pair, vL16, v0, v1, abort, name):
    a(f"""
    s_mov_b64 exec, 0xff
    v_lshrrev_b32 v{v1}, 2, v{vL16}
    v_lshlrev_b32 v{v0}, 5, v{v1}
    v_and_b32 v{v0}, 128, v{v0}
    v_lshrrev_b32 v{v1}, 1, v{v1}
    v_and_or_b32 v{v0}, v{v1}, 12, v{v0}
    s_mov_b32 s{S_SPIN}, 0
    """)
    a.label(name)
    a(f"global_load_dword v{v1}, v{v0}, s[{S_DBG}:{S_DBG + 1}] sc1")
    spin_check(a, abort)
    a("s_mov_b32 s6, 0")
    for i in range(8):
        a(f"v_readlane_b32 s7, v{v1}, {i}")
        a("s_add_u32 s6, s6, s7")
    a(f"v_readlane_b32 s7, v{v1}, s3")
    a("s_cmp_ge_u32 s7, 32")
    a(f"s_cselect_b32 s{pair}, {-1 if os.environ.get('FAKEX') or os.environ.get('SLOW') else 0}, -1")
    a("s_cselect_b32 s6, 256, s6")
    a("s_cmp_lt_u32 s6, 256")
    a(f"s_cbranch_scc1 {name}")
    a(f"s_mov_b32 s{pair + 1}, s{pair}")
    a("s_mov_b64 exec, -1")
```

```python
from common import *
import os, struct

ROWS = 288
L_F = 0
L_OB = 16 * ROWS
L_MEMA = L_OB + 8 * ROWS
L_KX = L_MEMA + 8192
L_LW = L_KX + 8192
LW_WAVE = 17 * 2048
L_SEL = L_LW + 4 * LW_WAVE
L_FAR = L_SEL + 1024
assert L_LW % 256 == 0 and L_FAR + 4 <= 163840

PH = 9216

vL16, vIDX, vQW, vQR, vOR, vOW, vRLD, vRST, vLW, vT0, vT1, vT2 = range(12)
ACCQ, ACCK, ACCV = 12, 20, 28
Q = [36 + 4 * i for i in range(9)]
FA, FB, FC, R0, R1 = Q[0], Q[1], Q[2], Q[3], Q[4]
WR0, WR1 = Q[5], Q[7]
WBASE = 72

sH = S_ROLE
sLAY = 32
sSTEP = 33
sMA = 34
sMC = 35
sMEMW = 36
sMEMZ = 37
sPW = 38
sPWC = 39
sPH = 40
sKF = 41
sVF = 42
sKM = 43
sCEXP = 44
sMASK = 46
sU = 48
sMAXD = 50
sFAST = 51
sONES = 52
sM = 54
sPR = 62
sFL = 66
sFLP = 67
sTCH = 68
sFOK = 69
sL0 = 70
S_STAMP = 80

MATS = "qkv"
env = os.environ.get
DBC = [int(x) for x in env("DBC", "0,0,0,0").split(",")]
DP1 = [int(x) for x in env("DP1", "0,60,50").split(",")]
DP2 = int(env("DP2", "10"))
DQ1 = [int(x) for x in env("DQ1", "20,30,30,10").split(",")]
DQ2 = [int(x) for x in env("DQ2", "10,20,20,25").split(",")]
DQ3 = [int(x) for x in env("DQ3", "25,25,25,25").split(",")]
DQB = int(env("DQB", "0"))
HKSL = int(env("HKSL", "5"))
VORD = int(env("VORD", "1"))
KD0 = int(env("KD0", "0"))
FLW = int(env("FLW", "1"))
CKW = int(env("CKW", "2"))
TKW = int(env("TKW", "0"))
TCW = int(env("TCW", "3"))
PB0 = int(env("PB0", "0"))
PC0 = int(env("PC0", "4"))
STG = int(env("STG", "1"))
FAD = int(env("FAD", "0"))
VEARLY = int(env("VEARLY", "2"))
TPOS = int(env("TPOS", "1"))
PAPOS = int(env("PAPOS", "-1"))
R2E = int(env("R2E", "1"))
BEARLY = int(env("BEARLY", "0"))
NBF = int(env("NBF", "0"))
PD3 = int(env("PD3", "1"))
KPOS = int(env("KPOS", "0"))
FAR = int(env("FAR", "0"))
NTR = env("NTR", "")
TOUCH = int(env("TOUCH", "1"))


def f32bits(x):
    return struct.unpack("<I", struct.pack("<f", x))[0]


LDS_TILES = [("v", 0), ("v", 2), ("q", 4), ("q", 6)]
LDS_SLOT = {}
for i, (m, t) in enumerate(LDS_TILES):
    LDS_SLOT[(m, 0, t)] = 2 * i
    LDS_SLOT[(m, 1, t)] = 2 * i + 1
for i, (p, ks) in enumerate([(2, 0), (2, 1), (3, 0), (3, 1)]):
    LDS_SLOT[("o", 2 * p, ks)] = 8 + 2 * i
    LDS_SLOT[("o", 2 * p + 1, ks)] = 9 + 2 * i
LDS_SLOT[("o", 8, 1)] = 16


def build_fm():
    fm = {}
    regs = [("v", WBASE + 8 * i) for i in range(23)] + [("a", 8 * i) for i in range(32)]
    keys = [(m, b, t) for m in "qkv" for t in range(9) for b in range(2) if (m, t) not in LDS_TILES]
    keys += [("o", tau, ks) for tau in range(4) for ks in range(2)] + [("o", 8, 0)]
    assert len(keys) == 55
    for k, r in zip(keys, regs):
        fm[k] = r
    for k, s in LDS_SLOT.items():
        fm[k] = ("l", s)
    return fm


FM = build_fm()


def opnd(loc, n=8, off=0):
    k, b = loc
    return (vr if k == "v" else ar)(b + off, n)


def SM(acc, A, B):
    return f"v_smfmac_f32_16x16x64_bf16 {vr(acc, 4)}, {vr(A, 4)}, {B}, v{vIDX}"


def lw_read(dst, slot):
    return [f"ds_read_b128 {vr(dst, 4)}, v{vLW} offset:{slot * 2048}",
            f"ds_read_b128 {vr(dst + 4, 4)}, v{vLW} offset:{slot * 2048 + 1024}"]


def nops(a, n):
    while n > 0:
        k = min(n, 16)
        a(f"s_nop {k - 1}")
        n -= k


def r_setup(a):
    WS = f"s[{SRD_WS}:{SRD_WS + 3}]"
    LANE, C, G, T3, T4, T5, TAU = 60, 61, 62, 63, 64, 65, 66
    cexp = hex(f32bits(128 ** -0.5 * 1.4426950408889634))
    W = S_WAVE
    a(f"""
    v_and_b32 v{LANE}, 63, v0
    v_and_b32 v{C}, 15, v{LANE}
    v_lshrrev_b32 v{G}, 4, v{LANE}
    v_lshlrev_b32 v{vL16}, 4, v{LANE}
    s_mul_i32 s{S_TMP}, s{W}, {LW_WAVE}
    s_add_u32 s{S_TMP}, s{S_TMP}, {L_LW}
    v_add_u32 v{vLW}, s{S_TMP}, v{vL16}
    s_mov_b32 s{sMAXD}, 0xfffffffe
    s_mov_b32 s{sCEXP}, {cexp}
    s_mov_b32 s{sCEXP + 1}, {cexp}
    s_mov_b32 s{sONES}, 0x3f803f80
    s_mov_b32 s{sONES + 1}, 0x3f803f80
    s_mov_b32 s{sPH}, 1
    s_mov_b32 s{sMASK}, 0x00ff00ff
    s_cmp_eq_u32 s{W}, 2
    s_cselect_b32 s{sMASK}, 0x00030003, s{sMASK}
    s_mov_b32 s{sMASK + 1}, s{sMASK}
    v_bfe_u32 v{T3}, v{C}, 1, 1
    v_mov_b32 v{vIDX}, 0x4444
    v_mov_b32 v{T4}, 0xeeee
    v_cmp_eq_u32 vcc, 0, v{T3}
    v_cndmask_b32 v{vIDX}, v{T4}, v{vIDX}, vcc
    """)
    a(f"""
    v_mul_u32_u24 v{T4}, {4 * ROWS}, v{G}
    v_lshl_add_u32 v{vQW}, v{C}, 2, v{T4}
    s_lshl_b32 s{S_TMP}, s{W}, 6
    s_add_u32 s{S_TMP + 1}, s{S_TMP}, {L_F}
    v_add_u32 v{vQW}, s{S_TMP + 1}, v{vQW}
    v_mul_u32_u24 v{T4}, {ROWS}, v{C}
    v_lshl_add_u32 v{vQR}, v{G}, 4, v{T4}
    v_add_u32 v{vQR}, {L_F}, v{vQR}
    v_lshrrev_b32 v{T4}, 2, v{C}
    v_and_b32 v{T5}, 1, v{C}
    v_lshl_add_u32 v{T4}, v{T4}, 1, v{T5}
    v_mul_u32_u24 v{T5}, {ROWS}, v{T4}
    v_lshl_add_u32 v{vOR}, v{G}, 5, v{T5}
    v_lshl_add_u32 v{vOR}, v{T3}, 4, v{vOR}
    v_add_u32 v{vOR}, {L_OB}, v{vOR}
    v_xor_b32 v{T3}, 1, v{T3}
    v_mul_u32_u24 v{T3}, {8 * ROWS}, v{T3}
    v_add_u32 v{vOW}, v{T5}, v{T3}
    v_lshl_add_u32 v{vOW}, v{G}, 4, v{vOW}
    s_add_u32 s{S_TMP + 1}, s{S_TMP}, {L_OB}
    v_add_u32 v{vOW}, s{S_TMP + 1}, v{vOW}
    """)
    WP, GO, CH, UI = sL0, sL0 + 1, sL0 + 2, sL0 + 3
    a(f"""
    s_lshr_b32 s{WP}, s{sH}, 3
    s_bfe_u32 s{GO}, s{sH}, 0x20001
    s_and_b32 s{CH}, s{sH}, 1
    v_bfe_u32 v{T4}, v{C}, 2, 1
    v_lshl_add_u32 v{T3}, v{T4}, 2, v{G}
    v_mul_u32_u24 v{T3}, {PH}, v{T3}
    v_lshrrev_b32 v{T5}, 3, v{C}
    v_lshlrev_b32 v{T5}, 2, v{T5}
    v_and_b32 v{T4}, 3, v{C}
    v_add_u32 v{T5}, v{T5}, v{T4}
    s_lshl_b32 s{UI}, s{GO}, 4
    s_lshl_b32 s{S_TMP}, s{CH}, 3
    s_add_u32 s{UI}, s{UI}, s{S_TMP}
    v_add_u32 v{T5}, s{UI}, v{T5}
    s_lshl_b32 s{S_TMP}, s{WP}, 6
    v_add_u32 v{T5}, s{S_TMP}, v{T5}
    s_cmp_eq_u32 s{W}, 2
    s_cselect_b32 s{S_TMP}, 2, 4
    v_lshlrev_b32 v{T5}, s{S_TMP}, v{T5}
    v_add_u32 v{vRLD}, v{T3}, v{T5}
    s_lshl_b32 s{S_TMP}, s{W}, 12
    v_add_u32 v{vRLD}, s{S_TMP}, v{vRLD}
    v_lshrrev_b32 v{TAU}, 1, v{C}
    s_lshl_b32 s{S_TMP}, s{W}, 2
    v_add_u32 v{TAU}, s{S_TMP}, v{TAU}
    v_and_b32 v{T4}, 1, v{C}
    s_lshl_b32 s{S_TMP}, s{WP}, 4
    s_lshl_b32 s{S_TMP + 1}, s{GO}, 2
    s_add_u32 s{S_TMP}, s{S_TMP}, s{S_TMP + 1}
    s_lshl_b32 s{S_TMP + 1}, s{CH}, 1
    s_add_u32 s{S_TMP}, s{S_TMP}, s{S_TMP + 1}
    v_add_u32 v{T5}, s{S_TMP}, v{T4}
    v_lshl_add_u32 v{T5}, v{TAU}, 6, v{T5}
    v_lshlrev_b32 v{T5}, 4, v{T5}
    v_lshl_add_u32 v{vRST}, v{G}, 2, v{T5}
    """)
    M0 = 67
    a(f"""
    s_lshl_b32 s{S_TMP}, s{GO}, 1
    v_add_u32 v{T4}, s{S_TMP}, v{T4}
    v_mul_u32_u24 v{T4}, 576, v{T4}
    v_lshl_add_u32 v{T4}, v{TAU}, 4, v{T4}
    v_lshl_add_u32 v{T4}, v{G}, 1, v{T4}
    s_mul_i32 s{S_TMP}, s{WP}, 144
    s_lshl_b32 s{S_TMP + 1}, s{CH}, 3
    s_add_u32 s{S_TMP}, s{S_TMP}, s{S_TMP + 1}
    v_add_u32 v{T4}, s{S_TMP}, v{T4}
    v_lshlrev_b32 v{M0}, 1, v{T4}
    """)
    a(f"""
    s_mul_i32 s{sU}, s{sLAY}, {RING_TEAM}
    s_add_u32 s{sU}, s{sU}, {WS_RING}
    s_mul_i32 s{S_TMP}, s{sH}, {PH}
    s_add_u32 s{S_TMP}, s{S_TMP}, s{sU}
    s_lshl_b32 s{S_TMP + 1}, s{W}, 10
    s_add_u32 s{sPW}, s{S_TMP}, s{S_TMP + 1}
    s_lshl_b32 s{S_TMP + 2}, s{W}, 8
    s_add_u32 s{sPWC}, s{S_TMP}, s{S_TMP + 2}
    s_add_u32 s{sPWC}, s{sPWC}, 8192
    s_add_u32 s{sMEMZ}, s{sU}, {MEMB_OFF}
    s_xor_b32 s{sMEMW}, s{sMEMZ}, {MEMB_SLOT}
    s_add_u32 s{sMA}, s{sMEMZ}, s{S_TMP + 1}
    s_add_u32 s{sMC}, s{sMEMZ}, 8192
    s_mul_i32 s{S_TMP}, s{sLAY}, {3 * QKV_M}
    s_lshl_b32 s{S_TMP + 2}, s{sH}, 13
    s_add_u32 s{S_TMP}, s{S_TMP}, s{S_TMP + 2}
    s_add_u32 s{sTCH}, s{S_TMP}, {WS_QKV + 2 * QKV_M}
    s_lshl_b32 s{S_TMP + 1}, s{W}, 11
    s_add_u32 s{S_TMP}, s{S_TMP}, s{S_TMP + 1}
    s_add_u32 s{sKF}, s{S_TMP}, {WS_QKV + QKV_M}
    s_add_u32 s{sVF}, s{S_TMP}, {WS_QKV + 2 * QKV_M}
    s_mul_i32 s{S_TMP}, s{sLAY}, {NSEG * 32 * KM_UNIT}
    s_lshl_b32 s{S_TMP + 2}, s{sH}, 12
    s_add_u32 s{S_TMP}, s{S_TMP}, s{S_TMP + 2}
    s_add_u32 s{sKM}, s{S_TMP}, {WS_KM}
    s_mul_i32 s{S_TMP}, s{sLAY}, {NSEG * FL_STRIDE}
    s_lshl_b32 s{S_TMP + 2}, s{sH}, 9
    s_add_u32 s{S_TMP}, s{S_TMP}, s{S_TMP + 2}
    s_add_u32 s{sFL}, s{S_TMP}, {WS_FLAGS + FL_QKV}
    s_mov_b32 s{sSTEP}, 0
    """)
    for i in range(4):
        a(f"s_add_u32 s{sPR + i}, s{sU}, {i * 8 * PH}")
    srd(a, SRD_A, KA_MEM0, 9216)
    A_ = f"s[{SRD_A}:{SRD_A + 3}]"
    a(f"""
    s_cmp_gt_u32 s{W}, 2
    s_cbranch_scc1 Lr_mem0_done
    s_mov_b64 exec, s[{sMASK}:{sMASK + 1}]
    buffer_load_dword v{T4}, v{M0}, {A_}, 0 offen
    v_min_u32 v{T4}, s{sMAXD}, v{T4}
    buffer_store_dword v{T4}, v{vRST}, {WS}, s{sMEMZ} offen sc1
    v_mov_b32 v{T4}, -1
    buffer_store_dword v{T4}, v{vRST}, {WS}, s{sMEMW} offen sc1
    s_mov_b64 exec, -1
    Lr_mem0_done:
    v_mov_b32 v64, 0
    v_mov_b32 v65, 0
    v_mov_b32 v66, 0
    v_mov_b32 v67, 0
    v_lshrrev_b32 v{T3}, 2, v{vL16}
    buffer_store_dwordx4 v[64:67], v{vL16}, {WS}, s{sPW} offen sc1
    s_add_u32 s{S_TMP}, s{sPW}, 4096
    buffer_store_dwordx4 v[64:67], v{vL16}, {WS}, s{S_TMP} offen sc1
    buffer_store_dword v64, v{T3}, {WS}, s{sPWC} offen sc1
    """)
    a.force_wait(vm=0)
    a("s_barrier")
    a(f"s_cmp_lg_u32 s{W}, 0")
    a("s_cbranch_scc1 Lr_noadd")
    a(f"s_lshl_b32 s{S_TMP}, s{sLAY}, 2")
    a(f"s_add_u32 s{S_TMP}, s{S_TMP}, {DB_TEAM}")
    dbg_add(a, f"s{S_TMP}", 63, 64)
    a.label("Lr_noadd")
    if W is not None:
        a(f"""
        s_cmp_lt_u32 s{S_WAVE}, 3
        s_cbranch_scc1 Lr_not_w3
        v_lshlrev_b32 v{vRLD}, 3, v{vL16}
        v_lshrrev_b32 v{T3}, 2, v{vL16}
        v_and_b32 v{vRST}, 12, v{T3}
        v_and_b32 v{T3}, 16, v{T3}
        v_lshl_add_u32 v{vRST}, v{T3}, 3, v{vRST}
        Lr_not_w3:
        """)
    gate(a, 1, sLAY, 63, 64, "Lr_abort", "Lr_gate", (sH, 103), vL16)
    if DBGT == 3:
        stamp_max(a, 13, 63, 64, (sLAY, 0))
    loader(a)
    if DBGT == 3:
        stamp_max(a, 9, 63, 64, (sLAY, 0))
    a(f"v_bfe_u32 v{vT0}, v{vL16}, 4, 4")
    a(f"v_mov_b32 v{vT1}, 0x3f80")
    a(f"v_mov_b32 v16, 0x3f800000")
    for d in range(4):
        a(f"v_cmp_eq_u32 vcc, {2 * d}, v{vT0}")
        a(f"v_cmp_eq_u32 s[{sU}:{sU + 1}], {2 * d + 1}, v{vT0}")
        a(f"v_cndmask_b32 v{12 + d}, 0, v{vT1}, vcc")
        a(f"v_cndmask_b32 v{12 + d}, v{12 + d}, v16, s[{sU}:{sU + 1}]")
    a(f"v_add_u32 v{vT0}, {L_SEL}, v{vL16}")
    a(f"ds_write_b128 v{vT0}, v[12:15]")
    a.wait(lg=0)


def loader(a):
    W = S_WAVE
    g0 = 12
    GW, GZ = 16, 17
    RA = 18
    RW, RZ = 22, 23
    TMP = 24
    T3, T4, T5, LANE, I16, GB = 63, 64, 65, 60, 61, 62
    sT, sWO, sLW = sL0, sL0 + 1, sL0 + 2
    SRD_D = 76
    srd(a, SRD_A, KA_WQ, 576 * 8192)
    srd(a, SRD_B, KA_WK, 576 * 8192)
    srd(a, SRD_C, KA_WV, 576 * 8192)
    srd(a, SRD_D, KA_BWO, 4096 * 1152)
    a(f"""
    v_lshrrev_b32 v{LANE}, 4, v{vL16}
    v_and_b32 v{I16}, 15, v{LANE}
    v_lshrrev_b32 v{GB}, 4, v{LANE}
    s_mul_i32 s{sLW}, s{W}, {LW_WAVE}
    s_add_u32 s{sLW}, s{sLW}, {L_LW}
    s_mul_i32 s{sT}, s{W}, {144 * 8192}
    s_lshl_b32 s{S_TMP}, s{sH}, 8
    s_add_u32 s{sT}, s{sT}, s{S_TMP}
    s_mul_i32 s{sWO}, s{sH}, 147456
    s_mul_i32 s{S_TMP}, s{W}, 288
    s_add_u32 s{sWO}, s{sWO}, s{S_TMP}
    """)
    a(f"""
    v_and_b32 v{T3}, 1, v{GB}
    v_lshrrev_b32 v{T4}, 1, v{I16}
    v_xor_b32 v{T4}, v{T4}, v{T3}
    v_lshlrev_b32 v{T4}, 5, v{T4}
    v_and_b32 v{T5}, 1, v{I16}
    v_lshl_add_u32 v{T4}, v{T5}, 4, v{T4}
    v_lshl_add_u32 v{g0}, v{GB}, 13, v{T4}
    """)
    for q in range(1, 4):
        a(f"v_xor_b32 v{g0 + q}, {(2 * (q >> 1) + 4 * (q & 1)) << 5}, v{g0}")
    a(f"""
    v_lshrrev_b32 v{T3}, 2, v{LANE}
    v_mul_u32_u24 v{T3}, 1152, v{T3}
    v_and_b32 v{T4}, 3, v{LANE}
    v_lshl_add_u32 v{GW}, v{T4}, 4, v{T3}
    v_lshrrev_b32 v{T3}, 1, v{LANE}
    v_mul_u32_u24 v{T3}, 1152, v{T3}
    v_and_b32 v{T4}, 1, v{LANE}
    v_lshl_add_u32 v{GZ}, v{T4}, 4, v{T3}
    """)
    R_, C4, GL = 40, 41, 42
    a(f"""
    v_lshrrev_b32 v{R_}, 2, v{I16}
    v_and_b32 v{C4}, 3, v{I16}
    v_and_b32 v{T3}, 1, v{GB}
    v_lshl_add_u32 v{GL}, v{T3}, 2, v{R_}
    v_and_b32 v{T4}, 1, v{R_}
    v_lshl_add_u32 v{T4}, v{T3}, 2, v{T4}
    v_lshrrev_b32 v{T5}, 1, v{R_}
    v_lshl_add_u32 v{T4}, v{T5}, 3, v{T4}
    v_lshlrev_b32 v{T4}, 8, v{T4}
    v_lshl_add_u32 v{T4}, v{C4}, 3, v{T4}
    v_lshrrev_b32 v{T5}, 1, v{GB}
    v_mul_u32_u24 v{T5}, {LW_WAVE}, v{T5}
    v_add_u32 v{T4}, v{T4}, v{T5}
    v_add_u32 v{T4}, {L_LW}, v{T4}
    s_lshl_b32 s{S_TMP}, s{W}, 1
    """)
    for b in range(2):
        a(f"s_add_u32 s{S_TMP + 1}, s{S_TMP}, {b}")
        a(f"v_xor_b32 v{T5}, s{S_TMP + 1}, v{GL}")
        a(f"v_lshl_add_u32 v{RA + 2 * b}, v{T5}, 5, v{T4}")
        a(f"v_add_u32 v{RA + 2 * b + 1}, {2 * LW_WAVE}, v{RA + 2 * b}")
    a(f"""
    v_lshrrev_b32 v{T3}, 1, v{GB}
    v_lshlrev_b32 v{T3}, 3, v{T3}
    v_and_b32 v{T4}, 1, v{GB}
    v_lshl_add_u32 v{T3}, v{T4}, 1, v{T3}
    v_and_b32 v{T4}, 1, v{R_}
    v_lshl_add_u32 v{T3}, v{T4}, 4, v{T3}
    v_lshrrev_b32 v{T4}, 1, v{R_}
    v_lshl_add_u32 v{T3}, v{T4}, 2, v{T3}
    v_lshlrev_b32 v{T4}, 3, v{C4}
    v_lshl_add_u32 v{RW}, v{T3}, 6, v{T4}
    v_add_u32 v{RW}, s{sLW}, v{RW}
    v_lshl_add_u32 v{RZ}, v{T3}, 5, v{T4}
    v_add_u32 v{RZ}, s{sLW}, v{RZ}
    """)
    jobs = [("x", m, t) for t in range(9) for m in "qkv" if (m, t) not in LDS_TILES]
    pos = [i % 8 for i in range(23)]
    jobs += [("x", m, t) for m, t in LDS_TILES]
    pos += [0, 1, 2, 3]
    jobs += [("w", p, ks) for p in range(2) for ks in range(2)]
    pos += [4, 5, 6, 7]
    jobs += [("z", 0)]
    pos += [8]
    jobs += [("w", p, ks) for p in (2, 3) for ks in range(2)]
    pos += [4, 5, 6, 7]
    jobs += [("z", 1)]
    pos += [8]
    n = len(jobs)
    ndma = [2 if j[0] == "z" else 4 for j in jobs]
    issued = []

    def dma(i):
        j = jobs[i]
        a(f"s_add_u32 m0, s{sLW}, {pos[i] * 4096}")
        if j[0] == "x":
            sb = (SRD_A, SRD_B, SRD_C)[MATS.index(j[1])]
            for q in range(4):
                a(f"s_add_u32 s{S_TMP}, s{sT}, {(16 * j[2] + 4 * q) * 8192}")
                a(f"buffer_load_dwordx4 v{g0 + q}, s[{sb}:{sb + 3}], s{S_TMP} offen {NTR} lds")
                if q < 3:
                    a(f"s_add_u32 m0, m0, 1024")
        elif j[0] == "w":
            for q in range(4):
                a(f"s_add_u32 s{S_TMP}, s{sWO}, {(64 * j[2] + 16 * q) * 1152 + j[1] * 64}")
                a(f"buffer_load_dwordx4 v{GW}, s[{SRD_D}:{SRD_D + 3}], s{S_TMP} offen {NTR} lds")
                if q < 3:
                    a(f"s_add_u32 m0, m0, 1024")
        else:
            for q in range(2):
                a(f"s_add_u32 s{S_TMP}, s{sWO}, {(64 * j[1] + 32 * q) * 1152 + 256}")
                a(f"buffer_load_dwordx4 v{GZ}, s[{SRD_D}:{SRD_D + 3}], s{S_TMP} offen lds")
                if q < 1:
                    a(f"s_add_u32 m0, m0, 1024")
        issued.append(i)

    def outstanding_after(i):
        k = issued.index(i)
        return sum(ndma[x] for x in issued[k + 1:])

    done = -1

    def issue_more(cur):
        for nx in range(n):
            if nx in issued:
                continue
            prev = [x for x in range(nx) if pos[x] == pos[nx]]
            inplace_prev = False
            if prev and max(prev) > done:
                if jobs[nx] == ("z", 0):
                    pass
                break
            if sum(ndma[x] for x in issued if x > done) + ndma[nx] > 56:
                break
            dma(nx)

    a.auto = False
    z0 = jobs.index(("z", 0))
    for i in range(8):
        dma(i)
    dma(z0)
    for i in range(n):
        j = jobs[i]
        shared = j[0] == "x"
        assert i in issued, (i, issued)
        a(f"s_waitcnt vmcnt({min(63, outstanding_after(i))})")
        if shared:
            a("s_barrier")
            done = i - 1
            issue_more(i)
        if j[0] == "x":
            keys = [(j[1], b, j[2]) for b in range(2)]
            adr = lambda b, X: (RA + 2 * b + (X >> 1), pos[i] * 4096 + (X & 1) * 512)
        elif j[0] == "w":
            keys = [("o", 2 * j[1] + b, j[2]) for b in range(2)]
            adr = lambda b, X: (RW, pos[i] * 4096 + (32 * (X >> 1) + (X & 1)) * 64 + b * 32)
        else:
            keys = [("o", 8, j[1])]
            adr = lambda b, X: (RZ, pos[i] * 4096 + (32 * (X >> 1) + (X & 1)) * 32)
        for b, k in enumerate(keys):
            loc = FM[k]
            for X in range(4):
                ad, off = adr(b, X)
                dst = vr(TMP + 8 * b + 2 * X, 2) if loc[0] == "l" else opnd(loc, 2, 2 * X)
                a(f"ds_read_b64_tr_b16 {dst}, v{ad} offset:{off}")
        a("s_waitcnt lgkmcnt(0)")
        if DBGT == 3 and i == 17:
            stamp_max(a, 14, T3, T4, (sLAY, 0))
        if i == GJOB and GATE:
            a(f"s_add_u32 s{S_TMP}, s{sLAY}, s{W}")
            a(f"s_cmp_lg_u32 s{S_TMP}, 0")
            a("s_cbranch_scc1 Lr_nold")
            dbg_add(a, DB_LOADED, T3, T4)
            a.label("Lr_nold")
        if FM[keys[0]][0] == "l":
            if shared:
                a("s_barrier")
            for b, k in enumerate(keys):
                s = FM[k][1]
                a(f"ds_write_b128 v{vLW}, {vr(TMP + 8 * b, 4)} offset:{s * 2048}")
                a(f"ds_write_b128 v{vLW}, {vr(TMP + 8 * b + 4, 4)} offset:{s * 2048 + 1024}")
            a("s_waitcnt lgkmcnt(0)")
        if not shared:
            done = i
            issue_more(i)
        elif i + 1 < n and jobs[i + 1][0] != "x":
            a("s_barrier")
            done = i
            issue_more(i)
    a.auto = True
    a.vmq, a.lgq = [], []


def flag_wait_kv(a, pfx, soff_extra, abort):
    L = a.newlabel(pfx + "fw")
    a(f"s_mov_b32 s{S_SPIN}, 0")
    a(f"s_add_u32 s{S_TMP}, s{sFL}, {soff_extra + 128}")
    a(f"v_lshrrev_b32 v{vT1}, 2, v{vL16}")
    a(f"v_and_b32 v{vT0}, 16, v{vT1}")
    a(f"v_lshlrev_b32 v{vT0}, 3, v{vT0}")
    a(f"v_and_or_b32 v{vT1}, v{vT1}, 12, v{vT0}")
    a.label(L)
    a(f"buffer_load_dword v{vT0}, v{vT1}, s[{SRD_WS}:{SRD_WS + 3}], s{S_TMP} offen sc1")
    spin_check(a, abort)
    a(f"v_cmp_eq_u32 vcc, 0, v{vT0}")
    a(f"s_cbranch_vccnz {L}")


def r_loop(a, w, fast, abort, done, stamps=0):
    sc = "" if fast else " sc1"
    pfx = f"Lr{w}{'f' if fast else 's'}_"
    WS = f"s[{SRD_WS}:{SRD_WS + 3}]"
    HK = (w == 3)
    NST = 10
    tails = []

    def seq(*items):
        for it in items:
            if isinstance(it, (list, tuple)):
                seq(*it)
            elif callable(it):
                it()
            elif it:
                a(it)

    XS = {"A": 0, 7: 1, 8: 2, "bc": 3, "l1": 4, 9: 5, "red": 6, "mst": 7, "q1": 8, "q2": 9, NST: NST}

    PS = {0: 0, "ba0": 1, "ba": 2, 1: 3, "a2": 4, "pb": 5, "a3": 6, "bb": 7, 3: 8, 4: 9, NST: NST}

    def stamp(i):
        if not stamps:
            return
        if stamps == 5:
            if i in PS:
                i = PS[i]
                a(f"s_memtime s[{S_STAMP + 2 * i}:{S_STAMP + 1 + 2 * i}]" if i < NST else "s_memrealtime s[70:71]")
            return
        if stamps in (3, 4):
            if i == 0:
                i = "A"
            if i not in XS:
                return
            i = XS[i]
            ins = "s_memtime" if stamps == 3 else "s_memrealtime"
            a(f"{ins} s[{S_STAMP + 2 * i}:{S_STAMP + 1 + 2 * i}]" if i < NST else "s_memrealtime s[70:71]")
            return
        if isinstance(i, str):
            return
        if stamps == 2 or i == NST:
            a(f"s_memrealtime s[{S_STAMP + 2 * i}:{S_STAMP + 1 + 2 * i}]" if i < NST else "s_memrealtime s[70:71]")
        else:
            a(f"s_memtime s[{S_STAMP + 2 * i}:{S_STAMP + 1 + 2 * i}]")

    def dump_stamps():
        if stamps:
            a(f"s_and_b32 s{S_TMP}, s{sSTEP}, 7")
            a(f"s_cbranch_scc1 {pfx}nodump")
            a.force_wait(lg=0)
            for i in range(NST):
                a(f"v_writelane_b32 v{vT1}, s{S_STAMP + 2 * i}, {i}")
            a(f"v_writelane_b32 v{vT1}, s70, {NST}")
            a(f"v_writelane_b32 v{vT1}, s72, 11")
            a(f"v_writelane_b32 v{vT1}, s73, 12")
            a(f"s_lshl_b32 s{S_TMP}, s{sLAY}, 5")
            a(f"s_add_u32 s{S_TMP}, s{S_TMP}, s{sH}")
            a(f"s_lshl_b32 s{S_TMP}, s{S_TMP}, 6")
            a(f"s_add_u32 s{S_TMP}, s{S_TMP}, s{sSTEP}")
            a(f"s_lshl_b32 s{S_TMP}, s{S_TMP}, 8")
            a(f"s_add_u32 s{S_TMP}, s{S_TMP}, {WS_END + w * 64}")
            a(f"v_lshrrev_b32 v{vT0}, 2, v{vL16}")
            a(f"s_mov_b64 exec, 0x1fff")
            a(f"buffer_store_dword v{vT1}, v{vT0}, {WS}, s{S_TMP} offen")
            a(f"s_mov_b64 exec, -1")
            a("s_waitcnt vmcnt(0)")
            a.label(pfx + "nodump")

    def zero(base, n):
        return [f"v_mov_b64 {vr(base + 2 * i, 2)}, 0" for i in range(n // 2)]

    ACC = {"q": ACCQ, "k": ACCK, "v": ACCV}
    WR = (WR0, WR1)
    ak = [(w + i) & 3 for i in range(4)]
    bk = [4 + x for x in ak]

    def korder(t):
        if t < 4:
            return [("v", 0), ("q", 0), ("q", 1), ("v", 1), ("k", 0), ("k", 1)]
        return [("q", 0), ("k", 0), ("q", 1), ("k", 1)]
    own = [("q", 0), ("q", 1), ("k", 0), ("v", 0), ("k", 1), ("v", 1)]
    oth = bk[1:]
    lt = [t for t in oth if ("q", t) in LDS_TILES]
    rt_ = [t for t in oth if t not in lt]
    qord = lt[:1] + rt_ + [8] + lt[1:] if len(lt) == 2 else lt + rt_ + [8]
    use = [(m, b, ak[0]) for m, b in own] + [(m, b, t) for t in ak[1:] + bk[:1] for m, b in korder(t)]
    use += [("q", b, t) for t in qord for b in range(2)]
    lq = [k for k in use if FM[k][0] == "l"]
    assert len(lq) == 8 and not any(k in lq for k in use[:3])

    def LW(n):
        return lw_read(WR[n % 2], FM[lq[n]][1]) if n < len(lq) else []

    def S(m, b, t, A):
        k = (m, b, t)
        if FM[k][0] == "l":
            n = lq.index(k)
            return [SM(ACC[m] + 4 * b, A, vr(WR[n % 2], 8))] + LW(n + 2)
        return [SM(ACC[m] + 4 * b, A, opnd(FM[k]))]

    def mem_rd(dst, t):
        return f"ds_read_b128 {vr(dst, 4)}, v{vL16} offset:{L_MEMA + t * 1024}"

    def mem_wr(src, t):
        return f"ds_write_b128 v{vL16}, {vr(src, 4)} offset:{L_MEMA + t * 1024}"

    ldA = f"buffer_load_dwordx4 {vr(FA, 4)}, v{vL16}, {WS}, s{sMA} offen sc1"
    ldB = [f"s_add_u32 s{S_TMP}, s{sMA}, 4096", f"buffer_load_dwordx4 {vr(FB, 4)}, v{vL16}, {WS}, s{S_TMP} offen sc1"]
    ldC = f"buffer_load_dwordx4 {vr(FC, 4)}, v{vL16}, {WS}, s{sMC} offen sc1"

    def chk(q):
        return [f"v_max3_u32 v{vT1}, v{q}, v{q + 1}, v{q + 2}", f"v_max_u32 v{vT1}, v{vT1}, v{q + 3}",
                f"v_cmp_eq_u32 vcc, -1, v{vT1}"]

    def late_poll(name, q, ld, young):
        L = pfx + name
        a.force_wait(vm=young)
        seq(chk(q))
        a(f"s_cbranch_vccnz {L}_re")
        wn = list(a.win)
        sn = a.snap()

        def tail():
            a.label(L + "_re")
            a.win = wn
            a.restore(([], []))
            a(f"s_mov_b32 s{S_SPIN}, 0")
            a.label(L + "_lp")
            seq(ld)
            spin_check(a, abort)
            a.force_wait(vm=0)
            seq(chk(q))
            a(f"s_cbranch_vccnz {L}_lp")
            a(f"s_branch {L}_ok")
        tails.append(tail)
        a.label(L + "_ok")
        a.restore(sn)
        a.vmq = a.vmq[len(a.vmq) - young:] if young else []

    def KX(dst, j, tt):
        return f"ds_read_b128 {vr(dst, 4)}, v{vL16} offset:{L_KX + (j * 2 + tt) * 1024}"

    def FR(dst, j):
        return f"ds_read_b128 {vr(dst, 4)}, v{vQR} offset:{j * 64}"

    def MF(acc, A, B, first):
        return f"v_mfma_f32_16x16x32_bf16 {vr(acc, 4)}, {vr(A, 4)}, {vr(B, 4)}, {'0' if first else vr(acc, 4)}"

    def MF16(acc, A, B, first=False):
        return f"v_mfma_f32_16x16x16_bf16 {vr(acc, 4)}, {vr(A, 2)}, {vr(B, 2)}, {'0' if first else vr(acc, 4)}"

    def xe(acc):
        X, Y = acc, acc + 4
        return [f"v_add_f32 v{X}, v{X}, v{X + 2}", f"v_add_f32 v{Y}, v{Y}, v{Y + 2}",
                f"v_add_f32 v{X + 1}, v{X + 1}, v{X + 3}", f"v_add_f32 v{Y + 1}, v{Y + 1}, v{Y + 3}",
                f"v_cvt_pk_bf16_f32 v{X + 2}, v{X}, v{Y}",
                f"v_cvt_pk_bf16_f32 v{X + 3}, v{X + 1}, v{Y + 1}"]

    def kdma(i):
        return lambda: a(f"buffer_load_dwordx4 v{vL16}, {WS}, s{sKF} offen offset:{1024 * i} lds", tag="kdma")

    def flag_store():
        a(f"v_mov_b32 v{vT0}, 1")
        a(f"v_mov_b32 v{vT1}, 0")
        a(f"s_mov_b64 exec, 1")
        a(f"buffer_store_dword v{vT0}, v{vT1}, {WS}, s{sFLP} offen offset:384 sc1")
        a(f"s_mov_b64 exec, -1")

    def flag_check():
        if w != CKW:
            return
        if True:
            if NBF and TOUCH:
                a(f"s_cmp_eq_u32 s{sFOK}, 1")
                a(f"s_cbranch_scc1 {pfx}flok")
            a(f"v_cmp_eq_u32 vcc, 0, v{vT2}")
            if FAR:
                a(f"s_and_b32 s{S_TMP}, vcc_lo, 0xff00")
                a(f"s_cselect_b32 s{S_TMP + 1}, 0, {32 * 8192}")
                a(f"s_cmp_lt_u32 s{sSTEP}, {NSEG - 2}")
                a(f"s_cselect_b32 s{S_TMP + 1}, s{S_TMP + 1}, 0")
                a(f"v_mov_b32 v{vT0}, {L_FAR}")
                a(f"v_mov_b32 v{vT1}, s{S_TMP + 1}")
                a(f"ds_write_b32 v{vT0}, v{vT1}")
                a(f"s_and_b32 s{S_TMP}, vcc_lo, 0xff")
                a(f"s_cbranch_scc1 {pfx}flbad")
            else:
                a(f"s_cbranch_vccnz {pfx}flbad")
            wn2 = list(a.win)
            sn2 = a.snap()

            def flbad():
                a.label(pfx + "flbad")
                a.win = wn2
                a.restore(([], []))
                a(f"s_cmp_eq_u32 s{sSTEP}, {NSEG - 1}")
                a(f"s_cbranch_scc1 {pfx}flok")
                flag_wait_kv(a, pfx, FL_STRIDE, abort)
                a(f"s_branch {pfx}flok")
            tails.append(flbad)
            a.label(pfx + "flok")
            a.restore(sn2)

    seq(ldA)
    flag_wait_kv(a, pfx, 0, abort)
    if w == FLW:
        a(f"s_lshl_b32 s{sFLP}, s{sLAY}, 5")
        a(f"s_add_u32 s{sFLP}, s{sFLP}, s{sH}")
        a(f"s_lshl_b32 s{sFLP}, s{sFLP}, 12")
        a(f"s_add_u32 s{sFLP}, s{sFLP}, {WS_DUMMY}")
    a(f"s_mov_b32 m0, {L_KX + w * 2048}")
    seq(kdma(0), kdma(1))
    if KD0:
        base = [0, 0, 3, 6][w]
        a(f"s_mov_b32 m0, {L_KX + base * 1024}")
        a(f"s_add_u32 s{sKF}, s{sKF}, {(base * 1024 - w * 2048) & 0xffffffff}")
    a(f"s_add_u32 s{sKF}, s{sKF}, {32 * 8192}")
    a(f"s_add_u32 s{sTCH}, s{sTCH}, {(32 * 8192 - (QKV_M if w == TKW else 0)) & 0xffffffff}")
    seq(LW(0), LW(1), zero(ACCQ, 24))
    a.force_wait(vm=0, lg=0)
    head = pfx + "step"
    a.label(head)
    a.auto = False
    if stamps:
        a("s_mov_b32 s73, 0")
    if PD3:
        if w in (1, 2):
            a.force_wait(vm=3)
            seq(chk(FA))
            a(f"s_cbranch_vccz {pfx}aok")
            seq(ldA)
            nops(a, DQ3[w])
            seq(ldA)
        a(f"s_mov_b32 s{S_SPIN}, 0")
        a.label(pfx + "alp")
        a.force_wait(vm=2)
        seq(chk(FA))
        a(f"s_cbranch_vccz {pfx}aok")
        seq(ldA)
        if stamps:
            a("s_add_u32 s73, s73, 1")
        spin_check(a, abort)
        a(f"s_branch {pfx}alp")
    else:
        a.force_wait(vm=3 if (w in (1, 2) and R2E) else 2)
        seq(chk(FA))
        a(f"s_cbranch_vccz {pfx}aok")
        if w in (1, 2) and R2E:
            if stamps:
                a("s_mov_b32 s73, 1")
            seq(ldA)
            a.force_wait(vm=1)
            seq(chk(FA))
            a(f"s_cbranch_vccz {pfx}aok")
        elif w in (0, 3):
            if stamps:
                a("s_mov_b32 s73, 1")
            a.force_wait(vm=1)
            seq(chk(FA))
            a(f"s_cbranch_vccz {pfx}aok")
        else:
            seq(ldA)
            nops(a, DQ2[w])
        if stamps:
            a("s_mov_b32 s73, 2")
        a(f"s_mov_b32 s{S_SPIN}, 0")
        a.label(pfx + "alp")
        seq(ldA)
        spin_check(a, abort)
        a.force_wait(vm=1)
        seq(chk(FA))
        if stamps:
            a("s_add_u32 s73, s73, 1")
        a(f"s_cbranch_vccnz {pfx}alp")
    a.label(pfx + "aok")
    a.auto = True
    a.vmq = [(frozenset(), "pa")] * 3
    a.lgq = []
    stamp(0)
    def kstep(t, A, extra=()):
        ex = list(extra)
        for m, b in korder(t):
            seq(S(m, b, t, A))
            if ex:
                seq(ex.pop(0))
        seq(ex)
    pre_issued = []
    if BEARLY:
        a.auto = False
        seq(mem_wr(FA, ak[0]), ldB)
        a.auto = True
        a.lgq = [(frozenset(), None)]
        a.vmq[-1] = (frozenset(), "pb")
        pre_issued = ["pb"]
        seq([S(m, b, ak[0], FA) for m, b in own[:3]])
    else:
        seq(mem_wr(FA, ak[0]), [S(m, b, ak[0], FA) for m, b in own[:3]])
    stamp("ba0")
    a.barrier(lg=0)
    stamp("ba")
    seq(mem_rd(R0, ak[1]), mem_rd(R1, ak[2]))
    flg = [f"v_lshrrev_b32 v{vT1}, 2, v{vL16}", f"v_and_b32 v{vT0}, 16, v{vT1}", f"v_lshlrev_b32 v{vT0}, 3, v{vT0}",
           f"v_and_or_b32 v{vT1}, v{vT1}, 12, v{vT0}"]
    if FAR:
        flg += [f"v_bfe_u32 v{vT0}, v{vL16}, 7, 1", f"v_mul_u32_u24 v{vT0}, {FL_STRIDE}, v{vT0}", f"v_add_u32 v{vT1}, v{vT1}, v{vT0}"]
    flg += [f"s_add_u32 s{S_TMP}, s{sFL}, {FL_STRIDE + 128}",
            f"v_mov_b32 v{vT2}, 2", f"buffer_load_dword v{vT2}, v{vT1}, {WS}, s{S_TMP} offen sc1"]
    stream = [(m, b, ak[0], FA) for m, b in own[3:]] + [(m, b, ak[1], R0) for m, b in korder(ak[1])] + \
             [(m, b, ak[2], R1) for m, b in korder(ak[2])]
    at = {}
    if not BEARLY:
        at.setdefault(PB0 + STG * w, []).append(("pb", ldB))
    at.setdefault(PC0 + STG * w, []).append(("pc", [ldC]))
    if w == CKW:
        at.setdefault(max(PB0, PC0) + STG * w + 1, []).append(("flg", flg))
    issued = list(pre_issued)
    for n, (m, b, t, A) in enumerate(stream):
        seq(S(m, b, t, A))
        for tg, ins in at.get(n, []):
            a.auto = False
            seq(ins)
            a.auto = True
            a.vmq[-1] = (frozenset([V0 + vT2]) if (tg == "flg" and not NBF) else frozenset(), tg)
            issued.append(tg)
        if n == 2 + FAD:
            a.force_wait(vm=len(issued))
            a.vmq = a.vmq[len(a.vmq) - len(issued):] if issued else []
            seq(mem_rd(FA, ak[3]))
            stamp(1)
    assert "pb" in issued and "pc" in issued
    nyB = len(issued) - 1 - issued.index("pb")
    stamp("a2")
    nyC = len(issued) - 1 - issued.index("pc")
    if BEARLY:
        late_poll("pb", FB, ldB, nyB)
        stamp("pb")
        a(mem_wr(FB, bk[0]), tag="fbw")
        if w == FLW:
            flag_store()
            nyC += 1
        kstep(ak[3], FA)
        stamp("a3")
    else:
        kstep(ak[3], FA)
        stamp("a3")
        late_poll("pb", FB, ldB, nyB)
        stamp("pb")
        a(mem_wr(FB, bk[0]), tag="fbw")
        if w == FLW:
            flag_store()
            nyC += 1
        kstep(bk[0], FB)
    yl = [t for _, t in a.lgq]
    a.barrier(lg=len(yl) - 1 - yl.index("fbw") if "fbw" in yl else None)
    stamp("bb")
    o3 = [t for t in qord if t != 8]
    FR_ = {bk[0]: FB, o3[0]: R0, o3[1]: R1, o3[2]: FA, 8: FC}
    seq([mem_rd(FR_[t], t) for t in o3])
    if BEARLY:
        kstep(bk[0], FB)
    seq(S("v", 0, bk[0], FB), S("v", 1, bk[0], FB))
    stamp(2)
    VXA, VXB = WR1, WR1 + 4
    ldV = [f"buffer_load_dwordx4 {vr(VXA, 4)}, v{vL16}, {WS}, s{sVF} offen",
           f"buffer_load_dwordx4 {vr(VXB, 4)}, v{vL16}, {WS}, s{sVF} offen offset:1024"]
    for t in qord:
        if t == 8:
            late_poll("pc", FC, ldC, nyC)
        seq(S("q", 0, t, FR_[t]), S("q", 1, t, FR_[t]))
    qe, ke = xe(ACCQ), xe(ACCK)
    kord = o3 + [8]
    fl = [None, None] + qe[:4] + [[qe[4], KX(WR0, 0, 0)], [qe[5], KX(WR0 + 4, 0, 1)]]
    nv = 0
    for i in range(VEARLY):
        fl[(w + 4 * i) % 8 if VEARLY > 1 else w] = [fl[(w + 4 * i) % 8 if VEARLY > 1 else w], ldV[i]]
        nv += 1
    for i, (t, b) in enumerate([(t, b) for t in kord for b in range(2)]):
        seq(S("k", b, t, FR_[t]), fl[i])
    stamp(3)
    dv = [t for t in o3] + [8]
    seq(f"ds_write_b32 v{vQW}, v{ACCQ + 2} offset:{2 * ROWS}", f"ds_write_b32 v{vQW}, v{ACCQ + 3} offset:{3 * ROWS}",
        S("v", 0, dv[0], FR_[dv[0]]), S("v", 1, dv[0], FR_[dv[0]]),
        ke,
        f"ds_write_b32 v{vQW}, v{ACCK + 2} offset:0", f"ds_write_b32 v{vQW}, v{ACCK + 3} offset:{ROWS}",
        S("v", 0, dv[1], FR_[dv[1]]), S("v", 1, dv[1], FR_[dv[1]]))
    seq(ldV[nv:])
    if not NBF:
        flag_check()
    a.barrier(lg=0)
    stamp(4)
    SX0, SX1, SMm = ACCQ, ACCQ + 4, ACCK + 4
    F0, F1, F2, F3 = FB, R0, ACCK, R1
    KA, KB = FA, FC
    ve = [f"v_add_f32 v{ACCV}, v{ACCV}, v{ACCV + 2}", f"v_add_f32 v{ACCV + 4}, v{ACCV + 4}, v{ACCV + 6}",
          f"v_add_f32 v{ACCV + 1}, v{ACCV + 1}, v{ACCV + 3}", f"v_add_f32 v{ACCV + 5}, v{ACCV + 5}, v{ACCV + 7}",
          f"v_cvt_pk_bf16_f32 v{ACCV + 2}, v{ACCV}, v{ACCV + 1}",
          f"v_cvt_pk_bf16_f32 v{ACCV + 3}, v{ACCV + 4}, v{ACCV + 5}"]
    def touch():
        if TOUCH and not NBF and w in (TKW, TCW):
            if FAR:
                a(f"v_readfirstlane_b32 s{S_TMP}, v{vT1}")
                a(f"s_add_u32 s{S_TMP}, s{S_TMP}, s{sTCH}")
            a.auto = False
            a(f"v_lshlrev_b32 v{vT0}, 3, v{vL16}")
            a(f"buffer_load_dword v{vT2}, v{vT0}, {WS}, s{S_TMP if FAR else sTCH} offen")
            a.auto = True
        if TOUCH and NBF and w == CKW:
            a.auto = False
            a(f"v_cmp_eq_u32 vcc, 1, v{vT2}")
            a(f"v_lshlrev_b32 v{vT0}, 3, v{vL16}")
            a(f"s_cmp_eq_u64 vcc, -1")
            a(f"s_cselect_b32 s{sFOK}, 1, 0")
            a(f"s_cselect_b64 exec, -1, 0")
            a(f"buffer_load_dword v{vT2}, v{vT0}, {WS}, s{sTCH} offen")
            a(f"s_sub_u32 s{S_TMP}, s{sTCH}, {QKV_M}")
            a(f"buffer_load_dword v{vT2}, v{vT0}, {WS}, s{S_TMP} offen")
            a(f"s_mov_b64 exec, -1")
            a.auto = True
    post = [[S("v", 0, dv[2], FA)], [S("v", 1, dv[2], FA), KX(KA, 1, 0)], [S("v", 0, 8, FC)], [S("v", 1, 8, FC), KX(KB, 1, 1)]]
    post[TPOS].append(touch)
    farrd = []
    if FAR and TOUCH and w in (TKW, TCW):
        farrd = [f"v_mov_b32 v{vT0}, {L_FAR}", f"ds_read_b32 v{vT1}, v{vT0}"]
    seq(FR(F0, 0), FR(F1, 1), FR(F2, 2), FR(F3, 3), farrd, post)
    PK = ACCV + 6
    seq(MF(SX0, WR0, F0, True), MF(SX1, WR0 + 4, F0, True), MF(SMm, F0, F0, True),
        KX(WR0, 2, 0), KX(WR0 + 4, 2, 1),
        MF(SX0, KA, F1, False), f"v_lshrrev_b32 v{vT1}, 1, v{vL16}", f"v_lshrrev_b32 v{vT0}, 9, v{vL16}",
        MF(SX1, KB, F1, False), f"v_lshl_add_u32 v{vT0}, v{vT0}, 5, v{vT1}", ve[0],
        MF(SMm, F1, F1, False), ve[1], ve[2],
        KX(KA, 3, 0), KX(KB, 3, 1),
        MF(SX0, WR0, F2, False), ve[3], ve[4],
        MF(SX1, WR0 + 4, F2, False), ve[5],
        f"ds_read_b64 {vr(PK, 2)}, v{vT0} offset:{L_F + 4 * w * ROWS}",
        MF(SMm, F2, F2, False),
        f"s_add_u32 s{S_TMP}, s{sKM}, {2048 + w * 512}",
        f"buffer_store_dwordx2 {vr(ACCV + 2, 2)}, v{vT1}, {WS}, s{S_TMP} offen sc1",
        MF(SX0, KA, F3, False), MF(SX1, KB, F3, False), MF(SMm, F3, F3, False),
        f"s_add_u32 s{S_TMP}, s{sKM}, {w * 512}",
        f"buffer_store_dwordx2 {vr(PK, 2)}, v{vT1}, {WS}, s{S_TMP} offen sc1")
    stamp(5)
    last = pfx + "last"
    seq(f"s_cmp_eq_u32 s{sSTEP}, {NSEG - 1}", f"s_cbranch_scc1 {last}")
    MX, T1 = vT0, vT1
    MP = ACCV
    P4, PB, OX, OY, LQ, ONES = Q[0], Q[1], Q[2], Q[3], Q[4], ACCK
    lds_seq = [("o", 4, 0), ("o", 4, 1), ("o", 5, 0), ("o", 5, 1), ("o", 6, 0), ("o", 6, 1), ("o", 7, 0), ("o", 7, 1), ("o", 8, 1)]
    early = (w == 0 and PAPOS >= 0)
    ring = [WR0, WR1] if early else [WR0, WR1, ACCQ, ACCK]
    bufof = {k: ring[i % len(ring)] for i, k in enumerate(lds_seq)}

    def wo_rd(i):
        return lw_read(bufof[lds_seq[i]], FM[lds_seq[i]][1])

    vals = list(range(SX0, SX0 + 8)) + [SMm, SMm + 1]
    fm = [f"v_fma_f32 v{r}, v{r}, s{sCEXP}, -v{MP}" for r in vals]
    ex = [f"v_exp_f32 v{r}, v{r}" for r in vals]
    X5 = ACCV + 4
    seq(wo_rd(0),
        f"v_mov_b64 {vr(ONES, 2)}, s[{sONES}:{sONES + 1}]", f"v_mov_b64 {vr(ONES + 2, 2)}, s[{sONES}:{sONES + 1}]",
        f"v_mov_b32 v{PB + 1}, 0", f"v_mov_b32 v{PB + 2}, 0",
        f"v_max3_f32 v{MX}, v{SX0}, v{SX0 + 1}, v{SX0 + 2}",
        f"v_max3_f32 v{MX}, v{MX}, v{SX0 + 3}, v{SX0 + 4}",
        f"v_max3_f32 v{MX}, v{MX}, v{SX0 + 5}, v{SX0 + 6}",
        f"v_max3_f32 v{MX}, v{MX}, v{SX0 + 7}, v{SMm}",
        f"v_max_f32 v{MX}, v{MX}, v{SMm + 1}",
        f"v_mov_b32 v{T1}, v{MX}",
        zero(X5, 4),
        f"v_permlane32_swap_b32 v{MX}, v{T1}",
        f"v_max_f32 v{MX}, v{MX}, v{T1}",
        f"v_mov_b32 v{T1}, v{MX}",
        "s_nop 1",
        f"v_permlane16_swap_b32 v{MX}, v{T1}",
        f"v_max_f32 v{MX}, v{MX}, v{T1}",
        f"v_mul_f32 v{MP}, s{sCEXP}, v{MX}",
        fm[0], fm[1], fm[2], fm[3], ex[0], ex[1], fm[4], fm[5], ex[2], ex[3],
        f"v_cvt_pk_bf16_f32 v{P4}, v{SX0}, v{SX0 + 1}", fm[6], fm[7], ex[4], ex[5],
        f"v_cvt_pk_bf16_f32 v{P4 + 1}, v{SX0 + 2}, v{SX0 + 3}", fm[8], fm[9], ex[6], ex[7],
        f"v_cvt_pk_bf16_f32 v{P4 + 2}, v{SX0 + 4}, v{SX0 + 5}", ex[8], ex[9],
        f"v_cvt_pk_bf16_f32 v{P4 + 3}, v{SX0 + 6}, v{SX0 + 7}",
        f"v_cvt_pk_bf16_f32 v{PB}, v{SMm}, v{SMm + 1}",
        f"v_cvt_pk_bf16_f32 v{PB + 3}, v{SMm}, v{SMm + 1}",
        MF(LQ, ONES, P4, True), zero(SX0, 2), zero(SX0 + 2, 2),
        MF(OX, VXA, P4, True), zero(SMm, 2), zero(SMm + 2, 2),
        MF(OY, VXB, P4, True), wo_rd(1),
        MF16(LQ, ONES, PB),
        MF16(OX, ACCV + 2, PB), zero(ONES, 4),
        MF16(OY, ACCV + 2, PB + 2), zero(P4, 4), zero(Q[1], 4),
        f"v_rcp_f32 v{MX}, v{LQ}", zero(Q[4], 4))
    stamp(6)
    OP = ACCQ + 4
    for i in range(4):
        a(f"v_mul_f32 v{OX + i}, v{MX}, v{OX + i}")
        a(f"v_mul_f32 v{OY + i}, v{MX}, v{OY + i}")
        a(f"v_cvt_pk_bf16_f32 v{OP + i}, v{OX + i}, v{OY + i}")
    a(f"ds_write_b128 v{vOW}, {vr(OP, 4)}")
    seq(zero(ACCV, 4))
    if NBF:
        flag_check()
    TA = [ACCQ, ACCK + 4, ACCK, ACCQ + 4, Q[0], Q[1], Q[4], ACCV + 4, ACCV]
    a.barrier(lg=0)
    OA0, OA1 = Q[2], Q[3]
    a(f"ds_read_b128 {vr(OA0, 4)}, v{vOR} offset:0")
    a(f"ds_read_b128 {vr(OA1, 4)}, v{vOR} offset:128")
    seq(zero(ACCQ + 4, 4))
    nkd = ([0, 3, 3, 2] if KD0 else [2, 2, 2, 2])[w]
    kd = [kdma(i) for i in range(nkd)]
    if not KPOS:
        seq(kd)
        kd = []

    stamp(7)
    ST = {0: TA[0], 1: TA[4], 2: TA[8]}

    def epi(tau):
        acc = TA[tau]
        dst = ST[tau // 4] + tau % 4
        return [f"v_add_f32 v{acc}, v{acc}, v{acc + 2}", f"v_add_f32 v{acc + 1}, v{acc + 1}, v{acc + 3}",
                f"v_cvt_pk_bf16_f32 v{dst}, v{acc}, v{acc + 1}"]

    def wS(tau, ks):
        k = ("o", tau, ks)
        B = vr(bufof[k], 8) if FM[k][0] == "l" else opnd(FM[k])
        return SM(TA[tau], (OA0, OA1)[ks], B)

    def tag(r):
        return f"v_and_or_b32 v{r}, v{r}, -2, s{sPH}"
    e = [epi(t) for t in range(4)]
    seq(wS(0, 0), wS(0, 1), wS(1, 0), wS(1, 1), e[0][0], wS(2, 0), e[0][1], wS(2, 1), e[0][2], wS(3, 0), e[1][0], wS(3, 1), e[1][1],
        wS(4, 0), e[1][2], wS(4, 1), e[2], e[3], tag(ST[0] + 3),
        f"buffer_store_dwordx4 {vr(ST[0], 4)}, v{vL16}, {WS}, s{sPW} offen{sc}")
    stamp(8)
    nxt = 2 + len(ring)
    seq([wo_rd(i) for i in range(2, nxt)])
    order = [(tau, ks) for tau in range(5, 9) for ks in range(2)]
    LA = [ACCQ, ACCQ + 4, ACCK, ACCK + 4]
    ldLA = [f"buffer_load_dwordx4 {vr(LA[i], 4)}, v{vRLD}, {WS}, s{sPR + i} offen sc1" for i in range(4)]
    for idx, (tau, ks) in enumerate(order):
        if early and idx == PAPOS:
            a.auto = False
            nops(a, DP1[0])
            seq(ldLA)
            stamp("l1")
            a.auto = True
        a(wS(tau, ks))
        k = ("o", tau, ks)
        if FM[k][0] == "l" and nxt < len(lds_seq):
            seq(wo_rd(nxt))
            nxt += 1
    stamp("bc")
    epiB = [epi(tau) for tau in range(4, 8)] + [tag(ST[1] + 3), f"s_add_u32 s{S_TMP}, s{sPW}, 4096",
                                                f"buffer_store_dwordx4 {vr(ST[1], 4)}, v{vL16}, {WS}, s{S_TMP} offen{sc}"]
    epiC = [epi(8), tag(ST[2]), f"v_lshrrev_b32 v{vT0}, 2, v{vL16}",
            f"buffer_store_dword v{ST[2]}, v{vT0}, {WS}, s{sPWC} offen{sc}"] + kd
    nkl = len(kd)
    adv = [f"s_xor_b32 s{r}, s{r}, {MEMB_SLOT}" for r in (sMA, sMC)]
    advE = [f"s_add_u32 s{sSTEP}, s{sSTEP}, 1", f"s_add_u32 s{sVF}, s{sVF}, {32 * 8192}",
            f"s_add_u32 s{sKF}, s{sKF}, {32 * 8192}", f"s_add_u32 s{sKM}, s{sKM}, {0 if env('KMDUMMY') else 32 * KM_UNIT}"]
    if w == FLW:
        advE += [f"s_mov_b32 s{sFLP}, s{sFL}"]
    advE += [f"s_add_u32 s{sTCH}, s{sTCH}, {32 * 8192}"]
    advE += [f"s_add_u32 s{sFL}, s{sFL}, {FL_STRIDE}"]
    advL = [f"s_xor_b32 s{sPH}, s{sPH}, 1"] + [f"s_xor_b32 s{r}, s{r}, {MEMB_SLOT}" for r in ([] if HK else [sMEMW, sMEMZ])]
    if not HK:
        u = w
        LB = [Q[1], Q[2], Q[3], Q[4]]
        SEL, D = Q[7], Q[8]
        wide = u < 2

        def loads(L):
            if wide:
                return [f"buffer_load_dwordx4 {vr(L[i], 4)}, v{vRLD}, {WS}, s{sPR + i} offen sc1" for i in range(4)]
            return [f"buffer_load_dword v{L[i]}, v{vRLD}, {WS}, s{sPR + i} offen sc1" for i in range(4)]

        def M(i):
            return f"s[{sM + 2 * i}:{sM + 2 * i + 1}]"

        def check(L, extra):
            for i in range(4):
                a.force_wait(vm=3 - i + extra)
                a(MF(D, L[i], SEL, i == 0) if wide else MF16(D, L[i], SEL, i == 0))
                a(f"v_and_b32 v{vT1}, 1, v{L[i] + (3 if wide else 0)}")
                a(f"v_cmp_ne_u32 {M(i)}, s{sPH}, v{vT1}")
                if i == 2:
                    a(f"s_or_b64 {M(0)}, {M(0)}, {M(1)}") if False else None
            a(f"s_or_b64 vcc, {M(0)}, {M(1)}")
            a(f"s_or_b64 vcc, vcc, {M(2)}")
            a(f"s_or_b64 vcc, vcc, {M(3)}")

        def sel_build(L):
            a(f"v_add_u32 v{vT1}, {L_SEL}, v{vL16}")
            if wide:
                a(f"ds_read_b128 {vr(SEL, 4)}, v{vT1}")
            else:
                a(f"ds_read_b32 v{SEL}, v{vT1}")
                a(f"v_mov_b32 v{SEL + 1}, 0")
                for i in range(4):
                    a(f"v_mov_b32 v{L[i] + 1}, 0")
        if u == 0 and early:
            seq(epiB, epiC)
            a.auto = False
            y = 2 + nkl
        if u == 0:
            if not early:
                seq(epiB, epiC) if DP1[0] else None
                a.auto = False
                nops(a, DP1[0])
                seq(loads(LA))
                stamp("l1")
                y = 0
                if not DP1[0]:
                    a.auto = True
                    seq(epiB, epiC)
                    a.auto = False
                    y = 2 + nkl
            sel_build(None)
            nops(a, DP2)
            seq(loads(LB))
            seq(advE, LW(0))
            a("s_waitcnt lgkmcnt(2)")
            stamp(9)
            if stamps:
                a("s_mov_b32 s72, 0")
            check(LA, 4 + y)
            a(f"s_cbranch_scc0 {pfx}red")
            a(f"s_mov_b32 s{S_SPIN}, 0")
            a.label(pfx + "p1")
            if stamps:
                a("s_add_u32 s72, s72, 1")
            seq(loads(LA))
            check(LB, 4)
            a(f"s_cbranch_scc0 {pfx}red")
            if stamps:
                a("s_add_u32 s72, s72, 1")
            seq(loads(LB))
            spin_check(a, abort)
            check(LA, 4)
            a(f"s_cbranch_scc1 {pfx}p1")
        else:
            seq(epiB, epiC)
            a.auto = False
            sel_build(LB)
            seq(advE, LW(0), zero(ACCQ, 24))
            nops(a, DP1[u])
            seq(loads(LB))
            stamp("l1")
            a("s_waitcnt lgkmcnt(0)")
            stamp(9)
            if stamps:
                a("s_mov_b32 s72, 0")
            check(LB, 0)
            a(f"s_cbranch_scc0 {pfx}red")
            a(f"s_mov_b32 s{S_SPIN}, 0")
            a.label(pfx + "p1")
            if stamps:
                a("s_add_u32 s72, s72, 1")
            for i in range(4):
                a(f"s_mov_b64 exec, {M(i)}")
                a(loads(LB)[i])
            a("s_mov_b64 exec, -1")
            spin_check(a, abort)
            check(LB, 0)
            a(f"s_cbranch_scc1 {pfx}p1")
        a.label(pfx + "red")
        stamp("red")
        if u > 0:
            seq(adv, ldA)
        a.auto = True
        a.vmq, a.lgq = [], []
        seq(f"v_permlane16_swap_b32 v{D}, v{D + 2}", f"v_permlane16_swap_b32 v{D + 1}, v{D + 3}",
            f"s_mov_b64 exec, s[{sMASK}:{sMASK + 1}]",
            f"v_add_f32 v{D}, v{D}, v{D + 2}", f"v_add_f32 v{D + 1}, v{D + 1}, v{D + 3}",
            f"v_cvt_pk_bf16_f32 v{D}, v{D}, v{D + 1}", f"v_min_u32 v{D}, s{sMAXD}, v{D}",
            f"buffer_store_dword v{D}, v{vRST}, {WS}, s{sMEMW} offen{sc}",
            f"v_mov_b32 v{D + 1}, -1",
            f"buffer_store_dword v{D + 1}, v{vRST}, {WS}, s{sMEMZ} offen{sc}",
            f"s_mov_b64 exec, -1")
        stamp("mst")
        a.auto = False
        if u == 0:
            seq(adv, advL)
            nops(a, DQ1[0])
            seq(ldA)
            stamp("q1")
            a("s_waitcnt vmcnt(3)")
            seq(LW(1), zero(ACCQ, 24))
            nops(a, DQ2[w])
            seq(ldA)
            stamp("q2")
            nops(a, DQ3[w])
            seq(ldA)
        else:
            if R2E:
                seq(ldA)
            seq(advL, LW(1))
    else:
        seq(epiB, epiC)
        a.auto = False
        seq(adv, advE, advL)
        trace(a, vT0, vT1, True)
        if DBGT:
            a(f"s_mul_i32 s{S_TMP + 1}, s{sLAY}, {16 if DBGT != 3 else 24}")
            a(f"s_add_u32 s{S_TMP + 1}, s{S_TMP + 1}, 20")
            stamp_max(a, f"s{S_TMP + 1}", vT0, vT1, (sSTEP, 1))
            a(f"s_mul_i32 s{S_TMP + 1}, s{sLAY}, 20")
            a(f"s_add_u32 s{S_TMP + 1}, s{S_TMP + 1}, 24")
            stamp_max(a, f"s{S_TMP + 1}", vT0, vT1, (sSTEP, 63))
        seq(LW(0), LW(1), zero(ACCQ, 24))
        if HKSL:
            a(f"s_sleep {HKSL}")
        nops(a, DQ1[w])
        seq(ldA)
        stamp("q1")
        nops(a, DQ2[w])
        seq(ldA)
        stamp("q2")
        nops(a, DQ3[w])
        seq(ldA)
    a("s_waitcnt lgkmcnt(0)")
    stamp(NST)
    dump_stamps()
    a.auto = True
    a.restore(([], []))
    a(f"s_branch {head}")
    for t in tails:
        t()
    a.restore(([], []))
    a.label(last)
    a.force_wait(vm=0, lg=0)
    a.I("s_barrier")
    if w != FLW:
        a(f"s_branch {done}")
    else:
        a(f"s_mov_b32 s{sFLP}, s{sFL}")
        flag_store()
        a(f"s_branch {done}")
```

```python
import sys, os
from common import *
if os.environ.get('RV', '2') == '2':
    import role_r2 as R
else:
    import role_r as R
import pool, role_t

MAIN = KNAME + "_kernel"
SHIFT = int(os.environ.get("SHIFT", "1"))
WARM = int(os.environ.get("WARM", "1"))
FREERUN = int(os.environ.get("FREERUN", "0"))
INIT = "init_kernel"
TA3 = os.environ.get("TA3", "1") == "1"
if TA3:
    ROLE_MAP = {2: [("W", 24), ("P", 8)], 3: [("W", 12), ("P", 20)], 4: [("A", 16), ("O", 3), ("P", 13)],
                5: [("A", 16), ("O", 3), ("P", 13)], 6: [("T", 11), ("P", 21)], 7: [("T", 11), ("P", 21)]}
else:
    ROLE_MAP = {2: [("W", 24), ("P", 8)], 3: [("W", 12), ("P", 20)], 4: [("A", 16), ("O", 5), ("P", 11)],
                5: [("A", 16), ("O", 5), ("P", 11)], 6: [("T", 8), ("P", 23)], 7: [("T", 8), ("P", 23)]}


def kd(name, vgpr, acc, sgpr=102):
    return f""".p2align 6
.amdhsa_kernel {name}
  .amdhsa_next_free_vgpr {vgpr}
  .amdhsa_next_free_sgpr {sgpr}
  .amdhsa_accum_offset {acc}
  .amdhsa_group_segment_fixed_size 0
  .amdhsa_kernarg_size 104
  .amdhsa_user_sgpr_count 2
  .amdhsa_user_sgpr_kernarg_segment_ptr 1
  .amdhsa_system_sgpr_workgroup_id_x 1
.end_amdhsa_kernel
"""


def pool_init(a):
    WS = f"s[{SRD_WS}:{SRD_WS + 3}]"
    Q_ = 6
    ZPAIR = 6 if pool.AO3 else 9
    ZP = 6 if pool.AO3 else 9
    if WARM:
        srd(a, SRD_A, KA_WQKV, 576 * 3456)
        srd(a, SRD_B, KA_WO, 576 * 1152)
        a(f"s_sub_u32 s41, 191, s{Q_}")
        a(f"s_lshl_b32 s41, s41, 15")
        a(f"v_lshlrev_b32 v254, 7, v0")
        a(f"buffer_load_dword v255, v254, s[{SRD_A}:{SRD_A + 3}], s41 offen")
        a(f"s_sub_u32 s41, s41, {61 * 32768}")
        a(f"s_cmp_lt_u32 s41, {21 * 32768}")
        a(f"s_cselect_b32 s41, s41, 0x7f000000")
        a(f"buffer_load_dword v255, v254, s[{SRD_B}:{SRD_B + 3}], s41 offen")
        if WARM & 2:
            for ka in (KA_WQ, KA_WK, KA_WV, KA_BWO):
                srd(a, SRD_A, ka, 576 * 8192)
                a(f"s_mul_i32 s41, s{Q_}, {192 * 128}")
                a("s_mov_b64 exec, s[42:43]") if False else None
                a(f"v_cmp_gt_u32 vcc, 192, v0")
                a(f"v_cndmask_b32 v253, v252, v254, vcc") if False else None
                a(f"buffer_load_dword v255, v254, s[{SRD_A}:{SRD_A + 3}], s41 offen")
        a.vmq = []
    a(f"s_cmp_ge_u32 s{Q_}, {N_POOL}")
    a("s_cbranch_scc1 Li_end")
    if PRE and SHIFT:
        a(f"s_sub_u32 s41, s{Q_}, 64")
        a(f"s_cmp_lt_u32 s41, 64")
        a("s_cbranch_scc1 Li_end")
        a.label("Li_body")
        a.restore(([], []))
    a(f"""
    v_lshlrev_b32 v7, 4, v0
    v_mov_b32 v12, 0
    v_mov_b32 v13, 0
    v_mov_b32 v14, 0
    v_mov_b32 v15, 0
    s_cmp_ge_u32 s{Q_}, 64
    s_cbranch_scc1 Li_rest
    """)
    srd(a, SRD_A, KA_X, 2048 * 1152)
    a(f"""
    v_and_b32 v1, 31, v0
    v_lshrrev_b32 v2, 5, v0
    v_mul_u32_u24 v3, 1152, v1
    v_mul_u32_u24 v5, 144, v2
    v_add_u32 v3, v3, v5
    s_mul_i32 s41, s{Q_}, {32 * 1152}
    """)
    for i in range(9):
        a(f"buffer_load_dwordx4 {vr(64 + 4 * i, 4)}, v3, s[{SRD_A}:{SRD_A + 3}], s41 offen offset:{16 * i}")
    a(f"""
    v_mul_u32_u24 v4, {9 * 512}, v2
    v_lshl_add_u32 v4, v1, 4, v4
    s_mul_i32 s41, s{Q_}, {X_SEG}
    s_add_u32 s41, s41, {WS_X}
    s_mul_i32 s42, s{Q_}, {ST_SEG}
    s_add_u32 s42, s42, {WS_ST}
    s_add_u32 s43, s42, 2048
    s_add_u32 s44, s42, {ST_BYTES + ZP * 512}
    v_mov_b32 v60, 0
    v_mov_b32 v61, 0
    """)
    for i in range(9):
        if i == 8:
            a("v_add_u32 v4, 4096, v4")
        a(f"buffer_store_dwordx4 {vr(64 + 4 * i, 4)}, v4, {WS}, s41 offen offset:{512 * (i % 8)} sc1")
    a(f"buffer_store_dwordx4 v[12:15], v7, {WS}, s43 offen sc1")
    a(f"v_cmp_gt_u32 vcc, {(12 - ZP) * 32}, v0")
    a("s_and_saveexec_b64 s[46:47], vcc")
    a("s_cbranch_execz Li_z1")
    a(f"buffer_store_dwordx4 v[12:15], v7, {WS}, s44 offen sc1")
    a.label("Li_z1")
    a("s_mov_b64 exec, s[46:47]")
    a("v_mov_b32 v62, 0x3f803f80")
    for r in range(64, 100):
        a(f"v_dot2c_f32_bf16 v60, v{r}, v62")
        a(f"v_dot2c_f32_bf16 v61, v{r}, v{r}")
    a.nop(4)
    a(f"""
    v_lshrrev_b32 v5, 1, v2
    v_lshlrev_b32 v5, 9, v5
    v_lshl_add_u32 v5, v1, 4, v5
    v_and_b32 v6, 1, v2
    v_lshl_add_u32 v5, v6, 3, v5
    buffer_store_dwordx2 v[60:61], v5, {WS}, s42 offen sc1
    s_branch Li_flags
    Li_rest:
    """)
    a.restore(([], []))
    a(f"""
    s_cmp_ge_u32 s{Q_}, 128
    s_cbranch_scc1 Li_pre
    s_sub_u32 s41, s{Q_}, 64
    s_mul_i32 s41, s41, {ST_SEG}
    s_add_u32 s41, s41, {WS_ST + 3 * ST_BYTES + ZP * 512}
    v_cmp_gt_u32 vcc, {(12 - ZP) * 32}, v0
    s_and_saveexec_b64 s[42:43], vcc
    s_cbranch_execz Li_rest2
    buffer_store_dwordx4 v[12:15], v7, {WS}, s41 offen sc1
    Li_rest2:
    s_mov_b64 exec, s[42:43]
    """)
    if PRE:
        srd(a, SRD_A, KA_OUT, 2048 * 1152)
        a(f"s_sub_u32 s44, s{Q_}, 64")
        a(f"s_mul_i32 s45, s44, {X_SEG}")
        a(f"s_add_u32 s46, s45, {WS_OA + X_BYTES}")
        for i in range(9):
            a(f"buffer_store_dwordx4 v[12:15], v7, {WS}, s46 offen sc1")
            if PRE & 2:
                a(f"buffer_store_dwordx4 v[12:15], v7, s[{SRD_A}:{SRD_A + 3}], s45 offen sc1")
            if i < 8:
                a(f"s_add_u32 s46, s46, 4096")
                a(f"s_add_u32 s45, s45, 4096")
        a(f"s_mul_i32 s45, s44, {ST_SEG}")
        a(f"s_add_u32 s45, s45, {WS_ST + 2 * ST_BYTES}")
        a(f"buffer_store_dwordx4 v[12:15], v7, {WS}, s45 offen sc1")
        a(f"s_add_u32 s46, s45, 4096")
        a(f"s_add_u32 s45, s45, {ST_BYTES}")
        a(f"buffer_store_dwordx4 v[12:15], v7, {WS}, s45 offen sc1")
        a("v_cmp_gt_u32 vcc, 128, v0")
        a("s_and_saveexec_b64 s[42:43], vcc")
        a("s_cbranch_execz Li_rest3")
        a(f"buffer_store_dwordx4 v[12:15], v7, {WS}, s46 offen sc1")
        a.label("Li_rest3")
        a("s_mov_b64 exec, s[42:43]")
    a("s_branch Li_flags")
    a.label("Li_pre")
    a.restore(([], []))
    if PRE:
        a(f"s_sub_u32 s44, s{Q_}, 128")
        a(f"s_mul_i32 s45, s44, {X_SEG}")
        a(f"s_add_u32 s45, s45, {WS_OA}")
        for i in range(9):
            a(f"buffer_store_dwordx4 v[12:15], v7, {WS}, s45 offen sc1")
            a(f"s_add_u32 s45, s45, 4096") if i < 8 else None
        a(f"s_mul_i32 s45, s44, {ST_SEG}")
        a(f"s_add_u32 s45, s45, {WS_ST + ST_BYTES}")
        a(f"v_cmp_gt_u32 vcc, {ZPAIR * 32}, v0")
        a("s_and_saveexec_b64 s[46:47], vcc")
        a("s_cbranch_execz Li_z0")
        a(f"buffer_store_dwordx4 v[12:15], v7, {WS}, s45 offen sc1")
        a.label("Li_z0")
        a("s_mov_b64 exec, s[46:47]")
        a(f"s_cmp_ge_u32 s{Q_}, 136")
        a("s_cbranch_scc1 Li_nofl")
    a(f"""
    Li_flags:
    """)
    a.restore(([], []))
    a(f"""
    v_cmp_gt_u32 vcc, 96, v0
    s_cmp_lt_u32 s{Q_}, 64
    s_cselect_b64 s[42:43], -1, 0
    s_and_b64 vcc, vcc, s[42:43]
    s_cmp_lt_u32 s{Q_}, 128
    s_cselect_b32 s44, {FREERUN}, 0
    v_mov_b32 v12, s44
    v_mov_b32 v13, s44
    v_mov_b32 v14, s44
    v_mov_b32 v15, s44
    v_mov_b32 v9, 1
    v_cndmask_b32 v8, v12, v9, vcc
    v_mov_b32 v9, v8
    v_mov_b32 v10, v8
    v_mov_b32 v11, v8
    s_mul_i32 s41, s{Q_}, {FL_STRIDE}
    s_sub_u32 s42, s{Q_}, 128
    s_lshl_b32 s42, s42, 12
    s_add_u32 s42, s42, {WS_ZERO}
    s_cmp_ge_u32 s{Q_}, 128
    s_cselect_b32 s41, s42, s41
    buffer_store_dwordx4 v[8:11], v7, {WS}, s41 offen sc1
    s_cbranch_scc1 Li_nofl
    """)
    for i in range(1, 6):
        a(f"s_add_u32 s41, s41, 4096")
        if i == 5:
            a("v_cmp_gt_u32 vcc, 128, v0")
            a("s_and_saveexec_b64 s[42:43], vcc")
            a("s_cbranch_execz Li_fl5")
        a(f"buffer_store_dwordx4 v[12:15], v7, {WS}, s41 offen sc1")
    a("Li_fl5:")
    a("s_mov_b64 exec, s[42:43]")
    a("Li_nofl:")
    trace6(a, 60, 61)
    a.force_wait(vm=0)
    a("s_barrier")
    trace6(a, 60, 61)
    a(f"s_cmp_lg_u32 s{S_WAVE}, 0")
    a("s_cbranch_scc1 Li_cnt")
    a(f"s_sub_u32 s41, s{Q_}, 64")
    a(f"s_cmp_lt_u32 s41, 64")
    a("s_cbranch_scc1 Li_l1")
    dbg_add(a, DB_POOLA, 2, 3)
    a("s_branch Li_cnt")
    a.label("Li_l1")
    dbg_add(a, DB_POOL, 2, 3)
    a.label("Li_cnt")
    if PRE and SHIFT:
        a(f"s_cmp_lt_u32 s{Q_}, 128")
        a("s_cbranch_scc1 Li_end")
        a(f"s_sub_u32 s{Q_}, s{Q_}, 64")
        a("s_branch Li_body")
    a.label("Li_end")
    trace6(a, 60, 61)
    a.restore(([], []))


def gen_main(a, stamps=0, dbg_roles=None):
    WS = f"s[{SRD_WS}:{SRD_WS + 3}]"
    a.text(f".globl {MAIN}\n.p2align 8\n.type {MAIN},@function")
    a.label(MAIN)
    a.reset_window()
    sX, sTK = 3, 4
    DBG = f"s[{S_DBG}:{S_DBG + 1}]"
    a("s_cmp_ge_u32 s2, 256")
    a("s_cbranch_scc1 L_exit")
    srd(a, SRD_WS, KA_WS, WS_BYTES)
    a(f"""
    s_load_dwordx2 s[{S_DBG}:{S_DBG + 1}], s[0:1], {KA_DBG}
    v_lshrrev_b32 v1, 6, v0
    s_getreg_b32 s{sX}, hwreg(HW_REG_XCC_ID)
    v_readfirstlane_b32 s{S_WAVE}, v1
    s_and_b32 s{sX}, s{sX}, {6 if os.environ.get('FAKEX') else 7}
    s_and_b32 s{S_TMP}, s{sX}, 1
    s_lshl_b32 s{S_TMP}, s{S_TMP}, 7
    s_lshl_b32 s{S_TMP + 1}, s{sX}, 1
    s_and_b32 s{S_TMP + 1}, s{S_TMP + 1}, 12
    s_add_u32 s{S_TMP}, s{S_TMP}, s{S_TMP + 1}
    v_mov_b32 v2, 0
    v_mov_b32 v3, 1
    v_mov_b32 v4, s{S_TMP}
    s_mov_b32 s{R.sSTEP}, 0
    s_waitcnt lgkmcnt(0)
    s_cmp_lg_u32 s{S_WAVE}, 0
    s_cbranch_scc1 L_tk_wait
    s_mov_b64 exec, 1
    global_atomic_add v3, v4, v3, {DBG} sc0
    v_readfirstlane_b32 s{sTK}, v3
    s_cmp_lt_u32 s{sTK}, 32
    s_cbranch_scc1 L_tk_have
    """)
    a(f"""
    v_mov_b32 v3, 1
    v_mov_b32 v4, {DB_HOMELESS}
    global_atomic_add v3, v4, v3, {DBG} sc0
    v_readfirstlane_b32 s5, v3
    s_mov_b64 exec, 0xff
    v_and_b32 v4, 1, v0
    v_lshlrev_b32 v4, 7, v4
    v_lshlrev_b32 v5, 1, v0
    v_and_or_b32 v4, v5, 12, v4
    s_mov_b32 s{S_SPIN}, 0
    L_hl_poll:
    global_load_dword v5, v4, {DBG} sc1
    """)
    spin_check(a, "L_abort")
    a("s_mov_b32 s6, 0")
    for i in range(8):
        a(f"v_readlane_b32 s{40 + i}, v5, {i}")
        a(f"s_add_u32 s6, s6, s{40 + i}")
    a(f"""
    s_cmp_lt_u32 s6, 256
    s_cbranch_scc1 L_hl_poll
    s_mov_b32 s{sX}, 0
    s_mov_b32 s{sTK}, 0
    """)
    for i in range(7, -1, -1):
        a(f"""
        s_min_u32 s6, s{40 + i}, 32
        s_sub_u32 s7, 32, s6
        s_cmp_lt_u32 s5, s7
        s_cselect_b32 s{sX}, {i}, s{sX}
        s_add_u32 s6, s6, s5
        s_cmp_lt_u32 s5, s7
        s_cselect_b32 s{sTK}, s6, s{sTK}
        s_sub_u32 s5, s5, s7
        """)
    a(f"""
    L_tk_have:
    s_lshl_b32 s5, s{sX}, 8
    s_or_b32 s5, s5, s{sTK}
    v_mov_b32 v3, s5
    s_mov_b64 exec, 1
    ds_write_b32 v2, v3
    s_mov_b64 exec, -1
    L_tk_wait:
    """)
    a.force_wait(vm=0, lg=0)
    a("s_barrier")
    a("ds_read_b32 v3, v2")
    a(f"v_readfirstlane_b32 s5, v3")
    a(f"s_lshr_b32 s{sX}, s5, 8")
    a(f"s_and_b32 s{sTK}, s5, 255")
    a("s_barrier")
    trace_init(a)
    if DBGT:
        a("s_memrealtime s[6:7]")
        a.force_wait(lg=0)
        a("s_mov_b32 s5, s6")
    trace(a, 2, 3, True)
    en = dbg_roles or "RPWTAO"

    def tgt(ch, lab):
        return lab if ch in en else "L_exit"
    LAB = {"P": "L_role_p", "W": "L_role_tw", "T": "L_role_ta", "A": "L_role_aq", "O": "L_role_awo"}
    a(f"s_cmp_lt_u32 s{sX}, 2")
    a(f"s_cbranch_scc1 {tgt('R', 'L_role_r')}")
    a(f"s_sub_u32 s6, s{sX}, 2")
    a(f"s_lshl_b32 s6, s6, 5")
    a(f"s_add_u32 s6, s6, s{sTK}")
    pool_init(a)
    base = {k: 0 for k in LAB}
    for cls, lst in ROLE_MAP.items():
        a(f"s_cmp_lg_u32 s{sX}, {cls}")
        a(f"s_cbranch_scc1 L_cls{cls}_no")
        t0 = 0
        for ch, n in lst:
            a(f"s_add_u32 s{S_ROLE}, s{sTK}, {(base[ch] - t0) & 0xffffffff}")
            a(f"s_cmp_lt_u32 s{sTK}, {t0 + n}")
            a(f"s_cbranch_scc1 {tgt(ch, LAB[ch])}")
            base[ch] += n
            t0 += n
        a("s_endpgm")
        a.label(f"L_cls{cls}_no")
    assert base == ({"P": 96, "W": 36, "T": 22, "A": 32, "O": 6} if TA3 else {"P": 96, "W": 36, "T": 16, "A": 32, "O": 10}), base
    a(f"""
    L_exit:
    s_endpgm
    L_abort:
    """)
    a.force_wait(lg=0)
    a(f"""
    s_mov_b64 exec, -1
    v_mov_b32 v0, {DB_ABORT}
    s_lshl_b32 s5, s{sX}, 8
    s_or_b32 s5, s5, s{sTK}
    s_or_b32 s5, s5, 0x10000
    v_mov_b32 v1, s5
    global_store_dword v0, v1, s[{S_DBG}:{S_DBG + 1}]
    s_endpgm
    """)
    for ch, lab, fn in (("P", "L_role_p", pool.role_p2 if os.environ.get("PV", "2") == "2" else pool.role_p), ("O", "L_role_awo", (pool.role_awo3 if pool.AO3 else pool.role_awo2) if TA3 else pool.role_awo), ("A", "L_role_aq", pool.role_aq),
                        ("T", "L_role_ta", role_t.role_ta), ("W", "L_role_tw", role_t.role_tw)):
        if ch not in en:
            continue
        a.text(".p2align 6")
        a.label(lab)
        a.reset_window()
        fn(a, f"{lab}_abort", f"{lab}_exit")
        a.label(f"{lab}_abort")
        a("s_branch L_abort") if False else far_jump(a, "L_abort")
        a.label(f"{lab}_exit")
        trace(a, 2, 3, True) if (FREERUN or TRACE == 2) else None
        a("s_endpgm")
    if "R" in en:
        a.text(".p2align 6")
        a.label("L_role_r")
        a.reset_window()
        a(f"s_mov_b32 s{R.sLAY}, s{sX}")
        a(f"s_mov_b32 s{R.sH}, s{sTK}")
        R.r_setup(a)
        a(f"""
        s_mov_b64 exec, 0x7ff
        v_lshrrev_b32 v14, 2, v{R.vL16}
        v_lshlrev_b32 v12, 5, v14
        v_and_b32 v12, 128, v12
        v_lshrrev_b32 v13, 1, v14
        v_and_or_b32 v12, v13, 12, v12
        s_lshl_b32 s6, s{R.sLAY}, 2
        s_add_u32 s6, s6, {DB_TEAM}
        v_writelane_b32 v12, s6, 8
        s_mov_b32 s6, {DB_POOLA}
        v_writelane_b32 v12, s6, 9
        s_mov_b32 s6, {DB_POOL}
        v_writelane_b32 v12, s6, 10
        s_mov_b32 s{S_SPIN}, 0
        L_pure:
        global_load_dword v13, v12, {DBG} sc1
        """)
        spin_check(a, "Lr_abort")
        a("s_mov_b32 s6, 0")
        for i in range(8):
            a(f"v_readlane_b32 s7, v13, {i}")
            a(f"s_add_u32 s6, s6, s7")
        a(f"""
        v_readlane_b32 s7, v13, s{R.sLAY}
        s_cmp_ge_u32 s7, 32
        s_cselect_b32 s{R.sFAST}, {0 if os.environ.get('FAKEX') or os.environ.get('SLOW') else 1}, 0
        s_cselect_b32 s6, 256, s6
        s_cmp_lt_u32 s6, 256
        s_cbranch_scc1 L_pure
        v_readlane_b32 s7, v13, 8
        s_cmp_lt_u32 s7, 32
        s_cbranch_scc1 L_pure
        v_readlane_b32 s7, v13, 9
        s_cmp_lt_u32 s7, {N_POOLA}
        s_cbranch_scc1 L_pure
        v_readlane_b32 s7, v13, 10
        s_cmp_eq_u32 s{R.sLAY}, 0
        s_cselect_b32 s7, {N_POOLB}, s7
        s_cmp_lt_u32 s7, {N_POOLB}
        s_cbranch_scc1 L_pure
        s_mov_b64 exec, -1
        """)
        a("s_barrier")
        trace(a, 12, 13, True)
        stamp_max(a, 4, 12, 13, (R.sLAY, 0))
        for fast in (1, 0):
            if fast:
                a(f"s_cmp_eq_u32 s{R.sFAST}, 0")
                a("s_cbranch_scc1 L_slow")
            else:
                a.label("L_slow")
            for w in range(4):
                if w < 3:
                    a(f"s_cmp_lg_u32 s{S_WAVE}, {w}")
                    a(f"s_cbranch_scc1 L_w{w + 1}_{fast}")
                a.restore(([], []))
                R.r_loop(a, w, fast, "Lr_abort", "Lr_exit", stamps)
                if w < 3:
                    a.label(f"L_w{w + 1}_{fast}")
        a.label("Lr_abort")
        far_jump(a, "L_abort")
        a.label("Lr_exit")
        a("s_endpgm")


def far_jump(a, lab):
    a.force_wait(lg=0)
    a(f"""
    s_mov_b64 exec, -1
    v_mov_b32 v0, {DB_ABORT}
    s_lshl_b32 s5, s3, 8
    s_or_b32 s5, s5, s4
    s_or_b32 s5, s5, 0x10000
    v_mov_b32 v1, s5
    global_store_dword v0, v1, s[{S_DBG}:{S_DBG + 1}]
    s_endpgm
    """)


def build(stamps=0, dbg_roles=None):
    a = Asm()
    hdr = open(os.path.join(os.path.dirname(__file__), "..", KNAME + ".s.ref")).read().split("; Override launch")[0]
    a.text(hdr.rstrip())
    a.text("; @launch grid=(256,1,1) block=(256,1,1) lds=163840")
    a.text('.amdgcn_target "amdgcn-amd-amdhsa--gfx950"\n.text')
    gen_main(a, stamps, dbg_roles)
    a.text('.section .rodata,"a"')
    a.text(kd(MAIN, 512, 256))
    return a.render()


if __name__ == "__main__":
    out = sys.argv[1]
    open(out, "w").write(build(int(os.environ.get("STAMPS", "0")), os.environ.get("ROLES")))
```

```python
from common import *
import struct

WS = f"s[{SRD_WS}:{SRD_WS + 3}]"
L0_AP = 16
L0_T = 16
SLP = int(os.environ.get("SLP", "4"))
EARLYF = int(os.environ.get("EARLYF", "0"))


def f32bits(x):
    return struct.unpack("<I", struct.pack("<f", x))[0]


sN0, sN1 = S_FREE, S_FREE + 1
sCL, sCS = S_FREE + 2, S_FREE + 3
sNL, sNS = S_FREE + 4, S_FREE + 5
sLEFT = S_FREE + 6
sPF = S_FREE + 7
sBUF = S_FREE + 8
sNX = S_FREE + 9
sNFL = S_FREE + 10
sPEND = S_FREE + 11
sSELX, sSELY = S_FREE + 12, S_FREE + 13
sO1, sO2, sO3 = S_FREE + 14, S_FREE + 15, S_FREE + 16
sK1, sK2, sK3, sK4 = S_FREE + 17, S_FREE + 18, S_FREE + 19, S_FREE + 20
sE = S_FREE + 22
sNO = S_FREE + 24
sCO = S_FREE + 25
sWQ = S_FREE + 26
sOB = S_FREE + 27
sF0, sF1, sDEC = S_FREE + 28, S_FREE + 29, S_FREE + 30
sLAYS = S_FREE + 31
sSB, sW1K = S_FREE + 34, S_FREE + 35
sX0, sX1 = S_FREE + 32, S_FREE + 33

vL16, vFLA, vFLV, vONE, vZERO, vT0, vT1, vC, vG = range(9)
XBUF = X_SEG


def seq(a, *items):
    for it in items:
        if isinstance(it, (list, tuple)):
            seq(a, *it)
        elif callable(it):
            it()
        elif it:
            a(it)


def MF(acc, A, B, C=None):
    return f"v_mfma_f32_16x16x32_bf16 {vr(acc, 4)}, {A}, {B}, {vr(acc, 4) if C is None else C}"


def lane_setup(a, nflags):
    a(f"""
    v_and_b32 v{vT0}, 63, v0
    v_lshlrev_b32 v{vL16}, 4, v{vT0}
    v_and_b32 v{vC}, 15, v{vT0}
    v_lshrrev_b32 v{vG}, 4, v{vT0}
    v_min_u32 v{vFLA}, {nflags - 1}, v{vT0}
    v_lshrrev_b32 v{vT1}, 2, v{vFLA}
    v_and_b32 v{vFLA}, 3, v{vFLA}
    v_lshlrev_b32 v{vFLA}, 2, v{vFLA}
    v_lshl_add_u32 v{vFLA}, v{vT1}, 7, v{vFLA}
    v_mov_b32 v{vONE}, 1
    v_mov_b32 v{vZERO}, 0
    s_mov_b32 s{sSELX}, 0x05040100
    s_mov_b32 s{sSELY}, 0x07060302
    """)


def pick_next(a, step, l0):
    a(f"""
    s_add_u32 s{S_TMP}, s{sN1}, {l0}
    s_min_u32 s{S_TMP}, s{S_TMP}, {NSEG}
    s_cmp_lt_u32 s{sN0}, s{S_TMP}
    s_cselect_b32 s{sNL}, 0, 1
    s_cselect_b32 s{sNS}, s{sN0}, s{sN1}
    s_cselect_b32 s{S_TMP}, {step}, 0
    s_cselect_b32 s{S_TMP + 1}, 0, {step}
    s_add_u32 s{sN0}, s{sN0}, s{S_TMP}
    s_add_u32 s{sN1}, s{sN1}, s{S_TMP + 1}
    s_lshl_b32 s{sNO}, s{sNL}, 6
    s_add_u32 s{sNO}, s{sNO}, s{sNS}
    """)


def flag_out(a, sreg):
    a("s_mov_b64 exec, 1")
    a(f"buffer_store_dword v{vONE}, v{vZERO}, {WS}, s{sreg} offen sc1")
    a("s_mov_b64 exec, -1")


def flag_block(a, name, abort):
    L = a.newlabel(name)
    a(f"s_mov_b32 s{S_SPIN}, 0")
    a.label(L)
    a(f"buffer_load_dword v{vFLV}, v{vFLA}, {WS}, s{sNFL} offen sc1")
    spin_check(a, abort)
    a(f"v_cmp_eq_u32 vcc, 0, v{vFLV}")
    Ld = a.newlabel(name + "d")
    a(f"s_cbranch_vccz {Ld}")
    a(f"s_sleep {SLP}")
    a(f"s_branch {L}")
    a.label(Ld)


PFS = f"s[{SRD_C}:{SRD_C + 3}]"


STB3 = 0x1C000
sCSB = S_FREE + 39
P3 = int(os.environ.get('P3', '0'))
PMID = int(os.environ.get('PMID', '14'))
PROLL = int(os.environ.get('PROLL', '22'))
MBOX = 2 * XBUF + 1024
vFL1 = 15


def cand_addr(a, flag_off, excl=False):
    a(f"""
    s_mul_i32 s{sF0}, s{sN0}, {FL_STRIDE}
    s_add_u32 s{sF0}, s{sF0}, {WS_FLAGS + flag_off}
    s_cmp_lt_u32 s{sN0}, {NSEG}
    s_cselect_b32 s{sF0}, s{sF0}, {WS_ZERO}
    s_mul_i32 s{sF1}, s{sN1}, {FL_STRIDE}
    s_add_u32 s{sF1}, s{sF1}, {WS_FLAGS + flag_off + NSEG * FL_STRIDE}
    s_cmp_lt_u32 s{sN1}, {NSEG}
    s_cselect_b32 s{sF1}, s{sF1}, {WS_ZERO}
    """)
    if excl:
        a(f"s_cmp_lt_u32 s{sN0}, {NSEG}")
        a(f"s_cselect_b32 s{sF1}, {WS_ZERO}, s{sF1}")


def sample2(a):
    a(f"buffer_load_dword v{vFLV}, v{vFLA}, {WS}, s{sF0} offen sc1")
    a(f"buffer_load_dword v{vFL1}, v{vFLA}, {WS}, s{sF1} offen sc1")


def decide(a, prio=1):
    a(f"v_cmp_eq_u32 vcc, 0, v{vFLV}")
    a(f"v_cmp_eq_u32 s[{sE}:{sE + 1}], 0, v{vFL1}")
    m = ["vcc", f"s[{sE}:{sE + 1}]"]
    a(f"s_cmp_eq_u64 {m[1 - prio]}, 0")
    a(f"s_cselect_b32 s{sDEC}, {2 - prio}, 0")
    a(f"s_cmp_eq_u64 {m[prio]}, 0")
    a(f"s_cselect_b32 s{sDEC}, {1 + prio}, s{sDEC}")


def take(dec, step, step1=None):
    return [f"s_cmp_eq_u32 s{dec}, 2",
            f"s_cselect_b32 s{sNL}, 1, 0",
            f"s_cselect_b32 s{sNS}, s{sN1}, s{sN0}",
            f"s_cselect_b32 s{S_TMP}, {step if step1 is None else step1}, 0",
            f"s_add_u32 s{sN1}, s{sN1}, s{S_TMP}",
            f"s_cmp_eq_u32 s{dec}, 1",
            f"s_cselect_b32 s{S_TMP}, {step}, 0",
            f"s_add_u32 s{sN0}, s{sN0}, s{S_TMP}",
            f"s_lshl_b32 s{sNO}, s{sNL}, 6",
            f"s_add_u32 s{sNO}, s{sNO}, s{sNS}"]


def poll2(a, name, abort, flag_off, prio=1, excl=False):
    cand_addr(a, flag_off, excl)
    L = a.newlabel(name)
    a(f"s_mov_b32 s{S_SPIN}, 0")
    a.label(L)
    sample2(a)
    spin_check(a, abort)
    decide(a, prio)
    a(f"s_cmp_lg_u32 s{sDEC}, 0")
    a(f"s_cbranch_scc1 {L}d")
    a(f"s_sleep {SLP}")
    a(f"s_branch {L}")
    a.label(L + "d")


def staged_loop(a, name, abort, done, xbase, xlayer, flag_off, extra_loads, compute, out_flag, nst, vMB, laysel=None, waited=False, epi=None, early=None, pub=None):
    crit = [f"s_cmp_eq_u32 s{sDEC}, 2", f"s_cselect_b32 s{sNX}, s{sX1}, s{sX0}",
            f"s_cmp_lg_u32 s{sDEC}, 0", f"s_cselect_b32 s{SRD_C + 2}, {WS_BYTES}, 0"]
    adv_x = [f"s_cmp_eq_u32 s{sDEC}, 2", f"s_cselect_b32 s{S_TMP}, {X_SEG}, 0", f"s_add_u32 s{sX1}, s{sX1}, s{S_TMP}",
             f"s_cmp_eq_u32 s{sDEC}, 1", f"s_cselect_b32 s{S_TMP}, {X_SEG}, 0", f"s_add_u32 s{sX0}, s{sX0}, s{S_TMP}"]

    def dma_ops(srd_):
        ops = []
        for i in range(9):
            pre = []
            if i % 4 == 0:
                pre = [f"s_add_u32 m0, s{sOB}, {i * 1024}", f"s_add_u32 s{sO2}, s{sNX}, {i * 1024}"]
            ops.append(pre + [f"buffer_load_dwordx4 v{vL16}, {srd_}, s{sO2} offen offset:{(i % 4) * 1024} lds"])
        return ops

    def post():
        a(f"v_mov_b32 v{vT0}, s{sDEC}")
        a(f"ds_write_b32 v{vMB}, v{vT0}")
        a.wait(lg=0)

    def publish():
        a(f"s_cmp_lg_u32 s{sPEND}, 0")
        a(f"s_cselect_b64 exec, {pub[1] if pub else 1}, 0")
        a(f"buffer_store_dword v{vONE}, v{pub[0] if pub else vZERO}, {WS}, s{sPEND} offen sc1")
        a("s_mov_b64 exec, -1")
        a(f"s_mov_b32 s{sPEND}, 0")

    def cur_from_next():
        a(f"s_mov_b32 s{sCL}, s{sNL}")
        a(f"s_mov_b32 s{sCS}, s{sNS}")
        a(f"s_mov_b32 s{sCO}, s{sNO}")

    def roll():
        Ls = a.newlabel(name + "_ns")
        a(f"s_cmp_lg_u32 s{S_WAVE}, 0")
        a(f"s_cbranch_scc1 {Ls}")
        sn = a.snap()
        cand_addr(a, flag_off)
        sample2(a)
        a.restore(sn)
        a.label(Ls)

    a(f"""
    s_mov_b32 s{sN0}, 0
    s_mov_b32 s{sN1}, 0
    s_mov_b32 s{sLEFT}, {2 * NSEG}
    s_mul_i32 s{sWQ}, s{S_WAVE}, 9216
    s_mov_b32 s{sBUF}, {XBUF}
    s_mov_b32 s{sOB}, s{sWQ}
    s_mov_b32 s{sPEND}, 0
    s_mov_b32 s{SRD_C}, s{SRD_WS}
    s_mov_b32 s{SRD_C + 1}, s{SRD_WS + 1}
    s_mov_b32 s{SRD_C + 2}, 0
    s_mov_b32 s{SRD_C + 3}, 0x00020000
    v_mov_b32 v{vMB}, {MBOX}
    s_add_u32 s{sX0}, s{sWQ}, {xbase}
    s_add_u32 s{sX1}, s{sWQ}, {xbase + xlayer}
    """)
    if laysel is not None:
        a(f"s_cmp_eq_u32 s{laysel}, 0")
        a(f"s_cselect_b32 s{sN0}, 0, {NSEG}")
        a(f"s_cselect_b32 s{sN1}, {NSEG}, 0")
        a(f"s_mov_b32 s{sLEFT}, {NSEG}")
    a(f"ds_write2_b32 v{vMB}, v{vZERO}, v{vZERO} offset0:0 offset1:1")
    a.wait(lg=0)
    if not waited:
        dbg_wait(a, DB_POOL, N_POOL, vT0, vT1, abort, name + "_ini")
    trace(a, vT0, vT1)
    prof_init(a)
    if PROF == 3:
        a("s_memtime s[84:85]")
        a.force_wait(lg=0)
    a(f"s_branch {name}_idle0")
    head = name + "_item"
    a.label(head)
    a.restore(([], []))
    prof_begin(a)
    a.force_wait(vm=nst)
    if EARLYF and (laysel is not None or EARLYF > 1):
        a(f"s_cmp_lt_u32 s{sPEND}, {NSEG * FL_STRIDE}")
        a(f"s_cbranch_scc1 {name}_defer")
        a.force_wait(vm=0)
        publish()
    a.label(name + "_defer")
    prof_end(a, 0)
    a(f"s_cmp_lg_u32 s{S_WAVE}, 0")
    a(f"s_cbranch_scc1 {name}_nw0")
    decide(a)
    post()
    a.label(name + "_nw0")
    prof_begin(a)
    a("s_barrier")
    prof_end(a, 1)
    a(f"ds_read_b32 v{vT1}, v{vMB}")
    a(f"""
    v_xor_b32 v{vMB}, 4, v{vMB}
    s_xor_b32 s{sBUF}, s{sBUF}, {XBUF}
    s_xor_b32 s{sOB}, s{sOB}, {XBUF}
    s_xor_b32 s{sSB}, s{sSB}, 0x2000
    s_xor_b32 s{sCSB}, s{sCSB}, 0x2000
    s_sub_u32 s{sLEFT}, s{sLEFT}, 1
    """)
    if epi:
        early()
        a(f"s_cmp_eq_u32 s{sPEND}, 0")
        a(f"s_cbranch_scc1 {name}_noepi")
        lg = list(a.lgq)
        epi()
        assert a.lgq == lg or not a.lgq
        a.lgq = lg
        a.label(name + "_noepi")
    a.vmq = [(frozenset(), "st")] * nst
    ex = extra_loads(PFS)
    tk = take(sDEC, 1)
    pre = ([f"v_readfirstlane_b32 s{sDEC}, v{vT1}"] + crit, [tk[:5], tk[5:], ex[0][:-1], adv_x[:3], adv_x[3:]] if os.environ.get('BSPLIT', '1') == '1' else [tk, ex[0][:-1], adv_x, [], []])
    ex[0] = ex[0][-1:]

    def mid():
        prof_begin(a) if PROF == 1 else None
        a.wait_tag("st")
        prof_end(a, 2) if PROF == 1 else None
        publish()

    compute(pre, dma_ops(PFS), ex, mid, roll)
    out_flag()
    trace_at(a, sCO, vT0, vZERO)
    if name.startswith("Lp"):
        stamp_max(a, 9, vT0, vT1, (sCO, 1)) if DBGT == 2 else None
    cur_from_next()
    if TRACE == 1:
        a.force_wait(vm=0)
        trace(a, vT0, vT1)
        a.force_wait(vm=0)
    a(f"s_min_u32 s{sDEC}, s{sDEC}, s{sLEFT}")
    a(f"s_cmp_lg_u32 s{sDEC}, 0")
    a(f"s_cbranch_scc1 {head}")
    roll()
    a.force_wait(vm=0)
    publish()
    a(f"s_cmp_eq_u32 s{sLEFT}, 0")
    a(f"s_cbranch_scc1 {name}_end")
    a(f"s_cmp_lg_u32 s{S_WAVE}, 0")
    a(f"s_cbranch_scc1 {name}_nw1")
    decide(a)
    a(f"s_cmp_lg_u32 s{sDEC}, 0")
    a(f"s_cbranch_scc1 {name}_got")
    a.label(name + "_idle0")
    a.restore(([], []))
    a(f"s_cmp_lg_u32 s{S_WAVE}, 0")
    a(f"s_cbranch_scc1 {name}_nw1")
    p3_begin(a)
    poll2(a, name + "_pl", abort, flag_off)
    p3_end(a, 3)
    a.label(name + "_got")
    post()
    a.label(name + "_nw1")
    a("s_barrier")
    a(f"ds_read_b32 v{vT1}, v{vMB}")
    a(f"v_xor_b32 v{vMB}, 4, v{vMB}")
    a(f"v_readfirstlane_b32 s{sDEC}, v{vT1}")
    a(f"s_cmp_eq_u32 s{sDEC}, 0")
    a(f"s_cbranch_scc1 {abort}")
    seq(a, crit, take(sDEC, 1), adv_x, dma_ops(WS), extra_loads(WS))
    cur_from_next()
    roll()
    a.force_wait(vm=0)
    if PROF:
        a("s_add_u32 s96, s96, 1000")
    a(f"s_branch {head}")
    a.label(name + "_end")
    if PROF == 3:
        a("s_memtime s[86:87]")
        a.force_wait(lg=0)
        a("s_sub_u32 s97, s86, s84")
    prof_dump(a, vT0, vT1)
    a(f"s_branch {done}")


HPUB = int(os.environ.get("HPUB", "12"))
H1 = int(os.environ.get("H1", "6"))
H2 = int(os.environ.get("H2", "30"))


def _flat(x):
    if isinstance(x, (list, tuple)):
        return [z for y in x for z in _flat(y)]
    return [x]


SCRATCH = 0x20000
WINS = [int(x) for x in os.environ.get("WIN", "1,18").split(",")]
GAP = int(os.environ.get("GAP", "5"))
LOCAL = int(os.environ.get("LOCAL", "1"))
sIMP = 78
AO3 = int(os.environ.get("AO3", "1"))
TAILX = int(os.environ.get("TAILX", "1"))
FAST2 = int(os.environ.get("FAST2", "0"))
LOOKS = [int(x) for x in os.environ.get("LOOKS", "13,30").split(",")]


def eager_loop(a, name, abort, done, xbase, xlayer, flag_off, extra, compute, out_flag, nst, vMB, laysel, pub=None,
               hpos=None, toggles=(), late_extra=False, local=None):
    hp = hpos[0] if hpos else HPUB
    sISS, sACT, sWM, sEXT, sWS = sPF, sLEFT, sNX + 0, sE, sE + 1
    sWM = sSELX
    sEXM = 76
    vMV = vFL1
    pa, pm = pub if pub else (vZERO, 1)
    kind, xfn = extra
    sLOOK, sLF = sN0, sN1
    tails = []

    npub = 2 if local else 1

    def publish():
        a(f"s_cmp_lg_u32 s{sPEND}, 0")
        a(f"s_cselect_b64 exec, {pm}, 0")
        if local:
            a(f"buffer_store_dword v{vONE}, v{pa}, {WS}, s{sPEND} offen")
            a(f"s_and_b64 exec, exec, s[{local}:{local + 1}]")
        a(f"buffer_store_dword v{vONE}, v{pa}, {WS}, s{sPEND} offen sc1")
        a("s_mov_b64 exec, -1")
        a(f"s_mov_b32 s{sPEND}, 0")

    def pieces(srd_, sbase):
        ops = []
        for i in range(9):
            pre = []
            if i % 4 == 0:
                pre = [f"s_add_u32 m0, s{sbase}, {i * 1024}", f"s_add_u32 s{sO2}, s{sNX}, {i * 1024}"]
            ops.append(pre + [f"buffer_load_dwordx4 v{vL16}, {srd_}, s{sO2} offen offset:{(i % 4) * 1024} lds"])
        return ops

    def extras(srd_, masked):
        if kind == "lds":
            return xfn(srd_, sWS if masked else sSB)
        ops = []
        for op in xfn(WS):
            op = list(op)
            if masked:
                op = op[:-1] + [f"s_mov_b64 exec, s[{sEXM}:{sEXM + 1}]", op[-1], "s_mov_b64 exec, -1"]
            ops.append(op)
        return ops

    def next_addr():
        a(f"""
        s_mul_i32 s{sNX}, s{sNS}, {X_SEG}
        s_add_u32 s{sNX}, s{sNX}, s{sX0}
        s_mul_i32 s{sF0}, s{sNS}, {FL_STRIDE}
        s_add_u32 s{sF0}, s{sF0}, s{sF1}
        s_cmp_lt_u32 s{sNS}, {NSEG}
        s_cselect_b32 s{sF0}, s{sF0}, {WS_ZERO}
        """)

    a(f"""
    s_mov_b32 s{sNL}, s{laysel}
    s_mov_b32 s{sCL}, s{laysel}
    s_mul_i32 s{sWQ}, s{S_WAVE}, 9216
    s_mul_i32 s{sX0}, s{laysel}, {xlayer}
    s_add_u32 s{sX0}, s{sX0}, s{sWQ}
    s_add_u32 s{sX0}, s{sX0}, {xbase}
    s_mul_i32 s{sF1}, s{laysel}, {NSEG * FL_STRIDE}
    s_add_u32 s{sF1}, s{sF1}, {WS_FLAGS + flag_off}
    s_mov_b32 s{sNS}, 0
    s_mov_b32 s{sBUF}, {XBUF}
    s_mov_b32 s{sOB}, s{sWQ}
    s_mov_b32 s{sPEND}, 0
    s_mov_b32 s{sDEC}, 1
    s_mov_b32 s{SRD_C}, s{SRD_WS}
    s_mov_b32 s{SRD_C + 1}, s{SRD_WS + 1}
    s_mov_b32 s{SRD_C + 2}, 0
    s_mov_b32 s{SRD_C + 3}, 0x00020000
    v_mov_b32 v{vMB}, {MBOX}
    v_mov_b32 v{vT0}, -1
    """)
    a(f"ds_write_b32 v{vMB}, v{vT0}")
    a.wait(lg=0)
    trace6(a, vT0, vT1)
    init_wait(a, laysel, vT0, vT1, abort, name + "_ini")
    trace6(a, vT0, vT1)
    trace(a, vT0, vT1)
    prof_init(a)
    if PROF:
        a("s_memtime s[82:83]")
        a.force_wait(lg=0)
    next_addr()
    a(f"s_branch {name}_wait")
    a.label(name + "_head")
    a.restore(([], []))
    prof_begin(a)
    a.force_wait(vm=nst)
    prof_end(a, 0)
    a.label(name + "_head2")
    prof_begin(a)
    a("s_barrier")
    prof_end(a, 1)
    a(f"ds_read_b32 v{vMV}, v{vMB}")
    a(f"""
    s_xor_b32 s{sBUF}, s{sBUF}, {XBUF}
    s_xor_b32 s{sOB}, s{sOB}, {XBUF}
    s_mov_b32 s{sCS}, s{sNS}
    s_lshl_b32 s{sCO}, s{sCL}, 6
    s_add_u32 s{sCO}, s{sCO}, s{sCS}
    s_add_u32 s{sNS}, s{sNS}, 1
    s_mov_b32 s{sISS}, 0
    s_mov_b32 s{sEXT}, 0
    """)
    for r, x in toggles:
        a(f"s_xor_b32 s{r}, s{r}, {x}")
    next_addr()
    trace6(a, vT0, vT1)
    if DBGT == 1 and name in ("Laq", "LpKV"):
        stamp_max(a, 13 if name == "Laq" else 14, vT0, vT1, (sCO, 0))
    if TRACE == 4:
        a(f"s_xor_b32 s75, s{sCO}, 64")
        trace_at(a, 75, vT0, vZERO)

    class Rec:
        def __init__(self):
            self.steps = [[]]

        def __call__(self, text, tag=None):
            for line in text.strip().split("\n"):
                line = line.strip()
                if line:
                    self.steps[-1].append((line, tag))
    rec = Rec()
    compute(rec, lambda t: rec.steps.append([]))
    steps = rec.steps
    assert len(steps) == 37

    sR, sLIM = sACT, sISS

    def look(allowed):
        M = f"s[{sEXM}:{sEXM + 1}]"
        g = [[f"v_cmp_eq_u32 {M}, 1, v{vFLV}", f"v_cmp_eq_u32 vcc, 2, v{vFLV}"],
             [f"s_cmp_eq_u64 {M}, -1", f"s_cselect_b32 s{sR}, 1, 0"],
             [f"s_cmp_lg_u32 s{sR}, 0", "s_cselect_b64 exec, 1, 0", f"v_mov_b32 v{vMV}, s{sLOOK}", f"ds_write_b32 v{vMB}, v{vMV}",
              f"v_mov_b32 v{vFLV}, 2", "s_mov_b64 exec, -1"],
             [f"s_add_u32 s{sLOOK}, s{sLOOK}, s{sR}", f"s_mul_i32 s{sR}, s{sR}, {FL_STRIDE}", f"s_add_u32 s{sLF}, s{sLF}, s{sR}"]]
        if allowed:
            g += [[f"s_cmp_eq_u64 vcc, 0", f"s_cselect_b32 s{sR}, s{sLOOK}, 0x7fff"],
                  [f"s_cmp_le_u32 s{sR}, s{sLIM}", "s_cselect_b64 exec, -1, 0", f"v_mov_b32 v{vFLV}, 2",
                   f"buffer_load_dword v{vFLV}, v{vFLA}, {WS}, s{sLF} offen sc1", "s_mov_b64 exec, -1"]]
        return g

    looks = LOOKS if hpos is None else hpos[1]
    WIN = WINS if hpos is None else hpos[3]
    gap = GAP if hpos is None else hpos[2]
    xlate = 15
    deferred = []

    def emit_group(grp, st):
        a.auto = False
        seq(a, grp)
        a.auto = True
        st["vm"] += sum(1 for x in _flat(grp) if x.startswith("buffer_"))

    def emit_step(t, fifo, st):
        ins = steps[t]
        n = len(ins)
        for i, (line, tag) in enumerate(ins):
            a(line, tag)
            if t < 36 and line.startswith("v_mfma"):
                j = i + 1
                while j < n and not ins[j][0].startswith("v_mfma"):
                    j += 1
                room = gap - (j - i - 1)
                while fifo and (len(fifo[0]) <= room or (room >= gap - 1 and len(fifo[0]) > gap)):
                    grp = fifo.pop(0)
                    emit_group(grp, st)
                    room -= len(grp)

    def plan(t, fetched, wk, fifo, queue, st):
        if queue:
            n = 2 if (len(queue) > 33 - t or FAST2) else 1
            for _ in range(n):
                if queue and not (queue[0][0] and t <= xlate and late_extra):
                    fifo.append(_flat(queue.pop(0)[1]))
        if t in looks:
            fifo.extend(look(True))

    def fixed(t, fetched, wk, fifo, st):
        if t == hp:
            prof_begin(a)
            a.force_wait(vm=st["vm"])
            prof_end(a, 2)
            publish()
            st["vm"] += npub
        if not fetched and wk < len(WIN) and t == WIN[wk] - 2:
            a(f"ds_read_b32 v{vMV}, v{vMB}")

    def flush(fifo, st):
        while fifo:
            emit_group(fifo.pop(0), st)

    def run(t0):
        wk, fifo, st = 0, [], {"vm": 0}
        for t in range(36):
            emit_step(t, fifo, st)
            if wk < len(WIN) and t == WIN[wk]:
                flush(fifo, st)
                Lf = a.newlabel(name + "_f")
                a(f"v_readfirstlane_b32 s{S_TMP}, v{vMV}")
                if wk == 0:
                    a(f"s_add_u32 s{S_TMP + 1}, s{S_TMP}, 1")
                    a(f"s_max_i32 s{sLOOK}, s{S_TMP + 1}, s{sNS}")
                    a(f"s_add_u32 s{sLIM}, s{sNS}, 1")
                    a(f"s_min_u32 s{sLIM}, s{sLIM}, {NSEG - 1}")
                    a(f"s_mul_i32 s{sLF}, s{sLOOK}, {FL_STRIDE}")
                    a(f"s_add_u32 s{sLF}, s{sLF}, s{sF1}")
                    a(f"s_cmp_eq_u32 s{S_WAVE}, 0")
                    a(f"s_cselect_b32 s{S_TMP + 1}, s{sLOOK}, 0x7fff")
                    a(f"v_mov_b32 v{vFLV}, 2")
                    a(f"s_cmp_le_u32 s{S_TMP + 1}, s{sLIM}")
                    a(f"s_cselect_b64 exec, -1, 0")
                    a.auto = False
                    a(f"buffer_load_dword v{vFLV}, v{vFLA}, {WS}, s{sLF} offen sc1")
                    a.auto = True
                    st["vm"] += 1
                    a("s_mov_b64 exec, -1")
                    a.vmq = []
                a(f"s_cmp_ge_i32 s{S_TMP}, s{sNS}")
                a(f"s_cbranch_scc1 {Lf}")
                deferred.append((Lf, t, dict(st), a.snap(), list(a.win)))
                wk += 1
            plan(t, False, wk, fifo, [], st)
            fixed(t, False, wk, fifo, st)
        flush(fifo, st)
        finish(0)

    def run_fetch(t0, st):
        queue = [(False, op) for op in pieces(WS, sOB)] + [(kind == "reg", op) for op in extras(WS, False)]
        fifo = []
        plan(t0, True, 0, fifo, queue, st)
        fixed(t0, True, 0, fifo, st)
        for t in range(t0 + 1, 36):
            emit_step(t, fifo, st)
            plan(t, True, 0, fifo, queue, st)
            fixed(t, True, 0, fifo, st)
        fifo.extend(_flat(op) for _, op in queue)
        flush(fifo, st)
        finish(t0 + 100)

    def finish(fetched):
        if PROF == 2:
            a("s_memtime s[86:87]")
            a.force_wait(lg=0)
            a("s_sub_u32 s86, s86, s84")
            a("s_add_u32 s93, s93, s86")
            a("s_memtime s[84:85]")
            a.force_wait(lg=0)
        for line, tag in steps[36]:
            a(line, tag)
        if PROF == 2:
            a("s_memtime s[86:87]")
            a.force_wait(lg=0)
            a("s_sub_u32 s86, s86, s84")
            a("s_add_u32 s94, s94, s86")
        out_flag()
        trace_at(a, sCO, vT0, vZERO)
        if TRACE == 4:
            a(f"s_add_u32 s7, s{sCS}, 128")
            a(f"s_lshl_b32 s7, s7, 2")
            a(f"s_add_u32 s7, s7, s5")
            a(f"v_mov_b32 v{vT0}, {fetched}")
            a("s_mov_b64 exec, 1")
            a(f"buffer_store_dword v{vT0}, v{vZERO}, s[{SRD_WS}:{SRD_WS + 3}], s7 offen offset:12")
            a("s_mov_b64 exec, -1")
        a(f"s_branch {name}_{'head' if fetched else 'none'}")

    a.vmq = []
    if PROF == 2:
        a("s_memtime s[84:85]")
        a.force_wait(lg=0)
    run(0)
    for Lf, t, st, sn, win in deferred:
        a.label(Lf)
        a.restore(sn)
        a.win = list(win)
        run_fetch(t, st)
    a.label(name + "_none")
    a.restore(([], []))
    a(f"ds_read_b32 v{vMV}, v{vMB}")
    a.force_wait(lg=0)
    a(f"v_readfirstlane_b32 s{S_TMP}, v{vMV}")
    a(f"s_cmp_lt_i32 s{S_TMP}, s{sNS}")
    a(f"s_cbranch_scc1 {name}_nopost")
    a.auto = False
    ops = pieces(WS, sOB) + extras(WS, False)
    seq(a, ops)
    a.force_wait(vm=sum(1 for x in _flat(ops) if x.startswith("buffer_")))
    a.auto = True
    publish()
    a.force_wait(vm=npub, lg=0)
    a(f"s_branch {name}_head2")
    a.label(name + "_nopost")
    a.restore(([], []))
    a.force_wait(vm=0)
    publish()
    a(f"s_cmp_ge_u32 s{sNS}, {NSEG}")
    a(f"s_cbranch_scc1 {name}_end")
    a.label(name + "_wait")
    a.restore(([], []))
    a(f"s_mov_b32 s{S_SPIN}, 0")
    a(f"s_cmp_lg_u32 s{S_WAVE}, 0")
    a(f"s_cbranch_scc1 {name}_wl")
    p3_begin(a)
    a.label(name + "_wp")
    a(f"buffer_load_dword v{vFLV}, v{vFLA}, {WS}, s{sF0} offen sc1")
    spin_check(a, name + "_giveup")
    a(f"v_cmp_eq_u32 vcc, 0, v{vFLV}")
    a(f"s_cbranch_vccz {name}_wok")
    a(f"s_sleep {SLP}")
    a(f"s_branch {name}_wp")
    a.label(name + "_giveup")
    a(f"v_mov_b32 v{vT0}, -2")
    a(f"ds_write_b32 v{vMB}, v{vT0}")
    a.force_wait(lg=0)
    a(f"s_branch {abort}")
    a.label(name + "_wok")
    p3_end(a, 3)
    a(f"v_mov_b32 v{vT0}, s{sNS}")
    a(f"ds_write_b32 v{vMB}, v{vT0}")
    a(f"s_branch {name}_go")
    a.label(name + "_wl")
    a(f"ds_read_b32 v{vMV}, v{vMB}")
    a(f"s_add_u32 s{S_SPIN}, s{S_SPIN}, 1")
    a(f"s_cmp_gt_u32 s{S_SPIN}, {SPIN_MAX * 16}")
    a(f"s_cbranch_scc1 {abort}")
    a(f"v_readfirstlane_b32 s{S_TMP}, v{vMV}")
    a(f"s_cmp_eq_u32 s{S_TMP}, -2")
    a(f"s_cbranch_scc1 {abort}")
    a(f"s_cmp_ge_i32 s{S_TMP}, s{sNS}")
    a(f"s_cbranch_scc1 {name}_go")
    a("s_sleep 1")
    a(f"s_branch {name}_wl")
    a.label(name + "_go")
    a.restore(([], []))
    if PROF:
        a("s_add_u32 s96, s96, 1000")
    a.auto = False
    seq(a, pieces(WS, sOB), extras(WS, False))
    a.auto = True
    prof_begin(a)
    a.force_wait(vm=0, lg=0)
    prof_end(a, 5)
    a(f"s_branch {name}_head2")
    a.label(name + "_end")
    if PROF:
        a("s_memtime s[86:87]")
        a.force_wait(lg=0)
        a("s_sub_u32 s97, s86, s82")
    prof_dump(a, vT0, vT1)
    a(f"s_branch {done}")
    for tl in tails:
        a.restore(([], []))
        tl()


WB = 112


def MF32(acc, A, B, C=None):
    return f"v_mfma_f32_32x32x16_bf16 {vr(acc, 16)}, {A}, {B}, {vr(acc, 16) if C is None else C}"


def load_cols(a, srdb, vad, vsel, items, nt=os.environ.get("NT_P", "")):
    D = 28
    n = len(items)
    for i in range(n + D):
        if i < n:
            r = 16 + 2 * (i % 48)
            a(f"s_add_u32 s{S_TMP}, s{sK1}, {items[i][0]}")
            a(f"buffer_load_dword v{r}, v{vad}, s[{srdb}:{srdb + 3}], s{S_TMP} offen {nt}")
            a(f"buffer_load_dword v{r + 1}, v{vad + 1}, s[{srdb}:{srdb + 3}], s{S_TMP} offen {nt}")
        j = i - D
        if j >= 0:
            r = 16 + 2 * (j % 48)
            a(f"v_perm_b32 v{items[j][1]}, v{r + 1}, v{r}, v{vsel}")


def feat_of_row(a, dst, row, t1):
    a(f"""
    v_and_b32 v{dst}, 19, v{row}
    v_bfe_u32 v{t1}, v{row}, 2, 1
    v_lshl_add_u32 v{dst}, v{t1}, 3, v{dst}
    v_bfe_u32 v{t1}, v{row}, 3, 1
    v_lshl_add_u32 v{dst}, v{t1}, 2, v{dst}
    """)


def sel_of_parity(a, vsel, par, t1):
    a(f"""
    v_mov_b32 v{vsel}, s{sSELX}
    v_mov_b32 v{t1}, s{sSELY}
    v_cmp_eq_u32 vcc, 1, v{par}
    v_cndmask_b32 v{vsel}, v{vsel}, v{t1}, vcc
    """)


def gemm32(a, acc, swap, vXA, ring, pre, dma, extra, mid, roll, init=None, fill=None, issued=False):
    nr = len(ring)

    def rd(t):
        return f"ds_read_b128 {vr(ring[t % nr], 4)}, v{vXA} offset:{t * 1024}"
    if PROF == 2:
        a("s_memtime s[84:85]")
    if not issued:
        for t in range(nr - 1):
            a(rd(t))
    fill = list(fill or [])
    crit, blocks = pre
    blocks = list(blocks)
    vm = list(dma) + list(extra)
    for t in range(36):
        x, w = vr(ring[t % nr], 4), vr(WB + 4 * t, 4)
        a(MF32(acc, x if swap else w, w if swap else x, "0" if (t == 0 and not init) else None))
        if t + nr - 1 < 36:
            a(rd(t + nr - 1))
        k = 3 if t < 16 else 4
        if t == 1:
            seq(a, crit); k = 0
        elif t >= 2 and t % 2 == 1 and blocks:
            k = min(3, 5 - len(blocks[0]))
            seq(a, blocks.pop(0))
        elif t >= 2 and vm and (len(vm) > len(extra) or len(blocks) <= 2):
            assert len(vm) > len(extra) or len(blocks) <= 2
            seq(a, vm.pop(0)); k -= 2
        while fill and k > 0:
            seq(a, fill.pop(0)); k -= 1
        if t == 10:
            mid()
        if t == 16:
            roll()
    assert not vm and not fill and not blocks
    if PROF == 2:
        a("s_memtime s[86:87]")
        a.force_wait(lg=0)
        a("s_sub_u32 s86, s86, s84")
        a("s_add_u32 s97, s97, s86")


VMDENSE = int(os.environ.get("VMDENSE", "1"))
STB = 0x14000


def stats_dma(base, srd_, sdest=None):
    sd = sSB if sdest is None else sdest
    pre = [f"s_mul_i32 s{sO3}, s{sNL}, {2 * ST_BYTES}", f"s_mul_i32 s{S_TMP + 1}, s{sNS}, {ST_SEG}",
           f"s_add_u32 s{sO3}, s{sO3}, s{S_TMP + 1}", f"s_add_u32 s{sO3}, s{sO3}, {base + 4096}"]
    return [pre + [f"s_add_u32 m0, s{sd}, 4096", f"s_nop 0",
                   f"buffer_load_dwordx4 v{vL16}, {srd_}, s{sO3} offen lds"],
            [f"s_add_u32 m0, s{sd}, s{sW1K}", f"s_sub_u32 s{sO3}, s{sO3}, 4096", f"s_add_u32 s{sO3}, s{sO3}, s{sW1K}",
             f"buffer_load_dwordx4 v{vL16}, {srd_}, s{sO3} offen lds"]]


def stats_loads(base, STR, vaddr, srd_):
    pre = [f"s_mul_i32 s{sO3}, s{sNL}, {2 * ST_BYTES}", f"s_mul_i32 s{S_TMP + 1}, s{sNS}, {ST_SEG}",
           f"s_add_u32 s{sO3}, s{sO3}, s{S_TMP + 1}", f"s_add_u32 s{sO3}, s{sO3}, {base}"]
    ops = [[f"buffer_load_dwordx4 {vr(STR + 4 * i, 4)}, v{vaddr}, {srd_}, s{sO3} offen offset:{512 * i}"] for i in range(6)]
    ops[0] = pre + ops[0]
    return ops


def stats_math(STR, RS, MR):
    ops = []
    for i in range(1, 5):
        ops += [f"v_add_f32 v{STR + j}, v{STR + j}, v{STR + 4 * i + j}" for j in range(4)]
    S1, S2 = STR, STR + 1
    ops += [f"v_add_f32 v{S1}, v{S1}, v{STR + 2}", f"v_add_f32 v{S2}, v{S2}, v{STR + 3}",
            f"v_mov_b32 v{STR + 2}, v{S1}", f"v_mov_b32 v{STR + 3}, v{S2}",
            f"v_permlane32_swap_b32 v{S1}, v{STR + 2}", f"v_permlane32_swap_b32 v{S2}, v{STR + 3}",
            f"v_add_f32 v{S1}, v{S1}, v{STR + 2}", f"v_add_f32 v{S2}, v{S2}, v{STR + 3}",
            f"v_mul_f32 v{S1}, {hex(f32bits(1.0 / 576))}, v{S1}",
            f"v_mul_f32 v{S2}, {hex(f32bits(1.0 / 576))}, v{S2}",
            f"v_fma_f32 v{S2}, -v{S1}, v{S1}, v{S2}",
            f"v_max_f32 v{S2}, 0, v{S2}",
            f"v_add_f32 v{S2}, {hex(f32bits(1e-5))}, v{S2}",
            f"v_rsq_f32 v{RS}, v{S2}",
            f"v_mul_f32 v{MR}, v{S1}, v{RS}"]
    return ops


def role_p(a, abort, done):
    lane_setup(a, 18)
    vXA, vSTA, vCS, vA0, vLDS, vO = 9, 10, 11, 12, 12, 14
    vMB = 108
    ACC, RING, STR, LN = 16, 32, 56, 76
    TT = 96
    CS = 80
    a(f"""
    s_lshr_b32 s{sK2}, s{S_ROLE}, 5
    s_and_b32 s{sK3}, s{S_ROLE}, 31
    s_lshl_b32 s{S_TMP}, s{sK2}, 3
    s_add_u32 s{S_TMP}, s{S_TMP}, {KA_WQ}
    s_load_dwordx2 s[{SRD_A}:{SRD_A + 1}], s[0:1], s{S_TMP}
    s_mov_b32 s{SRD_A + 2}, {576 * 8192}
    s_mov_b32 s{SRD_A + 3}, 0x00020000
    s_lshl_b32 s{sK1}, s{sK3}, 8
    s_lshl_b32 s{S_TMP}, s{S_WAVE}, 6
    s_add_u32 s{sK1}, s{sK1}, s{S_TMP}
    v_bfe_u32 v{vSTA}, v{vL16}, 4, 5
    """)
    feat_of_row(a, vO, vSTA, vT0)
    if RV2:
        a(f"v_and_b32 v{vT0}, 1, v{vO}")
        a(f"v_lshrrev_b32 v{vO}, 1, v{vO}")
        a(f"v_lshl_add_u32 v{vO}, v{vT0}, 4, v{vO}")
    a(f"""
    v_bfe_u32 v{vT0}, v{vL16}, 8, 1
    {f"v_lshl_add_u32 v{vT1}, v{vT0}, 4, v{vC}" if RV2 else f"v_lshl_add_u32 v{vT1}, v{vC}, 1, v{vT0}"}
    s_cmp_eq_u32 s{sK2}, 2
    s_cselect_b64 vcc, -1, 0
    v_cndmask_b32 v{vO}, v{vO}, v{vT1}, vcc
    v_and_b32 v{vT0}, 1, v{vO}
    """)
    sel_of_parity(a, vCS, vT0, vT1)
    a(f"""
    v_and_b32 v{vO}, 30, v{vO}
    v_lshrrev_b32 v{vT0}, 9, v{vL16}
    v_lshlrev_b32 v{vA0}, 16, v{vT0}
    v_lshl_add_u32 v{vA0}, v{vO}, 1, v{vA0}
    v_add_u32 v{vA0 + 1}, 8192, v{vA0}
    v_lshlrev_b32 v{vSTA}, 4, v{vSTA}
    v_mul_u32_u24 v{vT1}, 2560, v{vT0}
    v_add_u32 v{vSTA}, v{vSTA}, v{vT1}
    v_add_u32 v{vSTA}, {STB3}, v{vSTA}
    s_lshl_b32 s{sW1K}, s{S_WAVE}, 10
    v_bfe_u32 v{vT1}, v{vL16}, 8, 1
    v_lshlrev_b32 v{vO}, 10, v{vT1}
    v_lshl_add_u32 v{vO}, v{vC}, 4, v{vO}
    v_lshl_add_u32 v{vO}, v{vT0}, 8, v{vO}
    """)
    a.force_wait(lg=0)
    a(f"s_and_b32 s{SRD_A + 1}, s{SRD_A + 1}, 0xffff")
    load_cols(a, SRD_A, vA0, vCS, [((16 * t + 2 * d) * 8192, WB + 4 * t + d) for t in range(36) for d in range(4)])
    a(f"""
    s_mul_i32 s{sK4}, s{sK2}, {QKV_M}
    s_lshl_b32 s{S_TMP}, s{sK3}, 13
    s_add_u32 s{sK4}, s{sK4}, s{S_TMP}
    s_lshl_b32 s{S_TMP}, s{S_WAVE}, 11
    s_add_u32 s{sK4}, s{sK4}, s{S_TMP}
    s_add_u32 s{sK4}, s{sK4}, {WS_QKV}
    s_lshl_b32 s{sK1}, s{sK3}, 9
    s_lshl_b32 s{S_TMP}, s{sK2}, 7
    s_add_u32 s{sK1}, s{sK1}, s{S_TMP}
    s_lshl_b32 s{S_TMP}, s{S_WAVE}, 2
    s_add_u32 s{sK1}, s{sK1}, s{S_TMP}
    s_add_u32 s{sK1}, s{sK1}, {WS_FLAGS + FL_QKV}
    v_mov_b32 v{RING}, 0x3f803f80
    v_mov_b32 v{RING + 1}, 0x3f803f80
    v_mov_b32 v{RING + 2}, 0x3f803f80
    v_mov_b32 v{RING + 3}, 0x3f803f80
    s_lshl_b32 s{S_TMP}, s{S_WAVE}, 8
    s_add_u32 s{S_TMP}, s{S_TMP}, {3 * XBUF}
    v_bfe_u32 v{vT0}, v{vL16}, 4, 5
    v_lshl_add_u32 v{vLDS}, v{vT0}, 2, s{S_TMP}
    v_lshrrev_b32 v{vT0}, 9, v{vL16}
    v_lshl_add_u32 v{vLDS + 1}, v{vT0}, 4, s{S_TMP}
    s_cmp_eq_u32 s{sK2}, 2
    s_cbranch_scc1 Lp_v
    """)
    for swap in (0, 1):
        nm = "LpV" if swap else "LpQ"
        if swap:
            a.label("Lp_v")
            a.restore(([], []))
        for t in range(36):
            w, o = vr(WB + 4 * t, 4), vr(RING, 4)
            a(MF32(ACC if swap else CS, o if swap else w, w if swap else o, "0" if t == 0 else None))
        if swap:
            a(f"v_mov_b32 v{vCS}, v{ACC}")

        def early():
            a(f"v_add_u32 v{vXA}, s{sBUF}, v{vL16}")
            a(f"v_add_u32 v{vT0}, s{sCSB}, v{vSTA}")
            for t in range(3):
                a(f"ds_read_b128 {vr(RING + 4 * t, 4)}, v{vXA} offset:{t * 1024}")
            for i in range(5):
                a(f"ds_read_b128 {vr(STR + 4 * i, 4)}, v{vT0} offset:{512 * i}")

        def compute(pre, dma, extra, mid, roll, swap=swap):
            early()
            sm = [None] * 3 + stats_math(STR, LN, LN + 1)
            if swap:
                sm += [f"ds_write2_b32 v{vLDS}, v{LN}, v{LN + 1} offset0:0 offset1:32"]
                sm += [f"ds_read_b128 {vr(LN + 4 * i, 4)}, v{vLDS + 1} offset:{(i >> 2) * 128 + (i & 3) * 32}" for i in range(8)]
                sm += [None] * 9 + [f"v_mul_f32 v{LN + 16 + i}, v{vCS}, v{LN + 16 + i}" for i in range(16)]
            else:
                sm += [f"v_mul_f32 v{TT + i}, v{LN + 1}, v{CS + i}" for i in range(16)]
            sm += [f"s_mul_i32 s{sO1}, s{sCL}, {3 * QKV_M}", f"s_lshl_b32 s{sK3}, s{sCS}, 18",
                   f"s_add_u32 s{sO1}, s{sO1}, s{sK3}", f"s_add_u32 s{sO1}, s{sO1}, s{sK4}"]
            gemm32(a, ACC, swap, vXA, [RING + 4 * i for i in range(4)], pre, dma, extra, mid, roll, fill=sm, issued=True)
            epi()

        def epi(swap=swap):
            for k in range(2):
                regs = [0, 1, 2, 3, 8, 9, 10, 11] if swap else list(range(8))
                regs = [r + (4 if swap else 8) * k for r in regs]
                for i in regs[::2]:
                    if swap:
                        a(f"v_pk_fma_f32 {vr(ACC + i, 2)}, {vr(ACC + i, 2)}, {vr(LN + i, 2)}, {vr(LN + 16 + i, 2)} neg_lo:[0,0,1] neg_hi:[0,0,1]")
                    else:
                        a(f"v_pk_fma_f32 {vr(ACC + i, 2)}, {vr(ACC + i, 2)}, {vr(LN, 2)}, {vr(TT + i, 2)} op_sel_hi:[1,0,1] neg_lo:[0,0,1] neg_hi:[0,0,1]")
                o = RING + 16 + 4 * k
                for i in range(4):
                    a(f"v_cvt_pk_bf16_f32 v{o + i}, v{ACC + regs[2 * i]}, v{ACC + regs[2 * i + 1]}")
                a(f"buffer_store_dwordx4 {vr(o, 4)}, v{vO}, {WS}, s{sO1} offen offset:{512 * k} sc1", tag="st")

        def out_flag():
            a(f"s_mul_i32 s{sPEND}, s{sCO}, {FL_STRIDE}")
            a(f"s_add_u32 s{sPEND}, s{sPEND}, s{sK1}")

        a(f"s_mov_b32 s{sSB}, {STB3}")
        a(f"s_mov_b32 s{sCSB}, 0x2000")
        staged_loop(a, nm, abort, done, WS_X + X_BYTES, 2 * X_BYTES, FL_XB,
                    lambda sr_: stats_dma(WS_ST + ST_BYTES, sr_), compute, out_flag, 2, vMB if swap else 78)


def role_p2(a, abort, done):
    lane_setup(a, 12 if AO3 else 18)
    vXA, vSTA, vCS, vLDS, vO, vFO = 9, 10, 11, 12, 14, 185
    vMB = 184
    ACC0, ACC1, RING, STR, CS0, TT0, LNV, LN, W1T, OUT = 16, 32, 48, 64, 84, 100, 116, 148, 152, 188
    CS1, TT1 = LNV, LNV + 16
    GA, RB = 16, 17
    SRD_B2 = SRD_B

    def w0(t):
        return ar(4 * t, 4)

    def w1(t):
        return ar(144 + 4 * t, 4) if t < 28 else vr(W1T + 4 * (t - 28), 4)

    a(f"""
    s_cmp_ge_u32 s{S_ROLE}, 48
    s_cselect_b32 s{sLAYS}, 1, 0
    s_cselect_b32 s{S_TMP}, 48, 0
    s_sub_u32 s{S_ROLE}, s{S_ROLE}, s{S_TMP}
    s_cmp_lt_u32 s{S_ROLE}, 32
    s_cselect_b32 s{sK2}, 1, 0
    s_sub_u32 s{S_TMP}, s{S_ROLE}, 32
    s_lshl_b32 s{S_TMP}, s{S_TMP}, 1
    s_cmp_eq_u32 s{sK2}, 1
    s_cselect_b32 s{sK3}, s{S_ROLE}, s{S_TMP}
    s_cselect_b32 s{S_TMP}, {KA_WK}, {KA_WQ}
    s_cselect_b32 s{S_TMP + 1}, {KA_WV}, {KA_WQ}
    s_load_dwordx2 s[{SRD_A}:{SRD_A + 1}], s[0:1], s{S_TMP}
    s_load_dwordx2 s[{SRD_B}:{SRD_B + 1}], s[0:1], s{S_TMP + 1}
    s_mov_b32 s{SRD_A + 2}, {576 * 8192}
    s_mov_b32 s{SRD_A + 3}, 0x00020000
    s_mov_b32 s{SRD_B + 2}, {576 * 8192}
    s_mov_b32 s{SRD_B + 3}, 0x00020000
    s_lshl_b32 s{sK1}, s{sK3}, 8
    s_mul_i32 s{S_TMP}, s{S_WAVE}, {16 * 8192}
    s_add_u32 s{sK1}, s{sK1}, s{S_TMP}
    s_cmp_eq_u32 s{sK2}, 1
    s_cselect_b32 s{S_TMP}, 0, 256
    s_add_u32 s{sK4}, s{sK1}, s{S_TMP}
    """)
    a.force_wait(lg=0)
    a(f"s_and_b32 s{SRD_A + 1}, s{SRD_A + 1}, 0xffff")
    a(f"s_and_b32 s{SRD_B + 1}, s{SRD_B + 1}, 0xffff")
    gate(a, 2, sLAYS, vT0, vT1, abort, "Lp2_gate")
    a(f"""
    v_lshrrev_b32 v{vT0}, 8, v{vL16}
    v_bfe_u32 v{vT1}, v{vL16}, 6, 2
    v_xor_b32 v{vT1}, v{vT1}, v{vT0}
    v_lshlrev_b32 v{vT1}, 6, v{vT1}
    v_and_b32 v{GA}, 0x30, v{vL16}
    v_add_u32 v{GA}, v{GA}, v{vT1}
    v_lshl_add_u32 v{GA}, v{vT0}, 13, v{GA}
    v_lshrrev_b32 v{vT0}, 2, v{vC}
    v_xor_b32 v{vT1}, s{S_WAVE}, v{vT0}
    v_lshlrev_b32 v{RB}, 6, v{vT1}
    v_lshrrev_b32 v{vT1}, 1, v{vG}
    v_lshl_add_u32 v{vT0}, v{vT1}, 3, v{vT0}
    v_lshl_add_u32 v{RB}, v{vT0}, 8, v{RB}
    v_and_b32 v{vT0}, 1, v{vG}
    v_lshl_add_u32 v{RB}, v{vT0}, 5, v{RB}
    v_and_b32 v{vT0}, 3, v{vC}
    v_lshl_add_u32 v{RB}, v{vT0}, 3, v{RB}
    v_add_u32 v{RB + 1}, 65536, v{RB}
    s_lshl_b32 s{sO1}, s{S_WAVE}, 12
    """)
    a.auto = False
    NCH, NR = 18, 8

    def dma(i):
        m, c = i // 9, i % 9
        src = (SRD_A, SRD_B)[m]
        a(f"s_add_u32 m0, s{sO1}, {(i % NR) * 16384}")
        for q in range(4):
            a(f"s_add_u32 s{S_TMP}, s{(sK1, sK4)[m]}, {(64 * c + 4 * q) * 8192}")
            a(f"buffer_load_dwordx4 v{GA}, s[{src}:{src + 3}], s{S_TMP} offen lds")
            if q < 3:
                a("s_add_u32 m0, m0, 1024")
    for i in range(NR - 1):
        dma(i)
    nissued = NR - 1
    for i in range(NCH):
        a(f"s_waitcnt vmcnt({4 * (nissued - 1 - i)})")
        a("s_barrier")
        if nissued < NCH:
            dma(nissued)
            nissued += 1
        m, c = i // 9, i % 9
        sl = i % NR
        for tp in range(4):
            t = 4 * c + tp
            dst = (w0, w1)[m](t)
            k, b0 = dst[0], int(dst[2:dst.index(":")])
            for sub in range(2):
                a(f"ds_read_b64_tr_b16 {k}[{b0 + 2 * sub}:{b0 + 2 * sub + 1}], v{RB + (sl >> 2)} offset:{(sl & 3) * 16384 + tp * 4096 + sub * 1024}")
        a("s_waitcnt lgkmcnt(0)")
    a("s_barrier")
    a.auto = True
    a.vmq, a.lgq = [], []
    a(f"""
    v_bfe_u32 v{vSTA}, v{vL16}, 4, 5
    v_lshrrev_b32 v{vT0}, 9, v{vL16}
    v_lshlrev_b32 v{vSTA}, 4, v{vSTA}
    v_mul_u32_u24 v{vT1}, 2560, v{vT0}
    v_add_u32 v{vSTA}, v{vSTA}, v{vT1}
    v_add_u32 v{vSTA}, {STB3}, v{vSTA}
    s_lshl_b32 s{sW1K}, s{S_WAVE}, 10
    v_bfe_u32 v{vT1}, v{vL16}, 8, 1
    v_lshlrev_b32 v{vO}, 10, v{vT1}
    v_lshl_add_u32 v{vO}, v{vC}, 4, v{vO}
    v_lshl_add_u32 v{vO}, v{vT0}, 8, v{vO}
    """)
    a(f"""
    s_lshl_b32 s{S_TMP}, s{sK3}, 13
    s_lshl_b32 s{S_TMP + 1}, s{S_WAVE}, 11
    s_add_u32 s{sK4}, s{S_TMP}, s{S_TMP + 1}
    s_add_u32 s{sK4}, s{sK4}, {WS_QKV}
    s_lshl_b32 s{sK1}, s{sK3}, 9
    s_lshl_b32 s{S_TMP}, s{S_WAVE}, 2
    s_add_u32 s{sK1}, s{sK1}, s{S_TMP}
    s_add_u32 s{sK1}, s{sK1}, {WS_FLAGS + FL_QKV}
    s_cmp_eq_u32 s{sK2}, 1
    s_cselect_b32 s{S_TMP}, {QKV_M}, 0
    s_cselect_b32 s{S_TMP + 1}, 128, 0
    s_add_u32 s{sK4}, s{sK4}, s{S_TMP}
    s_add_u32 s{sK1}, s{sK1}, s{S_TMP + 1}
    s_cmp_eq_u32 s{sK2}, 1
    s_cselect_b32 s{S_TMP}, 0, 384
    s_add_u32 s{S_TMP}, s{S_TMP}, 128
    v_lshrrev_b32 v{vFO}, 4, v{vL16}
    v_mul_lo_u32 v{vFO}, v{vFO}, s{S_TMP}
    v_mov_b32 v{RING}, 0x3f803f80
    v_mov_b32 v{RING + 1}, 0x3f803f80
    v_mov_b32 v{RING + 2}, 0x3f803f80
    v_mov_b32 v{RING + 3}, 0x3f803f80
    s_lshl_b32 s{S_TMP}, s{S_WAVE}, 8
    s_add_u32 s{S_TMP}, s{S_TMP}, {3 * XBUF}
    v_bfe_u32 v{vT0}, v{vL16}, 4, 5
    v_lshl_add_u32 v{vLDS}, v{vT0}, 2, s{S_TMP}
    v_lshrrev_b32 v{vT0}, 9, v{vL16}
    v_lshl_add_u32 v{vLDS + 1}, v{vT0}, 4, s{S_TMP}
    s_cmp_eq_u32 s{sK2}, 1
    s_cbranch_scc1 Lp2_kv
    """)
    for kv in (0, 1):
        nm = "LpKV" if kv else "LpQQ"
        if kv:
            a.label("Lp2_kv")
            a.restore(([], []))
        o = vr(RING, 4)
        for t in range(36):
            a(MF32(CS0, w0(t), o, "0" if t == 0 else None))
            if kv:
                a(MF32(ACC1, o, w1(t), "0" if t == 0 else None))
            else:
                a(MF32(CS1, w1(t), o, "0" if t == 0 else None))
        if kv:
            a(f"v_mov_b32 v{vCS}, v{ACC1}")
        d1 = QKV_M if kv else 8192

        def early(a):
            a(f"v_add_u32 v{vXA}, s{sBUF}, v{vL16}")
            a(f"v_add_u32 v{vT0}, s{sCSB}, v{vSTA}")
            for t in range(3):
                a(f"ds_read_b128 {vr(RING + 4 * t, 4)}, v{vXA} offset:{t * 1024}")
            for i in range(5):
                a(f"ds_read_b128 {vr(STR + 4 * i, 4)}, v{vT0} offset:{512 * i}")

        def compute(a, hook, kv=kv, d1=d1):
            early(a)
            sm = [None] * 3 + stats_math(STR, LN, LN + 1)
            sm += [f"v_mul_f32 v{TT0 + i}, v{LN + 1}, v{CS0 + i}" for i in range(16)]
            if kv:
                sm += [f"ds_write2_b32 v{vLDS}, v{LN}, v{LN + 1} offset0:0 offset1:32"]
                sm += [f"ds_read_b128 {vr(LNV + 4 * i, 4)}, v{vLDS + 1} offset:{(i >> 2) * 128 + (i & 3) * 32}" for i in range(8)]
                sm += [None] * 9 + [f"v_mul_f32 v{LNV + 16 + i}, v{vCS}, v{LNV + 16 + i}" for i in range(16)]
            else:
                sm += [f"v_mul_f32 v{TT1 + i}, v{LN + 1}, v{CS1 + i}" for i in range(16)]
            sm += [f"s_mul_i32 s{sO1}, s{sCL}, {3 * QKV_M}", f"s_lshl_b32 s{sK3}, s{sCS}, 18",
                   f"s_add_u32 s{sO1}, s{sO1}, s{sK3}", f"s_add_u32 s{sO1}, s{sO1}, s{sK4}"]
            ring = [RING + 4 * i for i in range(4)]
            nr = 4

            def rd(t):
                return f"ds_read_b128 {vr(ring[t % nr], 4)}, v{vXA} offset:{t * 1024}"
            fill = list(sm)

            def m0(t):
                return MF32(ACC0, w0(t), vr(ring[t % nr], 4), "0" if t == 0 else None)

            def m1(t):
                x = vr(ring[t % nr], 4)
                return MF32(ACC1, x if kv else w1(t), w1(t) if kv else x, "0" if t == 0 else None)

            def cvts(tile, k):
                ACC = (ACC0, ACC1)[tile]
                ot = OUT + 8 * tile + 4 * k
                ops = []
                for i in range(4):
                    if kv and tile == 1:
                        r = [0, 2, 8, 10][i] + 4 * k
                        ops.append(f"v_cvt_pk_bf16_f32 v{ot + i}, v{ACC + r}, v{ACC + r + 1}")
                    else:
                        ops.append(f"v_cvt_pk_bf16_f32 v{ot + i}, v{ACC + 4 * k + i}, v{ACC + 8 + 4 * k + i}")
                return ops

            def store(tile, k):
                return f"buffer_store_dwordx4 {vr(OUT + 8 * tile + 4 * k, 4)}, v{vO}, {WS}, s{(sO1, sK3)[tile]} offen offset:{512 * k} sc1"
            NT = 32 if TAILX else 36
            for t in range(NT):
                a(m0(t))
                if t + nr - 1 < 36:
                    a(rd(t + nr - 1))
                k = 3
                while fill and k > 0:
                    seq(a, fill.pop(0)); k -= 1
                a(m1(t))
                k = 4
                while fill and k > 0:
                    seq(a, fill.pop(0)); k -= 1
                hook(t)
            assert not fill
            if TAILX:
                a(m0(32)); a(rd(35)); a(m0(33)); hook(32)
                a(m0(34)); a(m0(35)); hook(33)
                e0 = [f"v_fma_f32 v{ACC0 + i}, v{ACC0 + i}, v{LN}, -v{TT0 + i}" for i in (0, 8, 1, 9, 2, 10, 3, 11)] + cvts(0, 0) + \
                     [f"v_fma_f32 v{ACC0 + i}, v{ACC0 + i}, v{LN}, -v{TT0 + i}" for i in (4, 12, 5, 13, 6, 14, 7, 15)] + cvts(0, 1)
                a(m1(32)); a(m1(33))
                for x_ in e0[:5]:
                    a(x_)
                hook(34)
                a(m1(34))
                for x_ in e0[5:11]:
                    a(x_)
                a(m1(35))
                for x_ in e0[11:12]:
                    a(x_)
                hook(35)
                a(store(0, 0), tag="st")
                for x_ in e0[12:]:
                    a(x_)
                a(store(0, 1), tag="st")
            a(f"s_add_u32 s{sK3}, s{sO1}, {d1}")
            for tile in range(1 if TAILX else 0, 2):
                ACC = (ACC0, ACC1)[tile]
                swap = kv and tile == 1
                TT = (TT0, TT1)[tile]
                for i in range(0, 16, 2):
                    if swap:
                        a(f"v_pk_fma_f32 {vr(ACC + i, 2)}, {vr(ACC + i, 2)}, {vr(LNV + i, 2)}, {vr(LNV + 16 + i, 2)} neg_lo:[0,0,1] neg_hi:[0,0,1]")
                    else:
                        a(f"v_pk_fma_f32 {vr(ACC + i, 2)}, {vr(ACC + i, 2)}, {vr(LN, 2)}, {vr(TT + i, 2)} op_sel_hi:[1,0,1] neg_lo:[0,0,1] neg_hi:[0,0,1]")
                for k in range(2):
                    for x_ in cvts(tile, k):
                        a(x_)
                    a(store(tile, k), tag="st")

        def out_flag():
            a(f"s_mul_i32 s{sPEND}, s{sCO}, {FL_STRIDE}")
            a(f"s_add_u32 s{sPEND}, s{sPEND}, s{sK1}")

        a(f"s_mov_b32 s{sSB}, {STB3}")
        a(f"s_mov_b32 s{sCSB}, 0x2000")
        eager_loop(a, nm, abort, done, WS_X + X_BYTES, 2 * X_BYTES, FL_XB,
                   ("lds", lambda sr_, sd: stats_dma(WS_ST + ST_BYTES, sr_, sd)), compute, out_flag, 4, vMB, sLAYS, pub=(vFO, 3),
                   toggles=((sSB, 0x2000), (sCSB, 0x2000)))


def role_awo(a, abort, done):
    lane_setup(a, 64)
    vXA, vSTO, vSEL, vA0, vRES = 9, 10, 11, 12, 14
    ACC, RING, RES, SS = 16, 32, 64, 72
    srd(a, SRD_A, KA_WO, 576 * 1152)
    a(f"""
    s_cmp_ge_u32 s{S_ROLE}, 5
    s_cselect_b32 s{sLAYS}, 1, 0
    s_cselect_b32 s{S_TMP}, 5, 0
    s_sub_u32 s{S_ROLE}, s{S_ROLE}, s{S_TMP}
    s_lshl_b32 s{sK2}, s{S_ROLE}, 2
    s_add_u32 s{sK2}, s{sK2}, s{S_WAVE}
    s_min_u32 s{sK2}, s{sK2}, 17
    s_lshl_b32 s{sK1}, s{sK2}, 6
    v_bfe_u32 v{vSTO}, v{vL16}, 4, 5
    """)
    feat_of_row(a, vRES, vSTO, vT0)
    a(f"v_and_b32 v{vT0}, 1, v{vRES}")
    sel_of_parity(a, vSEL, vT0, vT1)
    a(f"""
    v_and_b32 v{vRES}, 30, v{vRES}
    v_lshlrev_b32 v{vRES}, 1, v{vRES}
    v_lshrrev_b32 v{vXA}, 9, v{vL16}
    v_mul_u32_u24 v{vT0}, {8 * 1152}, v{vXA}
    v_add_u32 v{vA0}, v{vT0}, v{vRES}
    v_add_u32 v{vA0 + 1}, 1152, v{vA0}
    """)
    load_cols(a, SRD_A, vA0, vSEL, [((18 * t + 2 * d) * 1152, WB + 4 * t + d) for t in range(32) for d in range(4)])
    a(f"""
    v_mul_u32_u24 v{vT0}, {72 * 1152}, v{vXA}
    v_add_u32 v{vA0}, v{vT0}, v{vRES}
    v_add_u32 v{vA0 + 1}, 1152, v{vA0}
    """)
    load_cols(a, SRD_A, vA0, vSEL, [((144 * t + 18 * d + 16) * 1152, WB + 128 + 4 * t + d) for t in range(4) for d in range(4)])
    a(f"""
    v_lshlrev_b32 v{vSTO}, 4, v{vSTO}
    v_lshl_add_u32 v{vRES}, v{vXA}, 9, v{vSTO}
    s_lshl_b32 s{S_TMP}, s{sK2}, 11
    v_add_u32 v{vRES}, s{S_TMP}, v{vRES}
    s_lshr_b32 s{S_TMP}, s{sK2}, 1
    s_lshl_b32 s{S_TMP}, s{S_TMP}, 9
    s_and_b32 s{S_TMP + 1}, s{sK2}, 1
    s_lshl_b32 s{S_TMP + 1}, s{S_TMP + 1}, 3
    s_add_u32 s{S_TMP}, s{S_TMP}, s{S_TMP + 1}
    v_add_u32 v{vSTO}, s{S_TMP}, v{vSTO}
    s_lshr_b32 s{sK1}, s{sK2}, 2
    s_lshl_b32 s{sK1}, s{sK1}, 7
    s_and_b32 s{S_TMP}, s{sK2}, 3
    s_lshl_b32 s{S_TMP}, s{S_TMP}, 2
    s_add_u32 s{sK1}, s{sK1}, s{S_TMP}
    s_add_u32 s{sK1}, s{sK1}, {WS_FLAGS + FL_XB}
    """)

    def res_loads(srd_):
        pre = [f"s_mul_i32 s{sO3}, s{sNL}, {2 * X_BYTES}", f"s_mul_i32 s{S_TMP + 1}, s{sNS}, {X_SEG}",
               f"s_add_u32 s{sO3}, s{sO3}, s{S_TMP + 1}", f"s_add_u32 s{sO3}, s{sO3}, {WS_X}"]
        ops = [[f"buffer_load_dwordx4 {vr(RES + 4 * k, 4)}, v{vRES}, {srd_}, s{sO3} offen offset:{1024 * k}"] for k in range(2)]
        ops[0] = pre + ops[0]
        return ops

    def compute(pre, dma, extra, mid, roll):
        a(f"v_add_u32 v{vXA}, s{sBUF}, v{vL16}")
        for i in range(8):
            a(f"v_lshlrev_b32 v{ACC + 2 * i}, 16, v{RES + i}")
            a(f"v_and_b32 v{ACC + 2 * i + 1}, 0xffff0000, v{RES + i}")
        fl = [f"s_mul_i32 s{sO1}, s{sCL}, {2 * X_BYTES}", f"s_mul_i32 s{sK3}, s{sCS}, {X_SEG}",
              f"s_add_u32 s{sO1}, s{sO1}, s{sK3}", f"s_add_u32 s{sO1}, s{sO1}, {WS_X + X_BYTES}",
              f"s_mul_i32 s{sK4}, s{sCL}, {2 * ST_BYTES}", f"s_mul_i32 s{sK3}, s{sCS}, {ST_SEG}",
              f"s_add_u32 s{sK4}, s{sK4}, s{sK3}", f"s_add_u32 s{sK4}, s{sK4}, {WS_ST + ST_BYTES}"]
        gemm32(a, ACC, 0, vXA, [RING + 4 * i for i in range(8)], pre, dma, extra, mid, roll, init=True, fill=fl)
        for k in range(2):
            for i in range(4):
                a(f"v_cvt_pk_bf16_f32 v{RING + 4 * k + i}, v{ACC + 8 * k + 2 * i}, v{ACC + 8 * k + 2 * i + 1}")
            a(f"buffer_store_dwordx4 {vr(RING + 4 * k, 4)}, v{vRES}, {WS}, s{sO1} offen offset:{1024 * k} sc1")
        a(f"v_add_f32 v{SS}, v{ACC}, v{ACC + 1}")
        a(f"v_mul_f32 v{SS + 1}, v{ACC}, v{ACC}")
        a(f"v_fmac_f32 v{SS + 1}, v{ACC + 1}, v{ACC + 1}")
        for i in range(2, 16):
            a(f"v_add_f32 v{SS}, v{SS}, v{ACC + i}")
            a(f"v_fmac_f32 v{SS + 1}, v{ACC + i}, v{ACC + i}")
        seq(a, f"v_mov_b32 v{SS + 2}, v{SS}", f"v_mov_b32 v{SS + 3}, v{SS + 1}",
            f"v_permlane32_swap_b32 v{SS}, v{SS + 2}", f"v_permlane32_swap_b32 v{SS + 1}, v{SS + 3}",
            f"v_add_f32 v{SS}, v{SS}, v{SS + 2}", f"v_add_f32 v{SS + 1}, v{SS + 1}, v{SS + 3}",
            f"buffer_store_dwordx2 {vr(SS, 2)}, v{vSTO}, {WS}, s{sK4} offen sc1")

    def out_flag():
        a(f"s_mul_i32 s{sPEND}, s{sCO}, {FL_STRIDE}")
        a(f"s_add_u32 s{sPEND}, s{sPEND}, s{sK1}")

    staged_loop(a, "Lawo", abort, done, WS_OA, X_BYTES, FL_OA, res_loads, compute, out_flag, 3, 12, sLAYS)


def role_awo2(a, abort, done):
    lane_setup(a, 64)
    vXA, vSTO, vRES, vFO = 9, 10, 12, 185
    ACC0, ACC1, RING, RES, SS, W1T, OUT = 16, 32, 48, 80, 96, 152, 108
    GA1, GA2, RB = 16, 17, 18
    sT0, sT1 = sK2, sK3

    def w0(t):
        return ar(4 * t, 4)

    def w1(t):
        return ar(144 + 4 * t, 4) if t < 28 else vr(W1T + 4 * (t - 28), 4)
    srd(a, SRD_A, KA_WO, 576 * 1152)
    a(f"""
    s_cmp_ge_u32 s{S_ROLE}, 3
    s_cselect_b32 s{sLAYS}, 1, 0
    s_cselect_b32 s{S_TMP}, 3, 0
    s_sub_u32 s{S_ROLE}, s{S_ROLE}, s{S_TMP}
    s_mul_i32 s{sT0}, s{S_ROLE}, 6
    s_lshl_b32 s{S_TMP}, s{S_WAVE}, 1
    s_add_u32 s{S_TMP + 1}, s{S_WAVE}, 2
    s_cmp_lt_u32 s{S_WAVE}, 2
    s_cselect_b32 s{S_TMP}, s{S_TMP}, s{S_TMP + 1}
    s_cselect_b32 s{S_TMP + 1}, 1, 0
    s_add_u32 s{sT0}, s{sT0}, s{S_TMP}
    s_add_u32 s{sT1}, s{sT0}, s{S_TMP + 1}
    """)
    gate(a, 4, sLAYS, vT0, vT1, abort, "Lao_gate")
    a(f"""
    v_lshrrev_b32 v{vT0}, 6, v{vL16}
    v_and_b32 v{vT1}, 0x30, v{vL16}
    v_mul_u32_u24 v{GA1}, 1152, v{vT0}
    v_add_u32 v{GA1}, v{GA1}, v{vT1}
    v_lshrrev_b32 v{GA2}, 1, v{vT0}
    v_mul_u32_u24 v{GA2}, 18, v{GA2}
    v_and_b32 v{vT0}, 1, v{vT0}
    v_add_u32 v{GA2}, v{GA2}, v{vT0}
    v_add_u32 v{GA2}, 16, v{GA2}
    v_mul_u32_u24 v{GA2}, 1152, v{GA2}
    v_add_u32 v{GA2}, v{GA2}, v{vT1}
    v_lshrrev_b32 v{vT0}, 2, v{vC}
    v_lshrrev_b32 v{vT1}, 1, v{vG}
    v_lshl_add_u32 v{vT0}, v{vT1}, 3, v{vT0}
    v_lshlrev_b32 v{RB}, 6, v{vT0}
    v_and_b32 v{vT0}, 1, v{vC}
    v_lshl_add_u32 v{RB}, v{vT0}, 4, v{RB}
    v_and_b32 v{vT0}, 1, v{vG}
    v_lshl_add_u32 v{RB}, v{vT0}, 5, v{RB}
    v_bfe_u32 v{vT0}, v{vC}, 1, 1
    v_lshl_add_u32 v{RB}, v{vT0}, 3, v{RB}
    s_lshl_b32 s{sO1}, s{S_WAVE}, 15
    v_add_u32 v{RB}, s{sO1}, v{RB}
    s_lshl_b32 s{sK1}, s{sT0}, 6
    s_lshl_b32 s{sK4}, s{sT1}, 6
    """)
    a.auto = False
    NR, N = 32, 72

    def dma(i):
        m, t = i // 36, i % 36
        a(f"s_add_u32 m0, s{sO1}, {(i % NR) * 1024}")
        a(f"s_add_u32 s{S_TMP}, s{(sK1, sK4)[m]}, {(18 * t if t < 32 else 144 * (t - 32)) * 1152}")
        a(f"buffer_load_dwordx4 v{GA1 if t < 32 else GA2}, s[{SRD_A}:{SRD_A + 3}], s{S_TMP} offen lds")
    for i in range(NR):
        dma(i)
    nis = NR
    for i0 in range(0, N, 4):
        a(f"s_waitcnt vmcnt({nis - i0 - 4})")
        for i in range(i0, i0 + 4):
            m, t = i // 36, i % 36
            dst = (w0, w1)[m](t)
            k, b0 = dst[0], int(dst[2:dst.index(":")])
            for sub in range(2):
                a(f"ds_read_b64_tr_b16 {k}[{b0 + 2 * sub}:{b0 + 2 * sub + 1}], v{RB} offset:{(i % NR) * 1024 + sub * 256}")
        a("s_waitcnt lgkmcnt(0)")
        for i in range(nis, min(N, nis + 4)):
            dma(i)
        nis = min(N, nis + 4)
    a("s_barrier")
    a.auto = True
    a.vmq, a.lgq = [], []
    a(f"""
    v_bfe_u32 v{vT0}, v{vL16}, 4, 5
    v_lshlrev_b32 v{vT0}, 4, v{vT0}
    v_lshrrev_b32 v{vT1}, 9, v{vL16}
    v_lshl_add_u32 v{vT1}, v{vT1}, 9, v{vT0}
    """)
    for j, sT in enumerate((sT0, sT1)):
        a(f"""
        s_lshl_b32 s{S_TMP}, s{sT}, 11
        v_add_u32 v{vRES + j}, s{S_TMP}, v{vT1}
        s_lshr_b32 s{S_TMP}, s{sT}, 1
        s_lshl_b32 s{S_TMP}, s{S_TMP}, 9
        s_and_b32 s{S_TMP + 1}, s{sT}, 1
        s_lshl_b32 s{S_TMP + 1}, s{S_TMP + 1}, 3
        s_add_u32 s{S_TMP}, s{S_TMP}, s{S_TMP + 1}
        v_add_u32 v{vSTO + j}, s{S_TMP}, v{vT0}
        """)
    a(f"""
    s_lshr_b32 s{sK1}, s{sT0}, 2
    s_lshl_b32 s{sK1}, s{sK1}, 7
    s_and_b32 s{S_TMP}, s{sT0}, 3
    s_lshl_b32 s{S_TMP}, s{S_TMP}, 2
    s_add_u32 s{sK1}, s{sK1}, s{S_TMP}
    s_lshr_b32 s{sK4}, s{sT1}, 2
    s_lshl_b32 s{sK4}, s{sK4}, 7
    s_and_b32 s{S_TMP}, s{sT1}, 3
    s_lshl_b32 s{S_TMP}, s{S_TMP}, 2
    s_add_u32 s{sK4}, s{sK4}, s{S_TMP}
    s_sub_u32 s{S_TMP}, s{sK4}, s{sK1}
    v_lshrrev_b32 v{vFO}, 4, v{vL16}
    v_mul_lo_u32 v{vFO}, v{vFO}, s{S_TMP}
    s_add_u32 s{sK1}, s{sK1}, {WS_FLAGS + FL_XB}
    """)

    def res_loads(srd_):
        pre = [f"s_mul_i32 s{sO3}, s{sNL}, {2 * X_BYTES}", f"s_mul_i32 s{S_TMP + 1}, s{sNS}, {X_SEG}",
               f"s_add_u32 s{sO3}, s{sO3}, s{S_TMP + 1}", f"s_add_u32 s{sO3}, s{sO3}, {WS_X}"]
        ops = [[f"buffer_load_dwordx4 {vr(RES + 8 * j + 4 * k, 4)}, v{vRES + j}, {srd_}, s{sO3} offen offset:{1024 * k}"] for j in range(2) for k in range(2)]
        ops[0] = pre + ops[0]
        return ops

    def compute(a, hook):
        a(f"v_add_u32 v{vXA}, s{sBUF}, v{vL16}")
        ring = [RING + 4 * i for i in range(8)]
        nr = 8

        def rd(t):
            return f"ds_read_b128 {vr(ring[t % nr], 4)}, v{vXA} offset:{t * 1024}"
        for t in range(nr - 1):
            a(rd(t))
        for j, ACC in enumerate((ACC0, ACC1)):
            for i in range(8):
                a(f"v_lshlrev_b32 v{ACC + 2 * i}, 16, v{RES + 8 * j + i}")
                a(f"v_and_b32 v{ACC + 2 * i + 1}, 0xffff0000, v{RES + 8 * j + i}")
        fill = [f"s_mul_i32 s{sO1}, s{sCL}, {2 * X_BYTES}", f"s_mul_i32 s{sK3}, s{sCS}, {X_SEG}",
                f"s_add_u32 s{sO1}, s{sO1}, s{sK3}", f"s_add_u32 s{sO1}, s{sO1}, {WS_X + X_BYTES}",
                f"s_mul_i32 s{sK4}, s{sCL}, {2 * ST_BYTES}", f"s_mul_i32 s{sK3}, s{sCS}, {ST_SEG}",
                f"s_add_u32 s{sK4}, s{sK4}, s{sK3}", f"s_add_u32 s{sK4}, s{sK4}, {WS_ST + ST_BYTES}"]
        for t in range(36):
            x = vr(ring[t % nr], 4)
            a(MF32(ACC0, w0(t), x))
            if t + nr - 1 < 36:
                a(rd(t + nr - 1))
            a(MF32(ACC1, w1(t), x))
            k = 3
            while fill and k > 0:
                seq(a, fill.pop(0)); k -= 1
            hook(t)
        for j, ACC in enumerate((ACC0, ACC1)):
            for k in range(2):
                o = OUT + 8 * j + 4 * k
                for i in range(4):
                    a(f"v_cvt_pk_bf16_f32 v{o + i}, v{ACC + 8 * k + 2 * i}, v{ACC + 8 * k + 2 * i + 1}")
                a(f"buffer_store_dwordx4 {vr(o, 4)}, v{vRES + j}, {WS}, s{sO1} offen offset:{1024 * k} sc1")
        ONE2 = SS + 8
        a(f"v_mov_b32 v{ONE2}, 0x3f803f80")
        for j in range(2):
            a(f"v_mov_b32 v{SS + 4 * j}, 0")
            a(f"v_mov_b32 v{SS + 4 * j + 1}, 0")
        for i in range(8):
            for j in range(2):
                a(f"v_dot2c_f32_bf16 v{SS + 4 * j}, v{OUT + 8 * j + i}, v{ONE2}")
                a(f"v_dot2c_f32_bf16 v{SS + 4 * j + 1}, v{OUT + 8 * j + i}, v{OUT + 8 * j + i}")
        a("s_nop 2")
        for j in range(2):
            S_ = SS + 4 * j
            a(f"v_mov_b32 v{S_ + 2}, v{S_}")
            a(f"v_mov_b32 v{S_ + 3}, v{S_ + 1}")
        for j in range(2):
            S_ = SS + 4 * j
            a(f"v_permlane32_swap_b32 v{S_}, v{S_ + 2}")
            a(f"v_permlane32_swap_b32 v{S_ + 1}, v{S_ + 3}")
        for j in range(2):
            S_ = SS + 4 * j
            a(f"v_add_f32 v{S_}, v{S_}, v{S_ + 2}")
            a(f"v_add_f32 v{S_ + 1}, v{S_ + 1}, v{S_ + 3}")
            a(f"buffer_store_dwordx2 {vr(S_, 2)}, v{vSTO + j}, {WS}, s{sK4} offen sc1")

    def out_flag():
        a(f"s_mul_i32 s{sPEND}, s{sCO}, {FL_STRIDE}")
        a(f"s_add_u32 s{sPEND}, s{sPEND}, s{sK1}")

    eager_loop(a, "Lawo", abort, done, WS_OA, X_BYTES, FL_OA, ("reg", res_loads), compute, out_flag, 6, 184, sLAYS, pub=(vFO, 3))


def role_awo3(a, abort, done):
    lane_setup(a, 64)
    vXA, vRES, vSTO, vRZ = 9, 10, 11, 12
    ACC, RING, RES, SS, OUT = 16, 40, 64, 80, 96
    GA1, GA2, RB = 16, 17, 18
    sSLC = sK2

    def wf(tile, t):
        return ar(4 * (3 * t + tile), 4)
    srd(a, SRD_A, KA_WO, 576 * 1152)
    a(f"""
    s_cmp_ge_u32 s{S_ROLE}, 3
    s_cselect_b32 s{sLAYS}, 1, 0
    s_cselect_b32 s{S_TMP}, 3, 0
    s_sub_u32 s{S_ROLE}, s{S_ROLE}, s{S_TMP}
    s_lshl_b32 s{sSLC}, s{S_ROLE}, 2
    s_add_u32 s{sSLC}, s{sSLC}, s{S_WAVE}
    """)
    gate(a, 4, sLAYS, vT0, vT1, abort, "Lao_gate")
    a(f"""
    v_lshrrev_b32 v{vT0}, 7, v{vL16}
    v_and_b32 v{vT1}, 0x70, v{vL16}
    v_mul_u32_u24 v{GA1}, 1152, v{vT0}
    v_add_u32 v{GA1}, v{GA1}, v{vT1}
    v_lshrrev_b32 v{GA2}, 1, v{vT0}
    v_mul_u32_u24 v{GA2}, 18, v{GA2}
    v_and_b32 v{vT0}, 1, v{vT0}
    v_add_u32 v{GA2}, v{GA2}, v{vT0}
    v_add_u32 v{GA2}, 16, v{GA2}
    v_mul_u32_u24 v{GA2}, 1152, v{GA2}
    v_add_u32 v{GA2}, v{GA2}, v{vT1}
    v_lshrrev_b32 v{vT0}, 2, v{vC}
    v_lshl_add_u32 v{vT0}, v{vG}, 3, v{vT0}
    v_lshlrev_b32 v{RB}, 7, v{vT0}
    v_and_b32 v{vT0}, 3, v{vC}
    v_lshl_add_u32 v{RB + 1}, v{vT0}, 3, v{RB}
    v_lshl_add_u32 v{RB}, v{vT0}, 4, v{RB}
    s_lshl_b32 s{sO1}, s{S_WAVE}, 15
    v_add_u32 v{RB}, s{sO1}, v{RB}
    v_add_u32 v{RB + 1}, s{sO1}, v{RB + 1}
    s_mul_i32 s{sK1}, s{sSLC}, 96
    """)
    a.auto = False
    NR, N = 8, 18

    def dma(t):
        for q in range(4):
            a(f"s_add_u32 m0, s{sO1}, {(t % NR) * 4096 + q * 1024}")
            row = 36 * t + 18 * (q >> 1) + 8 * (q & 1) if t < 16 else 18 * (16 * (t - 16) + 4 * q)
            a(f"s_add_u32 s{S_TMP}, s{sK1}, {row * 1152}")
            a(f"buffer_load_dwordx4 v{GA1 if t < 16 else GA2}, s[{SRD_A}:{SRD_A + 3}], s{S_TMP} offen lds")
    for t in range(NR):
        dma(t)
    nis = NR
    for t in range(N):
        a(f"s_waitcnt vmcnt({4 * (nis - t - 1)})")
        for tile in range(3):
            dst = wf(tile, t)
            b0 = int(dst[2:dst.index(":")])
            for sub in range(2):
                ad, off = (RB, (0, 8)[tile]) if tile < 2 else (RB + 1, 64)
                a(f"ds_read_b64_tr_b16 a[{b0 + 2 * sub}:{b0 + 2 * sub + 1}], v{ad} offset:{(t % NR) * 4096 + sub * 512 + off}")
        a("s_waitcnt lgkmcnt(0)")
        if nis < N:
            dma(nis)
            nis += 1
    a("s_barrier")
    a.auto = True
    a.vmq, a.lgq = [], []
    a(f"""
    v_lshlrev_b32 v{vT0}, 4, v{vC}
    v_lshl_add_u32 v{vRES}, v{vG}, 9, v{vT0}
    s_mul_i32 s{S_TMP}, s{sSLC}, {6 * 512}
    v_add_u32 v{vRES}, s{S_TMP}, v{vRES}
    v_lshrrev_b32 v{vT1}, 1, v{vG}
    v_lshl_add_u32 v{vRZ}, v{vT1}, 9, v{vT0}
    v_and_b32 v{vT1}, 1, v{vG}
    v_lshl_add_u32 v{vRZ}, v{vT1}, 3, v{vRZ}
    s_add_u32 s{S_TMP}, s{S_TMP}, 2048
    v_add_u32 v{vRZ}, s{S_TMP}, v{vRZ}
    s_lshr_b32 s{S_TMP}, s{sSLC}, 1
    s_lshl_b32 s{S_TMP}, s{S_TMP}, 9
    s_and_b32 s{S_TMP + 1}, s{sSLC}, 1
    s_lshl_b32 s{S_TMP + 1}, s{S_TMP + 1}, 3
    s_add_u32 s{S_TMP}, s{S_TMP}, s{S_TMP + 1}
    v_add_u32 v{vSTO}, s{S_TMP}, v{vT0}
    s_lshl_b32 s{sK1}, s{S_ROLE}, 7
    s_lshl_b32 s{S_TMP}, s{S_WAVE}, 2
    s_add_u32 s{sK1}, s{sK1}, s{S_TMP}
    s_add_u32 s{sK1}, s{sK1}, {WS_FLAGS + FL_XB}
    """)

    def res_loads(srd_):
        pre = [f"s_mul_i32 s{sO3}, s{sNL}, {2 * X_BYTES}", f"s_mul_i32 s{S_TMP + 1}, s{sNS}, {X_SEG}",
               f"s_add_u32 s{sO3}, s{sO3}, s{S_TMP + 1}", f"s_add_u32 s{sO3}, s{sO3}, {WS_X}"]
        ops = []
        for tt in range(2):
            ops.append([f"buffer_load_dwordx4 {vr(RES + 8 * tt, 4)}, v{vRES}, {srd_}, s{sO3} offen offset:{256 * tt}"])
            ops.append([f"buffer_load_dwordx2 {vr(RES + 8 * tt + 4, 2)}, v{vRZ}, {srd_}, s{sO3} offen offset:{256 * tt}"])
        ops[0] = pre + ops[0]
        return ops

    def compute(a, hook):
        a(f"v_lshlrev_b32 v{vXA}, 9, v{vG}")
        a(f"v_lshl_add_u32 v{vXA}, v{vC}, 4, v{vXA}")
        a(f"v_add_u32 v{vXA}, s{sBUF}, v{vXA}")
        nr = 6

        def rd(n):
            return f"ds_read_b128 {vr(RING + 4 * (n % nr), 4)}, v{vXA} offset:{(n >> 1) * 2048 + (n & 1) * 256}"
        for n in range(nr - 1):
            a(rd(n))
        for tt in range(2):
            for i in range(6):
                a(f"v_lshlrev_b32 v{ACC + 12 * tt + 2 * i}, 16, v{RES + 8 * tt + i}")
                a(f"v_and_b32 v{ACC + 12 * tt + 2 * i + 1}, 0xffff0000, v{RES + 8 * tt + i}")
        fill = [f"s_mul_i32 s{sO1}, s{sCL}, {2 * X_BYTES}", f"s_mul_i32 s{sK3}, s{sCS}, {X_SEG}",
                f"s_add_u32 s{sO1}, s{sO1}, s{sK3}", f"s_add_u32 s{sO1}, s{sO1}, {WS_X + X_BYTES}",
                f"s_mul_i32 s{sK4}, s{sCL}, {2 * ST_BYTES}", f"s_mul_i32 s{sK3}, s{sCS}, {ST_SEG}",
                f"s_add_u32 s{sK4}, s{sK4}, s{sK3}", f"s_add_u32 s{sK4}, s{sK4}, {WS_ST + ST_BYTES}"]
        for n in range(36):
            t, tt = n >> 1, n & 1
            x = vr(RING + 4 * (n % nr), 4)
            for tile in range(3):
                a(MF(ACC + 12 * tt + 4 * tile, wf(tile, t), x))
                if tile == 0 and n + nr - 1 < 36:
                    a(rd(n + nr - 1))
                if tile == 1 and fill:
                    a(fill.pop(0))
            hook(n)
        ONE2 = SS + 8
        a(f"v_mov_b32 v{ONE2}, 0x3f803f80")
        for tt in range(2):
            o = OUT + 8 * tt
            for i in range(6):
                a(f"v_cvt_pk_bf16_f32 v{o + i}, v{ACC + 12 * tt + 2 * i}, v{ACC + 12 * tt + 2 * i + 1}")
            a(f"buffer_store_dwordx4 {vr(o, 4)}, v{vRES}, {WS}, s{sO1} offen offset:{256 * tt} sc1")
            a(f"buffer_store_dwordx2 {vr(o + 4, 2)}, v{vRZ}, {WS}, s{sO1} offen offset:{256 * tt} sc1")
        for tt in range(2):
            a(f"v_mov_b32 v{SS + 4 * tt}, 0")
            a(f"v_mov_b32 v{SS + 4 * tt + 1}, 0")
        for i in range(6):
            for tt in range(2):
                a(f"v_dot2c_f32_bf16 v{SS + 4 * tt}, v{OUT + 8 * tt + i}, v{ONE2}")
                a(f"v_dot2c_f32_bf16 v{SS + 4 * tt + 1}, v{OUT + 8 * tt + i}, v{OUT + 8 * tt + i}")
        a("s_nop 2")
        for sw in (32, 16):
            for tt in range(2):
                S_ = SS + 4 * tt
                a(f"v_mov_b32 v{S_ + 2}, v{S_}")
                a(f"v_mov_b32 v{S_ + 3}, v{S_ + 1}")
            for tt in range(2):
                S_ = SS + 4 * tt
                a(f"v_permlane{sw}_swap_b32 v{S_}, v{S_ + 2}")
                a(f"v_permlane{sw}_swap_b32 v{S_ + 1}, v{S_ + 3}")
            for tt in range(2):
                S_ = SS + 4 * tt
                a(f"v_add_f32 v{S_}, v{S_}, v{S_ + 2}")
                a(f"v_add_f32 v{S_ + 1}, v{S_ + 1}, v{S_ + 3}")
        a("s_mov_b64 exec, 0xffff")
        for tt in range(2):
            a(f"buffer_store_dwordx2 {vr(SS + 4 * tt, 2)}, v{vSTO}, {WS}, s{sK4} offen offset:{256 * tt} sc1")
        a("s_mov_b64 exec, -1")

    def out_flag():
        a(f"s_mul_i32 s{sPEND}, s{sCO}, {FL_STRIDE}")
        a(f"s_add_u32 s{sPEND}, s{sPEND}, s{sK1}")

    eager_loop(a, "Lawo", abort, done, WS_OA, X_BYTES, FL_OA, ("reg", res_loads), compute, out_flag, 6, 184, sLAYS,
               hpos=(int(os.environ.get("HAO", "17")), [int(x) for x in os.environ.get("LAO", "10,28").split(",")], 3,
                     [int(x) for x in os.environ.get("WAO", "1,15").split(",")]))


def role_aq(a, abort, done, nt=""):
    lane_setup(a, 48)
    vXA, vSTA, vLDS, vOUT = 9, 10, 11, 13
    ACC, CS, RING, STR = 16, 36, 56, 68
    LN, BI = 92, 72
    ST8 = 112
    QB, KC, VA, VB, SP, PP = 128, 132, 136, 140, 144, 68
    WV = 152

    def wreg(tile, t, i=None):
        n = (tile * 18 + t) * 4
        k, b = ("v", WV + n) if n < 104 else ("a", n - 104)
        return f"{k}[{b}:{b + 3}]" if i is None else f"{k}{b + i}"

    a(f"""
    s_lshr_b32 s{sLAYS}, s{S_ROLE}, 4
    s_and_b32 s{S_ROLE}, s{S_ROLE}, 15
    s_lshr_b32 s{sK2}, s{S_ROLE}, 1
    s_lshl_b32 s{sK2}, s{sK2}, 2
    s_and_b32 s{S_TMP}, s{S_ROLE}, 1
    s_add_u32 s{sK2}, s{sK2}, s{S_TMP}
    s_and_b32 s{S_TMP}, s{S_WAVE}, 2
    s_add_u32 s{sK2}, s{sK2}, s{S_TMP}
    s_and_b32 s{sK3}, s{S_WAVE}, 1
    """)
    gate(a, 4, sLAYS, vT0, vT1, abort, "Laq_gate")
    CW, CE = 3 * 96 * 128, 2 * 96 * 32
    CB = CW + CE
    GM, RM, RE, EA, ED = 16, 17, 18, 19, 20
    srd(a, SRD_A, KA_WQKV, 576 * 3456)
    A_ = f"s[{SRD_A}:{SRD_A + 3}]"
    a(f"""
    v_lshrrev_b32 v{vT0}, 7, v{vL16}
    v_mul_u32_u24 v{GM}, 3456, v{vT0}
    v_and_b32 v{vT0}, 0x70, v{vL16}
    v_add_u32 v{GM}, v{GM}, v{vT0}
    s_lshr_b32 s{S_TMP}, s{S_WAVE}, 1
    s_mul_i32 s{sO1}, s{S_TMP}, 72
    v_lshrrev_b32 v{vT0}, 2, v{vC}
    v_lshl_add_u32 v{vT0}, v{vG}, 3, v{vT0}
    v_and_b32 v{vT1}, 3, v{vC}
    v_lshlrev_b32 v{RM}, 7, v{vT0}
    v_lshl_add_u32 v{RM}, v{vT1}, 3, v{RM}
    v_add_u32 v{RM}, s{sO1}, v{RM}
    v_lshlrev_b32 v{RE}, 5, v{vT0}
    v_min_u32 v{vT1}, 1, v{vT1}
    v_lshl_add_u32 v{RE}, v{vT1}, 4, v{RE}
    s_mul_i32 s{S_TMP}, s{S_TMP}, {96 * 32}
    s_add_u32 s{S_TMP}, s{S_TMP}, {CW}
    v_add_u32 v{RE}, s{S_TMP}, v{RE}
    s_sub_u32 s{S_TMP}, s{sK2}, s{S_WAVE}
    """)
    a(f"""
    s_lshr_b32 s{S_TMP}, s{S_WAVE}, 1
    s_lshl_b32 s{S_TMP}, s{S_TMP}, 1
    s_sub_u32 s{S_TMP}, s{sK2}, s{S_TMP}
    s_mul_i32 s{sK1}, s{S_TMP}, 36
    s_mul_i32 s{S_TMP}, s{S_WAVE}, {24 * 3456}
    s_add_u32 s{sK1}, s{sK1}, s{S_TMP}
    s_mul_i32 s{sO2}, s{S_WAVE}, {24 * 128}
    """)
    TID = 21
    a(f"""
    v_lshrrev_b32 v{TID}, 4, v{vL16}
    s_lshl_b32 s{S_TMP}, s{S_WAVE}, 6
    v_add_u32 v{TID}, s{S_TMP}, v{TID}
    v_cmp_le_u32 vcc, 96, v{TID}
    v_cndmask_b32 v{vT0}, 0, 1, vcc
    v_mul_u32_u24 v{vT1}, 96, v{vT0}
    v_sub_u32 v{vT1}, v{TID}, v{vT1}
    v_lshlrev_b32 v{EA}, 7, v{vT1}
    v_mul_u32_u24 v{ED}, 72, v{vT0}
    v_add_u32 v{EA}, v{EA}, v{ED}
    v_add_u32 v{EA}, 32, v{EA}
    v_lshlrev_b32 v{ED}, 5, v{TID}
    v_add_u32 v{ED}, {CW}, v{ED}
    """)
    for i in range(4):
        a(f"v_mov_b32 v{24 + i}, 0")
    a(f"v_mov_b32 v31, 0")
    a(f"s_cmp_eq_u32 s{S_WAVE}, 3")
    a("s_cselect_b64 s[76:77], 0, -1")
    a("s_mov_b64 exec, s[76:77]")
    for b in range(3):
        a(f"v_add_u32 v22, {b * CB}, v{ED}")
        a(f"ds_write_b128 v22, v[24:27] offset:16")
    a("s_mov_b64 exec, -1")
    a.auto = False

    def dma(c):
        b = c % 3
        for m in range(3):
            for q in range(3):
                a(f"s_add_u32 m0, s{sO2}, {b * CB + m * 96 * 128 + q * 1024}")
                a(f"s_add_u32 s{S_TMP}, s{sK1}, {(96 * c + 8 * q) * 3456 + m * 1152}")
                a(f"buffer_load_dwordx4 v{GM}, {A_}, s{S_TMP} offen lds")
    dma(0)
    dma(1)
    dma(2)
    for c in range(6):
        b = c % 3
        a(f"s_waitcnt vmcnt({[18, 9, 9, 9, 9, 0][c]}) lgkmcnt(0)")
        a("s_barrier")
        if 1 <= c <= 3:
            dma(c + 2)
        a("s_mov_b64 exec, s[76:77]")
        va = 22
        a(f"v_add_u32 v{va}, {b * CB}, v{EA}")
        for m in range(3):
            a(f"ds_read_b32 v{28 + m}, v{va} offset:{m * 96 * 128}")
        a("s_waitcnt lgkmcnt(0)")
        a(f"v_add_u32 v{va}, {b * CB}, v{ED}")
        a(f"ds_write_b128 v{va}, v[28:31]")
        a("s_mov_b64 exec, -1")
        a(f"v_add_u32 v{va}, {b * CB}, v{RM}")
        a(f"v_add_u32 v23, {b * CB}, v{RE}")
        for tp in range(3):
            for tile in (0, 1, 3):
                for sub in range(2):
                    dst = wreg(tile, 3 * c + tp)
                    k, b0 = dst[0], int(dst[2:dst.index(":")])
                    a(f"ds_read_b64_tr_b16 {k}[{b0 + 2 * sub}:{b0 + 2 * sub + 1}], v{va} offset:{ {0: 0, 1: 1, 3: 2}[tile] * 96 * 128 + (32 * tp + 4 * sub) * 128}")
        a("s_waitcnt lgkmcnt(0)")
        a("s_barrier")
        for tp in range(3):
            for tile in (2, 4):
                for sub in range(2):
                    dst = wreg(tile, 3 * c + tp)
                    k, b0 = dst[0], int(dst[2:dst.index(":")])
                    a(f"ds_read_b64_tr_b16 {k}[{b0 + 2 * sub}:{b0 + 2 * sub + 1}], v23 offset:{(32 * tp + 4 * sub) * 32 + (8 if tile == 4 else 0)}")
    a("s_waitcnt lgkmcnt(0)")
    a("s_barrier")
    a.auto = True
    a.vmq, a.lgq = [], []
    a.force_wait(vm=0) if TRACE == 6 else None
    trace6(a, vT0, vT1)
    for i in range(4):
        a(f"v_mov_b32 v{RING + i}, 0x3f803f80")
    for t in range(18):
        for tile in range(5):
            w, o = wreg(tile, t), vr(RING, 4)
            a(MF(CS + 4 * tile, o if tile >= 3 else w, w if tile >= 3 else o, "0" if t == 0 else None))
    NEG = hex(f32bits(-1e30))
    a(f"""
    v_lshlrev_b32 v{vSTA}, 5, v{vC}
    s_lshl_b32 s{S_TMP}, s{sK3}, 4
    v_add_u32 v{vSTA}, s{S_TMP}, v{vSTA}
    v_mul_u32_u24 v{vT1}, 1536, v{vG}
    v_add_u32 v{vSTA}, v{vSTA}, v{vT1}
    s_lshl_b32 s{S_TMP}, s{S_WAVE}, 7
    s_add_u32 s{S_TMP}, s{S_TMP}, {2 * XBUF}
    v_lshl_add_u32 v{vLDS}, v{vC}, 3, s{S_TMP}
    v_lshl_add_u32 v{vLDS + 1}, v{vG}, 5, s{S_TMP}
    v_lshlrev_b32 v{vOUT}, 5, v{vC}
    s_lshl_b32 s{S_TMP}, s{sK3}, 4
    v_add_u32 v{vOUT}, s{S_TMP}, v{vOUT}
    s_lshr_b32 s{S_TMP}, s{sK2}, 2
    s_add_u32 s{S_TMP}, s{S_TMP}, 64
    s_lshl_b32 s{S_TMP}, s{S_TMP}, 9
    s_and_b32 s{S_TMP + 1}, s{sK2}, 3
    s_lshl_b32 s{S_TMP + 1}, s{S_TMP + 1}, 2
    s_add_u32 s{S_TMP}, s{S_TMP}, s{S_TMP + 1}
    v_add_u32 v{vOUT + 1}, s{S_TMP}, v{vOUT}
    v_lshrrev_b32 v{vT0}, 1, v{vG}
    v_lshl_add_u32 v{vOUT}, v{vT0}, 9, v{vOUT}
    v_and_b32 v{vT0}, 1, v{vG}
    v_lshl_add_u32 v{vOUT}, v{vT0}, 3, v{vOUT}
    s_lshl_b32 s{S_TMP}, s{sK2}, 10
    v_add_u32 v{vOUT}, s{S_TMP}, v{vOUT}
    s_lshl_b32 s{sK1}, s{S_ROLE}, 7
    s_lshl_b32 s{S_TMP}, s{S_WAVE}, 2
    s_add_u32 s{sK1}, s{sK1}, s{S_TMP}
    s_add_u32 s{sK1}, s{sK1}, {WS_FLAGS + FL_OA}
    s_mov_b32 s{sK4}, {hex(f32bits(18 ** -0.5 * 1.4426950408889634))}
    v_mov_b32 v{vT1}, {NEG}
    """)
    for i in range(4):
        a(f"v_lshl_add_u32 v{vT0}, v{vG}, 2, {i}")
        a(f"v_sub_u32 v{vT0}, v{vT0}, v{vC}")
        a(f"v_cmp_le_i32 vcc, 9, v{vT0}")
        a(f"v_cndmask_b32 v{BI + i}, v{vT1}, v{vZERO}, vcc")
        a(f"v_add_u32 v{vT0}, 7, v{vT0}")
        a(f"v_cmp_ge_u32 vcc, 7, v{vT0}")
        a(f"v_cndmask_b32 v{BI + 4 + i}, v{vT1}, v{vZERO}, vcc")
    for r in (ST8, VA, VB):
        for i in range(4):
            a(f"v_mov_b32 v{r + i}, 0")
    for i in range(4):
        a(f"v_mov_b32 v{ST8 + 4 + i}, 0x3f803f80")
    a(f"v_mov_b32 v{QB + 3}, 0")
    a(f"v_mov_b32 v{KC + 3}, 0")

    def st_loads(srd_):
        pre = [f"s_mul_i32 s{sO3}, s{sNL}, {2 * ST_BYTES}", f"s_mul_i32 s{S_TMP + 1}, s{sNS}, {ST_SEG}",
               f"s_add_u32 s{sO3}, s{sO3}, s{S_TMP + 1}", f"s_add_u32 s{sO3}, s{sO3}, {WS_ST}"]
        ops = [[f"buffer_load_dwordx4 {vr(STR + 12 + 4 * i, 4)}, v{vSTA}, {srd_}, s{sO3} offen offset:{512 * i}"] for i in range(3)]
        ops[0] = pre + ops[0]
        return ops

    def st2(text, mask):
        if not LOCAL:
            return [f"s_mov_b64 exec, {mask}", text + " sc1", "s_mov_b64 exec, -1"]
        return [f"s_mov_b64 exec, {mask}", text, f"s_and_b64 exec, exec, s[{sIMP}:{sIMP + 1}]", text + " sc1", "s_mov_b64 exec, -1"]

    def compute(a, hook):
        S0 = STR + 12
        a(f"v_lshlrev_b32 v{vXA}, 9, v{vG}")
        a(f"v_lshl_add_u32 v{vXA}, v{vC}, 5, v{vXA}")
        a(f"s_lshl_b32 s{S_TMP}, s{sK3}, 4")
        a(f"s_add_u32 s{S_TMP}, s{S_TMP}, s{sBUF}")
        a(f"v_add_u32 v{vXA}, s{S_TMP}, v{vXA}")
        S1, S2 = S0, S0 + 1
        sm = [f"v_add_f32 v{S0 + j}, v{S0 + j}, v{S0 + 4 * i + j}" for i in (1, 2) for j in range(4)]
        sm += [f"v_add_f32 v{S1}, v{S1}, v{S0 + 2}", f"v_add_f32 v{S2}, v{S2}, v{S0 + 3}"]
        for sw in (32, 16):
            sm += [f"v_mov_b32 v{S0 + 2}, v{S1}", f"v_mov_b32 v{S0 + 3}, v{S2}",
                   f"v_permlane{sw}_swap_b32 v{S1}, v{S0 + 2}", f"v_permlane{sw}_swap_b32 v{S2}, v{S0 + 3}",
                   f"v_add_f32 v{S1}, v{S1}, v{S0 + 2}", f"v_add_f32 v{S2}, v{S2}, v{S0 + 3}"]
        sm += [f"v_mul_f32 v{S1}, {hex(f32bits(1.0 / 576))}, v{S1}", f"v_mul_f32 v{S2}, {hex(f32bits(1.0 / 576))}, v{S2}",
               f"v_fma_f32 v{S2}, -v{S1}, v{S1}, v{S2}", f"v_max_f32 v{S2}, 0, v{S2}",
               f"v_add_f32 v{S2}, {hex(f32bits(1e-5))}, v{S2}", f"v_rsq_f32 v{LN}, v{S2}",
               f"v_mul_f32 v{LN + 1}, v{S1}, v{LN}",
               f"ds_write_b64 v{vLDS}, {vr(LN, 2)}",
               f"ds_read_b128 {vr(LN + 4, 4)}, v{vLDS + 1}", f"ds_read_b128 {vr(LN + 8, 4)}, v{vLDS + 1} offset:16"]
        def rd(n):
            return f"ds_read_b128 {vr(RING + 4 * (n % 3), 4)}, v{vXA} offset:{(n % 18) * 2048}"
        q0, k0, ex, v0, vx = [ACC + 4 * i for i in range(5)]
        KP = ST8
        MX, T1 = vT0, vT1
        LQ, OX, OY, ON = ACC, ACC + 4, ACC + 8, ST8 + 4

        def fold(tile):
            ops = []
            for i in range(4):
                r = ACC + 4 * tile + i
                rs, mr = (LN + 4 + 2 * i, LN + 5 + 2 * i) if tile >= 3 else (LN, LN + 1)
                ops += [f"v_mul_f32 v{LN + 2}, v{mr}, v{CS + 4 * tile + i}", f"v_fma_f32 v{r}, v{r}, v{rs}, -v{LN + 2}"]
            return ops
        post = fold(0) + fold(2) + fold(1) + [
            f"v_cvt_pk_bf16_f32 v{QB}, v{q0}, v{q0 + 1}", f"v_cvt_pk_bf16_f32 v{QB + 1}, v{q0 + 2}, v{q0 + 3}",
            f"v_cvt_pk_bf16_f32 v{QB + 2}, v{ex}, v{ex + 1}",
            f"v_cvt_pk_bf16_f32 v{KC}, v{k0}, v{k0 + 1}", f"v_cvt_pk_bf16_f32 v{KC + 1}, v{k0 + 2}, v{k0 + 3}",
            f"v_cvt_pk_bf16_f32 v{KC + 2}, v{ex + 2}, v{ex + 3}",
            [f"s_cmp_eq_u32 s{sCS}, 0", f"s_cselect_b32 s{sO1}, {NEG}, 0"],
            None, MF(SP, vr(KP, 4), vr(QB, 4), "0"), None, MF(SP + 4, vr(KC, 4), vr(QB, 4), "0"), None, None]
        post += [f"v_mov_b32 v{KP + i}, v{KC + i}" for i in range(3)] + [None] * 3
        post += [f"v_fma_f32 v{SP + i}, v{SP + i}, s{sK4}, v{BI + i}" for i in range(8)]
        post += [f"v_add_f32 v{SP + i}, s{sO1}, v{SP + i}" for i in range(4)]
        post += [f"v_max3_f32 v{MX}, v{SP}, v{SP + 1}, v{SP + 2}", f"v_max3_f32 v{MX}, v{MX}, v{SP + 3}, v{SP + 4}",
                 f"v_max3_f32 v{MX}, v{MX}, v{SP + 5}, v{SP + 6}", f"v_max_f32 v{MX}, v{MX}, v{SP + 7}",
                 f"v_mov_b32 v{T1}, v{MX}", None, f"v_permlane32_swap_b32 v{MX}, v{T1}", f"v_max_f32 v{MX}, v{MX}, v{T1}",
                 f"v_mov_b32 v{T1}, v{MX}", None, f"v_permlane16_swap_b32 v{MX}, v{T1}", f"v_max_f32 v{MX}, v{MX}, v{T1}"]
        post += [f"v_sub_f32 v{SP + i}, v{SP + i}, v{MX}" for i in range(8)]
        post += [f"v_exp_f32 v{SP + i}, v{SP + i}" for i in range(8)]
        post += [f"v_cvt_pk_bf16_f32 v{PP + i}, v{SP + 2 * i}, v{SP + 2 * i + 1}" for i in range(4)]
        post += [None, MF(LQ, vr(ON, 4), vr(PP, 4), "0"),
                 [f"s_mul_i32 s{sO1}, s{sCO}, {X_SEG}", f"s_add_u32 s{sO1}, s{sO1}, {WS_OA}"]]
        seq(a, rd(0), rd(1))
        for n in range(36):
            t = n % 18
            if n + 2 < 36:
                a(rd(n + 2))
            x = vr(RING + 4 * (n % 3), 4)
            for tile in ((0, 1, 2) if n < 18 else (3, 4)):
                w = wreg(tile, t)
                a(MF(ACC + 4 * tile, x if tile >= 3 else w, w if tile >= 3 else x, "0" if t == 0 else None))
                if n < 18 and sm:
                    a(sm.pop(0))
                if n >= 19:
                    for _ in range(3 if n >= 30 else 2):
                        if post:
                            seq(a, post.pop(0))
            if n == 17:
                assert not sm
            hook(n)
        seq(a, post, f"v_rcp_f32 v{T1}, v{LQ}", fold(3),
            f"v_cvt_pk_bf16_f32 v{VA + 2}, v{v0}, v{v0 + 1}", f"v_cvt_pk_bf16_f32 v{VA + 3}, v{v0 + 2}, v{v0 + 3}",
            fold(4)[:2], MF(OX, vr(VA, 4), vr(PP, 4), "0"), fold(4)[2:],
            f"v_cvt_pk_bf16_f32 v{VB + 2}, v{vx}, v{vx + 1}", f"v_cvt_pk_bf16_f32 v{VB + 3}, v{vx + 2}, v{vx + 3}",
            f"v_mov_b32 v{VA}, v{VA + 2}", f"v_mov_b32 v{VA + 1}, v{VA + 3}",
            MF(OY, vr(VB, 4), vr(PP, 4), "0"),
            [f"v_mul_f32 v{OX + i}, v{T1}, v{OX + i}" for i in range(4)],
            f"v_cvt_pk_bf16_f32 v{OX}, v{OX}, v{OX + 1}", f"v_cvt_pk_bf16_f32 v{OX + 1}, v{OX + 2}, v{OX + 3}",
            st2(f"buffer_store_dwordx2 {vr(OX, 2)}, v{vOUT}, {WS}, s{sO1} offen", "-1"),
            f"v_mov_b32 v{VB}, v{VB + 2}", f"v_mov_b32 v{VB + 1}, v{VB + 3}",
            f"v_mul_f32 v{OY}, v{T1}, v{OY}", f"v_mul_f32 v{OY + 1}, v{T1}, v{OY + 1}",
            f"v_cvt_pk_bf16_f32 v{OY}, v{OY}, v{OY + 1}",
            st2(f"buffer_store_dword v{OY}, v{vOUT + 1}, {WS}, s{sO1} offen", "0xffff"))

    def out_flag():
        a(f"s_mul_i32 s{sPEND}, s{sCO}, {FL_STRIDE}")
        a(f"s_add_u32 s{sPEND}, s{sPEND}, s{sK1}")

    if LOCAL:
        class_impure(a, sIMP, vL16, vT0, vT1, abort, "Laq_pure")
    eager_loop(a, "Laq", abort, done, WS_X, 2 * X_BYTES, FL_XA, ("reg", st_loads), compute, out_flag, 4 if LOCAL else 2, 110, sLAYS,
               hpos=(int(os.environ.get("HAQ", "5" if LOCAL else "14")), [int(x) for x in os.environ.get("LAQ", "14,30").split(",")], 3,
                     [int(x) for x in os.environ.get("WAQ", "1,19").split(",")]), late_extra=True, local=sIMP if LOCAL else None)
```
